```python
import torch

def _softmax(x, axis=-1):
    return torch.softmax(x, dim=axis)
def _gelu(x):
    return torch.nn.functional.gelu(x, approximate="tanh")
def _silu(x):
    return torch.nn.functional.silu(x)
def _sigmoid(x):
    return torch.sigmoid(x)
def _layernorm(x, axis=-1, eps=1e-5):
    m = x.mean(dim=axis, keepdim=True)
    v = x.var(dim=axis, keepdim=True, unbiased=False)
    return (x - m) / torch.sqrt(v + eps)
def _scatter_add(tgt, idx, src, axis=0):
    return tgt.clone().index_add_(axis, idx, src)
def _segment_sum(src, seg, n):
    out = torch.zeros((n,) + src.shape[1:], dtype=src.dtype)
    return out.index_add_(0, seg, src)
def _pad(x, pw):
    flat = tuple(v for pair in reversed(pw) for v in pair)
    return torch.nn.functional.pad(x, flat)

kernel_name = 'standalone__mha_block_cached__near_ridge'

def setup_inputs():

    _w = (lambda a: (lambda t: t.to(torch.bfloat16) if t.is_floating_point() else t)(torch.as_tensor(a)))
    B, Sq, D = 8, 192, 576
    H, Sk, Dh = 32, 1024, 128
    return {
        "x": _w((lambda *s: torch.randn(*s, dtype=torch.bfloat16) * 0.8)(B, Sq, D)),
        "k_cache": _w((lambda *s: torch.randn(*s, dtype=torch.bfloat16) * 0.8)(B, H, Sk, Dh)),
        "v_cache": _w((lambda *s: torch.randn(*s, dtype=torch.bfloat16) * 0.05)(B, H, Sk, Dh)),
        "wq": _w((lambda *s: torch.randn(*s, dtype=torch.bfloat16) * 0.8)(D, H * Dh) * (D ** -0.5)),
        "wo": _w((lambda *s: torch.randn(*s, dtype=torch.bfloat16) * 0.05)(H * Dh, D) * ((H * Dh) ** -0.5)),
    }

def reference(x, k_cache, v_cache, wq, wo):
    B, Sq, D = x.shape
    H, Dh = 32, 128
    q = (lambda x, *d: x.permute(*d))((x @ wq).reshape(B, Sq, H, Dh), 0, 2, 1, 3)
    scores = torch.einsum("bhqd,bhkd->bhqk", q, k_cache) * (Dh ** -0.5)
    p = _softmax(scores, axis=-1)
    o = torch.einsum("bhqk,bhkd->bhqd", p, v_cache)
    return (lambda x, *d: x.permute(*d))(o, 0, 2, 1, 3).reshape(B, Sq, H * Dh) @ wo
```

```python
import re

TRANS = ('v_exp_f32', 'v_log_f32', 'v_rcp_f32', 'v_rsq_f32', 'v_sqrt_f32', 'v_sin_f32', 'v_cos_f32')

def _regs(op):
    op = op.strip()
    op = re.sub(r'^-', '', op)
    m = re.match(r'^abs\((.*)\)$', op)
    if m: op = m.group(1)
    m = re.match(r'^\|(.*)\|$', op)
    if m: op = m.group(1)
    m = re.match(r'^([vsa])\[(\d+):(\d+)\]$', op)
    if m:
        return [(m.group(1), i) for i in range(int(m.group(2)), int(m.group(3)) + 1)]
    m = re.match(r'^([vsa])(\d+)$', op)
    if m:
        return [(m.group(1), int(m.group(2)))]
    if op == 'vcc': return [('x', 'vcc')]
    if op == 'exec': return [('x', 'exec')]
    if op == 'm0': return [('x', 'm0')]
    return []

class I:
    def __init__(self, text, tag=None):
        self.text = text.strip()
        self.tag = tag
        self.kind = None
        self.reads = []
        self.writes = []
        self.srcA = self.srcB = self.srcC = []
        self.parse()

    def parse(self):
        t = self.text.split(';')[0].strip()
        if not t:
            self.kind = 'comment'; return
        if t.endswith(':'):
            self.kind = 'label'; return
        if t.startswith('.'):
            self.kind = 'directive'; return
        parts = t.split(None, 1)
        mn = parts[0]
        self.mn = mn
        rest = parts[1] if len(parts) > 1 else ''
        ops = [o.strip() for o in re.split(r',(?![^\[]*\])', rest)] if rest else []
        mods = ''
        if ops:
            sp = ops[-1].split(None, 1)
            if len(sp) > 1:
                ops[-1] = sp[0]; mods = sp[1]
        self.ops = ops
        self.mods = mods
        R = lambda k: _regs(ops[k]) if k < len(ops) else []
        base = re.sub(r'_(e32|e64|dpp|sdwa)$', '', mn)
        if mn.startswith('v_mfma'):
            self.kind = 'mfma'
            self.writes = R(0); self.srcA = R(1); self.srcB = R(2); self.srcC = R(3)
            self.reads = self.srcA + self.srcB + self.srcC
            self.passes = 8 if '32x32' in mn else 4
        elif mn.startswith('v_cmp'):
            self.kind = 'valu'; self.writes = R(0); self.reads = R(1) + R(2)
        elif mn.startswith('v_readfirstlane') or mn.startswith('v_readlane'):
            self.kind = 'valu'; self.sub = 'readlane'; self.writes = R(0); self.reads = R(1) + R(2)
        elif mn.startswith('v_permlane') and 'swap' in mn:
            self.kind = 'valu'; self.sub = 'permlane'; self.writes = R(0) + R(1); self.reads = R(0) + R(1)
        elif mn.startswith('v_'):
            self.kind = 'trans' if base in TRANS else 'valu'
            self.writes = R(0)
            self.reads = sum((R(k) for k in range(1, len(ops))), [])
            if base in ('v_fmac_f32', 'v_pk_fmac_f16'): self.reads += R(0)
            if base in ('v_add_co_u32', 'v_addc_co_u32', 'v_sub_co_u32'):
                self.writes = R(0) + R(1); self.reads = sum((R(k) for k in range(2, len(ops))), [])
            if base == 'v_cndmask_b32' and len(ops) == 3: self.reads += [('x', 'vcc')]
            if 'dpp' in mn or 'quad_perm' in mods or 'row_' in mods: self.sub = 'dpp'
        elif mn.startswith('ds_read') or mn.startswith('ds_bpermute') or mn.startswith('ds_swizzle'):
            self.kind = 'ds'; self.writes = R(0); self.reads = sum((R(k) for k in range(1, len(ops))), [])
        elif mn.startswith('ds_'):
            self.kind = 'ds'; self.reads = sum((R(k) for k in range(len(ops))), [])
        elif mn.startswith('buffer_load') or mn.startswith('global_load'):
            self.kind = 'vmem'
            if re.search(r'\blds\b', mods) or '_lds_' in mn:
                self.reads = sum((R(k) for k in range(len(ops))), []) + [('x', 'm0')]
                self.sub = 'dma'
            else:
                self.writes = R(0); self.reads = sum((R(k) for k in range(1, len(ops))), [])
        elif mn.startswith('buffer_store') or mn.startswith('global_store'):
            self.kind = 'vmem'; self.sub = 'store'
            self.reads = sum((R(k) for k in range(len(ops))), [])
            self.data = R(0) if mn.startswith('buffer') else R(1)
        elif mn.startswith('buffer_atomic') or mn.startswith('global_atomic'):
            self.kind = 'vmem'; self.sub = 'atomic'
            self.reads = sum((R(k) for k in range(len(ops))), [])
            if re.search(r'\bsc0\b', mods): self.writes = R(0)
        elif mn.startswith('buffer_wbl2') or mn.startswith('buffer_inv'):
            self.kind = 'vmem'; self.sub = 'cache'
        elif mn == 's_waitcnt':
            self.kind = 'wait'
            full = rest
            m = re.search(r'vmcnt\((\d+)\)', full); self.vm = int(m.group(1)) if m else None
            m = re.search(r'lgkmcnt\((\d+)\)', full); self.lgkm = int(m.group(1)) if m else None
        elif mn == 's_nop':
            self.kind = 'nop'; self.n = int(ops[0], 0) + 1
        elif mn == 's_barrier':
            self.kind = 'barrier'
        elif mn.startswith('s_cbranch') or mn == 's_branch' or mn == 's_endpgm':
            self.kind = 'branch'
            if 'vcc' in mn: self.reads = [('x', 'vcc')]
            if 'scc' in mn: self.reads = [('x', 'scc')]
        elif mn.startswith('s_load') or mn.startswith('s_memtime') or mn.startswith('s_memrealtime') or mn.startswith('s_buffer_load'):
            self.kind = 'smem'; self.writes = R(0); self.reads = sum((R(k) for k in range(1, len(ops))), [])
        elif mn.startswith('s_cmp') or mn.startswith('s_bitcmp'):
            self.kind = 'salu'; self.reads = R(0) + R(1); self.writes = [('x', 'scc')]
        elif mn in ('s_setprio', 's_sleep', 's_sethalt'):
            self.kind = 'salu'
        elif mn.startswith('s_'):
            self.kind = 'salu'; self.writes = R(0); self.reads = sum((R(k) for k in range(1, len(ops))), [])
            if mn.startswith('s_cselect') or mn.startswith('s_addc') or mn.startswith('s_subb'): self.reads += [('x', 'scc')]
            if not mn.startswith('s_mov') and not mn.startswith('s_mul') and not mn.startswith('s_cselect') and not mn.startswith('s_getreg'):
                self.writes += [('x', 'scc')]
            if 'saveexec' in mn: self.writes += [('x', 'exec')]; self.reads += [('x', 'exec')]
        else:
            raise ValueError('unknown instruction: ' + self.text)

    def __repr__(self): return self.text


class Block(list):
    def __init__(self, ctx, name=''):
        super().__init__()
        self.ctx = ctx; self.name = name
    def e(self, text, tag=None):
        for line in text.split('\n'):
            line = line.strip()
            if not line: continue
            i = I(line, tag)
            self.append(i)
            self.ctx.note(i)
        return self
    def wait_vm(self, tag):
        n = self.ctx.count_after(self.ctx.vm, tag)
        if n is None: return
        assert n <= 63, ('vmcnt too large', n, tag)
        self.e(f's_waitcnt vmcnt({n})')
    def wait_lgkm(self, tag):
        n = self.ctx.count_after(self.ctx.lgkm, tag)
        if n is None: return
        n = min(n, 15)
        self.e(f's_waitcnt lgkmcnt({n})')
    def text(self):
        out = []
        for i in self:
            out.append(i.text if i.kind in ('label',) else '    ' + i.text)
        return '\n'.join(out)


class Ctx:
    def __init__(self):
        self.vm = []
        self.lgkm = []
    def note(self, i):
        if i.kind == 'vmem':
            self.vm.append(i.tag)
            assert len(self.vm) <= 63, 'more than 63 vmem outstanding: ' + i.text
        elif i.kind == 'ds':
            self.lgkm.append(i.tag)
        elif i.kind == 'wait':
            if i.vm is not None and len(self.vm) > i.vm: self.vm = self.vm[len(self.vm) - i.vm:]
            if i.lgkm is not None and len(self.lgkm) > i.lgkm: self.lgkm = self.lgkm[len(self.lgkm) - i.lgkm:]
    def count_after(self, lst, tag):
        idx = [k for k, t in enumerate(lst) if t == tag]
        if not idx: return None
        return len(lst) - 1 - idx[-1]
    def snap(self): return (list(self.vm), list(self.lgkm))
    def restore(self, s): self.vm, self.lgkm = list(s[0]), list(s[1])


def check_trace(blocks, name=''):
    ins = [i for b in blocks for i in b if i.kind not in ('label', 'comment', 'directive')]
    errs = []
    pos = []
    p = 0
    for i in ins:
        pos.append(p)
        p += i.n if i.kind == 'nop' else 1
    S = set
    vm = []; lg = []
    for k, c in enumerate(ins):
        touched = S(c.reads) | S(c.writes)
        if c.kind != 'wait':
            for o in vm + lg:
                if o.writes and (S(o.writes) & touched):
                    errs.append(f'[{name}] missing wait: "{c.text}" touches dest of outstanding "{o.text}"')
        if c.kind == 'vmem': vm.append(c)
        elif c.kind in ('ds', 'smem'): lg.append(c)
        elif c.kind == 'wait':
            if c.vm is not None and len(vm) > c.vm: vm = vm[len(vm) - c.vm:]
            if c.lgkm is not None:
                sm = [o for o in lg if o.kind == 'smem'] if c.lgkm > 0 else []
                ds = [o for o in lg if o.kind != 'smem']
                if len(ds) > c.lgkm: ds = ds[len(ds) - c.lgkm:]
                lg = sm + ds
        for j in range(k - 1, max(-1, k - 24), -1):
            pr = ins[j]
            d = pos[k] - pos[j] - (pr.n if pr.kind == 'nop' else 1)
            if pr.kind == 'nop': continue
            if d >= 20: break
            need = 0; why = ''
            pw = S(pr.writes)
            isvalu = c.kind in ('valu', 'trans')
            if pr.kind in ('valu', 'trans'):
                pwv = {r for r in pw if r[0] in 'va'}
                pws = {r for r in pw if r[0] == 's' or r == ('x', 'vcc')}
                if c.kind == 'mfma' and pwv & S(c.reads): need, why = 2, 'valu->mfma'
                if getattr(c, 'sub', '') == 'permlane' and pwv & S(c.reads): need, why = max(need, 2), 'valu->permlane'
                if getattr(c, 'sub', '') == 'dpp' and pwv & S(c.reads): need, why = max(need, 2), 'valu->dpp'
                if getattr(c, 'sub', '') == 'readlane' and pwv & S(c.reads): need, why = max(need, 1), 'valu->readlane'
                if pr.kind == 'trans' and c.kind in ('valu', 'mfma') and pwv & S(c.reads): need, why = max(need, 1 if c.kind == 'valu' else 2), 'trans->valu'
                if isvalu and pws & S(c.reads): need, why = max(need, 2), 'valu sgpr->valu'
                if c.kind == 'vmem' and pws & S(c.reads): need, why = max(need, 5), 'valu sgpr->vmem'
                if c.kind in ('salu', 'branch') and pws & S(c.reads) and getattr(pr, 'sub', '') == 'readlane': need, why = max(need, 1), 'readlane->salu(pad)'
                if ('x', 'exec') in pw and c.kind == 'mfma': need, why = max(need, 4), 'exec->mfma'
            if pr.kind == 'mfma':
                P = pr.passes
                tab_ab = {2: 5, 4: 8, 8: 12, 16: 20}[P]
                tab_c = {2: 4, 4: 6, 8: 10, 16: 18}[P]
                tab_war = {2: 1, 4: 3, 8: 7, 16: 15}[P]
                if c.kind == 'mfma':
                    if pw & (S(c.srcA) | S(c.srcB)): need, why = tab_ab, 'mfma D->mfma A/B'
                    elif pw & S(c.srcC):
                        if c.srcC == pr.writes and c.passes == P: pass
                        else: need, why = tab_c, 'mfma D->mfma C overlap'
                    elif pw & S(c.writes): need, why = tab_ab, 'mfma D->mfma D WAW (conservative)'
                elif c.kind in ('valu', 'trans', 'vmem', 'ds'):
                    if pw & (S(c.reads) | S(c.writes)): need, why = tab_ab, 'mfma D->valu/mem'
                    if c.kind in ('valu', 'trans') and S(pr.srcC) & S(c.writes): need, why = max(need, tab_war), 'mfma C WAR'
            if pr.kind == 'salu' and ('x', 'm0') in pw and getattr(c, 'sub', '') == 'dma': need, why = max(need, 1), 'm0->dma'
            if pr.kind == 'vmem' and getattr(pr, 'sub', '') == 'store' and len(pr.data) >= 3 and S(pr.data) & S(c.writes):
                need, why = max(need, 2), 'store data WAR'
            if pr.kind == 'ds' and not pr.writes and len(pr.reads) >= 4 and c.kind in ('valu', 'trans') and S(pr.reads[1:]) & S(c.writes):
                need, why = max(need, 2), 'ds_write data WAR (conservative)'
            if d < need:
                errs.append(f'[{name}] hazard {why}: need {need} have {d}: "{pr.text}" -> "{c.text}"')
    return errs


def interleave(backbone, fillers, start=0, end=None):
    n = len(backbone)
    if end is None: end = n
    out = []
    m = len(fillers)
    k = 0
    span = end - start
    for p in range(n):
        out.append(backbone[p])
        if p >= start and p < end:
            tgt = (m * (p - start + 1) + span - 1) // span if span else m
            while k < min(tgt, m):
                out.append(fillers[k]); k += 1
    while k < m:
        out.append(fillers[k]); k += 1
    return out
```

```python
import sys, struct, math
from asmlib import *

OPT = dict(a.split('=') for a in sys.argv[2:] if '=' in a)
STAMP = int(OPT.get('stamp', 0))
KVPOL = OPT.get('kvpol', 'nt')
XPOL = OPT.get('xpol', '')
WPOL = OPT.get('wpol', '')
OSTPOL = OPT.get('ostpol', '')
OLDPOL = OPT.get('oldpol', '')
WOPOL = OPT.get('wopol', '')
THR = float(OPT.get('thr', 8.0))

def f2u(f): return struct.unpack('<I', struct.pack('<f', f))[0]
SCALE = math.log2(math.e) / math.sqrt(128.0)
MF = 'v_mfma_f32_16x16x32_bf16'
def q4(n): return f'v[{n}:{n+3}]'
def q2(n): return f'v[{n}:{n+1}]'

ACC = 0; QF = 96; SA = 144; SB = 168; KR = 192; VR = 208; NEGM = 224
TMP = 236; VK = 248; VVE = 249; VVO = 250; LS = 251
VXG, VXW, VXR, VA = 244, 245, 246, 247
XRING = [96 + 12 * i for i in range(8)] + [208, 220, 232]
RING = 20; CH = 8192; LDS_TOT = RING * CH
STG = 131072; STG_SLOT = 9216; SCR = STG + 3 * STG_SLOT
S_K, S_V, S_X, S_WQ, S_O = 20, 24, 28, 32, 36
def srd(n): return f's[{n}:{n+3}]'
def acc(t, jt): return ACC + 12 * t + 4 * jt
def qf(s, jt): return QF + 12 * s + 4 * jt
def st(S, kt, jt): return S + 12 * kt + 4 * jt

stamp_idx = [0]
def stamp(b, idx):
    if STAMP:
        b.e(f's_memtime s[{64+2*idx}:{65+2*idx}]')

def k1_prologue(ctx):
    b = Block(ctx, 'k1_pro')
    b.e('s_cmp_ge_u32 s2, 256')
    b.e('s_cbranch_scc1 K1_END')
    b.e('s_load_dwordx8 s[4:11], s[0:1], 0')
    b.e('s_load_dwordx4 s[16:19], s[0:1], 48')
    if STAMP:
        b.e('s_memtime s[64:65]')
        b.e('s_memrealtime s[86:87]')
    b.e('v_lshrrev_b32 v1, 6, v0')
    b.e('v_and_b32 v0, 63, v0')
    b.e('v_readfirstlane_b32 s42, v1')
    b.e('s_and_b32 s43, s2, 7')
    b.e('s_lshr_b32 s44, s2, 3')
    b.e('s_and_b32 s40, s43, 1')
    b.e('s_lshl_b32 s40, s40, 2')
    b.e('s_and_b32 s45, s44, 3')
    b.e('s_add_u32 s40, s40, s45')
    b.e('s_lshr_b32 s41, s43, 1')
    b.e('s_lshl_b32 s41, s41, 3')
    b.e('s_lshr_b32 s45, s44, 2')
    b.e('s_add_u32 s41, s41, s45')
    b.e('s_lshl_b32 s45, s40, 5')
    b.e('s_add_u32 s45, s45, s41')
    b.e('s_lshl_b32 s45, s45, 18')
    b.e('s_mul_i32 s46, s40, 221184')
    b.e('s_lshl_b32 s47, s41, 8')
    b.e('s_mul_i32 s48, s40, 1572864')
    b.e('s_waitcnt lgkmcnt(0)')
    b.e(f's_add_u32 s{S_K}, s6, s45');  b.e(f's_addc_u32 s{S_K+1}, s7, 0')
    b.e(f's_mov_b32 s{S_K+2}, 262144'); b.e(f's_mov_b32 s{S_K+3}, 0x20000')
    b.e(f's_add_u32 s{S_V}, s8, s45');  b.e(f's_addc_u32 s{S_V+1}, s9, 0')
    b.e(f's_mov_b32 s{S_V+2}, 262144'); b.e(f's_mov_b32 s{S_V+3}, 0x20000')
    b.e(f's_add_u32 s{S_X}, s4, s46');  b.e(f's_addc_u32 s{S_X+1}, s5, 0')
    b.e(f's_mov_b32 s{S_X+2}, 221184'); b.e(f's_mov_b32 s{S_X+3}, 0x20000')
    b.e(f's_add_u32 s{S_WQ}, s10, s47'); b.e(f's_addc_u32 s{S_WQ+1}, s11, 0')
    b.e(f's_sub_u32 s{S_WQ+2}, 4718592, s47'); b.e(f's_mov_b32 s{S_WQ+3}, 0x20000')
    b.e(f's_add_u32 s{S_O}, s18, s48'); b.e(f's_addc_u32 s{S_O+1}, s19, 0')
    b.e(f's_mov_b32 s{S_O+2}, 1572864'); b.e(f's_mov_b32 s{S_O+3}, 0x20000')
    b.e('s_cmp_ge_u32 s42, 4')
    b.e('s_cbranch_scc1 K1_LOADER')
    return b

def chunk_of(n):
    if n == 0: return ('K', 0)
    if n % 2 == 1:
        j = (n + 1) // 2
        return ('K', j) if j < 32 else None
    j = (n - 2) // 2
    return ('V', j) if j < 32 else None

def k1_loader(ctx):
    b = Block(ctx, 'loader')
    b.e('K1_LOADER:')
    b.e('s_sub_u32 s42, s42, 4')
    b.e('v_lshrrev_b32 v1, 4, v0')
    b.e('v_and_b32 v2, 15, v0')
    b.e('s_lshl_b32 s43, s42, 3')
    b.e('v_add_u32 v3, s43, v1')
    b.e('v_lshlrev_b32 v3, 13, v3')
    b.e('v_lshl_add_u32 v3, v2, 4, v3')
    WQ0 = 16
    for ks in range(18):
        for e in range(2):
            n = 2 * ks + e
            off = (32 * ks + 4 * e) * 8192
            if off == 0:
                b.e(f'buffer_load_dwordx4 {q4(WQ0+4*n)}, v3, {srd(S_WQ)}, 0 offen {WPOL}', ('wq', ks))
            else:
                b.e(f's_mov_b32 s56, {off}')
                b.e(f'buffer_load_dwordx4 {q4(WQ0+4*n)}, v3, {srd(S_WQ)}, s56 offen {WPOL}', ('wq', ks))
    b.e('v_bfe_u32 v4, v0, 2, 3')
    b.e('v_lshrrev_b32 v5, 5, v0')
    b.e('v_and_b32 v6, 3, v0')
    b.e('v_lshrrev_b32 v7, 2, v4')
    b.e('v_lshlrev_b32 v7, 1, v7')
    b.e('v_xor_b32 v6, v6, v7')
    b.e('v_lshlrev_b32 v6, 4, v6')
    b.e('v_lshl_add_u32 v6, v5, 6, v6')
    b.e('v_lshl_add_u32 v6, v4, 8, v6')
    b.e('s_lshr_b32 s43, s42, 1')
    b.e('s_lshl_b32 s43, s43, 12')
    b.e('s_and_b32 s44, s42, 1')
    b.e('s_lshl_b32 s45, s44, 7')
    b.e('s_add_u32 s45, s45, s43')
    b.e('v_add_u32 v6, s45, v6')
    b.e('s_lshl_b32 s44, s44, 10')
    b.e('s_add_u32 s52, s44, s43')
    def dma(n):
        c = chunk_of(n)
        if c is None: return
        S = S_K if c[0] == 'K' else S_V
        b.e(f's_add_u32 m0, s52, {(n % RING) * CH}')
        b.e(f's_mov_b32 s56, {c[1] * CH}')
        b.e(f'buffer_load_dwordx4 v6, {srd(S)}, s56 offen {KVPOL} lds', ('kv', n))
        b.e(f'buffer_load_dwordx4 v6, {srd(S)}, s56 offen offset:2048 {KVPOL} lds', ('kv', n))
    for n in range(12): dma(n)
    b.e('s_lshr_b32 s43, s42, 1')
    b.e('s_lshl_b32 s43, s43, 4')
    b.e('s_and_b32 s44, s42, 1')
    b.e('s_lshl_b32 s44, s44, 2')
    b.e('s_add_u32 s43, s43, s44')
    b.e('v_add_u32 v7, s43, v1')
    b.e('v_mul_u32_u24 v7, 288, v7')
    b.e('v_lshl_add_u32 v7, v2, 3, v7')
    for sl in range(3):
        for e in range(2):
            b.e(f'v_add_u32 v{8+2*sl+e}, {STG + sl*STG_SLOT + e*8*288}, v7')
    def wr(ks):
        b.wait_vm(('wq', ks))
        for e in range(2):
            r = WQ0 + 4 * (2 * ks + e)
            b.e(f'ds_write2_b64 v{8+2*(ks%3)+e}, {q2(r)}, {q2(r+2)} offset0:0 offset1:16', ('w',))
    wr(0); wr(1)
    nxt = 12
    for k in range(18):
        b.e('s_waitcnt lgkmcnt(0)')
        b.e('s_barrier')
        if nxt < 16:
            dma(nxt); nxt += 1
        if k + 2 < 18: wr(k + 2)
    b.wait_vm(('kv', 2))
    b.e('s_barrier')
    dma(16); dma(17)
    for T in range(16):
        need = max(n for n in range(4 * T + 7) if chunk_of(n) is not None and n <= 64)
        b.wait_vm(('kv', need))
        b.e('s_barrier')
        for n in range(4 * T + 18, 4 * T + 22):
            if n <= 64: dma(n)
    b.e('s_endpgm')
    return b

def k1_qproj(ctx):
    b = Block(ctx, 'qproj')
    b.e('s_mul_i32 s43, s42, 48')
    b.e('v_lshrrev_b32 v1, 2, v0')
    b.e('v_add_u32 v2, s43, v1')
    b.e('v_mul_u32_u24 v2, 1152, v2')
    b.e('v_and_b32 v3, 3, v0')
    b.e(f'v_lshl_add_u32 v{VXG}, v3, 4, v2')
    b.e('s_mov_b32 s60, 18432')
    b.e('s_mov_b32 s61, 36864')
    so = ['0', 's60', 's61']
    def xload(ks):
        base = XRING[ks % len(XRING)]
        for jt in range(3):
            b.e(f'buffer_load_dwordx4 {q4(base+4*jt)}, v{VXG}, {srd(S_X)}, {so[jt]} offen offset:{ks*64} {XPOL}', ('x', ks))
    for ks in range(len(XRING)): xload(ks)
    b.e('s_lshl_b32 s43, s42, 10')
    b.e(f's_add_u32 s43, s43, {SCR}')
    b.e('v_lshrrev_b32 v4, 4, v0')
    b.e('v_sub_u32 v5, 0, v4')
    b.e('v_and_b32 v5, 3, v5')
    b.e('v_xor_b32 v5, v5, v3')
    b.e('v_lshlrev_b32 v5, 4, v5')
    b.e('v_lshl_add_u32 v5, v1, 6, v5')
    b.e(f'v_add_u32 v{VXW}, s43, v5')
    b.e('v_and_b32 v6, 15, v0')
    b.e('v_lshrrev_b32 v7, 2, v6')
    b.e('v_sub_u32 v5, 0, v7')
    b.e('v_and_b32 v5, 3, v5')
    b.e('v_xor_b32 v5, v5, v4')
    b.e('v_lshlrev_b32 v5, 4, v5')
    b.e('v_lshl_add_u32 v5, v6, 6, v5')
    b.e(f'v_add_u32 v{VXR}, s43, v5')
    b.e('v_lshrrev_b32 v5, 1, v4')
    b.e('v_lshlrev_b32 v5, 4, v5')
    b.e('v_and_b32 v8, 1, v4')
    b.e('v_lshl_add_u32 v5, v8, 2, v5')
    b.e('v_add_u32 v5, v5, v7')
    b.e('v_mul_u32_u24 v5, 288, v5')
    b.e('v_lshl_add_u32 v5, v3, 3, v5')
    b.e(f'v_add_u32 v{VA}, {STG}, v5')
    b.e('v_add_u32 v5, 4, v6')
    b.e('v_bfe_u32 v8, v5, 3, 1')
    b.e('v_and_b32 v9, 7, v5')
    b.e('v_lshrrev_b32 v10, 2, v9')
    b.e('v_lshlrev_b32 v10, 1, v10')
    b.e('v_xor_b32 v10, v10, v4')
    b.e('v_lshlrev_b32 v10, 4, v10')
    b.e('v_lshl_add_u32 v10, v9, 6, v10')
    b.e(f'v_lshl_add_u32 v{VK}, v8, 11, v10')
    b.e('v_add_u32 v5, 1, v4')
    b.e('v_bfe_u32 v8, v5, 1, 1')
    b.e('v_and_b32 v9, 1, v5')
    b.e('v_lshl_add_u32 v10, v9, 2, v7')
    b.e('v_lshlrev_b32 v10, 6, v10')
    b.e('v_lshl_add_u32 v10, v9, 5, v10')
    b.e('v_lshl_add_u32 v10, v3, 3, v10')
    b.e('v_lshl_add_u32 v10, v8, 11, v10')
    b.e(f'v_add_u32 v{VVE}, {2*CH}, v10')
    b.e(f'v_xor_b32 v{VVO}, 32, v{VVE}')
    b.e(f'v_lshlrev_b32 v254, 4, v0')
    def xpose(ks):
        base = XRING[ks % len(XRING)]
        b.wait_vm(('x', ks))
        for jt in range(3):
            b.e(f'ds_write_b128 v{VXW}, {q4(base+4*jt)}', ('xw', ks, jt))
            b.e(f'ds_read_b128 {q4(base+4*jt)}, v{VXR}', ('xr', ks))
    def aread(ks, t):
        r = KR + 4 * (t % 4)
        for u in range(2):
            off = (ks % 3) * STG_SLOT + u * 2304 + (t % 2) * 128 + (t // 2) * 32
            b.e(f'ds_read_b64_tr_b16 {q2(r+2*u)}, v{VA} offset:{off}', ('a', ks, t))
    xpose(0)
    for ks in range(18):
        b.e('s_barrier')
        if ks == 0:
            stamp(b, 1)
            for t in range(4): aread(0, t)
        base = XRING[ks % len(XRING)]
        for t in range(8):
            if t == 0: b.wait_lgkm(('xr', ks))
            b.wait_lgkm(('a', ks, t))
            for jt in range(3):
                c = '0' if ks == 0 else q4(acc(t, jt))
                b.e(f'{MF} {q4(acc(t,jt))}, {q4(KR+4*(t%4))}, {q4(base+4*jt)}, {c}')
            if t < 4: aread(ks, t + 4)
            elif ks + 1 < 18: aread(ks + 1, t - 4)
            if t == 1 and ks + 1 < 18: xpose(ks + 1)
        if ks + len(XRING) < 18: xload(ks + len(XRING))
    b.e('s_barrier')
    stamp(b, 2)
    return b

def kread(b, f):
    kt, s = f // 4, f % 4
    b.e(f'ds_read_b128 {q4(KR+4*(f%4))}, v{VK} offset:{kt*4096 + (s//2)*1024 + (s%2)*512}', ('k', f))
def vread(b, t):
    tau = t // 2
    a = VVO if t % 2 else VVE
    for u in range(2):
        b.e(f'ds_read_b64_tr_b16 {q2(VR+4*(t%4)+2*u)}, v{a} offset:{u*4096 + (tau//2)*1024 + (tau%2)*512}', ('v', t))
def kadv(b, first=False):
    if first:
        b.e(f'v_add_u32 v{VK}, {CH}, v{VK}')
        b.e(f's_mov_b32 s45, {CH}')
        return
    b.e(f's_cmp_ge_u32 s45, {LDS_TOT - 2*CH}')
    b.e(f's_cselect_b32 s47, s50, s51')
    b.e(f's_add_u32 s45, s45, s47')
    b.e(f'v_add_u32 v{VK}, s47, v{VK}')
def vadv(b):
    b.e(f's_cmp_ge_u32 s46, {LDS_TOT - 2*CH}')
    b.e(f's_cselect_b32 s47, s50, s51')
    b.e(f's_add_u32 s46, s46, s47')
    b.e(f'v_add_u32 v{VVE}, s47, v{VVE}')
    b.e(f'v_add_u32 v{VVO}, s47, v{VVO}')

def E(text, tag=None):
    return lambda b: b.e(text, tag)

def qk_backbone(S, cinit, nextV=True, first=False):
    bb = []
    for f in range(8):
        kt, s = f // 4, f % 4
        for jt in range(3):
            def slot(b, f=f, kt=kt, s=s, jt=jt):
                if jt == 0: b.wait_lgkm(('k', f))
                d = q4(st(S, kt, jt))
                c = d if s else (q4(NEGM + 4 * jt) if cinit == 'negm' else '0')
                b.e(f'{MF} {d}, {q4(KR+4*(f%4))}, {q4(qf(s,jt))}, {c}')
                if jt == 2:
                    if f < 4: kread(b, f + 4)
                    if f == 3: kadv(b, first)
                    if f >= 4:
                        if nextV == 'K': kread(b, f - 4)
                        elif nextV: vread(b, f - 4)
            bb.append(slot)
    return bb

def pv_backbone(P, nextK=True, nextV=False):
    bb = []
    for t in range(8):
        for jt in range(3):
            def slot(b, t=t, jt=jt):
                if jt == 0: b.wait_lgkm(('v', t))
                d = q4(acc(t, jt))
                b.e(f'{MF} {d}, {q4(VR+4*(t%4))}, {q4(st(P,0,jt))}, {d}')
                if jt == 2:
                    if t < 4: vread(b, t + 4)
                    if t == 3: vadv(b)
                    if t >= 4 and nextK: kread(b, t - 4)
                    if t >= 4 and nextV: vread(b, t - 4)
            bb.append(slot)
    return bb

def sregs(S, jt): return [st(S, 0, jt) + i for i in range(4)] + [st(S, 1, jt) + i for i in range(4)]

def max_fillers(S):
    order = [st(S, 0, jt) + i for jt in range(3) for i in range(4)] + [st(S, 1, jt) + i for jt in range(3) for i in range(4)]
    t = TMP
    fl = [E(f'v_max3_f32 v{t}, v{order[0]}, v{order[1]}, v{order[2]}')]
    k = 3
    while k + 1 < 24:
        fl.append(E(f'v_max3_f32 v{t}, v{t}, v{order[k]}, v{order[k+1]}')); k += 2
    fl.append(E(f'v_max_f32 v{t}, v{t}, v{order[23]}'))
    fl.append(E(f'v_cmp_lt_f32 vcc, {hex(f2u(THR))}, v{t}'))
    return fl

def sm_fillers(S):
    fl = []
    for jt in range(3):
        r = sregs(S, jt)
        seq = []
        for i in range(8):
            seq.append(E(f'v_exp_f32 v{r[i]}, v{r[i]}'))
            if i >= 1: seq.append(E(f'v_add_f32 v{LS+jt}, v{LS+jt}, v{r[i-1]}'))
        seq.append(E(f'v_cvt_pk_bf16_f32 v{r[0]}, v{r[0]}, v{r[1]}'))
        seq.append(E(f'v_add_f32 v{LS+jt}, v{LS+jt}, v{r[7]}'))
        seq.append(E(f'v_cvt_pk_bf16_f32 v{r[1]}, v{r[2]}, v{r[3]}'))
        seq.append(E(f'v_cvt_pk_bf16_f32 v{r[2]}, v{r[4]}, v{r[5]}'))
        seq.append(E(f'v_cvt_pk_bf16_f32 v{r[3]}, v{r[6]}, v{r[7]}'))
        fl += seq
    return fl
SM_SPLIT = 26

def rowmax(b, S, jt, t0, t1):
    r = sregs(S, jt)
    b.e(f'v_max3_f32 v{t0}, v{r[0]}, v{r[1]}, v{r[2]}')
    b.e(f'v_max3_f32 v{t0}, v{t0}, v{r[3]}, v{r[4]}')
    b.e(f'v_max3_f32 v{t0}, v{t0}, v{r[5]}, v{r[6]}')
    b.e(f'v_max_f32 v{t0}, v{t0}, v{r[7]}')
    xreduce(b, t0, t1, 'v_max_f32')

def xreduce(b, t0, t1, op):
    for sw in ('v_permlane32_swap_b32', 'v_permlane16_swap_b32'):
        b.e(f'v_mov_b32 v{t1}, v{t0}')
        b.e('s_nop 1')
        b.e(f'{sw} v{t0}, v{t1}')
        b.e('s_nop 1')
        b.e(f'{op} v{t0}, v{t0}, v{t1}')

def rescale(b, S):
    t0, t1, t2 = TMP + 1, TMP + 2, TMP + 3
    for jt in range(3):
        rowmax(b, S, jt, t0, t1)
        b.e(f'v_max_f32 v{t0}, 0, v{t0}')
        b.e(f'v_exp_f32 v{t2}, -v{t0}')
        for r in sregs(S, jt): b.e(f'v_sub_f32 v{r}, v{r}, v{t0}')
        for i in range(4): b.e(f'v_sub_f32 v{NEGM+4*jt+i}, v{NEGM+4*jt+i}, v{t0}')
        b.e(f'v_mul_f32 v{LS+jt}, v{LS+jt}, v{t2}')
        for t in range(8):
            for i in range(4): b.e(f'v_mul_f32 v{acc(t,jt)+i}, v{acc(t,jt)+i}, v{t2}')

def run(b, lst):
    for f in lst: f(b)

def k1_att_prologue(ctx):
    b = Block(ctx, 'att_pro')
    for f in range(4): kread(b, f)
    b.e(f's_mov_b32 s48, {hex(f2u(SCALE))}')
    b.e(f's_mov_b32 s49, {hex(f2u(SCALE))}')
    b.e(f's_mov_b32 s50, {(2*CH - LDS_TOT) & 0xffffffff}')
    b.e(f's_mov_b32 s51, {2*CH}')
    b.e(f's_mov_b32 s46, {2*CH}')
    for s in range(4):
        for jt in range(3):
            for h in range(2):
                a = acc(2 * s + h, jt)
                b.e(f'v_pk_mul_f32 {q2(a)}, {q2(a)}, s[48:49]')
                b.e(f'v_pk_mul_f32 {q2(a+2)}, {q2(a+2)}, s[48:49]')
            for h in range(2):
                a = acc(2 * s + h, jt)
                b.e(f'v_cvt_pk_bf16_f32 v{qf(s,jt)+2*h}, v{a}, v{a+1}')
                b.e(f'v_cvt_pk_bf16_f32 v{qf(s,jt)+2*h+1}, v{a+2}, v{a+3}')
    b.e('s_nop 1')
    zero = [E(f'v_mov_b32 v{ACC+i}, 0') for i in range(96)] + [E(f'v_mov_b32 v{LS+i}, 0') for i in range(3)]
    run(b, interleave(qk_backbone(SA, '0', nextV='K', first=True), zero[:50]))
    run(b, interleave(qk_backbone(SB, '0', nextV=True), zero[50:]))
    for jt in range(3):
        t0, t1 = TMP + 1, TMP + 2
        rowmax(b, SA, jt, t0, t1)
        for i in range(4): b.e(f'v_sub_f32 v{NEGM+4*jt+i}, 0, v{t0}')
        for r in sregs(SA, jt) + sregs(SB, jt): b.e(f'v_sub_f32 v{r}, v{r}, v{t0}')
    run(b, sm_fillers(SA))
    b.e('s_mov_b32 s44, 0')
    stamp(b, 3)
    return b

CHK_AT = 8

def pv_phase(ctx, name, P, S, nextK=True, nextV=False, head=None):
    bb = pv_backbone(P, nextK, nextV)
    a = Block(ctx, name + 'a')
    if head: head(a)
    if S is None:
        run(a, bb)
        return a, None, None
    run(a, interleave(bb[:CHK_AT], max_fillers(S), start=1))
    a.e(f's_cbranch_vccnz {name}_RARE')
    snap = ctx.snap()
    m = Block(ctx, name + 'b')
    sm = sm_fillers(S)[:SM_SPLIT]
    run(m, interleave(bb[CHK_AT:], sm))
    m.e(f'{name}_JOIN:')
    end = ctx.snap()
    ctx.restore(snap)
    r = Block(ctx, name + 'r')
    r.e(f'{name}_RARE:')
    run(r, bb[CHK_AT:])
    r.e('s_nop 7')
    rescale(r, S)
    run(r, sm)
    r.e(f's_branch {name}_JOIN')
    assert ctx.snap() == end, (ctx.snap(), end)
    return a, m, r

def qk_phase(ctx, name, D, S):
    b = Block(ctx, name)
    run(b, interleave(qk_backbone(D, 'negm'), sm_fillers(S)[SM_SPLIT:], end=22))
    return b

def k1_epilogue(ctx):
    b = Block(ctx, 'epi')
    stamp(b, 4)
    b.e('s_mul_i32 s43, s42, 393216')
    b.e('s_lshl_b32 s45, s41, 12')
    b.e('s_add_u32 s43, s43, s45')
    b.e('s_add_u32 s45, s43, 131072')
    b.e('s_add_u32 s46, s43, 262144')
    so = ['s43', 's45', 's46']
    for jt in range(3):
        xreduce(b, LS + jt, TMP, 'v_add_f32')
        b.e(f'v_rcp_f32 v{TMP+2+2*jt}, v{LS+jt}')
    for jt in range(3):
        b.e(f'v_mov_b32 v{TMP+3+2*jt}, v{TMP+2+2*jt}')
    for jt in range(3):
        rr = q2(TMP + 2 + 2 * jt)
        for s in range(4):
            o = QF + 16 * (jt % 2) + 4 * s if False else SA + (12 * s + 4 * jt)
            for h in range(2):
                a = acc(2 * s + h, jt)
                b.e(f'v_pk_mul_f32 {q2(a)}, {q2(a)}, {rr}')
                b.e(f'v_pk_mul_f32 {q2(a+2)}, {q2(a+2)}, {rr}')
            for h in range(2):
                a = acc(2 * s + h, jt)
                b.e(f'v_cvt_pk_bf16_f32 v{o+2*h}, v{a}, v{a+1}')
                b.e(f'v_cvt_pk_bf16_f32 v{o+2*h+1}, v{a+2}, v{a+3}')
            b.e(f'buffer_store_dwordx4 {q4(o)}, v254, {srd(S_O)}, {so[jt]} offen offset:{s*1024} {OSTPOL}', ('o',))
    if STAMP:
        b.e('s_waitcnt vmcnt(0)')
        stamp(b, 5)
        b.e('s_memrealtime s[88:89]')
        b.e('s_waitcnt lgkmcnt(0)')
        b.e('s_lshl_b32 s43, s2, 2'); b.e('s_add_u32 s43, s43, s42'); b.e('s_lshl_b32 s43, s43, 7')
        b.e('s_add_u32 s43, s43, 0x1000000')
        b.e('s_add_u32 s56, s18, s43'); b.e('s_addc_u32 s57, s19, 0'); b.e('s_mov_b32 s58, 128'); b.e('s_mov_b32 s59, 0x20000')
        b.e('v_mov_b32 v1, 0')
        for i in range(13):
            b.e(f'v_mov_b32 v2, s{64+2*i}'); b.e(f'v_mov_b32 v3, s{65+2*i}')
            b.e(f'buffer_store_dwordx2 v[2:3], v1, s[56:59], 0 offen offset:{8*i}')
            b.e('s_waitcnt vmcnt(0)')
    b.e('K1_END:')
    b.e('s_endpgm')
    return b

def kernel1():
    ctx = Ctx()
    pro = k1_prologue(ctx)
    s0 = ctx.snap()
    qp = k1_qproj(ctx)
    ap = k1_att_prologue(ctx)
    entry = ctx.snap()
    def head(a):
        a.e('K1_LOOP:')
        a.e('s_barrier')
    p1 = pv_phase(ctx, 'P1', SA, SB, head=head)
    p2 = qk_phase(ctx, 'P2', SA, SB)
    p3 = pv_phase(ctx, 'P3', SB, SA)
    p4 = qk_phase(ctx, 'P4', SB, SA)
    p4.e('s_add_u32 s44, s44, 1')
    p4.e('s_cmp_lt_u32 s44, 15')
    p4.e('s_cbranch_scc1 K1_LOOP')
    assert ctx.snap() == entry, (ctx.snap(), entry)
    l1 = pv_phase(ctx, 'L1', SA, SB, nextK=False, nextV=True, head=lambda a: a.e('s_barrier'))
    l2 = Block(ctx, 'L2'); run(l2, sm_fillers(SB)[SM_SPLIT:]); l2.e('s_nop 1')
    l3 = pv_phase(ctx, 'L3', SB, None, nextK=False)
    ep = k1_epilogue(ctx)
    ctx.restore(s0)
    ld = k1_loader(ctx)
    errs = []
    body = [p1[0], p1[1], p2, p3[0], p3[1], p4]
    bodyr = [p1[0], p1[2], p2, p3[0], p3[2], p4]
    last = [l1[0], l1[1], l2, l3[0], ep]
    lastr = [l1[0], l1[2], l2, l3[0], ep]
    errs += check_trace([pro, qp, ap] + body + body + last, 'main')
    errs += check_trace([pro, qp, ap] + bodyr + bodyr + body + lastr, 'rare')
    errs += check_trace([pro, ld], 'loader')
    order = [pro, qp, ap] + body + last + [p1[2], p3[2], l1[2], ld]
    return order, errs

def kernel2():
    ctx = Ctx()
    b = Block(ctx, 'k2')
    SO, SW, SOUT = 20, 24, 28
    A0 = 128; OB = 64; D = 4
    b.e('s_cmp_ge_u32 s2, 216')
    b.e('s_cbranch_scc1 K2_END')
    b.e('s_load_dwordx4 s[12:15], s[0:1], 32')
    b.e('s_load_dwordx2 s[18:19], s[0:1], 56')
    b.e('v_lshrrev_b32 v1, 6, v0')
    b.e('v_and_b32 v0, 63, v0')
    b.e('v_readfirstlane_b32 s42, v1')
    b.e('s_and_b32 s40, s2, 7')
    b.e('s_lshr_b32 s43, s2, 3')
    b.e('s_mul_i32 s44, s43, 57')
    b.e('s_lshr_b32 s44, s44, 9')
    b.e('s_mul_i32 s45, s44, 9')
    b.e('s_sub_u32 s45, s43, s45')
    b.e('s_mul_i32 s46, s40, 1572864')
    b.e('s_lshl_b32 s47, s44, 19')
    b.e('s_add_u32 s46, s46, s47')
    b.e('s_lshl_b32 s47, s42, 14')
    b.e('s_add_u32 s46, s46, s47')
    b.e('s_mul_i32 s48, s42, 589824')
    b.e('s_lshl_b32 s49, s45, 7')
    b.e('s_add_u32 s48, s48, s49')
    b.e('s_mul_i32 s50, s40, 221184')
    b.e('s_mul_i32 s51, s44, 73728')
    b.e('s_add_u32 s50, s50, s51')
    b.e('s_add_u32 s50, s50, s49')
    b.e('s_waitcnt lgkmcnt(0)')
    b.e(f's_add_u32 s{SO}, s18, s46'); b.e(f's_addc_u32 s{SO+1}, s19, 0')
    b.e(f's_mov_b32 s{SO+2}, {3*131072+16384}'); b.e(f's_mov_b32 s{SO+3}, 0x20000')
    b.e(f's_add_u32 s{SW}, s12, s48'); b.e(f's_addc_u32 s{SW+1}, s13, 0')
    b.e(f's_sub_u32 s{SW+2}, 4718592, s48'); b.e(f's_mov_b32 s{SW+3}, 0x20000')
    b.e(f's_add_u32 s{SOUT}, s14, s50'); b.e(f's_addc_u32 s{SOUT+1}, s15, 0')
    b.e(f's_sub_u32 s{SOUT+2}, 1769472, s50'); b.e(f's_mov_b32 s{SOUT+3}, 0x20000')
    VO, VW, VE, VOD = 160, 161, 165, 166
    b.e(f'v_lshlrev_b32 v{VO}, 4, v0')
    b.e('v_bfe_u32 v4, v0, 2, 3'); b.e('v_lshrrev_b32 v5, 5, v0'); b.e('v_and_b32 v6, 3, v0')
    b.e('v_lshrrev_b32 v7, 2, v4'); b.e('v_lshlrev_b32 v7, 1, v7'); b.e('v_xor_b32 v7, v6, v7')
    b.e('v_lshlrev_b32 v7, 4, v7'); b.e('v_lshl_add_u32 v7, v5, 6, v7')
    b.e('v_mul_u32_u24 v4, 1152, v4')
    b.e(f'v_add_u32 v{VW}, v4, v7')
    for rb in range(1, 4): b.e(f'v_add_u32 v{VW+rb}, {rb*8192}, v{VW}')
    b.e('s_lshl_b32 s52, s42, 14')
    b.e('s_mov_b32 s60, 131072'); b.e('s_mov_b32 s61, 262144'); b.e('s_mov_b32 s62, 393216')
    so = ['0', 's60', 's61', 's62']
    def dma(k):
        b.e(f's_add_u32 m0, s52, {(k % D) * 4096}')
        b.e(f's_mov_b32 s56, {k * 32 * 1152}')
        for rb in range(4):
            b.e(f'buffer_load_dwordx4 v{VW+rb}, {srd(SW)}, s56 offen offset:{rb*1024} {WOPOL} lds', ('w', k))
    def oload(k):
        for jq in range(4):
            b.e(f'buffer_load_dwordx4 {q4(OB+16*(k%D)+4*jq)}, v{167 + k//4}, {srd(SO)}, {so[jq]} offen offset:{(k%4)*1024} {OLDPOL}', ('o', k))
    for i in range(4): b.e(f'v_add_u32 v{167+i}, {i*4096}, v{VO}')
    for k in range(D):
        dma(k); oload(k)
    b.e('v_lshrrev_b32 v4, 4, v0'); b.e('v_bfe_u32 v5, v0, 2, 2'); b.e('v_and_b32 v7, 1, v4')
    b.e('v_lshl_add_u32 v5, v7, 2, v5'); b.e('v_lshlrev_b32 v5, 6, v5')
    b.e('v_lshl_add_u32 v5, v7, 5, v5'); b.e('v_lshl_add_u32 v5, v6, 3, v5')
    b.e('v_lshrrev_b32 v4, 1, v4'); b.e('v_lshl_add_u32 v5, v4, 10, v5')
    b.e(f'v_add_u32 v{VE}, s52, v5'); b.e(f'v_xor_b32 v{VOD}, 32, v{VE}')
    for k in range(16):
        b.wait_vm(('o', k))
        for n4 in range(4):
            for u in range(2):
                b.e(f'ds_read_b64_tr_b16 {q2(A0+4*n4+2*u)}, v{VOD if n4%2 else VE} offset:{(k%D)*4096 + u*2048 + (n4//2)*512}', ('a', n4))
        for n4 in range(4):
            b.wait_lgkm(('a', n4))
            if n4 == 3 and k + D < 16: dma(k + D)
            for jq in range(4):
                d = q4(16 * n4 + 4 * jq)
                b.e(f'{MF} {d}, {q4(A0+4*n4)}, {q4(OB+16*(k%D)+4*jq)}, {"0" if k == 0 else d}')
        if k + D < 16: oload(k + D)
    b.e('s_barrier')
    b.e(f'v_add_u32 v{VE}, s52, v{VO}')
    b.e('s_nop 6')
    for tl in range(16):
        b.e(f'ds_write_b128 v{VE}, {q4(4*tl)} offset:{tl*1024}', ('r',))
    b.e('s_waitcnt lgkmcnt(0)')
    b.e('s_barrier')
    b.e('s_lshl_b32 s43, s42, 11')
    b.e(f'v_add_u32 v{VE}, s43, v{VO}')
    b.e(f'v_add_u32 v{VOD}, 65536, v{VE}')
    for i in range(2):
        for p in range(8):
            b.e(f'ds_read_b128 {q4(64+32*i+4*p)}, v{VOD if p >= 4 else VE} offset:{(p%4)*16384 + i*1024}', ('rr', i))
    b.e(f'v_bfe_u32 v4, v{VO}, 4, 4'); b.e(f'v_lshrrev_b32 v5, 8, v{VO}')
    b.e('v_mul_u32_u24 v4, 1152, v4'); b.e('v_lshl_add_u32 v4, v5, 3, v4')
    b.e('s_lshr_b32 s43, s42, 1'); b.e('s_lshl_b32 s43, s43, 5')
    b.e('s_and_b32 s44, s42, 1'); b.e('s_mul_i32 s44, s44, 36864'); b.e('s_add_u32 s43, s43, s44')
    b.e('s_add_u32 s44, s43, 18432')
    for i in range(2):
        b.wait_lgkm(('rr', i))
        r0 = 64 + 32 * i
        for p in range(1, 8):
            b.e(f'v_pk_add_f32 {q2(r0)}, {q2(r0)}, {q2(r0+4*p)}')
            b.e(f'v_pk_add_f32 {q2(r0+2)}, {q2(r0+2)}, {q2(r0+4*p+2)}')
        b.e(f'v_cvt_pk_bf16_f32 v{r0}, v{r0}, v{r0+1}')
        b.e(f'v_cvt_pk_bf16_f32 v{r0+1}, v{r0+2}, v{r0+3}')
        b.e(f'buffer_store_dwordx2 {q2(r0)}, v4, {srd(SOUT)}, s{43+i} offen')
    b.e('K2_END:')
    b.e('s_endpgm')
    return [b], check_trace([b], 'k2')

HEADER = open('standalone__mha_block_cached__near_ridge.s.ref').read().split('; Override')[0]

def kd(name, vgpr, sgpr=96):
    return f'''.amdhsa_kernel {name}
  .amdhsa_next_free_vgpr {vgpr}
  .amdhsa_next_free_sgpr {sgpr}
  .amdhsa_accum_offset {(vgpr+3)//4*4}
  .amdhsa_group_segment_fixed_size 0
  .amdhsa_kernarg_size 64
  .amdhsa_user_sgpr_count 2
  .amdhsa_user_sgpr_kernarg_segment_ptr 1
  .amdhsa_system_sgpr_workgroup_id_x 1
.end_amdhsa_kernel
'''

def main():
    k1, e1 = kernel1()
    k2, e2 = kernel2()
    for e in e1 + e2: print('CHECK', e, file=sys.stderr)
    out = HEADER
    out += f'; @launch kernel=mha_attn_kernel grid=(256,1,1) block=(512,1,1) lds={LDS_TOT}\n'
    out += '; @launch kernel=mha_oproj_kernel grid=(216,1,1) block=(512,1,1) lds=131072\n'
    out += '.amdgcn_target "amdgcn-amd-amdhsa--gfx950"\n.text\n'
    for name, blocks in (('mha_attn_kernel', k1), ('mha_oproj_kernel', k2)):
        out += f'.globl {name}\n.p2align 8\n.type {name},@function\n{name}:\n'
        out += '\n'.join(b.text() for b in blocks) + '\n'
    out += '.section .rodata,"a"\n.p2align 6\n' + kd('mha_attn_kernel', 256) + '.p2align 6\n' + kd('mha_oproj_kernel', 176)
    open(sys.argv[1], 'w').write(out)
    if e1 or e2: sys.exit(1)
main()
```

```python
import re

TRANS = ('v_exp_f32', 'v_log_f32', 'v_rcp_f32', 'v_rsq_f32', 'v_sqrt_f32', 'v_sin_f32', 'v_cos_f32')

def _regs(op):
    op = op.strip()
    op = re.sub(r'^-', '', op)
    m = re.match(r'^abs\((.*)\)$', op)
    if m: op = m.group(1)
    m = re.match(r'^\|(.*)\|$', op)
    if m: op = m.group(1)
    m = re.match(r'^([vsa])\[(\d+):(\d+)\]$', op)
    if m:
        return [(m.group(1), i) for i in range(int(m.group(2)), int(m.group(3)) + 1)]
    m = re.match(r'^([vsa])(\d+)$', op)
    if m:
        return [(m.group(1), int(m.group(2)))]
    if op == 'vcc': return [('x', 'vcc')]
    if op == 'exec': return [('x', 'exec')]
    if op == 'm0': return [('x', 'm0')]
    return []

class I:
    def __init__(self, text, tag=None):
        self.text = text.strip()
        self.tag = tag
        self.kind = None
        self.reads = []
        self.writes = []
        self.srcA = self.srcB = self.srcC = []
        self.parse()

    def parse(self):
        t = self.text.split(';')[0].strip()
        if not t:
            self.kind = 'comment'; return
        if t.endswith(':'):
            self.kind = 'label'; return
        if t.startswith('.'):
            self.kind = 'directive'; return
        parts = t.split(None, 1)
        mn = parts[0]
        self.mn = mn
        rest = parts[1] if len(parts) > 1 else ''
        ops = [o.strip() for o in re.split(r',(?![^\[]*\])', rest)] if rest else []
        mods = ''
        if ops:
            sp = ops[-1].split(None, 1)
            if len(sp) > 1:
                ops[-1] = sp[0]; mods = sp[1]
        self.ops = ops
        self.mods = mods
        R = lambda k: _regs(ops[k]) if k < len(ops) else []
        base = re.sub(r'_(e32|e64|dpp|sdwa)$', '', mn)
        if mn.startswith('v_mfma'):
            self.kind = 'mfma'
            self.writes = R(0); self.srcA = R(1); self.srcB = R(2); self.srcC = R(3)
            self.reads = self.srcA + self.srcB + self.srcC
            self.passes = 8 if '32x32' in mn else 4
        elif mn.startswith('v_cmp'):
            self.kind = 'valu'; self.writes = R(0); self.reads = R(1) + R(2)
        elif mn.startswith('v_readfirstlane') or mn.startswith('v_readlane'):
            self.kind = 'valu'; self.sub = 'readlane'; self.writes = R(0); self.reads = R(1) + R(2)
        elif mn.startswith('v_permlane') and 'swap' in mn:
            self.kind = 'valu'; self.sub = 'permlane'; self.writes = R(0) + R(1); self.reads = R(0) + R(1)
        elif mn.startswith('v_'):
            self.kind = 'trans' if base in TRANS else 'valu'
            self.writes = R(0)
            self.reads = sum((R(k) for k in range(1, len(ops))), [])
            if base in ('v_fmac_f32', 'v_pk_fmac_f16'): self.reads += R(0)
            if base in ('v_add_co_u32', 'v_addc_co_u32', 'v_sub_co_u32'):
                self.writes = R(0) + R(1); self.reads = sum((R(k) for k in range(2, len(ops))), [])
            if base == 'v_cndmask_b32' and len(ops) == 3: self.reads += [('x', 'vcc')]
            if 'dpp' in mn or 'quad_perm' in mods or 'row_' in mods: self.sub = 'dpp'
        elif mn.startswith('ds_read') or mn.startswith('ds_bpermute') or mn.startswith('ds_swizzle'):
            self.kind = 'ds'; self.writes = R(0); self.reads = sum((R(k) for k in range(1, len(ops))), [])
        elif mn.startswith('ds_'):
            self.kind = 'ds'; self.reads = sum((R(k) for k in range(len(ops))), [])
        elif mn.startswith('buffer_load') or mn.startswith('global_load'):
            self.kind = 'vmem'
            if re.search(r'\blds\b', mods) or '_lds_' in mn:
                self.reads = sum((R(k) for k in range(len(ops))), []) + [('x', 'm0')]
                self.sub = 'dma'
            else:
                self.writes = R(0); self.reads = sum((R(k) for k in range(1, len(ops))), [])
        elif mn.startswith('buffer_store') or mn.startswith('global_store'):
            self.kind = 'vmem'; self.sub = 'store'
            self.reads = sum((R(k) for k in range(len(ops))), [])
            self.data = R(0) if mn.startswith('buffer') else R(1)
        elif mn.startswith('buffer_atomic') or mn.startswith('global_atomic'):
            self.kind = 'vmem'; self.sub = 'atomic'
            self.reads = sum((R(k) for k in range(len(ops))), [])
            if re.search(r'\bsc0\b', mods): self.writes = R(0)
        elif mn.startswith('buffer_wbl2') or mn.startswith('buffer_inv'):
            self.kind = 'vmem'; self.sub = 'cache'
        elif mn == 's_waitcnt':
            self.kind = 'wait'
            full = rest
            m = re.search(r'vmcnt\((\d+)\)', full); self.vm = int(m.group(1)) if m else None
            m = re.search(r'lgkmcnt\((\d+)\)', full); self.lgkm = int(m.group(1)) if m else None
        elif mn == 's_nop':
            self.kind = 'nop'; self.n = int(ops[0], 0) + 1
        elif mn == 's_barrier':
            self.kind = 'barrier'
        elif mn.startswith('s_cbranch') or mn == 's_branch' or mn == 's_endpgm':
            self.kind = 'branch'
            if 'vcc' in mn: self.reads = [('x', 'vcc')]
            if 'scc' in mn: self.reads = [('x', 'scc')]
        elif mn.startswith('s_load') or mn.startswith('s_memtime') or mn.startswith('s_memrealtime') or mn.startswith('s_buffer_load'):
            self.kind = 'smem'; self.writes = R(0); self.reads = sum((R(k) for k in range(1, len(ops))), [])
        elif mn.startswith('s_cmp') or mn.startswith('s_bitcmp'):
            self.kind = 'salu'; self.reads = R(0) + R(1); self.writes = [('x', 'scc')]
        elif mn in ('s_setprio', 's_sleep', 's_sethalt'):
            self.kind = 'salu'
        elif mn.startswith('s_'):
            self.kind = 'salu'; self.writes = R(0); self.reads = sum((R(k) for k in range(1, len(ops))), [])
            if mn.startswith('s_cselect') or mn.startswith('s_addc') or mn.startswith('s_subb'): self.reads += [('x', 'scc')]
            if not mn.startswith('s_mov') and not mn.startswith('s_mul') and not mn.startswith('s_cselect') and not mn.startswith('s_getreg'):
                self.writes += [('x', 'scc')]
            if 'saveexec' in mn: self.writes += [('x', 'exec')]; self.reads += [('x', 'exec')]
        else:
            raise ValueError('unknown instruction: ' + self.text)

    def __repr__(self): return self.text


class Block(list):
    def __init__(self, ctx, name=''):
        super().__init__()
        self.ctx = ctx; self.name = name
    def e(self, text, tag=None):
        for line in text.split('\n'):
            line = line.strip()
            if not line: continue
            i = I(line, tag)
            self.append(i)
            self.ctx.note(i)
        return self
    def wait_vm(self, tag):
        n = self.ctx.count_after(self.ctx.vm, tag)
        if n is None: return
        assert n <= 63, ('vmcnt too large', n, tag)
        self.e(f's_waitcnt vmcnt({n})')
    def wait_lgkm(self, tag):
        n = self.ctx.count_after(self.ctx.lgkm, tag)
        if n is None: return
        n = min(n, 15)
        self.e(f's_waitcnt lgkmcnt({n})')
    def text(self):
        out = []
        for i in self:
            out.append(i.text if i.kind in ('label',) else '    ' + i.text)
        return '\n'.join(out)


class MCtx:
    def __init__(self, n):
        self.c = [Ctx() for _ in range(n)]
        self.active = list(range(n))
    def note(self, i):
        i.roles = tuple(self.active)
        for k in self.active: self.c[k].note(i)
    @property
    def vm(self): return 'vm'
    @property
    def lgkm(self): return 'lgkm'
    def count_after(self, which, tag):
        r = [self.c[k].count_after(getattr(self.c[k], which), tag) for k in self.active]
        r = [x for x in r if x is not None]
        return min(r) if r else None
    def snap(self): return [c.snap() for c in self.c]
    def restore(self, s):
        for c, x in zip(self.c, s): c.restore(x)


class Ctx:
    def __init__(self):
        self.vm = []
        self.lgkm = []
    def note(self, i):
        if i.kind == 'vmem':
            self.vm.append(i.tag)
            assert len(self.vm) <= 63, 'more than 63 vmem outstanding: ' + i.text
        elif i.kind == 'ds':
            self.lgkm.append(i.tag)
        elif i.kind == 'wait':
            if i.vm is not None and len(self.vm) > i.vm: self.vm = self.vm[len(self.vm) - i.vm:]
            if i.lgkm is not None and len(self.lgkm) > i.lgkm: self.lgkm = self.lgkm[len(self.lgkm) - i.lgkm:]
    def count_after(self, lst, tag):
        idx = [k for k, t in enumerate(lst) if t == tag]
        if not idx: return None
        return len(lst) - 1 - idx[-1]
    def snap(self): return (list(self.vm), list(self.lgkm))
    def restore(self, s): self.vm, self.lgkm = list(s[0]), list(s[1])


def check_trace(blocks, name='', role=None):
    ins = [i for b in blocks for i in b if i.kind not in ('label', 'comment', 'directive')
           and (role is None or role in getattr(i, 'roles', (role,)))]
    errs = []
    pos = []
    p = 0
    for i in ins:
        pos.append(p)
        p += i.n if i.kind == 'nop' else 1
    S = set
    vm = []; lg = []
    for k, c in enumerate(ins):
        touched = S(c.reads) | S(c.writes)
        if c.kind != 'wait':
            for o in vm + lg:
                if o.writes and (S(o.writes) & touched) and not (o.tag == ('warm',) and c.tag == ('warm',)):
                    errs.append(f'[{name}] missing wait: "{c.text}" touches dest of outstanding "{o.text}"')
        if c.kind == 'vmem': vm.append(c)
        elif c.kind in ('ds', 'smem'): lg.append(c)
        elif c.kind == 'wait':
            if c.vm is not None and len(vm) > c.vm: vm = vm[len(vm) - c.vm:]
            if c.lgkm is not None:
                sm = [o for o in lg if o.kind == 'smem'] if c.lgkm > 0 else []
                ds = [o for o in lg if o.kind != 'smem']
                if len(ds) > c.lgkm: ds = ds[len(ds) - c.lgkm:]
                lg = sm + ds
        for j in range(k - 1, max(-1, k - 24), -1):
            pr = ins[j]
            d = pos[k] - pos[j] - (pr.n if pr.kind == 'nop' else 1)
            if pr.kind == 'nop': continue
            if d >= 20: break
            need = 0; why = ''
            pw = S(pr.writes)
            isvalu = c.kind in ('valu', 'trans')
            if pr.kind in ('valu', 'trans'):
                pwv = {r for r in pw if r[0] in 'va'}
                pws = {r for r in pw if r[0] == 's' or r == ('x', 'vcc')}
                if c.kind == 'mfma' and pwv & S(c.reads): need, why = 2, 'valu->mfma'
                if getattr(c, 'sub', '') == 'permlane' and pwv & S(c.reads): need, why = max(need, 2), 'valu->permlane'
                if getattr(c, 'sub', '') == 'dpp' and pwv & S(c.reads): need, why = max(need, 2), 'valu->dpp'
                if getattr(c, 'sub', '') == 'readlane' and pwv & S(c.reads): need, why = max(need, 1), 'valu->readlane'
                if pr.kind == 'trans' and c.kind in ('valu', 'mfma') and pwv & S(c.reads): need, why = max(need, 1 if c.kind == 'valu' else 2), 'trans->valu'
                if isvalu and pws & S(c.reads): need, why = max(need, 2), 'valu sgpr->valu'
                if c.kind == 'vmem' and pws & S(c.reads): need, why = max(need, 5), 'valu sgpr->vmem'
                if c.kind in ('salu', 'branch') and pws & S(c.reads) and getattr(pr, 'sub', '') == 'readlane': need, why = max(need, 1), 'readlane->salu(pad)'
                if ('x', 'exec') in pw and c.kind == 'mfma': need, why = max(need, 4), 'exec->mfma'
            if pr.kind == 'mfma':
                P = pr.passes
                tab_ab = {2: 5, 4: 8, 8: 12, 16: 20}[P]
                tab_c = {2: 4, 4: 6, 8: 10, 16: 18}[P]
                tab_war = {2: 1, 4: 3, 8: 7, 16: 15}[P]
                if c.kind == 'mfma':
                    if pw & (S(c.srcA) | S(c.srcB)): need, why = tab_ab, 'mfma D->mfma A/B'
                    elif pw & S(c.srcC):
                        if c.srcC == pr.writes and c.passes == P: pass
                        else: need, why = tab_c, 'mfma D->mfma C overlap'
                    elif pw & S(c.writes): need, why = tab_ab, 'mfma D->mfma D WAW (conservative)'
                elif c.kind in ('valu', 'trans', 'vmem', 'ds'):
                    if pw & (S(c.reads) | S(c.writes)): need, why = tab_ab, 'mfma D->valu/mem'
                    if c.kind in ('valu', 'trans') and S(pr.srcC) & S(c.writes): need, why = max(need, tab_war), 'mfma C WAR'
            if pr.kind == 'salu' and ('x', 'm0') in pw and getattr(c, 'sub', '') == 'dma': need, why = max(need, 1), 'm0->dma'
            if pr.kind == 'vmem' and getattr(pr, 'sub', '') == 'store' and len(pr.data) >= 3 and S(pr.data) & S(c.writes):
                need, why = max(need, 2), 'store data WAR'
            if pr.kind == 'ds' and not pr.writes and len(pr.reads) >= 4 and c.kind in ('valu', 'trans') and S(pr.reads[1:]) & S(c.writes):
                need, why = max(need, 2), 'ds_write data WAR (conservative)'
            if d < need:
                errs.append(f'[{name}] hazard {why}: need {need} have {d}: "{pr.text}" -> "{c.text}"')
    return errs


def interleave(backbone, fillers, start=0, end=None):
    n = len(backbone)
    if end is None: end = n
    out = []
    m = len(fillers)
    k = 0
    span = end - start
    for p in range(n):
        out.append(backbone[p])
        if p >= start and p < end:
            tgt = (m * (p - start + 1) + span - 1) // span if span else m
            while k < min(tgt, m):
                out.append(fillers[k]); k += 1
    while k < m:
        out.append(fillers[k]); k += 1
    return out
```

```python
import sys, struct, math
from asmlib import *

OPT = dict(a.split('=') for a in sys.argv[2:] if '=' in a)
STAMP = int(OPT.get('stamp', 0))
KVPOL = OPT.get('kvpol', 'nt')
XPOL = OPT.get('xpol', '')
WPOL = OPT.get('wpol', '')
OSTPOL = OPT.get('ostpol', 'sc1' if OPT.get('fused', '1') == '1' else '')
OLDPOL = OPT.get('oldpol', '')
WOPOL = OPT.get('wopol', '')
THR = float(OPT.get('thr', 2048.0))
NOBARQK = int(OPT.get('nobarqk', 0))
SKIPT = int(OPT.get('skipt', 0))
STAG = int(OPT.get('stag', 0))
ROT = int(OPT.get('rot', 1))
ROT2 = int(OPT.get('rot2', 1))
SM_SPLIT = int(OPT.get('split', 30))
CHK_AT = int(OPT.get('chk', 8))
PRIO = int(OPT.get('prio', 0))
K2D = int(OPT.get('k2d', 4))
NODMA = int(OPT.get('nodma', 0))
NOCOMP = int(OPT.get('nocomp', 0))
NOKVQ = int(OPT.get('nokvq', 0))
FUSED = int(OPT.get('fused', 1))
OLD2 = OPT.get('old2', 'sc1')
SLEEP = int(OPT.get('sleep', 1))
F1POL = OPT.get('f1pol', 'sc1')
WOPRE = int(OPT.get('wopre', 5))
TOUCH = int(OPT.get('touch', 0))
WOEARLY = int(OPT.get('woearly', 0))
WARM = int(OPT.get('warm', 1))
NOX = int(OPT.get('nox', 0))
NOWQ = int(OPT.get('nowq', 0))
MAP = OPT.get('map', '4x8')
KVSCHED = [int(x) for x in OPT.get('kvs', '0,2,3,5,6,8,9,11,12,14').split(',') if x]

def f2u(f): return struct.unpack('<I', struct.pack('<f', f))[0]
SCALE = math.log2(math.e) / math.sqrt(128.0)
MF = 'v_mfma_f32_16x16x32_bf16'
def q4(n): return f'v[{n}:{n+3}]'
def q2(n): return f'v[{n}:{n+1}]'

ACC = 0; QF = 96; SA = 144; SB = 168; KR = 192; VR = 208; NEGM = 224
TMP = 236; VK = 248; VVE = 249; VVO = 250; LS = 251; VL16 = 254; VKV = 255
RING = 10; CH = 16384; LDS_TOT = RING * CH
QB = 114688
SLOT = 40960
S_K, S_V, S_X, S_WQ, S_O = 20, 24, 28, 32, 36
FS = 96
VXD = 208; VWD = 211; VXR = 213; VAE = 215; VAO = 217; VQE = 219; VQO = 220; VQR = 221
def srd(n): return f's[{n}:{n+3}]'
def acc(t, jt): return ACC + 12 * t + 4 * jt
def qf(s, jt): return QF + 12 * s + 4 * jt
def st(S, kt, jt): return S + 12 * kt + 4 * jt
ALLW = list(range(8))
A, B = (0, 1, 2, 3), (4, 5, 6, 7)

TST = int(OPT.get('tst', 0))
def stamp(b, idx, fine=False):
    if TST and idx in (1, 2, 3) and not fine: return
    if fine and not TST: return
    if STAMP: b.e(f's_memtime s[{64+2*idx}:{65+2*idx}]')

class role:
    n = 0
    def __init__(self, b, waves): self.b, self.w = b, list(waves)
    def __enter__(self):
        role.n += 1; self.l = f'RL{role.n}'
        self.b.e(f's_bitcmp1_b32 {sum(1 << w for w in self.w)}, s42')
        self.b.e(f's_cbranch_scc0 {self.l}')
        self.b.ctx.active = self.w
    def __exit__(self, *a):
        self.b.ctx.active = ALLW
        self.b.e(f'{self.l}:')

def E(text, tag=None): return lambda b: b.e(text, tag)
def run(b, lst):
    for f in lst: f(b)

def chunk_of(n):
    if n == 0: return ('K', 0)
    if n % 2 == 1: return ('K', (n + 1) // 2)
    return ('V', (n - 2) // 2)

def k1_prologue(ctx):
    b = Block(ctx, 'k1_pro')
    b.e('s_cmp_ge_u32 s2, 256')
    b.e('s_cbranch_scc1 K1_END')
    b.e('s_load_dwordx8 s[4:11], s[0:1], 0')
    b.e('s_load_dwordx8 s[12:19], s[0:1], 32')
    if STAMP:
        b.e('s_memtime s[64:65]')
        b.e('s_memrealtime s[86:87]')
    b.e('v_lshrrev_b32 v1, 6, v0')
    b.e('v_and_b32 v0, 63, v0')
    b.e('v_readfirstlane_b32 s42, v1')
    b.e('s_and_b32 s43, s2, 7')
    b.e('s_lshr_b32 s44, s2, 3')
    nb = int(MAP.split('x')[0]); lb = nb.bit_length() - 1
    nh = 32 // nb; xb = 8 // nb
    b.e(f's_and_b32 s40, s43, {xb - 1}')
    b.e(f's_lshl_b32 s40, s40, {lb}')
    b.e(f's_and_b32 s45, s44, {nb - 1}')
    b.e('s_add_u32 s40, s40, s45')
    b.e(f's_lshr_b32 s41, s43, {xb.bit_length() - 1}')
    b.e(f's_lshl_b32 s41, s41, {nh.bit_length() - 1}')
    b.e(f's_lshr_b32 s46, s44, {lb}')
    b.e('s_add_u32 s41, s41, s46')
    m = max(nb, nh)
    b.e(f's_mul_i32 s45, s45, {32 // nb}')
    b.e(f's_mul_i32 s46, s46, {32 // nh}')
    b.e('s_add_u32 s45, s45, s46')
    b.e('s_and_b32 s45, s45, 31')
    b.e('s_mul_i32 s45, s45, 9')
    b.e('s_lshr_b32 s45, s45, 5')
    if ROT == 0: b.e('s_mov_b32 s45, 0')
    if ROT == 2: b.e('s_cmp_ge_u32 s45, 5'); b.e('s_cselect_b32 s45, 5, 0')
    if ROT == 3: b.e('s_mul_i32 s45, s45, 22'); b.e('s_lshr_b32 s45, s45, 6'); b.e('s_mul_i32 s45, s45, 3')
    b.e('s_lshl_b32 s57, s45, 7')
    b.e('s_lshl_b32 s58, s45, 19')
    b.e('s_lshl_b32 s45, s40, 5')
    b.e('s_add_u32 s45, s45, s41')
    b.e('s_lshl_b32 s45, s45, 18')
    b.e('s_mul_i32 s46, s40, 221184')
    b.e('s_lshl_b32 s47, s41, 8')
    b.e('s_mul_i32 s48, s40, 1572864')
    b.e('s_and_b32 s53, s42, 3')
    b.e('s_lshr_b32 s54, s42, 2')
    b.e('v_bfe_u32 v4, v0, 2, 3')
    b.e('v_lshrrev_b32 v5, 5, v0')
    b.e('v_and_b32 v3, 3, v0')
    b.e('v_lshrrev_b32 v7, 2, v4')
    b.e('v_lshlrev_b32 v8, 1, v7')
    b.e('v_xor_b32 v6, v3, v8')
    b.e('v_lshlrev_b32 v6, 4, v6')
    b.e('v_lshl_add_u32 v6, v5, 6, v6')
    b.e('s_lshr_b32 s43, s53, 1')
    b.e('s_and_b32 s44, s42, 1')
    b.e('v_and_b32 v9, 3, v4')
    b.e('v_lshl_add_u32 v9, v7, 3, v9')
    b.e('s_lshl_b32 s55, s43, 4')
    b.e('s_lshl_b32 s62, s54, 2')
    b.e('s_add_u32 s55, s55, s62')
    b.e('v_add_u32 v9, s55, v9')
    b.e('v_lshl_add_u32 v9, v9, 13, v6')
    b.e('s_lshl_b32 s55, s44, 7')
    b.e(f'v_add_u32 v{VWD}, s55, v9')
    b.e(f'v_add_u32 v{VWD+1}, {32*8192-1024}, v{VWD}')
    b.e('s_lshl_b32 s60, s42, 11')
    b.e('s_mul_i32 s63, s42, 3')
    for i in range(3):
        b.e(f's_add_u32 s62, s63, {i}')
        b.e('s_and_b32 s56, s62, 1')
        b.e('s_lshl_b32 s56, s56, 3')
        b.e('s_add_u32 s56, s56, 12')
        b.e('s_lshr_b32 s62, s62, 1')
        b.e('s_lshl_b32 s62, s62, 4')
        b.e('v_add_u32 v9, s56, v4')
        b.e('v_and_b32 v9, 15, v9')
        b.e('v_add_u32 v9, s62, v9')
        b.e('v_mul_u32_u24 v9, 1152, v9')
        b.e('v_add_u32 v9, v9, v6')
        if i: b.e(f'v_subrev_u32 v{VXD+i}, {i*1024}, v9')
        else: b.e(f'v_mov_b32 v{VXD}, v9')
    b.e('s_lshl_b32 s59, s63, 10')
    b.e('s_add_u32 s59, s59, 16384')
    b.e('s_waitcnt lgkmcnt(0)')
    b.e(f's_add_u32 s{S_X}, s4, s46');  b.e(f's_addc_u32 s{S_X+1}, s5, 0')
    b.e(f's_mov_b32 s{S_X+2}, 221184'); b.e(f's_mov_b32 s{S_X+3}, 0x20000')
    b.e(f's_add_u32 s{S_WQ}, s10, s47'); b.e(f's_addc_u32 s{S_WQ+1}, s11, 0')
    b.e(f's_sub_u32 s{S_WQ+2}, 4718592, s47'); b.e(f's_mov_b32 s{S_WQ+3}, 0x20000')
    b.e(f's_add_u32 s{S_K}, s6, s45');  b.e(f's_addc_u32 s{S_K+1}, s7, 0')
    b.e(f's_mov_b32 s{S_K+2}, 262144'); b.e(f's_mov_b32 s{S_K+3}, 0x20000')
    b.e(f's_add_u32 s{S_V}, s8, s45');  b.e(f's_addc_u32 s{S_V+1}, s9, 0')
    b.e(f's_mov_b32 s{S_V+2}, 262144'); b.e(f's_mov_b32 s{S_V+3}, 0x20000')
    b.e(f's_add_u32 s{S_O}, s18, s48'); b.e(f's_addc_u32 s{S_O+1}, s19, 0')
    b.e(f's_mov_b32 s{S_O+2}, 1572864'); b.e(f's_mov_b32 s{S_O+3}, 0x20000')
    return b

RC = 1
def slot(n): return ((n + RC) % RING) * CH

def qslot(D): return ((D + 3) % 4) * SLOT

def qdma(b, D):
    b.e(f's_add_u32 m0, s60, {qslot(D)}')
    b.e('s_add_u32 s61, s57, 128')
    for h in range(0 if NOWQ else 2):
        b.e(f'buffer_load_dwordx4 v{VWD+h}, {srd(S_WQ)}, s58 offen offset:{h*1024} {WPOL} lds', ('q', D))
    b.e(f's_add_u32 m0, s59, {qslot(D)}')
    b.e('s_add_u32 s58, s58, 524288')
    for i in range(0 if NOX else 3):
        b.e(f'buffer_load_dwordx4 v{VXD+i}, {srd(S_X)}, s57 offen offset:{i*1024} {XPOL} lds', ('q', D))
    b.e('s_cmp_eq_u32 s61, 1152')
    b.e('s_cselect_b32 s57, 0, s61')
    b.e('s_cselect_b32 s58, 0, s58')

def kvpair_static(b, n):
    c = chunk_of(n)
    S = S_K if c[0] == 'K' else S_V
    b.e(f's_add_u32 m0, s52, {slot(n)}')
    b.e(f's_mov_b32 s56, {c[1] * CH}')
    b.e(f'buffer_load_dwordx4 v{VKV}, {srd(S)}, s56 offen {KVPOL} lds', ('kv', n))
    b.e(f'buffer_load_dwordx4 v{VKV}, {srd(S)}, s56 offen offset:2048 {KVPOL} lds', ('kv', n))

POFF = 0x2000000; FOFF = 0x3000000; INB = 13824
S_F = 92
def flag_srd(b):
    b.e(f's_add_u32 s{S_F}, s18, {FOFF}'); b.e(f's_addc_u32 s{S_F+1}, s19, 0')
    b.e(f's_mov_b32 s{S_F+2}, {32768+1024}'); b.e(f's_mov_b32 s{S_F+3}, 0x20000')
    b.e('s_lshl_b32 s90, s40, 5'); b.e('s_add_u32 s90, s90, s41'); b.e('s_lshl_b32 s90, s90, 7')
    b.e('s_lshl_b32 s96, s40, 7'); b.e('s_add_u32 s96, s96, 32768')

def epoch_load(b, v):
    b.e(f'v_mov_b32 v{v}, 0')
    b.e(f'buffer_load_dword v{v+1}, v{v}, {srd(S_F)}, s96 offen sc1', ('ep',))

def epoch_tags(b, v):
    b.e(f'v_readfirstlane_b32 s97, v{v+1}')
    b.e('s_nop 0')
    b.e('s_mul_i32 s97, s97, 0x9e3779b1')
    b.e('s_add_u32 s97, s97, 0x7f4a7c15')
    b.e('s_xor_b32 s98, s97, 0x80000000')

def one_lane(b, v):
    b.e(f's_lshl_b32 s91, s42, 6')
    b.e(f'v_add_u32 v{v}, s91, v0')
    b.e(f'v_lshlrev_b32 v{v}, 20, v{v}')

def k1_qproj(ctx):
    b = Block(ctx, 'qproj')
    flag_srd(b)
    if FUSED: epoch_load(b, 222)
    qdma(b, 0)
    b.e('v_lshl_add_u32 v9, v4, 8, v6')
    b.e('s_lshl_b32 s46, s43, 12')
    b.e('s_lshl_b32 s47, s54, 13')
    b.e('s_add_u32 s46, s46, s47')
    b.e('s_add_u32 s45, s55, s46')
    b.e(f'v_add_u32 v{VKV}, s45, v9')
    b.e('s_lshl_b32 s47, s44, 10')
    b.e('s_add_u32 s52, s46, s47')
    qdma(b, 1)
    b.e('v_lshrrev_b32 v10, 4, v0')
    b.e('v_and_b32 v6, 15, v0')
    b.e('v_lshrrev_b32 v7, 2, v6')
    b.e('v_and_b32 v8, 1, v10')
    b.e('v_lshl_add_u32 v5, v8, 2, v7')
    b.e('v_lshlrev_b32 v5, 6, v5')
    b.e('v_lshl_add_u32 v5, v8, 5, v5')
    b.e('v_lshl_add_u32 v5, v3, 3, v5')
    b.e('v_lshrrev_b32 v9, 1, v10')
    b.e('v_lshl_add_u32 v5, v9, 12, v5')
    b.e('s_lshl_b32 s45, s54, 11')
    b.e(f'v_add_u32 v{VAE}, s45, v5')
    b.e(f'v_add_u32 v{VAE+1}, {2*SLOT}, v{VAE}')
    b.e(f'v_xor_b32 v{VAO}, 32, v{VAE}')
    b.e(f'v_xor_b32 v{VAO+1}, 32, v{VAE+1}')
    b.e('v_add_u32 v5, 4, v6')
    b.e('v_bfe_u32 v11, v5, 3, 1')
    b.e('v_and_b32 v12, 7, v5')
    b.e('v_lshrrev_b32 v13, 2, v12')
    b.e('v_lshlrev_b32 v13, 1, v13')
    b.e('v_lshlrev_b32 v14, 6, v12')
    b.e('v_xor_b32 v15, v13, v10')
    b.e('v_lshl_add_u32 v15, v15, 4, v14')
    b.e('s_mul_i32 s46, s53, 6144')
    b.e('s_add_u32 s46, s46, 16384')
    b.e('v_lshl_add_u32 v5, v11, 10, v15')
    b.e(f'v_add_u32 v{VXR}, s46, v5')
    b.e(f'v_add_u32 v{VXR+1}, {2*SLOT}, v{VXR}')
    b.e('v_lshl_add_u32 v15, v11, 11, v15')
    b.e('v_lshl_add_u32 v14, v11, 11, v14')
    b.e('s_lshl_b32 s47, s54, 13')
    b.e(f'v_add_u32 v{VK}, s47, v15')
    b.e(f'v_add_u32 v{VK}, {slot(0)}, v{VK}')
    b.e('s_mul_i32 s46, s53, 12288')
    b.e(f's_add_u32 s46, s46, {QB}')
    b.e(f'v_add_u32 v{VQR}, s46, v15')
    b.e('v_xor_b32 v15, v13, v9')
    b.e('v_lshl_add_u32 v15, v15, 4, v14')
    b.e('v_lshl_add_u32 v15, v8, 3, v15')
    b.e('s_lshl_b32 s45, s54, 10')
    b.e('s_add_u32 s46, s46, s45')
    b.e(f'v_add_u32 v{VQE}, s46, v15')
    b.e(f'v_xor_b32 v{VQO}, 32, v{VQE}')
    b.e('v_add_u32 v5, 1, v10')
    b.e('v_bfe_u32 v11, v5, 1, 1')
    b.e('v_and_b32 v12, 1, v5')
    b.e('v_lshl_add_u32 v13, v12, 2, v7')
    b.e('v_lshlrev_b32 v13, 6, v13')
    b.e('v_lshl_add_u32 v13, v12, 5, v13')
    b.e('v_lshl_add_u32 v13, v3, 3, v13')
    b.e('v_lshl_add_u32 v13, v11, 11, v13')
    b.e(f's_add_u32 s47, s47, {slot(2)}')
    b.e(f'v_add_u32 v{VVE}, s47, v13')
    b.e(f'v_xor_b32 v{VVO}, 32, v{VVE}')
    b.e(f'v_lshlrev_b32 v{VL16}, 4, v0')
    b.e(f's_mov_b32 s48, {hex(f2u(SCALE))}')
    b.e(f's_mov_b32 s50, {(2*CH - LDS_TOT) & 0xffffffff}')
    b.e(f's_mov_b32 s51, {2*CH}')
    b.e(f's_mov_b32 s46, {slot(2)}')
    def fA(D, h, tt): return FS + 56 * (D % 2) + 28 * h + 4 * tt
    def fB(D, h, jt): return FS + 56 * (D % 2) + 28 * h + 16 + 4 * jt
    def reads(D):
        sl = ((D + 3) % 4); hi = sl // 2; o = (sl % 2) * SLOT
        r = []
        for h in range(2):
            for jt in range(3):
                r.append(E(f'ds_read_b128 {q4(fB(D,h,jt))}, v{VXR+hi} offset:{o + jt*2048 + h*512}', ('f', D)))
            for tt in range(4):
                for u in range(2):
                    r.append(E(f'ds_read_b64_tr_b16 {q2(fA(D,h,tt)+2*u)}, v{(VAO if tt%2 else VAE)+hi} offset:{o + u*8192 + h*1024 + (tt//2)*512}', ('f', D)))
        return r
    zero = [E(f'v_mov_b32 v{i}, 0') for i in range(48, 96)] + [E(f'v_mov_b32 v{LS+i}, 0') for i in range(3)]
    b.wait_vm(('q', 0))
    b.e('s_barrier')
    stamp(b, 1)
    run(b, reads(0))
    if FUSED: epoch_tags(b, 222)
    qdma(b, 2)
    issue = {0: [3, 4], 1: [5], 2: [6], 3: [7], 4: [8]}
    kvi = {5: [0], 6: [1, 2], 7: [3], 8: [4]}
    for D in range(9):
        b.e('s_waitcnt lgkmcnt(0)')
        if D + 1 < 9: b.wait_vm(('q', D + 1))
        b.e('s_barrier')
        dm = [(lambda b, x=x: qdma(b, x)) for x in issue.get(D, [])] + [(lambda b, x=x: kvpair_static(b, x)) for x in kvi.get(D, [])]
        mf = []
        if D < 8:
            for h in range(2):
                for tt in range(4):
                    for jt in range(3):
                        d = q4(acc(tt, jt))
                        mf.append(E(f'{MF} {d}, {q4(fA(D,h,tt))}, {q4(fB(D,h,jt))}, {"0" if D == 0 and h == 0 else d}'))
            rd = reads(D + 1)
            fill = []
            for k, x in enumerate(rd):
                fill.append(x)
                if dm and k % 6 == 1: fill.append(dm.pop(0))
            assert not dm
            run(b, interleave(mf, fill + zero[7 * D:7 * D + 7], end=21))
        else:
            tiles = [(tt, jt) for tt in range(4) for jt in range(3)]
            def conv(tt, jt):
                a = acc(tt, jt)
                return [E(f'v_mul_f32 v{a+i}, s48, v{a+i}') for i in range(4)] + [
                    E(f'v_cvt_pk_bf16_f32 v{a}, v{a}, v{a+1}'), E(f'v_cvt_pk_bf16_f32 v{a+1}, v{a+2}, v{a+3}'),
                    E(f'ds_write_b64 v{VQO if tt%2 else VQE}, {q2(a)} offset:{jt*4096 + (tt//2)*512}', ('qw',))]
            LAG = 3
            run(b, dm)
            for k, (tt, jt) in enumerate(tiles):
                d = q4(acc(tt, jt))
                cv = conv(*tiles[k - LAG]) if k >= LAG else []
                if k == LAG: b.e('s_nop 2')
                b.e(f'{MF} {d}, {q4(fA(D,0,tt))}, {q4(fB(D,0,jt))}, {d}')
                run(b, cv[:3])
                b.e(f'{MF} {d}, {q4(fA(D,1,tt))}, {q4(fB(D,1,jt))}, {d}')
                run(b, cv[3:])
            stamp(b, 2)
            for k in range(12 - LAG, 12):
                if k == 11: b.e('s_nop 0')
                run(b, conv(*tiles[k]))
    b.e('s_waitcnt lgkmcnt(0)')
    b.wait_vm(('kv', 1))
    b.e('s_barrier')
    kvpair_static(b, 5)
    for s in range(4):
        for jt in range(3):
            b.e(f'ds_read_b128 {q4(qf(s,jt))}, v{VQR} offset:{jt*4096 + (s//2)*1024 + (s%2)*512}', ('qr', s))
    return b

def kread(b, f):
    kt, s = f // 4, f % 4
    b.e(f'ds_read_b128 {q4(KR+4*(f%4))}, v{VK} offset:{kt*4096 + (s//2)*1024 + (s%2)*512}', ('k', f))
def vread(b, t):
    tau = t // 2
    a = VVO if t % 2 else VVE
    for u in range(2):
        b.e(f'ds_read_b64_tr_b16 {q2(VR+4*(t%4)+2*u)}, v{a} offset:{u*4096 + (tau//2)*1024 + (tau%2)*512}', ('v', t))
def kadv(b, first=False):
    if first:
        b.e(f'v_add_u32 v{VK}, {CH}, v{VK}')
        b.e(f's_mov_b32 s45, {slot(1)}')
        return
    b.e(f's_cmp_ge_u32 s45, {LDS_TOT - 2*CH}')
    b.e(f's_cselect_b32 s47, s50, s51')
    b.e(f's_add_u32 s45, s45, s47')
    b.e(f'v_add_u32 v{VK}, s47, v{VK}')
def vadv(b):
    b.e(f's_cmp_ge_u32 s46, {LDS_TOT - 2*CH}')
    b.e(f's_cselect_b32 s47, s50, s51')
    b.e(f's_add_u32 s46, s46, s47')
    b.e(f'v_add_u32 v{VVE}, s47, v{VVE}')
    b.e(f'v_add_u32 v{VVO}, s47, v{VVO}')


def dma_k(b):
    b.e('s_mov_b32 m0, s57')
    b.e(f's_cmp_ge_u32 s57, s61')
    b.e(f'buffer_load_dwordx4 v{VKV}, {srd(S_K)}, s59 offen {KVPOL} lds', ('kd',))
    b.e(f'buffer_load_dwordx4 v{VKV}, {srd(S_K)}, s59 offen offset:2048 {KVPOL} lds', ('kd',))
    b.e('s_cselect_b32 s62, s50, s51')
    b.e('s_add_u32 s57, s57, s62')
    b.e(f's_add_u32 s59, s59, {CH}')
def dma_v(b):
    b.e('s_mov_b32 m0, s58')
    b.e(f's_cmp_ge_u32 s58, s61')
    b.e(f'buffer_load_dwordx4 v{VKV}, {srd(S_V)}, s60 offen {KVPOL} lds', ('vd',))
    b.e(f'buffer_load_dwordx4 v{VKV}, {srd(S_V)}, s60 offen offset:2048 {KVPOL} lds', ('vd',))
    b.e('s_cselect_b32 s62, s50, s51')
    b.e('s_add_u32 s58, s58, s62')
    b.e(f's_add_u32 s60, s60, {CH}')

PS = TMP + 8

def guarded(fn, T):
    def g(b):
        if T is None: return fn(b)
        role.n += 1; l = f'SK{role.n}'
        b.e(f's_cmp_eq_u32 s44, {T}')
        b.e(f's_cbranch_scc1 {l}')
        fn(b)
        b.e(f'{l}:')
    return g

def qk_backbone(S, cinit, nextV=True, first=False, qwait=False, dma=None):
    bb = []
    for f in range(8):
        kt, s = f // 4, f % 4
        for jt in range(3):
            def slot(b, f=f, kt=kt, s=s, jt=jt):
                if jt == 0:
                    if qwait and f < 4: b.wait_lgkm(('qr', s))
                    b.wait_lgkm(('k', f))
                d = q4(st(S, kt, jt))
                c = d if s else (q4(NEGM + 4 * jt) if cinit == 'negm' else '0')
                b.e(f'{MF} {d}, {q4(KR+4*(f%4))}, {q4(qf(s,jt))}, {c}')
                if jt == 2:
                    if f < 4: kread(b, f + 4)
                    if f == 3: kadv(b, first)
                    if f >= 4:
                        if nextV == 'K': kread(b, f - 4)
                        elif nextV: vread(b, f - 4)
                if dma and not NODMA and f == 0 and jt == 1: dma(b)
            bb.append(slot)
    return bb

def pv_backbone(P, nextK=True, dma=None, adv=True):
    bb = []
    for t in range(8):
        for jt in range(3):
            def slot(b, t=t, jt=jt):
                if jt == 0: b.wait_lgkm(('v', t))
                d = q4(acc(t, jt))
                b.e(f'{MF} {d}, {q4(VR+4*(t%4))}, {q4(st(P,0,jt))}, {d}')
                if jt == 2:
                    if t < 4: vread(b, t + 4)
                    if t == 3 and adv: vadv(b)
                    if t >= 4 and nextK: kread(b, t - 4)
                if dma and not NODMA and t == 0 and jt == 1: dma(b)
            bb.append(slot)
    return bb

def sregs(S, jt): return [st(S, 0, jt) + i for i in range(4)] + [st(S, 1, jt) + i for i in range(4)]

def sm_fillers(S):
    fl = []
    for kt in range(2):
        for jt in range(3):
            r = sregs(S, jt)
            o = 4 * kt
            fl.append(E(f'v_exp_f32 v{r[o]}, v{r[o]}'))
            fl.append(E(f'v_exp_f32 v{r[o+1]}, v{r[o+1]}'))
            if kt: fl.append(E(f'v_add_f32 v{PS+jt}, v{PS+jt}, v{r[o]}'))
            fl.append(E(f'v_exp_f32 v{r[o+2]}, v{r[o+2]}'))
            if kt: fl.append(E(f'v_add_f32 v{PS+jt}, v{PS+jt}, v{r[o+1]}'))
            else: fl.append(E(f'v_add_f32 v{PS+jt}, v{r[0]}, v{r[1]}'))
            fl.append(E(f'v_exp_f32 v{r[o+3]}, v{r[o+3]}'))
            fl.append(E(f'v_add_f32 v{PS+jt}, v{PS+jt}, v{r[o+2]}'))
            fl.append(E(f'v_cvt_pk_bf16_f32 v{r[2*kt]}, v{r[o]}, v{r[o+1]}'))
            fl.append(E(f'v_add_f32 v{PS+jt}, v{PS+jt}, v{r[o+3]}'))
            fl.append(E(f'v_cvt_pk_bf16_f32 v{r[2*kt+1]}, v{r[o+2]}, v{r[o+3]}'))
    return fl

def chk_fillers():
    return [E(f'v_max3_f32 v{TMP}, v{PS}, v{PS+1}, v{PS+2}'), E(f'v_cmp_nle_f32 vcc, v{TMP}, v{TMP+11}')]
def ladd_fillers():
    return [E(f'v_add_f32 v{LS+jt}, v{LS+jt}, v{PS+jt}') for jt in range(3)]

def xreduce3(regs, tmps, op):
    fl = []
    for sw in ('v_permlane32_swap_b32', 'v_permlane16_swap_b32'):
        for r, t in zip(regs, tmps): fl.append(E(f'v_mov_b32 v{t}, v{r}'))
        for r, t in zip(regs, tmps): fl.append(E(f'{sw} v{r}, v{t}'))
        for r, t in zip(regs, tmps): fl.append(E(f'{op} v{r}, v{r}, v{t}'))
    return fl

MX = [TMP + 1, TMP + 2, TMP + 3]; MT = [TMP + 4, TMP + 5, TMP + 6]
def rowmax3(S):
    fl = []
    R = [sregs(S, jt) for jt in range(3)]
    for jt in range(3): fl.append(E(f'v_max3_f32 v{MX[jt]}, v{R[jt][0]}, v{R[jt][1]}, v{R[jt][2]}'))
    for jt in range(3): fl.append(E(f'v_max3_f32 v{MX[jt]}, v{MX[jt]}, v{R[jt][3]}, v{R[jt][4]}'))
    for jt in range(3): fl.append(E(f'v_max3_f32 v{MX[jt]}, v{MX[jt]}, v{R[jt][5]}, v{R[jt][6]}'))
    for jt in range(3): fl.append(E(f'v_max_f32 v{MX[jt]}, v{MX[jt]}, v{R[jt][7]}'))
    return fl + xreduce3(MX, MT, 'v_max_f32')

def rare_path(ctx, name, Y, X, back):
    snap = ctx.snap()
    r = Block(ctx, name + 'r')
    r.e(f'{name}_RARE:')
    r.e(f's_cmp_ge_u32 s45, {back*CH}')
    r.e(f's_cselect_b32 s47, 0, {LDS_TOT}')
    r.e(f's_sub_u32 s47, s47, {back*CH}')
    r.e(f'v_add_u32 v{TMP+7}, s47, v{VK}')
    for kt in range(2):
        for s in range(4):
            r.e(f'ds_read_b128 {q4(KR+4*s)}, v{TMP+7} offset:{kt*4096 + (s//2)*1024 + (s%2)*512}', ('rk',))
        r.e('s_waitcnt lgkmcnt(0)')
        for s in range(4):
            for jt in range(3):
                d = q4(st(Y, kt, jt))
                r.e(f'{MF} {d}, {q4(KR+4*s)}, {q4(qf(s,jt))}, {d if s else q4(NEGM+4*jt)}')
    r.e('s_nop 7')
    run(r, rowmax3(Y))
    for jt in range(3): r.e(f'v_max_f32 v{MX[jt]}, 0, v{MX[jt]}')
    for jt in range(3): r.e(f'v_exp_f32 v{MT[jt]}, -v{MX[jt]}')
    for jt in range(3):
        for q in sregs(Y, jt) + (sregs(X, jt) if X else []) + [NEGM + 4 * jt + i for i in range(4)]:
            r.e(f'v_sub_f32 v{q}, v{q}, v{MX[jt]}')
        r.e(f'v_mul_f32 v{LS+jt}, v{LS+jt}, v{MT[jt]}')
        for t in range(8):
            for i in range(4): r.e(f'v_mul_f32 v{acc(t,jt)+i}, v{acc(t,jt)+i}, v{MT[jt]}')
    run(r, sm_fillers(Y))
    r.e('s_nop 1')
    r.e(f's_branch {name}_JOIN')
    ctx.restore(snap)
    return r

def k1_att_prologue(ctx):
    b = Block(ctx, 'att_pro')
    for f in range(4): kread(b, f)
    b.e(f's_add_u32 s57, s52, {slot(7)}')
    b.e(f's_add_u32 s58, s52, {slot(8)}')
    b.e(f's_mov_b32 s59, {4*CH}')
    b.e(f's_mov_b32 s60, {3*CH}')
    b.e(f's_add_u32 s61, s52, {LDS_TOT - 2*CH}')
    b.e(f'v_mov_b32 v{TMP+11}, {hex(f2u(THR))}')
    if FUSED and WARM:
        b.e('s_lshr_b32 s55, s41, 3'); b.e('s_mul_i32 s55, s55, 1179648')
        b.e('s_and_b32 s56, s41, 3'); b.e('s_mul_i32 s62, s56, 288'); b.e('s_add_u32 s55, s55, s62')
        b.e('s_and_b32 s62, s41, 1'); b.e('s_lshl_b32 s62, s62, 5'); b.e('s_sub_u32 s55, s55, s62')
        b.e('s_lshl_b32 s56, s56, 1'); b.e('s_and_b32 s62, s41, 4'); b.e('s_add_u32 s56, s56, s62')
        b.e('s_and_b32 s62, s40, 3'); b.e('s_add_u32 s56, s56, s62'); b.e('s_and_b32 s56, s56, 7')
        b.e('s_mul_i32 s56, s56, 147456'); b.e('s_add_u32 s55, s55, s56')
        b.e('s_mul_i32 s56, s42, 18432'); b.e('s_add_u32 s55, s55, s56')
        b.e('s_add_u32 s28, s12, s55'); b.e('s_addc_u32 s29, s13, 0')
        b.e('s_sub_u32 s30, 4718592, s55'); b.e('s_mov_b32 s31, 0x20000')
    zero = [E(f'v_mov_b32 v{ACC+i}, 0') for i in range(48)]
    run(b, interleave(qk_backbone(SA, '0', nextV='K', first=True, qwait=True), zero))
    b.wait_vm(('kv', 2))
    b.e('s_barrier')
    kvpair_static(b, 6)
    if TOUCH:
        b.e(f'v_lshlrev_b32 v{TMP+7}, {12 if TOUCH == 1 else 17}, v{VL16}')
        b.e('s_mov_b32 s100, 0x20000')
        for base, size, off in ((12, 4718592, 0), (18, 0x1000000, 0), (18, 0x1000000, 0x400000), (18, 0x1000000, 0x800000), (18, 0x3000000, 0x2000000), (18, 0x3000000, 0x2400000), (18, 0x3000000, 0x2800000), (18, 0x3000000, 0x2c00000), (14, 1769472, 0)):
            b.e(f's_mov_b32 s28, s{base}'); b.e(f's_mov_b32 s29, s{base+1}'); b.e(f's_mov_b32 s30, {size}'); b.e('s_mov_b32 s31, 0x20000')
            b.e(f's_mov_b32 s56, {off}')
            b.e(f'buffer_load_dword v{TMP}, v{TMP+7}, s[28:31], s56 offen', ('touch',))
        b.e('s_waitcnt vmcnt(0)')
    run(b, rowmax3(SA))
    for jt in range(3):
        for i in range(4): b.e(f'v_sub_f32 v{NEGM+4*jt+i}, 0, v{MX[jt]}')
    sub = [E(f'v_sub_f32 v{r}, v{r}, v{MX[jt]}') for kt in range(2) for jt in range(3) for r in sregs(SA, jt)[4*kt:4*kt+4]]
    run(b, interleave(qk_backbone(SB, 'negm', nextV=True), sub + sm_fillers(SA)))
    b.e('s_mov_b32 s44, 0')
    if PRIO:
        b.e('s_cmp_ge_u32 s42, 4'); b.e('s_cbranch_scc0 NOPRIO'); b.e('s_setprio 1'); b.e('NOPRIO:')
    stamp(b, 3)
    return b

def pv_phase(ctx, name, P, S, nextK=True, head=None, dma=None, vmw=4, bar=True, extra=()):
    a = Block(ctx, name)
    if head: head(a)
    if bar:
        a.e(f's_waitcnt vmcnt({vmw})')
        a.e('s_barrier')
    fl = ladd_fillers() + (sm_fillers(S)[:SM_SPLIT] if S else []) + list(extra)
    run(a, interleave(pv_backbone(P, nextK, dma, adv=bar), fl, start=2))
    return a

def qk_phase(ctx, name, D, S, dma):
    b = Block(ctx, name)
    if not NOBARQK:
        b.e('s_waitcnt vmcnt(4)')
        b.e('s_barrier')
    run(b, interleave(qk_backbone(D, 'negm', dma=dma), sm_fillers(S)[SM_SPLIT:] + chk_fillers(), end=23))
    b.e(f's_cbranch_vccnz {name}_RARE')
    r = rare_path(ctx, name, S, D, 4)
    j = Block(ctx, name + 'j'); j.e(f'{name}_JOIN:')
    return b, r, j

EXB = 4 * CH
MLB = 20480
def k1_epilogue(ctx):
    b = Block(ctx, 'epi')
    stamp(b, 4)
    run(b, xreduce3([LS, LS + 1, LS + 2], MT, 'v_add_f32'))
    b.e('s_mul_i32 s43, s42, 12288')
    b.e('s_xor_b32 s46, s42, 4')
    b.e('s_mul_i32 s45, s46, 12288')
    b.e(f's_add_u32 s43, s43, {EXB}')
    b.e(f's_add_u32 s45, s45, {EXB}')
    b.e(f'v_add_u32 v{VK}, s43, v{VL16}')
    b.e(f'v_add_u32 v{VVE}, s45, v{VL16}')
    b.e(f'v_lshrrev_b32 v{VVO}, 1, v{VL16}')
    b.e('s_mul_i32 s43, s42, 1536')
    b.e('s_mul_i32 s45, s46, 1536')
    b.e(f's_add_u32 s43, s43, {MLB}')
    b.e(f's_add_u32 s45, s45, {MLB}')
    b.e(f'v_add_u32 v{VKV}, s43, v{VVO}')
    b.e(f'v_add_u32 v{VVO}, s45, v{VVO}')
    for jt in range(3):
        b.e(f'v_mov_b32 v{NEGM+4*jt+1}, v{LS+jt}')
    for jt in range(3):
        b.e(f'ds_write_b64 v{VKV}, {q2(NEGM+4*jt)} offset:{jt*512}', ('x',))
    b.e('s_mul_i32 s43, s53, 393216')
    b.e('s_lshl_b32 s45, s41, 12')
    b.e('s_add_u32 s43, s43, s45')
    b.e('s_lshl_b32 s45, s54, 11')
    b.e('s_add_u32 s43, s43, s45')
    b.e('s_add_u32 s45, s43, 131072')
    b.e('s_add_u32 s46, s43, 262144')
    so = ['s43', 's45', 's46']
    for r in (A, B):
        with role(b, r):
            send = range(4, 8) if r == A else range(0, 4)
            for i, t in enumerate(send):
                for jt in range(3):
                    b.e(f'ds_write_b128 v{VK}, {q4(acc(t,jt))} offset:{(3*i+jt)*1024}', ('x',))
    b.e('s_waitcnt lgkmcnt(0)')
    b.e('s_barrier')
    stamp(b, 1, True)
    RX = QF
    ML = SA
    for jt in range(3):
        b.e(f'ds_read_b64 {q2(ML+2*jt)}, v{VVO} offset:{jt*512}', ('ml',))
    for i in range(12):
        b.e(f'ds_read_b128 {q4(RX+4*i)}, v{VVE} offset:{i*1024}', ('rx', i))
    if FUSED and WOEARLY:
        with role(b, WL):
            t_issue(b); t_issue(b)
    b.wait_lgkm(('ml',))
    C = SA + 8
    for jt in range(3):
        no, lo = NEGM + 4 * jt, NEGM + 4 * jt + 1
        np_, lp = ML + 2 * jt, ML + 2 * jt + 1
        t = TMP
        b.e(f'v_min_f32 v{t}, v{no}, v{np_}')
        b.e(f'v_sub_f32 v{t+1}, v{t}, v{no}')
        b.e(f'v_sub_f32 v{t+2}, v{t}, v{np_}')
        b.e(f'v_exp_f32 v{t+1}, v{t+1}')
        b.e(f'v_exp_f32 v{t+2}, v{t+2}')
        b.e('s_nop 0')
        b.e(f'v_mul_f32 v{t+3}, v{t+1}, v{lo}')
        b.e(f'v_fmac_f32 v{t+3}, v{t+2}, v{lp}')
        b.e(f'v_rcp_f32 v{t+3}, v{t+3}')
        b.e('s_nop 0')
        b.e(f'v_mul_f32 v{C+4*jt}, v{t+1}, v{t+3}')
        b.e(f'v_mul_f32 v{C+4*jt+1}, v{t+1}, v{t+3}')
        b.e(f'v_mul_f32 v{C+4*jt+2}, v{t+2}, v{t+3}')
        b.e(f'v_mul_f32 v{C+4*jt+3}, v{t+2}, v{t+3}')
    OUT = SB
    snap = ctx.snap()
    for r in (A, B):
        with role(b, r):
            keep = range(0, 4) if r == A else range(4, 8)
            for sp in range(2):
                for jt in range(3):
                    o = OUT + 4 * (3 * sp + jt)
                    for h in range(2):
                        i = 2 * sp + h
                        a = acc(keep[i], jt); x = RX + 4 * (3 * i + jt)
                        b.wait_lgkm(('rx', 3 * i + jt))
                        b.e(f'v_pk_mul_f32 {q2(a)}, {q2(a)}, {q2(C+4*jt)}')
                        b.e(f'v_pk_mul_f32 {q2(a+2)}, {q2(a+2)}, {q2(C+4*jt)}')
                        b.e(f'v_pk_fma_f32 {q2(a)}, {q2(x)}, {q2(C+4*jt+2)}, {q2(a)}')
                        b.e(f'v_pk_fma_f32 {q2(a+2)}, {q2(x+2)}, {q2(C+4*jt+2)}, {q2(a+2)}')
                        b.e(f'v_cvt_pk_bf16_f32 v{o+2*h}, v{a}, v{a+1}')
                        b.e(f'v_cvt_pk_bf16_f32 v{o+2*h+1}, v{a+2}, v{a+3}')
                    b.e(f'buffer_store_dwordx4 {q4(o)}, v{VL16}, {srd(S_O)}, {so[jt]} offen offset:{sp*1024} {OSTPOL}', ('o',))
    if not FUSED:
        if STAMP:
            b.e('s_waitcnt vmcnt(0)')
            stamp(b, 5)
            dump_stamps(b)
        b.e('K1_END:')
        b.e('s_endpgm')
    return b

def dump_stamps(b):
    b.e('s_memrealtime s[88:89]')
    b.e('s_waitcnt lgkmcnt(0)')
    b.e('s_lshl_b32 s43, s2, 3'); b.e('s_add_u32 s43, s43, s42'); b.e('s_lshl_b32 s43, s43, 7')
    b.e('s_add_u32 s43, s43, 0x1000000')
    b.e('s_add_u32 s56, s18, s43'); b.e('s_addc_u32 s57, s19, 0'); b.e('s_mov_b32 s58, 128'); b.e('s_mov_b32 s59, 0x20000')
    b.e('v_mov_b32 v1, 0')
    for i in range(13):
        b.e(f'v_mov_b32 v2, s{64+2*i}'); b.e(f'v_mov_b32 v3, s{65+2*i}')
        b.e(f'buffer_store_dwordx2 v[2:3], v1, s[56:59], 0 offen offset:{8*i}')
        b.e('s_waitcnt vmcnt(0)')

def poll(b, name, load, notyet):
    b.e('s_mov_b32 s91, 0')
    b.e(f'{name}:')
    b.e(load)
    b.e('s_add_u32 s91, s91, 1')
    b.e('s_waitcnt vmcnt(0)')
    b.e(notyet)
    b.e('s_cmp_lt_u32 s91, 0x40000')
    b.e(f's_cbranch_vccz {name}_GO')
    b.e(f's_sleep {SLEEP}')
    b.e(f's_cbranch_scc1 {name}')
    b.e(f'{name}_GO:')

WL, OL = (0, 1, 2, 3, 4), (5, 6, 7)
S_ST, S_P, S_OUT, S_PI = 20, 24, 28, 32
VD = 192; VA0, VA1, VB = 196, 197, 198; VT = 200; VX = 204
US = 32768

def tail_setup():
    P = []
    def piece(*lines): P.append(lambda b: [b.e(l) for l in lines])
    piece('s_lshr_b32 s47, s41, 3', 's_and_b32 s48, s41, 7')
    piece('s_lshr_b32 s49, s48, 2', 's_and_b32 s50, s48, 3')
    piece('s_and_b32 s51, s50, 1', 's_mul_i32 s55, s47, 1179648')
    piece('s_mul_i32 s61, s50, 288', 's_add_u32 s55, s55, s61')
    piece('s_lshl_b32 s61, s51, 5', 's_sub_u32 s55, s55, s61')
    piece('s_mul_i32 s61, s40, 1572864', 's_mul_i32 s100, s49, 786432')
    piece('s_add_u32 s61, s61, s100', 's_lshl_b32 s100, s47, 15')
    piece('s_add_u32 s61, s61, s100', 's_sub_u32 s3, 4718592, s55')
    piece('s_add_u32 s100, s12, s55', 's_addc_u32 s101, s13, 0')
    piece('s_add_u32 s62, s18, s61', 's_addc_u32 s63, s19, 0')
    piece('s_mov_b32 s58, 4096', 's_cmp_lt_u32 s42, 5',
          f's_cselect_b32 s{S_ST}, s100, s62', f's_cselect_b32 s{S_ST+1}, s101, s63',
          f's_cselect_b32 s{S_ST+2}, s3, {5*131072 + 32768}', 's_cselect_b32 s58, 147456, s58')
    piece(f's_mov_b32 s{S_ST+3}, 0x20000', 's_lshr_b32 s59, s58, 1')
    piece('s_lshl_b32 s60, s42, 12', 's_mov_b32 s62, 0')
    piece('s_mov_b32 s63, s60', f's_add_u32 s57, s60, {4*US}')
    piece('s_lshl_b32 s56, s49, 2', 's_and_b32 s61, s40, 3')
    piece('s_add_u32 s56, s56, s61', 's_lshl_b32 s61, s50, 1')
    piece('s_add_u32 s56, s56, s61')
    t = VX
    piece(f'v_lshrrev_b32 v{t}, 6, v{VL16}', f'v_mul_u32_u24 v{t}, 1152, v{t}')
    piece(f'v_bfe_u32 v{t+1}, v{VL16}, 8, 1', f'v_lshlrev_b32 v{t+1}, 1, v{t+1}')
    piece(f'v_bfe_u32 v{t+2}, v{VL16}, 4, 2', f'v_xor_b32 v{t+1}, v{t+1}, v{t+2}')
    piece(f'v_lshl_add_u32 v{t}, v{t+1}, 4, v{t}', 's_lshl_b32 s61, s42, 6')
    piece(f'v_add_u32 v{VD}, s61, v{t}', 's_sub_u32 s61, s42, 5', 's_lshl_b32 s61, s61, 18')
    for m in range(1, 4): piece(f'v_add_u32 v{VD+m}, {m*(18432-1024)}, v{VD}')
    def ofix(b):
        with role(b, OL):
            b.e(f'v_add_u32 v{VD}, s61, v{VL16}')
            b.e(f'v_mov_b32 v{VD+1}, v{VD}')
            b.e(f'v_add_u32 v{VD+2}, {131072-2048}, v{VD}')
            b.e(f'v_mov_b32 v{VD+3}, v{VD+2}')
    P.append(ofix)
    return P

def t_issue_parts():
    def head(b):
        b.e('s_lshr_b32 s55, s62, 1'); b.e('s_add_u32 s55, s55, s56'); b.e('s_and_b32 s55, s55, 7')
        b.e('s_mul_i32 s55, s55, s58')
        b.e('s_and_b32 s61, s62, 1'); b.e('s_mul_i32 s61, s61, s59'); b.e('s_add_u32 s55, s55, s61')
        b.e('s_cmp_lt_u32 s62, 16'); b.e('s_cselect_b32 s55, s55, 0x40000000')
        b.e('s_mov_b32 m0, s63')
        b.e('s_add_u32 s62, s62, 1')
    ld = [E(f'buffer_load_dwordx4 v{VD+m}, {srd(S_ST)}, s55 offen offset:{m*1024} {OLDPOL} lds', ('u',)) for m in range(4)]
    def tail(b):
        b.e('s_cmp_ge_u32 s63, s57'); b.e('s_cselect_b32 s61, s60, s63'); b.e(f's_cselect_b32 s63, 0, {US}')
        b.e('s_add_u32 s63, s63, s61')
    return [head] + ld + [tail]
def t_issue(b): run(b, t_issue_parts())

def oproj(ctx):
    FB = 64
    b = Block(ctx, 'op_pre')
    stamp(b, 2, True)
    b.e(f'v_lshrrev_b32 v{VT+3}, 4, v{VL16}')
    if FUSED:
        b.e('s_lshl_b32 s91, s42, 6')
        b.e(f'v_add_u32 v{VT}, s91, v{VT+3}')
        b.e(f'v_lshlrev_b32 v{VT}, 20, v{VT}')
        b.e(f'v_mov_b32 v{VT+1}, s97')
        b.wait_vm(('o',))
        b.e('s_barrier')
        b.e(f'buffer_store_dword v{VT+1}, v{VT}, {srd(S_F)}, s90 offen {F1POL}', ('f1',))
        stamp(b, 5)
    with role(b, WL):
        for _ in range(3 if (FUSED and WOEARLY) else 5): t_issue(b)
    b.e('s_lshr_b32 s43, s42, 2'); b.e('s_bfe_u32 s44, s42, 0x10001'); b.e('s_and_b32 s45, s42, 1')
    b.e(f'v_lshrrev_b32 v4, 4, v{VT+3}'); b.e(f'v_bfe_u32 v5, v{VT+3}, 2, 4'); b.e(f'v_and_b32 v3, 3, v{VT+3}')
    b.e('v_lshlrev_b32 v5, 6, v5'); b.e('v_lshl_add_u32 v5, v3, 3, v5')
    b.e('v_and_b32 v6, 1, v4'); b.e('v_lshlrev_b32 v6, 5, v6'); b.e('v_add_u32 v5, v5, v6')
    b.e('s_lshl_b32 s46, s43, 11')
    b.e('s_mul_i32 s52, s45, 8192'); b.e('s_add_u32 s52, s52, s46'); b.e('s_lshl_b32 s53, s45, 5')
    b.e(f'v_xor_b32 v{VA0}, s53, v5'); b.e(f'v_add_u32 v{VA0}, s52, v{VA0}')
    b.e('s_mul_i32 s52, s45, 12288'); b.e('s_add_u32 s52, s52, s46'); b.e('s_xor_b32 s53, s53, 32')
    b.e(f'v_xor_b32 v{VA1}, s53, v5'); b.e(f'v_add_u32 v{VA1}, s52, v{VA1}')
    b.e('s_mul_i32 s52, s44, 6144'); b.e('s_lshl_b32 s53, s43, 10'); b.e('s_add_u32 s52, s52, s53'); b.e('s_add_u32 s52, s52, 20480')
    b.e(f'v_add_u32 v{VB}, s52, v{VL16}')
    b.e('s_lshl_b32 s52, s40, 3'); b.e('s_add_u32 s52, s52, s48'); b.e(f's_mul_i32 s52, s52, {16*INB}')
    b.e(f's_add_u32 s52, s52, {POFF}')
    b.e(f's_mul_i32 s54, s47, {INB}'); b.e('s_add_u32 s54, s54, s52')
    b.e(f's_add_u32 s{S_P}, s18, s54'); b.e(f's_addc_u32 s{S_P+1}, s19, 0')
    b.e(f's_mov_b32 s{S_P+2}, {13*INB}'); b.e(f's_mov_b32 s{S_P+3}, 0x20000')
    b.e(f's_mul_i32 s54, s47, {4*INB}'); b.e('s_add_u32 s54, s54, s52')
    b.e(f's_add_u32 s{S_PI}, s18, s54'); b.e(f's_addc_u32 s{S_PI+1}, s19, 0')
    b.e(f's_mov_b32 s{S_PI+2}, {4*INB}'); b.e(f's_mov_b32 s{S_PI+3}, 0x20000')
    b.e('s_mul_i32 s52, s40, 192'); b.e('s_mul_i32 s54, s49, 96'); b.e('s_add_u32 s52, s52, s54')
    b.e('s_lshl_b32 s54, s47, 2'); b.e('s_add_u32 s52, s52, s54'); b.e('s_mul_i32 s52, s52, 1152')
    b.e('s_mul_i32 s54, s50, 288'); b.e('s_add_u32 s52, s52, s54')
    b.e(f's_add_u32 s{S_OUT}, s14, s52'); b.e(f's_addc_u32 s{S_OUT+1}, s15, 0')
    b.e(f's_sub_u32 s{S_OUT+2}, 1769472, s52'); b.e(f's_mov_b32 s{S_OUT+3}, 0x20000')
    b.e(f'v_bfe_u32 v6, v{VT+3}, 2, 2'); b.e(f'v_mul_u32_u24 v6, {4*INB}, v6')
    b.e('v_lshl_add_u32 v6, v4, 6, v6'); b.e(f'v_lshl_add_u32 v{VT+2}, v3, 4, v6')
    b.e('s_mul_i32 s52, s44, 27'); b.e('s_mul_i32 s53, s45, 5'); b.e('s_add_u32 s52, s52, s53'); b.e('s_sub_u32 s52, s52, s51')
    b.e('s_lshl_b32 s36, s52, 8')
    b.e('s_cmp_lt_u32 s45, s51'); b.e('s_cselect_b32 s37, 1, 0')
    b.e('s_cmp_gt_u32 s45, s51'); b.e('s_cselect_b32 s38, 1, 0')
    for i in range(60): b.e(f'v_mov_b32 v{i}, 0')
    with role(b, OL):
        if FUSED:
            b.e(f'v_and_b32 v{VT}, 7, v{VT+3}'); b.e(f'v_lshlrev_b32 v{VT}, 7, v{VT}')
            b.e('s_and_b32 s52, s90, 0xfffffc00')
            b.e('s_and_b32 s99, s97, 0x7fffffff')
            poll(b, 'OP_P1', f'buffer_load_dword v{VT+1}, v{VT}, {srd(S_F)}, s52 offen sc1', f'v_and_b32 v{VT+1}, 0x7fffffff, v{VT+1}\nv_cmp_ne_u32 vcc, s99, v{VT+1}')
        stamp(b, 3, True)
        for _ in range(5): t_issue(b)
    stamp(b, 6)
    def fA(U, n): return FB + 32 * (U % 2) + 4 * n
    def fB(U, j): return FB + 32 * (U % 2) + 20 + 4 * j
    def rd(U):
        r = [E(f'ds_read_b128 {q4(fB(U,j))}, v{VB} offset:{2*j*1024}', ('f',)) for j in range(3)]
        for n in range(5):
            r += [E(f'ds_read_b64_tr_b16 {q2(fA(U,n)+2*u)}, v{VA1 if n % 2 else VA0} offset:{(n//2)*4096 + u*1024}', ('f',)) for u in range(2)]
        return r
    def adv(b):
        b.e(f's_cmp_ge_u32 s46, {4*US}'); b.e(f's_cselect_b32 s52, s54, s53'); b.e('s_add_u32 s46, s46, s52')
        for V in (VA0, VA1, VB): b.e(f'v_add_u32 v{V}, s52, v{V}')
    b.e('s_mov_b32 s46, 0'); b.e(f's_mov_b32 s53, {US}'); b.e(f's_mov_b32 s54, {(-4*US) & 0xffffffff}')
    b.e('s_mov_b32 s39, 0')
    b.e('s_waitcnt vmcnt(16)')
    b.e('s_barrier')
    run(b, rd(0))
    adv(b)
    lp = Block(ctx, 'op_loop')
    lp.e('OP_LOOP:')
    TX = OPT.get('tx', '')
    for U in range(2):
        lp.e('s_waitcnt vmcnt(12) lgkmcnt(0)')
        lp.e('s_barrier')
        mm = [E(f'{MF} {q4(12*n+4*j)}, {q4(fA(U,n))}, {q4(fB(U,j))}, {q4(12*n+4*j)}') for n in range(5) for j in range(3)]
        r = rd(U + 1) + [adv]
        parts = t_issue_parts() if TX != 'none' else []
        fill = []
        if STAG and parts:
            def site(R):
                def f(b):
                    with role(b, R): t_issue(b)
                return f
            fill = r[:1] + [site(A)] + r[1:8] + [site(B)] + r[8:]
        else:
            for k in range(max(len(r), 2 * len(parts))):
                if k < len(r): fill.append(r[k])
                if k % 2 == 1 and k // 2 < len(parts): fill.append(parts[k // 2])
        run(lp, interleave(mm, fill, end=14))
    lp.e('s_add_u32 s39, s39, 1'); lp.e('s_cmp_lt_u32 s39, 8'); lp.e('s_cbranch_scc1 OP_LOOP')
    e = Block(ctx, 'op_end')
    stamp(e, 7)
    e.e('s_lshl_b32 s52, s42, 13'); e.e('s_xor_b32 s53, s52, 32768')
    e.e(f'v_add_u32 v{VA0}, s52, v{VL16}'); e.e(f'v_add_u32 v{VA1}, s53, v{VL16}')
    e.e('s_waitcnt vmcnt(0) lgkmcnt(0)')
    e.e('s_barrier')
    keepA, keepB = list(range(8)), list(range(8, 15))
    for r_, send in ((A, keepB), (B, keepA)):
        with role(e, r_):
            for k, t in enumerate(send): e.e(f'ds_write_b128 v{VA0}, {q4(4*t)} offset:{k*1024}', ('x',))
    for j in range(3): e.e(f's_add_u32 s{43+j}, s36, {j*2304}')
    e.e('s_waitcnt lgkmcnt(0)')
    e.e('s_barrier')
    for r_, keep in ((A, keepA), (B, keepB)):
        with role(e, r_):
            for k, t in enumerate(keep): e.e(f'ds_read_b128 {q4(FB+4*k)}, v{VA1} offset:{k*1024}', ('y', k))
            for k, t in enumerate(keep):
                n, j = t // 3, t % 3
                e.wait_lgkm(('y', k))
                e.e(f'v_pk_add_f32 {q2(4*t)}, {q2(4*t)}, {q2(FB+4*k)}')
                e.e(f'v_pk_add_f32 {q2(4*t+2)}, {q2(4*t+2)}, {q2(FB+4*k+2)}')
                if n in (0, 4):
                    role.n += 1; l = f'SK{role.n}'
                    e.e(f's_cmp_eq_u32 s{37 if n == 0 else 38}, 1'); e.e(f's_cbranch_scc1 {l}')
                    e.e(f's_add_u32 s52, s{43+j}, {n*256}')
                    e.e(f'buffer_store_dwordx4 {q4(4*t)}, v{VT+2}, {srd(S_P)}, s52 offen sc1', ('p',))
                    e.e(f'{l}:')
                else:
                    e.e(f's_add_u32 s52, s{43+j}, {n*256}')
                    e.e(f'buffer_store_dwordx4 {q4(4*t)}, v{VT+2}, {srd(S_P)}, s52 offen sc1', ('p',))
    X = 100
    e.e('s_lshl_b32 s52, s42, 6')
    e.e(f'v_add_u32 v{X}, s52, v{VT+3}')
    e.e(f'v_lshlrev_b32 v{VT}, 20, v{X}')
    e.e(f'v_add_u32 v{X+1}, 512, v{X}')
    for k in range(2):
        x = X + k
        e.e(f'v_lshrrev_b32 v{X+4}, 4, v{x}')
        e.e(f'v_mul_u32_u24 v{X+5}, 57, v{X+4}'); e.e(f'v_lshrrev_b32 v{X+5}, 9, v{X+5}')
        e.e(f'v_mul_u32_u24 v{X+6}, 9, v{X+5}'); e.e(f'v_sub_u32 v{X+6}, v{X+4}, v{X+6}')
        e.e(f'v_and_b32 v{X+7}, 3, v{x}'); e.e(f'v_lshl_add_u32 v{X+7}, v{X+5}, 4, v{X+7}'); e.e(f'v_mul_u32_u24 v{X+7}, 1152, v{X+7}')
        e.e(f'v_lshl_add_u32 v{X+7}, v{X+6}, 5, v{X+7}')
        e.e(f'v_bfe_u32 v{X+6}, v{x}, 2, 2'); e.e(f'v_lshl_add_u32 v{X+2+k}, v{X+6}, 3, v{X+7}')
        e.e(f'v_lshlrev_b32 v{x}, 4, v{x}')
    e.e(f'v_cmp_gt_u32 vcc, 13824, v{X+1}')
    e.e(f'v_mov_b32 v{X+4}, 0x40000000')
    e.e('s_nop 0')
    e.e(f'v_cndmask_b32 v{X+1}, v{X+4}, v{X+1}, vcc'); e.e(f'v_cndmask_b32 v{X+3}, v{X+4}, v{X+3}, vcc')
    e.e('s_and_b32 s50, s90, 0xfffff380')
    e.e(f'v_and_b32 v{X+4}, 3, v{VT+3}'); e.e(f'v_lshlrev_b32 v{X+4}, 10, v{X+4}')
    e.e(f'v_mov_b32 v{VT+1}, s98')
    e.e('s_waitcnt vmcnt(0)')
    e.e('s_barrier')
    e.e(f'buffer_store_dword v{VT+1}, v{VT}, {srd(S_F)}, s90 offen sc1', ('f2',))
    stamp(e, 8)
    poll(e, 'OP_P2', f'buffer_load_dword v{X+5}, v{X+4}, {srd(S_F)}, s50 offen sc1', f'v_cmp_ne_u32 vcc, s98, v{X+5}')
    stamp(e, 9)
    e.e(f's_mov_b32 s48, {INB}'); e.e(f's_mov_b32 s49, {2*INB}'); e.e(f's_mov_b32 s50, {3*INB}')
    so = ['0', 's48', 's49', 's50']
    R0 = 112
    for k in range(2):
        for src in range(4):
            e.e(f'buffer_load_dwordx4 {q4(R0+16*k+4*src)}, v{X+k}, {srd(S_PI)}, {so[src]} offen sc1', ('in', k))
    e.e(f'v_mov_b32 v{VT+1}, s97')
    e.e(f'buffer_store_dword v{VT+1}, v{VT}, {srd(S_F)}, s96 offen sc1', ('ep',))
    for k in range(2):
        e.wait_vm(('in', k))
        r = R0 + 16 * k
        e.e(f'v_pk_add_f32 {q2(r)}, {q2(r)}, {q2(r+4)}'); e.e(f'v_pk_add_f32 {q2(r+2)}, {q2(r+2)}, {q2(r+6)}')
        e.e(f'v_pk_add_f32 {q2(r+8)}, {q2(r+8)}, {q2(r+12)}'); e.e(f'v_pk_add_f32 {q2(r+10)}, {q2(r+10)}, {q2(r+14)}')
        e.e(f'v_pk_add_f32 {q2(r)}, {q2(r)}, {q2(r+8)}'); e.e(f'v_pk_add_f32 {q2(r+2)}, {q2(r+2)}, {q2(r+10)}')
        e.e(f'v_cvt_pk_bf16_f32 v{r}, v{r}, v{r+1}'); e.e(f'v_cvt_pk_bf16_f32 v{r+1}, v{r+2}, v{r+3}')
        e.e(f'buffer_store_dwordx2 {q2(r)}, v{X+2+k}, {srd(S_OUT)}, 0 offen')
    if STAMP:
        stamp(e, 10)
        dump_stamps(e)
    e.e('K1_END:' if FUSED else 'K2_END:')
    e.e('s_endpgm')
    return b, lp, e

def kernel1():
    ctx = MCtx(8)
    pro = k1_prologue(ctx)
    qp = k1_qproj(ctx)
    ap = k1_att_prologue(ctx)
    p1 = pv_phase(ctx, 'P1', SA, SB, head=lambda a: a.e('K1_LOOP:'), dma=guarded(dma_v, 0))
    p2 = qk_phase(ctx, 'P2', SA, SB, dma_k)
    p3 = pv_phase(ctx, 'P3', SB, SA, dma=dma_v)
    p4 = qk_phase(ctx, 'P4', SB, SA, dma_k)
    p4[2].e('s_add_u32 s44, s44, 1')
    p4[2].e('s_cmp_lt_u32 s44, 7')
    p4[2].e('s_cbranch_scc1 K1_LOOP')
    def warm(b):
        b.e(f'v_lshrrev_b32 v{KR}, 6, v{VL16}'); b.e(f'v_mul_u32_u24 v{KR}, 1152, v{KR}')
        b.e(f'v_and_b32 v{KR+1}, 48, v{VL16}'); b.e(f'v_lshlrev_b32 v{KR+1}, 3, v{KR+1}'); b.e(f'v_min_u32 v{KR+1}, 316, v{KR+1}')
        b.e(f'v_add_u32 v{KR}, v{KR}, v{KR+1}')
        b.e(f'buffer_load_dword v{KR+1}, v{KR}, s[28:31], 0 offen', ('warm',))
    l1 = pv_phase(ctx, 'L1', SA, SB, nextK=False, dma=warm if (FUSED and WARM) else None)
    l2 = Block(ctx, 'L2')
    l2.e('s_waitcnt vmcnt(0)')
    l2.e('s_barrier')
    for t in range(4): vread(l2, t)
    run(l2, sm_fillers(SB)[SM_SPLIT:] + chk_fillers())
    l2.e('s_cbranch_vccnz L2_RARE')
    l2r = rare_path(ctx, 'L2', SB, None, 2)
    l3 = pv_phase(ctx, 'L3', SB, None, nextK=False, bar=False, head=lambda a: a.e('L2_JOIN:'), extra=tail_setup() if FUSED else ())
    l3.e('s_nop 7')
    ep = k1_epilogue(ctx)
    errs = []
    body = [p1, p2[0], p2[2], p3, p4[0], p4[2]]
    bodyr = [p1, p2[0], p2[1], p2[2], p3, p4[0], p4[1], p4[2]]
    last = [l1, l2, l3, ep]
    lastr = [l1, l2, l2r, l3, ep]
    tail = list(oproj(ctx)) if FUSED else []
    ttr = [tail[0], tail[1], tail[1], tail[2]] if FUSED else []
    for r in ALLW:
        errs += check_trace([pro, qp, ap] + body + body + last + ttr, f'main{r}', r)
        errs += check_trace([pro, qp, ap] + bodyr + bodyr + body + lastr, f'rare{r}', r)
    if NOCOMP:
        for blk in body:
            keep = [i for i in blk if i.kind not in ('mfma', 'valu', 'trans') and not (NOCOMP > 1 and i.kind == 'ds') and 'vccnz' not in i.text]
            blk[:] = keep
        errs = []
    DROP = OPT.get('drop', '')
    if DROP:
        D = DROP.split(',')
        def dropit(i):
            t = i.text
            if 'vccnz' in t: return True
            if 'exp' in D and t.startswith('v_exp'): return True
            if 'add' in D and t.startswith('v_add_f32'): return True
            if 'cvt' in D and t.startswith('v_cvt'): return True
            if 'ds' in D and i.kind == 'ds': return True
            if 'wait' in D and i.kind == 'wait': return True
            if 'bar' in D and i.kind == 'barrier': return True
            if 'adv' in D and (t.startswith('v_add_u32') or t.startswith('s_cmp_ge') or t.startswith('s_cselect') or t.startswith('s_add_u32 s45') or t.startswith('s_add_u32 s46')): return True
            if 'mfma' in D and i.kind == 'mfma': return True
            return False
        for blk in body: blk[:] = [i for i in blk if not dropit(i)]
        errs = []
    order = [pro, qp, ap] + body + last + tail + [p2[1], p4[1], l2r]
    return order, errs

def kernel2():
    ctx = MCtx(8)
    b = Block(ctx, 'k2')
    b.e('s_cmp_ge_u32 s2, 256')
    b.e('s_cbranch_scc1 K2_END')
    b.e('s_load_dwordx8 s[12:19], s[0:1], 32')
    if STAMP:
        for i in range(6): b.e(f's_memtime s[{64+2*i}:{65+2*i}]')
        b.e('s_memrealtime s[86:87]')
    b.e('v_lshrrev_b32 v1, 6, v0')
    b.e('v_and_b32 v0, 63, v0')
    b.e('v_readfirstlane_b32 s42, v1')
    b.e('s_and_b32 s43, s2, 7'); b.e('s_lshr_b32 s44, s2, 3')
    b.e('s_and_b32 s40, s43, 1'); b.e('s_lshl_b32 s40, s40, 2'); b.e('s_and_b32 s45, s44, 3'); b.e('s_add_u32 s40, s40, s45')
    b.e('s_lshr_b32 s41, s43, 1'); b.e('s_lshl_b32 s41, s41, 3'); b.e('s_lshr_b32 s46, s44, 2'); b.e('s_add_u32 s41, s41, s46')
    b.e(f'v_lshlrev_b32 v{VL16}, 4, v0')
    b.e('s_waitcnt lgkmcnt(0)')
    flag_srd(b)
    epoch_load(b, 222)
    b.e('s_waitcnt vmcnt(0)')
    epoch_tags(b, 222)
    run(b, tail_setup())
    t = oproj(ctx)
    errs = []
    for r in ALLW: errs += check_trace([b, t[0], t[1], t[1], t[2]], f'k2_{r}', r)
    return [b] + list(t), errs

HEADER = open('standalone__mha_block_cached__near_ridge.s.ref').read().split('; Override')[0]

def kd(name, vgpr, sgpr=96):
    return f'''.amdhsa_kernel {name}
  .amdhsa_next_free_vgpr {vgpr}
  .amdhsa_next_free_sgpr {sgpr}
  .amdhsa_accum_offset {(vgpr+3)//4*4}
  .amdhsa_group_segment_fixed_size 0
  .amdhsa_kernarg_size 64
  .amdhsa_user_sgpr_count 2
  .amdhsa_user_sgpr_kernarg_segment_ptr 1
  .amdhsa_system_sgpr_workgroup_id_x 1
.end_amdhsa_kernel
'''

def main():
    k1, e1 = kernel1()
    k2, e2 = kernel2() if not FUSED else ([], [])
    for e in list(dict.fromkeys(x.split('] ', 1)[1] for x in e1 + e2))[:12]: print('CHECK', e, file=sys.stderr)
    out = HEADER
    if FUSED:
        N = 'standalone__mha_block_cached__near_ridge_kernel'
        out += f'; @launch grid=(256,1,1) block=(512,1,1) lds={LDS_TOT}\n'
        ks = [(N, k1)]
    else:
        out += f'; @launch kernel=mha_attn_kernel grid=(256,1,1) block=(512,1,1) lds={LDS_TOT}\n'
        out += f'; @launch kernel=mha_oproj_kernel grid=(256,1,1) block=(512,1,1) lds={LDS_TOT}\n'
        ks = [('mha_attn_kernel', k1), ('mha_oproj_kernel', k2)]
    out += '.amdgcn_target "amdgcn-amd-amdhsa--gfx950"\n.text\n'
    for name, blocks in ks:
        out += f'.globl {name}\n.p2align 8\n.type {name},@function\n{name}:\n'
        out += '\n'.join(b.text() for b in blocks) + '\n'
    out += '.section .rodata,"a"\n'
    for name, _ in ks: out += '.p2align 6\n' + kd(name, 256, 102)
    open(sys.argv[1], 'w').write(out)
    if e1 or e2: sys.exit(1)
main()
```

```python
import sys, struct, math
from asmlib import *

OPT = dict(a.split('=') for a in sys.argv[2:] if '=' in a)
STAMP = int(OPT.get('stamp', 0))
KVPOL = OPT.get('kvpol', 'nt')
XPOL = OPT.get('xpol', '')
WPOL = OPT.get('wpol', '')
OSTPOL = OPT.get('ostpol', 'sc1' if OPT.get('fused', '1') == '1' else '')
OLDPOL = OPT.get('oldpol', '')
WOPOL = OPT.get('wopol', '')
THR = float(OPT.get('thr', 2048.0))
NOBARQK = int(OPT.get('nobarqk', 0))
SKIPT = int(OPT.get('skipt', 0))
STAG = int(OPT.get('stag', 0))
ROT = int(OPT.get('rot', 1))
ROT2 = int(OPT.get('rot2', 1))
SM_SPLIT = int(OPT.get('split', 30))
CHK_AT = int(OPT.get('chk', 8))
PRIO = int(OPT.get('prio', 0))
K2D = int(OPT.get('k2d', 4))
NODMA = int(OPT.get('nodma', 0))
NOCOMP = int(OPT.get('nocomp', 0))
NOKVQ = int(OPT.get('nokvq', 0))
FUSED = int(OPT.get('fused', 1))
OLD2 = OPT.get('old2', 'sc1')
SLEEP = int(OPT.get('sleep', 1))
F1POL = OPT.get('f1pol', 'sc1')
WOPRE = int(OPT.get('wopre', 5))
TOUCH = int(OPT.get('touch', 0))
WOEARLY = int(OPT.get('woearly', 0))
WARM = int(OPT.get('warm', 1))
NOX = int(OPT.get('nox', 0))
NOWQ = int(OPT.get('nowq', 0))
MAP = OPT.get('map', '4x8')
KVSCHED = [int(x) for x in OPT.get('kvs', '0,2,3,5,6,8,9,11,12,14').split(',') if x]

def f2u(f): return struct.unpack('<I', struct.pack('<f', f))[0]
SCALE = math.log2(math.e) / math.sqrt(128.0)
MF = 'v_mfma_f32_16x16x32_bf16'
def q4(n): return f'v[{n}:{n+3}]'
def q2(n): return f'v[{n}:{n+1}]'

ACC = 0; QF = 96; SA = 144; SB = 168; KR = 192; VR = 208; NEGM = 224
TMP = 236; VK = 248; VVE = 249; VVO = 250; LS = 251; VL16 = 254; VKV = 255
RING = 10; CH = 16384; LDS_TOT = RING * CH
QB = 114688
SLOT = 40960
S_K, S_V, S_X, S_WQ, S_O = 20, 24, 28, 32, 36
FS = 96
VXD = 208; VWD = 211; VXR = 213; VAE = 215; VAO = 217; VQE = 219; VQO = 220; VQR = 221
def srd(n): return f's[{n}:{n+3}]'
def acc(t, jt): return ACC + 12 * t + 4 * jt
def qf(s, jt): return QF + 12 * s + 4 * jt
def st(S, kt, jt): return S + 12 * kt + 4 * jt
ALLW = list(range(8))
A, B = (0, 1, 2, 3), (4, 5, 6, 7)

TST = int(OPT.get('tst', 0))
def stamp(b, idx, fine=False):
    if TST and idx in (1, 2, 3) and not fine: return
    if fine and not TST: return
    if STAMP: b.e(f's_memtime s[{64+2*idx}:{65+2*idx}]')

class role:
    n = 0
    def __init__(self, b, waves): self.b, self.w = b, list(waves)
    def __enter__(self):
        role.n += 1; self.l = f'RL{role.n}'
        self.b.e(f's_bitcmp1_b32 {sum(1 << w for w in self.w)}, s42')
        self.b.e(f's_cbranch_scc0 {self.l}')
        self.b.ctx.active = self.w
    def __exit__(self, *a):
        self.b.ctx.active = ALLW
        self.b.e(f'{self.l}:')

def E(text, tag=None): return lambda b: b.e(text, tag)
def run(b, lst):
    for f in lst: f(b)

def chunk_of(n):
    if n == 0: return ('K', 0)
    if n % 2 == 1: return ('K', (n + 1) // 2)
    return ('V', (n - 2) // 2)

def k1_prologue(ctx):
    b = Block(ctx, 'k1_pro')
    b.e('s_cmp_ge_u32 s2, 256')
    b.e('s_cbranch_scc1 K1_END')
    b.e('s_load_dwordx8 s[4:11], s[0:1], 0')
    b.e('s_load_dwordx8 s[12:19], s[0:1], 32')
    if STAMP:
        b.e('s_memtime s[64:65]')
        b.e('s_memrealtime s[86:87]')
    b.e('v_lshrrev_b32 v1, 6, v0')
    b.e('v_and_b32 v0, 63, v0')
    b.e('v_readfirstlane_b32 s42, v1')
    b.e('s_and_b32 s43, s2, 7')
    b.e('s_lshr_b32 s44, s2, 3')
    nb = int(MAP.split('x')[0]); lb = nb.bit_length() - 1
    nh = 32 // nb; xb = 8 // nb
    b.e(f's_and_b32 s40, s43, {xb - 1}')
    b.e(f's_lshl_b32 s40, s40, {lb}')
    b.e(f's_and_b32 s45, s44, {nb - 1}')
    b.e('s_add_u32 s40, s40, s45')
    b.e(f's_lshr_b32 s41, s43, {xb.bit_length() - 1}')
    b.e(f's_lshl_b32 s41, s41, {nh.bit_length() - 1}')
    b.e(f's_lshr_b32 s46, s44, {lb}')
    b.e('s_add_u32 s41, s41, s46')
    m = max(nb, nh)
    b.e(f's_mul_i32 s45, s45, {32 // nb}')
    b.e(f's_mul_i32 s46, s46, {32 // nh}')
    b.e('s_add_u32 s45, s45, s46')
    b.e('s_and_b32 s45, s45, 31')
    b.e('s_mul_i32 s45, s45, 9')
    b.e('s_lshr_b32 s45, s45, 5')
    if ROT == 0: b.e('s_mov_b32 s45, 0')
    if ROT == 2: b.e('s_cmp_ge_u32 s45, 5'); b.e('s_cselect_b32 s45, 5, 0')
    if ROT == 3: b.e('s_mul_i32 s45, s45, 22'); b.e('s_lshr_b32 s45, s45, 6'); b.e('s_mul_i32 s45, s45, 3')
    b.e('s_lshl_b32 s57, s45, 7')
    b.e('s_lshl_b32 s58, s45, 19')
    b.e('s_lshl_b32 s45, s40, 5')
    b.e('s_add_u32 s45, s45, s41')
    b.e('s_lshl_b32 s45, s45, 18')
    b.e('s_mul_i32 s46, s40, 221184')
    b.e('s_lshl_b32 s47, s41, 8')
    b.e('s_mul_i32 s48, s40, 1572864')
    b.e('s_and_b32 s53, s42, 3')
    b.e('s_lshr_b32 s54, s42, 2')
    b.e('v_bfe_u32 v4, v0, 2, 3')
    b.e('v_lshrrev_b32 v5, 5, v0')
    b.e('v_and_b32 v3, 3, v0')
    b.e('v_lshrrev_b32 v7, 2, v4')
    b.e('v_lshlrev_b32 v8, 1, v7')
    b.e('v_xor_b32 v6, v3, v8')
    b.e('v_lshlrev_b32 v6, 4, v6')
    b.e('v_lshl_add_u32 v6, v5, 6, v6')
    b.e('s_lshr_b32 s43, s53, 1')
    b.e('s_and_b32 s44, s42, 1')
    b.e('v_and_b32 v9, 3, v4')
    b.e('v_lshl_add_u32 v9, v7, 3, v9')
    b.e('s_lshl_b32 s55, s43, 4')
    b.e('s_lshl_b32 s62, s54, 2')
    b.e('s_add_u32 s55, s55, s62')
    b.e('v_add_u32 v9, s55, v9')
    b.e('v_lshl_add_u32 v9, v9, 13, v6')
    b.e('s_lshl_b32 s55, s44, 7')
    b.e(f'v_add_u32 v{VWD}, s55, v9')
    b.e(f'v_add_u32 v{VWD+1}, {32*8192-1024}, v{VWD}')
    b.e('s_lshl_b32 s60, s42, 11')
    b.e('s_mul_i32 s63, s42, 3')
    for i in range(3):
        b.e(f's_add_u32 s62, s63, {i}')
        b.e('s_and_b32 s56, s62, 1')
        b.e('s_lshl_b32 s56, s56, 3')
        b.e('s_add_u32 s56, s56, 12')
        b.e('s_lshr_b32 s62, s62, 1')
        b.e('s_lshl_b32 s62, s62, 4')
        b.e('v_add_u32 v9, s56, v4')
        b.e('v_and_b32 v9, 15, v9')
        b.e('v_add_u32 v9, s62, v9')
        b.e('v_mul_u32_u24 v9, 1152, v9')
        b.e('v_add_u32 v9, v9, v6')
        if i: b.e(f'v_subrev_u32 v{VXD+i}, {i*1024}, v9')
        else: b.e(f'v_mov_b32 v{VXD}, v9')
    b.e('s_lshl_b32 s59, s63, 10')
    b.e('s_add_u32 s59, s59, 16384')
    b.e('s_waitcnt lgkmcnt(0)')
    b.e(f's_add_u32 s{S_X}, s4, s46');  b.e(f's_addc_u32 s{S_X+1}, s5, 0')
    b.e(f's_mov_b32 s{S_X+2}, 221184'); b.e(f's_mov_b32 s{S_X+3}, 0x20000')
    b.e(f's_add_u32 s{S_WQ}, s10, s47'); b.e(f's_addc_u32 s{S_WQ+1}, s11, 0')
    b.e(f's_sub_u32 s{S_WQ+2}, 4718592, s47'); b.e(f's_mov_b32 s{S_WQ+3}, 0x20000')
    b.e(f's_add_u32 s{S_K}, s6, s45');  b.e(f's_addc_u32 s{S_K+1}, s7, 0')
    b.e(f's_mov_b32 s{S_K+2}, 262144'); b.e(f's_mov_b32 s{S_K+3}, 0x20000')
    b.e(f's_add_u32 s{S_V}, s8, s45');  b.e(f's_addc_u32 s{S_V+1}, s9, 0')
    b.e(f's_mov_b32 s{S_V+2}, 262144'); b.e(f's_mov_b32 s{S_V+3}, 0x20000')
    b.e(f's_add_u32 s{S_O}, s18, s48'); b.e(f's_addc_u32 s{S_O+1}, s19, 0')
    b.e(f's_mov_b32 s{S_O+2}, 1572864'); b.e(f's_mov_b32 s{S_O+3}, 0x20000')
    return b

RC = 1
def slot(n): return ((n + RC) % RING) * CH

def qslot(D): return ((D + 3) % 4) * SLOT

def qdma(b, D):
    b.e(f's_add_u32 m0, s60, {qslot(D)}')
    b.e('s_add_u32 s61, s57, 128')
    for h in range(0 if NOWQ else 2):
        b.e(f'buffer_load_dwordx4 v{VWD+h}, {srd(S_WQ)}, s58 offen offset:{h*1024} {WPOL} lds', ('q', D))
    b.e(f's_add_u32 m0, s59, {qslot(D)}')
    b.e('s_add_u32 s58, s58, 524288')
    for i in range(0 if NOX else 3):
        b.e(f'buffer_load_dwordx4 v{VXD+i}, {srd(S_X)}, s57 offen offset:{i*1024} {XPOL} lds', ('q', D))
    b.e('s_cmp_eq_u32 s61, 1152')
    b.e('s_cselect_b32 s57, 0, s61')
    b.e('s_cselect_b32 s58, 0, s58')

def kvpair_static(b, n):
    c = chunk_of(n)
    S = S_K if c[0] == 'K' else S_V
    b.e(f's_add_u32 m0, s52, {slot(n)}')
    b.e(f's_mov_b32 s56, {c[1] * CH}')
    b.e(f'buffer_load_dwordx4 v{VKV}, {srd(S)}, s56 offen {KVPOL} lds', ('kv', n))
    b.e(f'buffer_load_dwordx4 v{VKV}, {srd(S)}, s56 offen offset:2048 {KVPOL} lds', ('kv', n))

POFF = 0x2000000; FOFF = 0x3000000; INB = 13824
S_F = 92
def flag_srd(b):
    b.e(f's_add_u32 s{S_F}, s18, {FOFF}'); b.e(f's_addc_u32 s{S_F+1}, s19, 0')
    b.e(f's_mov_b32 s{S_F+2}, {32768+1024}'); b.e(f's_mov_b32 s{S_F+3}, 0x20000')
    b.e('s_lshl_b32 s90, s40, 5'); b.e('s_add_u32 s90, s90, s41'); b.e('s_lshl_b32 s90, s90, 7')
    b.e('s_lshl_b32 s96, s40, 7'); b.e('s_add_u32 s96, s96, 32768')

def epoch_load(b, v):
    b.e(f'v_mov_b32 v{v}, 0')
    b.e(f'buffer_load_dword v{v+1}, v{v}, {srd(S_F)}, s96 offen sc1', ('ep',))

def epoch_tags(b, v):
    b.e(f'v_readfirstlane_b32 s97, v{v+1}')
    b.e('s_nop 0')
    b.e('s_mul_i32 s97, s97, 0x9e3779b1')
    b.e('s_add_u32 s97, s97, 0x7f4a7c15')
    b.e('s_xor_b32 s98, s97, 0x80000000')

def one_lane(b, v):
    b.e(f's_lshl_b32 s91, s42, 6')
    b.e(f'v_add_u32 v{v}, s91, v0')
    b.e(f'v_lshlrev_b32 v{v}, 20, v{v}')

def k1_qproj(ctx):
    b = Block(ctx, 'qproj')
    flag_srd(b)
    if FUSED: epoch_load(b, 222)
    qdma(b, 0)
    b.e('v_lshl_add_u32 v9, v4, 8, v6')
    b.e('s_lshl_b32 s46, s43, 12')
    b.e('s_lshl_b32 s47, s54, 13')
    b.e('s_add_u32 s46, s46, s47')
    b.e('s_add_u32 s45, s55, s46')
    b.e(f'v_add_u32 v{VKV}, s45, v9')
    b.e('s_lshl_b32 s47, s44, 10')
    b.e('s_add_u32 s52, s46, s47')
    qdma(b, 1)
    b.e('v_lshrrev_b32 v10, 4, v0')
    b.e('v_and_b32 v6, 15, v0')
    b.e('v_lshrrev_b32 v7, 2, v6')
    b.e('v_and_b32 v8, 1, v10')
    b.e('v_lshl_add_u32 v5, v8, 2, v7')
    b.e('v_lshlrev_b32 v5, 6, v5')
    b.e('v_lshl_add_u32 v5, v8, 5, v5')
    b.e('v_lshl_add_u32 v5, v3, 3, v5')
    b.e('v_lshrrev_b32 v9, 1, v10')
    b.e('v_lshl_add_u32 v5, v9, 12, v5')
    b.e('s_lshl_b32 s45, s54, 11')
    b.e(f'v_add_u32 v{VAE}, s45, v5')
    b.e(f'v_add_u32 v{VAE+1}, {2*SLOT}, v{VAE}')
    b.e(f'v_xor_b32 v{VAO}, 32, v{VAE}')
    b.e(f'v_xor_b32 v{VAO+1}, 32, v{VAE+1}')
    b.e('v_add_u32 v5, 4, v6')
    b.e('v_bfe_u32 v11, v5, 3, 1')
    b.e('v_and_b32 v12, 7, v5')
    b.e('v_lshrrev_b32 v13, 2, v12')
    b.e('v_lshlrev_b32 v13, 1, v13')
    b.e('v_lshlrev_b32 v14, 6, v12')
    b.e('v_xor_b32 v15, v13, v10')
    b.e('v_lshl_add_u32 v15, v15, 4, v14')
    b.e('s_mul_i32 s46, s53, 6144')
    b.e('s_add_u32 s46, s46, 16384')
    b.e('v_lshl_add_u32 v5, v11, 10, v15')
    b.e(f'v_add_u32 v{VXR}, s46, v5')
    b.e(f'v_add_u32 v{VXR+1}, {2*SLOT}, v{VXR}')
    b.e('v_lshl_add_u32 v15, v11, 11, v15')
    b.e('v_lshl_add_u32 v14, v11, 11, v14')
    b.e('s_lshl_b32 s47, s54, 13')
    b.e(f'v_add_u32 v{VK}, s47, v15')
    b.e(f'v_add_u32 v{VK}, {slot(0)}, v{VK}')
    b.e('s_mul_i32 s46, s53, 12288')
    b.e(f's_add_u32 s46, s46, {QB}')
    b.e(f'v_add_u32 v{VQR}, s46, v15')
    b.e('v_xor_b32 v15, v13, v9')
    b.e('v_lshl_add_u32 v15, v15, 4, v14')
    b.e('v_lshl_add_u32 v15, v8, 3, v15')
    b.e('s_lshl_b32 s45, s54, 10')
    b.e('s_add_u32 s46, s46, s45')
    b.e(f'v_add_u32 v{VQE}, s46, v15')
    b.e(f'v_xor_b32 v{VQO}, 32, v{VQE}')
    b.e('v_add_u32 v5, 1, v10')
    b.e('v_bfe_u32 v11, v5, 1, 1')
    b.e('v_and_b32 v12, 1, v5')
    b.e('v_lshl_add_u32 v13, v12, 2, v7')
    b.e('v_lshlrev_b32 v13, 6, v13')
    b.e('v_lshl_add_u32 v13, v12, 5, v13')
    b.e('v_lshl_add_u32 v13, v3, 3, v13')
    b.e('v_lshl_add_u32 v13, v11, 11, v13')
    b.e(f's_add_u32 s47, s47, {slot(2)}')
    b.e(f'v_add_u32 v{VVE}, s47, v13')
    b.e(f'v_xor_b32 v{VVO}, 32, v{VVE}')
    b.e(f'v_lshlrev_b32 v{VL16}, 4, v0')
    b.e(f's_mov_b32 s48, {hex(f2u(SCALE))}')
    b.e(f's_mov_b32 s50, {(2*CH - LDS_TOT) & 0xffffffff}')
    b.e(f's_mov_b32 s51, {2*CH}')
    b.e(f's_mov_b32 s46, {slot(2)}')
    def fA(D, h, tt): return FS + 56 * (D % 2) + 28 * h + 4 * tt
    def fB(D, h, jt): return FS + 56 * (D % 2) + 28 * h + 16 + 4 * jt
    def reads(D):
        sl = ((D + 3) % 4); hi = sl // 2; o = (sl % 2) * SLOT
        r = []
        for h in range(2):
            for jt in range(3):
                r.append(E(f'ds_read_b128 {q4(fB(D,h,jt))}, v{VXR+hi} offset:{o + jt*2048 + h*512}', ('f', D)))
            for tt in range(4):
                for u in range(2):
                    r.append(E(f'ds_read_b64_tr_b16 {q2(fA(D,h,tt)+2*u)}, v{(VAO if tt%2 else VAE)+hi} offset:{o + u*8192 + h*1024 + (tt//2)*512}', ('f', D)))
        return r
    zero = [E(f'v_mov_b32 v{i}, 0') for i in range(48, 96)] + [E(f'v_mov_b32 v{LS+i}, 0') for i in range(3)]
    b.wait_vm(('q', 0))
    b.e('s_barrier')
    stamp(b, 1)
    run(b, reads(0))
    if FUSED: epoch_tags(b, 222)
    qdma(b, 2)
    issue = {0: [3, 4], 1: [5], 2: [6], 3: [7], 4: [8]}
    kvi = {5: [0], 6: [1, 2], 7: [3], 8: [4]}
    for D in range(9):
        b.e('s_waitcnt lgkmcnt(0)')
        if D + 1 < 9: b.wait_vm(('q', D + 1))
        b.e('s_barrier')
        dm = [(lambda b, x=x: qdma(b, x)) for x in issue.get(D, [])] + [(lambda b, x=x: kvpair_static(b, x)) for x in kvi.get(D, [])]
        mf = []
        if D < 8:
            for h in range(2):
                for tt in range(4):
                    for jt in range(3):
                        d = q4(acc(tt, jt))
                        mf.append(E(f'{MF} {d}, {q4(fA(D,h,tt))}, {q4(fB(D,h,jt))}, {"0" if D == 0 and h == 0 else d}'))
            rd = reads(D + 1)
            fill = []
            for k, x in enumerate(rd):
                fill.append(x)
                if dm and k % 6 == 1: fill.append(dm.pop(0))
            assert not dm
            run(b, interleave(mf, fill + zero[7 * D:7 * D + 7], end=21))
        else:
            tiles = [(tt, jt) for tt in range(4) for jt in range(3)]
            def conv(tt, jt):
                a = acc(tt, jt)
                return [E(f'v_mul_f32 v{a+i}, s48, v{a+i}') for i in range(4)] + [
                    E(f'v_cvt_pk_bf16_f32 v{a}, v{a}, v{a+1}'), E(f'v_cvt_pk_bf16_f32 v{a+1}, v{a+2}, v{a+3}'),
                    E(f'ds_write_b64 v{VQO if tt%2 else VQE}, {q2(a)} offset:{jt*4096 + (tt//2)*512}', ('qw',))]
            LAG = 3
            run(b, dm)
            for k, (tt, jt) in enumerate(tiles):
                d = q4(acc(tt, jt))
                cv = conv(*tiles[k - LAG]) if k >= LAG else []
                if k == LAG: b.e('s_nop 2')
                b.e(f'{MF} {d}, {q4(fA(D,0,tt))}, {q4(fB(D,0,jt))}, {d}')
                run(b, cv[:3])
                b.e(f'{MF} {d}, {q4(fA(D,1,tt))}, {q4(fB(D,1,jt))}, {d}')
                run(b, cv[3:])
            stamp(b, 2)
            for k in range(12 - LAG, 12):
                if k == 11: b.e('s_nop 0')
                run(b, conv(*tiles[k]))
    b.e('s_waitcnt lgkmcnt(0)')
    b.wait_vm(('kv', 1))
    b.e('s_barrier')
    kvpair_static(b, 5)
    for s in range(4):
        for jt in range(3):
            b.e(f'ds_read_b128 {q4(qf(s,jt))}, v{VQR} offset:{jt*4096 + (s//2)*1024 + (s%2)*512}', ('qr', s))
    return b

def kread(b, f):
    kt, s = f // 4, f % 4
    b.e(f'ds_read_b128 {q4(KR+4*(f%4))}, v{VK} offset:{kt*4096 + (s//2)*1024 + (s%2)*512}', ('k', f))
def vread(b, t):
    tau = t // 2
    a = VVO if t % 2 else VVE
    for u in range(2):
        b.e(f'ds_read_b64_tr_b16 {q2(VR+4*(t%4)+2*u)}, v{a} offset:{u*4096 + (tau//2)*1024 + (tau%2)*512}', ('v', t))
def kadv(b, first=False):
    if first:
        b.e(f'v_add_u32 v{VK}, {CH}, v{VK}')
        b.e(f's_mov_b32 s45, {slot(1)}')
        return
    b.e(f's_cmp_ge_u32 s45, {LDS_TOT - 2*CH}')
    b.e(f's_cselect_b32 s47, s50, s51')
    b.e(f's_add_u32 s45, s45, s47')
    b.e(f'v_add_u32 v{VK}, s47, v{VK}')
def vadv(b):
    b.e(f's_cmp_ge_u32 s46, {LDS_TOT - 2*CH}')
    b.e(f's_cselect_b32 s47, s50, s51')
    b.e(f's_add_u32 s46, s46, s47')
    b.e(f'v_add_u32 v{VVE}, s47, v{VVE}')
    b.e(f'v_add_u32 v{VVO}, s47, v{VVO}')


def dma_k(b):
    b.e('s_mov_b32 m0, s57')
    b.e(f's_cmp_ge_u32 s57, s61')
    b.e(f'buffer_load_dwordx4 v{VKV}, {srd(S_K)}, s59 offen {KVPOL} lds', ('kd',))
    b.e(f'buffer_load_dwordx4 v{VKV}, {srd(S_K)}, s59 offen offset:2048 {KVPOL} lds', ('kd',))
    b.e('s_cselect_b32 s62, s50, s51')
    b.e('s_add_u32 s57, s57, s62')
    b.e(f's_add_u32 s59, s59, {CH}')
def dma_v(b):
    b.e('s_mov_b32 m0, s58')
    b.e(f's_cmp_ge_u32 s58, s61')
    b.e(f'buffer_load_dwordx4 v{VKV}, {srd(S_V)}, s60 offen {KVPOL} lds', ('vd',))
    b.e(f'buffer_load_dwordx4 v{VKV}, {srd(S_V)}, s60 offen offset:2048 {KVPOL} lds', ('vd',))
    b.e('s_cselect_b32 s62, s50, s51')
    b.e('s_add_u32 s58, s58, s62')
    b.e(f's_add_u32 s60, s60, {CH}')

PS = TMP + 8

def guarded(fn, T):
    def g(b):
        if T is None: return fn(b)
        role.n += 1; l = f'SK{role.n}'
        b.e(f's_cmp_eq_u32 s44, {T}')
        b.e(f's_cbranch_scc1 {l}')
        fn(b)
        b.e(f'{l}:')
    return g

def qk_backbone(S, cinit, nextV=True, first=False, qwait=False, dma=None):
    bb = []
    for f in range(8):
        kt, s = f // 4, f % 4
        for jt in range(3):
            def slot(b, f=f, kt=kt, s=s, jt=jt):
                if jt == 0:
                    if qwait and f < 4: b.wait_lgkm(('qr', s))
                    b.wait_lgkm(('k', f))
                d = q4(st(S, kt, jt))
                c = d if s else (q4(NEGM + 4 * jt) if cinit == 'negm' else '0')
                b.e(f'{MF} {d}, {q4(KR+4*(f%4))}, {q4(qf(s,jt))}, {c}')
                if jt == 2:
                    if f < 4: kread(b, f + 4)
                    if f == 3: kadv(b, first)
                    if f >= 4:
                        if nextV == 'K': kread(b, f - 4)
                        elif nextV: vread(b, f - 4)
                if dma and not NODMA and f == 0 and jt == 1: dma(b)
            bb.append(slot)
    return bb

def pv_backbone(P, nextK=True, dma=None, adv=True):
    bb = []
    for t in range(8):
        for jt in range(3):
            def slot(b, t=t, jt=jt):
                if jt == 0: b.wait_lgkm(('v', t))
                d = q4(acc(t, jt))
                b.e(f'{MF} {d}, {q4(VR+4*(t%4))}, {q4(st(P,0,jt))}, {d}')
                if jt == 2:
                    if t < 4: vread(b, t + 4)
                    if t == 3 and adv: vadv(b)
                    if t >= 4 and nextK: kread(b, t - 4)
                if dma and not NODMA and t == 0 and jt == 1: dma(b)
            bb.append(slot)
    return bb

def sregs(S, jt): return [st(S, 0, jt) + i for i in range(4)] + [st(S, 1, jt) + i for i in range(4)]

def sm_fillers(S):
    fl = []
    for kt in range(2):
        for jt in range(3):
            r = sregs(S, jt)
            o = 4 * kt
            fl.append(E(f'v_exp_f32 v{r[o]}, v{r[o]}'))
            fl.append(E(f'v_exp_f32 v{r[o+1]}, v{r[o+1]}'))
            if kt: fl.append(E(f'v_add_f32 v{PS+jt}, v{PS+jt}, v{r[o]}'))
            fl.append(E(f'v_exp_f32 v{r[o+2]}, v{r[o+2]}'))
            if kt: fl.append(E(f'v_add_f32 v{PS+jt}, v{PS+jt}, v{r[o+1]}'))
            else: fl.append(E(f'v_add_f32 v{PS+jt}, v{r[0]}, v{r[1]}'))
            fl.append(E(f'v_exp_f32 v{r[o+3]}, v{r[o+3]}'))
            fl.append(E(f'v_add_f32 v{PS+jt}, v{PS+jt}, v{r[o+2]}'))
            fl.append(E(f'v_cvt_pk_bf16_f32 v{r[2*kt]}, v{r[o]}, v{r[o+1]}'))
            fl.append(E(f'v_add_f32 v{PS+jt}, v{PS+jt}, v{r[o+3]}'))
            fl.append(E(f'v_cvt_pk_bf16_f32 v{r[2*kt+1]}, v{r[o+2]}, v{r[o+3]}'))
    return fl

def chk_fillers():
    return [E(f'v_max3_f32 v{TMP}, v{PS}, v{PS+1}, v{PS+2}'), E(f'v_cmp_nle_f32 vcc, v{TMP}, v{TMP+11}')]
def ladd_fillers():
    return [E(f'v_add_f32 v{LS+jt}, v{LS+jt}, v{PS+jt}') for jt in range(3)]

def xreduce3(regs, tmps, op):
    fl = []
    for sw in ('v_permlane32_swap_b32', 'v_permlane16_swap_b32'):
        for r, t in zip(regs, tmps): fl.append(E(f'v_mov_b32 v{t}, v{r}'))
        for r, t in zip(regs, tmps): fl.append(E(f'{sw} v{r}, v{t}'))
        for r, t in zip(regs, tmps): fl.append(E(f'{op} v{r}, v{r}, v{t}'))
    return fl

MX = [TMP + 1, TMP + 2, TMP + 3]; MT = [TMP + 4, TMP + 5, TMP + 6]
def rowmax3(S):
    fl = []
    R = [sregs(S, jt) for jt in range(3)]
    for jt in range(3): fl.append(E(f'v_max3_f32 v{MX[jt]}, v{R[jt][0]}, v{R[jt][1]}, v{R[jt][2]}'))
    for jt in range(3): fl.append(E(f'v_max3_f32 v{MX[jt]}, v{MX[jt]}, v{R[jt][3]}, v{R[jt][4]}'))
    for jt in range(3): fl.append(E(f'v_max3_f32 v{MX[jt]}, v{MX[jt]}, v{R[jt][5]}, v{R[jt][6]}'))
    for jt in range(3): fl.append(E(f'v_max_f32 v{MX[jt]}, v{MX[jt]}, v{R[jt][7]}'))
    return fl + xreduce3(MX, MT, 'v_max_f32')

def rare_path(ctx, name, Y, X, back):
    snap = ctx.snap()
    r = Block(ctx, name + 'r')
    r.e(f'{name}_RARE:')
    r.e(f's_cmp_ge_u32 s45, {back*CH}')
    r.e(f's_cselect_b32 s47, 0, {LDS_TOT}')
    r.e(f's_sub_u32 s47, s47, {back*CH}')
    r.e(f'v_add_u32 v{TMP+7}, s47, v{VK}')
    for kt in range(2):
        for s in range(4):
            r.e(f'ds_read_b128 {q4(KR+4*s)}, v{TMP+7} offset:{kt*4096 + (s//2)*1024 + (s%2)*512}', ('rk',))
        r.e('s_waitcnt lgkmcnt(0)')
        for s in range(4):
            for jt in range(3):
                d = q4(st(Y, kt, jt))
                r.e(f'{MF} {d}, {q4(KR+4*s)}, {q4(qf(s,jt))}, {d if s else q4(NEGM+4*jt)}')
    r.e('s_nop 7')
    run(r, rowmax3(Y))
    for jt in range(3): r.e(f'v_max_f32 v{MX[jt]}, 0, v{MX[jt]}')
    for jt in range(3): r.e(f'v_exp_f32 v{MT[jt]}, -v{MX[jt]}')
    for jt in range(3):
        for q in sregs(Y, jt) + (sregs(X, jt) if X else []) + [NEGM + 4 * jt + i for i in range(4)]:
            r.e(f'v_sub_f32 v{q}, v{q}, v{MX[jt]}')
        r.e(f'v_mul_f32 v{LS+jt}, v{LS+jt}, v{MT[jt]}')
        for t in range(8):
            for i in range(4): r.e(f'v_mul_f32 v{acc(t,jt)+i}, v{acc(t,jt)+i}, v{MT[jt]}')
    run(r, sm_fillers(Y))
    r.e('s_nop 1')
    r.e(f's_branch {name}_JOIN')
    ctx.restore(snap)
    return r

def k1_att_prologue(ctx):
    b = Block(ctx, 'att_pro')
    for f in range(4): kread(b, f)
    b.e(f's_add_u32 s57, s52, {slot(7)}')
    b.e(f's_add_u32 s58, s52, {slot(8)}')
    b.e(f's_mov_b32 s59, {4*CH}')
    b.e(f's_mov_b32 s60, {3*CH}')
    b.e(f's_add_u32 s61, s52, {LDS_TOT - 2*CH}')
    b.e(f'v_mov_b32 v{TMP+11}, {hex(f2u(THR))}')
    if FUSED and WARM:
        b.e('s_lshr_b32 s55, s41, 3'); b.e('s_mul_i32 s55, s55, 1179648')
        b.e('s_and_b32 s56, s41, 3'); b.e('s_mul_i32 s62, s56, 288'); b.e('s_add_u32 s55, s55, s62')
        b.e('s_and_b32 s62, s41, 1'); b.e('s_lshl_b32 s62, s62, 5'); b.e('s_sub_u32 s55, s55, s62')
        b.e('s_lshl_b32 s56, s56, 1'); b.e('s_and_b32 s62, s41, 4'); b.e('s_add_u32 s56, s56, s62')
        b.e('s_and_b32 s62, s40, 3'); b.e('s_add_u32 s56, s56, s62'); b.e('s_and_b32 s56, s56, 7')
        b.e('s_mul_i32 s56, s56, 147456'); b.e('s_add_u32 s55, s55, s56')
        b.e('s_mul_i32 s56, s42, 18432'); b.e('s_add_u32 s55, s55, s56')
        b.e('s_add_u32 s28, s12, s55'); b.e('s_addc_u32 s29, s13, 0')
        b.e('s_sub_u32 s30, 4718592, s55'); b.e('s_mov_b32 s31, 0x20000')
    zero = [E(f'v_mov_b32 v{ACC+i}, 0') for i in range(48)]
    run(b, interleave(qk_backbone(SA, '0', nextV='K', first=True, qwait=True), zero))
    b.wait_vm(('kv', 2))
    b.e('s_barrier')
    kvpair_static(b, 6)
    if TOUCH:
        b.e(f'v_lshlrev_b32 v{TMP+7}, {12 if TOUCH == 1 else 17}, v{VL16}')
        b.e('s_mov_b32 s100, 0x20000')
        for base, size, off in ((12, 4718592, 0), (18, 0x1000000, 0), (18, 0x1000000, 0x400000), (18, 0x1000000, 0x800000), (18, 0x3000000, 0x2000000), (18, 0x3000000, 0x2400000), (18, 0x3000000, 0x2800000), (18, 0x3000000, 0x2c00000), (14, 1769472, 0)):
            b.e(f's_mov_b32 s28, s{base}'); b.e(f's_mov_b32 s29, s{base+1}'); b.e(f's_mov_b32 s30, {size}'); b.e('s_mov_b32 s31, 0x20000')
            b.e(f's_mov_b32 s56, {off}')
            b.e(f'buffer_load_dword v{TMP}, v{TMP+7}, s[28:31], s56 offen', ('touch',))
        b.e('s_waitcnt vmcnt(0)')
    run(b, rowmax3(SA))
    for jt in range(3):
        for i in range(4): b.e(f'v_sub_f32 v{NEGM+4*jt+i}, 0, v{MX[jt]}')
    sub = [E(f'v_sub_f32 v{r}, v{r}, v{MX[jt]}') for kt in range(2) for jt in range(3) for r in sregs(SA, jt)[4*kt:4*kt+4]]
    run(b, interleave(qk_backbone(SB, 'negm', nextV=True), sub + sm_fillers(SA)))
    b.e('s_mov_b32 s44, 0')
    if PRIO:
        b.e('s_cmp_ge_u32 s42, 4'); b.e('s_cbranch_scc0 NOPRIO'); b.e('s_setprio 1'); b.e('NOPRIO:')
    stamp(b, 3)
    return b

def pv_phase(ctx, name, P, S, nextK=True, head=None, dma=None, vmw=4, bar=True, extra=()):
    a = Block(ctx, name)
    if head: head(a)
    if bar:
        a.e(f's_waitcnt vmcnt({vmw})')
        a.e('s_barrier')
    fl = ladd_fillers() + (sm_fillers(S)[:SM_SPLIT] if S else []) + list(extra)
    run(a, interleave(pv_backbone(P, nextK, dma, adv=bar), fl, start=2))
    return a

def qk_phase(ctx, name, D, S, dma):
    b = Block(ctx, name)
    if not NOBARQK:
        b.e('s_waitcnt vmcnt(4)')
        b.e('s_barrier')
    run(b, interleave(qk_backbone(D, 'negm', dma=dma), sm_fillers(S)[SM_SPLIT:] + chk_fillers(), end=23))
    b.e(f's_cbranch_vccnz {name}_RARE')
    r = rare_path(ctx, name, S, D, 4)
    j = Block(ctx, name + 'j'); j.e(f'{name}_JOIN:')
    return b, r, j

EXB = 4 * CH
MLB = 20480
def k1_epilogue(ctx):
    b = Block(ctx, 'epi')
    stamp(b, 4)
    run(b, xreduce3([LS, LS + 1, LS + 2], MT, 'v_add_f32'))
    b.e('s_mul_i32 s43, s42, 12288')
    b.e('s_xor_b32 s46, s42, 4')
    b.e('s_mul_i32 s45, s46, 12288')
    b.e(f's_add_u32 s43, s43, {EXB}')
    b.e(f's_add_u32 s45, s45, {EXB}')
    b.e(f'v_add_u32 v{VK}, s43, v{VL16}')
    b.e(f'v_add_u32 v{VVE}, s45, v{VL16}')
    b.e(f'v_lshrrev_b32 v{VVO}, 1, v{VL16}')
    b.e('s_mul_i32 s43, s42, 1536')
    b.e('s_mul_i32 s45, s46, 1536')
    b.e(f's_add_u32 s43, s43, {MLB}')
    b.e(f's_add_u32 s45, s45, {MLB}')
    b.e(f'v_add_u32 v{VKV}, s43, v{VVO}')
    b.e(f'v_add_u32 v{VVO}, s45, v{VVO}')
    for jt in range(3):
        b.e(f'v_mov_b32 v{NEGM+4*jt+1}, v{LS+jt}')
    for jt in range(3):
        b.e(f'ds_write_b64 v{VKV}, {q2(NEGM+4*jt)} offset:{jt*512}', ('x',))
    b.e('s_mul_i32 s43, s53, 393216')
    b.e('s_lshl_b32 s45, s41, 12')
    b.e('s_add_u32 s43, s43, s45')
    b.e('s_lshl_b32 s45, s54, 11')
    b.e('s_add_u32 s43, s43, s45')
    b.e('s_add_u32 s45, s43, 131072')
    b.e('s_add_u32 s46, s43, 262144')
    so = ['s43', 's45', 's46']
    for r in (A, B):
        with role(b, r):
            send = range(4, 8) if r == A else range(0, 4)
            for i, t in enumerate(send):
                for jt in range(3):
                    b.e(f'ds_write_b128 v{VK}, {q4(acc(t,jt))} offset:{(3*i+jt)*1024}', ('x',))
    b.e('s_waitcnt lgkmcnt(0)')
    b.e('s_barrier')
    stamp(b, 1, True)
    RX = QF
    ML = SA
    for jt in range(3):
        b.e(f'ds_read_b64 {q2(ML+2*jt)}, v{VVO} offset:{jt*512}', ('ml',))
    for i in range(12):
        b.e(f'ds_read_b128 {q4(RX+4*i)}, v{VVE} offset:{i*1024}', ('rx', i))
    if FUSED and WOEARLY:
        with role(b, WL):
            t_issue(b); t_issue(b)
    b.wait_lgkm(('ml',))
    C = SA + 8
    for jt in range(3):
        no, lo = NEGM + 4 * jt, NEGM + 4 * jt + 1
        np_, lp = ML + 2 * jt, ML + 2 * jt + 1
        t = TMP
        b.e(f'v_min_f32 v{t}, v{no}, v{np_}')
        b.e(f'v_sub_f32 v{t+1}, v{t}, v{no}')
        b.e(f'v_sub_f32 v{t+2}, v{t}, v{np_}')
        b.e(f'v_exp_f32 v{t+1}, v{t+1}')
        b.e(f'v_exp_f32 v{t+2}, v{t+2}')
        b.e('s_nop 0')
        b.e(f'v_mul_f32 v{t+3}, v{t+1}, v{lo}')
        b.e(f'v_fmac_f32 v{t+3}, v{t+2}, v{lp}')
        b.e(f'v_rcp_f32 v{t+3}, v{t+3}')
        b.e('s_nop 0')
        b.e(f'v_mul_f32 v{C+4*jt}, v{t+1}, v{t+3}')
        b.e(f'v_mul_f32 v{C+4*jt+1}, v{t+1}, v{t+3}')
        b.e(f'v_mul_f32 v{C+4*jt+2}, v{t+2}, v{t+3}')
        b.e(f'v_mul_f32 v{C+4*jt+3}, v{t+2}, v{t+3}')
    OUT = SB
    snap = ctx.snap()
    for r in (A, B):
        with role(b, r):
            keep = range(0, 4) if r == A else range(4, 8)
            for sp in range(2):
                for jt in range(3):
                    o = OUT + 4 * (3 * sp + jt)
                    for h in range(2):
                        i = 2 * sp + h
                        a = acc(keep[i], jt); x = RX + 4 * (3 * i + jt)
                        b.wait_lgkm(('rx', 3 * i + jt))
                        b.e(f'v_pk_mul_f32 {q2(a)}, {q2(a)}, {q2(C+4*jt)}')
                        b.e(f'v_pk_mul_f32 {q2(a+2)}, {q2(a+2)}, {q2(C+4*jt)}')
                        b.e(f'v_pk_fma_f32 {q2(a)}, {q2(x)}, {q2(C+4*jt+2)}, {q2(a)}')
                        b.e(f'v_pk_fma_f32 {q2(a+2)}, {q2(x+2)}, {q2(C+4*jt+2)}, {q2(a+2)}')
                        b.e(f'v_cvt_pk_bf16_f32 v{o+2*h}, v{a}, v{a+1}')
                        b.e(f'v_cvt_pk_bf16_f32 v{o+2*h+1}, v{a+2}, v{a+3}')
                    b.e(f'buffer_store_dwordx4 {q4(o)}, v{VL16}, {srd(S_O)}, {so[jt]} offen offset:{sp*1024} {OSTPOL}', ('o',))
    if not FUSED:
        if STAMP:
            b.e('s_waitcnt vmcnt(0)')
            stamp(b, 5)
            dump_stamps(b)
        b.e('K1_END:')
        b.e('s_endpgm')
    return b

def dump_stamps(b):
    b.e('s_memrealtime s[88:89]')
    b.e('s_waitcnt lgkmcnt(0)')
    if STAMP == 2:
        b.e(f's_cmp_eq_u32 s2, {int(OPT.get("dbgwg", 0))}'); b.e('s_cbranch_scc0 DBG_SKIP')
        b.e('s_cmp_eq_u32 s42, 5'); b.e('s_cbranch_scc0 DBG_SKIP')
        b.e('s_mov_b32 s56, s16'); b.e('s_mov_b32 s57, s17'); b.e('s_mov_b32 s58, 256'); b.e('s_mov_b32 s59, 0x20000')
        b.e('v_mov_b32 v1, 0')
        for i in range(1, 11):
            b.e(f's_sub_u32 s43, s{64+2*i}, s64'); b.e('v_mov_b32 v2, s43')
            b.e(f'buffer_store_dword v2, v1, s[56:59], 0 offen offset:{4*i}')
            b.e('s_waitcnt vmcnt(0)')
        b.e('s_sub_u32 s43, s88, s86'); b.e('v_mov_b32 v2, s43')
        b.e('buffer_store_dword v2, v1, s[56:59], 0 offen offset:44')
        b.e('s_waitcnt vmcnt(0)')
        b.e('DBG_SKIP:')
        return
    b.e('s_lshl_b32 s43, s2, 3'); b.e('s_add_u32 s43, s43, s42'); b.e('s_lshl_b32 s43, s43, 7')
    b.e('s_add_u32 s43, s43, 0x1000000')
    b.e('s_add_u32 s56, s18, s43'); b.e('s_addc_u32 s57, s19, 0'); b.e('s_mov_b32 s58, 128'); b.e('s_mov_b32 s59, 0x20000')
    b.e('v_mov_b32 v1, 0')
    for i in range(13):
        b.e(f'v_mov_b32 v2, s{64+2*i}'); b.e(f'v_mov_b32 v3, s{65+2*i}')
        b.e(f'buffer_store_dwordx2 v[2:3], v1, s[56:59], 0 offen offset:{8*i}')
        b.e('s_waitcnt vmcnt(0)')

def poll(b, name, load, notyet):
    b.e('s_mov_b32 s91, 0')
    b.e(f'{name}:')
    b.e(load)
    b.e('s_add_u32 s91, s91, 1')
    b.e('s_waitcnt vmcnt(0)')
    b.e(notyet)
    b.e('s_cmp_lt_u32 s91, 0x40000')
    b.e(f's_cbranch_vccz {name}_GO')
    b.e(f's_sleep {SLEEP}')
    b.e(f's_cbranch_scc1 {name}')
    b.e(f'{name}_GO:')

WL, OL = (0, 1, 2, 3, 4), (5, 6, 7)
S_ST, S_P, S_OUT, S_PI = 20, 24, 28, 32
VD = 192; VA0, VA1, VB = 196, 197, 198; VT = 200; VX = 204
US = 32768

def tail_setup():
    P = []
    def piece(*lines): P.append(lambda b: [b.e(l) for l in lines])
    piece('s_lshr_b32 s47, s41, 3', 's_and_b32 s48, s41, 7')
    piece('s_lshr_b32 s49, s48, 2', 's_and_b32 s50, s48, 3')
    piece('s_and_b32 s51, s50, 1', 's_mul_i32 s55, s47, 1179648')
    piece('s_mul_i32 s61, s50, 288', 's_add_u32 s55, s55, s61')
    piece('s_lshl_b32 s61, s51, 5', 's_sub_u32 s55, s55, s61')
    piece('s_mul_i32 s61, s40, 1572864', 's_mul_i32 s100, s49, 786432')
    piece('s_add_u32 s61, s61, s100', 's_lshl_b32 s100, s47, 15')
    piece('s_add_u32 s61, s61, s100', 's_sub_u32 s3, 4718592, s55')
    piece('s_add_u32 s100, s12, s55', 's_addc_u32 s101, s13, 0')
    piece('s_add_u32 s62, s18, s61', 's_addc_u32 s63, s19, 0')
    piece('s_mov_b32 s58, 4096', 's_cmp_lt_u32 s42, 5',
          f's_cselect_b32 s{S_ST}, s100, s62', f's_cselect_b32 s{S_ST+1}, s101, s63',
          f's_cselect_b32 s{S_ST+2}, s3, {5*131072 + 32768}', 's_cselect_b32 s58, 147456, s58')
    piece(f's_mov_b32 s{S_ST+3}, 0x20000', 's_lshr_b32 s59, s58, 1')
    piece('s_lshl_b32 s60, s42, 12', 's_mov_b32 s62, 0')
    piece('s_mov_b32 s63, s60', f's_add_u32 s57, s60, {4*US}')
    piece('s_lshl_b32 s56, s49, 2', 's_and_b32 s61, s40, 3')
    piece('s_add_u32 s56, s56, s61', 's_lshl_b32 s61, s50, 1')
    piece('s_add_u32 s56, s56, s61')
    t = VX
    piece(f'v_lshrrev_b32 v{t}, 6, v{VL16}', f'v_mul_u32_u24 v{t}, 1152, v{t}')
    piece(f'v_bfe_u32 v{t+1}, v{VL16}, 8, 1', f'v_lshlrev_b32 v{t+1}, 1, v{t+1}')
    piece(f'v_bfe_u32 v{t+2}, v{VL16}, 4, 2', f'v_xor_b32 v{t+1}, v{t+1}, v{t+2}')
    piece(f'v_lshl_add_u32 v{t}, v{t+1}, 4, v{t}', 's_lshl_b32 s61, s42, 6')
    piece(f'v_add_u32 v{VD}, s61, v{t}', 's_sub_u32 s61, s42, 5', 's_lshl_b32 s61, s61, 18')
    for m in range(1, 4): piece(f'v_add_u32 v{VD+m}, {m*(18432-1024)}, v{VD}')
    def ofix(b):
        with role(b, OL):
            b.e(f'v_add_u32 v{VD}, s61, v{VL16}')
            b.e(f'v_mov_b32 v{VD+1}, v{VD}')
            b.e(f'v_add_u32 v{VD+2}, {131072-2048}, v{VD}')
            b.e(f'v_mov_b32 v{VD+3}, v{VD+2}')
    P.append(ofix)
    return P

def t_issue_parts():
    def head(b):
        b.e('s_lshr_b32 s55, s62, 1'); b.e('s_add_u32 s55, s55, s56'); b.e('s_and_b32 s55, s55, 7')
        b.e('s_mul_i32 s55, s55, s58')
        b.e('s_and_b32 s61, s62, 1'); b.e('s_mul_i32 s61, s61, s59'); b.e('s_add_u32 s55, s55, s61')
        b.e('s_cmp_lt_u32 s62, 16'); b.e('s_cselect_b32 s55, s55, 0x40000000')
        b.e('s_mov_b32 m0, s63')
        b.e('s_add_u32 s62, s62, 1')
    ld = [E(f'buffer_load_dwordx4 v{VD+m}, {srd(S_ST)}, s55 offen offset:{m*1024} {OLDPOL} lds', ('u',)) for m in range(4)]
    def tail(b):
        b.e('s_cmp_ge_u32 s63, s57'); b.e('s_cselect_b32 s61, s60, s63'); b.e(f's_cselect_b32 s63, 0, {US}')
        b.e('s_add_u32 s63, s63, s61')
    return [head] + ld + [tail]
def t_issue(b): run(b, t_issue_parts())

def oproj(ctx):
    FB = 64
    b = Block(ctx, 'op_pre')
    stamp(b, 2, True)
    b.e(f'v_lshrrev_b32 v{VT+3}, 4, v{VL16}')
    if FUSED:
        b.e('s_lshl_b32 s91, s42, 6')
        b.e(f'v_add_u32 v{VT}, s91, v{VT+3}')
        b.e(f'v_lshlrev_b32 v{VT}, 20, v{VT}')
        b.e(f'v_mov_b32 v{VT+1}, s97')
        b.wait_vm(('o',))
        b.e('s_barrier')
        b.e(f'buffer_store_dword v{VT+1}, v{VT}, {srd(S_F)}, s90 offen {F1POL}', ('f1',))
        stamp(b, 5)
    with role(b, WL):
        for _ in range(3 if (FUSED and WOEARLY) else 5): t_issue(b)
    b.e('s_lshr_b32 s43, s42, 2'); b.e('s_bfe_u32 s44, s42, 0x10001'); b.e('s_and_b32 s45, s42, 1')
    b.e(f'v_lshrrev_b32 v4, 4, v{VT+3}'); b.e(f'v_bfe_u32 v5, v{VT+3}, 2, 4'); b.e(f'v_and_b32 v3, 3, v{VT+3}')
    b.e('v_lshlrev_b32 v5, 6, v5'); b.e('v_lshl_add_u32 v5, v3, 3, v5')
    b.e('v_and_b32 v6, 1, v4'); b.e('v_lshlrev_b32 v6, 5, v6'); b.e('v_add_u32 v5, v5, v6')
    b.e('s_lshl_b32 s46, s43, 11')
    b.e('s_mul_i32 s52, s45, 8192'); b.e('s_add_u32 s52, s52, s46'); b.e('s_lshl_b32 s53, s45, 5')
    b.e(f'v_xor_b32 v{VA0}, s53, v5'); b.e(f'v_add_u32 v{VA0}, s52, v{VA0}')
    b.e('s_mul_i32 s52, s45, 12288'); b.e('s_add_u32 s52, s52, s46'); b.e('s_xor_b32 s53, s53, 32')
    b.e(f'v_xor_b32 v{VA1}, s53, v5'); b.e(f'v_add_u32 v{VA1}, s52, v{VA1}')
    b.e('s_mul_i32 s52, s44, 6144'); b.e('s_lshl_b32 s53, s43, 10'); b.e('s_add_u32 s52, s52, s53'); b.e('s_add_u32 s52, s52, 20480')
    b.e(f'v_add_u32 v{VB}, s52, v{VL16}')
    b.e('s_lshl_b32 s52, s40, 3'); b.e('s_add_u32 s52, s52, s48'); b.e(f's_mul_i32 s52, s52, {16*INB}')
    b.e(f's_add_u32 s52, s52, {POFF}')
    b.e(f's_mul_i32 s54, s47, {INB}'); b.e('s_add_u32 s54, s54, s52')
    b.e(f's_add_u32 s{S_P}, s18, s54'); b.e(f's_addc_u32 s{S_P+1}, s19, 0')
    b.e(f's_mov_b32 s{S_P+2}, {13*INB}'); b.e(f's_mov_b32 s{S_P+3}, 0x20000')
    b.e(f's_mul_i32 s54, s47, {4*INB}'); b.e('s_add_u32 s54, s54, s52')
    b.e(f's_add_u32 s{S_PI}, s18, s54'); b.e(f's_addc_u32 s{S_PI+1}, s19, 0')
    b.e(f's_mov_b32 s{S_PI+2}, {4*INB}'); b.e(f's_mov_b32 s{S_PI+3}, 0x20000')
    b.e('s_mul_i32 s52, s40, 192'); b.e('s_mul_i32 s54, s49, 96'); b.e('s_add_u32 s52, s52, s54')
    b.e('s_lshl_b32 s54, s47, 2'); b.e('s_add_u32 s52, s52, s54'); b.e('s_mul_i32 s52, s52, 1152')
    b.e('s_mul_i32 s54, s50, 288'); b.e('s_add_u32 s52, s52, s54')
    b.e(f's_add_u32 s{S_OUT}, s14, s52'); b.e(f's_addc_u32 s{S_OUT+1}, s15, 0')
    b.e(f's_sub_u32 s{S_OUT+2}, 1769472, s52'); b.e(f's_mov_b32 s{S_OUT+3}, 0x20000')
    b.e(f'v_bfe_u32 v6, v{VT+3}, 2, 2'); b.e(f'v_mul_u32_u24 v6, {4*INB}, v6')
    b.e('v_lshl_add_u32 v6, v4, 6, v6'); b.e(f'v_lshl_add_u32 v{VT+2}, v3, 4, v6')
    b.e('s_mul_i32 s52, s44, 27'); b.e('s_mul_i32 s53, s45, 5'); b.e('s_add_u32 s52, s52, s53'); b.e('s_sub_u32 s52, s52, s51')
    b.e('s_lshl_b32 s36, s52, 8')
    b.e('s_cmp_lt_u32 s45, s51'); b.e('s_cselect_b32 s37, 1, 0')
    b.e('s_cmp_gt_u32 s45, s51'); b.e('s_cselect_b32 s38, 1, 0')
    for i in range(60): b.e(f'v_mov_b32 v{i}, 0')
    with role(b, OL):
        if FUSED:
            b.e(f'v_and_b32 v{VT}, 7, v{VT+3}'); b.e(f'v_lshlrev_b32 v{VT}, 7, v{VT}')
            b.e('s_and_b32 s52, s90, 0xfffffc00')
            b.e('s_and_b32 s99, s97, 0x7fffffff')
            poll(b, 'OP_P1', f'buffer_load_dword v{VT+1}, v{VT}, {srd(S_F)}, s52 offen sc1', f'v_and_b32 v{VT+1}, 0x7fffffff, v{VT+1}\nv_cmp_ne_u32 vcc, s99, v{VT+1}')
        stamp(b, 3, True)
        for _ in range(5): t_issue(b)
    stamp(b, 6)
    def fA(U, n): return FB + 32 * (U % 2) + 4 * n
    def fB(U, j): return FB + 32 * (U % 2) + 20 + 4 * j
    def rd(U):
        r = [E(f'ds_read_b128 {q4(fB(U,j))}, v{VB} offset:{2*j*1024}', ('f',)) for j in range(3)]
        for n in range(5):
            r += [E(f'ds_read_b64_tr_b16 {q2(fA(U,n)+2*u)}, v{VA1 if n % 2 else VA0} offset:{(n//2)*4096 + u*1024}', ('f',)) for u in range(2)]
        return r
    def adv(b):
        b.e(f's_cmp_ge_u32 s46, {4*US}'); b.e(f's_cselect_b32 s52, s54, s53'); b.e('s_add_u32 s46, s46, s52')
        for V in (VA0, VA1, VB): b.e(f'v_add_u32 v{V}, s52, v{V}')
    b.e('s_mov_b32 s46, 0'); b.e(f's_mov_b32 s53, {US}'); b.e(f's_mov_b32 s54, {(-4*US) & 0xffffffff}')
    b.e('s_mov_b32 s39, 0')
    b.e('s_waitcnt vmcnt(16)')
    b.e('s_barrier')
    run(b, rd(0))
    adv(b)
    lp = Block(ctx, 'op_loop')
    lp.e('OP_LOOP:')
    TX = OPT.get('tx', '')
    for U in range(2):
        lp.e('s_waitcnt vmcnt(12) lgkmcnt(0)')
        lp.e('s_barrier')
        mm = [E(f'{MF} {q4(12*n+4*j)}, {q4(fA(U,n))}, {q4(fB(U,j))}, {q4(12*n+4*j)}') for n in range(5) for j in range(3)]
        r = rd(U + 1) + [adv]
        parts = t_issue_parts() if TX != 'none' else []
        fill = []
        if STAG and parts:
            def site(R):
                def f(b):
                    with role(b, R): t_issue(b)
                return f
            fill = r[:1] + [site(A)] + r[1:8] + [site(B)] + r[8:]
        else:
            for k in range(max(len(r), 2 * len(parts))):
                if k < len(r): fill.append(r[k])
                if k % 2 == 1 and k // 2 < len(parts): fill.append(parts[k // 2])
        run(lp, interleave(mm, fill, end=14))
    lp.e('s_add_u32 s39, s39, 1'); lp.e('s_cmp_lt_u32 s39, 8'); lp.e('s_cbranch_scc1 OP_LOOP')
    e = Block(ctx, 'op_end')
    stamp(e, 7)
    e.e('s_lshl_b32 s52, s42, 13'); e.e('s_xor_b32 s53, s52, 32768')
    e.e(f'v_add_u32 v{VA0}, s52, v{VL16}'); e.e(f'v_add_u32 v{VA1}, s53, v{VL16}')
    e.e('s_waitcnt vmcnt(0) lgkmcnt(0)')
    e.e('s_barrier')
    keepA, keepB = list(range(8)), list(range(8, 15))
    for r_, send in ((A, keepB), (B, keepA)):
        with role(e, r_):
            for k, t in enumerate(send): e.e(f'ds_write_b128 v{VA0}, {q4(4*t)} offset:{k*1024}', ('x',))
    for j in range(3): e.e(f's_add_u32 s{43+j}, s36, {j*2304}')
    e.e('s_waitcnt lgkmcnt(0)')
    e.e('s_barrier')
    for r_, keep in ((A, keepA), (B, keepB)):
        with role(e, r_):
            for k, t in enumerate(keep): e.e(f'ds_read_b128 {q4(FB+4*k)}, v{VA1} offset:{k*1024}', ('y', k))
            for k, t in enumerate(keep):
                n, j = t // 3, t % 3
                e.wait_lgkm(('y', k))
                e.e(f'v_pk_add_f32 {q2(4*t)}, {q2(4*t)}, {q2(FB+4*k)}')
                e.e(f'v_pk_add_f32 {q2(4*t+2)}, {q2(4*t+2)}, {q2(FB+4*k+2)}')
                if n in (0, 4):
                    role.n += 1; l = f'SK{role.n}'
                    e.e(f's_cmp_eq_u32 s{37 if n == 0 else 38}, 1'); e.e(f's_cbranch_scc1 {l}')
                    e.e(f's_add_u32 s52, s{43+j}, {n*256}')
                    e.e(f'buffer_store_dwordx4 {q4(4*t)}, v{VT+2}, {srd(S_P)}, s52 offen sc1', ('p',))
                    e.e(f'{l}:')
                else:
                    e.e(f's_add_u32 s52, s{43+j}, {n*256}')
                    e.e(f'buffer_store_dwordx4 {q4(4*t)}, v{VT+2}, {srd(S_P)}, s52 offen sc1', ('p',))
    X = 100
    e.e('s_lshl_b32 s52, s42, 6')
    e.e(f'v_add_u32 v{X}, s52, v{VT+3}')
    e.e(f'v_lshlrev_b32 v{VT}, 20, v{X}')
    e.e(f'v_add_u32 v{X+1}, 512, v{X}')
    for k in range(2):
        x = X + k
        e.e(f'v_lshrrev_b32 v{X+4}, 4, v{x}')
        e.e(f'v_mul_u32_u24 v{X+5}, 57, v{X+4}'); e.e(f'v_lshrrev_b32 v{X+5}, 9, v{X+5}')
        e.e(f'v_mul_u32_u24 v{X+6}, 9, v{X+5}'); e.e(f'v_sub_u32 v{X+6}, v{X+4}, v{X+6}')
        e.e(f'v_and_b32 v{X+7}, 3, v{x}'); e.e(f'v_lshl_add_u32 v{X+7}, v{X+5}, 4, v{X+7}'); e.e(f'v_mul_u32_u24 v{X+7}, 1152, v{X+7}')
        e.e(f'v_lshl_add_u32 v{X+7}, v{X+6}, 5, v{X+7}')
        e.e(f'v_bfe_u32 v{X+6}, v{x}, 2, 2'); e.e(f'v_lshl_add_u32 v{X+2+k}, v{X+6}, 3, v{X+7}')
        e.e(f'v_lshlrev_b32 v{x}, 4, v{x}')
    e.e(f'v_cmp_gt_u32 vcc, 13824, v{X+1}')
    e.e(f'v_mov_b32 v{X+4}, 0x40000000')
    e.e('s_nop 0')
    e.e(f'v_cndmask_b32 v{X+1}, v{X+4}, v{X+1}, vcc'); e.e(f'v_cndmask_b32 v{X+3}, v{X+4}, v{X+3}, vcc')
    e.e('s_and_b32 s50, s90, 0xfffff380')
    e.e(f'v_and_b32 v{X+4}, 3, v{VT+3}'); e.e(f'v_lshlrev_b32 v{X+4}, 10, v{X+4}')
    e.e(f'v_mov_b32 v{VT+1}, s98')
    e.e('s_waitcnt vmcnt(0)')
    e.e('s_barrier')
    e.e(f'buffer_store_dword v{VT+1}, v{VT}, {srd(S_F)}, s90 offen sc1', ('f2',))
    stamp(e, 8)
    poll(e, 'OP_P2', f'buffer_load_dword v{X+5}, v{X+4}, {srd(S_F)}, s50 offen sc1', f'v_cmp_ne_u32 vcc, s98, v{X+5}')
    stamp(e, 9)
    e.e(f's_mov_b32 s48, {INB}'); e.e(f's_mov_b32 s49, {2*INB}'); e.e(f's_mov_b32 s50, {3*INB}')
    so = ['0', 's48', 's49', 's50']
    R0 = 112
    for k in range(2):
        for src in range(4):
            e.e(f'buffer_load_dwordx4 {q4(R0+16*k+4*src)}, v{X+k}, {srd(S_PI)}, {so[src]} offen sc1', ('in', k))
    e.e(f'v_mov_b32 v{VT+1}, s97')
    e.e(f'buffer_store_dword v{VT+1}, v{VT}, {srd(S_F)}, s96 offen sc1', ('ep',))
    for k in range(2):
        e.wait_vm(('in', k))
        r = R0 + 16 * k
        e.e(f'v_pk_add_f32 {q2(r)}, {q2(r)}, {q2(r+4)}'); e.e(f'v_pk_add_f32 {q2(r+2)}, {q2(r+2)}, {q2(r+6)}')
        e.e(f'v_pk_add_f32 {q2(r+8)}, {q2(r+8)}, {q2(r+12)}'); e.e(f'v_pk_add_f32 {q2(r+10)}, {q2(r+10)}, {q2(r+14)}')
        e.e(f'v_pk_add_f32 {q2(r)}, {q2(r)}, {q2(r+8)}'); e.e(f'v_pk_add_f32 {q2(r+2)}, {q2(r+2)}, {q2(r+10)}')
        e.e(f'v_cvt_pk_bf16_f32 v{r}, v{r}, v{r+1}'); e.e(f'v_cvt_pk_bf16_f32 v{r+1}, v{r+2}, v{r+3}')
        e.e(f'buffer_store_dwordx2 {q2(r)}, v{X+2+k}, {srd(S_OUT)}, 0 offen')
    if STAMP:
        stamp(e, 10)
        dump_stamps(e)
    e.e('K1_END:' if FUSED else 'K2_END:')
    e.e('s_endpgm')
    return b, lp, e

def kernel1():
    ctx = MCtx(8)
    pro = k1_prologue(ctx)
    qp = k1_qproj(ctx)
    ap = k1_att_prologue(ctx)
    p1 = pv_phase(ctx, 'P1', SA, SB, head=lambda a: a.e('K1_LOOP:'), dma=guarded(dma_v, 0))
    p2 = qk_phase(ctx, 'P2', SA, SB, dma_k)
    p3 = pv_phase(ctx, 'P3', SB, SA, dma=dma_v)
    p4 = qk_phase(ctx, 'P4', SB, SA, dma_k)
    p4[2].e('s_add_u32 s44, s44, 1')
    p4[2].e('s_cmp_lt_u32 s44, 7')
    p4[2].e('s_cbranch_scc1 K1_LOOP')
    def warm(b):
        b.e(f'v_lshrrev_b32 v{KR}, 6, v{VL16}'); b.e(f'v_mul_u32_u24 v{KR}, 1152, v{KR}')
        b.e(f'v_and_b32 v{KR+1}, 48, v{VL16}'); b.e(f'v_lshlrev_b32 v{KR+1}, 3, v{KR+1}'); b.e(f'v_min_u32 v{KR+1}, 316, v{KR+1}')
        b.e(f'v_add_u32 v{KR}, v{KR}, v{KR+1}')
        b.e(f'buffer_load_dword v{KR+1}, v{KR}, s[28:31], 0 offen', ('warm',))
    l1 = pv_phase(ctx, 'L1', SA, SB, nextK=False, dma=warm if (FUSED and WARM) else None)
    l2 = Block(ctx, 'L2')
    l2.e('s_waitcnt vmcnt(0)')
    l2.e('s_barrier')
    for t in range(4): vread(l2, t)
    run(l2, sm_fillers(SB)[SM_SPLIT:] + chk_fillers())
    l2.e('s_cbranch_vccnz L2_RARE')
    l2r = rare_path(ctx, 'L2', SB, None, 2)
    l3 = pv_phase(ctx, 'L3', SB, None, nextK=False, bar=False, head=lambda a: a.e('L2_JOIN:'), extra=tail_setup() if FUSED else ())
    l3.e('s_nop 7')
    ep = k1_epilogue(ctx)
    errs = []
    body = [p1, p2[0], p2[2], p3, p4[0], p4[2]]
    bodyr = [p1, p2[0], p2[1], p2[2], p3, p4[0], p4[1], p4[2]]
    last = [l1, l2, l3, ep]
    lastr = [l1, l2, l2r, l3, ep]
    tail = list(oproj(ctx)) if FUSED else []
    ttr = [tail[0], tail[1], tail[1], tail[2]] if FUSED else []
    for r in ALLW:
        errs += check_trace([pro, qp, ap] + body + body + last + ttr, f'main{r}', r)
        errs += check_trace([pro, qp, ap] + bodyr + bodyr + body + lastr, f'rare{r}', r)
    if NOCOMP:
        for blk in body:
            keep = [i for i in blk if i.kind not in ('mfma', 'valu', 'trans') and not (NOCOMP > 1 and i.kind == 'ds') and 'vccnz' not in i.text]
            blk[:] = keep
        errs = []
    DROP = OPT.get('drop', '')
    if DROP:
        D = DROP.split(',')
        def dropit(i):
            t = i.text
            if 'vccnz' in t: return True
            if 'exp' in D and t.startswith('v_exp'): return True
            if 'add' in D and t.startswith('v_add_f32'): return True
            if 'cvt' in D and t.startswith('v_cvt'): return True
            if 'ds' in D and i.kind == 'ds': return True
            if 'wait' in D and i.kind == 'wait': return True
            if 'bar' in D and i.kind == 'barrier': return True
            if 'adv' in D and (t.startswith('v_add_u32') or t.startswith('s_cmp_ge') or t.startswith('s_cselect') or t.startswith('s_add_u32 s45') or t.startswith('s_add_u32 s46')): return True
            if 'mfma' in D and i.kind == 'mfma': return True
            return False
        for blk in body: blk[:] = [i for i in blk if not dropit(i)]
        errs = []
    order = [pro, qp, ap] + body + last + tail + [p2[1], p4[1], l2r]
    return order, errs

def kernel2():
    ctx = MCtx(8)
    b = Block(ctx, 'k2')
    b.e('s_cmp_ge_u32 s2, 256')
    b.e('s_cbranch_scc1 K2_END')
    b.e('s_load_dwordx8 s[12:19], s[0:1], 32')
    if STAMP:
        for i in range(6): b.e(f's_memtime s[{64+2*i}:{65+2*i}]')
        b.e('s_memrealtime s[86:87]')
    b.e('v_lshrrev_b32 v1, 6, v0')
    b.e('v_and_b32 v0, 63, v0')
    b.e('v_readfirstlane_b32 s42, v1')
    b.e('s_and_b32 s43, s2, 7'); b.e('s_lshr_b32 s44, s2, 3')
    b.e('s_and_b32 s40, s43, 1'); b.e('s_lshl_b32 s40, s40, 2'); b.e('s_and_b32 s45, s44, 3'); b.e('s_add_u32 s40, s40, s45')
    b.e('s_lshr_b32 s41, s43, 1'); b.e('s_lshl_b32 s41, s41, 3'); b.e('s_lshr_b32 s46, s44, 2'); b.e('s_add_u32 s41, s41, s46')
    b.e(f'v_lshlrev_b32 v{VL16}, 4, v0')
    b.e('s_waitcnt lgkmcnt(0)')
    flag_srd(b)
    epoch_load(b, 222)
    b.e('s_waitcnt vmcnt(0)')
    epoch_tags(b, 222)
    run(b, tail_setup())
    t = oproj(ctx)
    errs = []
    for r in ALLW: errs += check_trace([b, t[0], t[1], t[1], t[2]], f'k2_{r}', r)
    return [b] + list(t), errs

HEADER = open('standalone__mha_block_cached__near_ridge.s.ref').read().split('; Override')[0]

def kd(name, vgpr, sgpr=96):
    return f'''.amdhsa_kernel {name}
  .amdhsa_next_free_vgpr {vgpr}
  .amdhsa_next_free_sgpr {sgpr}
  .amdhsa_accum_offset {(vgpr+3)//4*4}
  .amdhsa_group_segment_fixed_size 0
  .amdhsa_kernarg_size 64
  .amdhsa_user_sgpr_count 2
  .amdhsa_user_sgpr_kernarg_segment_ptr 1
  .amdhsa_system_sgpr_workgroup_id_x 1
.end_amdhsa_kernel
'''

def main():
    k1, e1 = kernel1()
    k2, e2 = kernel2() if not FUSED else ([], [])
    for e in list(dict.fromkeys(x.split('] ', 1)[1] for x in e1 + e2))[:12]: print('CHECK', e, file=sys.stderr)
    out = HEADER
    if FUSED:
        N = 'standalone__mha_block_cached__near_ridge_kernel'
        out += f'; @launch grid=(256,1,1) block=(512,1,1) lds={LDS_TOT}\n'
        ks = [(N, k1)]
    else:
        out += f'; @launch kernel=mha_attn_kernel grid=(256,1,1) block=(512,1,1) lds={LDS_TOT}\n'
        out += f'; @launch kernel=mha_oproj_kernel grid=(256,1,1) block=(512,1,1) lds={LDS_TOT}\n'
        ks = [('mha_attn_kernel', k1), ('mha_oproj_kernel', k2)]
    out += '.amdgcn_target "amdgcn-amd-amdhsa--gfx950"\n.text\n'
    for name, blocks in ks:
        out += f'.globl {name}\n.p2align 8\n.type {name},@function\n{name}:\n'
        out += '\n'.join(b.text() for b in blocks) + '\n'
    out += '.section .rodata,"a"\n'
    for name, _ in ks: out += '.p2align 6\n' + kd(name, 256, 102)
    open(sys.argv[1], 'w').write(out)
    if e1 or e2: sys.exit(1)
main()
```

```python
import sys, struct, math
from asmlib import *

OPT = dict(a.split('=') for a in sys.argv[2:] if '=' in a)
STAMP = int(OPT.get('stamp', 0))
KVPOL = OPT.get('kvpol', 'nt')
XPOL = OPT.get('xpol', '')
WPOL = OPT.get('wpol', '')
OSTPOL = OPT.get('ostpol', 'sc1' if OPT.get('fused', '1') == '1' else '')
OLDPOL = OPT.get('oldpol', '')
WOPOL = OPT.get('wopol', '')
THR = float(OPT.get('thr', 2048.0))
NOBARQK = int(OPT.get('nobarqk', 0))
SKIPT = int(OPT.get('skipt', 0))
STAG = int(OPT.get('stag', 0))
ROT = int(OPT.get('rot', 1))
ROT2 = int(OPT.get('rot2', 1))
SM_SPLIT = int(OPT.get('split', 30))
CHK_AT = int(OPT.get('chk', 8))
PRIO = int(OPT.get('prio', 0))
K2D = int(OPT.get('k2d', 4))
NODMA = int(OPT.get('nodma', 0))
NOCOMP = int(OPT.get('nocomp', 0))
NOKVQ = int(OPT.get('nokvq', 0))
FUSED = int(OPT.get('fused', 1))
OLD2 = OPT.get('old2', 'sc1')
SLEEP = int(OPT.get('sleep', 1))
F1POL = OPT.get('f1pol', 'sc1')
WOPRE = int(OPT.get('wopre', 5))
TOUCH = int(OPT.get('touch', 0))
WOEARLY = int(OPT.get('woearly', 0))
WARM = int(OPT.get('warm', 1))
FAST = int(OPT.get('fast', 1))
PAIRW = int(OPT.get('pairw', 1))
KVREG = int(OPT.get('kvreg', 0))
KV1 = int(OPT.get('kv1', 1))
NOX = int(OPT.get('nox', 0))
NOWQ = int(OPT.get('nowq', 0))
MAP = OPT.get('map', '4x8')
KVSCHED = [int(x) for x in OPT.get('kvs', '0,2,3,5,6,8,9,11,12,14').split(',') if x]

def f2u(f): return struct.unpack('<I', struct.pack('<f', f))[0]
SCALE = math.log2(math.e) / math.sqrt(128.0)
MF = 'v_mfma_f32_16x16x32_bf16'
def q4(n): return f'v[{n}:{n+3}]'
def q2(n): return f'v[{n}:{n+1}]'

ACC = 0; QF = 96; SA = 144; SB = 168; KR = 192; VR = 208; NEGM = 224
TMP = 236; VK = 248; VVE = 249; VVO = 250; LS = 251; VL16 = 254; VKV = 255
RING = 10; CH = 16384; LDS_TOT = RING * CH
QB = 114688
SLOT = 40960
S_K, S_V, S_X, S_WQ, S_O = 20, 24, 28, 32, 36
FS = 96
VXD = 208; VWD = 211; VXR = 213; VAE = 215; VAO = 217; VQE = 219; VQO = 220; VQR = 221; VKW = 244
def srd(n): return f's[{n}:{n+3}]'
def acc(t, jt): return ACC + 12 * t + 4 * jt
def qf(s, jt): return QF + 12 * s + 4 * jt
def st(S, kt, jt): return S + 12 * kt + 4 * jt
ALLW = list(range(8))
A, B = (0, 1, 2, 3), (4, 5, 6, 7)

TST = int(OPT.get('tst', 0))
def stamp(b, idx, fine=False, it=False):
    if TST == 2:
        if it or idx in (0, 4): b.e(f's_memtime s[{64+2*idx}:{65+2*idx}]')
        return
    if it: return
    if TST and idx in (1, 2, 3) and not fine: return
    if fine and not TST: return
    if STAMP: b.e(f's_memtime s[{64+2*idx}:{65+2*idx}]')

class role:
    n = 0
    def __init__(self, b, waves): self.b, self.w = b, list(waves)
    def __enter__(self):
        role.n += 1; self.l = f'RL{role.n}'
        self.b.e(f's_bitcmp1_b32 {sum(1 << w for w in self.w)}, s42')
        self.b.e(f's_cbranch_scc0 {self.l}')
        self.b.ctx.active = self.w
    def __exit__(self, *a):
        self.b.ctx.active = ALLW
        self.b.e(f'{self.l}:')

def E(text, tag=None): return lambda b: b.e(text, tag)
def run(b, lst):
    for f in lst: f(b)

def chunk_of(n):
    if n == 0: return ('K', 0)
    if n % 2 == 1: return ('K', (n + 1) // 2)
    return ('V', (n - 2) // 2)

def k1_prologue(ctx):
    b = Block(ctx, 'k1_pro')
    b.e('s_cmp_ge_u32 s2, 256')
    b.e('s_cbranch_scc1 K1_END')
    b.e('s_load_dwordx8 s[4:11], s[0:1], 0')
    b.e('s_load_dwordx8 s[12:19], s[0:1], 32')
    if STAMP:
        b.e('s_memtime s[64:65]')
        b.e('s_memrealtime s[86:87]')
    b.e('v_lshrrev_b32 v1, 6, v0')
    b.e('v_and_b32 v0, 63, v0')
    b.e('v_readfirstlane_b32 s42, v1')
    b.e('s_and_b32 s43, s2, 7')
    b.e('s_lshr_b32 s44, s2, 3')
    nb = int(MAP.split('x')[0]); lb = nb.bit_length() - 1
    nh = 32 // nb; xb = 8 // nb
    b.e(f's_and_b32 s40, s43, {xb - 1}')
    b.e(f's_lshl_b32 s40, s40, {lb}')
    b.e(f's_and_b32 s45, s44, {nb - 1}')
    b.e('s_add_u32 s40, s40, s45')
    b.e(f's_lshr_b32 s41, s43, {xb.bit_length() - 1}')
    b.e(f's_lshl_b32 s41, s41, {nh.bit_length() - 1}')
    b.e(f's_lshr_b32 s46, s44, {lb}')
    b.e('s_add_u32 s41, s41, s46')
    m = max(nb, nh)
    b.e(f's_mul_i32 s45, s45, {32 // nb}')
    b.e(f's_mul_i32 s46, s46, {32 // nh}')
    b.e('s_add_u32 s45, s45, s46')
    b.e('s_and_b32 s45, s45, 31')
    b.e('s_mul_i32 s45, s45, 9')
    b.e('s_lshr_b32 s45, s45, 5')
    if ROT == 0: b.e('s_mov_b32 s45, 0')
    if ROT == 2: b.e('s_cmp_ge_u32 s45, 5'); b.e('s_cselect_b32 s45, 5, 0')
    if ROT == 3: b.e('s_mul_i32 s45, s45, 22'); b.e('s_lshr_b32 s45, s45, 6'); b.e('s_mul_i32 s45, s45, 3')
    b.e('s_lshl_b32 s57, s45, 7')
    b.e('s_lshl_b32 s58, s45, 19')
    b.e('s_lshl_b32 s45, s40, 5')
    b.e('s_add_u32 s45, s45, s41')
    b.e('s_lshl_b32 s45, s45, 18')
    b.e('s_mul_i32 s46, s40, 221184')
    b.e('s_lshl_b32 s47, s41, 8')
    b.e('s_mul_i32 s48, s40, 1572864')
    b.e('s_and_b32 s53, s42, 3')
    b.e('s_lshr_b32 s54, s42, 2')
    b.e('v_bfe_u32 v4, v0, 2, 3')
    b.e('v_lshrrev_b32 v5, 5, v0')
    b.e('v_and_b32 v3, 3, v0')
    b.e('v_lshrrev_b32 v7, 2, v4')
    b.e('v_lshlrev_b32 v8, 1, v7')
    b.e('v_xor_b32 v6, v3, v8')
    b.e('v_lshlrev_b32 v6, 4, v6')
    b.e('v_lshl_add_u32 v6, v5, 6, v6')
    b.e('s_lshr_b32 s43, s53, 1')
    b.e('s_and_b32 s44, s42, 1')
    b.e('v_and_b32 v9, 3, v4')
    b.e('v_lshl_add_u32 v9, v7, 3, v9')
    b.e('s_lshl_b32 s55, s43, 4')
    b.e('s_lshl_b32 s62, s54, 2')
    b.e('s_add_u32 s55, s55, s62')
    b.e('v_add_u32 v9, s55, v9')
    b.e('v_lshl_add_u32 v9, v9, 13, v6')
    b.e('s_lshl_b32 s55, s44, 7')
    b.e(f'v_add_u32 v{VWD}, s55, v9')
    b.e(f'v_add_u32 v{VWD+1}, {32*8192-1024}, v{VWD}')
    b.e('s_lshl_b32 s60, s42, 11')
    b.e('s_mul_i32 s63, s42, 3')
    for i in range(3):
        b.e(f's_add_u32 s62, s63, {i}')
        b.e('s_and_b32 s56, s62, 1')
        b.e('s_lshl_b32 s56, s56, 3')
        b.e('s_add_u32 s56, s56, 12')
        b.e('s_lshr_b32 s62, s62, 1')
        b.e('s_lshl_b32 s62, s62, 4')
        b.e('v_add_u32 v9, s56, v4')
        b.e('v_and_b32 v9, 15, v9')
        b.e('v_add_u32 v9, s62, v9')
        b.e('v_mul_u32_u24 v9, 1152, v9')
        b.e('v_add_u32 v9, v9, v6')
        if i: b.e(f'v_subrev_u32 v{VXD+i}, {i*1024}, v9')
        else: b.e(f'v_mov_b32 v{VXD}, v9')
    b.e('s_lshl_b32 s59, s63, 10')
    b.e('s_add_u32 s59, s59, 16384')
    b.e('s_waitcnt lgkmcnt(0)')
    b.e(f's_add_u32 s{S_X}, s4, s46');  b.e(f's_addc_u32 s{S_X+1}, s5, 0')
    b.e(f's_mov_b32 s{S_X+2}, 221184'); b.e(f's_mov_b32 s{S_X+3}, 0x20000')
    b.e(f's_add_u32 s{S_WQ}, s10, s47'); b.e(f's_addc_u32 s{S_WQ+1}, s11, 0')
    b.e(f's_sub_u32 s{S_WQ+2}, 4718592, s47'); b.e(f's_mov_b32 s{S_WQ+3}, 0x20000')
    b.e(f's_add_u32 s{S_K}, s6, s45');  b.e(f's_addc_u32 s{S_K+1}, s7, 0')
    b.e(f's_mov_b32 s{S_K+2}, 262144'); b.e(f's_mov_b32 s{S_K+3}, 0x20000')
    b.e(f's_add_u32 s{S_V}, s8, s45');  b.e(f's_addc_u32 s{S_V+1}, s9, 0')
    b.e(f's_mov_b32 s{S_V+2}, 262144'); b.e(f's_mov_b32 s{S_V+3}, 0x20000')
    b.e(f's_add_u32 s{S_O}, s18, s48'); b.e(f's_addc_u32 s{S_O+1}, s19, 0')
    b.e(f's_mov_b32 s{S_O+2}, 1572864'); b.e(f's_mov_b32 s{S_O+3}, 0x20000')
    return b

RC = 1
def slot(n): return ((n + RC) % RING) * CH

def qslot(D): return ((D + 3) % 4) * SLOT

def qdma(b, D):
    b.e(f's_add_u32 m0, s60, {qslot(D)}')
    b.e('s_add_u32 s61, s57, 128')
    for h in range(0 if NOWQ else 2):
        b.e(f'buffer_load_dwordx4 v{VWD+h}, {srd(S_WQ)}, s58 offen offset:{h*1024} {WPOL} lds', ('q', D))
    b.e(f's_add_u32 m0, s59, {qslot(D)}')
    b.e('s_add_u32 s58, s58, 524288')
    for i in range(0 if NOX else 3):
        b.e(f'buffer_load_dwordx4 v{VXD+i}, {srd(S_X)}, s57 offen offset:{i*1024} {XPOL} lds', ('q', D))
    b.e('s_cmp_eq_u32 s61, 1152')
    b.e('s_cselect_b32 s57, 0, s61')
    b.e('s_cselect_b32 s58, 0, s58')

def kvpair_static(b, n):
    c = chunk_of(n)
    S = S_K if c[0] == 'K' else S_V
    b.e(f's_add_u32 m0, s52, {slot(n)}')
    b.e(f's_mov_b32 s56, {c[1] * CH}')
    b.e(f'buffer_load_dwordx4 v{VKV}, {srd(S)}, s56 offen {KVPOL} lds', ('kv', n))
    b.e(f'buffer_load_dwordx4 v{VKV}, {srd(S)}, s56 offen offset:2048 {KVPOL} lds', ('kv', n))

POFF = 0x2000000; FOFF = 0x3000000; INB = 9216
S_F = 92
def flag_srd(b):
    b.e(f's_add_u32 s{S_F}, s18, {FOFF}'); b.e(f's_addc_u32 s{S_F+1}, s19, 0')
    b.e(f's_mov_b32 s{S_F+2}, {32768+1024}'); b.e(f's_mov_b32 s{S_F+3}, 0x20000')
    b.e('s_lshl_b32 s90, s40, 5'); b.e('s_add_u32 s90, s90, s41'); b.e('s_lshl_b32 s90, s90, 7')
    b.e('s_lshl_b32 s96, s40, 7'); b.e('s_add_u32 s96, s96, 32768')

def epoch_load(b, v):
    b.e(f'v_mov_b32 v{v}, 0')
    b.e(f'buffer_load_dword v{v+1}, v{v}, {srd(S_F)}, s96 offen sc1', ('ep',))

def epoch_tags(b, v):
    b.e(f'v_readfirstlane_b32 s97, v{v+1}')
    b.e('s_nop 0')
    b.e('s_mul_i32 s97, s97, 0x9e3779b1')
    b.e('s_add_u32 s97, s97, 0x7f4a7c15')
    b.e('s_xor_b32 s98, s97, 0x80000000')

def one_lane(b, v):
    b.e(f's_lshl_b32 s91, s42, 6')
    b.e(f'v_add_u32 v{v}, s91, v0')
    b.e(f'v_lshlrev_b32 v{v}, 20, v{v}')

def kvreg_of(n): return 48 + 8 * n if n < 6 else 224 + 8 * (n - 6)
def kv_to_regs(b, n):
    c = chunk_of(n)
    S = S_K if c[0] == 'K' else S_V
    r = kvreg_of(n)
    b.e(f's_mov_b32 s56, {c[1] * CH}')
    b.e(f'buffer_load_dwordx4 {q4(r)}, v{VKV}, {srd(S)}, s56 offen {KVPOL}', ('kv', n))
    b.e(f'buffer_load_dwordx4 {q4(r+4)}, v{VKV}, {srd(S)}, s56 offen offset:2048 {KVPOL}', ('kv', n))
def kv_to_lds(n):
    r = kvreg_of(n)
    o = slot(n) % 65536
    v = VKW + slot(n) // 65536
    return [lambda b: (b.wait_vm(('kv', n)), b.e(f'ds_write_b128 v{v}, {q4(r)} offset:{o}', ('kw',))),
            E(f'ds_write_b128 v{v}, {q4(r+4)} offset:{o+2048}', ('kw',))]

def k1_qproj(ctx):
    b = Block(ctx, 'qproj')
    flag_srd(b)
    if FUSED: epoch_load(b, 222)
    qdma(b, 0)
    b.e('v_lshl_add_u32 v9, v4, 8, v6')
    b.e('s_lshl_b32 s46, s43, 12')
    b.e('s_lshl_b32 s47, s54, 13')
    b.e('s_add_u32 s46, s46, s47')
    b.e('s_add_u32 s45, s55, s46')
    b.e(f'v_add_u32 v{VKV}, s45, v9')
    b.e('s_lshl_b32 s47, s44, 10')
    b.e('s_add_u32 s52, s46, s47')
    qdma(b, 1)
    b.e('v_lshrrev_b32 v10, 4, v0')
    b.e('v_and_b32 v6, 15, v0')
    b.e('v_lshrrev_b32 v7, 2, v6')
    b.e('v_and_b32 v8, 1, v10')
    b.e('v_lshl_add_u32 v5, v8, 2, v7')
    b.e('v_lshlrev_b32 v5, 6, v5')
    b.e('v_lshl_add_u32 v5, v8, 5, v5')
    b.e('v_lshl_add_u32 v5, v3, 3, v5')
    b.e('v_lshrrev_b32 v9, 1, v10')
    b.e('v_lshl_add_u32 v5, v9, 12, v5')
    b.e('s_lshl_b32 s45, s54, 11')
    b.e(f'v_add_u32 v{VAE}, s45, v5')
    b.e(f'v_add_u32 v{VAE+1}, {2*SLOT}, v{VAE}')
    b.e(f'v_xor_b32 v{VAO}, 32, v{VAE}')
    b.e(f'v_xor_b32 v{VAO+1}, 32, v{VAE+1}')
    b.e('v_add_u32 v5, 4, v6')
    b.e('v_bfe_u32 v11, v5, 3, 1')
    b.e('v_and_b32 v12, 7, v5')
    b.e('v_lshrrev_b32 v13, 2, v12')
    b.e('v_lshlrev_b32 v13, 1, v13')
    b.e('v_lshlrev_b32 v14, 6, v12')
    b.e('v_xor_b32 v15, v13, v10')
    b.e('v_lshl_add_u32 v15, v15, 4, v14')
    b.e('s_mul_i32 s46, s53, 6144')
    b.e('s_add_u32 s46, s46, 16384')
    b.e('v_lshl_add_u32 v5, v11, 10, v15')
    b.e(f'v_add_u32 v{VXR}, s46, v5')
    b.e(f'v_add_u32 v{VXR+1}, {2*SLOT}, v{VXR}')
    b.e('v_lshl_add_u32 v15, v11, 11, v15')
    b.e('v_lshl_add_u32 v14, v11, 11, v14')
    b.e('s_lshl_b32 s47, s54, 13')
    b.e(f'v_add_u32 v{VK}, s47, v15')
    b.e(f'v_add_u32 v{VK}, {slot(0)}, v{VK}')
    b.e('s_mul_i32 s46, s53, 12288')
    b.e(f's_add_u32 s46, s46, {QB}')
    b.e(f'v_add_u32 v{VQR}, s46, v15')
    b.e('v_xor_b32 v15, v13, v9')
    b.e('v_lshl_add_u32 v15, v15, 4, v14')
    b.e('v_lshl_add_u32 v15, v8, 3, v15')
    b.e('s_lshl_b32 s45, s54, 10')
    b.e('s_add_u32 s46, s46, s45')
    b.e(f'v_add_u32 v{VQE}, s46, v15')
    b.e(f'v_xor_b32 v{VQO}, 32, v{VQE}')
    b.e('v_add_u32 v5, 1, v10')
    b.e('v_bfe_u32 v11, v5, 1, 1')
    b.e('v_and_b32 v12, 1, v5')
    b.e('v_lshl_add_u32 v13, v12, 2, v7')
    b.e('v_lshlrev_b32 v13, 6, v13')
    b.e('v_lshl_add_u32 v13, v12, 5, v13')
    b.e('v_lshl_add_u32 v13, v3, 3, v13')
    b.e('v_lshl_add_u32 v13, v11, 11, v13')
    b.e(f's_add_u32 s47, s47, {slot(2)}')
    b.e(f'v_add_u32 v{VVE}, s47, v13')
    b.e(f'v_xor_b32 v{VVO}, 32, v{VVE}')
    b.e(f'v_lshlrev_b32 v{VL16}, 4, v0')
    b.e(f'v_add_u32 v{VKW}, s52, v{VL16}')
    b.e(f'v_add_u32 v{VKW+1}, 65536, v{VKW}')
    b.e(f'v_add_u32 v{VKW+2}, 131072, v{VKW}')
    b.e(f's_mov_b32 s48, {hex(f2u(SCALE))}')
    b.e(f's_mov_b32 s50, {(2*CH - LDS_TOT) & 0xffffffff}')
    b.e(f's_mov_b32 s51, {2*CH}')
    b.e(f's_mov_b32 s46, {slot(2)}')
    def fA(D, h, tt): return FS + 56 * (D % 2) + 28 * h + 4 * tt
    def fB(D, h, jt): return FS + 56 * (D % 2) + 28 * h + 16 + 4 * jt
    def reads(D):
        sl = ((D + 3) % 4); hi = sl // 2; o = (sl % 2) * SLOT
        r = []
        for h in range(2):
            for jt in range(3):
                r.append(E(f'ds_read_b128 {q4(fB(D,h,jt))}, v{VXR+hi} offset:{o + jt*2048 + h*512}', ('f', D)))
            for tt in range(4):
                for u in range(2):
                    r.append(E(f'ds_read_b64_tr_b16 {q2(fA(D,h,tt)+2*u)}, v{(VAO if tt%2 else VAE)+hi} offset:{o + u*8192 + h*1024 + (tt//2)*512}', ('f', D)))
        return r
    zero = [E(f'v_mov_b32 v{i}, 0') for i in range(48, 96)] + [E(f'v_mov_b32 v{LS+i}, 0') for i in range(3)]
    b.wait_vm(('q', 0))
    b.e('s_barrier')
    stamp(b, 1)
    run(b, reads(0))
    if FUSED:
        epoch_tags(b, 222)
        b.e('s_getreg_b32 s99, hwreg(HW_REG_XCC_ID, 0, 4)')
        b.e('s_and_b32 s91, s97, 0xfffffff0'); b.e('s_or_b32 s99, s99, s91')
        one_lane(b, 222)
        b.e('v_mov_b32 v223, s99')
        b.e(f'buffer_store_dword v223, v222, {srd(S_F)}, s90 offen offset:4 sc1', ('id',))
    qdma(b, 2)
    issue = {0: [3, 4], 1: [5], 2: [6], 3: [7], 4: [8]}
    kvi = {5: [0], 6: [1, 2], 7: [3], 8: [4]}
    kvr = {}; kvw = {}
    if KVREG:
        kvi = {}
        kvr = {KV1 + i: [i] for i in range(6)} if KV1 + 5 <= 6 else {2: [0], 3: [1], 4: [2], 5: [3], 6: [4, 5]}
        kvr[7] = [6]; kvr[8] = [7]
        kvw = {6: [0, 1, 2, 3], 7: [4, 5]}
    for D in range(9):
        b.e('s_waitcnt lgkmcnt(0)')
        if D + 1 < 9: b.wait_vm(('q', D + 1))
        b.e('s_barrier')
        dm = [(lambda b, x=x: qdma(b, x)) for x in issue.get(D, [])] + [(lambda b, x=x: kvpair_static(b, x)) for x in kvi.get(D, [])]
        dm += [(lambda b, x=x: kv_to_regs(b, x)) for x in kvr.get(D, [])]
        wr = sum((kv_to_lds(x) for x in kvw.get(D, [])), [])
        if KVREG: zs = {7: zero[:32] + zero[48:], 8: zero[32:48]}.get(D, [])
        else: zs = zero[7 * D:7 * D + 7]
        mf = []
        if D < 8:
            for h in range(2):
                for tt in range(4):
                    for jt in range(3):
                        d = q4(acc(tt, jt))
                        mf.append(E(f'{MF} {d}, {q4(fA(D,h,tt))}, {q4(fB(D,h,jt))}, {"0" if D == 0 and h == 0 else d}'))
            rd = reads(D + 1)
            fill = []
            for k, x in enumerate(rd):
                fill.append(x)
                if dm and k % 6 == 1: fill.append(dm.pop(0))
            assert not dm
            run(b, interleave(mf, wr + fill + zs, end=23 if zs else 21))
        else:
            tiles = [(tt, jt) for tt in range(4) for jt in range(3)]
            def conv(tt, jt):
                a = acc(tt, jt)
                return [E(f'v_mul_f32 v{a+i}, s48, v{a+i}') for i in range(4)] + [
                    E(f'v_cvt_pk_bf16_f32 v{a}, v{a}, v{a+1}'), E(f'v_cvt_pk_bf16_f32 v{a+1}, v{a+2}, v{a+3}'),
                    E(f'ds_write_b64 v{VQO if tt%2 else VQE}, {q2(a)} offset:{jt*4096 + (tt//2)*512}', ('qw',))]
            LAG = 3
            run(b, dm)
            run(b, zs)
            for k, (tt, jt) in enumerate(tiles):
                d = q4(acc(tt, jt))
                cv = conv(*tiles[k - LAG]) if k >= LAG else []
                if k == LAG: b.e('s_nop 2')
                b.e(f'{MF} {d}, {q4(fA(D,0,tt))}, {q4(fB(D,0,jt))}, {d}')
                run(b, cv[:3])
                b.e(f'{MF} {d}, {q4(fA(D,1,tt))}, {q4(fB(D,1,jt))}, {d}')
                run(b, cv[3:])
            stamp(b, 2)
            for k in range(12 - LAG, 12):
                if k == 11: b.e('s_nop 0')
                run(b, conv(*tiles[k]))
    b.e('s_waitcnt lgkmcnt(0)')
    if not KVREG: b.wait_vm(('kv', 1))
    b.e('s_barrier')
    if not KVREG: kvpair_static(b, 5)
    for s in range(4):
        for jt in range(3):
            b.e(f'ds_read_b128 {q4(qf(s,jt))}, v{VQR} offset:{jt*4096 + (s//2)*1024 + (s%2)*512}', ('qr', s))
    return b

def kread(b, f):
    kt, s = f // 4, f % 4
    b.e(f'ds_read_b128 {q4(KR+4*(f%4))}, v{VK} offset:{kt*4096 + (s//2)*1024 + (s%2)*512}', ('k', f))
def vread(b, t):
    tau = t // 2
    a = VVO if t % 2 else VVE
    for u in range(2):
        b.e(f'ds_read_b64_tr_b16 {q2(VR+4*(t%4)+2*u)}, v{a} offset:{u*4096 + (tau//2)*1024 + (tau%2)*512}', ('v', t))
def kadv(b, first=False):
    if first:
        b.e(f'v_add_u32 v{VK}, {CH}, v{VK}')
        b.e(f's_mov_b32 s45, {slot(1)}')
        return
    b.e(f's_cmp_ge_u32 s45, {LDS_TOT - 2*CH}')
    b.e(f's_cselect_b32 s47, s50, s51')
    b.e(f's_add_u32 s45, s45, s47')
    b.e(f'v_add_u32 v{VK}, s47, v{VK}')
def vadv(b):
    b.e(f's_cmp_ge_u32 s46, {LDS_TOT - 2*CH}')
    b.e(f's_cselect_b32 s47, s50, s51')
    b.e(f's_add_u32 s46, s46, s47')
    b.e(f'v_add_u32 v{VVE}, s47, v{VVE}')
    b.e(f'v_add_u32 v{VVO}, s47, v{VVO}')


def dma_k(b):
    b.e('s_mov_b32 m0, s57')
    b.e(f's_cmp_ge_u32 s57, s61')
    b.e(f'buffer_load_dwordx4 v{VKV}, {srd(S_K)}, s59 offen {KVPOL} lds', ('kd',))
    b.e(f'buffer_load_dwordx4 v{VKV}, {srd(S_K)}, s59 offen offset:2048 {KVPOL} lds', ('kd',))
    b.e('s_cselect_b32 s62, s50, s51')
    b.e('s_add_u32 s57, s57, s62')
    b.e(f's_add_u32 s59, s59, {CH}')
def dma_v(b):
    b.e('s_mov_b32 m0, s58')
    b.e(f's_cmp_ge_u32 s58, s61')
    b.e(f'buffer_load_dwordx4 v{VKV}, {srd(S_V)}, s60 offen {KVPOL} lds', ('vd',))
    b.e(f'buffer_load_dwordx4 v{VKV}, {srd(S_V)}, s60 offen offset:2048 {KVPOL} lds', ('vd',))
    b.e('s_cselect_b32 s62, s50, s51')
    b.e('s_add_u32 s58, s58, s62')
    b.e(f's_add_u32 s60, s60, {CH}')

PS = TMP + 8

def guarded(fn, T):
    def g(b):
        if T is None: return fn(b)
        role.n += 1; l = f'SK{role.n}'
        b.e(f's_cmp_eq_u32 s44, {T}')
        b.e(f's_cbranch_scc1 {l}')
        fn(b)
        b.e(f'{l}:')
    return g

def qk_backbone(S, cinit, nextV=True, first=False, qwait=False, dma=None):
    bb = []
    for f in range(8):
        kt, s = f // 4, f % 4
        for jt in range(3):
            def slot(b, f=f, kt=kt, s=s, jt=jt):
                if jt == 0:
                    if qwait and f < 4: b.wait_lgkm(('qr', s))
                    if not PAIRW: b.wait_lgkm(('k', f))
                    elif f % 2 == 0: b.wait_lgkm(('k', f + 1)); b.wait_lgkm(('k', f))
                d = q4(st(S, kt, jt))
                c = d if s else (q4(NEGM + 4 * jt) if cinit == 'negm' else '0')
                b.e(f'{MF} {d}, {q4(KR+4*(f%4))}, {q4(qf(s,jt))}, {c}')
                if jt == 2:
                    if f < 4: kread(b, f + 4)
                    if f == 3: kadv(b, first)
                    if f >= 4:
                        if nextV == 'K': kread(b, f - 4)
                        elif nextV: vread(b, f - 4)
                if dma and not NODMA and f == 0 and jt == 1: dma(b)
            bb.append(slot)
    return bb

def pv_backbone(P, nextK=True, dma=None, adv=True):
    bb = []
    for t in range(8):
        for jt in range(3):
            def slot(b, t=t, jt=jt):
                if jt == 0:
                    if not PAIRW: b.wait_lgkm(('v', t))
                    elif t % 2 == 0: b.wait_lgkm(('v', t + 1)); b.wait_lgkm(('v', t))
                d = q4(acc(t, jt))
                b.e(f'{MF} {d}, {q4(VR+4*(t%4))}, {q4(st(P,0,jt))}, {d}')
                if jt == 2:
                    if t < 4: vread(b, t + 4)
                    if t == 3 and adv: vadv(b)
                    if t >= 4 and nextK: kread(b, t - 4)
                if dma and not NODMA and t == 0 and jt == 1: dma(b)
            bb.append(slot)
    return bb

def sregs(S, jt): return [st(S, 0, jt) + i for i in range(4)] + [st(S, 1, jt) + i for i in range(4)]

def sm_fillers(S):
    fl = []
    for kt in range(2):
        for jt in range(3):
            r = sregs(S, jt)
            o = 4 * kt
            fl.append(E(f'v_exp_f32 v{r[o]}, v{r[o]}'))
            fl.append(E(f'v_exp_f32 v{r[o+1]}, v{r[o+1]}'))
            if kt: fl.append(E(f'v_add_f32 v{PS+jt}, v{PS+jt}, v{r[o]}'))
            fl.append(E(f'v_exp_f32 v{r[o+2]}, v{r[o+2]}'))
            if kt: fl.append(E(f'v_add_f32 v{PS+jt}, v{PS+jt}, v{r[o+1]}'))
            else: fl.append(E(f'v_add_f32 v{PS+jt}, v{r[0]}, v{r[1]}'))
            fl.append(E(f'v_exp_f32 v{r[o+3]}, v{r[o+3]}'))
            fl.append(E(f'v_add_f32 v{PS+jt}, v{PS+jt}, v{r[o+2]}'))
            fl.append(E(f'v_cvt_pk_bf16_f32 v{r[2*kt]}, v{r[o]}, v{r[o+1]}'))
            fl.append(E(f'v_add_f32 v{PS+jt}, v{PS+jt}, v{r[o+3]}'))
            fl.append(E(f'v_cvt_pk_bf16_f32 v{r[2*kt+1]}, v{r[o+2]}, v{r[o+3]}'))
    return fl

def chk_fillers():
    return [E(f'v_max3_f32 v{TMP}, v{PS}, v{PS+1}, v{PS+2}'), E(f'v_cmp_nle_f32 vcc, v{TMP}, v{TMP+11}')]
def ladd_fillers():
    return [E(f'v_add_f32 v{LS+jt}, v{LS+jt}, v{PS+jt}') for jt in range(3)]

def xreduce3(regs, tmps, op):
    fl = []
    for sw in ('v_permlane32_swap_b32', 'v_permlane16_swap_b32'):
        for r, t in zip(regs, tmps): fl.append(E(f'v_mov_b32 v{t}, v{r}'))
        for r, t in zip(regs, tmps): fl.append(E(f'{sw} v{r}, v{t}'))
        for r, t in zip(regs, tmps): fl.append(E(f'{op} v{r}, v{r}, v{t}'))
    return fl

MX = [TMP + 1, TMP + 2, TMP + 3]; MT = [TMP + 4, TMP + 5, TMP + 6]
def rowmax3(S):
    fl = []
    R = [sregs(S, jt) for jt in range(3)]
    for jt in range(3): fl.append(E(f'v_max3_f32 v{MX[jt]}, v{R[jt][0]}, v{R[jt][1]}, v{R[jt][2]}'))
    for jt in range(3): fl.append(E(f'v_max3_f32 v{MX[jt]}, v{MX[jt]}, v{R[jt][3]}, v{R[jt][4]}'))
    for jt in range(3): fl.append(E(f'v_max3_f32 v{MX[jt]}, v{MX[jt]}, v{R[jt][5]}, v{R[jt][6]}'))
    for jt in range(3): fl.append(E(f'v_max_f32 v{MX[jt]}, v{MX[jt]}, v{R[jt][7]}'))
    return fl + xreduce3(MX, MT, 'v_max_f32')

def rare_path(ctx, name, Y, X, back):
    snap = ctx.snap()
    r = Block(ctx, name + 'r')
    r.e(f'{name}_RARE:')
    r.e(f's_cmp_ge_u32 s45, {back*CH}')
    r.e(f's_cselect_b32 s47, 0, {LDS_TOT}')
    r.e(f's_sub_u32 s47, s47, {back*CH}')
    r.e(f'v_add_u32 v{TMP+7}, s47, v{VK}')
    for kt in range(2):
        for s in range(4):
            r.e(f'ds_read_b128 {q4(KR+4*s)}, v{TMP+7} offset:{kt*4096 + (s//2)*1024 + (s%2)*512}', ('rk',))
        r.e('s_waitcnt lgkmcnt(0)')
        for s in range(4):
            for jt in range(3):
                d = q4(st(Y, kt, jt))
                r.e(f'{MF} {d}, {q4(KR+4*s)}, {q4(qf(s,jt))}, {d if s else q4(NEGM+4*jt)}')
    r.e('s_nop 7')
    run(r, rowmax3(Y))
    for jt in range(3): r.e(f'v_max_f32 v{MX[jt]}, 0, v{MX[jt]}')
    for jt in range(3): r.e(f'v_exp_f32 v{MT[jt]}, -v{MX[jt]}')
    for jt in range(3):
        for q in sregs(Y, jt) + (sregs(X, jt) if X else []) + [NEGM + 4 * jt + i for i in range(4)]:
            r.e(f'v_sub_f32 v{q}, v{q}, v{MX[jt]}')
        r.e(f'v_mul_f32 v{LS+jt}, v{LS+jt}, v{MT[jt]}')
        for t in range(8):
            for i in range(4): r.e(f'v_mul_f32 v{acc(t,jt)+i}, v{acc(t,jt)+i}, v{MT[jt]}')
    run(r, sm_fillers(Y))
    r.e('s_nop 1')
    r.e(f's_branch {name}_JOIN')
    ctx.restore(snap)
    return r

def k1_att_prologue(ctx):
    b = Block(ctx, 'att_pro')
    for f in range(4): kread(b, f)
    nk, nv = (11, 10) if KVREG else (7, 8)
    b.e(f's_add_u32 s57, s52, {slot(nk)}')
    b.e(f's_add_u32 s58, s52, {slot(nv)}')
    b.e(f's_mov_b32 s59, {chunk_of(nk)[1]*CH}')
    b.e(f's_mov_b32 s60, {chunk_of(nv)[1]*CH}')
    b.e(f's_add_u32 s61, s52, {LDS_TOT - 2*CH}')
    b.e(f'v_mov_b32 v{TMP+11}, {hex(f2u(THR))}')
    if FUSED and WARM:
        b.e('s_lshr_b32 s55, s41, 3'); b.e('s_mul_i32 s55, s55, 1179648')
        b.e('s_and_b32 s56, s41, 3'); b.e('s_mul_i32 s62, s56, 288'); b.e('s_add_u32 s55, s55, s62')
        b.e('s_and_b32 s62, s41, 1'); b.e('s_lshl_b32 s62, s62, 5'); b.e('s_sub_u32 s55, s55, s62')
        b.e('s_lshl_b32 s56, s56, 1'); b.e('s_and_b32 s62, s41, 4'); b.e('s_add_u32 s56, s56, s62')
        b.e('s_and_b32 s62, s40, 3'); b.e('s_add_u32 s56, s56, s62'); b.e('s_and_b32 s56, s56, 7')
        b.e('s_mul_i32 s56, s56, 147456'); b.e('s_add_u32 s55, s55, s56')
        b.e('s_mul_i32 s56, s42, 18432'); b.e('s_add_u32 s55, s55, s56')
        b.e('s_add_u32 s28, s12, s55'); b.e('s_addc_u32 s29, s13, 0')
        b.e('s_sub_u32 s30, 4718592, s55'); b.e('s_mov_b32 s31, 0x20000')
    zero = [E(f'v_mov_b32 v{ACC+i}, 0') for i in range(48)]
    run(b, interleave(qk_backbone(SA, '0', nextV='K', first=True, qwait=True), zero))
    if not KVREG: b.wait_vm(('kv', 2))
    b.e('s_barrier')
    if KVREG:
        kvpair_static(b, 8)
        kvpair_static(b, 9)
        run(b, kv_to_lds(7)[:1] + kv_to_lds(7)[1:] + kv_to_lds(6))
    else: kvpair_static(b, 6)
    if TOUCH:
        b.e(f'v_lshlrev_b32 v{TMP+7}, {12 if TOUCH == 1 else 17}, v{VL16}')
        b.e('s_mov_b32 s100, 0x20000')
        for base, size, off in ((12, 4718592, 0), (18, 0x1000000, 0), (18, 0x1000000, 0x400000), (18, 0x1000000, 0x800000), (18, 0x3000000, 0x2000000), (18, 0x3000000, 0x2400000), (18, 0x3000000, 0x2800000), (18, 0x3000000, 0x2c00000), (14, 1769472, 0)):
            b.e(f's_mov_b32 s28, s{base}'); b.e(f's_mov_b32 s29, s{base+1}'); b.e(f's_mov_b32 s30, {size}'); b.e('s_mov_b32 s31, 0x20000')
            b.e(f's_mov_b32 s56, {off}')
            b.e(f'buffer_load_dword v{TMP}, v{TMP+7}, s[28:31], s56 offen', ('touch',))
        b.e('s_waitcnt vmcnt(0)')
    run(b, rowmax3(SA))
    for jt in range(3):
        for i in range(4): b.e(f'v_sub_f32 v{NEGM+4*jt+i}, 0, v{MX[jt]}')
    sub = [E(f'v_sub_f32 v{r}, v{r}, v{MX[jt]}') for kt in range(2) for jt in range(3) for r in sregs(SA, jt)[4*kt:4*kt+4]]
    run(b, interleave(qk_backbone(SB, 'negm', nextV=True), sub + sm_fillers(SA)))
    b.e('s_mov_b32 s44, 0')
    if PRIO:
        b.e('s_cmp_ge_u32 s42, 4'); b.e('s_cbranch_scc0 NOPRIO'); b.e('s_setprio 1'); b.e('NOPRIO:')
    stamp(b, 3)
    return b

def pv_phase(ctx, name, P, S, nextK=True, head=None, dma=None, vmw=4, bar=True, extra=()):
    a = Block(ctx, name)
    if head: head(a)
    if bar:
        a.e(f's_waitcnt vmcnt({2 if NOBARQK else vmw})')
        a.e('s_barrier')
    fl = ladd_fillers() + (sm_fillers(S)[:SM_SPLIT] if S else []) + list(extra)
    run(a, interleave(pv_backbone(P, nextK, dma, adv=bar), fl, start=int(OPT.get('pvs', 2))))
    return a

def qk_phase(ctx, name, D, S, dma):
    b = Block(ctx, name)
    if not NOBARQK:
        b.e('s_waitcnt vmcnt(4)')
        b.e('s_barrier')
    run(b, interleave(qk_backbone(D, 'negm', dma=dma), sm_fillers(S)[SM_SPLIT:] + chk_fillers(), end=23))
    b.e(f's_cbranch_vccnz {name}_RARE')
    r = rare_path(ctx, name, S, D, 4)
    j = Block(ctx, name + 'j'); j.e(f'{name}_JOIN:')
    return b, r, j

def pol_store(b, text, tag):
    if not FUSED: return b.e(text, tag)
    role.n += 1; l = f'PS{role.n}'
    b.e('s_cmp_eq_u32 s53, 1')
    b.e(f's_cbranch_scc1 {l}A')
    b.e(text + ' sc1', tag)
    b.e(f's_branch {l}B')
    b.e(f'{l}A:')
    i = I(text); i.roles = (); b.append(i)
    b.e(f'{l}B:')

EXB = 4 * CH
MLB = 24576
def k1_epilogue(ctx):
    b = Block(ctx, 'epi')
    stamp(b, 4)
    if STAMP and OPT.get('rt4'): b.e('s_memrealtime s[84:85]')
    run(b, xreduce3([LS, LS + 1, LS + 2], MT, 'v_add_f32'))
    b.e('s_mul_i32 s43, s42, 12288')
    b.e('s_xor_b32 s46, s42, 4')
    b.e('s_mul_i32 s45, s46, 12288')
    b.e(f's_add_u32 s43, s43, {EXB}')
    b.e(f's_add_u32 s45, s45, {EXB}')
    b.e(f'v_add_u32 v{VK}, s43, v{VL16}')
    b.e(f'v_add_u32 v{VVE}, s45, v{VL16}')
    b.e(f'v_lshrrev_b32 v{VVO}, 1, v{VL16}')
    b.e('s_mul_i32 s43, s42, 1536')
    b.e('s_mul_i32 s45, s46, 1536')
    b.e(f's_add_u32 s43, s43, {MLB}')
    b.e(f's_add_u32 s45, s45, {MLB}')
    b.e(f'v_add_u32 v{VKV}, s43, v{VVO}')
    b.e(f'v_add_u32 v{VVO}, s45, v{VVO}')
    for jt in range(3):
        b.e(f'v_mov_b32 v{NEGM+4*jt+1}, v{LS+jt}')
    for jt in range(3):
        b.e(f'ds_write_b64 v{VKV}, {q2(NEGM+4*jt)} offset:{jt*512}', ('x',))
    b.e('s_and_b32 s43, s42, 3')
    b.e('s_mul_i32 s43, s43, 393216')
    b.e('s_lshl_b32 s45, s41, 12')
    b.e('s_add_u32 s43, s43, s45')
    b.e('s_lshl_b32 s45, s54, 11')
    b.e('s_add_u32 s43, s43, s45')
    b.e('s_add_u32 s45, s43, 131072')
    b.e('s_add_u32 s46, s43, 262144')
    so = ['s43', 's45', 's46']
    for r in (A, B):
        with role(b, r):
            send = range(4, 8) if r == A else range(0, 4)
            for i, t in enumerate(send):
                for jt in range(3):
                    b.e(f'ds_write_b128 v{VK}, {q4(acc(t,jt))} offset:{(3*i+jt)*1024}', ('x',))
    b.e('s_waitcnt lgkmcnt(0)')
    b.e('s_barrier')
    RX = QF
    ML = SA
    for jt in range(3):
        b.e(f'ds_read_b64 {q2(ML+2*jt)}, v{VVO} offset:{jt*512}', ('ml',))
    for i in range(12):
        b.e(f'ds_read_b128 {q4(RX+4*i)}, v{VVE} offset:{i*1024}', ('rx', i))
    if FUSED and WOEARLY:
        with role(b, WL):
            t_issue(b); t_issue(b)
    b.wait_lgkm(('ml',))
    C = SA + 8
    for jt in range(3):
        no, lo = NEGM + 4 * jt, NEGM + 4 * jt + 1
        np_, lp = ML + 2 * jt, ML + 2 * jt + 1
        t = TMP
        b.e(f'v_min_f32 v{t}, v{no}, v{np_}')
        b.e(f'v_sub_f32 v{t+1}, v{t}, v{no}')
        b.e(f'v_sub_f32 v{t+2}, v{t}, v{np_}')
        b.e(f'v_exp_f32 v{t+1}, v{t+1}')
        b.e(f'v_exp_f32 v{t+2}, v{t+2}')
        b.e('s_nop 0')
        b.e(f'v_mul_f32 v{t+3}, v{t+1}, v{lo}')
        b.e(f'v_fmac_f32 v{t+3}, v{t+2}, v{lp}')
        b.e(f'v_rcp_f32 v{t+3}, v{t+3}')
        b.e('s_nop 0')
        b.e(f'v_mul_f32 v{C+4*jt}, v{t+1}, v{t+3}')
        b.e(f'v_mul_f32 v{C+4*jt+1}, v{t+1}, v{t+3}')
        b.e(f'v_mul_f32 v{C+4*jt+2}, v{t+2}, v{t+3}')
        b.e(f'v_mul_f32 v{C+4*jt+3}, v{t+2}, v{t+3}')
    OUT = SB
    snap = ctx.snap()
    for r in (A, B):
        with role(b, r):
            keep = range(0, 4) if r == A else range(4, 8)
            for sp in range(2):
                for jt in range(3):
                    o = OUT + 4 * (3 * sp + jt)
                    for h in range(2):
                        i = 2 * sp + h
                        a = acc(keep[i], jt); x = RX + 4 * (3 * i + jt)
                        b.wait_lgkm(('rx', 3 * i + jt))
                        b.e(f'v_pk_mul_f32 {q2(a)}, {q2(a)}, {q2(C+4*jt)}')
                        b.e(f'v_pk_mul_f32 {q2(a+2)}, {q2(a+2)}, {q2(C+4*jt)}')
                        b.e(f'v_pk_fma_f32 {q2(a)}, {q2(x)}, {q2(C+4*jt+2)}, {q2(a)}')
                        b.e(f'v_pk_fma_f32 {q2(a+2)}, {q2(x+2)}, {q2(C+4*jt+2)}, {q2(a+2)}')
                        b.e(f'v_cvt_pk_bf16_f32 v{o+2*h}, v{a}, v{a+1}')
                        b.e(f'v_cvt_pk_bf16_f32 v{o+2*h+1}, v{a+2}, v{a+3}')
                    pol_store(b, f'buffer_store_dwordx4 {q4(o)}, v{VL16}, {srd(S_O)}, {so[jt]} offen offset:{sp*1024}', ('o',))
    if FUSED:
        b.e('s_bfe_u32 s43, s42, 0x10001')
        b.e('s_cmp_eq_u32 s43, s49')
        b.e('s_cbranch_scc0 OWN_SKIP')
        b.e('s_and_b32 s43, s42, 1'); b.e('s_mul_i32 s43, s43, 6144')
        b.e(f's_mul_i32 s45, s54, {OS_}'); b.e('s_add_u32 s43, s43, s45')
        b.e(f'v_add_u32 v{VK}, s43, v{VL16}')
        for sp in range(2):
            for jt in range(3):
                b.e(f'ds_write_b128 v{VK}, {q4(OUT + 4 * (3 * sp + jt))} offset:{(2*jt+sp)*1024}', ('oo',))
        b.e('OWN_SKIP:')
    if not FUSED:
        if STAMP:
            b.e('s_waitcnt vmcnt(0)')
            stamp(b, 5)
            dump_stamps(b)
        b.e('K1_END:')
        b.e('s_endpgm')
    return b

def dump_stamps(b):
    b.e('s_memrealtime s[88:89]')
    b.e('s_waitcnt lgkmcnt(0)')
    if STAMP == 2:
        b.e(f's_cmp_eq_u32 s2, {int(OPT.get("dbgwg", 0))}'); b.e('s_cbranch_scc0 DBG_SKIP')
        b.e('s_cmp_eq_u32 s42, 5'); b.e('s_cbranch_scc0 DBG_SKIP')
        b.e('s_mov_b32 s56, s16'); b.e('s_mov_b32 s57, s17'); b.e('s_mov_b32 s58, 256'); b.e('s_mov_b32 s59, 0x20000')
        b.e('v_mov_b32 v1, 0')
        for i in range(1, 11):
            b.e(f's_sub_u32 s43, s{64+2*i}, s64'); b.e('v_mov_b32 v2, s43')
            b.e(f'buffer_store_dword v2, v1, s[56:59], 0 offen offset:{4*i}')
            b.e('s_waitcnt vmcnt(0)')
        b.e('s_sub_u32 s43, s88, s86'); b.e('v_mov_b32 v2, s43')
        b.e('buffer_store_dword v2, v1, s[56:59], 0 offen offset:44')
        b.e('s_waitcnt vmcnt(0)')
        b.e('DBG_SKIP:')
        return
    b.e('s_lshl_b32 s43, s2, 3'); b.e('s_add_u32 s43, s43, s42'); b.e('s_lshl_b32 s43, s43, 7')
    b.e('s_add_u32 s43, s43, 0x1000000')
    b.e('s_add_u32 s56, s18, s43'); b.e('s_addc_u32 s57, s19, 0'); b.e('s_mov_b32 s58, 128'); b.e('s_mov_b32 s59, 0x20000')
    b.e('v_mov_b32 v1, 0')
    for i in range(13):
        b.e(f'v_mov_b32 v2, s{64+2*i}'); b.e(f'v_mov_b32 v3, s{65+2*i}')
        b.e(f'buffer_store_dwordx2 v[2:3], v1, s[56:59], 0 offen offset:{8*i}')
        b.e('s_waitcnt vmcnt(0)')

def poll(b, name, load, notyet):
    b.e('s_mov_b32 s91, 0')
    b.e(f'{name}:')
    b.e(load)
    b.e('s_add_u32 s91, s91, 1')
    b.e('s_waitcnt vmcnt(0)')
    b.e(notyet)
    b.e('s_cmp_lt_u32 s91, 0x40000')
    b.e(f's_cbranch_vccz {name}_GO')
    b.e(f's_sleep {SLEEP}')
    b.e(f's_cbranch_scc1 {name}')
    b.e(f'{name}_GO:')

WL, OL = (0, 1, 2, 3, 4), (5, 6, 7)
S_ST, S_P, S_OUT, S_PI = 20, 24, 28, 32
VD = 192; VA0, VA1, VB = 196, 197, 198; VT = 200; VX = 204; VAP = 208
WS_ = 20480; NW_ = int(OPT.get('nw', 6)); OS_ = 12288; NO_ = int(OPT.get('no', 3)); WOB = NO_ * OS_
assert WOB + NW_ * WS_ <= LDS_TOT
PRI = int(OPT.get('pri', 0))

def tail_setup():
    P = []
    def piece(*lines): P.append(lambda b: [b.e(l) for l in lines])
    piece('s_lshr_b32 s47, s41, 3', 's_and_b32 s48, s41, 7')
    piece('s_lshr_b32 s49, s48, 2', 's_and_b32 s50, s48, 3')
    piece('s_and_b32 s51, s50, 1', 's_mul_i32 s55, s47, 1179648')
    piece('s_mul_i32 s61, s50, 288', 's_add_u32 s55, s55, s61')
    piece('s_lshl_b32 s61, s51, 5', 's_sub_u32 s55, s55, s61')
    piece('s_mul_i32 s61, s40, 1572864', 's_mul_i32 s100, s49, 786432')
    piece('s_add_u32 s61, s61, s100', 's_lshl_b32 s100, s47, 15')
    piece('s_add_u32 s61, s61, s100', 's_sub_u32 s3, 4718592, s55')
    piece('s_add_u32 s100, s12, s55', 's_addc_u32 s101, s13, 0')
    piece('s_add_u32 s62, s18, s61', 's_addc_u32 s63, s19, 0')
    piece('s_mov_b32 s58, 4096', 's_cmp_lt_u32 s42, 5',
          f's_cselect_b32 s{S_ST}, s100, s62', f's_cselect_b32 s{S_ST+1}, s101, s63',
          f's_cselect_b32 s{S_ST+2}, s3, {5*131072 + 32768}', 's_cselect_b32 s58, 147456, s58')
    piece(f's_mov_b32 s{S_ST+3}, 0x20000', 's_lshr_b32 s59, s58, 1')
    piece('s_lshl_b32 s60, s42, 12', 's_mov_b32 s62, 0', f's_add_u32 s61, s60, {WOB}', f's_sub_u32 s63, s60, {5*4096}')
    piece(f's_mov_b32 s100, {OS_}', f's_mov_b32 s101, {(NO_-1)*OS_}', 's_cmp_lt_u32 s42, 5', 's_cselect_b32 s60, s61, s63',
          f's_cselect_b32 s44, {WS_}, s100', f's_cselect_b32 s57, {(NW_-1)*WS_}, s101')
    piece('s_mov_b32 s63, s60', 's_add_u32 s57, s57, s60')
    piece('s_mov_b32 s56, s48' if FUSED else 's_mov_b32 s56, s48', 's_mov_b32 s3, 0')
    t = VX
    piece(f'v_bfe_u32 v{t}, v{VL16}, 6, 3', 's_and_b32 s61, s42, 1', 's_lshl_b32 s61, s61, 3')
    piece(f'v_add_u32 v{t}, s61, v{t}', f'v_lshrrev_b32 v{t+1}, 6, v{VL16}')
    piece('s_cmp_eq_u32 s42, 4', 's_cselect_b64 vcc, -1, 0', 's_lshr_b32 s100, s50, 1')
    piece(f'v_cndmask_b32 v{t}, v{t}, v{t+1}, vcc', f'v_lshrrev_b32 v{t+1}, 9, v{VL16}')
    piece(f'v_mul_u32_u24 v{t+2}, 1152, v{t}', f'v_lshlrev_b32 v{t+1}, 6, v{t+1}')
    piece(f'v_cndmask_b32 v{t+1}, v{t+1}, 0, vcc', f'v_bfe_u32 v{t}, v{t}, 2, 1')
    piece(f'v_add_u32 v{t+2}, v{t+2}, v{t+1}', f'v_lshlrev_b32 v{t}, 1, v{t}')
    piece(f'v_bfe_u32 v{t+1}, v{VL16}, 4, 2', f'v_xor_b32 v{t}, v{t}, v{t+1}')
    piece(f'v_lshl_add_u32 v{t}, v{t}, 4, v{t+2}', 's_lshr_b32 s61, s42, 1', 's_lshl_b32 s61, s61, 7')
    piece('s_lshl_b32 s101, s100, 6', 's_add_u32 s61, s61, s101', 's_lshl_b32 s101, s100, 8', 's_sub_u32 s101, 256, s101')
    piece('s_cmp_eq_u32 s42, 4', 's_cselect_b32 s61, s101, s61')
    piece(f'v_add_u32 v{VD}, s61, v{t}', 's_sub_u32 s61, s42, 5', 's_lshl_b32 s61, s61, 18')
    for m in range(1, 4): piece(f'v_add_u32 v{VD+m}, {m*(18432-1024)}, v{VD}')
    def ofix(b):
        with role(b, OL):
            b.e(f'v_add_u32 v{VD}, s61, v{VL16}')
            b.e(f'v_mov_b32 v{VD+1}, v{VD}')
            b.e(f'v_add_u32 v{VD+2}, {131072-2048}, v{VD}')
            b.e(f'v_mov_b32 v{VD+3}, v{VD+2}')
    P.append(ofix)
    return P

def t_issue_parts():
    def head(b):
        b.e('s_lshr_b32 s55, s62, 1'); b.e('s_add_u32 s55, s55, s56'); b.e('s_and_b32 s55, s55, 7')
        if FUSED:
            role.n += 1; l = f'HP{role.n}'
            b.e('s_bitcmp1_b32 s3, s55')
            b.e(f's_cbranch_scc0 {l}_GO')
            b.e('s_mov_b32 s91, 0')
            b.e(f'{l}:')
            x = [f'buffer_load_dword v{VT+1}, v{VT}, {srd(S_F)}, s99 offen sc1', 's_add_u32 s91, s91, 1', 's_waitcnt vmcnt(0)',
                 f'v_cmp_ne_u32 vcc, s97, v{VT+1}', 's_nop 0', 's_mov_b32 s3, vcc_lo', 's_bitcmp1_b32 s3, s55', f's_cbranch_scc0 {l}_GO',
                 f's_sleep {SLEEP}', 's_cmp_lt_u32 s91, 0x40000', f's_cbranch_scc1 {l}']
            x[5:6] = ['s_mov_b32 s3, vcc_lo', 's_mov_b64 vcc, 0']
            for t in x:
                i = I(t); i.roles = (); b.append(i)
            b.e(f'{l}_GO:')
        b.e('s_mul_i32 s55, s55, s58')
        b.e('s_and_b32 s61, s62, 1'); b.e('s_mul_i32 s61, s61, s59'); b.e('s_add_u32 s55, s55, s61')
        b.e('s_mov_b32 m0, s63')
        b.e('s_add_u32 s62, s62, 1')
    ld = [E(f'buffer_load_dwordx4 v{VD+m}, {srd(S_ST)}, s55 offen offset:{m*1024} {OLDPOL} lds', ('u',)) for m in range(4)]
    def tail(b):
        b.e('s_cmp_ge_u32 s63, s57'); b.e('s_cselect_b32 s61, s60, s63'); b.e('s_cselect_b32 s63, 0, s44')
        b.e('s_add_u32 s63, s63, s61')
    return [head] + ld + [tail]
def t_issue(b): run(b, t_issue_parts())

def oproj(ctx):
    FB = 64
    b = Block(ctx, 'op_pre')
    stamp(b, 2, True)
    b.e(f'v_lshrrev_b32 v{VT+3}, 4, v{VL16}')
    T0 = 216
    v3, v4, v5, v6, v7 = (f'v{T0+i}' for i in range(5))
    b.e('s_lshr_b32 s43, s42, 2'); b.e('s_and_b32 s45, s42, 1')
    b.e(f'v_lshrrev_b32 {v4}, 4, v{VT+3}'); b.e(f'v_bfe_u32 {v5}, v{VT+3}, 2, 4'); b.e(f'v_and_b32 {v3}, 3, v{VT+3}')
    b.e(f'v_and_b32 {v7}, 7, {v5}'); b.e(f'v_lshlrev_b32 {v7}, 6, {v7}'); b.e(f'v_lshlrev_b32 {v5}, 6, {v5}')
    b.e(f'v_and_b32 {v6}, 1, {v4}'); b.e(f'v_lshlrev_b32 {v6}, 5, {v6}'); b.e(f'v_lshl_add_u32 {v6}, {v3}, 3, {v6}')
    b.e(f'v_add_u32 {v5}, {v5}, {v6}'); b.e(f'v_add_u32 {v7}, {v7}, {v6}')
    b.e(f'v_lshrrev_b32 {v6}, 1, {v4}'); b.e(f'v_lshl_add_u32 {v7}, {v6}, 12, {v7}')
    b.e('s_lshl_b32 s46, s43, 11'); b.e(f's_add_u32 s46, s46, {WOB}')
    b.e('s_lshr_b32 s100, s50, 1')
    b.e('s_mul_i32 s101, s45, 5')
    for n in range(5):
        b.e(f's_add_u32 s52, s101, {n}')
        b.e('s_and_b32 s91, s52, 1'); b.e('s_lshl_b32 s91, s91, 5')
        b.e('s_lshr_b32 s52, s52, 1'); b.e('s_sub_u32 s52, s52, s100')
        b.e('s_and_b32 s54, s52, 1'); b.e('s_lshl_b32 s54, s54, 9')
        b.e('s_lshr_b32 s55, s52, 1'); b.e('s_lshl_b32 s55, s55, 13'); b.e('s_add_u32 s54, s54, s55')
        b.e('s_cmp_lt_u32 s52, 4'); b.e('s_cselect_b32 s54, s54, 16384'); b.e('s_cselect_b64 vcc, -1, 0')
        b.e('s_add_u32 s54, s54, s46')
        b.e(f'v_cndmask_b32 v{VAP+n}, {v5}, {v7}, vcc')
        b.e(f'v_xor_b32 v{VAP+n}, s91, v{VAP+n}'); b.e(f'v_add_u32 v{VAP+n}, s54, v{VAP+n}')
    b.e('s_bfe_u32 s55, s42, 0x10001')
    b.e('s_mul_i32 s52, s55, 6144'); b.e('s_lshl_b32 s54, s43, 10'); b.e('s_add_u32 s52, s52, s54')
    b.e(f'v_add_u32 v{VB}, s52, v{VL16}')
    b.e(f'v_bfe_u32 {v6}, v{VT+3}, 2, 2'); b.e(f'v_mul_u32_u24 {v6}, {4*INB}, {v6}')
    b.e(f'v_lshl_add_u32 {v6}, {v4}, 6, {v6}'); b.e(f'v_lshl_add_u32 v{VT+2}, {v3}, 4, {v6}')
    b.e('s_sub_u32 s54, s101, s51')
    b.e('s_mul_i32 s52, s55, 27'); b.e('s_add_u32 s52, s52, s54'); b.e('s_lshl_b32 s43, s52, 8')
    b.e('s_mul_i32 s52, s55, 9'); b.e('s_add_u32 s52, s52, s54'); b.e('s_lshl_b32 s4, s52, 9')
    b.e('s_lshl_b32 s52, s40, 3'); b.e('s_add_u32 s52, s52, s48'); b.e(f's_mul_i32 s52, s52, {16*INB}')
    b.e(f's_add_u32 s52, s52, {POFF}')
    b.e(f's_mul_i32 s54, s47, {INB}'); b.e('s_add_u32 s54, s54, s52')
    b.e(f's_add_u32 s{S_P}, s18, s54'); b.e(f's_addc_u32 s{S_P+1}, s19, 0')
    b.e(f's_mov_b32 s{S_P+2}, {13*INB}'); b.e(f's_mov_b32 s{S_P+3}, 0x20000')
    b.e(f's_mul_i32 s54, s47, {4*INB}'); b.e('s_add_u32 s54, s54, s52')
    b.e(f's_add_u32 s{S_PI}, s18, s54'); b.e(f's_addc_u32 s{S_PI+1}, s19, 0')
    b.e(f's_mov_b32 s{S_PI+2}, {4*INB}'); b.e(f's_mov_b32 s{S_PI+3}, 0x20000')
    b.e('s_mul_i32 s52, s40, 192'); b.e('s_mul_i32 s54, s49, 96'); b.e('s_add_u32 s52, s52, s54')
    b.e('s_lshl_b32 s54, s47, 2'); b.e('s_add_u32 s52, s52, s54'); b.e('s_mul_i32 s52, s52, 1152')
    b.e('s_mul_i32 s54, s50, 288'); b.e('s_add_u32 s52, s52, s54')
    b.e(f's_add_u32 s{S_OUT}, s14, s52'); b.e(f's_addc_u32 s{S_OUT+1}, s15, 0')
    b.e(f's_sub_u32 s{S_OUT+2}, 1769472, s52'); b.e(f's_mov_b32 s{S_OUT+3}, 0x20000')
    b.e('s_lshl_b32 s91, s42, 6')
    b.e(f'v_add_u32 v{VT}, s91, v{VT+3}')
    b.e(f'v_lshlrev_b32 v{VT}, 20, v{VT}')
    b.e(f'v_mov_b32 v{VT+1}, s97')
    b.e('s_waitcnt lgkmcnt(0)')
    b.wait_vm(('o',))
    b.e('s_barrier')
    pol_store(b, f'buffer_store_dword v{VT+1}, v{VT}, {srd(S_F)}, s90 offen', ('f1',))
    stamp(b, 5)
    def wiss(b):
        with role(b, WL): t_issue(b)
    wiss(b); wiss(b)
    b.e('s_mov_b32 s36, s43')
    b.e('s_cmp_lt_u32 s45, s51'); b.e('s_cselect_b32 s37, 1, 0')
    b.e('s_cmp_gt_u32 s45, s51'); b.e('s_cselect_b32 s38, 1, 0')
    with role(b, OL):
        b.e(f'v_and_b32 v{VT}, 7, v{VT+3}'); b.e(f'v_lshlrev_b32 v{VT}, 7, v{VT}')
        b.e('s_and_b32 s99, s90, 0xfffffc00')
        b.e('s_mov_b32 s3, 0xff'); b.e('s_mov_b32 s62, 2'); b.e(f's_add_u32 s63, s63, {2*OS_}')
    def fA(U, n): return FB + 32 * (U % 2) + 4 * n
    def fB(U, j): return FB + 32 * (U % 2) + 20 + 4 * j
    def rd(U):
        r = [E(f'ds_read_b128 {q4(fB(U,j))}, v{VB} offset:{2*j*1024}', ('f', U)) for j in range(3)]
        for n in range(5):
            r += [E(f'ds_read_b64_tr_b16 {q2(fA(U,n)+2*u)}, v{VAP+n} offset:{u*1024}', ('f', U)) for u in range(2)]
        return r
    def adv(b):
        b.e(f's_cmp_ge_u32 s46, {(NW_-1)*WS_}'); b.e(f's_cselect_b32 s52, s54, s53'); b.e('s_add_u32 s46, s46, s52')
        for n in range(5): b.e(f'v_add_u32 v{VAP+n}, s52, v{VAP+n}')
        b.e(f's_cmp_ge_u32 s45, {(NO_-1)*OS_}'); b.e(f's_cselect_b32 s52, s101, s100'); b.e('s_add_u32 s45, s45, s52')
        b.e(f'v_add_u32 v{VB}, s52, v{VB}')
    b.e('s_mov_b32 s46, 0'); b.e(f's_mov_b32 s53, {WS_}'); b.e(f's_mov_b32 s54, {(-(NW_-1)*WS_) & 0xffffffff}')
    b.e('s_mov_b32 s45, 0'); b.e(f's_mov_b32 s100, {OS_}'); b.e(f's_mov_b32 s101, {(-(NO_-1)*OS_) & 0xffffffff}')
    b.e('s_mov_b32 s39, 0')
    def mmu(U, first=False): return [E(f'{MF} {q4(12*n+4*j)}, {q4(fA(U,n))}, {q4(fB(U,j))}, {"0" if first else q4(12*n+4*j)}') for n in range(5) for j in range(3)]
    b.e('s_waitcnt vmcnt(0)')
    b.e('s_barrier')
    stamp(b, 6)
    run(b, rd(0)); adv(b)
    wiss(b)
    run(b, rd(1)); adv(b)
    b.wait_lgkm(('f', 0))
    run(b, interleave(mmu(0, True), [wiss] * min(2, NW_ - 3), start=1, end=9))
    b.e('s_waitcnt lgkmcnt(0)')
    run(b, interleave(mmu(1), [wiss] * (NW_ - 5), start=2, end=4))
    with role(b, OL):
        stamp(b, 3, True)
        for _ in range(NO_ - 2): t_issue(b)
        b.e(f's_waitcnt vmcnt({4 * (NO_ - 3)})')
    b.e(f's_waitcnt vmcnt({4 * (NW_ - 3)})')
    b.e('s_barrier')
    stamp(b, 1, True)
    with role(b, OL):
        t_issue(b); t_issue(b)
    run(b, rd(0))
    wiss(b); wiss(b)
    adv(b)
    b.e('s_cmp_lt_u32 s42, 5'); b.e('s_cselect_b64 vcc, -1, 0')
    def oiss(b):
        with role(b, OL): t_issue(b)
    def wpart(p):
        def f(b):
            role.n += 1; l = f'WP{role.n}'
            b.e(f's_cbranch_vccz {l}')
            b.ctx.active = list(WL); p(b); b.ctx.active = ALLW
            b.e(f'{l}:')
        return f
    def unit(lp, U, iW, iO, wW, wO):
        if wO < wW:
            with role(lp, OL): lp.e(f's_waitcnt vmcnt({wO})')
        elif wW < wO:
            with role(lp, WL): lp.e(f's_waitcnt vmcnt({wW})')
        lp.e(f's_waitcnt vmcnt({max(wW, wO)}) lgkmcnt(0)')
        lp.e('s_barrier')
        r = rd(U + 1) + [adv]
        if iW and iO and not PRI:
            parts = t_issue_parts()
            fill = []
            for k in range(max(len(r), 2 * len(parts))):
                if k < len(r): fill.append(r[k])
                if k % 2 == 1 and k // 2 < len(parts): fill.append(parts[k // 2])
        else:
            p = t_issue_parts()
            wp = [wpart(lambda b: (p[0](b), p[1](b))), wpart(p[2]), wpart(p[3]), wpart(lambda b: (p[4](b), p[5](b)))] if iW else []
            fill = ([oiss] if iO else []) + r[:6]
            for k, x in enumerate(r[6:]):
                fill.append(x)
                if k % 2 == 0 and k // 2 < len(wp): fill.append(wp[k // 2])
        if U == 15: fill = []
        run(lp, interleave(mmu(U), fill, end=int(OPT.get('tend', 14))))
    lp = Block(ctx, 'op_loop'); lq = Block(ctx, 'op_rest')
    slots = [2, 3, 5, 6, 7, 8, 9]
    NIT = (16 - NW_ - 2) // 2
    if TST == 2:
        for it in range(NIT):
            stamp(lp, slots[it], it=True)
            for U in range(2): unit(lp, U, True, True, 4 * (NW_ - 2), 4 * (NO_ - 2))
    else:
        lp.e('OP_LOOP:')
        for U in range(2): unit(lp, U, True, True, 4 * (NW_ - 2), 4 * (NO_ - 2))
        lp.e('s_add_u32 s39, s39, 1'); lp.e(f's_cmp_lt_u32 s39, {NIT}'); lp.e('s_cbranch_scc1 OP_LOOP')
    for U in range(2 + 2 * NIT, 16):
        if U % 2 == 0: stamp(lq, slots[U // 2 - 1], it=True)
        unit(lq, U, U + NW_ <= 15, U + NO_ <= 15, max(0, 4 * min(NW_ - 2, 14 - U)), max(0, 4 * min(NO_ - 2, 14 - U)))
    stamp(lq, 10, it=True)
    e = Block(ctx, 'op_end')
    stamp(e, 7)
    e.e('s_mul_i32 s52, s42, 9216'); e.e('s_xor_b32 s53, s42, 4'); e.e('s_mul_i32 s53, s53, 9216')
    e.e(f'v_add_u32 v{VA0}, s52, v{VL16}'); e.e(f'v_add_u32 v{VA1}, s53, v{VL16}')
    e.e('s_barrier')
    keepA, keepB = list(range(9)), list(range(9, 15))
    for r_, send in ((A, keepB), (B, keepA)):
        with role(e, r_):
            if r_ == A: e.e('s_nop 3')
            for k, t in enumerate(send): e.e(f'ds_write_b128 v{VA0}, {q4(4*t)} offset:{k*1024}', ('x',))
    G = 100; OWN = 81920
    for k in range(6): e.e(f'v_mov_b32 v{G+4*k+3}, s98')
    e.e(f'v_bfe_u32 v{VB}, v{VT+3}, 2, 2')
    e.e(f'v_cmp_eq_u32 vcc, s47, v{VB}')
    e.e(f'v_mov_b32 v{VB}, 0x40000000')
    e.e(f'v_and_b32 v{VD}, 0xff, v{VT+2}')
    e.e(f'v_cndmask_b32 v{VT+2}, v{VT+2}, v{VB}, vcc')
    e.e(f'v_lshlrev_b32 v{VD+1}, 2, v{VT+3}')
    e.e(f'v_add_u32 v{VD+1}, {OWN+16384}, v{VD+1}')
    e.e(f's_add_u32 s52, s36, {OWN}')
    e.e(f'v_add_u32 v{VD}, s52, v{VD}')
    e.e(f'v_and_b32 v{VD+1}, 0xfffffff0, v{VD+1}')
    e.e(f'v_cndmask_b32 v{VD}, v{VD+1}, v{VD}, vcc')
    e.e('s_waitcnt lgkmcnt(0)')
    e.e('s_barrier')
    for r_, keep in ((A, keepA), (B, keepB)):
        with role(e, r_):
            for k, t in enumerate(keep): e.e(f'ds_read_b128 {q4(FB+4*k)}, v{VA1} offset:{k*1024}', ('y', k))
            for gi in range(len(keep) // 3):
                n = keep[3 * gi] // 3
                for k in range(3 * gi, 3 * gi + 3):
                    t = keep[k]
                    e.wait_lgkm(('y', k))
                    e.e(f'v_pk_add_f32 {q2(4*t)}, {q2(4*t)}, {q2(FB+4*k)}')
                    e.e(f'v_pk_add_f32 {q2(4*t+2)}, {q2(4*t+2)}, {q2(FB+4*k+2)}')
                for x in range(6):
                    e.e(f'v_cvt_pk_bf16_f32 v{G + 8*gi + 4*(x//3) + x%3}, v{12*n+2*x}, v{12*n+2*x+1}')
                if n in (0, 4):
                    role.n += 1; l = f'SK{role.n}'
                    e.e(f's_cmp_eq_u32 s{37 if n == 0 else 38}, 1'); e.e(f's_cbranch_scc1 {l}')
                e.e(f's_add_u32 s52, s4, {n*512}')
                for hf in range(2):
                    e.e(f'buffer_store_dwordx4 {q4(G+8*gi+4*hf)}, v{VT+2}, {srd(S_P)}, s52 offen offset:{hf*256} sc1', ('p',))
                for j in range(3): e.e(f'ds_write_b128 v{VD}, {q4(12*n+4*j)} offset:{j*2304 + n*256}', ('own',))
                if n in (0, 4): e.e(f'{l}:')
    X = 128
    e.e('s_lshl_b32 s52, s42, 6')
    e.e(f'v_add_u32 v{X}, s52, v{VT+3}')
    e.e(f'v_lshlrev_b32 v{VT}, 20, v{X}')
    e.e(f'v_cmp_gt_u32 vcc, 288, v{X}')
    e.e(f'v_subrev_u32 v{X+1}, 32, v{X}')
    e.e(f'v_mov_b32 v{X+7}, 0x40000000')
    e.e(f'v_cndmask_b32 v{X}, v{X+1}, v{X}, vcc')
    e.e(f'v_lshrrev_b32 v{X+1}, 4, v{X}')
    e.e(f'v_and_b32 v{X+2}, 15, v{X}'); e.e(f'v_lshlrev_b32 v{X+2}, 4, v{X+2}')
    e.e(f'v_lshl_add_u32 v{X+3}, v{X+1}, 9, v{X+2}')
    e.e(f'v_mul_u32_u24 v{X+4}, 57, v{X+1}'); e.e(f'v_lshrrev_b32 v{X+4}, 9, v{X+4}')
    e.e(f'v_mul_u32_u24 v{X+5}, 18, v{X+4}'); e.e(f'v_add_u32 v{X+5}, v{X+5}, v{X+1}')
    e.e(f'v_lshl_add_u32 v{X+5}, v{X+5}, 8, v{X+2}'); e.e(f'v_add_u32 v{X+5}, {OWN}, v{X+5}')
    e.e(f'v_mul_u32_u24 v{X+6}, 9, v{X+4}'); e.e(f'v_sub_u32 v{X+1}, v{X+1}, v{X+6}')
    e.e(f'v_mul_u32_u24 v{X+4}, 48, v{X+4}'); e.e(f'v_and_b32 v{X+6}, 3, v{X}'); e.e(f'v_add_u32 v{X+4}, v{X+4}, v{X+6}')
    e.e(f'v_mul_u32_u24 v{X+4}, 1152, v{X+4}'); e.e(f'v_lshl_add_u32 v{X+4}, v{X+1}, 5, v{X+4}')
    e.e(f'v_bfe_u32 v{X+6}, v{X}, 2, 2'); e.e(f'v_lshl_add_u32 v{X+4}, v{X+6}, 3, v{X+4}')
    e.e(f'v_cndmask_b32 v{X+4}, v{X+7}, v{X+4}, vcc')
    for i in range(3):
        e.e(f's_add_u32 s{48+i}, s47, {i+1}'); e.e(f's_and_b32 s{48+i}, s{48+i}, 3'); e.e(f's_mul_i32 s{48+i}, s{48+i}, {INB}')
    e.e('s_mov_b32 s44, 18432'); e.e('s_mov_b32 s45, 36864'); e.e('s_mov_b32 s39, 0xffff0000')
    e.e('s_waitcnt lgkmcnt(0)')
    e.e('s_barrier')
    stamp(e, 8)
    e.e('s_cmp_ge_u32 s42, 5')
    e.e('s_cbranch_scc1 OP_DONE')
    R0 = 140; OW = 64
    for j in range(3): e.e(f'ds_read_b128 {q4(OW+4*j)}, v{X+5} offset:{j*2304}', ('ow',))
    loads = '\n'.join(f'buffer_load_dwordx4 {q4(R0+8*src+4*hf)}, v{X+3}, {srd(S_PI)}, s{48+src} offen offset:{hf*256} sc1' for src in range(3) for hf in range(2))
    chk = [f'v_xor_b32 v{X+6}, s98, v{R0+3}']
    for k in range(1, 6):
        chk += [f'v_xor_b32 v{X+7}, s98, v{R0+4*k+3}', f'v_or_b32 v{X+6}, v{X+6}, v{X+7}']
    chk.append(f'v_cmp_ne_u32 vcc, 0, v{X+6}')
    poll(e, 'OP_P2', loads, '\n'.join(chk))
    stamp(e, 9)
    e.e(f'v_mov_b32 v{VT+1}, s97')
    e.e(f'buffer_store_dword v{VT+1}, v{VT}, {srd(S_F)}, s96 offen sc1', ('ep',))
    e.e('s_waitcnt lgkmcnt(0)')
    so = ['0', 's44', 's45']
    for j in range(3):
        for p in range(2):
            x = 2 * j + p
            for src in range(3):
                r = R0 + 8 * src + 4 * (x // 3) + x % 3
                e.e(f'v_lshlrev_b32 v{X+6}, 16, v{r}'); e.e(f'v_and_b32 v{X+7}, s39, v{r}')
                e.e(f'v_add_f32 v{OW+2*x}, v{OW+2*x}, v{X+6}'); e.e(f'v_add_f32 v{OW+2*x+1}, v{OW+2*x+1}, v{X+7}')
            e.e(f'v_cvt_pk_bf16_f32 v{OW+16+x}, v{OW+2*x}, v{OW+2*x+1}')
        e.e(f'buffer_store_dwordx2 {q2(OW+16+2*j)}, v{X+4}, {srd(S_OUT)}, {so[j]} offen')
    e.e('OP_DONE:')
    if STAMP:
        if not OPT.get('rt4'): stamp(e, 10)
        dump_stamps(e)
    e.e('K1_END:' if FUSED else 'K2_END:')
    e.e('s_endpgm')
    return b, lp, lq, e

def kernel1():
    ctx = MCtx(8)
    pro = k1_prologue(ctx)
    qp = k1_qproj(ctx)
    ap = k1_att_prologue(ctx)
    p1 = pv_phase(ctx, 'P1', SA, SB, head=lambda a: a.e('K1_LOOP:'), dma=guarded(dma_v, 0))
    SK2 = int(OPT.get('sk2', 2))
    p2 = qk_phase(ctx, 'P2', SA, SB, guarded(dma_k, 0) if KVREG else dma_k)
    p3 = pv_phase(ctx, 'P3', SB, SA, dma=guarded(dma_v, SK2) if KVREG else dma_v)
    p4 = qk_phase(ctx, 'P4', SB, SA, guarded(dma_k, SK2) if KVREG else dma_k)
    p4[2].e('s_add_u32 s44, s44, 1')
    p4[2].e('s_cmp_lt_u32 s44, 7')
    p4[2].e('s_cbranch_scc1 K1_LOOP')
    def warm(b):
        b.e(f'v_lshrrev_b32 v{KR}, 6, v{VL16}'); b.e(f'v_mul_u32_u24 v{KR}, 1152, v{KR}')
        b.e(f'v_and_b32 v{KR+1}, 48, v{VL16}'); b.e(f'v_lshlrev_b32 v{KR+1}, 3, v{KR+1}'); b.e(f'v_min_u32 v{KR+1}, 316, v{KR+1}')
        b.e(f'v_add_u32 v{KR}, v{KR}, v{KR+1}')
        b.e(f'buffer_load_dword v{KR+1}, v{KR}, s[28:31], 0 offen', ('warm',))
        b.e(f'v_and_b32 v{KR+2}, 0x70, v{VL16}'); b.e(f'v_lshlrev_b32 v{KR+2}, 3, v{KR+2}')
        b.e('s_and_b32 s55, s90, 0xfffffc00')
        b.e(f'buffer_load_dword v{KR+3}, v{KR+2}, {srd(S_F)}, s55 offen offset:4 sc1', ('ids',))
    l1 = pv_phase(ctx, 'L1', SA, SB, nextK=False, dma=warm if (FUSED and WARM) else None)
    l2 = Block(ctx, 'L2')
    l2.e('s_waitcnt vmcnt(0)')
    l2.e('s_barrier')
    if OPT.get('l2s'): stamp(l2, 2)
    for t in range(4): vread(l2, t)
    if FUSED:
        l2.e(f'v_cmp_ne_u32 vcc, s99, v{KR+3}')
        l2.e('s_cmp_eq_u64 vcc, 0')
        l2.e(f's_cselect_b32 s53, {FAST}, 0')
    run(l2, sm_fillers(SB)[SM_SPLIT:] + chk_fillers())
    l2.e('s_cbranch_vccnz L2_RARE')
    l2r = rare_path(ctx, 'L2', SB, None, 2)
    l3 = pv_phase(ctx, 'L3', SB, None, nextK=False, bar=False, head=lambda a: a.e('L2_JOIN:'), extra=tail_setup() if FUSED else ())
    l3.e('s_nop 7')
    ep = k1_epilogue(ctx)
    errs = []
    body = [p1, p2[0], p2[2], p3, p4[0], p4[2]]
    bodyr = [p1, p2[0], p2[1], p2[2], p3, p4[0], p4[1], p4[2]]
    last = [l1, l2, l3, ep]
    lastr = [l1, l2, l2r, l3, ep]
    tail = list(oproj(ctx)) if FUSED else []
    ttr = [tail[0], tail[1], tail[1], tail[2], tail[3]] if FUSED else []
    for r in ALLW:
        errs += check_trace([pro, qp, ap] + body + body + last + ttr, f'main{r}', r)
        errs += check_trace([pro, qp, ap] + bodyr + bodyr + body + lastr, f'rare{r}', r)
    if NOCOMP:
        for blk in body:
            keep = [i for i in blk if i.kind not in ('mfma', 'valu', 'trans') and not (NOCOMP > 1 and i.kind == 'ds') and 'vccnz' not in i.text]
            blk[:] = keep
        errs = []
    DROP = OPT.get('drop', '')
    if DROP:
        D = DROP.split(',')
        def dropit(i):
            t = i.text
            if 'vccnz' in t: return True
            if 'exp' in D and t.startswith('v_exp'): return True
            if 'add' in D and t.startswith('v_add_f32'): return True
            if 'cvt' in D and t.startswith('v_cvt'): return True
            if 'ds' in D and i.kind == 'ds': return True
            if 'wait' in D and i.kind == 'wait': return True
            if 'bar' in D and i.kind == 'barrier': return True
            if 'adv' in D and (t.startswith('v_add_u32') or t.startswith('s_cmp_ge') or t.startswith('s_cselect') or t.startswith('s_add_u32 s45') or t.startswith('s_add_u32 s46')): return True
            if 'mfma' in D and i.kind == 'mfma': return True
            return False
        for blk in body: blk[:] = [i for i in blk if not dropit(i)]
        errs = []
    order = [pro, qp, ap] + body + last + tail + [p2[1], p4[1], l2r]
    return order, errs

def kernel2():
    ctx = MCtx(8)
    b = Block(ctx, 'k2')
    b.e('s_cmp_ge_u32 s2, 256')
    b.e('s_cbranch_scc1 K2_END')
    b.e('s_load_dwordx8 s[12:19], s[0:1], 32')
    if STAMP:
        for i in range(6): b.e(f's_memtime s[{64+2*i}:{65+2*i}]')
        b.e('s_memrealtime s[86:87]')
    b.e('v_lshrrev_b32 v1, 6, v0')
    b.e('v_and_b32 v0, 63, v0')
    b.e('v_readfirstlane_b32 s42, v1')
    b.e('s_and_b32 s43, s2, 7'); b.e('s_lshr_b32 s44, s2, 3')
    b.e('s_and_b32 s40, s43, 1'); b.e('s_lshl_b32 s40, s40, 2'); b.e('s_and_b32 s45, s44, 3'); b.e('s_add_u32 s40, s40, s45')
    b.e('s_lshr_b32 s41, s43, 1'); b.e('s_lshl_b32 s41, s41, 3'); b.e('s_lshr_b32 s46, s44, 2'); b.e('s_add_u32 s41, s41, s46')
    b.e(f'v_lshlrev_b32 v{VL16}, 4, v0')
    b.e('s_waitcnt lgkmcnt(0)')
    flag_srd(b)
    epoch_load(b, 222)
    b.e('s_waitcnt vmcnt(0)')
    epoch_tags(b, 222)
    run(b, tail_setup())
    t = oproj(ctx)
    errs = []
    for r in ALLW: errs += check_trace([b, t[0], t[1], t[1], t[2], t[2], t[3]], f'k2_{r}', r)
    return [b] + list(t), errs

HEADER = open('standalone__mha_block_cached__near_ridge.s.ref').read().split('; Override')[0]

def kd(name, vgpr, sgpr=96):
    return f'''.amdhsa_kernel {name}
  .amdhsa_next_free_vgpr {vgpr}
  .amdhsa_next_free_sgpr {sgpr}
  .amdhsa_accum_offset {(vgpr+3)//4*4}
  .amdhsa_group_segment_fixed_size 0
  .amdhsa_kernarg_size 64
  .amdhsa_user_sgpr_count 2
  .amdhsa_user_sgpr_kernarg_segment_ptr 1
  .amdhsa_system_sgpr_workgroup_id_x 1
.end_amdhsa_kernel
'''

def main():
    k1, e1 = kernel1()
    k2, e2 = kernel2() if not FUSED else ([], [])
    for e in list(dict.fromkeys(x.split('] ', 1)[1] for x in e1 + e2))[:12]: print('CHECK', e, file=sys.stderr)
    out = HEADER
    if FUSED:
        N = 'standalone__mha_block_cached__near_ridge_kernel'
        out += f'; @launch grid=(256,1,1) block=(512,1,1) lds={LDS_TOT}\n'
        ks = [(N, k1)]
    else:
        out += f'; @launch kernel=mha_attn_kernel grid=(256,1,1) block=(512,1,1) lds={LDS_TOT}\n'
        out += f'; @launch kernel=mha_oproj_kernel grid=(256,1,1) block=(512,1,1) lds={LDS_TOT}\n'
        ks = [('mha_attn_kernel', k1), ('mha_oproj_kernel', k2)]
    out += '.amdgcn_target "amdgcn-amd-amdhsa--gfx950"\n.text\n'
    for name, blocks in ks:
        out += f'.globl {name}\n.p2align 8\n.type {name},@function\n{name}:\n'
        out += '\n'.join(b.text() for b in blocks) + '\n'
    out += '.section .rodata,"a"\n'
    for name, _ in ks: out += '.p2align 6\n' + kd(name, 256, 102)
    open(sys.argv[1], 'w').write(out)
    if e1 or e2: sys.exit(1)
main()
```

```python
import sys, struct, math
from asmlib import *

OPT = dict(a.split('=') for a in sys.argv[2:] if '=' in a)
STAMP = int(OPT.get('stamp', 0))
KVPOL = OPT.get('kvpol', 'nt')
XPOL = OPT.get('xpol', '')
WPOL = OPT.get('wpol', '')
OSTPOL = OPT.get('ostpol', 'sc1' if OPT.get('fused', '1') == '1' else '')
OLDPOL = OPT.get('oldpol', '')
WOPOL = OPT.get('wopol', '')
THR = float(OPT.get('thr', 2048.0))
NOBARQK = int(OPT.get('nobarqk', 1))
SKIPT = int(OPT.get('skipt', 0))
STAG = int(OPT.get('stag', 0))
ROT = int(OPT.get('rot', 1))
ROT2 = int(OPT.get('rot2', 1))
SM_SPLIT = int(OPT.get('split', 24))
CHK_AT = int(OPT.get('chk', 8))
PRIO = int(OPT.get('prio', 0))
K2D = int(OPT.get('k2d', 4))
NODMA = int(OPT.get('nodma', 0))
NOCOMP = int(OPT.get('nocomp', 0))
NOKVQ = int(OPT.get('nokvq', 0))
FUSED = int(OPT.get('fused', 1))
OLD2 = OPT.get('old2', 'sc1')
SLEEP = int(OPT.get('sleep', 1))
F1POL = OPT.get('f1pol', 'sc1')
WOPRE = int(OPT.get('wopre', 5))
TOUCH = int(OPT.get('touch', 0))
WOEARLY = int(OPT.get('woearly', 0))
WARM = int(OPT.get('warm', 1))
FAST = int(OPT.get('fast', 0))
PAIRW = int(OPT.get('pairw', 1))
KVREG = int(OPT.get('kvreg', 0))
KV1 = int(OPT.get('kv1', 1))
NC = int(OPT.get('nc', 1))
NOX = int(OPT.get('nox', 0))
NOWQ = int(OPT.get('nowq', 0))
MAP = OPT.get('map', '4x8')
KVSCHED = [int(x) for x in OPT.get('kvs', '0,2,3,5,6,8,9,11,12,14').split(',') if x]

def f2u(f): return struct.unpack('<I', struct.pack('<f', f))[0]
SCALE = math.log2(math.e) / math.sqrt(128.0)
MF = 'v_mfma_f32_16x16x32_bf16'
def q4(n): return f'v[{n}:{n+3}]'
def q2(n): return f'v[{n}:{n+1}]'

ACC = 0; QF = 96; SA = 144; SB = 168; KR = 192; VR = 208; NEGM = 224
TMP = 236; VK = 248; VVE = 249; VVO = 250; LS = 251; VL16 = 254; VKV = 255
RING = 10; CH = 16384; LDS_TOT = RING * CH
QB = 114688
SLOT = 40960
S_K, S_V, S_X, S_WQ, S_O = 20, 24, 28, 32, 36
FS = 96
VXD = 208; VWD = 211; VXR = 213; VAE = 215; VAO = 217; VQE = 219; VQO = 220; VQR = 221; VKW = 244
def srd(n): return f's[{n}:{n+3}]'
def acc(t, jt): return ACC + 12 * t + 4 * jt
def qf(s, jt): return QF + 12 * s + 4 * jt
def st(S, kt, jt): return S + 12 * kt + 4 * jt
ALLW = list(range(8))
A, B = (0, 1, 2, 3), (4, 5, 6, 7)

TST = int(OPT.get('tst', 0))
def stamp(b, idx, fine=False, it=False):
    if TST == 2:
        if it or idx in (0, 4): b.e(f's_memtime s[{64+2*idx}:{65+2*idx}]')
        return
    if it: return
    if TST and idx in (1, 2, 3) and not fine: return
    if fine and not TST: return
    if STAMP: b.e(f's_memtime s[{64+2*idx}:{65+2*idx}]')

class role:
    n = 0
    def __init__(self, b, waves): self.b, self.w = b, list(waves)
    def __enter__(self):
        role.n += 1; self.l = f'RL{role.n}'
        self.b.e(f's_bitcmp1_b32 {sum(1 << w for w in self.w)}, s42')
        self.b.e(f's_cbranch_scc0 {self.l}')
        self.b.ctx.active = self.w
    def __exit__(self, *a):
        self.b.ctx.active = ALLW
        self.b.e(f'{self.l}:')

def E(text, tag=None): return lambda b: b.e(text, tag)
def run(b, lst):
    for f in lst: f(b)

def chunk_of(n):
    if n == 0: return ('K', 0)
    if n % 2 == 1: return ('K', (n + 1) // 2)
    return ('V', (n - 2) // 2)

def k1_prologue(ctx):
    b = Block(ctx, 'k1_pro')
    b.e('s_cmp_ge_u32 s2, 256')
    b.e('s_cbranch_scc1 K1_END')
    b.e('s_load_dwordx8 s[4:11], s[0:1], 0')
    b.e('s_load_dwordx8 s[12:19], s[0:1], 32')
    if STAMP:
        b.e('s_memtime s[64:65]')
        b.e('s_memrealtime s[86:87]')
    b.e('v_lshrrev_b32 v1, 6, v0')
    b.e('v_and_b32 v0, 63, v0')
    b.e('v_readfirstlane_b32 s42, v1')
    b.e('s_and_b32 s43, s2, 7')
    b.e('s_lshr_b32 s44, s2, 3')
    nb = int(MAP.split('x')[0]); lb = nb.bit_length() - 1
    nh = 32 // nb; xb = 8 // nb
    b.e(f's_and_b32 s40, s43, {xb - 1}')
    b.e(f's_lshl_b32 s40, s40, {lb}')
    b.e(f's_and_b32 s45, s44, {nb - 1}')
    b.e('s_add_u32 s40, s40, s45')
    b.e(f's_lshr_b32 s41, s43, {xb.bit_length() - 1}')
    b.e(f's_lshl_b32 s41, s41, {nh.bit_length() - 1}')
    b.e(f's_lshr_b32 s46, s44, {lb}')
    b.e('s_add_u32 s41, s41, s46')
    m = max(nb, nh)
    b.e(f's_mul_i32 s45, s45, {32 // nb}')
    b.e(f's_mul_i32 s46, s46, {32 // nh}')
    b.e('s_add_u32 s45, s45, s46')
    b.e('s_and_b32 s45, s45, 31')
    b.e(f's_mul_i32 s45, s45, {9 - NC}')
    b.e('s_lshr_b32 s45, s45, 5')
    b.e(f's_add_u32 s45, s45, {NC}')
    b.e('s_lshl_b32 s100, s45, 7')
    b.e('s_lshl_b32 s101, s45, 19')
    b.e('s_mov_b32 s57, 0' if NC else 's_mov_b32 s57, s100')
    b.e('s_mov_b32 s58, 0' if NC else 's_mov_b32 s58, s101')
    b.e('s_lshl_b32 s45, s40, 5')
    b.e('s_add_u32 s45, s45, s41')
    b.e('s_lshl_b32 s45, s45, 18')
    b.e('s_mul_i32 s46, s40, 221184')
    b.e('s_lshl_b32 s47, s41, 8')
    b.e('s_mul_i32 s48, s40, 1572864')
    b.e('s_and_b32 s53, s42, 3')
    b.e('s_lshr_b32 s54, s42, 2')
    b.e('v_bfe_u32 v4, v0, 2, 3')
    b.e('v_lshrrev_b32 v5, 5, v0')
    b.e('v_and_b32 v3, 3, v0')
    b.e('v_lshrrev_b32 v7, 2, v4')
    b.e('v_lshlrev_b32 v8, 1, v7')
    b.e('v_xor_b32 v6, v3, v8')
    b.e('v_lshlrev_b32 v6, 4, v6')
    b.e('v_lshl_add_u32 v6, v5, 6, v6')
    b.e('s_lshr_b32 s43, s53, 1')
    b.e('s_and_b32 s44, s42, 1')
    b.e('v_and_b32 v9, 3, v4')
    b.e('v_lshl_add_u32 v9, v7, 3, v9')
    b.e('s_lshl_b32 s55, s43, 4')
    b.e('s_lshl_b32 s62, s54, 2')
    b.e('s_add_u32 s55, s55, s62')
    b.e('v_add_u32 v9, s55, v9')
    b.e('v_lshl_add_u32 v9, v9, 13, v6')
    b.e('s_lshl_b32 s55, s44, 7')
    b.e(f'v_add_u32 v{VWD}, s55, v9')
    b.e(f'v_add_u32 v{VWD+1}, {32*8192-1024}, v{VWD}')
    b.e('s_lshl_b32 s60, s42, 11')
    b.e('s_mul_i32 s63, s42, 3')
    for i in range(3):
        b.e(f's_add_u32 s62, s63, {i}')
        b.e('s_and_b32 s56, s62, 1')
        b.e('s_lshl_b32 s56, s56, 3')
        b.e('s_add_u32 s56, s56, 12')
        b.e('s_lshr_b32 s62, s62, 1')
        b.e('s_lshl_b32 s62, s62, 4')
        b.e('v_add_u32 v9, s56, v4')
        b.e('v_and_b32 v9, 15, v9')
        b.e('v_add_u32 v9, s62, v9')
        b.e('v_mul_u32_u24 v9, 1152, v9')
        b.e('v_add_u32 v9, v9, v6')
        if i: b.e(f'v_subrev_u32 v{VXD+i}, {i*1024}, v9')
        else: b.e(f'v_mov_b32 v{VXD}, v9')
    b.e('s_lshl_b32 s59, s63, 10')
    b.e('s_add_u32 s59, s59, 16384')
    b.e('s_waitcnt lgkmcnt(0)')
    b.e(f's_add_u32 s{S_X}, s4, s46');  b.e(f's_addc_u32 s{S_X+1}, s5, 0')
    b.e(f's_mov_b32 s{S_X+2}, 221184'); b.e(f's_mov_b32 s{S_X+3}, 0x20000')
    b.e(f's_add_u32 s{S_WQ}, s10, s47'); b.e(f's_addc_u32 s{S_WQ+1}, s11, 0')
    b.e(f's_sub_u32 s{S_WQ+2}, 4718592, s47'); b.e(f's_mov_b32 s{S_WQ+3}, 0x20000')
    b.e(f's_add_u32 s{S_K}, s6, s45');  b.e(f's_addc_u32 s{S_K+1}, s7, 0')
    b.e(f's_mov_b32 s{S_K+2}, 262144'); b.e(f's_mov_b32 s{S_K+3}, 0x20000')
    b.e(f's_add_u32 s{S_V}, s8, s45');  b.e(f's_addc_u32 s{S_V+1}, s9, 0')
    b.e(f's_mov_b32 s{S_V+2}, 262144'); b.e(f's_mov_b32 s{S_V+3}, 0x20000')
    b.e(f's_add_u32 s{S_O}, s18, s48'); b.e(f's_addc_u32 s{S_O+1}, s19, 0')
    b.e(f's_mov_b32 s{S_O+2}, 1572864'); b.e(f's_mov_b32 s{S_O+3}, 0x20000')
    return b

RC = 1
def slot(n): return ((n + RC) % RING) * CH

def qslot(D): return ((D + 3) % 4) * SLOT

def qnext(b, D):
    if D + 1 == NC:
        b.e('s_mov_b32 s57, s100'); b.e('s_mov_b32 s58, s101')
    else:
        b.e('s_cmp_eq_u32 s61, 1152')
        b.e(f's_cselect_b32 s57, {NC*128}, s61')
        b.e(f's_cselect_b32 s58, {NC*524288}, s58')

def qdma_parts(D):
    P = []
    P.append(lambda b: (b.e(f's_add_u32 m0, s60, {qslot(D)}'), b.e('s_add_u32 s61, s57, 128'),
                        b.e(f'buffer_load_dwordx4 v{VWD}, {srd(S_WQ)}, s58 offen {WPOL} lds', ('q', D))))
    P.append(lambda b: (b.e(f'buffer_load_dwordx4 v{VWD+1}, {srd(S_WQ)}, s58 offen offset:1024 {WPOL} lds', ('q', D)),
                        b.e(f's_add_u32 m0, s59, {qslot(D)}'), b.e('s_add_u32 s58, s58, 524288')))
    for i in range(2): P.append(E(f'buffer_load_dwordx4 v{VXD+i}, {srd(S_X)}, s57 offen offset:{i*1024} {XPOL} lds', ('q', D)))
    P.append(lambda b: (b.e(f'buffer_load_dwordx4 v{VXD+2}, {srd(S_X)}, s57 offen offset:2048 {XPOL} lds', ('q', D)),
                        qnext(b, D)))
    return P

def qdma(b, D):
    b.e(f's_add_u32 m0, s60, {qslot(D)}')
    b.e('s_add_u32 s61, s57, 128')
    for h in range(0 if NOWQ else 2):
        b.e(f'buffer_load_dwordx4 v{VWD+h}, {srd(S_WQ)}, s58 offen offset:{h*1024} {WPOL} lds', ('q', D))
    b.e(f's_add_u32 m0, s59, {qslot(D)}')
    b.e('s_add_u32 s58, s58, 524288')
    for i in range(0 if NOX else 3):
        b.e(f'buffer_load_dwordx4 v{VXD+i}, {srd(S_X)}, s57 offen offset:{i*1024} {XPOL} lds', ('q', D))
    qnext(b, D)

def kvpair_static(b, n):
    c = chunk_of(n)
    S = S_K if c[0] == 'K' else S_V
    b.e(f's_add_u32 m0, s52, {slot(n)}')
    b.e(f's_mov_b32 s56, {c[1] * CH}')
    b.e(f'buffer_load_dwordx4 v{VKV}, {srd(S)}, s56 offen {KVPOL} lds', ('kv', n))
    b.e(f'buffer_load_dwordx4 v{VKV}, {srd(S)}, s56 offen offset:2048 {KVPOL} lds', ('kv', n))

POFF = 0x2000000; FOFF = 0x3000000; INB = 9216
S_F = 92
def flag_srd(b):
    b.e(f's_add_u32 s{S_F}, s18, {FOFF}'); b.e(f's_addc_u32 s{S_F+1}, s19, 0')
    b.e(f's_mov_b32 s{S_F+2}, {32768+1024}'); b.e(f's_mov_b32 s{S_F+3}, 0x20000')
    b.e('s_lshl_b32 s90, s40, 5'); b.e('s_add_u32 s90, s90, s41'); b.e('s_lshl_b32 s90, s90, 7')
    b.e('s_lshl_b32 s96, s40, 7'); b.e('s_add_u32 s96, s96, 32768')

def epoch_load(b, v):
    b.e(f'v_mov_b32 v{v}, 0')
    b.e(f'buffer_load_dword v{v+1}, v{v}, {srd(S_F)}, s96 offen sc1', ('ep',))

def epoch_tags(b, v):
    b.e(f'v_readfirstlane_b32 s97, v{v+1}')
    b.e('s_nop 0')
    b.e('s_mul_i32 s97, s97, 0x9e3779b1')
    b.e('s_add_u32 s97, s97, 0x7f4a7c15')
    b.e('s_xor_b32 s98, s97, 0x80000000')

def one_lane(b, v):
    b.e(f's_lshl_b32 s91, s42, 6')
    b.e(f'v_add_u32 v{v}, s91, v0')
    b.e(f'v_lshlrev_b32 v{v}, 20, v{v}')

def kvreg_of(n): return 48 + 8 * n if n < 6 else 224 + 8 * (n - 6)
def kv_to_regs(b, n):
    c = chunk_of(n)
    S = S_K if c[0] == 'K' else S_V
    r = kvreg_of(n)
    b.e(f's_mov_b32 s56, {c[1] * CH}')
    b.e(f'buffer_load_dwordx4 {q4(r)}, v{VKV}, {srd(S)}, s56 offen {KVPOL}', ('kv', n))
    b.e(f'buffer_load_dwordx4 {q4(r+4)}, v{VKV}, {srd(S)}, s56 offen offset:2048 {KVPOL}', ('kv', n))
def kv_to_lds(n):
    r = kvreg_of(n)
    o = slot(n) % 65536
    v = VKW + slot(n) // 65536
    return [lambda b: (b.wait_vm(('kv', n)), b.e(f'ds_write_b128 v{v}, {q4(r)} offset:{o}', ('kw',))),
            E(f'ds_write_b128 v{v}, {q4(r+4)} offset:{o+2048}', ('kw',))]

def k1_qproj(ctx):
    b = Block(ctx, 'qproj')
    flag_srd(b)
    if FUSED: epoch_load(b, 222)
    qdma(b, 0)
    b.e('v_lshl_add_u32 v9, v4, 8, v6')
    b.e('s_lshl_b32 s46, s43, 12')
    b.e('s_lshl_b32 s47, s54, 13')
    b.e('s_add_u32 s46, s46, s47')
    b.e('s_add_u32 s45, s55, s46')
    b.e(f'v_add_u32 v{VKV}, s45, v9')
    b.e('s_lshl_b32 s47, s44, 10')
    b.e('s_add_u32 s52, s46, s47')
    qdma(b, 1)
    b.e('v_lshrrev_b32 v10, 4, v0')
    b.e('v_and_b32 v6, 15, v0')
    b.e('v_lshrrev_b32 v7, 2, v6')
    b.e('v_and_b32 v8, 1, v10')
    b.e('v_lshl_add_u32 v5, v8, 2, v7')
    b.e('v_lshlrev_b32 v5, 6, v5')
    b.e('v_lshl_add_u32 v5, v8, 5, v5')
    b.e('v_lshl_add_u32 v5, v3, 3, v5')
    b.e('v_lshrrev_b32 v9, 1, v10')
    b.e('v_lshl_add_u32 v5, v9, 12, v5')
    b.e('s_lshl_b32 s45, s54, 11')
    b.e(f'v_add_u32 v{VAE}, s45, v5')
    b.e(f'v_add_u32 v{VAE+1}, {2*SLOT}, v{VAE}')
    b.e(f'v_xor_b32 v{VAO}, 32, v{VAE}')
    b.e(f'v_xor_b32 v{VAO+1}, 32, v{VAE+1}')
    b.e('v_add_u32 v5, 4, v6')
    b.e('v_bfe_u32 v11, v5, 3, 1')
    b.e('v_and_b32 v12, 7, v5')
    b.e('v_lshrrev_b32 v13, 2, v12')
    b.e('v_lshlrev_b32 v13, 1, v13')
    b.e('v_lshlrev_b32 v14, 6, v12')
    b.e('v_xor_b32 v15, v13, v10')
    b.e('v_lshl_add_u32 v15, v15, 4, v14')
    b.e('s_mul_i32 s46, s53, 6144')
    b.e('s_add_u32 s46, s46, 16384')
    b.e('v_lshl_add_u32 v5, v11, 10, v15')
    b.e(f'v_add_u32 v{VXR}, s46, v5')
    b.e(f'v_add_u32 v{VXR+1}, {2*SLOT}, v{VXR}')
    b.e('v_lshl_add_u32 v15, v11, 11, v15')
    b.e('v_lshl_add_u32 v14, v11, 11, v14')
    b.e('s_lshl_b32 s47, s54, 13')
    b.e(f'v_add_u32 v{VK}, s47, v15')
    b.e(f'v_add_u32 v{VK}, {slot(0)}, v{VK}')
    b.e('s_mul_i32 s46, s53, 12288')
    b.e(f's_add_u32 s46, s46, {QB}')
    b.e(f'v_add_u32 v{VQR}, s46, v15')
    b.e('v_xor_b32 v15, v13, v9')
    b.e('v_lshl_add_u32 v15, v15, 4, v14')
    b.e('v_lshl_add_u32 v15, v8, 3, v15')
    b.e('s_lshl_b32 s45, s54, 10')
    b.e('s_add_u32 s46, s46, s45')
    b.e(f'v_add_u32 v{VQE}, s46, v15')
    b.e(f'v_xor_b32 v{VQO}, 32, v{VQE}')
    b.e('v_add_u32 v5, 1, v10')
    b.e('v_bfe_u32 v11, v5, 1, 1')
    b.e('v_and_b32 v12, 1, v5')
    b.e('v_lshl_add_u32 v13, v12, 2, v7')
    b.e('v_lshlrev_b32 v13, 6, v13')
    b.e('v_lshl_add_u32 v13, v12, 5, v13')
    b.e('v_lshl_add_u32 v13, v3, 3, v13')
    b.e('v_lshl_add_u32 v13, v11, 11, v13')
    b.e(f's_add_u32 s47, s47, {slot(2)}')
    b.e(f'v_add_u32 v{VVE}, s47, v13')
    b.e(f'v_xor_b32 v{VVO}, 32, v{VVE}')
    b.e(f'v_lshlrev_b32 v{VL16}, 4, v0')
    b.e(f'v_add_u32 v{VKW}, s52, v{VL16}')
    b.e(f'v_add_u32 v{VKW+1}, 65536, v{VKW}')
    b.e(f'v_add_u32 v{VKW+2}, 131072, v{VKW}')
    b.e(f's_mov_b32 s48, {hex(f2u(SCALE))}')
    b.e(f's_mov_b32 s50, {(2*CH - LDS_TOT) & 0xffffffff}')
    b.e(f's_mov_b32 s51, {2*CH}')
    b.e(f's_mov_b32 s46, {slot(2)}')
    def fA(D, h, tt): return FS + 56 * (D % 2) + 28 * h + 4 * tt
    def fB(D, h, jt): return FS + 56 * (D % 2) + 28 * h + 16 + 4 * jt
    def reads(D):
        sl = ((D + 3) % 4); hi = sl // 2; o = (sl % 2) * SLOT
        r = []
        for h in range(2):
            for jt in range(3):
                r.append(E(f'ds_read_b128 {q4(fB(D,h,jt))}, v{VXR+hi} offset:{o + jt*2048 + h*512}', ('f', D)))
            for tt in range(4):
                for u in range(2):
                    r.append(E(f'ds_read_b64_tr_b16 {q2(fA(D,h,tt)+2*u)}, v{(VAO if tt%2 else VAE)+hi} offset:{o + u*8192 + h*1024 + (tt//2)*512}', ('f', D)))
        return r
    zero = [E(f'v_mov_b32 v{i}, 0') for i in range(48, 96)] + [E(f'v_mov_b32 v{LS+i}, 0') for i in range(3)]
    b.wait_vm(('q', 0))
    b.e('s_barrier')
    stamp(b, 1)
    run(b, reads(0))
    if FUSED:
        epoch_tags(b, 222)
    qdma(b, 2)
    issue = {0: [3, 4], 1: [5], 2: [6], 3: [7], 4: [8]}
    kvi = {5: [0], 6: [1, 2], 7: [3], 8: [4]}
    kvr = {}; kvw = {}
    if KVREG == 2:
        kvr = {4: [0, 1], 5: [2]}; kvw = {6: [0, 1, 2]}; kvi = {6: [3], 7: [4], 8: [5]}
    if KVREG == 1:
        kvi = {}
        kvr = {KV1 + i: [i] for i in range(6)} if KV1 + 5 <= 6 else {2: [0], 3: [1], 4: [2], 5: [3], 6: [4, 5]}
        kvr[7] = [6]; kvr[8] = [7]
        kvw = {6: [0, 1, 2, 3], 7: [4, 5]}
    for D in range(9):
        b.e('s_waitcnt lgkmcnt(0)')
        if D + 1 < 9: b.wait_vm(('q', D + 1))
        b.e('s_barrier')
        dm = [(lambda b, x=x: qdma(b, x)) for x in issue.get(D, [])] + [(lambda b, x=x: kvpair_static(b, x)) for x in kvi.get(D, [])]
        dm += [(lambda b, x=x: kv_to_regs(b, x)) for x in kvr.get(D, [])]
        wr = sum((kv_to_lds(x) for x in kvw.get(D, [])), [])
        if KVREG == 2: zs = zero[24 + 5 * D:29 + 5 * D] if D < 6 else {7: zero[:24]}.get(D, [])
        elif KVREG: zs = {7: zero[:32] + zero[48:], 8: zero[32:48]}.get(D, [])
        else: zs = zero[7 * D:7 * D + 7]
        mf = []
        if D < 8:
            for h in range(2):
                for tt in range(4):
                    for jt in range(3):
                        d = q4(acc(tt, jt))
                        mf.append(E(f'{MF} {d}, {q4(fA(D,h,tt))}, {q4(fB(D,h,jt))}, {"0" if D == 0 and h == 0 else d}'))
            rd = reads(D + 1)
            fill = []
            QS = int(OPT.get('qs', 1))
            if QS:
                dm = sum((qdma_parts(x) for x in issue.get(D, [])), []) + dm[len(issue.get(D, [])):]
                step = max(1, len(rd) // max(1, len(dm)))
                for k, x in enumerate(rd):
                    fill.append(x)
                    if dm and k % step == step - 1: fill.append(dm.pop(0))
                fill += dm; dm = []
            for k, x in enumerate(rd if not QS else []):
                fill.append(x)
                if dm and k % 6 == 1: fill.append(dm.pop(0))
            assert not dm
            run(b, interleave(mf, wr + fill + zs, end=int(OPT.get('qe', 21)) + (2 if len(zs) > 8 else 0)))
        else:
            tiles = [(tt, jt) for tt in range(4) for jt in range(3)]
            def conv(tt, jt):
                a = acc(tt, jt)
                return [E(f'v_mul_f32 v{a+i}, s48, v{a+i}') for i in range(4)] + [
                    E(f'v_cvt_pk_bf16_f32 v{a}, v{a}, v{a+1}'), E(f'v_cvt_pk_bf16_f32 v{a+1}, v{a+2}, v{a+3}'),
                    E(f'ds_write_b64 v{VQO if tt%2 else VQE}, {q2(a)} offset:{jt*4096 + (tt//2)*512}', ('qw',))]
            LAG = 3
            run(b, dm)
            run(b, zs)
            for k, (tt, jt) in enumerate(tiles):
                d = q4(acc(tt, jt))
                cv = conv(*tiles[k - LAG]) if k >= LAG else []
                if k == LAG: b.e('s_nop 2')
                b.e(f'{MF} {d}, {q4(fA(D,0,tt))}, {q4(fB(D,0,jt))}, {d}')
                run(b, cv[:3])
                b.e(f'{MF} {d}, {q4(fA(D,1,tt))}, {q4(fB(D,1,jt))}, {d}')
                run(b, cv[3:])
            stamp(b, 2)
            for k in range(12 - LAG, 12):
                if k == 11: b.e('s_nop 0')
                run(b, conv(*tiles[k]))
    b.e('s_waitcnt lgkmcnt(0)')
    if not KVREG: b.wait_vm(('kv', 1))
    b.e('s_barrier')
    if not KVREG: kvpair_static(b, 5)
    for s in range(4):
        for jt in range(3):
            b.e(f'ds_read_b128 {q4(qf(s,jt))}, v{VQR} offset:{jt*4096 + (s//2)*1024 + (s%2)*512}', ('qr', s))
    return b

def kread(b, f):
    kt, s = f // 4, f % 4
    b.e(f'ds_read_b128 {q4(KR+4*(f%4))}, v{VK} offset:{kt*4096 + (s//2)*1024 + (s%2)*512}', ('k', f))
def vread(b, t):
    tau = t // 2
    a = VVO if t % 2 else VVE
    for u in range(2):
        b.e(f'ds_read_b64_tr_b16 {q2(VR+4*(t%4)+2*u)}, v{a} offset:{u*4096 + (tau//2)*1024 + (tau%2)*512}', ('v', t))
def kadv(b, first=False):
    if first:
        b.e(f'v_add_u32 v{VK}, {CH}, v{VK}')
        b.e(f's_mov_b32 s45, {slot(1)}')
        return
    b.e(f's_cmp_ge_u32 s45, {LDS_TOT - 2*CH}')
    b.e(f's_cselect_b32 s47, s50, s51')
    b.e(f's_add_u32 s45, s45, s47')
    b.e(f'v_add_u32 v{VK}, s47, v{VK}')
def vadv(b):
    b.e(f's_cmp_ge_u32 s46, {LDS_TOT - 2*CH}')
    b.e(f's_cselect_b32 s47, s50, s51')
    b.e(f's_add_u32 s46, s46, s47')
    b.e(f'v_add_u32 v{VVE}, s47, v{VVE}')
    b.e(f'v_add_u32 v{VVO}, s47, v{VVO}')


def dma_k(b):
    b.e('s_mov_b32 m0, s57')
    b.e(f's_cmp_ge_u32 s57, s61')
    b.e(f'buffer_load_dwordx4 v{VKV}, {srd(S_K)}, s59 offen {KVPOL} lds', ('kd',))
    b.e(f'buffer_load_dwordx4 v{VKV}, {srd(S_K)}, s59 offen offset:2048 {KVPOL} lds', ('kd',))
    b.e('s_cselect_b32 s62, s50, s51')
    b.e('s_add_u32 s57, s57, s62')
    b.e(f's_add_u32 s59, s59, {CH}')
def dma_v(b):
    b.e('s_mov_b32 m0, s58')
    b.e(f's_cmp_ge_u32 s58, s61')
    b.e(f'buffer_load_dwordx4 v{VKV}, {srd(S_V)}, s60 offen {KVPOL} lds', ('vd',))
    b.e(f'buffer_load_dwordx4 v{VKV}, {srd(S_V)}, s60 offen offset:2048 {KVPOL} lds', ('vd',))
    b.e('s_cselect_b32 s62, s50, s51')
    b.e('s_add_u32 s58, s58, s62')
    b.e(f's_add_u32 s60, s60, {CH}')

PS = TMP + 8

def guarded(fn, T):
    def g(b):
        if T is None: return fn(b)
        role.n += 1; l = f'SK{role.n}'
        b.e(f's_cmp_eq_u32 s44, {T}')
        b.e(f's_cbranch_scc1 {l}')
        fn(b)
        b.e(f'{l}:')
    return g

def qk_backbone(S, cinit, nextV=True, first=False, qwait=False, dma=None):
    bb = []
    for f in range(8):
        kt, s = f // 4, f % 4
        for jt in range(3):
            def slot(b, f=f, kt=kt, s=s, jt=jt):
                if jt == 0:
                    if qwait and f < 4: b.wait_lgkm(('qr', s))
                    if not PAIRW: b.wait_lgkm(('k', f))
                    elif f % 2 == 0: b.wait_lgkm(('k', f + 1)); b.wait_lgkm(('k', f))
                d = q4(st(S, kt, jt))
                c = d if s else (q4(NEGM + 4 * jt) if cinit == 'negm' else '0')
                b.e(f'{MF} {d}, {q4(KR+4*(f%4))}, {q4(qf(s,jt))}, {c}')
                if jt == 2:
                    if f < 4: kread(b, f + 4)
                    if f == 3: kadv(b, first)
                    if f >= 4:
                        if nextV == 'K': kread(b, f - 4)
                        elif nextV: vread(b, f - 4)
                if dma and not NODMA and f == 0 and jt == 1: dma(b)
            bb.append(slot)
    return bb

def pv_backbone(P, nextK=True, dma=None, adv=True):
    bb = []
    for t in range(8):
        for jt in range(3):
            def slot(b, t=t, jt=jt):
                if jt == 0:
                    if not PAIRW: b.wait_lgkm(('v', t))
                    elif t % 2 == 0: b.wait_lgkm(('v', t + 1)); b.wait_lgkm(('v', t))
                d = q4(acc(t, jt))
                b.e(f'{MF} {d}, {q4(VR+4*(t%4))}, {q4(st(P,0,jt))}, {d}')
                if jt == 2:
                    if t < 4: vread(b, t + 4)
                    if t == 3 and adv: vadv(b)
                    if t >= 4 and nextK: kread(b, t - 4)
                if dma and not NODMA and t == 0 and jt == 1: dma(b)
            bb.append(slot)
    return bb

def sregs(S, jt): return [st(S, 0, jt) + i for i in range(4)] + [st(S, 1, jt) + i for i in range(4)]

def sm_fillers(S):
    fl = []
    for kt in range(2):
        for jt in range(3):
            r = sregs(S, jt)
            o = 4 * kt
            fl.append(E(f'v_exp_f32 v{r[o]}, v{r[o]}'))
            fl.append(E(f'v_exp_f32 v{r[o+1]}, v{r[o+1]}'))
            if kt: fl.append(E(f'v_add_f32 v{PS+jt}, v{PS+jt}, v{r[o]}'))
            fl.append(E(f'v_exp_f32 v{r[o+2]}, v{r[o+2]}'))
            if kt: fl.append(E(f'v_add_f32 v{PS+jt}, v{PS+jt}, v{r[o+1]}'))
            else: fl.append(E(f'v_add_f32 v{PS+jt}, v{r[0]}, v{r[1]}'))
            fl.append(E(f'v_exp_f32 v{r[o+3]}, v{r[o+3]}'))
            fl.append(E(f'v_add_f32 v{PS+jt}, v{PS+jt}, v{r[o+2]}'))
            fl.append(E(f'v_cvt_pk_bf16_f32 v{r[2*kt]}, v{r[o]}, v{r[o+1]}'))
            fl.append(E(f'v_add_f32 v{PS+jt}, v{PS+jt}, v{r[o+3]}'))
            fl.append(E(f'v_cvt_pk_bf16_f32 v{r[2*kt+1]}, v{r[o+2]}, v{r[o+3]}'))
    return fl

def chk_fillers():
    return [E(f'v_max3_f32 v{TMP}, v{PS}, v{PS+1}, v{PS+2}'), E(f'v_cmp_nle_f32 vcc, v{TMP}, v{TMP+11}')]
def ladd_fillers():
    return [E(f'v_add_f32 v{LS+jt}, v{LS+jt}, v{PS+jt}') for jt in range(3)]

def xreduce3(regs, tmps, op):
    fl = []
    for sw in ('v_permlane32_swap_b32', 'v_permlane16_swap_b32'):
        for r, t in zip(regs, tmps): fl.append(E(f'v_mov_b32 v{t}, v{r}'))
        for r, t in zip(regs, tmps): fl.append(E(f'{sw} v{r}, v{t}'))
        for r, t in zip(regs, tmps): fl.append(E(f'{op} v{r}, v{r}, v{t}'))
    return fl

MX = [TMP + 1, TMP + 2, TMP + 3]; MT = [TMP + 4, TMP + 5, TMP + 6]
def rowmax3(S):
    fl = []
    R = [sregs(S, jt) for jt in range(3)]
    for jt in range(3): fl.append(E(f'v_max3_f32 v{MX[jt]}, v{R[jt][0]}, v{R[jt][1]}, v{R[jt][2]}'))
    for jt in range(3): fl.append(E(f'v_max3_f32 v{MX[jt]}, v{MX[jt]}, v{R[jt][3]}, v{R[jt][4]}'))
    for jt in range(3): fl.append(E(f'v_max3_f32 v{MX[jt]}, v{MX[jt]}, v{R[jt][5]}, v{R[jt][6]}'))
    for jt in range(3): fl.append(E(f'v_max_f32 v{MX[jt]}, v{MX[jt]}, v{R[jt][7]}'))
    return fl + xreduce3(MX, MT, 'v_max_f32')

def rare_path(ctx, name, Y, X, back):
    snap = ctx.snap()
    r = Block(ctx, name + 'r')
    r.e(f'{name}_RARE:')
    r.e(f's_cmp_ge_u32 s45, {back*CH}')
    r.e(f's_cselect_b32 s47, 0, {LDS_TOT}')
    r.e(f's_sub_u32 s47, s47, {back*CH}')
    r.e(f'v_add_u32 v{TMP+7}, s47, v{VK}')
    for kt in range(2):
        for s in range(4):
            r.e(f'ds_read_b128 {q4(KR+4*s)}, v{TMP+7} offset:{kt*4096 + (s//2)*1024 + (s%2)*512}', ('rk',))
        r.e('s_waitcnt lgkmcnt(0)')
        for s in range(4):
            for jt in range(3):
                d = q4(st(Y, kt, jt))
                r.e(f'{MF} {d}, {q4(KR+4*s)}, {q4(qf(s,jt))}, {d if s else q4(NEGM+4*jt)}')
    r.e('s_nop 7')
    run(r, rowmax3(Y))
    for jt in range(3): r.e(f'v_max_f32 v{MX[jt]}, 0, v{MX[jt]}')
    for jt in range(3): r.e(f'v_exp_f32 v{MT[jt]}, -v{MX[jt]}')
    for jt in range(3):
        for q in sregs(Y, jt) + (sregs(X, jt) if X else []) + [NEGM + 4 * jt + i for i in range(4)]:
            r.e(f'v_sub_f32 v{q}, v{q}, v{MX[jt]}')
        r.e(f'v_mul_f32 v{LS+jt}, v{LS+jt}, v{MT[jt]}')
        for t in range(8):
            for i in range(4): r.e(f'v_mul_f32 v{acc(t,jt)+i}, v{acc(t,jt)+i}, v{MT[jt]}')
    run(r, sm_fillers(Y))
    r.e('s_nop 1')
    r.e(f's_branch {name}_JOIN')
    ctx.restore(snap)
    return r

def k1_att_prologue(ctx):
    b = Block(ctx, 'att_pro')
    for f in range(4): kread(b, f)
    nk, nv = {0: (7, 8), 1: (11, 10), 2: (9, 8)}[KVREG]
    b.e(f's_add_u32 s57, s52, {slot(nk)}')
    b.e(f's_add_u32 s58, s52, {slot(nv)}')
    b.e(f's_mov_b32 s59, {chunk_of(nk)[1]*CH}')
    b.e(f's_mov_b32 s60, {chunk_of(nv)[1]*CH}')
    b.e(f's_add_u32 s61, s52, {LDS_TOT - 2*CH}')
    b.e(f'v_mov_b32 v{TMP+11}, {hex(f2u(THR))}')
    if FUSED and WARM:
        b.e('s_lshr_b32 s55, s41, 3'); b.e('s_mul_i32 s55, s55, 1179648')
        b.e('s_and_b32 s56, s41, 3'); b.e('s_mul_i32 s62, s56, 288'); b.e('s_add_u32 s55, s55, s62')
        b.e('s_and_b32 s62, s41, 1'); b.e('s_lshl_b32 s62, s62, 5'); b.e('s_sub_u32 s55, s55, s62')
        b.e('s_lshl_b32 s56, s56, 1'); b.e('s_and_b32 s62, s41, 4'); b.e('s_add_u32 s56, s56, s62')
        b.e('s_and_b32 s62, s40, 3'); b.e('s_add_u32 s56, s56, s62'); b.e('s_and_b32 s56, s56, 7')
        b.e('s_mul_i32 s56, s56, 147456'); b.e('s_add_u32 s55, s55, s56')
        b.e('s_mul_i32 s56, s42, 18432'); b.e('s_add_u32 s55, s55, s56')
        b.e('s_add_u32 s28, s12, s55'); b.e('s_addc_u32 s29, s13, 0')
        b.e('s_sub_u32 s30, 4718592, s55'); b.e('s_mov_b32 s31, 0x20000')
    zero = [E(f'v_mov_b32 v{ACC+i}, 0') for i in range(48)]
    run(b, interleave(qk_backbone(SA, '0', nextV='K', first=True, qwait=True), zero))
    if not KVREG: b.wait_vm(('kv', 2))
    b.e('s_barrier')
    if KVREG == 2:
        kvpair_static(b, 6)
        kvpair_static(b, 7)
    elif KVREG:
        kvpair_static(b, 8)
        kvpair_static(b, 9)
        run(b, kv_to_lds(7)[:1] + kv_to_lds(7)[1:] + kv_to_lds(6))
    else: kvpair_static(b, 6)
    if TOUCH:
        b.e(f'v_lshlrev_b32 v{TMP+7}, {12 if TOUCH == 1 else 17}, v{VL16}')
        b.e('s_mov_b32 s100, 0x20000')
        for base, size, off in ((12, 4718592, 0), (18, 0x1000000, 0), (18, 0x1000000, 0x400000), (18, 0x1000000, 0x800000), (18, 0x3000000, 0x2000000), (18, 0x3000000, 0x2400000), (18, 0x3000000, 0x2800000), (18, 0x3000000, 0x2c00000), (14, 1769472, 0)):
            b.e(f's_mov_b32 s28, s{base}'); b.e(f's_mov_b32 s29, s{base+1}'); b.e(f's_mov_b32 s30, {size}'); b.e('s_mov_b32 s31, 0x20000')
            b.e(f's_mov_b32 s56, {off}')
            b.e(f'buffer_load_dword v{TMP}, v{TMP+7}, s[28:31], s56 offen', ('touch',))
        b.e('s_waitcnt vmcnt(0)')
    run(b, rowmax3(SA))
    for jt in range(3):
        for i in range(4): b.e(f'v_sub_f32 v{NEGM+4*jt+i}, 0, v{MX[jt]}')
    sub = [E(f'v_sub_f32 v{r}, v{r}, v{MX[jt]}') for kt in range(2) for jt in range(3) for r in sregs(SA, jt)[4*kt:4*kt+4]]
    run(b, interleave(qk_backbone(SB, 'negm', nextV=True), sub + sm_fillers(SA)))
    b.e('s_mov_b32 s44, 0')
    if PRIO:
        b.e('s_cmp_ge_u32 s42, 4'); b.e('s_cbranch_scc0 NOPRIO'); b.e('s_setprio 1'); b.e('NOPRIO:')
    stamp(b, 3)
    return b

def pv_phase(ctx, name, P, S, nextK=True, head=None, dma=None, vmw=4, bar=True, extra=()):
    a = Block(ctx, name)
    if head: head(a)
    if bar:
        a.e(f's_waitcnt vmcnt({2 if NOBARQK else vmw})')
        a.e('s_barrier')
    fl = ladd_fillers() + (sm_fillers(S)[:SM_SPLIT] if S else []) + list(extra)
    run(a, interleave(pv_backbone(P, nextK, dma, adv=bar), fl, start=int(OPT.get('pvs', 2))))
    return a

def qk_phase(ctx, name, D, S, dma):
    b = Block(ctx, name)
    if not NOBARQK:
        b.e('s_waitcnt vmcnt(4)')
        b.e('s_barrier')
    run(b, interleave(qk_backbone(D, 'negm', dma=dma), sm_fillers(S)[SM_SPLIT:] + chk_fillers(), end=23))
    b.e(f's_cbranch_vccnz {name}_RARE')
    r = rare_path(ctx, name, S, D, 4)
    j = Block(ctx, name + 'j'); j.e(f'{name}_JOIN:')
    return b, r, j

def pol_store(b, text, tag):
    b.e(text + ' sc1', tag)

EXB = 4 * CH
MLB = 24576
def k1_epilogue(ctx):
    b = Block(ctx, 'epi')
    stamp(b, 4)
    if STAMP and OPT.get('rt4'): b.e('s_memrealtime s[84:85]')
    run(b, xreduce3([LS, LS + 1, LS + 2], MT, 'v_add_f32'))
    b.e('s_mul_i32 s43, s42, 12288')
    b.e('s_xor_b32 s46, s42, 4')
    b.e('s_mul_i32 s45, s46, 12288')
    b.e(f's_add_u32 s43, s43, {EXB}')
    b.e(f's_add_u32 s45, s45, {EXB}')
    b.e(f'v_add_u32 v{VK}, s43, v{VL16}')
    b.e(f'v_add_u32 v{VVE}, s45, v{VL16}')
    b.e(f'v_lshrrev_b32 v{VVO}, 1, v{VL16}')
    b.e('s_mul_i32 s43, s42, 1536')
    b.e('s_mul_i32 s45, s46, 1536')
    b.e(f's_add_u32 s43, s43, {MLB}')
    b.e(f's_add_u32 s45, s45, {MLB}')
    b.e(f'v_add_u32 v{VKV}, s43, v{VVO}')
    b.e(f'v_add_u32 v{VVO}, s45, v{VVO}')
    for jt in range(3):
        b.e(f'v_mov_b32 v{NEGM+4*jt+1}, v{LS+jt}')
    for jt in range(3):
        b.e(f'ds_write_b64 v{VKV}, {q2(NEGM+4*jt)} offset:{jt*512}', ('x',))
    b.e('s_and_b32 s43, s42, 3')
    b.e('s_mul_i32 s43, s43, 393216')
    b.e('s_lshl_b32 s45, s41, 12')
    b.e('s_add_u32 s43, s43, s45')
    b.e('s_lshl_b32 s45, s54, 11')
    b.e('s_add_u32 s43, s43, s45')
    b.e('s_add_u32 s45, s43, 131072')
    b.e('s_add_u32 s46, s43, 262144')
    so = ['s43', 's45', 's46']
    for r in (A, B):
        with role(b, r):
            send = range(4, 8) if r == A else range(0, 4)
            for i, t in enumerate(send):
                for jt in range(3):
                    b.e(f'ds_write_b128 v{VK}, {q4(acc(t,jt))} offset:{(3*i+jt)*1024}', ('x',))
    b.e('s_waitcnt lgkmcnt(0)')
    b.e('s_barrier')
    RX = QF
    ML = SA
    for jt in range(3):
        b.e(f'ds_read_b64 {q2(ML+2*jt)}, v{VVO} offset:{jt*512}', ('ml',))
    for i in range(12):
        b.e(f'ds_read_b128 {q4(RX+4*i)}, v{VVE} offset:{i*1024}', ('rx', i))
    if FUSED and WOEARLY:
        with role(b, WL):
            t_issue(b); t_issue(b)
    b.wait_lgkm(('ml',))
    C = SA + 8
    for jt in range(3):
        no, lo = NEGM + 4 * jt, NEGM + 4 * jt + 1
        np_, lp = ML + 2 * jt, ML + 2 * jt + 1
        t = TMP
        b.e(f'v_min_f32 v{t}, v{no}, v{np_}')
        b.e(f'v_sub_f32 v{t+1}, v{t}, v{no}')
        b.e(f'v_sub_f32 v{t+2}, v{t}, v{np_}')
        b.e(f'v_exp_f32 v{t+1}, v{t+1}')
        b.e(f'v_exp_f32 v{t+2}, v{t+2}')
        b.e('s_nop 0')
        b.e(f'v_mul_f32 v{t+3}, v{t+1}, v{lo}')
        b.e(f'v_fmac_f32 v{t+3}, v{t+2}, v{lp}')
        b.e(f'v_rcp_f32 v{t+3}, v{t+3}')
        b.e('s_nop 0')
        b.e(f'v_mul_f32 v{C+4*jt}, v{t+1}, v{t+3}')
        b.e(f'v_mul_f32 v{C+4*jt+1}, v{t+1}, v{t+3}')
        b.e(f'v_mul_f32 v{C+4*jt+2}, v{t+2}, v{t+3}')
        b.e(f'v_mul_f32 v{C+4*jt+3}, v{t+2}, v{t+3}')
    OUT = SB
    snap = ctx.snap()
    for r in (A, B):
        with role(b, r):
            keep = range(0, 4) if r == A else range(4, 8)
            for sp in range(2):
                for jt in range(3):
                    o = OUT + 4 * (3 * sp + jt)
                    for h in range(2):
                        i = 2 * sp + h
                        a = acc(keep[i], jt); x = RX + 4 * (3 * i + jt)
                        b.wait_lgkm(('rx', 3 * i + jt))
                        b.e(f'v_pk_mul_f32 {q2(a)}, {q2(a)}, {q2(C+4*jt)}')
                        b.e(f'v_pk_mul_f32 {q2(a+2)}, {q2(a+2)}, {q2(C+4*jt)}')
                        b.e(f'v_pk_fma_f32 {q2(a)}, {q2(x)}, {q2(C+4*jt+2)}, {q2(a)}')
                        b.e(f'v_pk_fma_f32 {q2(a+2)}, {q2(x+2)}, {q2(C+4*jt+2)}, {q2(a+2)}')
                        b.e(f'v_cvt_pk_bf16_f32 v{o+2*h}, v{a}, v{a+1}')
                        b.e(f'v_cvt_pk_bf16_f32 v{o+2*h+1}, v{a+2}, v{a+3}')
                    pol_store(b, f'buffer_store_dwordx4 {q4(o)}, v{VL16}, {srd(S_O)}, {so[jt]} offen offset:{sp*1024}', ('o',))
    if FUSED:
        b.e('s_bfe_u32 s43, s42, 0x10001')
        b.e('s_cmp_eq_u32 s43, s49')
        b.e('s_cbranch_scc0 OWN_SKIP')
        b.e('s_and_b32 s43, s42, 1'); b.e('s_mul_i32 s43, s43, 6144')
        b.e(f's_mul_i32 s45, s54, {OS_}'); b.e('s_add_u32 s43, s43, s45')
        b.e(f'v_add_u32 v{VK}, s43, v{VL16}')
        for sp in range(2):
            for jt in range(3):
                b.e(f'ds_write_b128 v{VK}, {q4(OUT + 4 * (3 * sp + jt))} offset:{(2*jt+sp)*1024}', ('oo',))
        b.e('OWN_SKIP:')
    if not FUSED:
        if STAMP:
            b.e('s_waitcnt vmcnt(0)')
            stamp(b, 5)
            dump_stamps(b)
        b.e('K1_END:')
        b.e('s_endpgm')
    return b

def dump_stamps(b):
    b.e('s_memrealtime s[88:89]')
    b.e('s_waitcnt lgkmcnt(0)')
    if STAMP == 2:
        b.e(f's_cmp_eq_u32 s2, {int(OPT.get("dbgwg", 0))}'); b.e('s_cbranch_scc0 DBG_SKIP')
        b.e('s_cmp_eq_u32 s42, 5'); b.e('s_cbranch_scc0 DBG_SKIP')
        b.e('s_mov_b32 s56, s16'); b.e('s_mov_b32 s57, s17'); b.e('s_mov_b32 s58, 256'); b.e('s_mov_b32 s59, 0x20000')
        b.e('v_mov_b32 v1, 0')
        for i in range(1, 11):
            b.e(f's_sub_u32 s43, s{64+2*i}, s64'); b.e('v_mov_b32 v2, s43')
            b.e(f'buffer_store_dword v2, v1, s[56:59], 0 offen offset:{4*i}')
            b.e('s_waitcnt vmcnt(0)')
        b.e('s_sub_u32 s43, s88, s86'); b.e('v_mov_b32 v2, s43')
        b.e('buffer_store_dword v2, v1, s[56:59], 0 offen offset:44')
        b.e('s_waitcnt vmcnt(0)')
        b.e('DBG_SKIP:')
        return
    b.e('s_lshl_b32 s43, s2, 3'); b.e('s_add_u32 s43, s43, s42'); b.e('s_lshl_b32 s43, s43, 7')
    b.e('s_add_u32 s43, s43, 0x1000000')
    b.e('s_add_u32 s56, s18, s43'); b.e('s_addc_u32 s57, s19, 0'); b.e('s_mov_b32 s58, 128'); b.e('s_mov_b32 s59, 0x20000')
    b.e('v_mov_b32 v1, 0')
    for i in range(13):
        b.e(f'v_mov_b32 v2, s{64+2*i}'); b.e(f'v_mov_b32 v3, s{65+2*i}')
        b.e(f'buffer_store_dwordx2 v[2:3], v1, s[56:59], 0 offen offset:{8*i}')
        b.e('s_waitcnt vmcnt(0)')

def poll(b, name, load, notyet):
    b.e('s_mov_b32 s91, 0')
    b.e(f'{name}:')
    b.e(load)
    b.e('s_add_u32 s91, s91, 1')
    b.e('s_waitcnt vmcnt(0)')
    b.e(notyet)
    b.e('s_cmp_lt_u32 s91, 0x40000')
    b.e(f's_cbranch_vccz {name}_GO')
    b.e(f's_sleep {SLEEP}')
    b.e(f's_cbranch_scc1 {name}')
    b.e(f'{name}_GO:')

WL, OL = (0, 1, 2, 3, 4), (5, 6, 7)
S_ST, S_P, S_OUT, S_PI = 20, 24, 28, 32
VD = 192; VA0, VA1, VB = 196, 197, 198; VT = 200; VX = 204; VAP = 208
WS_ = 20480; NW_ = int(OPT.get('nw', 6)); OS_ = 12288; NO_ = int(OPT.get('no', 3)); WOB = NO_ * OS_
assert WOB + NW_ * WS_ <= LDS_TOT
PRI = int(OPT.get('pri', 0))

def tail_setup():
    P = []
    def piece(*lines): P.append(lambda b: [b.e(l) for l in lines])
    piece('s_lshr_b32 s47, s41, 3', 's_and_b32 s48, s41, 7')
    piece('s_lshr_b32 s49, s48, 2', 's_and_b32 s50, s48, 3')
    piece('s_and_b32 s51, s50, 1', 's_mul_i32 s55, s47, 1179648')
    piece('s_mul_i32 s61, s50, 288', 's_add_u32 s55, s55, s61')
    piece('s_lshl_b32 s61, s51, 5', 's_sub_u32 s55, s55, s61')
    piece('s_mul_i32 s61, s40, 1572864', 's_mul_i32 s100, s49, 786432')
    piece('s_add_u32 s61, s61, s100', 's_lshl_b32 s100, s47, 15')
    piece('s_add_u32 s61, s61, s100', 's_sub_u32 s3, 4718592, s55')
    piece('s_add_u32 s100, s12, s55', 's_addc_u32 s101, s13, 0')
    piece('s_add_u32 s62, s18, s61', 's_addc_u32 s63, s19, 0')
    piece('s_mov_b32 s58, 4096', 's_cmp_lt_u32 s42, 5',
          f's_cselect_b32 s{S_ST}, s100, s62', f's_cselect_b32 s{S_ST+1}, s101, s63',
          f's_cselect_b32 s{S_ST+2}, s3, {5*131072 + 32768}', 's_cselect_b32 s58, 147456, s58')
    piece(f's_mov_b32 s{S_ST+3}, 0x20000', 's_lshr_b32 s59, s58, 1')
    piece('s_lshl_b32 s60, s42, 12', 's_mov_b32 s62, 0', f's_add_u32 s61, s60, {WOB}', f's_sub_u32 s63, s60, {5*4096}')
    piece(f's_mov_b32 s100, {OS_}', f's_mov_b32 s101, {(NO_-1)*OS_}', 's_cmp_lt_u32 s42, 5', 's_cselect_b32 s60, s61, s63',
          f's_cselect_b32 s44, {WS_}, s100', f's_cselect_b32 s57, {(NW_-1)*WS_}, s101')
    piece('s_mov_b32 s63, s60', 's_add_u32 s57, s57, s60')
    piece('s_mov_b32 s56, s48' if FUSED else 's_mov_b32 s56, s48', 's_mov_b32 s3, 0')
    t = VX
    piece(f'v_bfe_u32 v{t}, v{VL16}, 6, 3', 's_and_b32 s61, s42, 1', 's_lshl_b32 s61, s61, 3')
    piece(f'v_add_u32 v{t}, s61, v{t}', f'v_lshrrev_b32 v{t+1}, 6, v{VL16}')
    piece('s_cmp_eq_u32 s42, 4', 's_cselect_b64 vcc, -1, 0', 's_lshr_b32 s100, s50, 1')
    piece(f'v_cndmask_b32 v{t}, v{t}, v{t+1}, vcc', f'v_lshrrev_b32 v{t+1}, 9, v{VL16}')
    piece(f'v_mul_u32_u24 v{t+2}, 1152, v{t}', f'v_lshlrev_b32 v{t+1}, 6, v{t+1}')
    piece(f'v_cndmask_b32 v{t+1}, v{t+1}, 0, vcc', f'v_bfe_u32 v{t}, v{t}, 2, 1')
    piece(f'v_add_u32 v{t+2}, v{t+2}, v{t+1}', f'v_lshlrev_b32 v{t}, 1, v{t}')
    piece(f'v_bfe_u32 v{t+1}, v{VL16}, 4, 2', f'v_xor_b32 v{t}, v{t}, v{t+1}')
    piece(f'v_lshl_add_u32 v{t}, v{t}, 4, v{t+2}', 's_lshr_b32 s61, s42, 1', 's_lshl_b32 s61, s61, 7')
    piece('s_lshl_b32 s101, s100, 6', 's_add_u32 s61, s61, s101', 's_lshl_b32 s101, s100, 8', 's_sub_u32 s101, 256, s101')
    piece('s_cmp_eq_u32 s42, 4', 's_cselect_b32 s61, s101, s61')
    piece(f'v_add_u32 v{VD}, s61, v{t}', 's_sub_u32 s61, s42, 5', 's_lshl_b32 s61, s61, 18')
    for m in range(1, 4): piece(f'v_add_u32 v{VD+m}, {m*(18432-1024)}, v{VD}')
    def ofix(b):
        with role(b, OL):
            b.e(f'v_add_u32 v{VD}, s61, v{VL16}')
            b.e(f'v_mov_b32 v{VD+1}, v{VD}')
            b.e(f'v_add_u32 v{VD+2}, {131072-2048}, v{VD}')
            b.e(f'v_mov_b32 v{VD+3}, v{VD+2}')
    P.append(ofix)
    return P

def t_issue_parts():
    def head(b):
        b.e('s_lshr_b32 s55, s62, 1'); b.e('s_add_u32 s55, s55, s56'); b.e('s_and_b32 s55, s55, 7')
        if FUSED:
            role.n += 1; l = f'HP{role.n}'
            b.e('s_bitcmp1_b32 s3, s55')
            b.e(f's_cbranch_scc0 {l}_GO')
            b.e('s_mov_b32 s91, 0')
            b.e(f'{l}:')
            x = [f'buffer_load_dword v{VT+1}, v{VT}, {srd(S_F)}, s99 offen sc1', 's_add_u32 s91, s91, 1', 's_waitcnt vmcnt(0)',
                 f'v_cmp_ne_u32 vcc, s97, v{VT+1}', 's_nop 0', 's_mov_b32 s3, vcc_lo', 's_bitcmp1_b32 s3, s55', f's_cbranch_scc0 {l}_GO',
                 f's_sleep {SLEEP}', 's_cmp_lt_u32 s91, 0x40000', f's_cbranch_scc1 {l}']
            x[5:6] = ['s_mov_b32 s3, vcc_lo', 's_mov_b64 vcc, 0']
            for t in x:
                i = I(t); i.roles = (); b.append(i)
            b.e(f'{l}_GO:')
        b.e('s_mul_i32 s55, s55, s58')
        b.e('s_and_b32 s61, s62, 1'); b.e('s_mul_i32 s61, s61, s59'); b.e('s_add_u32 s55, s55, s61')
        b.e('s_mov_b32 m0, s63')
        b.e('s_add_u32 s62, s62, 1')
    ld = [E(f'buffer_load_dwordx4 v{VD+m}, {srd(S_ST)}, s55 offen offset:{m*1024} {OLDPOL} lds', ('u',)) for m in range(4)]
    def tail(b):
        b.e('s_cmp_ge_u32 s63, s57'); b.e('s_cselect_b32 s61, s60, s63'); b.e('s_cselect_b32 s63, 0, s44')
        b.e('s_add_u32 s63, s63, s61')
    return [head] + ld + [tail]
def t_issue(b): run(b, t_issue_parts())

def oproj(ctx):
    FB = 64
    b = Block(ctx, 'op_pre')
    stamp(b, 2, True)
    b.e(f'v_lshrrev_b32 v{VT+3}, 4, v{VL16}')
    T0 = 216
    v3, v4, v5, v6, v7 = (f'v{T0+i}' for i in range(5))
    b.e('s_lshr_b32 s43, s42, 2'); b.e('s_and_b32 s45, s42, 1')
    b.e(f'v_lshrrev_b32 {v4}, 4, v{VT+3}'); b.e(f'v_bfe_u32 {v5}, v{VT+3}, 2, 4'); b.e(f'v_and_b32 {v3}, 3, v{VT+3}')
    b.e(f'v_and_b32 {v7}, 7, {v5}'); b.e(f'v_lshlrev_b32 {v7}, 6, {v7}'); b.e(f'v_lshlrev_b32 {v5}, 6, {v5}')
    b.e(f'v_and_b32 {v6}, 1, {v4}'); b.e(f'v_lshlrev_b32 {v6}, 5, {v6}'); b.e(f'v_lshl_add_u32 {v6}, {v3}, 3, {v6}')
    b.e(f'v_add_u32 {v5}, {v5}, {v6}'); b.e(f'v_add_u32 {v7}, {v7}, {v6}')
    b.e(f'v_lshrrev_b32 {v6}, 1, {v4}'); b.e(f'v_lshl_add_u32 {v7}, {v6}, 12, {v7}')
    b.e('s_lshl_b32 s46, s43, 11'); b.e(f's_add_u32 s46, s46, {WOB}')
    b.e('s_lshr_b32 s100, s50, 1')
    b.e('s_mul_i32 s101, s45, 5')
    for n in range(5):
        b.e(f's_add_u32 s52, s101, {n}')
        b.e('s_and_b32 s91, s52, 1'); b.e('s_lshl_b32 s91, s91, 5')
        b.e('s_lshr_b32 s52, s52, 1'); b.e('s_sub_u32 s52, s52, s100')
        b.e('s_and_b32 s54, s52, 1'); b.e('s_lshl_b32 s54, s54, 9')
        b.e('s_lshr_b32 s55, s52, 1'); b.e('s_lshl_b32 s55, s55, 13'); b.e('s_add_u32 s54, s54, s55')
        b.e('s_cmp_lt_u32 s52, 4'); b.e('s_cselect_b32 s54, s54, 16384'); b.e('s_cselect_b64 vcc, -1, 0')
        b.e('s_add_u32 s54, s54, s46')
        b.e(f'v_cndmask_b32 v{VAP+n}, {v5}, {v7}, vcc')
        b.e(f'v_xor_b32 v{VAP+n}, s91, v{VAP+n}'); b.e(f'v_add_u32 v{VAP+n}, s54, v{VAP+n}')
    b.e('s_bfe_u32 s55, s42, 0x10001')
    b.e('s_mul_i32 s52, s55, 6144'); b.e('s_lshl_b32 s54, s43, 10'); b.e('s_add_u32 s52, s52, s54')
    b.e(f'v_add_u32 v{VB}, s52, v{VL16}')
    b.e(f'v_bfe_u32 {v6}, v{VT+3}, 2, 2'); b.e(f'v_mul_u32_u24 {v6}, {4*INB}, {v6}')
    b.e(f'v_lshl_add_u32 {v6}, {v4}, 6, {v6}'); b.e(f'v_lshl_add_u32 v{VT+2}, {v3}, 4, {v6}')
    b.e('s_sub_u32 s54, s101, s51')
    b.e('s_mul_i32 s52, s55, 27'); b.e('s_add_u32 s52, s52, s54'); b.e('s_lshl_b32 s43, s52, 8')
    b.e('s_mul_i32 s52, s55, 9'); b.e('s_add_u32 s52, s52, s54'); b.e('s_lshl_b32 s4, s52, 9')
    b.e('s_lshl_b32 s52, s40, 3'); b.e('s_add_u32 s52, s52, s48'); b.e(f's_mul_i32 s52, s52, {16*INB}')
    b.e(f's_add_u32 s52, s52, {POFF}')
    b.e(f's_mul_i32 s54, s47, {INB}'); b.e('s_add_u32 s54, s54, s52')
    b.e(f's_add_u32 s{S_P}, s18, s54'); b.e(f's_addc_u32 s{S_P+1}, s19, 0')
    b.e(f's_mov_b32 s{S_P+2}, {13*INB}'); b.e(f's_mov_b32 s{S_P+3}, 0x20000')
    b.e(f's_mul_i32 s54, s47, {4*INB}'); b.e('s_add_u32 s54, s54, s52')
    b.e(f's_add_u32 s{S_PI}, s18, s54'); b.e(f's_addc_u32 s{S_PI+1}, s19, 0')
    b.e(f's_mov_b32 s{S_PI+2}, {4*INB}'); b.e(f's_mov_b32 s{S_PI+3}, 0x20000')
    b.e('s_mul_i32 s52, s40, 192'); b.e('s_mul_i32 s54, s49, 96'); b.e('s_add_u32 s52, s52, s54')
    b.e('s_lshl_b32 s54, s47, 2'); b.e('s_add_u32 s52, s52, s54'); b.e('s_mul_i32 s52, s52, 1152')
    b.e('s_mul_i32 s54, s50, 288'); b.e('s_add_u32 s52, s52, s54')
    b.e(f's_add_u32 s{S_OUT}, s14, s52'); b.e(f's_addc_u32 s{S_OUT+1}, s15, 0')
    b.e(f's_sub_u32 s{S_OUT+2}, 1769472, s52'); b.e(f's_mov_b32 s{S_OUT+3}, 0x20000')
    b.e('s_lshl_b32 s91, s42, 6')
    b.e(f'v_add_u32 v{VT}, s91, v{VT+3}')
    b.e(f'v_lshlrev_b32 v{VT}, 20, v{VT}')
    b.e(f'v_mov_b32 v{VT+1}, s97')
    b.e('s_waitcnt lgkmcnt(0)')
    b.wait_vm(('o',))
    b.e('s_barrier')
    pol_store(b, f'buffer_store_dword v{VT+1}, v{VT}, {srd(S_F)}, s90 offen', ('f1',))
    stamp(b, 5)
    def wiss(b):
        with role(b, WL): t_issue(b)
    wiss(b); wiss(b)
    b.e('s_mov_b32 s36, s43')
    b.e('s_cmp_lt_u32 s45, s51'); b.e('s_cselect_b32 s37, 1, 0')
    b.e('s_cmp_gt_u32 s45, s51'); b.e('s_cselect_b32 s38, 1, 0')
    with role(b, OL):
        b.e(f'v_and_b32 v{VT}, 7, v{VT+3}'); b.e(f'v_lshlrev_b32 v{VT}, 7, v{VT}')
        b.e('s_and_b32 s99, s90, 0xfffffc00')
        b.e('s_mov_b32 s3, 0xff'); b.e('s_mov_b32 s62, 2'); b.e(f's_add_u32 s63, s63, {2*OS_}')
    def fA(U, n): return FB + 32 * (U % 2) + 4 * n
    def fB(U, j): return FB + 32 * (U % 2) + 20 + 4 * j
    def rd(U):
        r = [E(f'ds_read_b128 {q4(fB(U,j))}, v{VB} offset:{2*j*1024}', ('f', U)) for j in range(3)]
        for n in range(5):
            r += [E(f'ds_read_b64_tr_b16 {q2(fA(U,n)+2*u)}, v{VAP+n} offset:{u*1024}', ('f', U)) for u in range(2)]
        return r
    def adv(b):
        b.e(f's_cmp_ge_u32 s46, {(NW_-1)*WS_}'); b.e(f's_cselect_b32 s52, s54, s53'); b.e('s_add_u32 s46, s46, s52')
        for n in range(5): b.e(f'v_add_u32 v{VAP+n}, s52, v{VAP+n}')
        b.e(f's_cmp_ge_u32 s45, {(NO_-1)*OS_}'); b.e(f's_cselect_b32 s52, s101, s100'); b.e('s_add_u32 s45, s45, s52')
        b.e(f'v_add_u32 v{VB}, s52, v{VB}')
    b.e('s_mov_b32 s46, 0'); b.e(f's_mov_b32 s53, {WS_}'); b.e(f's_mov_b32 s54, {(-(NW_-1)*WS_) & 0xffffffff}')
    b.e('s_mov_b32 s45, 0'); b.e(f's_mov_b32 s100, {OS_}'); b.e(f's_mov_b32 s101, {(-(NO_-1)*OS_) & 0xffffffff}')
    b.e('s_mov_b32 s39, 0')
    def mmu(U, first=False): return [E(f'{MF} {q4(12*n+4*j)}, {q4(fA(U,n))}, {q4(fB(U,j))}, {"0" if first else q4(12*n+4*j)}') for n in range(5) for j in range(3)]
    b.e('s_waitcnt vmcnt(0)')
    b.e('s_barrier')
    stamp(b, 6)
    run(b, rd(0)); adv(b)
    wiss(b)
    run(b, rd(1)); adv(b)
    b.wait_lgkm(('f', 0))
    run(b, interleave(mmu(0, True), [wiss] * min(2, NW_ - 3), start=1, end=9))
    b.e('s_waitcnt lgkmcnt(0)')
    run(b, interleave(mmu(1), [wiss] * (NW_ - 5), start=2, end=4))
    with role(b, OL):
        stamp(b, 3, True)
        for _ in range(NO_ - 2): t_issue(b)
        b.e(f's_waitcnt vmcnt({4 * (NO_ - 3)})')
    b.e(f's_waitcnt vmcnt({4 * (NW_ - 3)})')
    b.e('s_barrier')
    stamp(b, 1, True)
    with role(b, OL):
        t_issue(b); t_issue(b)
    run(b, rd(0))
    wiss(b); wiss(b)
    adv(b)
    b.e('s_cmp_lt_u32 s42, 5'); b.e('s_cselect_b64 vcc, -1, 0')
    def oiss(b):
        with role(b, OL): t_issue(b)
    def wpart(p):
        def f(b):
            role.n += 1; l = f'WP{role.n}'
            b.e(f's_cbranch_vccz {l}')
            b.ctx.active = list(WL); p(b); b.ctx.active = ALLW
            b.e(f'{l}:')
        return f
    def unit(lp, U, iW, iO, wW, wO, extra=()):
        if wO < wW:
            with role(lp, OL): lp.e(f's_waitcnt vmcnt({wO})')
        elif wW < wO:
            with role(lp, WL): lp.e(f's_waitcnt vmcnt({wW})')
        lp.e(f's_waitcnt vmcnt({max(wW, wO)}) lgkmcnt(0)')
        lp.e('s_barrier')
        r = rd(U + 1) + [adv]
        if iW and iO and not PRI:
            parts = t_issue_parts()
            fill = []
            for k in range(max(len(r), 2 * len(parts))):
                if k < len(r): fill.append(r[k])
                if k % 2 == 1 and k // 2 < len(parts): fill.append(parts[k // 2])
        else:
            p = t_issue_parts()
            wp = [wpart(lambda b: (p[0](b), p[1](b))), wpart(p[2]), wpart(p[3]), wpart(lambda b: (p[4](b), p[5](b)))] if iW else []
            fill = ([oiss] if iO else []) + r[:6]
            for k, x in enumerate(r[6:]):
                fill.append(x)
                if k % 2 == 0 and k // 2 < len(wp): fill.append(wp[k // 2])
        fill = fill + list(extra)
        run(lp, interleave(mmu(U), fill, end=int(OPT.get('tend', 14))))
    G = 140; OWN = 81920; X = 128; VE = 136
    keepA, keepB = list(range(9)), list(range(9, 15))
    fin = []
    def P(*lines): fin.extend(E(l) for l in lines)
    P('s_mul_i32 s5, s42, 9216', 's_xor_b32 s6, s42, 4', 's_mul_i32 s6, s6, 9216')
    P(f'v_add_u32 v{VA0}, s5, v{VL16}', f'v_add_u32 v{VA1}, s6, v{VL16}')
    for k in range(6): P(f'v_mov_b32 v{G+4*k+3}, s98')
    fin.append(lambda b: [b.e(l) for l in (f'v_bfe_u32 v{VE+2}, v{VT+3}, 2, 2', f'v_cmp_eq_u32 vcc, s47, v{VE+2}', f'v_mov_b32 v{VE+2}, 0x40000000',
               f'v_and_b32 v{VE}, 0xff, v{VT+2}', f'v_cndmask_b32 v{VT+2}, v{VT+2}, v{VE+2}, vcc', f'v_lshlrev_b32 v{VE+1}, 2, v{VT+3}',
               f'v_add_u32 v{VE+1}, {OWN+16384}, v{VE+1}', f's_add_u32 s5, s36, {OWN}', f'v_add_u32 v{VE}, s5, v{VE}',
               f'v_and_b32 v{VE+1}, 0xfffffff0, v{VE+1}', f'v_cndmask_b32 v{VE}, v{VE+1}, v{VE}, vcc')])
    P('s_lshl_b32 s5, s42, 6', f'v_add_u32 v{X}, s5, v{VT+3}', f'v_lshlrev_b32 v{VT}, 20, v{X}')
    P('v_cmp_gt_u32 s[8:9], s7, v%d' % X, f'v_subrev_u32 v{X+1}, 32, v{X}', f'v_mov_b32 v{X+7}, 0x40000000')
    P(f'v_cndmask_b32 v{X}, v{X+1}, v{X}, s[8:9]', f'v_lshrrev_b32 v{X+1}, 4, v{X}')
    P(f'v_and_b32 v{X+2}, 15, v{X}', f'v_lshlrev_b32 v{X+2}, 4, v{X+2}', f'v_lshl_add_u32 v{X+3}, v{X+1}, 9, v{X+2}')
    P(f'v_mul_u32_u24 v{X+4}, 57, v{X+1}', f'v_lshrrev_b32 v{X+4}, 9, v{X+4}')
    P(f'v_mul_u32_u24 v{X+5}, 18, v{X+4}', f'v_add_u32 v{X+5}, v{X+5}, v{X+1}')
    P(f'v_lshl_add_u32 v{X+5}, v{X+5}, 8, v{X+2}', f'v_add_u32 v{X+5}, {OWN}, v{X+5}')
    P(f'v_mul_u32_u24 v{X+6}, 9, v{X+4}', f'v_sub_u32 v{X+1}, v{X+1}, v{X+6}')
    P(f'v_mul_u32_u24 v{X+4}, 48, v{X+4}', f'v_and_b32 v{X+6}, 3, v{X}', f'v_add_u32 v{X+4}, v{X+4}, v{X+6}')
    P(f'v_mul_u32_u24 v{X+4}, 1152, v{X+4}', f'v_lshl_add_u32 v{X+4}, v{X+1}, 5, v{X+4}')
    P(f'v_bfe_u32 v{X+6}, v{X}, 2, 2', f'v_lshl_add_u32 v{X+4}, v{X+6}, 3, v{X+4}')
    P(f'v_cndmask_b32 v{X+4}, v{X+7}, v{X+4}, s[8:9]')
    for i in range(3): P(f's_add_u32 s{48+i}, s47, {i+1}', f's_and_b32 s{48+i}, s{48+i}, 3', f's_mul_i32 s{48+i}, s{48+i}, {INB}')
    P('s_mov_b32 s10, 18432', 's_mov_b32 s11, 36864', 's_mov_b32 s39, 0xffff0000')
    fin = [E('s_mov_b32 s7, 288')] + fin
    lp = Block(ctx, 'op_loop'); lq = Block(ctx, 'op_rest')
    slots = [2, 3, 5, 6, 7, 8, 9]
    NIT = (16 - NW_ - 2) // 2
    if TST == 2:
        for it in range(NIT):
            stamp(lp, slots[it], it=True)
            for U in range(2): unit(lp, U, True, True, 4 * (NW_ - 2), 4 * (NO_ - 2))
    else:
        lp.e('OP_LOOP:')
        for U in range(2): unit(lp, U, True, True, 4 * (NW_ - 2), 4 * (NO_ - 2))
        lp.e('s_add_u32 s39, s39, 1'); lp.e(f's_cmp_lt_u32 s39, {NIT}'); lp.e('s_cbranch_scc1 OP_LOOP')
    for U in range(2 + 2 * NIT, 15):
        if U % 2 == 0: stamp(lq, slots[U // 2 - 1], it=True)
        ex = {13: fin[:len(fin) // 2], 14: fin[len(fin) // 2:]}.get(U, [])
        unit(lq, U, U + NW_ <= 15, U + NO_ <= 15, max(0, 4 * min(NW_ - 2, 14 - U)), max(0, 4 * min(NO_ - 2, 14 - U)), ex)
    lq.e('s_waitcnt lgkmcnt(0)')
    lq.e('s_barrier')
    mm = mmu(15)
    for r_, send, keep in ((A, keepB, keepA), (B, keepA, keepB)):
        with role(lq, r_):
            wr = [E(f'ds_write_b128 v{VA0}, {q4(4*t)} offset:{k*1024}', ('x',)) for k, t in enumerate(send)]
            seq = [mm[t] for t in send + keep]
            for k, m in enumerate(seq):
                m(lq)
                if k >= 8 and k - 8 < len(wr): wr[k - 8](lq)
            if r_ == B: lq.e('s_nop 1')
            for w in wr[7:]: w(lq)
    stamp(lq, 10, it=True)
    e = Block(ctx, 'op_end')
    stamp(e, 7)
    e.e('s_waitcnt lgkmcnt(0)')
    e.e('s_barrier')
    for r_, keep in ((A, keepA), (B, keepB)):
        with role(e, r_):
            for k, t in enumerate(keep): e.e(f'ds_read_b128 {q4(FB+4*k)}, v{VA1} offset:{k*1024}', ('y', k))
            for gi in range(len(keep) // 3):
                n = keep[3 * gi] // 3
                for k in range(3 * gi, 3 * gi + 3):
                    t = keep[k]
                    e.wait_lgkm(('y', k))
                    e.e(f'v_pk_add_f32 {q2(4*t)}, {q2(4*t)}, {q2(FB+4*k)}')
                    e.e(f'v_pk_add_f32 {q2(4*t+2)}, {q2(4*t+2)}, {q2(FB+4*k+2)}')
                for x in range(6):
                    e.e(f'v_cvt_pk_bf16_f32 v{G + 8*gi + 4*(x//3) + x%3}, v{12*n+2*x}, v{12*n+2*x+1}')
                if n in (0, 4):
                    role.n += 1; l = f'SK{role.n}'
                    e.e(f's_cmp_eq_u32 s{37 if n == 0 else 38}, 1'); e.e(f's_cbranch_scc1 {l}')
                e.e(f's_add_u32 s52, s4, {n*512}')
                for hf in range(2):
                    e.e(f'buffer_store_dwordx4 {q4(G+8*gi+4*hf)}, v{VT+2}, {srd(S_P)}, s52 offen offset:{hf*256} sc1', ('p',))
                for j in range(3): e.e(f'ds_write_b128 v{VE}, {q4(12*n+4*j)} offset:{j*2304 + n*256}', ('own',))
                if n in (0, 4): e.e(f'{l}:')
    e.e('s_waitcnt lgkmcnt(0)')
    e.e('s_barrier')
    stamp(e, 8)
    e.e('s_cmp_ge_u32 s42, 5')
    e.e('s_cbranch_scc1 OP_DONE')
    R0 = 168; OW = 64
    for j in range(3): e.e(f'ds_read_b128 {q4(OW+4*j)}, v{X+5} offset:{j*2304}', ('ow',))
    loads = '\n'.join(f'buffer_load_dwordx4 {q4(R0+8*src+4*hf)}, v{X+3}, {srd(S_PI)}, s{48+src} offen offset:{hf*256} sc1' for src in range(3) for hf in range(2))
    chk = [f'v_xor_b32 v{X+6}, s98, v{R0+3}']
    for k in range(1, 6):
        chk += [f'v_xor_b32 v{X+7}, s98, v{R0+4*k+3}', f'v_or_b32 v{X+6}, v{X+6}, v{X+7}']
    chk.append(f'v_cmp_ne_u32 vcc, 0, v{X+6}')
    poll(e, 'OP_P2', loads, '\n'.join(chk))
    stamp(e, 9)
    e.e(f'v_mov_b32 v{VT+1}, s97')
    e.e(f'buffer_store_dword v{VT+1}, v{VT}, {srd(S_F)}, s96 offen sc1', ('ep',))
    e.e('s_waitcnt lgkmcnt(0)')
    so = ['0', 's10', 's11']
    for j in range(3):
        for p in range(2):
            x = 2 * j + p
            for src in range(3):
                r = R0 + 8 * src + 4 * (x // 3) + x % 3
                e.e(f'v_lshlrev_b32 v{X+6}, 16, v{r}'); e.e(f'v_and_b32 v{X+7}, s39, v{r}')
                e.e(f'v_add_f32 v{OW+2*x}, v{OW+2*x}, v{X+6}'); e.e(f'v_add_f32 v{OW+2*x+1}, v{OW+2*x+1}, v{X+7}')
            e.e(f'v_cvt_pk_bf16_f32 v{OW+16+x}, v{OW+2*x}, v{OW+2*x+1}')
        e.e(f'buffer_store_dwordx2 {q2(OW+16+2*j)}, v{X+4}, {srd(S_OUT)}, {so[j]} offen')
    e.e('OP_DONE:')
    if STAMP:
        if not OPT.get('rt4'): stamp(e, 10)
        dump_stamps(e)
    e.e('K1_END:' if FUSED else 'K2_END:')
    e.e('s_endpgm')
    return b, lp, lq, e

def kernel1():
    ctx = MCtx(8)
    pro = k1_prologue(ctx)
    qp = k1_qproj(ctx)
    ap = k1_att_prologue(ctx)
    p1 = pv_phase(ctx, 'P1', SA, SB, head=lambda a: a.e('K1_LOOP:'), dma=guarded(dma_v, 0))
    SK2 = int(OPT.get('sk2', 2))
    p2 = qk_phase(ctx, 'P2', SA, SB, guarded(dma_k, 0) if KVREG else dma_k)
    p3 = pv_phase(ctx, 'P3', SB, SA, dma=guarded(dma_v, SK2) if KVREG == 1 else dma_v)
    p4 = qk_phase(ctx, 'P4', SB, SA, guarded(dma_k, SK2) if KVREG == 1 else dma_k)
    p4[2].e('s_add_u32 s44, s44, 1')
    p4[2].e('s_cmp_lt_u32 s44, 7')
    p4[2].e('s_cbranch_scc1 K1_LOOP')
    def warm(b):
        b.e(f'v_lshrrev_b32 v{KR}, 6, v{VL16}'); b.e(f'v_mul_u32_u24 v{KR}, 1152, v{KR}')
        b.e(f'v_and_b32 v{KR+1}, 48, v{VL16}'); b.e(f'v_lshlrev_b32 v{KR+1}, 3, v{KR+1}'); b.e(f'v_min_u32 v{KR+1}, 316, v{KR+1}')
        b.e(f'v_add_u32 v{KR}, v{KR}, v{KR+1}')
        b.e(f'buffer_load_dword v{SA+23}, v{KR}, s[28:31], 0 offen', ('warm',))
    l1 = pv_phase(ctx, 'L1', SA, SB, nextK=False, dma=warm if (FUSED and WARM) else None)
    l2 = Block(ctx, 'L2')
    l2.e(f's_waitcnt vmcnt({1 if WARM else 0})')
    l2.e('s_barrier')
    if OPT.get('l2s'): stamp(l2, 2)
    for t in range(4): vread(l2, t)
    run(l2, sm_fillers(SB)[SM_SPLIT:] + chk_fillers())
    l2.e('s_cbranch_vccnz L2_RARE')
    l2r = rare_path(ctx, 'L2', SB, None, 2)
    l3 = pv_phase(ctx, 'L3', SB, None, nextK=False, bar=False, head=lambda a: a.e('L2_JOIN:'), extra=tail_setup() if FUSED else ())
    l3.e('s_nop 7')
    ep = k1_epilogue(ctx)
    errs = []
    body = [p1, p2[0], p2[2], p3, p4[0], p4[2]]
    bodyr = [p1, p2[0], p2[1], p2[2], p3, p4[0], p4[1], p4[2]]
    last = [l1, l2, l3, ep]
    lastr = [l1, l2, l2r, l3, ep]
    tail = list(oproj(ctx)) if FUSED else []
    ttr = [tail[0], tail[1], tail[1], tail[2], tail[3]] if FUSED else []
    for r in ALLW:
        errs += check_trace([pro, qp, ap] + body + body + last + ttr, f'main{r}', r)
        errs += check_trace([pro, qp, ap] + bodyr + bodyr + body + lastr, f'rare{r}', r)
    if NOCOMP:
        for blk in body:
            keep = [i for i in blk if i.kind not in ('mfma', 'valu', 'trans') and not (NOCOMP > 1 and i.kind == 'ds') and 'vccnz' not in i.text]
            blk[:] = keep
        errs = []
    DROP = OPT.get('drop', '')
    if DROP:
        D = DROP.split(',')
        def dropit(i):
            t = i.text
            if 'vccnz' in t: return True
            if 'exp' in D and t.startswith('v_exp'): return True
            if 'add' in D and t.startswith('v_add_f32'): return True
            if 'cvt' in D and t.startswith('v_cvt'): return True
            if 'ds' in D and i.kind == 'ds': return True
            if 'wait' in D and i.kind == 'wait': return True
            if 'bar' in D and i.kind == 'barrier': return True
            if 'adv' in D and (t.startswith('v_add_u32') or t.startswith('s_cmp_ge') or t.startswith('s_cselect') or t.startswith('s_add_u32 s45') or t.startswith('s_add_u32 s46')): return True
            if 'mfma' in D and i.kind == 'mfma': return True
            return False
        for blk in body: blk[:] = [i for i in blk if not dropit(i)]
        errs = []
    order = [pro, qp, ap] + body + last + tail + [p2[1], p4[1], l2r]
    return order, errs

def kernel2():
    ctx = MCtx(8)
    b = Block(ctx, 'k2')
    b.e('s_cmp_ge_u32 s2, 256')
    b.e('s_cbranch_scc1 K2_END')
    b.e('s_load_dwordx8 s[12:19], s[0:1], 32')
    if STAMP:
        for i in range(6): b.e(f's_memtime s[{64+2*i}:{65+2*i}]')
        b.e('s_memrealtime s[86:87]')
    b.e('v_lshrrev_b32 v1, 6, v0')
    b.e('v_and_b32 v0, 63, v0')
    b.e('v_readfirstlane_b32 s42, v1')
    b.e('s_and_b32 s43, s2, 7'); b.e('s_lshr_b32 s44, s2, 3')
    b.e('s_and_b32 s40, s43, 1'); b.e('s_lshl_b32 s40, s40, 2'); b.e('s_and_b32 s45, s44, 3'); b.e('s_add_u32 s40, s40, s45')
    b.e('s_lshr_b32 s41, s43, 1'); b.e('s_lshl_b32 s41, s41, 3'); b.e('s_lshr_b32 s46, s44, 2'); b.e('s_add_u32 s41, s41, s46')
    b.e(f'v_lshlrev_b32 v{VL16}, 4, v0')
    b.e('s_waitcnt lgkmcnt(0)')
    flag_srd(b)
    epoch_load(b, 222)
    b.e('s_waitcnt vmcnt(0)')
    epoch_tags(b, 222)
    run(b, tail_setup())
    t = oproj(ctx)
    errs = []
    for r in ALLW: errs += check_trace([b, t[0], t[1], t[1], t[2], t[2], t[3]], f'k2_{r}', r)
    return [b] + list(t), errs

HEADER = open('standalone__mha_block_cached__near_ridge.s.ref').read().split('; Override')[0]

def kd(name, vgpr, sgpr=96):
    return f'''.amdhsa_kernel {name}
  .amdhsa_next_free_vgpr {vgpr}
  .amdhsa_next_free_sgpr {sgpr}
  .amdhsa_accum_offset {(vgpr+3)//4*4}
  .amdhsa_group_segment_fixed_size 0
  .amdhsa_kernarg_size 64
  .amdhsa_user_sgpr_count 2
  .amdhsa_user_sgpr_kernarg_segment_ptr 1
  .amdhsa_system_sgpr_workgroup_id_x 1
.end_amdhsa_kernel
'''

def main():
    k1, e1 = kernel1()
    k2, e2 = kernel2() if not FUSED else ([], [])
    for e in list(dict.fromkeys(x.split('] ', 1)[1] for x in e1 + e2))[:12]: print('CHECK', e, file=sys.stderr)
    out = HEADER
    if FUSED:
        N = 'standalone__mha_block_cached__near_ridge_kernel'
        out += f'; @launch grid=(256,1,1) block=(512,1,1) lds={LDS_TOT}\n'
        ks = [(N, k1)]
    else:
        out += f'; @launch kernel=mha_attn_kernel grid=(256,1,1) block=(512,1,1) lds={LDS_TOT}\n'
        out += f'; @launch kernel=mha_oproj_kernel grid=(256,1,1) block=(512,1,1) lds={LDS_TOT}\n'
        ks = [('mha_attn_kernel', k1), ('mha_oproj_kernel', k2)]
    out += '.amdgcn_target "amdgcn-amd-amdhsa--gfx950"\n.text\n'
    for name, blocks in ks:
        out += f'.globl {name}\n.p2align 8\n.type {name},@function\n{name}:\n'
        out += '\n'.join(b.text() for b in blocks) + '\n'
    out += '.section .rodata,"a"\n'
    for name, _ in ks: out += '.p2align 6\n' + kd(name, 256, 102)
    open(sys.argv[1], 'w').write(out)
    if e1 or e2: sys.exit(1)
main()
```

```python
import sys, struct, math
from asmlib import *

OPT = dict(a.split('=') for a in sys.argv[2:] if '=' in a)
STAMP = int(OPT.get('stamp', 0))
KVPOL = OPT.get('kvpol', 'nt')
XPOL = OPT.get('xpol', '')
WPOL = OPT.get('wpol', '')
OSTPOL = OPT.get('ostpol', 'sc1' if OPT.get('fused', '1') == '1' else '')
OLDPOL = OPT.get('oldpol', '')
WOPOL = OPT.get('wopol', '')
THR = float(OPT.get('thr', 2048.0))
NOBARQK = int(OPT.get('nobarqk', 1))
SKIPT = int(OPT.get('skipt', 0))
STAG = int(OPT.get('stag', 0))
ROT = int(OPT.get('rot', 1))
ROT2 = int(OPT.get('rot2', 1))
SM_SPLIT = int(OPT.get('split', 24))
CHK_AT = int(OPT.get('chk', 8))
PRIO = int(OPT.get('prio', 0))
K2D = int(OPT.get('k2d', 4))
NODMA = int(OPT.get('nodma', 0))
NOCOMP = int(OPT.get('nocomp', 0))
NOKVQ = int(OPT.get('nokvq', 0))
FUSED = int(OPT.get('fused', 1))
OLD2 = OPT.get('old2', 'sc1')
SLEEP = int(OPT.get('sleep', 1))
F1POL = OPT.get('f1pol', 'sc1')
WOPRE = int(OPT.get('wopre', 5))
TOUCH = int(OPT.get('touch', 0))
WOEARLY = int(OPT.get('woearly', 0))
WARM = int(OPT.get('warm', 1))
FAST = int(OPT.get('fast', 0))
PAIRW = int(OPT.get('pairw', 1))
KVREG = int(OPT.get('kvreg', 0))
KV1 = int(OPT.get('kv1', 1))
NC = int(OPT.get('nc', 1))
EARLY = int(OPT.get('early', 0))
ORD = int(OPT.get('ord', 1))
NOX = int(OPT.get('nox', 0))
NOWQ = int(OPT.get('nowq', 0))
MAP = OPT.get('map', '4x8')
KVSCHED = [int(x) for x in OPT.get('kvs', '0,2,3,5,6,8,9,11,12,14').split(',') if x]

def f2u(f): return struct.unpack('<I', struct.pack('<f', f))[0]
SCALE = math.log2(math.e) / math.sqrt(128.0)
MF = 'v_mfma_f32_16x16x32_bf16'
def q4(n): return f'v[{n}:{n+3}]'
def q2(n): return f'v[{n}:{n+1}]'

ACC = 0; QF = 96; SA = 144; SB = 168; KR = 192; VR = 208; NEGM = 224
TMP = 236; VK = 248; VVE = 249; VVO = 250; LS = 251; VL16 = 254; VKV = 255
RING = 10; CH = 16384; LDS_TOT = RING * CH
QB = 114688
SLOT = 40960
S_K, S_V, S_X, S_WQ, S_O = 20, 24, 28, 32, 36
FS = 96
VXD = 208; VWD = 211; VXR = 213; VAE = 215; VAO = 217; VQE = 219; VQO = 220; VQR = 221; VKW = 244
def srd(n): return f's[{n}:{n+3}]'
def acc(t, jt): return ACC + 12 * t + 4 * jt
def qf(s, jt): return QF + 12 * s + 4 * jt
def st(S, kt, jt): return S + 12 * kt + 4 * jt
ALLW = list(range(8))
A, B = (0, 1, 2, 3), (4, 5, 6, 7)

TST = int(OPT.get('tst', 0))
def stamp(b, idx, fine=False, it=False):
    if TST == 2:
        if it or idx in (0, 4): b.e(f's_memtime s[{64+2*idx}:{65+2*idx}]')
        return
    if it: return
    if TST and idx in (1, 2, 3) and not fine: return
    if fine and not TST: return
    if STAMP: b.e(f's_memtime s[{64+2*idx}:{65+2*idx}]')

class role:
    n = 0
    def __init__(self, b, waves): self.b, self.w = b, list(waves)
    def __enter__(self):
        role.n += 1; self.l = f'RL{role.n}'
        self.b.e(f's_bitcmp1_b32 {sum(1 << w for w in self.w)}, s42')
        self.b.e(f's_cbranch_scc0 {self.l}')
        self.b.ctx.active = self.w
    def __exit__(self, *a):
        self.b.ctx.active = ALLW
        self.b.e(f'{self.l}:')

def E(text, tag=None): return lambda b: b.e(text, tag)
def run(b, lst):
    for f in lst: f(b)

def chunk_of(n):
    if n == 0: return ('K', 0)
    if n % 2 == 1: return ('K', (n + 1) // 2)
    return ('V', (n - 2) // 2)

def k1_prologue(ctx):
    b = Block(ctx, 'k1_pro')
    b.e('s_cmp_ge_u32 s2, 256')
    b.e('s_cbranch_scc1 K1_END')
    b.e('s_load_dwordx8 s[4:11], s[0:1], 0')
    b.e('s_load_dwordx8 s[12:19], s[0:1], 32')
    if STAMP:
        b.e('s_memtime s[64:65]')
        b.e('s_memrealtime s[86:87]')
    b.e('v_lshrrev_b32 v1, 6, v0')
    b.e('v_and_b32 v0, 63, v0')
    b.e('v_readfirstlane_b32 s42, v1')
    b.e('s_and_b32 s43, s2, 7')
    b.e('s_lshr_b32 s44, s2, 3')
    nb = int(MAP.split('x')[0]); lb = nb.bit_length() - 1
    nh = 32 // nb; xb = 8 // nb
    b.e(f's_and_b32 s40, s43, {xb - 1}')
    b.e(f's_lshl_b32 s40, s40, {lb}')
    b.e(f's_and_b32 s45, s44, {nb - 1}')
    b.e('s_add_u32 s40, s40, s45')
    b.e(f's_lshr_b32 s41, s43, {xb.bit_length() - 1}')
    b.e(f's_lshl_b32 s41, s41, {nh.bit_length() - 1}')
    b.e(f's_lshr_b32 s46, s44, {lb}')
    b.e('s_add_u32 s41, s41, s46')
    m = max(nb, nh)
    b.e(f's_mul_i32 s45, s45, {32 // nb}')
    b.e(f's_mul_i32 s46, s46, {32 // nh}')
    b.e('s_add_u32 s45, s45, s46')
    b.e('s_and_b32 s45, s45, 31')
    b.e(f's_mul_i32 s45, s45, {9 - NC}')
    b.e('s_lshr_b32 s45, s45, 5')
    b.e(f's_add_u32 s45, s45, {NC}')
    b.e('s_lshl_b32 s100, s45, 7')
    b.e('s_lshl_b32 s101, s45, 19')
    b.e('s_mov_b32 s57, 0' if NC else 's_mov_b32 s57, s100')
    b.e('s_mov_b32 s58, 0' if NC else 's_mov_b32 s58, s101')
    b.e('s_lshl_b32 s45, s40, 5')
    b.e('s_add_u32 s45, s45, s41')
    b.e('s_lshl_b32 s45, s45, 18')
    b.e('s_mul_i32 s46, s40, 221184')
    b.e('s_lshl_b32 s47, s41, 8')
    b.e('s_mul_i32 s48, s40, 1572864')
    b.e('s_and_b32 s53, s42, 3')
    b.e('s_lshr_b32 s54, s42, 2')
    b.e('v_bfe_u32 v4, v0, 2, 3')
    b.e('v_lshrrev_b32 v5, 5, v0')
    b.e('v_and_b32 v3, 3, v0')
    b.e('v_lshrrev_b32 v7, 2, v4')
    b.e('v_lshlrev_b32 v8, 1, v7')
    b.e('v_xor_b32 v6, v3, v8')
    b.e('v_lshlrev_b32 v6, 4, v6')
    b.e('v_lshl_add_u32 v6, v5, 6, v6')
    b.e('s_lshr_b32 s43, s53, 1')
    b.e('s_and_b32 s44, s42, 1')
    b.e('v_and_b32 v9, 3, v4')
    b.e('v_lshl_add_u32 v9, v7, 3, v9')
    b.e('s_lshl_b32 s55, s43, 4')
    b.e('s_lshl_b32 s62, s54, 2')
    b.e('s_add_u32 s55, s55, s62')
    b.e('v_add_u32 v9, s55, v9')
    b.e('v_lshl_add_u32 v9, v9, 13, v6')
    b.e('s_lshl_b32 s55, s44, 7')
    b.e(f'v_add_u32 v{VWD}, s55, v9')
    b.e(f'v_add_u32 v{VWD+1}, {32*8192-1024}, v{VWD}')
    b.e('s_lshl_b32 s60, s42, 11')
    b.e('s_mul_i32 s63, s42, 3')
    for i in range(3):
        b.e(f's_add_u32 s62, s63, {i}')
        b.e('s_and_b32 s56, s62, 1')
        b.e('s_lshl_b32 s56, s56, 3')
        b.e('s_add_u32 s56, s56, 12')
        b.e('s_lshr_b32 s62, s62, 1')
        b.e('s_lshl_b32 s62, s62, 4')
        b.e('v_add_u32 v9, s56, v4')
        b.e('v_and_b32 v9, 15, v9')
        b.e('v_add_u32 v9, s62, v9')
        b.e('v_mul_u32_u24 v9, 1152, v9')
        b.e('v_add_u32 v9, v9, v6')
        if i: b.e(f'v_subrev_u32 v{VXD+i}, {i*1024}, v9')
        else: b.e(f'v_mov_b32 v{VXD}, v9')
    b.e('s_lshl_b32 s59, s63, 10')
    b.e('s_add_u32 s59, s59, 16384')
    b.e('s_waitcnt lgkmcnt(0)')
    b.e(f's_add_u32 s{S_X}, s4, s46');  b.e(f's_addc_u32 s{S_X+1}, s5, 0')
    b.e(f's_mov_b32 s{S_X+2}, 221184'); b.e(f's_mov_b32 s{S_X+3}, 0x20000')
    b.e(f's_add_u32 s{S_WQ}, s10, s47'); b.e(f's_addc_u32 s{S_WQ+1}, s11, 0')
    b.e(f's_sub_u32 s{S_WQ+2}, 4718592, s47'); b.e(f's_mov_b32 s{S_WQ+3}, 0x20000')
    b.e(f's_add_u32 s{S_K}, s6, s45');  b.e(f's_addc_u32 s{S_K+1}, s7, 0')
    b.e(f's_mov_b32 s{S_K+2}, 262144'); b.e(f's_mov_b32 s{S_K+3}, 0x20000')
    b.e(f's_add_u32 s{S_V}, s8, s45');  b.e(f's_addc_u32 s{S_V+1}, s9, 0')
    b.e(f's_mov_b32 s{S_V+2}, 262144'); b.e(f's_mov_b32 s{S_V+3}, 0x20000')
    b.e(f's_add_u32 s{S_O}, s18, s48'); b.e(f's_addc_u32 s{S_O+1}, s19, 0')
    b.e(f's_mov_b32 s{S_O+2}, 1572864'); b.e(f's_mov_b32 s{S_O+3}, 0x20000')
    return b

RC = 1
def slot(n): return ((n + RC) % RING) * CH

def qslot(D): return ((D + 3) % 4) * SLOT

def qnext(b, D):
    if D + 1 == NC:
        b.e('s_mov_b32 s57, s100'); b.e('s_mov_b32 s58, s101')
    else:
        b.e('s_cmp_eq_u32 s61, 1152')
        b.e(f's_cselect_b32 s57, {NC*128}, s61')
        b.e(f's_cselect_b32 s58, {NC*524288}, s58')

def qdma_parts(D):
    P = []
    P.append(lambda b: (b.e(f's_add_u32 m0, s60, {qslot(D)}'), b.e('s_add_u32 s61, s57, 128'),
                        b.e(f'buffer_load_dwordx4 v{VWD}, {srd(S_WQ)}, s58 offen {WPOL} lds', ('q', D))))
    P.append(lambda b: (b.e(f'buffer_load_dwordx4 v{VWD+1}, {srd(S_WQ)}, s58 offen offset:1024 {WPOL} lds', ('q', D)),
                        b.e(f's_add_u32 m0, s59, {qslot(D)}'), b.e('s_add_u32 s58, s58, 524288')))
    for i in range(2): P.append(E(f'buffer_load_dwordx4 v{VXD+i}, {srd(S_X)}, s57 offen offset:{i*1024} {XPOL} lds', ('q', D)))
    P.append(lambda b: (b.e(f'buffer_load_dwordx4 v{VXD+2}, {srd(S_X)}, s57 offen offset:2048 {XPOL} lds', ('q', D)),
                        qnext(b, D)))
    return P

def qdma(b, D):
    b.e(f's_add_u32 m0, s60, {qslot(D)}')
    b.e('s_add_u32 s61, s57, 128')
    for h in range(0 if NOWQ else 2):
        b.e(f'buffer_load_dwordx4 v{VWD+h}, {srd(S_WQ)}, s58 offen offset:{h*1024} {WPOL} lds', ('q', D))
    b.e(f's_add_u32 m0, s59, {qslot(D)}')
    b.e('s_add_u32 s58, s58, 524288')
    for i in range(0 if NOX else 3):
        b.e(f'buffer_load_dwordx4 v{VXD+i}, {srd(S_X)}, s57 offen offset:{i*1024} {XPOL} lds', ('q', D))
    qnext(b, D)

def kvpair_static(b, n):
    c = chunk_of(n)
    S = S_K if c[0] == 'K' else S_V
    b.e(f's_add_u32 m0, s52, {slot(n)}')
    b.e(f's_mov_b32 s56, {c[1] * CH}')
    b.e(f'buffer_load_dwordx4 v{VKV}, {srd(S)}, s56 offen {KVPOL} lds', ('kv', n))
    b.e(f'buffer_load_dwordx4 v{VKV}, {srd(S)}, s56 offen offset:2048 {KVPOL} lds', ('kv', n))

POFF = 0x2000000; FOFF = 0x3000000; INB = 9216
S_F = 92
def flag_srd(b):
    b.e(f's_add_u32 s{S_F}, s18, {FOFF}'); b.e(f's_addc_u32 s{S_F+1}, s19, 0')
    b.e(f's_mov_b32 s{S_F+2}, {32768+1024}'); b.e(f's_mov_b32 s{S_F+3}, 0x20000')
    b.e('s_lshl_b32 s90, s40, 5'); b.e('s_add_u32 s90, s90, s41'); b.e('s_lshl_b32 s90, s90, 7')
    b.e('s_lshl_b32 s96, s40, 7'); b.e('s_add_u32 s96, s96, 32768')

def epoch_load(b, v):
    b.e(f'v_mov_b32 v{v}, 0')
    b.e(f'buffer_load_dword v{v+1}, v{v}, {srd(S_F)}, s96 offen sc1', ('ep',))

def epoch_tags(b, v):
    b.e(f'v_readfirstlane_b32 s97, v{v+1}')
    b.e('s_nop 0')
    b.e('s_mul_i32 s97, s97, 0x9e3779b1')
    b.e('s_add_u32 s97, s97, 0x7f4a7c15')
    b.e('s_xor_b32 s98, s97, 0x80000000')

def one_lane(b, v):
    b.e(f's_lshl_b32 s91, s42, 6')
    b.e(f'v_add_u32 v{v}, s91, v0')
    b.e(f'v_lshlrev_b32 v{v}, 20, v{v}')

def kvreg_of(n): return 48 + 8 * n if n < 6 else 224 + 8 * (n - 6)
def kv_to_regs(b, n):
    c = chunk_of(n)
    S = S_K if c[0] == 'K' else S_V
    r = kvreg_of(n)
    b.e(f's_mov_b32 s56, {c[1] * CH}')
    b.e(f'buffer_load_dwordx4 {q4(r)}, v{VKV}, {srd(S)}, s56 offen {KVPOL}', ('kv', n))
    b.e(f'buffer_load_dwordx4 {q4(r+4)}, v{VKV}, {srd(S)}, s56 offen offset:2048 {KVPOL}', ('kv', n))
def kv_to_lds(n):
    r = kvreg_of(n)
    o = slot(n) % 65536
    v = VKW + slot(n) // 65536
    return [lambda b: (b.wait_vm(('kv', n)), b.e(f'ds_write_b128 v{v}, {q4(r)} offset:{o}', ('kw',))),
            E(f'ds_write_b128 v{v}, {q4(r+4)} offset:{o+2048}', ('kw',))]

def k1_qproj(ctx):
    b = Block(ctx, 'qproj')
    flag_srd(b)
    if FUSED: epoch_load(b, 222)
    qdma(b, 0)
    b.e('v_lshl_add_u32 v9, v4, 8, v6')
    b.e('s_lshl_b32 s46, s43, 12')
    b.e('s_lshl_b32 s47, s54, 13')
    b.e('s_add_u32 s46, s46, s47')
    b.e('s_add_u32 s45, s55, s46')
    b.e(f'v_add_u32 v{VKV}, s45, v9')
    b.e('s_lshl_b32 s47, s44, 10')
    b.e('s_add_u32 s52, s46, s47')
    qdma(b, 1)
    b.e('v_lshrrev_b32 v10, 4, v0')
    b.e('v_and_b32 v6, 15, v0')
    b.e('v_lshrrev_b32 v7, 2, v6')
    b.e('v_and_b32 v8, 1, v10')
    b.e('v_lshl_add_u32 v5, v8, 2, v7')
    b.e('v_lshlrev_b32 v5, 6, v5')
    b.e('v_lshl_add_u32 v5, v8, 5, v5')
    b.e('v_lshl_add_u32 v5, v3, 3, v5')
    b.e('v_lshrrev_b32 v9, 1, v10')
    b.e('v_lshl_add_u32 v5, v9, 12, v5')
    b.e('s_lshl_b32 s45, s54, 11')
    b.e(f'v_add_u32 v{VAE}, s45, v5')
    b.e(f'v_add_u32 v{VAE+1}, {2*SLOT}, v{VAE}')
    b.e(f'v_xor_b32 v{VAO}, 32, v{VAE}')
    b.e(f'v_xor_b32 v{VAO+1}, 32, v{VAE+1}')
    b.e('v_add_u32 v5, 4, v6')
    b.e('v_bfe_u32 v11, v5, 3, 1')
    b.e('v_and_b32 v12, 7, v5')
    b.e('v_lshrrev_b32 v13, 2, v12')
    b.e('v_lshlrev_b32 v13, 1, v13')
    b.e('v_lshlrev_b32 v14, 6, v12')
    b.e('v_xor_b32 v15, v13, v10')
    b.e('v_lshl_add_u32 v15, v15, 4, v14')
    b.e('s_mul_i32 s46, s53, 6144')
    b.e('s_add_u32 s46, s46, 16384')
    b.e('v_lshl_add_u32 v5, v11, 10, v15')
    b.e(f'v_add_u32 v{VXR}, s46, v5')
    b.e(f'v_add_u32 v{VXR+1}, {2*SLOT}, v{VXR}')
    b.e('v_lshl_add_u32 v15, v11, 11, v15')
    b.e('v_lshl_add_u32 v14, v11, 11, v14')
    b.e('s_lshl_b32 s47, s54, 13')
    b.e(f'v_add_u32 v{VK}, s47, v15')
    b.e(f'v_add_u32 v{VK}, {slot(0)}, v{VK}')
    b.e('s_mul_i32 s46, s53, 12288')
    b.e(f's_add_u32 s46, s46, {QB}')
    b.e(f'v_add_u32 v{VQR}, s46, v15')
    b.e('v_xor_b32 v15, v13, v9')
    b.e('v_lshl_add_u32 v15, v15, 4, v14')
    b.e('v_lshl_add_u32 v15, v8, 3, v15')
    b.e('s_lshl_b32 s45, s54, 10')
    b.e('s_add_u32 s46, s46, s45')
    b.e(f'v_add_u32 v{VQE}, s46, v15')
    b.e(f'v_xor_b32 v{VQO}, 32, v{VQE}')
    b.e('v_add_u32 v5, 1, v10')
    b.e('v_bfe_u32 v11, v5, 1, 1')
    b.e('v_and_b32 v12, 1, v5')
    b.e('v_lshl_add_u32 v13, v12, 2, v7')
    b.e('v_lshlrev_b32 v13, 6, v13')
    b.e('v_lshl_add_u32 v13, v12, 5, v13')
    b.e('v_lshl_add_u32 v13, v3, 3, v13')
    b.e('v_lshl_add_u32 v13, v11, 11, v13')
    b.e(f's_add_u32 s47, s47, {slot(2)}')
    b.e(f'v_add_u32 v{VVE}, s47, v13')
    b.e(f'v_xor_b32 v{VVO}, 32, v{VVE}')
    b.e(f'v_lshlrev_b32 v{VL16}, 4, v0')
    b.e(f'v_add_u32 v{VKW}, s52, v{VL16}')
    b.e(f'v_add_u32 v{VKW+1}, 65536, v{VKW}')
    b.e(f'v_add_u32 v{VKW+2}, 131072, v{VKW}')
    b.e(f's_mov_b32 s48, {hex(f2u(SCALE))}')
    b.e(f's_mov_b32 s50, {(2*CH - LDS_TOT) & 0xffffffff}')
    b.e(f's_mov_b32 s51, {2*CH}')
    b.e(f's_mov_b32 s46, {slot(2)}')
    def fA(D, h, tt): return FS + 56 * (D % 2) + 28 * h + 4 * tt
    def fB(D, h, jt): return FS + 56 * (D % 2) + 28 * h + 16 + 4 * jt
    def reads(D):
        sl = ((D + 3) % 4); hi = sl // 2; o = (sl % 2) * SLOT
        r = []
        for h in range(2):
            for jt in range(3):
                r.append(E(f'ds_read_b128 {q4(fB(D,h,jt))}, v{VXR+hi} offset:{o + jt*2048 + h*512}', ('f', D)))
            for tt in range(4):
                for u in range(2):
                    r.append(E(f'ds_read_b64_tr_b16 {q2(fA(D,h,tt)+2*u)}, v{(VAO if tt%2 else VAE)+hi} offset:{o + u*8192 + h*1024 + (tt//2)*512}', ('f', D)))
        return r
    zero = [E(f'v_mov_b32 v{i}, 0') for i in range(48, 96)] + [E(f'v_mov_b32 v{LS+i}, 0') for i in range(3)]
    b.wait_vm(('q', 0))
    b.e('s_barrier')
    stamp(b, 1)
    run(b, reads(0))
    if FUSED:
        epoch_tags(b, 222)
    qdma(b, 2)
    issue = {0: [3, 4], 1: [5], 2: [6], 3: [7], 4: [8]}
    kvi = {5: [0], 6: [1, 2], 7: [3], 8: [4]}
    kvr = {}; kvw = {}
    if KVREG == 2:
        kvr = {4: [0, 1], 5: [2]}; kvw = {6: [0, 1, 2]}; kvi = {6: [3], 7: [4], 8: [5]}
    if KVREG == 1:
        kvi = {}
        kvr = {KV1 + i: [i] for i in range(6)} if KV1 + 5 <= 6 else {2: [0], 3: [1], 4: [2], 5: [3], 6: [4, 5]}
        kvr[7] = [6]; kvr[8] = [7]
        kvw = {6: [0, 1, 2, 3], 7: [4, 5]}
    for D in range(9):
        b.e('s_waitcnt lgkmcnt(0)')
        if D + 1 < 9: b.wait_vm(('q', D + 1))
        b.e('s_barrier')
        dm = [(lambda b, x=x: qdma(b, x)) for x in issue.get(D, [])] + [(lambda b, x=x: kvpair_static(b, x)) for x in kvi.get(D, [])]
        dm += [(lambda b, x=x: kv_to_regs(b, x)) for x in kvr.get(D, [])]
        wr = sum((kv_to_lds(x) for x in kvw.get(D, [])), [])
        if KVREG == 2: zs = zero[24 + 5 * D:29 + 5 * D] if D < 6 else {7: zero[:24]}.get(D, [])
        elif KVREG: zs = {7: zero[:32] + zero[48:], 8: zero[32:48]}.get(D, [])
        else: zs = zero[7 * D:7 * D + 7]
        mf = []
        if D < 8:
            for h in range(2):
                for tt in range(4):
                    for jt in range(3):
                        d = q4(acc(tt, jt))
                        mf.append(E(f'{MF} {d}, {q4(fA(D,h,tt))}, {q4(fB(D,h,jt))}, {"0" if D == 0 and h == 0 else d}'))
            rd = reads(D + 1)
            fill = []
            QS = int(OPT.get('qs', 1))
            if QS:
                dm = sum((qdma_parts(x) for x in issue.get(D, [])), []) + dm[len(issue.get(D, [])):]
                step = max(1, len(rd) // max(1, len(dm)))
                for k, x in enumerate(rd):
                    fill.append(x)
                    if dm and k % step == step - 1: fill.append(dm.pop(0))
                fill += dm; dm = []
            for k, x in enumerate(rd if not QS else []):
                fill.append(x)
                if dm and k % 6 == 1: fill.append(dm.pop(0))
            assert not dm
            run(b, interleave(mf, wr + fill + zs, end=int(OPT.get('qe', 21)) + (2 if len(zs) > 8 else 0)))
        else:
            tiles = [(tt, jt) for tt in range(4) for jt in range(3)]
            def conv(tt, jt):
                a = acc(tt, jt)
                return [E(f'v_mul_f32 v{a+i}, s48, v{a+i}') for i in range(4)] + [
                    E(f'v_cvt_pk_bf16_f32 v{a}, v{a}, v{a+1}'), E(f'v_cvt_pk_bf16_f32 v{a+1}, v{a+2}, v{a+3}'),
                    E(f'ds_write_b64 v{VQO if tt%2 else VQE}, {q2(a)} offset:{jt*4096 + (tt//2)*512}', ('qw',))]
            LAG = 3
            run(b, dm)
            run(b, zs)
            for k, (tt, jt) in enumerate(tiles):
                d = q4(acc(tt, jt))
                cv = conv(*tiles[k - LAG]) if k >= LAG else []
                if k == LAG: b.e('s_nop 2')
                b.e(f'{MF} {d}, {q4(fA(D,0,tt))}, {q4(fB(D,0,jt))}, {d}')
                run(b, cv[:3])
                b.e(f'{MF} {d}, {q4(fA(D,1,tt))}, {q4(fB(D,1,jt))}, {d}')
                run(b, cv[3:])
            stamp(b, 2)
            for k in range(12 - LAG, 12):
                if k == 11: b.e('s_nop 0')
                run(b, conv(*tiles[k]))
    b.e('s_waitcnt lgkmcnt(0)')
    if not KVREG: b.wait_vm(('kv', 1))
    b.e('s_barrier')
    if not KVREG: kvpair_static(b, 5)
    for s in range(4):
        for jt in range(3):
            b.e(f'ds_read_b128 {q4(qf(s,jt))}, v{VQR} offset:{jt*4096 + (s//2)*1024 + (s%2)*512}', ('qr', s))
    return b

def kread(b, f):
    kt, s = f // 4, f % 4
    b.e(f'ds_read_b128 {q4(KR+4*(f%4))}, v{VK} offset:{kt*4096 + (s//2)*1024 + (s%2)*512}', ('k', f))
def vread(b, t):
    tau = t // 2
    a = VVO if t % 2 else VVE
    for u in range(2):
        b.e(f'ds_read_b64_tr_b16 {q2(VR+4*(t%4)+2*u)}, v{a} offset:{u*4096 + (tau//2)*1024 + (tau%2)*512}', ('v', t))
def kadv(b, first=False):
    if first:
        b.e(f'v_add_u32 v{VK}, {CH}, v{VK}')
        b.e(f's_mov_b32 s45, {slot(1)}')
        return
    b.e(f's_cmp_ge_u32 s45, {LDS_TOT - 2*CH}')
    b.e(f's_cselect_b32 s47, s50, s51')
    b.e(f's_add_u32 s45, s45, s47')
    b.e(f'v_add_u32 v{VK}, s47, v{VK}')
def vadv(b):
    b.e(f's_cmp_ge_u32 s46, {LDS_TOT - 2*CH}')
    b.e(f's_cselect_b32 s47, s50, s51')
    b.e(f's_add_u32 s46, s46, s47')
    b.e(f'v_add_u32 v{VVE}, s47, v{VVE}')
    b.e(f'v_add_u32 v{VVO}, s47, v{VVO}')


def dma_k(b):
    b.e('s_mov_b32 m0, s57')
    b.e(f's_cmp_ge_u32 s57, s61')
    b.e(f'buffer_load_dwordx4 v{VKV}, {srd(S_K)}, s59 offen {KVPOL} lds', ('kd',))
    b.e(f'buffer_load_dwordx4 v{VKV}, {srd(S_K)}, s59 offen offset:2048 {KVPOL} lds', ('kd',))
    b.e('s_cselect_b32 s62, s50, s51')
    b.e('s_add_u32 s57, s57, s62')
    b.e(f's_add_u32 s59, s59, {CH}')
def dma_v(b):
    b.e('s_mov_b32 m0, s58')
    b.e(f's_cmp_ge_u32 s58, s61')
    b.e(f'buffer_load_dwordx4 v{VKV}, {srd(S_V)}, s60 offen {KVPOL} lds', ('vd',))
    b.e(f'buffer_load_dwordx4 v{VKV}, {srd(S_V)}, s60 offen offset:2048 {KVPOL} lds', ('vd',))
    b.e('s_cselect_b32 s62, s50, s51')
    b.e('s_add_u32 s58, s58, s62')
    b.e(f's_add_u32 s60, s60, {CH}')

PS = TMP + 8

def guarded(fn, T):
    def g(b):
        if T is None: return fn(b)
        role.n += 1; l = f'SK{role.n}'
        b.e(f's_cmp_eq_u32 s44, {T}')
        b.e(f's_cbranch_scc1 {l}')
        fn(b)
        b.e(f'{l}:')
    return g

def qk_backbone(S, cinit, nextV=True, first=False, qwait=False, dma=None):
    bb = []
    for f in range(8):
        kt, s = f // 4, f % 4
        for jt in range(3):
            def slot(b, f=f, kt=kt, s=s, jt=jt):
                if jt == 0:
                    if qwait and f < 4: b.wait_lgkm(('qr', s))
                    if not PAIRW: b.wait_lgkm(('k', f))
                    elif f % 2 == 0: b.wait_lgkm(('k', f + 1)); b.wait_lgkm(('k', f))
                d = q4(st(S, kt, jt))
                c = d if s else (q4(NEGM + 4 * jt) if cinit == 'negm' else '0')
                b.e(f'{MF} {d}, {q4(KR+4*(f%4))}, {q4(qf(s,jt))}, {c}')
                if jt == 2:
                    if f < 4: kread(b, f + 4)
                    if f == 3: kadv(b, first)
                    if f >= 4:
                        if nextV == 'K': kread(b, f - 4)
                        elif nextV: vread(b, f - 4)
                if dma and not NODMA and f == 0 and jt == 1: dma(b)
            bb.append(slot)
    return bb

def pv_backbone(P, nextK=True, dma=None, adv=True):
    bb = []
    for t in range(8):
        for jt in range(3):
            def slot(b, t=t, jt=jt):
                if jt == 0:
                    if not PAIRW: b.wait_lgkm(('v', t))
                    elif t % 2 == 0: b.wait_lgkm(('v', t + 1)); b.wait_lgkm(('v', t))
                d = q4(acc(t, jt))
                b.e(f'{MF} {d}, {q4(VR+4*(t%4))}, {q4(st(P,0,jt))}, {d}')
                if jt == 2:
                    if t < 4: vread(b, t + 4)
                    if t == 3 and adv: vadv(b)
                    if t >= 4 and nextK: kread(b, t - 4)
                if dma and not NODMA and t == 0 and jt == 1: dma(b)
            bb.append(slot)
    return bb

def sregs(S, jt): return [st(S, 0, jt) + i for i in range(4)] + [st(S, 1, jt) + i for i in range(4)]

def sm_fillers(S):
    fl = []
    for kt in range(2):
        for jt in range(3):
            r = sregs(S, jt)
            o = 4 * kt
            fl.append(E(f'v_exp_f32 v{r[o]}, v{r[o]}'))
            fl.append(E(f'v_exp_f32 v{r[o+1]}, v{r[o+1]}'))
            if kt: fl.append(E(f'v_add_f32 v{PS+jt}, v{PS+jt}, v{r[o]}'))
            fl.append(E(f'v_exp_f32 v{r[o+2]}, v{r[o+2]}'))
            if kt: fl.append(E(f'v_add_f32 v{PS+jt}, v{PS+jt}, v{r[o+1]}'))
            else: fl.append(E(f'v_add_f32 v{PS+jt}, v{r[0]}, v{r[1]}'))
            fl.append(E(f'v_exp_f32 v{r[o+3]}, v{r[o+3]}'))
            fl.append(E(f'v_add_f32 v{PS+jt}, v{PS+jt}, v{r[o+2]}'))
            fl.append(E(f'v_cvt_pk_bf16_f32 v{r[2*kt]}, v{r[o]}, v{r[o+1]}'))
            fl.append(E(f'v_add_f32 v{PS+jt}, v{PS+jt}, v{r[o+3]}'))
            fl.append(E(f'v_cvt_pk_bf16_f32 v{r[2*kt+1]}, v{r[o+2]}, v{r[o+3]}'))
    return fl

def chk_fillers():
    return [E(f'v_max3_f32 v{TMP}, v{PS}, v{PS+1}, v{PS+2}'), E(f'v_cmp_nle_f32 vcc, v{TMP}, v{TMP+11}')]
def ladd_fillers():
    return [E(f'v_add_f32 v{LS+jt}, v{LS+jt}, v{PS+jt}') for jt in range(3)]

def xreduce3(regs, tmps, op):
    fl = []
    for sw in ('v_permlane32_swap_b32', 'v_permlane16_swap_b32'):
        for r, t in zip(regs, tmps): fl.append(E(f'v_mov_b32 v{t}, v{r}'))
        for r, t in zip(regs, tmps): fl.append(E(f'{sw} v{r}, v{t}'))
        for r, t in zip(regs, tmps): fl.append(E(f'{op} v{r}, v{r}, v{t}'))
    return fl

MX = [TMP + 1, TMP + 2, TMP + 3]; MT = [TMP + 4, TMP + 5, TMP + 6]
def rowmax3(S):
    fl = []
    R = [sregs(S, jt) for jt in range(3)]
    for jt in range(3): fl.append(E(f'v_max3_f32 v{MX[jt]}, v{R[jt][0]}, v{R[jt][1]}, v{R[jt][2]}'))
    for jt in range(3): fl.append(E(f'v_max3_f32 v{MX[jt]}, v{MX[jt]}, v{R[jt][3]}, v{R[jt][4]}'))
    for jt in range(3): fl.append(E(f'v_max3_f32 v{MX[jt]}, v{MX[jt]}, v{R[jt][5]}, v{R[jt][6]}'))
    for jt in range(3): fl.append(E(f'v_max_f32 v{MX[jt]}, v{MX[jt]}, v{R[jt][7]}'))
    return fl + xreduce3(MX, MT, 'v_max_f32')

def rare_path(ctx, name, Y, X, back):
    snap = ctx.snap()
    r = Block(ctx, name + 'r')
    r.e(f'{name}_RARE:')
    r.e(f's_cmp_ge_u32 s45, {back*CH}')
    r.e(f's_cselect_b32 s47, 0, {LDS_TOT}')
    r.e(f's_sub_u32 s47, s47, {back*CH}')
    r.e(f'v_add_u32 v{TMP+7}, s47, v{VK}')
    for kt in range(2):
        for s in range(4):
            r.e(f'ds_read_b128 {q4(KR+4*s)}, v{TMP+7} offset:{kt*4096 + (s//2)*1024 + (s%2)*512}', ('rk',))
        r.e('s_waitcnt lgkmcnt(0)')
        for s in range(4):
            for jt in range(3):
                d = q4(st(Y, kt, jt))
                r.e(f'{MF} {d}, {q4(KR+4*s)}, {q4(qf(s,jt))}, {d if s else q4(NEGM+4*jt)}')
    r.e('s_nop 7')
    run(r, rowmax3(Y))
    for jt in range(3): r.e(f'v_max_f32 v{MX[jt]}, 0, v{MX[jt]}')
    for jt in range(3): r.e(f'v_exp_f32 v{MT[jt]}, -v{MX[jt]}')
    for jt in range(3):
        for q in sregs(Y, jt) + (sregs(X, jt) if X else []) + [NEGM + 4 * jt + i for i in range(4)]:
            r.e(f'v_sub_f32 v{q}, v{q}, v{MX[jt]}')
        r.e(f'v_mul_f32 v{LS+jt}, v{LS+jt}, v{MT[jt]}')
        for t in range(8):
            for i in range(4): r.e(f'v_mul_f32 v{acc(t,jt)+i}, v{acc(t,jt)+i}, v{MT[jt]}')
    run(r, sm_fillers(Y))
    r.e('s_nop 1')
    r.e(f's_branch {name}_JOIN')
    ctx.restore(snap)
    return r

def k1_att_prologue(ctx):
    b = Block(ctx, 'att_pro')
    for f in range(4): kread(b, f)
    nk, nv = {0: (7, 8), 1: (11, 10), 2: (9, 8)}[KVREG]
    b.e(f's_add_u32 s57, s52, {slot(nk)}')
    b.e(f's_add_u32 s58, s52, {slot(nv)}')
    b.e(f's_mov_b32 s59, {chunk_of(nk)[1]*CH}')
    b.e(f's_mov_b32 s60, {chunk_of(nv)[1]*CH}')
    b.e(f's_add_u32 s61, s52, {LDS_TOT - 2*CH}')
    b.e(f'v_mov_b32 v{TMP+11}, {hex(f2u(THR))}')
    if FUSED and WARM:
        b.e('s_lshr_b32 s55, s41, 3'); b.e('s_mul_i32 s55, s55, 1179648')
        b.e('s_and_b32 s56, s41, 3'); b.e('s_mul_i32 s62, s56, 288'); b.e('s_add_u32 s55, s55, s62')
        b.e('s_and_b32 s62, s41, 1'); b.e('s_lshl_b32 s62, s62, 5'); b.e('s_sub_u32 s55, s55, s62')
        b.e('s_lshl_b32 s56, s56, 1'); b.e('s_and_b32 s62, s41, 4'); b.e('s_add_u32 s56, s56, s62')
        b.e('s_and_b32 s62, s40, 3'); b.e('s_add_u32 s56, s56, s62'); b.e('s_and_b32 s56, s56, 7')
        b.e('s_mul_i32 s56, s56, 147456'); b.e('s_add_u32 s55, s55, s56')
        b.e('s_mul_i32 s56, s42, 18432'); b.e('s_add_u32 s55, s55, s56')
        b.e('s_add_u32 s28, s12, s55'); b.e('s_addc_u32 s29, s13, 0')
        b.e('s_sub_u32 s30, 4718592, s55'); b.e('s_mov_b32 s31, 0x20000')
    zero = [E(f'v_mov_b32 v{ACC+i}, 0') for i in range(48)]
    run(b, interleave(qk_backbone(SA, '0', nextV='K', first=True, qwait=True), zero))
    if not KVREG: b.wait_vm(('kv', 2))
    b.e('s_barrier')
    if KVREG == 2:
        kvpair_static(b, 6)
        kvpair_static(b, 7)
    elif KVREG:
        kvpair_static(b, 8)
        kvpair_static(b, 9)
        run(b, kv_to_lds(7)[:1] + kv_to_lds(7)[1:] + kv_to_lds(6))
    else: kvpair_static(b, 6)
    if TOUCH:
        b.e(f'v_lshlrev_b32 v{TMP+7}, {12 if TOUCH == 1 else 17}, v{VL16}')
        b.e('s_mov_b32 s100, 0x20000')
        for base, size, off in ((12, 4718592, 0), (18, 0x1000000, 0), (18, 0x1000000, 0x400000), (18, 0x1000000, 0x800000), (18, 0x3000000, 0x2000000), (18, 0x3000000, 0x2400000), (18, 0x3000000, 0x2800000), (18, 0x3000000, 0x2c00000), (14, 1769472, 0)):
            b.e(f's_mov_b32 s28, s{base}'); b.e(f's_mov_b32 s29, s{base+1}'); b.e(f's_mov_b32 s30, {size}'); b.e('s_mov_b32 s31, 0x20000')
            b.e(f's_mov_b32 s56, {off}')
            b.e(f'buffer_load_dword v{TMP}, v{TMP+7}, s[28:31], s56 offen', ('touch',))
        b.e('s_waitcnt vmcnt(0)')
    run(b, rowmax3(SA))
    for jt in range(3):
        for i in range(4): b.e(f'v_sub_f32 v{NEGM+4*jt+i}, 0, v{MX[jt]}')
    sub = [E(f'v_sub_f32 v{r}, v{r}, v{MX[jt]}') for kt in range(2) for jt in range(3) for r in sregs(SA, jt)[4*kt:4*kt+4]]
    run(b, interleave(qk_backbone(SB, 'negm', nextV=True), sub + sm_fillers(SA)))
    b.e('s_mov_b32 s44, 0')
    if PRIO:
        b.e('s_cmp_ge_u32 s42, 4'); b.e('s_cbranch_scc0 NOPRIO'); b.e('s_setprio 1'); b.e('NOPRIO:')
    stamp(b, 3)
    return b

def pv_phase(ctx, name, P, S, nextK=True, head=None, dma=None, vmw=4, bar=True, extra=()):
    a = Block(ctx, name)
    if head: head(a)
    if bar:
        a.e(f's_waitcnt vmcnt({2 if NOBARQK else vmw})')
        a.e('s_barrier')
    fl = ladd_fillers() + (sm_fillers(S)[:SM_SPLIT] if S else []) + list(extra)
    run(a, interleave(pv_backbone(P, nextK, dma, adv=bar), fl, start=int(OPT.get('pvs', 2))))
    return a

def qk_phase(ctx, name, D, S, dma):
    b = Block(ctx, name)
    if not NOBARQK:
        b.e('s_waitcnt vmcnt(4)')
        b.e('s_barrier')
    run(b, interleave(qk_backbone(D, 'negm', dma=dma), sm_fillers(S)[SM_SPLIT:] + chk_fillers(), end=23))
    b.e(f's_cbranch_vccnz {name}_RARE')
    r = rare_path(ctx, name, S, D, 4)
    j = Block(ctx, name + 'j'); j.e(f'{name}_JOIN:')
    return b, r, j

def pol_store(b, text, tag):
    b.e(text + ' sc1', tag)

EXB = 4 * CH
MLB = 24576
def k1_epilogue(ctx):
    b = Block(ctx, 'epi')
    stamp(b, 4)
    if STAMP and OPT.get('rt4'): b.e('s_memrealtime s[84:85]')
    run(b, xreduce3([LS, LS + 1, LS + 2], MT, 'v_add_f32'))
    b.e('s_mul_i32 s43, s42, 12288')
    b.e('s_xor_b32 s46, s42, 4')
    b.e('s_mul_i32 s45, s46, 12288')
    b.e(f's_add_u32 s43, s43, {EXB}')
    b.e(f's_add_u32 s45, s45, {EXB}')
    b.e(f'v_add_u32 v{VK}, s43, v{VL16}')
    b.e(f'v_add_u32 v{VVE}, s45, v{VL16}')
    b.e(f'v_lshrrev_b32 v{VVO}, 1, v{VL16}')
    b.e('s_mul_i32 s43, s42, 1536')
    b.e('s_mul_i32 s45, s46, 1536')
    b.e(f's_add_u32 s43, s43, {MLB}')
    b.e(f's_add_u32 s45, s45, {MLB}')
    b.e(f'v_add_u32 v{VKV}, s43, v{VVO}')
    b.e(f'v_add_u32 v{VVO}, s45, v{VVO}')
    for jt in range(3):
        b.e(f'v_mov_b32 v{NEGM+4*jt+1}, v{LS+jt}')
    for jt in range(3):
        b.e(f'ds_write_b64 v{VKV}, {q2(NEGM+4*jt)} offset:{jt*512}', ('x',))
    b.e('s_and_b32 s43, s42, 3')
    b.e('s_mul_i32 s43, s43, 393216')
    b.e('s_lshl_b32 s45, s41, 12')
    b.e('s_add_u32 s43, s43, s45')
    b.e('s_lshl_b32 s45, s54, 11')
    b.e('s_add_u32 s43, s43, s45')
    b.e('s_add_u32 s45, s43, 131072')
    b.e('s_add_u32 s46, s43, 262144')
    so = ['s43', 's45', 's46']
    for r in (A, B):
        with role(b, r):
            send = range(4, 8) if r == A else range(0, 4)
            for i, t in enumerate(send):
                for jt in range(3):
                    b.e(f'ds_write_b128 v{VK}, {q4(acc(t,jt))} offset:{(3*i+jt)*1024}', ('x',))
    b.e('s_waitcnt lgkmcnt(0)')
    b.e('s_barrier')
    RX = QF
    ML = SA
    for jt in range(3):
        b.e(f'ds_read_b64 {q2(ML+2*jt)}, v{VVO} offset:{jt*512}', ('ml',))
    for i in range(12):
        b.e(f'ds_read_b128 {q4(RX+4*i)}, v{VVE} offset:{i*1024}', ('rx', i))
    b.wait_lgkm(('ml',))
    C = SA + 8
    for jt in range(3):
        no, lo = NEGM + 4 * jt, NEGM + 4 * jt + 1
        np_, lp = ML + 2 * jt, ML + 2 * jt + 1
        t = TMP
        b.e(f'v_min_f32 v{t}, v{no}, v{np_}')
        b.e(f'v_sub_f32 v{t+1}, v{t}, v{no}')
        b.e(f'v_sub_f32 v{t+2}, v{t}, v{np_}')
        b.e(f'v_exp_f32 v{t+1}, v{t+1}')
        b.e(f'v_exp_f32 v{t+2}, v{t+2}')
        b.e('s_nop 0')
        b.e(f'v_mul_f32 v{t+3}, v{t+1}, v{lo}')
        b.e(f'v_fmac_f32 v{t+3}, v{t+2}, v{lp}')
        b.e(f'v_rcp_f32 v{t+3}, v{t+3}')
        b.e('s_nop 0')
        b.e(f'v_mul_f32 v{C+4*jt}, v{t+1}, v{t+3}')
        b.e(f'v_mul_f32 v{C+4*jt+1}, v{t+1}, v{t+3}')
        b.e(f'v_mul_f32 v{C+4*jt+2}, v{t+2}, v{t+3}')
        b.e(f'v_mul_f32 v{C+4*jt+3}, v{t+2}, v{t+3}')
    OUT = SB
    snap = ctx.snap()
    for r in (A, B):
        with role(b, r):
            keep = range(0, 4) if r == A else range(4, 8)
            for sp in range(2):
                for jt in range(3):
                    o = OUT + 4 * (3 * sp + jt)
                    for h in range(2):
                        i = 2 * sp + h
                        a = acc(keep[i], jt); x = RX + 4 * (3 * i + jt)
                        b.wait_lgkm(('rx', 3 * i + jt))
                        b.e(f'v_pk_mul_f32 {q2(a)}, {q2(a)}, {q2(C+4*jt)}')
                        b.e(f'v_pk_mul_f32 {q2(a+2)}, {q2(a+2)}, {q2(C+4*jt)}')
                        b.e(f'v_pk_fma_f32 {q2(a)}, {q2(x)}, {q2(C+4*jt+2)}, {q2(a)}')
                        b.e(f'v_pk_fma_f32 {q2(a+2)}, {q2(x+2)}, {q2(C+4*jt+2)}, {q2(a+2)}')
                        b.e(f'v_cvt_pk_bf16_f32 v{o+2*h}, v{a}, v{a+1}')
                        b.e(f'v_cvt_pk_bf16_f32 v{o+2*h+1}, v{a+2}, v{a+3}')
                    pol_store(b, f'buffer_store_dwordx4 {q4(o)}, v{VL16}, {srd(S_O)}, {so[jt]} offen offset:{sp*1024}', ('o',))
    if FUSED:
        b.e('s_bfe_u32 s43, s42, 0x10001')
        b.e('s_cmp_eq_u32 s43, s49')
        b.e('s_cbranch_scc0 OWN_SKIP')
        b.e('s_and_b32 s43, s42, 1'); b.e('s_mul_i32 s43, s43, 6144')
        b.e(f's_mul_i32 s45, s54, {OS_}'); b.e('s_add_u32 s43, s43, s45')
        b.e(f'v_add_u32 v{VK}, s43, v{VL16}')
        for sp in range(2):
            for jt in range(3):
                b.e(f'ds_write_b128 v{VK}, {q4(OUT + 4 * (3 * sp + jt))} offset:{(2*jt+sp)*1024}', ('oo',))
        b.e('OWN_SKIP:')
    if not FUSED:
        if STAMP:
            b.e('s_waitcnt vmcnt(0)')
            stamp(b, 5)
            dump_stamps(b)
        b.e('K1_END:')
        b.e('s_endpgm')
    return b

def dump_stamps(b):
    b.e('s_memrealtime s[88:89]')
    b.e('s_waitcnt lgkmcnt(0)')
    if STAMP == 2:
        b.e(f's_cmp_eq_u32 s2, {int(OPT.get("dbgwg", 0))}'); b.e('s_cbranch_scc0 DBG_SKIP')
        b.e('s_cmp_eq_u32 s42, 5'); b.e('s_cbranch_scc0 DBG_SKIP')
        b.e('s_mov_b32 s56, s16'); b.e('s_mov_b32 s57, s17'); b.e('s_mov_b32 s58, 256'); b.e('s_mov_b32 s59, 0x20000')
        b.e('v_mov_b32 v1, 0')
        for i in range(1, 11):
            b.e(f's_sub_u32 s43, s{64+2*i}, s64'); b.e('v_mov_b32 v2, s43')
            b.e(f'buffer_store_dword v2, v1, s[56:59], 0 offen offset:{4*i}')
            b.e('s_waitcnt vmcnt(0)')
        b.e('s_sub_u32 s43, s88, s86'); b.e('v_mov_b32 v2, s43')
        b.e('buffer_store_dword v2, v1, s[56:59], 0 offen offset:44')
        b.e('s_waitcnt vmcnt(0)')
        b.e('DBG_SKIP:')
        return
    b.e('s_lshl_b32 s43, s2, 3'); b.e('s_add_u32 s43, s43, s42'); b.e('s_lshl_b32 s43, s43, 7')
    b.e('s_add_u32 s43, s43, 0x1000000')
    b.e('s_add_u32 s56, s18, s43'); b.e('s_addc_u32 s57, s19, 0'); b.e('s_mov_b32 s58, 128'); b.e('s_mov_b32 s59, 0x20000')
    b.e('v_mov_b32 v1, 0')
    for i in range(13):
        b.e(f'v_mov_b32 v2, s{64+2*i}'); b.e(f'v_mov_b32 v3, s{65+2*i}')
        b.e(f'buffer_store_dwordx2 v[2:3], v1, s[56:59], 0 offen offset:{8*i}')
        b.e('s_waitcnt vmcnt(0)')

def poll(b, name, load, notyet):
    b.e('s_mov_b32 s91, 0')
    b.e(f'{name}:')
    b.e(load)
    b.e('s_add_u32 s91, s91, 1')
    b.e('s_waitcnt vmcnt(0)')
    b.e(notyet)
    b.e('s_cmp_lt_u32 s91, 0x40000')
    b.e(f's_cbranch_vccz {name}_GO')
    b.e(f's_sleep {SLEEP}')
    b.e(f's_cbranch_scc1 {name}')
    b.e(f'{name}_GO:')

BIG, SML, LW, LO = (2, 3), (0, 1, 4, 5), (6,), (7,)
S_WO, S_OI, S_P, S_PI, S_OUT = 20, 24, 28, 32, 36
VAP = 192; VB = 197; VT = 198; VE = 202; GS = 208; XF = 248
WS_ = 20480; NW_ = 6; OS_ = 12288; NO_ = 3; WOB = NO_ * OS_

def tail_setup():
    P = []
    def piece(*lines): P.append(lambda b: [b.e(l) for l in lines])
    piece('s_lshr_b32 s47, s41, 3', 's_and_b32 s48, s41, 7')
    piece('s_lshr_b32 s49, s48, 2', 's_and_b32 s50, s48, 3')
    piece('s_and_b32 s51, s50, 1', 's_mul_i32 s55, s47, 1179648')
    piece('s_mul_i32 s61, s50, 288', 's_add_u32 s55, s55, s61')
    piece('s_lshl_b32 s61, s51, 5', 's_sub_u32 s55, s55, s61')
    piece('s_mul_i32 s61, s40, 1572864', 's_mul_i32 s100, s49, 786432')
    piece('s_add_u32 s61, s61, s100', 's_lshl_b32 s100, s47, 15')
    piece('s_add_u32 s61, s61, s100', f's_sub_u32 s{S_WO+2}, 4718592, s55')
    piece(f's_add_u32 s{S_WO}, s12, s55', f's_addc_u32 s{S_WO+1}, s13, 0')
    piece(f's_add_u32 s{S_OI}, s18, s61', f's_addc_u32 s{S_OI+1}, s19, 0')
    piece(f's_mov_b32 s{S_WO+3}, 0x20000', f's_mov_b32 s{S_OI+2}, {5*131072 + 32768}', f's_mov_b32 s{S_OI+3}, 0x20000')
    piece('s_lshl_b32 s52, s40, 3', 's_add_u32 s52, s52, s48')
    piece(f's_mul_i32 s52, s52, {16*INB}', f's_add_u32 s52, s52, {POFF}')
    piece(f's_mul_i32 s61, s47, {INB}', 's_add_u32 s61, s61, s52')
    piece(f's_add_u32 s{S_P}, s18, s61', f's_addc_u32 s{S_P+1}, s19, 0')
    piece(f's_mov_b32 s{S_P+2}, {13*INB}', f's_mov_b32 s{S_P+3}, 0x20000')
    piece(f's_mul_i32 s61, s47, {4*INB}', 's_add_u32 s61, s61, s52')
    piece(f's_add_u32 s{S_PI}, s18, s61', f's_addc_u32 s{S_PI+1}, s19, 0')
    piece(f's_mov_b32 s{S_PI+2}, {4*INB}', f's_mov_b32 s{S_PI+3}, 0x20000')
    piece('s_mul_i32 s52, s40, 192', 's_mul_i32 s61, s49, 96')
    piece('s_add_u32 s52, s52, s61', 's_lshl_b32 s61, s47, 2')
    piece('s_add_u32 s52, s52, s61', 's_mul_i32 s52, s52, 1152')
    piece('s_mul_i32 s61, s50, 288', 's_add_u32 s6, s52, s61')
    piece('s_lshr_b32 s100, s50, 1', 's_and_b32 s99, s90, 0xfffffc00')
    return P

def head_of(b, U):
    G = U // 2
    b.e(f's_add_u32 s55, s48, {G >> 1}'); b.e('s_and_b32 s55, s55, 3')
    b.e(f's_xor_b32 s61, s48, {(G & 1) << 2}'); b.e('s_and_b32 s61, s61, 4'); b.e('s_or_b32 s55, s55, s61')

def oproj(ctx):
    FB = 64
    b = Block(ctx, 'op_pre')
    stamp(b, 2, True)
    b.e(f'v_lshrrev_b32 v{VT+3}, 4, v{VL16}')
    T0 = 216
    v3, v4, v5, v6, v7 = (f'v{T0+i}' for i in range(5))
    VL = 224
    b.e(f'v_and_b32 {v3}, 3, v{VT+3}')
    with role(b, BIG + SML):
        b.e('s_and_b32 s43, s42, 1')
        b.e('s_cmp_lt_u32 s42, 2'); b.e('s_cselect_b32 s45, 5, 0')
        b.e('s_cmp_ge_u32 s42, 4'); b.e('s_cselect_b32 s45, 7, s45')
        b.e(f'v_lshrrev_b32 {v4}, 4, v{VT+3}'); b.e(f'v_bfe_u32 {v5}, v{VT+3}, 2, 4')
        b.e(f'v_and_b32 {v7}, 7, {v5}'); b.e(f'v_lshlrev_b32 {v7}, 6, {v7}'); b.e(f'v_lshlrev_b32 {v5}, 6, {v5}')
        b.e(f'v_and_b32 {v6}, 1, {v4}'); b.e(f'v_lshlrev_b32 {v6}, 5, {v6}'); b.e(f'v_lshl_add_u32 {v6}, {v3}, 3, {v6}')
        b.e(f'v_add_u32 {v5}, {v5}, {v6}'); b.e(f'v_add_u32 {v7}, {v7}, {v6}')
        b.e(f'v_lshrrev_b32 {v6}, 1, {v4}'); b.e(f'v_lshl_add_u32 {v7}, {v6}, 12, {v7}')
        b.e('s_add_u32 s101, s45, s51')
        for n in range(5):
            b.e(f's_add_u32 s52, s101, {n}')
            b.e('s_and_b32 s91, s52, 1'); b.e('s_lshl_b32 s91, s91, 5')
            b.e('s_lshr_b32 s52, s52, 1'); b.e('s_sub_u32 s52, s52, s100')
            b.e('s_and_b32 s54, s52, 1'); b.e('s_lshl_b32 s54, s54, 9')
            b.e('s_lshr_b32 s55, s52, 1'); b.e('s_lshl_b32 s55, s55, 13'); b.e('s_add_u32 s54, s54, s55')
            b.e('s_cmp_lt_u32 s52, 4'); b.e('s_cselect_b32 s54, s54, 16384'); b.e('s_cselect_b64 vcc, -1, 0')
            b.e(f's_add_u32 s54, s54, {WOB}')
            b.e(f'v_cndmask_b32 v{VAP+n}, {v5}, {v7}, vcc')
            b.e(f'v_xor_b32 v{VAP+n}, s91, v{VAP+n}'); b.e(f'v_add_u32 v{VAP+n}, s54, v{VAP+n}')
        b.e('s_mul_i32 s52, s43, 6144')
        b.e(f'v_add_u32 v{VB}, s52, v{VL16}')
        b.e(f'v_bfe_u32 {v6}, v{VT+3}, 2, 2'); b.e(f'v_mul_u32_u24 {v6}, {4*INB}, {v6}')
        b.e(f'v_lshl_add_u32 {v6}, {v4}, 6, {v6}'); b.e(f'v_lshl_add_u32 v{VT+2}, {v3}, 4, {v6}')
        b.e('s_mul_i32 s52, s43, 27'); b.e('s_add_u32 s52, s52, s45'); b.e('s_lshl_b32 s5, s52, 8')
        b.e('s_mul_i32 s52, s43, 9'); b.e('s_add_u32 s52, s52, s45'); b.e('s_lshl_b32 s4, s52, 9')
    b.e(f'v_bfe_u32 {v4}, v{VT+3}, 2, 3'); b.e(f'v_lshrrev_b32 {v5}, 2, v{VT+3}')
    b.e('s_cmp_eq_u32 s42, 7'); b.e('s_cselect_b64 vcc, -1, 0')
    b.e(f'v_lshrrev_b32 {v6}, 5, v{VT+3}'); b.e(f'v_lshlrev_b32 {v6}, 6, {v6}')
    b.e(f'v_cndmask_b32 {v4}, {v4}, {v5}, vcc'); b.e(f'v_cndmask_b32 {v6}, {v6}, 0, vcc')
    b.e(f'v_mul_u32_u24 {v5}, 1152, {v4}'); b.e(f'v_add_u32 {v5}, {v5}, {v6}')
    b.e(f'v_bfe_u32 {v4}, {v4}, 2, 1'); b.e(f'v_lshlrev_b32 {v4}, 1, {v4}'); b.e(f'v_xor_b32 {v4}, {v4}, {v3}')
    b.e(f'v_lshl_add_u32 {v5}, {v4}, 4, {v5}')
    b.e('s_lshl_b32 s52, s100, 6'); b.e('s_lshl_b32 s54, s100, 8'); b.e('s_sub_u32 s54, 256, s54')
    b.e('s_cmp_eq_u32 s42, 7'); b.e('s_cselect_b32 s52, s54, s52')
    b.e(f'v_add_u32 v{VL}, s52, {v5}')
    for m in range(1, 4): b.e(f'v_add_u32 v{VL+m}, {m*(18432-1024)}, v{VL}')
    b.e(f'v_add_u32 v{VL+4}, {131072-2048}, v{VL16}')
    b.e(f'v_and_b32 v{VL+5}, 0x70, v{VL16}'); b.e(f'v_lshlrev_b32 v{VL+5}, 3, v{VL+5}')
    b.e('s_lshl_b32 s91, s42, 6')
    b.e(f'v_add_u32 v{VT}, s91, v{VT+3}')
    b.e(f'v_lshlrev_b32 v{VT}, 20, v{VT}')
    b.e(f'v_mov_b32 v{VT+1}, s97')
    b.e('s_waitcnt lgkmcnt(0)')
    b.wait_vm(('o',))
    b.e('s_barrier')
    b.e(f'buffer_store_dword v{VT+1}, v{VT}, {srd(S_F)}, s90 offen sc1', ('f1',))
    stamp(b, 5)
    b.e(f's_add_u32 s{S_OUT}, s14, s6'); b.e(f's_addc_u32 s{S_OUT+1}, s15, 0')
    b.e(f's_sub_u32 s{S_OUT+2}, 1769472, s6'); b.e(f's_mov_b32 s{S_OUT+3}, 0x20000')
    b.e('s_cmp_eq_u32 s42, 6'); b.e('s_cbranch_scc1 OP_LW')
    b.e('s_cmp_eq_u32 s42, 7'); b.e('s_cbranch_scc1 OP_LO')
    b.e('s_bitcmp1_b32 12, s42'); b.e('s_cbranch_scc1 OP_BIG')

    def wo_off(x, U):
        head_of(x, U)
        x.e('s_mul_i32 s55, s55, 147456')
        if U % 2: x.e('s_add_u32 s55, s55, 73728')
    def wo_full(x, U):
        wo_off(x, U)
        for ty in range(4):
            x.e(f's_mov_b32 m0, {WOB + (U % NW_) * WS_ + ty * 4096}')
            x.e(f's_add_u32 s56, s55, {(ty % 2) * 9216 + (ty // 2) * 128}')
            for m in range(4):
                x.e(f'buffer_load_dwordx4 v{VL+m}, {srd(S_WO)}, s56 offen offset:{m*1024} lds', ('w', U))
    def wo_half(x, U):
        wo_off(x, U)
        x.e(f's_mov_b32 m0, {WOB + (U % NW_) * WS_ + 16384}')
        x.e('s_nop 0')
        for m in range(4):
            x.e(f'buffer_load_dwordx4 v{VL+m}, {srd(S_WO)}, s55 offen offset:{m*1024} lds', ('w', U))
    def o_unit(x, U):
        head_of(x, U)
        if U % 2 == 0:
            role.n += 1; l = f'HP{role.n}'
            x.e('s_bitcmp1_b32 s3, s55')
            x.e(f's_cbranch_scc0 {l}_GO')
            for t in ['s_mov_b32 s91, 0', f'{l}:', f'buffer_load_dword v{VL+6}, v{VL+5}, {srd(S_F)}, s99 offen sc1', 's_add_u32 s91, s91, 1',
                      's_waitcnt vmcnt(0)', f'v_cmp_ne_u32 vcc, s97, v{VL+6}', 's_nop 0', 's_mov_b32 s3, vcc_lo', 's_bitcmp1_b32 s3, s55',
                      f's_cbranch_scc0 {l}_GO', f's_sleep {SLEEP}', 's_cmp_lt_u32 s91, 0x40000', f's_cbranch_scc1 {l}']:
                i = I(t); i.roles = (); x.append(i)
            x.e(f'{l}_GO:')
        x.e('s_lshl_b32 s55, s55, 12')
        if U % 2: x.e('s_add_u32 s55, s55, 2048')
        for g in range(3):
            x.e(f's_mov_b32 m0, {(U % NO_) * OS_ + g * 4096}')
            x.e(f's_add_u32 s56, s55, {g * 262144}')
            for m in range(4):
                x.e(f'buffer_load_dwordx4 v{VL16 if m < 2 else VL+4}, {srd(S_OI)}, s56 offen offset:{m*1024} lds', ('o2', U))
    def vwait(x, *tags):
        n = [ctx.count_after('vm', t) for t in tags]
        n = [k for k in n if k is not None]
        if n: x.e(f's_waitcnt vmcnt({min(min(n), 47)})')
    snap = ctx.snap()
    lw = Block(ctx, 'lw'); ctx.active = list(LW)
    lw.e('OP_LW:')
    wo_full(lw, 0); wo_full(lw, 1)
    lw.e('s_waitcnt vmcnt(0)'); lw.e('s_barrier')
    for U in (2, 3, 4): wo_full(lw, U)
    lw.e('s_waitcnt vmcnt(47)'); wo_full(lw, 5)
    vwait(lw, ('w', 2))
    lw.e('s_barrier')
    wo_full(lw, 6)
    lw.e('s_waitcnt vmcnt(47)'); wo_full(lw, 7)
    for U in range(2, 16):
        if U < 15: vwait(lw, ('w', U + 1))
        lw.e('s_barrier')
        if U + NW_ < 16:
            if len(ctx.c[6].vm) > 47: lw.e('s_waitcnt vmcnt(47)')
            wo_full(lw, U + NW_)
    lw.e('s_barrier')
    lw.e('s_branch OP_DONE')
    lo = Block(ctx, 'lo'); ctx.active = list(LO)
    lo.e('OP_LO:')
    lo.e('s_mov_b32 s3, 0xff')
    wo_half(lo, 0); wo_half(lo, 1)
    lo.e('s_waitcnt vmcnt(0)'); lo.e('s_barrier')
    wo_half(lo, 2); wo_half(lo, 3)
    stamp(lo, 3, True)
    o_unit(lo, 2)
    wo_half(lo, 4); wo_half(lo, 5)
    vwait(lo, ('o2', 2)); lo.e('s_barrier')
    o_unit(lo, 3); o_unit(lo, 4); wo_half(lo, 6); wo_half(lo, 7)
    for U in range(2, 16):
        if U < 15: vwait(lo, ('o2', U + 1), ('w', U + 1))
        lo.e('s_barrier')
        if U + NO_ < 16: o_unit(lo, U + NO_)
        if U + NW_ < 16: wo_half(lo, U + NW_)
    lo.e('s_barrier')
    lo.e('s_branch OP_DONE')

    OWN = 0
    def compute(name, waves, NT):
        ctx.restore(snap); ctx.active = list(waves)
        c = Block(ctx, name); lp = Block(ctx, name + 'l'); e = Block(ctx, name + 'e')
        c.e(f'{name}:')
        SZ = 4 * (NT + 3)
        def fA(U, k, n): return FB + 2 * SZ * (U % 2) + SZ * k + 4 * n
        def fB(U, k, j): return FB + 2 * SZ * (U % 2) + SZ * k + 4 * NT + 4 * j
        def rd(U):
            r = []
            for k in range(2):
                r += [E(f'ds_read_b128 {q4(fB(U,k,j))}, v{VB} offset:{(2*j+k)*1024}', ('f', U)) for j in range(3)]
                for n in range(NT):
                    r += [E(f'ds_read_b64_tr_b16 {q2(fA(U,k,n)+2*u)}, v{VAP+n} offset:{k*2048 + u*1024}', ('f', U)) for u in range(2)]
            return r
        def adv(b):
            b.e(f's_cmp_ge_u32 s46, {(NW_-1)*WS_}'); b.e(f's_cselect_b32 s52, s54, s53'); b.e('s_add_u32 s46, s46, s52')
            for n in range(NT): b.e(f'v_add_u32 v{VAP+n}, s52, v{VAP+n}')
            b.e(f's_cmp_ge_u32 s45, {(NO_-1)*OS_}'); b.e(f's_cselect_b32 s52, s101, s100'); b.e('s_add_u32 s45, s45, s52')
            b.e(f'v_add_u32 v{VB}, s52, v{VB}')
        def mmu(U, first=False):
            return [E(f'{MF} {q4(12*n+4*j)}, {q4(fA(U,k,n))}, {q4(fB(U,k,j))}, {"0" if first and k == 0 else q4(12*n+4*j)}')
                    for k in range(2) for n in range(NT) for j in range(3)]
        c.e('s_mov_b32 s46, 0'); c.e(f's_mov_b32 s53, {WS_}'); c.e(f's_mov_b32 s54, {(-(NW_-1)*WS_) & 0xffffffff}')
        c.e('s_mov_b32 s45, 0'); c.e(f's_mov_b32 s100, {OS_}'); c.e(f's_mov_b32 s101, {(-(NO_-1)*OS_) & 0xffffffff}')
        c.e('s_mov_b32 s44, 0')
        c.e('s_barrier')
        stamp(c, 6)
        run(c, rd(0)); adv(c)
        c.e('s_waitcnt lgkmcnt(0)')
        run(c, interleave(mmu(0, True), rd(1) + [adv], end=6 * NT - 2))
        c.e('s_waitcnt lgkmcnt(0)')
        run(c, mmu(1))
        c.e('s_barrier')
        stamp(c, 1, True)
        run(c, rd(0)); adv(c)
        def unit(x, U, extra=(), last=False):
            x.e('s_waitcnt lgkmcnt(0)')
            x.e('s_barrier')
            run(x, interleave(mmu(U), ([] if last else rd(U + 1) + [adv]) + list(extra), end=6 * NT - 2))
        lp.e(f'{name}_LOOP:')
        unit(lp, 0); unit(lp, 1)
        lp.e('s_add_u32 s44, s44, 1'); lp.e('s_cmp_lt_u32 s44, 6'); lp.e(f's_cbranch_scc1 {name}_LOOP')
        fin = []
        def P(*lines): fin.extend(E(l) for l in lines)
        X = GS
        P('s_mov_b32 s7, 288', 's_lshl_b32 s6, s42, 6', f'v_add_u32 v{X}, s6, v{VT+3}')
        P(f'v_cmp_gt_u32 s[8:9], s7, v{X}', f'v_subrev_u32 v{X+1}, 32, v{X}', f'v_mov_b32 v{X+7}, 0x40000000')
        P(f'v_cndmask_b32 v{X}, v{X+1}, v{X}, s[8:9]', f'v_lshrrev_b32 v{X+1}, 4, v{X}')
        P(f'v_and_b32 v{X+2}, 15, v{X}', f'v_lshlrev_b32 v{X+2}, 4, v{X+2}', f'v_lshl_add_u32 v{XF}, v{X+1}, 9, v{X+2}')
        P(f'v_mul_u32_u24 v{X+4}, 57, v{X+1}', f'v_lshrrev_b32 v{X+4}, 9, v{X+4}')
        P(f'v_mul_u32_u24 v{X+5}, 18, v{X+4}', f'v_add_u32 v{X+5}, v{X+5}, v{X+1}')
        P(f'v_lshl_add_u32 v{XF+1}, v{X+5}, 8, v{X+2}')
        P(f'v_mul_u32_u24 v{X+6}, 9, v{X+4}', f'v_sub_u32 v{X+1}, v{X+1}, v{X+6}')
        P(f'v_mul_u32_u24 v{X+4}, 48, v{X+4}', f'v_and_b32 v{X+6}, 3, v{X}', f'v_add_u32 v{X+4}, v{X+4}, v{X+6}')
        P(f'v_mul_u32_u24 v{X+4}, 1152, v{X+4}', f'v_lshl_add_u32 v{X+4}, v{X+1}, 5, v{X+4}')
        P(f'v_bfe_u32 v{X+6}, v{X}, 2, 2', f'v_lshl_add_u32 v{X+4}, v{X+6}, 3, v{X+4}')
        P(f'v_cndmask_b32 v{XF+2}, v{X+7}, v{X+4}, s[8:9]')
        for i in range(3): P(f's_add_u32 s{56+i}, s47, {i+1}', f's_and_b32 s{56+i}, s{56+i}, 3', f's_mul_i32 s{56+i}, s{56+i}, {INB}')
        P('s_mov_b32 s10, 18432', 's_mov_b32 s11, 36864', 's_mov_b32 s59, 0xffff0000')
        fin2 = []
        fin2.append(lambda b: [b.e(l) for l in (f'v_bfe_u32 v{VE+2}, v{VT+3}, 2, 2', f'v_cmp_eq_u32 vcc, s47, v{VE+2}', f'v_mov_b32 v{VE+2}, 0x40000000',
                    f'v_and_b32 v{VE}, 0xff, v{VT+2}', f'v_cndmask_b32 v{VT+2}, v{VT+2}, v{VE+2}, vcc', f'v_lshlrev_b32 v{VE+1}, 2, v{VT+3}',
                    f'v_add_u32 v{VE+1}, {OWN+16384}, v{VE+1}', f'v_add_u32 v{VE}, s5, v{VE}',
                    f'v_and_b32 v{VE+1}, 0xfffffff0, v{VE+1}', f'v_cndmask_b32 v{VE}, v{VE+1}, v{VE}, vcc')])
        fin2 += [E(f'v_mov_b32 v{GS+4*k+3}, s98') for k in range(2 * NT)]
        unit(e, 14, fin)
        e.e('s_waitcnt lgkmcnt(0)')
        e.e('s_barrier')
        m = mmu(15)
        def send(n):
            r = [E(f'v_cvt_pk_bf16_f32 v{GS + 8*n + 4*(x//3) + x%3}, v{12*n+2*x}, v{12*n+2*x+1}') for x in range(6)]
            r += [E(f'buffer_store_dwordx4 {q4(GS+8*n+4*hf)}, v{VT+2}, {srd(S_P)}, s4 offen offset:{n*512 + hf*256} sc1', ('p',)) for hf in range(2)]
            r += [E(f'ds_write_b128 v{VE}, {q4(12*n+4*j)} offset:{j*2304 + n*256}', ('own',)) for j in range(3)]
            return r
        for n in range(NT):
            grp = m[3 * n:3 * n + 3] + m[3 * NT + 3 * n:3 * NT + 3 * n + 3]
            run(e, interleave(grp, fin2 if n == 0 else (send(n - 2) if n >= 2 else [])))
        stamp(e, 7)
        if NT == 2: e.e('s_nop 1')
        run(e, send(NT - 2)); run(e, send(NT - 1))
        if name != 'OP_BIG': e.e('s_branch OP_FIN')
        return c, lp, e
    sm = compute('OP_SML', SML, 2)
    bg = compute('OP_BIG', BIG, 5)
    ctx.active = list(BIG + SML)
    e = Block(ctx, 'op_end')
    e.e('OP_FIN:')
    e.e('s_waitcnt lgkmcnt(0)')
    e.e('s_barrier')
    stamp(e, 8)
    e.e('s_cmp_ge_u32 s42, 5')
    e.e('s_cbranch_scc1 OP_DONE')
    R0 = 168; OW = 64; X = 128
    for j in range(3): e.e(f'ds_read_b128 {q4(OW+4*j)}, v{XF+1} offset:{j*2304}', ('ow',))
    loads = '\n'.join(f'buffer_load_dwordx4 {q4(R0+8*src+4*hf)}, v{XF}, {srd(S_PI)}, s{56+src} offen offset:{hf*256} sc1' for src in range(3) for hf in range(2))
    chk = [f'v_xor_b32 v{X+6}, s98, v{R0+3}']
    for k in range(1, 6):
        chk += [f'v_xor_b32 v{X+7}, s98, v{R0+4*k+3}', f'v_or_b32 v{X+6}, v{X+6}, v{X+7}']
    chk.append(f'v_cmp_ne_u32 vcc, 0, v{X+6}')
    poll(e, 'OP_P2', loads, '\n'.join(chk))
    stamp(e, 9)
    e.e(f'buffer_store_dword v{VT+1}, v{VT}, {srd(S_F)}, s96 offen sc1', ('ep',))
    e.e('s_waitcnt lgkmcnt(0)')
    so = ['0', 's10', 's11']
    for j in range(3):
        for p in range(2):
            x = 2 * j + p
            for src in range(3):
                r = R0 + 8 * src + 4 * (x // 3) + x % 3
                e.e(f'v_lshlrev_b32 v{X+6}, 16, v{r}'); e.e(f'v_and_b32 v{X+7}, s59, v{r}')
                e.e(f'v_add_f32 v{OW+2*x}, v{OW+2*x}, v{X+6}'); e.e(f'v_add_f32 v{OW+2*x+1}, v{OW+2*x+1}, v{X+7}')
            e.e(f'v_cvt_pk_bf16_f32 v{OW+16+x}, v{OW+2*x}, v{OW+2*x+1}')
        e.e(f'buffer_store_dwordx2 {q2(OW+16+2*j)}, v{XF+2}, {srd(S_OUT)}, {so[j]} offen')
    ctx.active = ALLW
    e.e('OP_DONE:')
    if STAMP:
        if not OPT.get('rt4'): stamp(e, 10)
        dump_stamps(e)
    e.e('K1_END:')
    e.e('s_endpgm')
    traces = {}
    for w in SML: traces[w] = [b, sm[0], sm[1], sm[1], sm[2], e]
    for w in BIG: traces[w] = [b, bg[0], bg[1], bg[1], bg[2], e]
    traces[6] = [b, lw]; traces[7] = [b, lo]
    TXN = OPT.get('tx', '')
    if TXN:
        def after_c(blk):
            n = 0; out = []
            for i in blk:
                if i.kind == 'barrier': n += 1
                drop = n >= 2 and getattr(i, 'sub', '') == 'dma' and (TXN == 'none' or (TXN == 'noo' and 's[24:27]' in i.text) or (TXN == 'nowo' and 's[20:23]' in i.text))
                if not drop: out.append(i)
            blk[:] = out
        after_c(lw); after_c(lo); after_c(sm[0])
        if TXN in ('none', 'nowo'):
            for blk in sm[1:]: blk[:] = [i for i in blk if getattr(i, 'sub', '') != 'dma']
    return [b] + list(sm) + list(bg) + [e, lw, lo], traces

def kernel1():
    ctx = MCtx(8)
    pro = k1_prologue(ctx)
    qp = k1_qproj(ctx)
    ap = k1_att_prologue(ctx)
    p1 = pv_phase(ctx, 'P1', SA, SB, head=lambda a: a.e('K1_LOOP:'), dma=guarded(dma_v, 0))
    SK2 = int(OPT.get('sk2', 2))
    p2 = qk_phase(ctx, 'P2', SA, SB, guarded(dma_k, 0) if KVREG else dma_k)
    p3 = pv_phase(ctx, 'P3', SB, SA, dma=guarded(dma_v, SK2) if KVREG == 1 else dma_v)
    p4 = qk_phase(ctx, 'P4', SB, SA, guarded(dma_k, SK2) if KVREG == 1 else dma_k)
    p4[2].e('s_add_u32 s44, s44, 1')
    p4[2].e('s_cmp_lt_u32 s44, 7')
    p4[2].e('s_cbranch_scc1 K1_LOOP')
    def warm(b):
        b.e(f'v_lshrrev_b32 v{KR}, 6, v{VL16}'); b.e(f'v_mul_u32_u24 v{KR}, 1152, v{KR}')
        b.e(f'v_and_b32 v{KR+1}, 48, v{VL16}'); b.e(f'v_lshlrev_b32 v{KR+1}, 3, v{KR+1}'); b.e(f'v_min_u32 v{KR+1}, 316, v{KR+1}')
        b.e(f'v_add_u32 v{KR}, v{KR}, v{KR+1}')
        b.e(f'buffer_load_dword v{SA+23}, v{KR}, s[28:31], 0 offen', ('warm',))
    l1 = pv_phase(ctx, 'L1', SA, SB, nextK=False, dma=warm if (FUSED and WARM) else None)
    l2 = Block(ctx, 'L2')
    l2.e(f's_waitcnt vmcnt({1 if WARM else 0})')
    l2.e('s_barrier')
    if OPT.get('l2s'): stamp(l2, 2)
    for t in range(4): vread(l2, t)
    run(l2, sm_fillers(SB)[SM_SPLIT:] + chk_fillers())
    l2.e('s_cbranch_vccnz L2_RARE')
    l2r = rare_path(ctx, 'L2', SB, None, 2)
    l3 = pv_phase(ctx, 'L3', SB, None, nextK=False, bar=False, head=lambda a: a.e('L2_JOIN:'), extra=tail_setup() if FUSED else ())
    l3.e('s_nop 7')
    ep = k1_epilogue(ctx)
    errs = []
    body = [p1, p2[0], p2[2], p3, p4[0], p4[2]]
    bodyr = [p1, p2[0], p2[1], p2[2], p3, p4[0], p4[1], p4[2]]
    last = [l1, l2, l3, ep]
    lastr = [l1, l2, l2r, l3, ep]
    tail, ttr = oproj(ctx)
    for r in ALLW:
        errs += check_trace([pro, qp, ap] + body + body + last + ttr[r], f'main{r}', r)
        errs += check_trace([pro, qp, ap] + bodyr + bodyr + body + lastr, f'rare{r}', r)
    if NOCOMP:
        for blk in body:
            keep = [i for i in blk if i.kind not in ('mfma', 'valu', 'trans') and not (NOCOMP > 1 and i.kind == 'ds') and 'vccnz' not in i.text]
            blk[:] = keep
        errs = []
    DROP = OPT.get('drop', '')
    if DROP:
        D = DROP.split(',')
        def dropit(i):
            t = i.text
            if 'vccnz' in t: return True
            if 'exp' in D and t.startswith('v_exp'): return True
            if 'add' in D and t.startswith('v_add_f32'): return True
            if 'cvt' in D and t.startswith('v_cvt'): return True
            if 'ds' in D and i.kind == 'ds': return True
            if 'wait' in D and i.kind == 'wait': return True
            if 'bar' in D and i.kind == 'barrier': return True
            if 'adv' in D and (t.startswith('v_add_u32') or t.startswith('s_cmp_ge') or t.startswith('s_cselect') or t.startswith('s_add_u32 s45') or t.startswith('s_add_u32 s46')): return True
            if 'mfma' in D and i.kind == 'mfma': return True
            return False
        for blk in body: blk[:] = [i for i in blk if not dropit(i)]
        errs = []
    order = [pro, qp, ap] + body + last + tail + [p2[1], p4[1], l2r]
    return order, errs

def kernel2():
    ctx = MCtx(8)
    b = Block(ctx, 'k2')
    b.e('s_cmp_ge_u32 s2, 256')
    b.e('s_cbranch_scc1 K2_END')
    b.e('s_load_dwordx8 s[12:19], s[0:1], 32')
    if STAMP:
        for i in range(6): b.e(f's_memtime s[{64+2*i}:{65+2*i}]')
        b.e('s_memrealtime s[86:87]')
    b.e('v_lshrrev_b32 v1, 6, v0')
    b.e('v_and_b32 v0, 63, v0')
    b.e('v_readfirstlane_b32 s42, v1')
    b.e('s_and_b32 s43, s2, 7'); b.e('s_lshr_b32 s44, s2, 3')
    b.e('s_and_b32 s40, s43, 1'); b.e('s_lshl_b32 s40, s40, 2'); b.e('s_and_b32 s45, s44, 3'); b.e('s_add_u32 s40, s40, s45')
    b.e('s_lshr_b32 s41, s43, 1'); b.e('s_lshl_b32 s41, s41, 3'); b.e('s_lshr_b32 s46, s44, 2'); b.e('s_add_u32 s41, s41, s46')
    b.e(f'v_lshlrev_b32 v{VL16}, 4, v0')
    b.e('s_waitcnt lgkmcnt(0)')
    flag_srd(b)
    epoch_load(b, 222)
    b.e('s_waitcnt vmcnt(0)')
    epoch_tags(b, 222)
    run(b, tail_setup())
    t = oproj(ctx)
    errs = []
    for r in ALLW: errs += check_trace([b, t[0], t[1], t[1], t[2], t[2], t[3]], f'k2_{r}', r)
    return [b] + list(t), errs

HEADER = open('standalone__mha_block_cached__near_ridge.s.ref').read().split('; Override')[0]

def kd(name, vgpr, sgpr=96):
    return f'''.amdhsa_kernel {name}
  .amdhsa_next_free_vgpr {vgpr}
  .amdhsa_next_free_sgpr {sgpr}
  .amdhsa_accum_offset {(vgpr+3)//4*4}
  .amdhsa_group_segment_fixed_size 0
  .amdhsa_kernarg_size 64
  .amdhsa_user_sgpr_count 2
  .amdhsa_user_sgpr_kernarg_segment_ptr 1
  .amdhsa_system_sgpr_workgroup_id_x 1
.end_amdhsa_kernel
'''

def main():
    k1, e1 = kernel1()
    k2, e2 = kernel2() if not FUSED else ([], [])
    for e in list(dict.fromkeys(x.split('] ', 1)[1] for x in e1 + e2))[:12]: print('CHECK', e, file=sys.stderr)
    out = HEADER
    if FUSED:
        N = 'standalone__mha_block_cached__near_ridge_kernel'
        out += f'; @launch grid=(256,1,1) block=(512,1,1) lds={LDS_TOT}\n'
        ks = [(N, k1)]
    else:
        out += f'; @launch kernel=mha_attn_kernel grid=(256,1,1) block=(512,1,1) lds={LDS_TOT}\n'
        out += f'; @launch kernel=mha_oproj_kernel grid=(256,1,1) block=(512,1,1) lds={LDS_TOT}\n'
        ks = [('mha_attn_kernel', k1), ('mha_oproj_kernel', k2)]
    out += '.amdgcn_target "amdgcn-amd-amdhsa--gfx950"\n.text\n'
    for name, blocks in ks:
        out += f'.globl {name}\n.p2align 8\n.type {name},@function\n{name}:\n'
        out += '\n'.join(b.text() for b in blocks) + '\n'
    out += '.section .rodata,"a"\n'
    for name, _ in ks: out += '.p2align 6\n' + kd(name, 256, 102)
    open(sys.argv[1], 'w').write(out)
    if e1 or e2: sys.exit(1)
main()
```

```python
import sys, struct, math
from asmlib import *

OPT = dict(a.split('=') for a in sys.argv[2:] if '=' in a)
STAMP = int(OPT.get('stamp', 0))
KVPOL = OPT.get('kvpol', 'nt')
XPOL = OPT.get('xpol', '')
WPOL = OPT.get('wpol', '')
OSTPOL = OPT.get('ostpol', 'sc1' if OPT.get('fused', '1') == '1' else '')
OLDPOL = OPT.get('oldpol', '')
WOPOL = OPT.get('wopol', '')
THR = float(OPT.get('thr', 2048.0))
NOBARQK = int(OPT.get('nobarqk', 1))
SKIPT = int(OPT.get('skipt', 0))
STAG = int(OPT.get('stag', 0))
ROT = int(OPT.get('rot', 1))
ROT2 = int(OPT.get('rot2', 1))
SM_SPLIT = int(OPT.get('split', 24))
CHK_AT = int(OPT.get('chk', 8))
PRIO = int(OPT.get('prio', 0))
K2D = int(OPT.get('k2d', 4))
NODMA = int(OPT.get('nodma', 0))
NOCOMP = int(OPT.get('nocomp', 0))
NOKVQ = int(OPT.get('nokvq', 0))
FUSED = int(OPT.get('fused', 1))
OLD2 = OPT.get('old2', 'sc1')
SLEEP = int(OPT.get('sleep', 1))
F1POL = OPT.get('f1pol', 'sc1')
WOPRE = int(OPT.get('wopre', 5))
TOUCH = int(OPT.get('touch', 0))
WOEARLY = int(OPT.get('woearly', 0))
WARM = int(OPT.get('warm', 1))
FAST = int(OPT.get('fast', 0))
PAIRW = int(OPT.get('pairw', 1))
KVREG = int(OPT.get('kvreg', 0))
KV1 = int(OPT.get('kv1', 1))
NC = int(OPT.get('nc', 1))
EARLY = int(OPT.get('early', 0))
ORD = int(OPT.get('ord', 1))
LSPLIT = int(OPT.get('lsplit', 57))
LEAD = int(OPT.get('lead', 6))
NOX = int(OPT.get('nox', 0))
NOWQ = int(OPT.get('nowq', 0))
MAP = OPT.get('map', '4x8')
KVSCHED = [int(x) for x in OPT.get('kvs', '0,2,3,5,6,8,9,11,12,14').split(',') if x]

def f2u(f): return struct.unpack('<I', struct.pack('<f', f))[0]
SCALE = math.log2(math.e) / math.sqrt(128.0)
MF = 'v_mfma_f32_16x16x32_bf16'
def q4(n): return f'v[{n}:{n+3}]'
def q2(n): return f'v[{n}:{n+1}]'

ACC = 0; QF = 96; SA = 144; SB = 168; KR = 192; VR = 208; NEGM = 224
TMP = 236; VK = 248; VVE = 249; VVO = 250; LS = 251; VL16 = 254; VKV = 255
RING = 10; CH = 16384; LDS_TOT = RING * CH
QB = 114688
SLOT = 40960
S_K, S_V, S_X, S_WQ, S_O = 20, 24, 28, 32, 36
FS = 96
VXD = 208; VWD = 211; VXR = 213; VAE = 215; VAO = 217; VQE = 219; VQO = 220; VQR = 221; VKW = 244
def srd(n): return f's[{n}:{n+3}]'
def acc(t, jt): return ACC + 12 * t + 4 * jt
def qf(s, jt): return QF + 12 * s + 4 * jt
def st(S, kt, jt): return S + 12 * kt + 4 * jt
ALLW = list(range(8))
A, B = (0, 1, 2, 3), (4, 5, 6, 7)

TST = int(OPT.get('tst', 0))
def stamp(b, idx, fine=False, it=False):
    if TST == 2:
        if it or idx in (0, 4): b.e(f's_memtime s[{64+2*idx}:{65+2*idx}]')
        return
    if it: return
    if TST and idx in (1, 2, 3) and not fine: return
    if fine and not TST: return
    if STAMP: b.e(f's_memtime s[{64+2*idx}:{65+2*idx}]')

class role:
    n = 0
    def __init__(self, b, waves): self.b, self.w = b, list(waves)
    def __enter__(self):
        role.n += 1; self.l = f'RL{role.n}'
        self.b.e(f's_bitcmp1_b32 {sum(1 << w for w in self.w)}, s42')
        self.b.e(f's_cbranch_scc0 {self.l}')
        self.b.ctx.active = self.w
    def __exit__(self, *a):
        self.b.ctx.active = ALLW
        self.b.e(f'{self.l}:')

def E(text, tag=None): return lambda b: b.e(text, tag)
def run(b, lst):
    for f in lst: f(b)

def chunk_of(n):
    if n == 0: return ('K', 0)
    if n % 2 == 1: return ('K', (n + 1) // 2)
    return ('V', (n - 2) // 2)

def k1_prologue(ctx):
    b = Block(ctx, 'k1_pro')
    b.e('s_cmp_ge_u32 s2, 256')
    b.e('s_cbranch_scc1 K1_END')
    b.e('s_load_dwordx8 s[4:11], s[0:1], 0')
    b.e('s_load_dwordx8 s[12:19], s[0:1], 32')
    if STAMP:
        b.e('s_memtime s[64:65]')
        b.e('s_memrealtime s[86:87]')
    b.e('v_lshrrev_b32 v1, 6, v0')
    b.e('v_and_b32 v0, 63, v0')
    b.e('v_readfirstlane_b32 s42, v1')
    b.e('s_and_b32 s43, s2, 7')
    b.e('s_lshr_b32 s44, s2, 3')
    nb = int(MAP.split('x')[0]); lb = nb.bit_length() - 1
    nh = 32 // nb; xb = 8 // nb
    b.e(f's_and_b32 s40, s43, {xb - 1}')
    b.e(f's_lshl_b32 s40, s40, {lb}')
    b.e(f's_and_b32 s45, s44, {nb - 1}')
    b.e('s_add_u32 s40, s40, s45')
    b.e(f's_lshr_b32 s41, s43, {xb.bit_length() - 1}')
    b.e(f's_lshl_b32 s41, s41, {nh.bit_length() - 1}')
    b.e(f's_lshr_b32 s46, s44, {lb}')
    b.e('s_add_u32 s41, s41, s46')
    m = max(nb, nh)
    b.e(f's_mul_i32 s45, s45, {32 // nb}')
    b.e(f's_mul_i32 s46, s46, {32 // nh}')
    b.e('s_add_u32 s45, s45, s46')
    b.e('s_and_b32 s45, s45, 31')
    b.e(f's_mul_i32 s45, s45, {9 - NC}')
    b.e('s_lshr_b32 s45, s45, 5')
    b.e(f's_add_u32 s45, s45, {NC}')
    b.e('s_lshl_b32 s100, s45, 7')
    b.e('s_lshl_b32 s101, s45, 19')
    b.e('s_mov_b32 s57, 0' if NC else 's_mov_b32 s57, s100')
    b.e('s_mov_b32 s58, 0' if NC else 's_mov_b32 s58, s101')
    b.e('s_lshl_b32 s45, s40, 5')
    b.e('s_add_u32 s45, s45, s41')
    b.e('s_lshl_b32 s45, s45, 18')
    b.e('s_mul_i32 s46, s40, 221184')
    b.e('s_lshl_b32 s47, s41, 8')
    b.e('s_mul_i32 s48, s40, 1572864')
    b.e('s_and_b32 s53, s42, 3')
    b.e('s_lshr_b32 s54, s42, 2')
    b.e('v_bfe_u32 v4, v0, 2, 3')
    b.e('v_lshrrev_b32 v5, 5, v0')
    b.e('v_and_b32 v3, 3, v0')
    b.e('v_lshrrev_b32 v7, 2, v4')
    b.e('v_lshlrev_b32 v8, 1, v7')
    b.e('v_xor_b32 v6, v3, v8')
    b.e('v_lshlrev_b32 v6, 4, v6')
    b.e('v_lshl_add_u32 v6, v5, 6, v6')
    b.e('s_lshr_b32 s43, s53, 1')
    b.e('s_and_b32 s44, s42, 1')
    b.e('v_and_b32 v9, 3, v4')
    b.e('v_lshl_add_u32 v9, v7, 3, v9')
    b.e('s_lshl_b32 s55, s43, 4')
    b.e('s_lshl_b32 s62, s54, 2')
    b.e('s_add_u32 s55, s55, s62')
    b.e('v_add_u32 v9, s55, v9')
    b.e('v_lshl_add_u32 v9, v9, 13, v6')
    b.e('s_lshl_b32 s55, s44, 7')
    b.e(f'v_add_u32 v{VWD}, s55, v9')
    b.e(f'v_add_u32 v{VWD+1}, {32*8192-1024}, v{VWD}')
    b.e('s_lshl_b32 s60, s42, 11')
    b.e('s_mul_i32 s63, s42, 3')
    for i in range(3):
        b.e(f's_add_u32 s62, s63, {i}')
        b.e('s_and_b32 s56, s62, 1')
        b.e('s_lshl_b32 s56, s56, 3')
        b.e('s_add_u32 s56, s56, 12')
        b.e('s_lshr_b32 s62, s62, 1')
        b.e('s_lshl_b32 s62, s62, 4')
        b.e('v_add_u32 v9, s56, v4')
        b.e('v_and_b32 v9, 15, v9')
        b.e('v_add_u32 v9, s62, v9')
        b.e('v_mul_u32_u24 v9, 1152, v9')
        b.e('v_add_u32 v9, v9, v6')
        if i: b.e(f'v_subrev_u32 v{VXD+i}, {i*1024}, v9')
        else: b.e(f'v_mov_b32 v{VXD}, v9')
    b.e('s_lshl_b32 s59, s63, 10')
    b.e('s_add_u32 s59, s59, 16384')
    b.e('s_waitcnt lgkmcnt(0)')
    b.e(f's_add_u32 s{S_X}, s4, s46');  b.e(f's_addc_u32 s{S_X+1}, s5, 0')
    b.e(f's_mov_b32 s{S_X+2}, 221184'); b.e(f's_mov_b32 s{S_X+3}, 0x20000')
    b.e(f's_add_u32 s{S_WQ}, s10, s47'); b.e(f's_addc_u32 s{S_WQ+1}, s11, 0')
    b.e(f's_sub_u32 s{S_WQ+2}, 4718592, s47'); b.e(f's_mov_b32 s{S_WQ+3}, 0x20000')
    b.e(f's_add_u32 s{S_K}, s6, s45');  b.e(f's_addc_u32 s{S_K+1}, s7, 0')
    b.e(f's_mov_b32 s{S_K+2}, 262144'); b.e(f's_mov_b32 s{S_K+3}, 0x20000')
    b.e(f's_add_u32 s{S_V}, s8, s45');  b.e(f's_addc_u32 s{S_V+1}, s9, 0')
    b.e(f's_mov_b32 s{S_V+2}, 262144'); b.e(f's_mov_b32 s{S_V+3}, 0x20000')
    b.e(f's_add_u32 s{S_O}, s18, s48'); b.e(f's_addc_u32 s{S_O+1}, s19, 0')
    b.e(f's_mov_b32 s{S_O+2}, 1572864'); b.e(f's_mov_b32 s{S_O+3}, 0x20000')
    return b

RC = 1
def slot(n): return ((n + RC) % RING) * CH

def qslot(D): return ((D + 3) % 4) * SLOT

def qnext(b, D):
    if D + 1 == NC:
        b.e('s_mov_b32 s57, s100'); b.e('s_mov_b32 s58, s101')
    else:
        b.e('s_cmp_eq_u32 s61, 1152')
        b.e(f's_cselect_b32 s57, {NC*128}, s61')
        b.e(f's_cselect_b32 s58, {NC*524288}, s58')

def qdma_parts(D):
    P = []
    P.append(lambda b: (b.e(f's_add_u32 m0, s60, {qslot(D)}'), b.e('s_add_u32 s61, s57, 128'),
                        b.e(f'buffer_load_dwordx4 v{VWD}, {srd(S_WQ)}, s58 offen {WPOL} lds', ('q', D))))
    P.append(lambda b: (b.e(f'buffer_load_dwordx4 v{VWD+1}, {srd(S_WQ)}, s58 offen offset:1024 {WPOL} lds', ('q', D)),
                        b.e(f's_add_u32 m0, s59, {qslot(D)}'), b.e('s_add_u32 s58, s58, 524288')))
    for i in range(2): P.append(E(f'buffer_load_dwordx4 v{VXD+i}, {srd(S_X)}, s57 offen offset:{i*1024} {XPOL} lds', ('q', D)))
    P.append(lambda b: (b.e(f'buffer_load_dwordx4 v{VXD+2}, {srd(S_X)}, s57 offen offset:2048 {XPOL} lds', ('q', D)),
                        qnext(b, D)))
    return P

def qdma(b, D):
    b.e(f's_add_u32 m0, s60, {qslot(D)}')
    b.e('s_add_u32 s61, s57, 128')
    for h in range(0 if NOWQ else 2):
        b.e(f'buffer_load_dwordx4 v{VWD+h}, {srd(S_WQ)}, s58 offen offset:{h*1024} {WPOL} lds', ('q', D))
    b.e(f's_add_u32 m0, s59, {qslot(D)}')
    b.e('s_add_u32 s58, s58, 524288')
    for i in range(0 if NOX else 3):
        b.e(f'buffer_load_dwordx4 v{VXD+i}, {srd(S_X)}, s57 offen offset:{i*1024} {XPOL} lds', ('q', D))
    qnext(b, D)

def kvpair_static(b, n):
    c = chunk_of(n)
    S = S_K if c[0] == 'K' else S_V
    b.e(f's_add_u32 m0, s52, {slot(n)}')
    b.e(f's_mov_b32 s56, {c[1] * CH}')
    b.e(f'buffer_load_dwordx4 v{VKV}, {srd(S)}, s56 offen {KVPOL} lds', ('kv', n))
    b.e(f'buffer_load_dwordx4 v{VKV}, {srd(S)}, s56 offen offset:2048 {KVPOL} lds', ('kv', n))

POFF = 0x2000000; FOFF = 0x3000000; INB = 9216
S_F = 92
def flag_srd(b):
    b.e(f's_add_u32 s{S_F}, s18, {FOFF}'); b.e(f's_addc_u32 s{S_F+1}, s19, 0')
    b.e(f's_mov_b32 s{S_F+2}, {32768+1024}'); b.e(f's_mov_b32 s{S_F+3}, 0x20000')
    b.e('s_lshl_b32 s90, s40, 5'); b.e('s_add_u32 s90, s90, s41'); b.e('s_lshl_b32 s90, s90, 7')
    b.e('s_lshl_b32 s96, s40, 7'); b.e('s_add_u32 s96, s96, 32768')

def epoch_load(b, v):
    b.e(f'v_mov_b32 v{v}, 0')
    b.e(f'buffer_load_dword v{v+1}, v{v}, {srd(S_F)}, s96 offen sc1', ('ep',))

def epoch_tags(b, v):
    b.e(f'v_readfirstlane_b32 s97, v{v+1}')
    b.e('s_nop 0')
    b.e('s_mul_i32 s97, s97, 0x9e3779b1')
    b.e('s_add_u32 s97, s97, 0x7f4a7c15')
    b.e('s_xor_b32 s98, s97, 0x80000000')

def one_lane(b, v):
    b.e(f's_lshl_b32 s91, s42, 6')
    b.e(f'v_add_u32 v{v}, s91, v0')
    b.e(f'v_lshlrev_b32 v{v}, 20, v{v}')

def kvreg_of(n): return 48 + 8 * n if n < 6 else 224 + 8 * (n - 6)
def kv_to_regs(b, n):
    c = chunk_of(n)
    S = S_K if c[0] == 'K' else S_V
    r = kvreg_of(n)
    b.e(f's_mov_b32 s56, {c[1] * CH}')
    b.e(f'buffer_load_dwordx4 {q4(r)}, v{VKV}, {srd(S)}, s56 offen {KVPOL}', ('kv', n))
    b.e(f'buffer_load_dwordx4 {q4(r+4)}, v{VKV}, {srd(S)}, s56 offen offset:2048 {KVPOL}', ('kv', n))
def kv_to_lds(n):
    r = kvreg_of(n)
    o = slot(n) % 65536
    v = VKW + slot(n) // 65536
    return [lambda b: (b.wait_vm(('kv', n)), b.e(f'ds_write_b128 v{v}, {q4(r)} offset:{o}', ('kw',))),
            E(f'ds_write_b128 v{v}, {q4(r+4)} offset:{o+2048}', ('kw',))]

def k1_qproj(ctx):
    b = Block(ctx, 'qproj')
    flag_srd(b)
    qdma(b, 0)
    b.e('v_lshl_add_u32 v9, v4, 8, v6')
    b.e('s_lshl_b32 s46, s43, 12')
    b.e('s_lshl_b32 s47, s54, 13')
    b.e('s_add_u32 s46, s46, s47')
    b.e('s_add_u32 s45, s55, s46')
    b.e(f'v_add_u32 v{VKV}, s45, v9')
    b.e('s_lshl_b32 s47, s44, 10')
    b.e('s_add_u32 s52, s46, s47')
    qdma(b, 1)
    b.e('v_lshrrev_b32 v10, 4, v0')
    b.e('v_and_b32 v6, 15, v0')
    b.e('v_lshrrev_b32 v7, 2, v6')
    b.e('v_and_b32 v8, 1, v10')
    b.e('v_lshl_add_u32 v5, v8, 2, v7')
    b.e('v_lshlrev_b32 v5, 6, v5')
    b.e('v_lshl_add_u32 v5, v8, 5, v5')
    b.e('v_lshl_add_u32 v5, v3, 3, v5')
    b.e('v_lshrrev_b32 v9, 1, v10')
    b.e('v_lshl_add_u32 v5, v9, 12, v5')
    b.e('s_lshl_b32 s45, s54, 11')
    b.e(f'v_add_u32 v{VAE}, s45, v5')
    b.e(f'v_add_u32 v{VAE+1}, {2*SLOT}, v{VAE}')
    b.e(f'v_xor_b32 v{VAO}, 32, v{VAE}')
    b.e(f'v_xor_b32 v{VAO+1}, 32, v{VAE+1}')
    b.e('v_add_u32 v5, 4, v6')
    b.e('v_bfe_u32 v11, v5, 3, 1')
    b.e('v_and_b32 v12, 7, v5')
    b.e('v_lshrrev_b32 v13, 2, v12')
    b.e('v_lshlrev_b32 v13, 1, v13')
    b.e('v_lshlrev_b32 v14, 6, v12')
    b.e('v_xor_b32 v15, v13, v10')
    b.e('v_lshl_add_u32 v15, v15, 4, v14')
    b.e('s_mul_i32 s46, s53, 6144')
    b.e('s_add_u32 s46, s46, 16384')
    b.e('v_lshl_add_u32 v5, v11, 10, v15')
    b.e(f'v_add_u32 v{VXR}, s46, v5')
    b.e(f'v_add_u32 v{VXR+1}, {2*SLOT}, v{VXR}')
    b.e('v_lshl_add_u32 v15, v11, 11, v15')
    b.e('v_lshl_add_u32 v14, v11, 11, v14')
    b.e('s_lshl_b32 s47, s54, 13')
    b.e(f'v_add_u32 v{VK}, s47, v15')
    b.e(f'v_add_u32 v{VK}, {slot(0)}, v{VK}')
    b.e('s_mul_i32 s46, s53, 12288')
    b.e(f's_add_u32 s46, s46, {QB}')
    b.e(f'v_add_u32 v{VQR}, s46, v15')
    b.e('v_xor_b32 v15, v13, v9')
    b.e('v_lshl_add_u32 v15, v15, 4, v14')
    b.e('v_lshl_add_u32 v15, v8, 3, v15')
    b.e('s_lshl_b32 s45, s54, 10')
    b.e('s_add_u32 s46, s46, s45')
    b.e(f'v_add_u32 v{VQE}, s46, v15')
    b.e(f'v_xor_b32 v{VQO}, 32, v{VQE}')
    b.e('v_add_u32 v5, 1, v10')
    b.e('v_bfe_u32 v11, v5, 1, 1')
    b.e('v_and_b32 v12, 1, v5')
    b.e('v_lshl_add_u32 v13, v12, 2, v7')
    b.e('v_lshlrev_b32 v13, 6, v13')
    b.e('v_lshl_add_u32 v13, v12, 5, v13')
    b.e('v_lshl_add_u32 v13, v3, 3, v13')
    b.e('v_lshl_add_u32 v13, v11, 11, v13')
    b.e(f's_add_u32 s47, s47, {slot(2)}')
    b.e(f'v_add_u32 v{VVE}, s47, v13')
    b.e(f'v_xor_b32 v{VVO}, 32, v{VVE}')
    b.e(f'v_lshlrev_b32 v{VL16}, 4, v0')
    b.e(f'v_add_u32 v{VKW}, s52, v{VL16}')
    b.e(f'v_add_u32 v{VKW+1}, 65536, v{VKW}')
    b.e(f'v_add_u32 v{VKW+2}, 131072, v{VKW}')
    b.e(f's_mov_b32 s48, {hex(f2u(SCALE))}')
    b.e(f's_mov_b32 s50, {(2*CH - LDS_TOT) & 0xffffffff}')
    b.e(f's_mov_b32 s51, {2*CH}')
    b.e(f's_mov_b32 s46, {slot(2)}')
    def fA(D, h, tt): return FS + 56 * (D % 2) + 28 * h + 4 * tt
    def fB(D, h, jt): return FS + 56 * (D % 2) + 28 * h + 16 + 4 * jt
    def reads(D):
        sl = ((D + 3) % 4); hi = sl // 2; o = (sl % 2) * SLOT
        r = []
        for h in range(2):
            for jt in range(3):
                r.append(E(f'ds_read_b128 {q4(fB(D,h,jt))}, v{VXR+hi} offset:{o + jt*2048 + h*512}', ('f', D)))
            for tt in range(4):
                for u in range(2):
                    r.append(E(f'ds_read_b64_tr_b16 {q2(fA(D,h,tt)+2*u)}, v{(VAO if tt%2 else VAE)+hi} offset:{o + u*8192 + h*1024 + (tt//2)*512}', ('f', D)))
        return r
    zero = [E(f'v_mov_b32 v{i}, 0') for i in range(48, 96)] + [E(f'v_mov_b32 v{LS+i}, 0') for i in range(3)]
    b.wait_vm(('q', 0))
    b.e('s_barrier')
    stamp(b, 1)
    run(b, reads(0))
    qdma(b, 2)
    issue = {0: [3, 4], 1: [5], 2: [6], 3: [7], 4: [8]}
    kvi = {5: [0], 6: [1, 2], 7: [3], 8: [4]}
    kvr = {}; kvw = {}
    if KVREG == 2:
        kvr = {4: [0, 1], 5: [2]}; kvw = {6: [0, 1, 2]}; kvi = {6: [3], 7: [4], 8: [5]}
    if KVREG == 1:
        kvi = {}
        kvr = {KV1 + i: [i] for i in range(6)} if KV1 + 5 <= 6 else {2: [0], 3: [1], 4: [2], 5: [3], 6: [4, 5]}
        kvr[7] = [6]; kvr[8] = [7]
        kvw = {6: [0, 1, 2, 3], 7: [4, 5]}
    for D in range(9):
        b.e('s_waitcnt lgkmcnt(0)')
        if D + 1 < 9: b.wait_vm(('q', D + 1))
        b.e('s_barrier')
        dm = [(lambda b, x=x: qdma(b, x)) for x in issue.get(D, [])] + [(lambda b, x=x: kvpair_static(b, x)) for x in kvi.get(D, [])]
        if D == 5: dm.insert(0, lambda b: epoch_load(b, 222))
        dm += [(lambda b, x=x: kv_to_regs(b, x)) for x in kvr.get(D, [])]
        wr = sum((kv_to_lds(x) for x in kvw.get(D, [])), [])
        if KVREG == 2: zs = zero[24 + 5 * D:29 + 5 * D] if D < 6 else {7: zero[:24]}.get(D, [])
        elif KVREG: zs = {7: zero[:32] + zero[48:], 8: zero[32:48]}.get(D, [])
        else: zs = zero[7 * D:7 * D + 7]
        mf = []
        if D < 8:
            for h in range(2):
                for tt in range(4):
                    for jt in range(3):
                        d = q4(acc(tt, jt))
                        mf.append(E(f'{MF} {d}, {q4(fA(D,h,tt))}, {q4(fB(D,h,jt))}, {"0" if D == 0 and h == 0 else d}'))
            rd = reads(D + 1)
            fill = []
            QS = int(OPT.get('qs', 1))
            if QS:
                dm = sum((qdma_parts(x) for x in issue.get(D, [])), []) + dm[len(issue.get(D, [])):]
                step = max(1, len(rd) // max(1, len(dm)))
                for k, x in enumerate(rd):
                    fill.append(x)
                    if dm and k % step == step - 1: fill.append(dm.pop(0))
                fill += dm; dm = []
            for k, x in enumerate(rd if not QS else []):
                fill.append(x)
                if dm and k % 6 == 1: fill.append(dm.pop(0))
            assert not dm
            run(b, interleave(mf, wr + fill + zs, end=int(OPT.get('qe', 21)) + (2 if len(zs) > 8 else 0)))
        else:
            tiles = [(tt, jt) for tt in range(4) for jt in range(3)]
            def conv(tt, jt):
                a = acc(tt, jt)
                return [E(f'v_mul_f32 v{a+i}, s48, v{a+i}') for i in range(4)] + [
                    E(f'v_cvt_pk_bf16_f32 v{a}, v{a}, v{a+1}'), E(f'v_cvt_pk_bf16_f32 v{a+1}, v{a+2}, v{a+3}'),
                    E(f'ds_write_b64 v{VQO if tt%2 else VQE}, {q2(a)} offset:{jt*4096 + (tt//2)*512}', ('qw',))]
            LAG = 3
            run(b, dm)
            run(b, zs)
            for k, (tt, jt) in enumerate(tiles):
                d = q4(acc(tt, jt))
                cv = conv(*tiles[k - LAG]) if k >= LAG else []
                if k == LAG: b.e('s_nop 2')
                b.e(f'{MF} {d}, {q4(fA(D,0,tt))}, {q4(fB(D,0,jt))}, {d}')
                run(b, cv[:3])
                b.e(f'{MF} {d}, {q4(fA(D,1,tt))}, {q4(fB(D,1,jt))}, {d}')
                run(b, cv[3:])
            stamp(b, 2)
            for k in range(12 - LAG, 12):
                if k == 11: b.e('s_nop 0')
                run(b, conv(*tiles[k]))
    b.e('s_waitcnt lgkmcnt(0)')
    if not KVREG: b.wait_vm(('kv', 1))
    epoch_tags(b, 222)
    b.e('s_barrier')
    if not KVREG: kvpair_static(b, 5)
    for s in range(4):
        for jt in range(3):
            b.e(f'ds_read_b128 {q4(qf(s,jt))}, v{VQR} offset:{jt*4096 + (s//2)*1024 + (s%2)*512}', ('qr', s))
    return b

def kread(b, f):
    kt, s = f // 4, f % 4
    b.e(f'ds_read_b128 {q4(KR+4*(f%4))}, v{VK} offset:{kt*4096 + (s//2)*1024 + (s%2)*512}', ('k', f))
def vread(b, t):
    tau = t // 2
    a = VVO if t % 2 else VVE
    for u in range(2):
        b.e(f'ds_read_b64_tr_b16 {q2(VR+4*(t%4)+2*u)}, v{a} offset:{u*4096 + (tau//2)*1024 + (tau%2)*512}', ('v', t))
def kadv(b, first=False):
    if first:
        b.e(f'v_add_u32 v{VK}, {CH}, v{VK}')
        b.e(f's_mov_b32 s45, {slot(1)}')
        return
    b.e(f's_cmp_ge_u32 s45, {LDS_TOT - 2*CH}')
    b.e(f's_cselect_b32 s47, s50, s51')
    b.e(f's_add_u32 s45, s45, s47')
    b.e(f'v_add_u32 v{VK}, s47, v{VK}')
def vadv(b):
    b.e(f's_cmp_ge_u32 s46, {LDS_TOT - 2*CH}')
    b.e(f's_cselect_b32 s47, s50, s51')
    b.e(f's_add_u32 s46, s46, s47')
    b.e(f'v_add_u32 v{VVE}, s47, v{VVE}')
    b.e(f'v_add_u32 v{VVO}, s47, v{VVO}')


def dma_k(b):
    b.e('s_mov_b32 m0, s57')
    b.e(f's_cmp_ge_u32 s57, s61')
    b.e(f'buffer_load_dwordx4 v{VKV}, {srd(S_K)}, s59 offen {KVPOL} lds', ('kd',))
    b.e(f'buffer_load_dwordx4 v{VKV}, {srd(S_K)}, s59 offen offset:2048 {KVPOL} lds', ('kd',))
    b.e('s_cselect_b32 s62, s50, s51')
    b.e('s_add_u32 s57, s57, s62')
    b.e(f's_add_u32 s59, s59, {CH}')
def dma_v(b):
    b.e('s_mov_b32 m0, s58')
    b.e(f's_cmp_ge_u32 s58, s61')
    b.e(f'buffer_load_dwordx4 v{VKV}, {srd(S_V)}, s60 offen {KVPOL} lds', ('vd',))
    b.e(f'buffer_load_dwordx4 v{VKV}, {srd(S_V)}, s60 offen offset:2048 {KVPOL} lds', ('vd',))
    b.e('s_cselect_b32 s62, s50, s51')
    b.e('s_add_u32 s58, s58, s62')
    b.e(f's_add_u32 s60, s60, {CH}')

PS = TMP + 8

def guarded(fn, T):
    def g(b):
        if T is None: return fn(b)
        role.n += 1; l = f'SK{role.n}'
        b.e(f's_cmp_eq_u32 s44, {T}')
        b.e(f's_cbranch_scc1 {l}')
        fn(b)
        b.e(f'{l}:')
    return g

def qk_backbone(S, cinit, nextV=True, first=False, qwait=False, dma=None):
    bb = []
    for f in range(8):
        kt, s = f // 4, f % 4
        for jt in range(3):
            def slot(b, f=f, kt=kt, s=s, jt=jt):
                if jt == 0:
                    if qwait and f < 4: b.wait_lgkm(('qr', s))
                    if not PAIRW: b.wait_lgkm(('k', f))
                    elif f % 2 == 0: b.wait_lgkm(('k', f + 1)); b.wait_lgkm(('k', f))
                d = q4(st(S, kt, jt))
                c = d if s else (q4(NEGM + 4 * jt) if cinit == 'negm' else '0')
                b.e(f'{MF} {d}, {q4(KR+4*(f%4))}, {q4(qf(s,jt))}, {c}')
                if jt == 2:
                    if f < 4: kread(b, f + 4)
                    if f == 3: kadv(b, first)
                    if f >= 4:
                        if nextV == 'K': kread(b, f - 4)
                        elif nextV: vread(b, f - 4)
                if dma and not NODMA and f == 0 and jt == 1: dma(b)
            bb.append(slot)
    return bb

def pv_backbone(P, nextK=True, dma=None, adv=True):
    bb = []
    for t in range(8):
        for jt in range(3):
            def slot(b, t=t, jt=jt):
                if jt == 0:
                    if not PAIRW: b.wait_lgkm(('v', t))
                    elif t % 2 == 0: b.wait_lgkm(('v', t + 1)); b.wait_lgkm(('v', t))
                d = q4(acc(t, jt))
                b.e(f'{MF} {d}, {q4(VR+4*(t%4))}, {q4(st(P,0,jt))}, {d}')
                if jt == 2:
                    if t < 4: vread(b, t + 4)
                    if t == 3 and adv: vadv(b)
                    if t >= 4 and nextK: kread(b, t - 4)
                if dma and not NODMA and t == 0 and jt == 1: dma(b)
            bb.append(slot)
    return bb

def sregs(S, jt): return [st(S, 0, jt) + i for i in range(4)] + [st(S, 1, jt) + i for i in range(4)]

def sm_fillers(S):
    fl = []
    for kt in range(2):
        for jt in range(3):
            r = sregs(S, jt)
            o = 4 * kt
            fl.append(E(f'v_exp_f32 v{r[o]}, v{r[o]}'))
            fl.append(E(f'v_exp_f32 v{r[o+1]}, v{r[o+1]}'))
            if kt: fl.append(E(f'v_add_f32 v{PS+jt}, v{PS+jt}, v{r[o]}'))
            fl.append(E(f'v_exp_f32 v{r[o+2]}, v{r[o+2]}'))
            if kt: fl.append(E(f'v_add_f32 v{PS+jt}, v{PS+jt}, v{r[o+1]}'))
            else: fl.append(E(f'v_add_f32 v{PS+jt}, v{r[0]}, v{r[1]}'))
            fl.append(E(f'v_exp_f32 v{r[o+3]}, v{r[o+3]}'))
            fl.append(E(f'v_add_f32 v{PS+jt}, v{PS+jt}, v{r[o+2]}'))
            fl.append(E(f'v_cvt_pk_bf16_f32 v{r[2*kt]}, v{r[o]}, v{r[o+1]}'))
            fl.append(E(f'v_add_f32 v{PS+jt}, v{PS+jt}, v{r[o+3]}'))
            fl.append(E(f'v_cvt_pk_bf16_f32 v{r[2*kt+1]}, v{r[o+2]}, v{r[o+3]}'))
    return fl

def chk_fillers():
    return [E(f'v_max3_f32 v{TMP}, v{PS}, v{PS+1}, v{PS+2}'), E(f'v_cmp_nle_f32 vcc, v{TMP}, v{TMP+11}')]
def ladd_fillers():
    return [E(f'v_add_f32 v{LS+jt}, v{LS+jt}, v{PS+jt}') for jt in range(3)]

def xreduce3(regs, tmps, op):
    fl = []
    for sw in ('v_permlane32_swap_b32', 'v_permlane16_swap_b32'):
        for r, t in zip(regs, tmps): fl.append(E(f'v_mov_b32 v{t}, v{r}'))
        for r, t in zip(regs, tmps): fl.append(E(f'{sw} v{r}, v{t}'))
        for r, t in zip(regs, tmps): fl.append(E(f'{op} v{r}, v{r}, v{t}'))
    return fl

MX = [TMP + 1, TMP + 2, TMP + 3]; MT = [TMP + 4, TMP + 5, TMP + 6]
def rowmax3(S):
    fl = []
    R = [sregs(S, jt) for jt in range(3)]
    for jt in range(3): fl.append(E(f'v_max3_f32 v{MX[jt]}, v{R[jt][0]}, v{R[jt][1]}, v{R[jt][2]}'))
    for jt in range(3): fl.append(E(f'v_max3_f32 v{MX[jt]}, v{MX[jt]}, v{R[jt][3]}, v{R[jt][4]}'))
    for jt in range(3): fl.append(E(f'v_max3_f32 v{MX[jt]}, v{MX[jt]}, v{R[jt][5]}, v{R[jt][6]}'))
    for jt in range(3): fl.append(E(f'v_max_f32 v{MX[jt]}, v{MX[jt]}, v{R[jt][7]}'))
    return fl + xreduce3(MX, MT, 'v_max_f32')

def rare_path(ctx, name, Y, X, back):
    snap = ctx.snap()
    r = Block(ctx, name + 'r')
    r.e(f'{name}_RARE:')
    r.e(f's_cmp_ge_u32 s45, {back*CH}')
    r.e(f's_cselect_b32 s47, 0, {LDS_TOT}')
    r.e(f's_sub_u32 s47, s47, {back*CH}')
    r.e(f'v_add_u32 v{TMP+7}, s47, v{VK}')
    for kt in range(2):
        for s in range(4):
            r.e(f'ds_read_b128 {q4(KR+4*s)}, v{TMP+7} offset:{kt*4096 + (s//2)*1024 + (s%2)*512}', ('rk',))
        r.e('s_waitcnt lgkmcnt(0)')
        for s in range(4):
            for jt in range(3):
                d = q4(st(Y, kt, jt))
                r.e(f'{MF} {d}, {q4(KR+4*s)}, {q4(qf(s,jt))}, {d if s else q4(NEGM+4*jt)}')
    r.e('s_nop 7')
    run(r, rowmax3(Y))
    for jt in range(3): r.e(f'v_max_f32 v{MX[jt]}, 0, v{MX[jt]}')
    for jt in range(3): r.e(f'v_exp_f32 v{MT[jt]}, -v{MX[jt]}')
    for jt in range(3):
        for q in sregs(Y, jt) + (sregs(X, jt) if X else []) + [NEGM + 4 * jt + i for i in range(4)]:
            r.e(f'v_sub_f32 v{q}, v{q}, v{MX[jt]}')
        r.e(f'v_mul_f32 v{LS+jt}, v{LS+jt}, v{MT[jt]}')
        for t in range(8):
            for i in range(4): r.e(f'v_mul_f32 v{acc(t,jt)+i}, v{acc(t,jt)+i}, v{MT[jt]}')
    run(r, sm_fillers(Y))
    r.e('s_nop 1')
    r.e(f's_branch {name}_JOIN')
    ctx.restore(snap)
    return r

def k1_att_prologue(ctx):
    b = Block(ctx, 'att_pro')
    for f in range(4): kread(b, f)
    nk, nv = {0: (7, 8), 1: (11, 10), 2: (9, 8)}[KVREG]
    if LEAD == 8: nk, nv = 9, 8
    b.e(f's_add_u32 s57, s52, {slot(nk)}')
    b.e(f's_add_u32 s58, s52, {slot(nv)}')
    b.e(f's_mov_b32 s59, {chunk_of(nk)[1]*CH}')
    b.e(f's_mov_b32 s60, {chunk_of(nv)[1]*CH}')
    b.e(f's_add_u32 s61, s52, {LDS_TOT - 2*CH}')
    b.e(f'v_mov_b32 v{TMP+11}, {hex(f2u(THR))}')
    if FUSED and WARM:
        b.e('s_lshr_b32 s55, s41, 3'); b.e('s_mul_i32 s55, s55, 1179648')
        b.e('s_and_b32 s56, s41, 3'); b.e('s_mul_i32 s62, s56, 288'); b.e('s_add_u32 s55, s55, s62')
        b.e('s_and_b32 s62, s41, 1'); b.e('s_lshl_b32 s62, s62, 5'); b.e('s_sub_u32 s55, s55, s62')
        b.e('s_lshl_b32 s56, s56, 1'); b.e('s_and_b32 s62, s41, 4'); b.e('s_add_u32 s56, s56, s62')
        b.e('s_and_b32 s62, s40, 3'); b.e('s_add_u32 s56, s56, s62'); b.e('s_and_b32 s56, s56, 7')
        b.e('s_mul_i32 s56, s56, 147456'); b.e('s_add_u32 s55, s55, s56')
        b.e('s_mul_i32 s56, s42, 18432'); b.e('s_add_u32 s55, s55, s56')
        b.e('s_add_u32 s28, s12, s55'); b.e('s_addc_u32 s29, s13, 0')
        b.e('s_sub_u32 s30, 4718592, s55'); b.e('s_mov_b32 s31, 0x20000')
    zero = [E(f'v_mov_b32 v{ACC+i}, 0') for i in range(48)]
    run(b, interleave(qk_backbone(SA, '0', nextV='K', first=True, qwait=True), zero))
    if not KVREG: b.wait_vm(('kv', 2))
    b.e('s_barrier')
    if KVREG == 2:
        kvpair_static(b, 6)
        kvpair_static(b, 7)
    elif KVREG:
        kvpair_static(b, 8)
        kvpair_static(b, 9)
        run(b, kv_to_lds(7)[:1] + kv_to_lds(7)[1:] + kv_to_lds(6))
    else:
        kvpair_static(b, 6)
        if LEAD == 8: kvpair_static(b, 7)
    if TOUCH:
        b.e(f'v_lshlrev_b32 v{TMP+7}, {12 if TOUCH == 1 else 17}, v{VL16}')
        b.e('s_mov_b32 s100, 0x20000')
        for base, size, off in ((12, 4718592, 0), (18, 0x1000000, 0), (18, 0x1000000, 0x400000), (18, 0x1000000, 0x800000), (18, 0x3000000, 0x2000000), (18, 0x3000000, 0x2400000), (18, 0x3000000, 0x2800000), (18, 0x3000000, 0x2c00000), (14, 1769472, 0)):
            b.e(f's_mov_b32 s28, s{base}'); b.e(f's_mov_b32 s29, s{base+1}'); b.e(f's_mov_b32 s30, {size}'); b.e('s_mov_b32 s31, 0x20000')
            b.e(f's_mov_b32 s56, {off}')
            b.e(f'buffer_load_dword v{TMP}, v{TMP+7}, s[28:31], s56 offen', ('touch',))
        b.e('s_waitcnt vmcnt(0)')
    run(b, rowmax3(SA))
    for jt in range(3):
        for i in range(4): b.e(f'v_sub_f32 v{NEGM+4*jt+i}, 0, v{MX[jt]}')
    sub = [E(f'v_sub_f32 v{r}, v{r}, v{MX[jt]}') for kt in range(2) for jt in range(3) for r in sregs(SA, jt)[4*kt:4*kt+4]]
    run(b, interleave(qk_backbone(SB, 'negm', nextV=True), sub + sm_fillers(SA)))
    b.e('s_mov_b32 s44, 0')
    if PRIO:
        b.e('s_cmp_ge_u32 s42, 4'); b.e('s_cbranch_scc0 NOPRIO'); b.e('s_setprio 1'); b.e('NOPRIO:')
    stamp(b, 3)
    return b

def pv_phase(ctx, name, P, S, nextK=True, head=None, dma=None, vmw=4, bar=True, extra=(), split=None):
    a = Block(ctx, name)
    if head: head(a)
    if bar:
        a.e(f's_waitcnt vmcnt({(2 if NOBARQK else vmw) + 2 * (LEAD - 6)})')
        a.e('s_barrier')
    fl = ladd_fillers() + (sm_fillers(S)[:split or SM_SPLIT] if S else []) + list(extra)
    run(a, interleave(pv_backbone(P, nextK, dma, adv=bar), fl, start=int(OPT.get('pvs', 2))))
    return a

def qk_phase(ctx, name, D, S, dma):
    b = Block(ctx, name)
    if not NOBARQK:
        b.e('s_waitcnt vmcnt(4)')
        b.e('s_barrier')
    run(b, interleave(qk_backbone(D, 'negm', dma=dma), sm_fillers(S)[SM_SPLIT:] + chk_fillers(), end=23))
    b.e(f's_cbranch_vccnz {name}_RARE')
    r = rare_path(ctx, name, S, D, 4)
    j = Block(ctx, name + 'j'); j.e(f'{name}_JOIN:')
    return b, r, j

def pol_store(b, text, tag):
    b.e(text + ' sc1', tag)

EXB = 4 * CH
MLB = 24576
def k1_epilogue(ctx):
    b = Block(ctx, 'epi')
    stamp(b, 4)
    if STAMP and OPT.get('rt4'): b.e('s_memrealtime s[84:85]')
    run(b, xreduce3([LS, LS + 1, LS + 2], MT, 'v_add_f32'))
    b.e('s_mul_i32 s43, s42, 12288')
    b.e('s_xor_b32 s46, s42, 4')
    b.e('s_mul_i32 s45, s46, 12288')
    b.e(f's_add_u32 s43, s43, {EXB}')
    b.e(f's_add_u32 s45, s45, {EXB}')
    b.e(f'v_add_u32 v{VK}, s43, v{VL16}')
    b.e(f'v_add_u32 v{VVE}, s45, v{VL16}')
    b.e(f'v_lshrrev_b32 v{VVO}, 1, v{VL16}')
    b.e('s_mul_i32 s43, s42, 1536')
    b.e('s_mul_i32 s45, s46, 1536')
    b.e(f's_add_u32 s43, s43, {MLB}')
    b.e(f's_add_u32 s45, s45, {MLB}')
    b.e(f'v_add_u32 v{VKV}, s43, v{VVO}')
    b.e(f'v_add_u32 v{VVO}, s45, v{VVO}')
    for jt in range(3):
        b.e(f'v_mov_b32 v{NEGM+4*jt+1}, v{LS+jt}')
    for jt in range(3):
        b.e(f'ds_write_b64 v{VKV}, {q2(NEGM+4*jt)} offset:{jt*512}', ('x',))
    b.e('s_and_b32 s43, s42, 3')
    b.e('s_mul_i32 s43, s43, 393216')
    b.e('s_lshl_b32 s45, s41, 12')
    b.e('s_add_u32 s43, s43, s45')
    b.e('s_lshl_b32 s45, s54, 11')
    b.e('s_add_u32 s43, s43, s45')
    b.e('s_add_u32 s45, s43, 131072')
    b.e('s_add_u32 s46, s43, 262144')
    so = ['s43', 's45', 's46']
    for r in (A, B):
        with role(b, r):
            send = range(4, 8) if r == A else range(0, 4)
            for i, t in enumerate(send):
                for jt in range(3):
                    b.e(f'ds_write_b128 v{VK}, {q4(acc(t,jt))} offset:{(3*i+jt)*1024}', ('x',))
    b.e('s_waitcnt lgkmcnt(0)')
    b.e('s_barrier')
    RX = QF
    ML = SA
    for jt in range(3):
        b.e(f'ds_read_b64 {q2(ML+2*jt)}, v{VVO} offset:{jt*512}', ('ml',))
    for i in range(12):
        b.e(f'ds_read_b128 {q4(RX+4*i)}, v{VVE} offset:{i*1024}', ('rx', i))
    b.wait_lgkm(('ml',))
    C = SA + 8
    T = [TMP, TMP + 4, TMP + 8]
    def each(f):
        for jt in range(3): b.e(f(jt, NEGM + 4 * jt, NEGM + 4 * jt + 1, ML + 2 * jt, ML + 2 * jt + 1, T[jt]))
    each(lambda jt, no, lo, np_, lp, t: f'v_min_f32 v{t}, v{no}, v{np_}')
    each(lambda jt, no, lo, np_, lp, t: f'v_sub_f32 v{t+1}, v{t}, v{no}')
    each(lambda jt, no, lo, np_, lp, t: f'v_sub_f32 v{t+2}, v{t}, v{np_}')
    each(lambda jt, no, lo, np_, lp, t: f'v_exp_f32 v{t+1}, v{t+1}')
    each(lambda jt, no, lo, np_, lp, t: f'v_exp_f32 v{t+2}, v{t+2}')
    each(lambda jt, no, lo, np_, lp, t: f'v_mul_f32 v{t+3}, v{t+1}, v{lo}')
    each(lambda jt, no, lo, np_, lp, t: f'v_fmac_f32 v{t+3}, v{t+2}, v{lp}')
    each(lambda jt, no, lo, np_, lp, t: f'v_rcp_f32 v{t+3}, v{t+3}')
    b.e('s_nop 0')
    for x, src in ((0, 1), (1, 1), (2, 2), (3, 2)):
        each(lambda jt, no, lo, np_, lp, t: f'v_mul_f32 v{C+4*jt+x}, v{t+src}, v{t+3}')
    OUT = SB
    snap = ctx.snap()
    for r in (A, B):
        with role(b, r):
            keep = range(0, 4) if r == A else range(4, 8)
            for sp in range(2):
                for jt in range(3):
                    o = OUT + 4 * (3 * sp + jt)
                    for h in range(2):
                        i = 2 * sp + h
                        a = acc(keep[i], jt); x = RX + 4 * (3 * i + jt)
                        b.wait_lgkm(('rx', 3 * i + jt))
                        b.e(f'v_pk_mul_f32 {q2(a)}, {q2(a)}, {q2(C+4*jt)}')
                        b.e(f'v_pk_mul_f32 {q2(a+2)}, {q2(a+2)}, {q2(C+4*jt)}')
                        b.e(f'v_pk_fma_f32 {q2(a)}, {q2(x)}, {q2(C+4*jt+2)}, {q2(a)}')
                        b.e(f'v_pk_fma_f32 {q2(a+2)}, {q2(x+2)}, {q2(C+4*jt+2)}, {q2(a+2)}')
                        b.e(f'v_cvt_pk_bf16_f32 v{o+2*h}, v{a}, v{a+1}')
                        b.e(f'v_cvt_pk_bf16_f32 v{o+2*h+1}, v{a+2}, v{a+3}')
                    pol_store(b, f'buffer_store_dwordx4 {q4(o)}, v{VL16}, {srd(S_O)}, {so[jt]} offen offset:{sp*1024}', ('o',))
    if FUSED:
        b.e('s_bfe_u32 s43, s42, 0x10001')
        b.e('s_cmp_eq_u32 s43, s49')
        b.e('s_cbranch_scc0 OWN_SKIP')
        b.e('s_and_b32 s43, s42, 1'); b.e('s_mul_i32 s43, s43, 6144')
        b.e(f's_mul_i32 s45, s54, {OS_}'); b.e('s_add_u32 s43, s43, s45')
        b.e(f'v_add_u32 v{VK}, s43, v{VL16}')
        for sp in range(2):
            for jt in range(3):
                b.e(f'ds_write_b128 v{VK}, {q4(OUT + 4 * (3 * sp + jt))} offset:{(2*jt+sp)*1024}', ('oo',))
        b.e('OWN_SKIP:')
    if not FUSED:
        if STAMP:
            b.e('s_waitcnt vmcnt(0)')
            stamp(b, 5)
            dump_stamps(b)
        b.e('K1_END:')
        b.e('s_endpgm')
    return b

def dump_stamps(b):
    b.e('s_memrealtime s[88:89]')
    b.e('s_waitcnt lgkmcnt(0)')
    if STAMP == 2:
        b.e(f's_cmp_eq_u32 s2, {int(OPT.get("dbgwg", 0))}'); b.e('s_cbranch_scc0 DBG_SKIP')
        b.e('s_cmp_eq_u32 s42, 2'); b.e('s_cbranch_scc0 DBG_SKIP')
        b.e('s_mov_b32 s56, s16'); b.e('s_mov_b32 s57, s17'); b.e('s_mov_b32 s58, 256'); b.e('s_mov_b32 s59, 0x20000')
        b.e('v_mov_b32 v1, 0')
        for i in range(1, 11):
            b.e(f's_sub_u32 s43, s{64+2*i}, s64'); b.e('v_mov_b32 v2, s43')
            b.e(f'buffer_store_dword v2, v1, s[56:59], 0 offen offset:{4*i}')
            b.e('s_waitcnt vmcnt(0)')
        b.e('s_sub_u32 s43, s88, s86'); b.e('v_mov_b32 v2, s43')
        b.e('buffer_store_dword v2, v1, s[56:59], 0 offen offset:44')
        b.e('s_waitcnt vmcnt(0)')
        b.e('DBG_SKIP:')
        return
    b.e('s_lshl_b32 s43, s2, 3'); b.e('s_add_u32 s43, s43, s42'); b.e('s_lshl_b32 s43, s43, 7')
    b.e('s_add_u32 s43, s43, 0x1000000')
    b.e('s_add_u32 s56, s18, s43'); b.e('s_addc_u32 s57, s19, 0'); b.e('s_mov_b32 s58, 128'); b.e('s_mov_b32 s59, 0x20000')
    b.e('v_mov_b32 v1, 0')
    for i in range(13):
        b.e(f'v_mov_b32 v2, s{64+2*i}'); b.e(f'v_mov_b32 v3, s{65+2*i}')
        b.e(f'buffer_store_dwordx2 v[2:3], v1, s[56:59], 0 offen offset:{8*i}')
        b.e('s_waitcnt vmcnt(0)')

def poll(b, name, load, notyet):
    b.e('s_mov_b32 s91, 0')
    b.e(f'{name}:')
    b.e(load)
    b.e('s_add_u32 s91, s91, 1')
    b.e('s_waitcnt vmcnt(0)')
    b.e(notyet)
    b.e('s_cmp_lt_u32 s91, 0x40000')
    b.e(f's_cbranch_vccz {name}_GO')
    b.e(f's_sleep {SLEEP}')
    b.e(f's_cbranch_scc1 {name}')
    b.e(f'{name}_GO:')

BIG, SML, LW, LO = (2, 3), (0, 1, 4, 5), (6,), (7,)
S_WO, S_OI, S_P, S_PI, S_OUT = 20, 24, 28, 32, 36
VAP = 192; VB = 197; VT = 198; VE = 202; GS = 208; XF = 248
WS_ = 20480; NW_ = 6; OS_ = 12288; NO_ = 3; WOB = NO_ * OS_

def tail_setup():
    P = []
    def piece(*lines): P.append(lambda b: [b.e(l) for l in lines])
    piece('s_lshr_b32 s47, s41, 3', 's_and_b32 s48, s41, 7')
    piece('s_lshr_b32 s49, s48, 2', 's_and_b32 s50, s48, 3')
    piece('s_and_b32 s51, s50, 1', 's_mul_i32 s55, s47, 1179648')
    piece('s_mul_i32 s61, s50, 288', 's_add_u32 s55, s55, s61')
    piece('s_lshl_b32 s61, s51, 5', 's_sub_u32 s55, s55, s61')
    piece('s_mul_i32 s61, s40, 1572864', 's_mul_i32 s100, s49, 786432')
    piece('s_add_u32 s61, s61, s100', 's_lshl_b32 s100, s47, 15')
    piece('s_add_u32 s61, s61, s100', f's_sub_u32 s{S_WO+2}, 4718592, s55')
    piece(f's_add_u32 s{S_WO}, s12, s55', f's_addc_u32 s{S_WO+1}, s13, 0')
    piece(f's_add_u32 s{S_OI}, s18, s61', f's_addc_u32 s{S_OI+1}, s19, 0')
    piece(f's_mov_b32 s{S_WO+3}, 0x20000', f's_mov_b32 s{S_OI+2}, {5*131072 + 32768}', f's_mov_b32 s{S_OI+3}, 0x20000')
    piece('s_lshl_b32 s52, s40, 3', 's_add_u32 s52, s52, s48')
    piece(f's_mul_i32 s52, s52, {16*INB}', f's_add_u32 s52, s52, {POFF}')
    piece(f's_mul_i32 s61, s47, {INB}', 's_add_u32 s61, s61, s52')
    piece(f's_add_u32 s{S_P}, s18, s61', f's_addc_u32 s{S_P+1}, s19, 0')
    piece(f's_mov_b32 s{S_P+2}, {13*INB}', f's_mov_b32 s{S_P+3}, 0x20000')
    piece(f's_mul_i32 s61, s47, {4*INB}', 's_add_u32 s61, s61, s52')
    piece(f's_add_u32 s{S_PI}, s18, s61', f's_addc_u32 s{S_PI+1}, s19, 0')
    piece(f's_mov_b32 s{S_PI+2}, {4*INB}', f's_mov_b32 s{S_PI+3}, 0x20000')
    piece('s_mul_i32 s52, s40, 192', 's_mul_i32 s61, s49, 96')
    piece('s_add_u32 s52, s52, s61', 's_lshl_b32 s61, s47, 2')
    piece('s_add_u32 s52, s52, s61', 's_mul_i32 s52, s52, 1152')
    piece('s_mul_i32 s61, s50, 288', 's_add_u32 s6, s52, s61')
    piece('s_lshr_b32 s100, s50, 1', 's_and_b32 s99, s90, 0xfffffc00')
    return P

def head_of(b, U):
    G = U // 2
    b.e(f's_add_u32 s55, s48, {G >> 1}'); b.e('s_and_b32 s55, s55, 3')
    b.e(f's_xor_b32 s61, s48, {(G & 1) << 2}'); b.e('s_and_b32 s61, s61, 4'); b.e('s_or_b32 s55, s55, s61')

def oproj(ctx):
    FB = 64
    b = Block(ctx, 'op_pre')
    stamp(b, 2, True)
    b.e(f'v_lshrrev_b32 v{VT+3}, 4, v{VL16}')
    T0 = 216
    v3, v4, v5, v6, v7 = (f'v{T0+i}' for i in range(5))
    VL = 224
    b.e(f'v_and_b32 {v3}, 3, v{VT+3}')
    with role(b, BIG + SML):
        b.e('s_and_b32 s43, s42, 1')
        b.e('s_cmp_lt_u32 s42, 2'); b.e('s_cselect_b32 s45, 5, 0')
        b.e('s_cmp_ge_u32 s42, 4'); b.e('s_cselect_b32 s45, 7, s45')
        b.e(f'v_lshrrev_b32 {v4}, 4, v{VT+3}'); b.e(f'v_bfe_u32 {v5}, v{VT+3}, 2, 4')
        b.e(f'v_and_b32 {v7}, 7, {v5}'); b.e(f'v_lshlrev_b32 {v7}, 6, {v7}'); b.e(f'v_lshlrev_b32 {v5}, 6, {v5}')
        b.e(f'v_and_b32 {v6}, 1, {v4}'); b.e(f'v_lshlrev_b32 {v6}, 5, {v6}'); b.e(f'v_lshl_add_u32 {v6}, {v3}, 3, {v6}')
        b.e(f'v_add_u32 {v5}, {v5}, {v6}'); b.e(f'v_add_u32 {v7}, {v7}, {v6}')
        b.e(f'v_lshrrev_b32 {v6}, 1, {v4}'); b.e(f'v_lshl_add_u32 {v7}, {v6}, 12, {v7}')
        b.e('s_add_u32 s101, s45, s51')
        for n in range(5):
            b.e(f's_add_u32 s52, s101, {n}')
            b.e('s_and_b32 s91, s52, 1'); b.e('s_lshl_b32 s91, s91, 5')
            b.e('s_lshr_b32 s52, s52, 1'); b.e('s_sub_u32 s52, s52, s100')
            b.e('s_and_b32 s54, s52, 1'); b.e('s_lshl_b32 s54, s54, 9')
            b.e('s_lshr_b32 s55, s52, 1'); b.e('s_lshl_b32 s55, s55, 13'); b.e('s_add_u32 s54, s54, s55')
            b.e('s_cmp_lt_u32 s52, 4'); b.e('s_cselect_b32 s54, s54, 16384'); b.e('s_cselect_b64 vcc, -1, 0')
            b.e(f's_add_u32 s54, s54, {WOB}')
            b.e(f'v_cndmask_b32 v{VAP+n}, {v5}, {v7}, vcc')
            b.e(f'v_xor_b32 v{VAP+n}, s91, v{VAP+n}'); b.e(f'v_add_u32 v{VAP+n}, s54, v{VAP+n}')
        b.e('s_mul_i32 s52, s43, 6144')
        b.e(f'v_add_u32 v{VB}, s52, v{VL16}')
        b.e(f'v_bfe_u32 {v6}, v{VT+3}, 2, 2'); b.e(f'v_mul_u32_u24 {v6}, {4*INB}, {v6}')
        b.e(f'v_lshl_add_u32 {v6}, {v4}, 6, {v6}'); b.e(f'v_lshl_add_u32 v{VT+2}, {v3}, 4, {v6}')
        b.e('s_mul_i32 s52, s43, 27'); b.e('s_add_u32 s52, s52, s45'); b.e('s_lshl_b32 s5, s52, 8')
        b.e('s_mul_i32 s52, s43, 9'); b.e('s_add_u32 s52, s52, s45'); b.e('s_lshl_b32 s4, s52, 9')
    b.e(f'v_bfe_u32 {v4}, v{VT+3}, 2, 3'); b.e(f'v_lshrrev_b32 {v5}, 2, v{VT+3}')
    b.e('s_cmp_eq_u32 s42, 7'); b.e('s_cselect_b64 vcc, -1, 0')
    b.e(f'v_lshrrev_b32 {v6}, 5, v{VT+3}'); b.e(f'v_lshlrev_b32 {v6}, 6, {v6}')
    b.e(f'v_cndmask_b32 {v4}, {v4}, {v5}, vcc'); b.e(f'v_cndmask_b32 {v6}, {v6}, 0, vcc')
    b.e(f'v_mul_u32_u24 {v5}, 1152, {v4}'); b.e(f'v_add_u32 {v5}, {v5}, {v6}')
    b.e(f'v_bfe_u32 {v4}, {v4}, 2, 1'); b.e(f'v_lshlrev_b32 {v4}, 1, {v4}'); b.e(f'v_xor_b32 {v4}, {v4}, {v3}')
    b.e(f'v_lshl_add_u32 {v5}, {v4}, 4, {v5}')
    b.e('s_lshl_b32 s52, s100, 6'); b.e('s_lshl_b32 s54, s100, 8'); b.e('s_sub_u32 s54, 256, s54')
    b.e('s_cmp_eq_u32 s42, 7'); b.e('s_cselect_b32 s52, s54, s52')
    b.e(f'v_add_u32 v{VL}, s52, {v5}')
    for m in range(1, 4): b.e(f'v_add_u32 v{VL+m}, {m*(18432-1024)}, v{VL}')
    b.e(f'v_add_u32 v{VL+4}, {131072-2048}, v{VL16}')
    b.e(f'v_and_b32 v{VL+5}, 0x70, v{VL16}'); b.e(f'v_lshlrev_b32 v{VL+5}, 3, v{VL+5}')
    b.e('s_lshl_b32 s91, s42, 6')
    b.e(f'v_add_u32 v{VT}, s91, v{VT+3}')
    b.e(f'v_lshlrev_b32 v{VT}, 20, v{VT}')
    b.e(f'v_mov_b32 v{VT+1}, s97')
    b.e('s_waitcnt lgkmcnt(0)')
    b.wait_vm(('o',))
    b.e('s_barrier')
    b.e(f'buffer_store_dword v{VT+1}, v{VT}, {srd(S_F)}, s90 offen sc1', ('f1',))
    stamp(b, 5)
    b.e(f's_add_u32 s{S_OUT}, s14, s6'); b.e(f's_addc_u32 s{S_OUT+1}, s15, 0')
    b.e(f's_sub_u32 s{S_OUT+2}, 1769472, s6'); b.e(f's_mov_b32 s{S_OUT+3}, 0x20000')
    b.e('s_cmp_eq_u32 s42, 6'); b.e('s_cbranch_scc1 OP_LW')
    b.e('s_cmp_eq_u32 s42, 7'); b.e('s_cbranch_scc1 OP_LO')
    b.e('s_bitcmp1_b32 12, s42'); b.e('s_cbranch_scc1 OP_BIG')

    def wo_off(x, U):
        head_of(x, U)
        x.e('s_mul_i32 s55, s55, 147456')
        if U % 2: x.e('s_add_u32 s55, s55, 73728')
    def wo_full(x, U):
        wo_off(x, U)
        for ty in range(4):
            x.e(f's_mov_b32 m0, {WOB + (U % NW_) * WS_ + ty * 4096}')
            x.e(f's_add_u32 s56, s55, {(ty % 2) * 9216 + (ty // 2) * 128}')
            for m in range(4):
                x.e(f'buffer_load_dwordx4 v{VL+m}, {srd(S_WO)}, s56 offen offset:{m*1024} lds', ('w', U))
    def wo_half(x, U):
        wo_off(x, U)
        x.e(f's_mov_b32 m0, {WOB + (U % NW_) * WS_ + 16384}')
        x.e('s_nop 0')
        for m in range(4):
            x.e(f'buffer_load_dwordx4 v{VL+m}, {srd(S_WO)}, s55 offen offset:{m*1024} lds', ('w', U))
    def o_unit(x, U):
        head_of(x, U)
        if U % 2 == 0:
            role.n += 1; l = f'HP{role.n}'
            x.e('s_bitcmp1_b32 s3, s55')
            x.e(f's_cbranch_scc0 {l}_GO')
            for t in ['s_mov_b32 s91, 0', f'{l}:', f'buffer_load_dword v{VL+6}, v{VL+5}, {srd(S_F)}, s99 offen sc1', 's_add_u32 s91, s91, 1',
                      's_waitcnt vmcnt(0)', f'v_cmp_ne_u32 vcc, s97, v{VL+6}', 's_nop 0', 's_mov_b32 s3, vcc_lo', 's_bitcmp1_b32 s3, s55',
                      f's_cbranch_scc0 {l}_GO', f's_sleep {SLEEP}', 's_cmp_lt_u32 s91, 0x40000', f's_cbranch_scc1 {l}']:
                i = I(t); i.roles = (); x.append(i)
            x.e(f'{l}_GO:')
        x.e('s_lshl_b32 s55, s55, 12')
        if U % 2: x.e('s_add_u32 s55, s55, 2048')
        for g in range(3):
            x.e(f's_mov_b32 m0, {(U % NO_) * OS_ + g * 4096}')
            x.e(f's_add_u32 s56, s55, {g * 262144}')
            for m in range(4):
                x.e(f'buffer_load_dwordx4 v{VL16 if m < 2 else VL+4}, {srd(S_OI)}, s56 offen offset:{m*1024} lds', ('o2', U))
    def vwait(x, *tags):
        n = [ctx.count_after('vm', t) for t in tags]
        n = [k for k in n if k is not None]
        if n: x.e(f's_waitcnt vmcnt({min(min(n), 47)})')
    snap = ctx.snap()
    lw = Block(ctx, 'lw'); ctx.active = list(LW)
    lw.e('OP_LW:')
    wo_full(lw, 0); wo_full(lw, 1)
    lw.e('s_waitcnt vmcnt(0)'); lw.e('s_barrier')
    for U in (2, 3, 4): wo_full(lw, U)
    lw.e('s_waitcnt vmcnt(47)'); wo_full(lw, 5)
    vwait(lw, ('w', 2))
    lw.e('s_barrier')
    wo_full(lw, 6)
    lw.e('s_waitcnt vmcnt(47)'); wo_full(lw, 7)
    for U in range(2, 16):
        if U < 15: vwait(lw, ('w', U + 1))
        lw.e('s_barrier')
        if U + NW_ < 16:
            if len(ctx.c[6].vm) > 47: lw.e('s_waitcnt vmcnt(47)')
            wo_full(lw, U + NW_)
    lw.e('s_barrier')
    lw.e('s_branch OP_DONE')
    lo = Block(ctx, 'lo'); ctx.active = list(LO)
    lo.e('OP_LO:')
    lo.e('s_mov_b32 s3, 0xff')
    wo_half(lo, 0); wo_half(lo, 1)
    lo.e('s_waitcnt vmcnt(0)'); lo.e('s_barrier')
    wo_half(lo, 2); wo_half(lo, 3)
    stamp(lo, 3, True)
    o_unit(lo, 2)
    wo_half(lo, 4); wo_half(lo, 5)
    vwait(lo, ('o2', 2)); lo.e('s_barrier')
    o_unit(lo, 3); o_unit(lo, 4); wo_half(lo, 6); wo_half(lo, 7)
    for U in range(2, 16):
        if U < 15: vwait(lo, ('o2', U + 1), ('w', U + 1))
        lo.e('s_barrier')
        if U + NO_ < 16: o_unit(lo, U + NO_)
        if U + NW_ < 16: wo_half(lo, U + NW_)
    lo.e('s_barrier')
    lo.e('s_branch OP_DONE')

    OWN = 0
    def compute(name, waves, NT):
        ctx.restore(snap); ctx.active = list(waves)
        c = Block(ctx, name); lp = Block(ctx, name + 'l'); e = Block(ctx, name + 'e')
        c.e(f'{name}:')
        SZ = 4 * (NT + 3)
        def fA(U, k, n): return FB + 2 * SZ * (U % 2) + SZ * k + 4 * n
        def fB(U, k, j): return FB + 2 * SZ * (U % 2) + SZ * k + 4 * NT + 4 * j
        def rd(U):
            r = []
            for k in range(2):
                r += [E(f'ds_read_b128 {q4(fB(U,k,j))}, v{VB} offset:{(2*j+k)*1024}', ('f', U)) for j in range(3)]
                for n in range(NT):
                    r += [E(f'ds_read_b64_tr_b16 {q2(fA(U,k,n)+2*u)}, v{VAP+n} offset:{k*2048 + u*1024}', ('f', U)) for u in range(2)]
            return r
        def adv(b):
            b.e(f's_cmp_ge_u32 s46, {(NW_-1)*WS_}'); b.e(f's_cselect_b32 s52, s54, s53'); b.e('s_add_u32 s46, s46, s52')
            for n in range(NT): b.e(f'v_add_u32 v{VAP+n}, s52, v{VAP+n}')
            b.e(f's_cmp_ge_u32 s45, {(NO_-1)*OS_}'); b.e(f's_cselect_b32 s52, s101, s100'); b.e('s_add_u32 s45, s45, s52')
            b.e(f'v_add_u32 v{VB}, s52, v{VB}')
        def mmu(U, first=False):
            return [E(f'{MF} {q4(12*n+4*j)}, {q4(fA(U,k,n))}, {q4(fB(U,k,j))}, {"0" if first and k == 0 else q4(12*n+4*j)}')
                    for k in range(2) for n in range(NT) for j in range(3)]
        c.e('s_mov_b32 s46, 0'); c.e(f's_mov_b32 s53, {WS_}'); c.e(f's_mov_b32 s54, {(-(NW_-1)*WS_) & 0xffffffff}')
        c.e('s_mov_b32 s45, 0'); c.e(f's_mov_b32 s100, {OS_}'); c.e(f's_mov_b32 s101, {(-(NO_-1)*OS_) & 0xffffffff}')
        c.e('s_mov_b32 s44, 0')
        c.e('s_barrier')
        stamp(c, 6)
        run(c, rd(0)); adv(c)
        c.e('s_waitcnt lgkmcnt(0)')
        run(c, interleave(mmu(0, True), rd(1) + [adv], end=6 * NT - 2))
        c.e('s_waitcnt lgkmcnt(0)')
        run(c, mmu(1))
        c.e('s_barrier')
        stamp(c, 1, True)
        run(c, rd(0)); adv(c)
        def unit(x, U, extra=(), last=False):
            x.e('s_waitcnt lgkmcnt(0)')
            x.e('s_barrier')
            run(x, interleave(mmu(U), ([] if last else rd(U + 1) + [adv]) + list(extra), end=6 * NT - 2))
        lp.e(f'{name}_LOOP:')
        unit(lp, 0); unit(lp, 1)
        lp.e('s_add_u32 s44, s44, 1'); lp.e('s_cmp_lt_u32 s44, 6'); lp.e(f's_cbranch_scc1 {name}_LOOP')
        fin = []
        def P(*lines): fin.extend(E(l) for l in lines)
        X = GS
        P('s_mov_b32 s7, 288', 's_lshl_b32 s6, s42, 6', f'v_add_u32 v{X}, s6, v{VT+3}')
        P(f'v_cmp_gt_u32 s[8:9], s7, v{X}', f'v_subrev_u32 v{X+1}, 32, v{X}', f'v_mov_b32 v{X+7}, 0x40000000')
        P(f'v_cndmask_b32 v{X}, v{X+1}, v{X}, s[8:9]', f'v_lshrrev_b32 v{X+1}, 4, v{X}')
        P(f'v_and_b32 v{X+2}, 15, v{X}', f'v_lshlrev_b32 v{X+2}, 4, v{X+2}', f'v_lshl_add_u32 v{XF}, v{X+1}, 9, v{X+2}')
        P(f'v_mul_u32_u24 v{X+4}, 57, v{X+1}', f'v_lshrrev_b32 v{X+4}, 9, v{X+4}')
        P(f'v_mul_u32_u24 v{X+5}, 18, v{X+4}', f'v_add_u32 v{X+5}, v{X+5}, v{X+1}')
        P(f'v_lshl_add_u32 v{XF+1}, v{X+5}, 8, v{X+2}')
        P(f'v_mul_u32_u24 v{X+6}, 9, v{X+4}', f'v_sub_u32 v{X+1}, v{X+1}, v{X+6}')
        P(f'v_mul_u32_u24 v{X+4}, 48, v{X+4}', f'v_and_b32 v{X+6}, 3, v{X}', f'v_add_u32 v{X+4}, v{X+4}, v{X+6}')
        P(f'v_mul_u32_u24 v{X+4}, 1152, v{X+4}', f'v_lshl_add_u32 v{X+4}, v{X+1}, 5, v{X+4}')
        P(f'v_bfe_u32 v{X+6}, v{X}, 2, 2', f'v_lshl_add_u32 v{X+4}, v{X+6}, 3, v{X+4}')
        P(f'v_cndmask_b32 v{XF+2}, v{X+7}, v{X+4}, s[8:9]')
        for i in range(3): P(f's_add_u32 s{56+i}, s47, {i+1}', f's_and_b32 s{56+i}, s{56+i}, 3', f's_mul_i32 s{56+i}, s{56+i}, {INB}')
        P('s_mov_b32 s10, 18432', 's_mov_b32 s11, 36864', 's_mov_b32 s59, 0xffff0000')
        fin2 = []
        fin2.append(lambda b: [b.e(l) for l in (f'v_bfe_u32 v{VE+2}, v{VT+3}, 2, 2', f'v_cmp_eq_u32 vcc, s47, v{VE+2}', f'v_mov_b32 v{VE+2}, 0x40000000',
                    f'v_and_b32 v{VE}, 0xff, v{VT+2}', f'v_cndmask_b32 v{VT+2}, v{VT+2}, v{VE+2}, vcc', f'v_lshlrev_b32 v{VE+1}, 2, v{VT+3}',
                    f'v_add_u32 v{VE+1}, {OWN+16384}, v{VE+1}', f'v_add_u32 v{VE}, s5, v{VE}',
                    f'v_and_b32 v{VE+1}, 0xfffffff0, v{VE+1}', f'v_cndmask_b32 v{VE}, v{VE+1}, v{VE}, vcc')])
        fin2 += [E(f'v_mov_b32 v{GS+4*k+3}, s98') for k in range(2 * NT)]
        unit(e, 14, fin)
        e.e('s_waitcnt lgkmcnt(0)')
        e.e('s_barrier')
        m = mmu(15)
        def send(n):
            r = [E(f'v_cvt_pk_bf16_f32 v{GS + 8*n + 4*(x//3) + x%3}, v{12*n+2*x}, v{12*n+2*x+1}') for x in range(6)]
            r += [E(f'buffer_store_dwordx4 {q4(GS+8*n+4*hf)}, v{VT+2}, {srd(S_P)}, s4 offen offset:{n*512 + hf*256} sc1', ('p',)) for hf in range(2)]
            r += [E(f'ds_write_b128 v{VE}, {q4(12*n+4*j)} offset:{j*2304 + n*256}', ('own',)) for j in range(3)]
            return r
        for n in range(NT):
            grp = m[3 * n:3 * n + 3] + m[3 * NT + 3 * n:3 * NT + 3 * n + 3]
            run(e, interleave(grp, fin2 if n == 0 else (send(n - 2) if n >= 2 else [])))
        stamp(e, 7)
        if NT == 2: e.e('s_nop 1')
        run(e, send(NT - 2)); run(e, send(NT - 1))
        if name != 'OP_BIG': e.e('s_branch OP_FIN')
        return c, lp, e
    sm = compute('OP_SML', SML, 2)
    bg = compute('OP_BIG', BIG, 5)
    ctx.active = list(BIG + SML)
    e = Block(ctx, 'op_end')
    e.e('OP_FIN:')
    e.e('s_waitcnt lgkmcnt(0)')
    e.e('s_barrier')
    stamp(e, 8)
    e.e('s_cmp_ge_u32 s42, 5')
    e.e('s_cbranch_scc1 OP_DONE')
    R0 = 168; OW = 64; X = 128
    for j in range(3): e.e(f'ds_read_b128 {q4(OW+4*j)}, v{XF+1} offset:{j*2304}', ('ow',))
    loads = '\n'.join(f'buffer_load_dwordx4 {q4(R0+8*src+4*hf)}, v{XF}, {srd(S_PI)}, s{56+src} offen offset:{hf*256} sc1' for src in range(3) for hf in range(2))
    chk = [f'v_xor_b32 v{X+6}, s98, v{R0+3}']
    for k in range(1, 6):
        chk += [f'v_xor_b32 v{X+7}, s98, v{R0+4*k+3}', f'v_or_b32 v{X+6}, v{X+6}, v{X+7}']
    chk.append(f'v_cmp_ne_u32 vcc, 0, v{X+6}')
    poll(e, 'OP_P2', loads, '\n'.join(chk))
    stamp(e, 9)
    e.e(f'buffer_store_dword v{VT+1}, v{VT}, {srd(S_F)}, s96 offen sc1', ('ep',))
    e.e('s_waitcnt lgkmcnt(0)')
    so = ['0', 's10', 's11']
    for j in range(3):
        for p in range(2):
            x = 2 * j + p
            for src in range(3):
                r = R0 + 8 * src + 4 * (x // 3) + x % 3
                e.e(f'v_lshlrev_b32 v{X+6}, 16, v{r}'); e.e(f'v_and_b32 v{X+7}, s59, v{r}')
                e.e(f'v_add_f32 v{OW+2*x}, v{OW+2*x}, v{X+6}'); e.e(f'v_add_f32 v{OW+2*x+1}, v{OW+2*x+1}, v{X+7}')
            e.e(f'v_cvt_pk_bf16_f32 v{OW+16+x}, v{OW+2*x}, v{OW+2*x+1}')
        e.e(f'buffer_store_dwordx2 {q2(OW+16+2*j)}, v{XF+2}, {srd(S_OUT)}, {so[j]} offen')
    ctx.active = ALLW
    e.e('OP_DONE:')
    if STAMP:
        if not OPT.get('rt4'): stamp(e, 10)
        dump_stamps(e)
    e.e('K1_END:')
    e.e('s_endpgm')
    traces = {}
    for w in SML: traces[w] = [b, sm[0], sm[1], sm[1], sm[2], e]
    for w in BIG: traces[w] = [b, bg[0], bg[1], bg[1], bg[2], e]
    traces[6] = [b, lw]; traces[7] = [b, lo]
    TXN = OPT.get('tx', '')
    if TXN:
        def after_c(blk):
            n = 0; out = []
            for i in blk:
                if i.kind == 'barrier': n += 1
                drop = n >= 2 and getattr(i, 'sub', '') == 'dma' and (TXN == 'none' or (TXN == 'noo' and 's[24:27]' in i.text) or (TXN == 'nowo' and 's[20:23]' in i.text))
                if not drop: out.append(i)
            blk[:] = out
        after_c(lw); after_c(lo); after_c(sm[0])
        if TXN in ('none', 'nowo'):
            for blk in sm[1:]: blk[:] = [i for i in blk if getattr(i, 'sub', '') != 'dma']
    return [b] + list(sm) + list(bg) + [e, lw, lo], traces

def kernel1():
    ctx = MCtx(8)
    pro = k1_prologue(ctx)
    qp = k1_qproj(ctx)
    ap = k1_att_prologue(ctx)
    p1 = pv_phase(ctx, 'P1', SA, SB, head=lambda a: a.e('K1_LOOP:'), dma=guarded(dma_v, 0) if LEAD == 6 else dma_v)
    SK2 = int(OPT.get('sk2', 2))
    p2 = qk_phase(ctx, 'P2', SA, SB, guarded(dma_k, 0) if KVREG else dma_k)
    p3 = pv_phase(ctx, 'P3', SB, SA, dma=guarded(dma_v, SK2) if KVREG == 1 else dma_v)
    p4 = qk_phase(ctx, 'P4', SB, SA, guarded(dma_k, SK2) if KVREG == 1 else dma_k)
    p4[2].e('s_add_u32 s44, s44, 1')
    p4[2].e('s_cmp_lt_u32 s44, 7')
    p4[2].e('s_cbranch_scc1 K1_LOOP')
    def warm(b):
        b.e(f'v_lshrrev_b32 v{KR}, 6, v{VL16}'); b.e(f'v_mul_u32_u24 v{KR}, 1152, v{KR}')
        b.e(f'v_and_b32 v{KR+1}, 48, v{VL16}'); b.e(f'v_lshlrev_b32 v{KR+1}, 3, v{KR+1}'); b.e(f'v_min_u32 v{KR+1}, 316, v{KR+1}')
        b.e(f'v_add_u32 v{KR}, v{KR}, v{KR+1}')
        b.e(f'buffer_load_dword v{SA+23}, v{KR}, s[28:31], 0 offen', ('warm',))
    l1 = pv_phase(ctx, 'L1', SA, SB, nextK=False, dma=warm if (FUSED and WARM) else None, split=LSPLIT)
    l2 = Block(ctx, 'L2')
    l2.e(f's_waitcnt vmcnt({1 if WARM else 0})')
    l2.e('s_barrier')
    if OPT.get('l2s'): stamp(l2, 2)
    for t in range(4): vread(l2, t)
    run(l2, sm_fillers(SB)[LSPLIT:] + chk_fillers())
    l2.e('s_cbranch_vccnz L2_RARE')
    l2r = rare_path(ctx, 'L2', SB, None, 2)
    l3 = pv_phase(ctx, 'L3', SB, None, nextK=False, bar=False, head=lambda a: a.e('L2_JOIN:'), extra=tail_setup() if FUSED else ())
    l3.e('s_nop 7')
    ep = k1_epilogue(ctx)
    errs = []
    body = [p1, p2[0], p2[2], p3, p4[0], p4[2]]
    bodyr = [p1, p2[0], p2[1], p2[2], p3, p4[0], p4[1], p4[2]]
    last = [l1, l2, l3, ep]
    lastr = [l1, l2, l2r, l3, ep]
    tail, ttr = oproj(ctx)
    for r in ALLW:
        errs += check_trace([pro, qp, ap] + body + body + last + ttr[r], f'main{r}', r)
        errs += check_trace([pro, qp, ap] + bodyr + bodyr + body + lastr, f'rare{r}', r)
    if NOCOMP:
        for blk in body:
            keep = [i for i in blk if i.kind not in ('mfma', 'valu', 'trans') and not (NOCOMP > 1 and i.kind == 'ds') and 'vccnz' not in i.text]
            blk[:] = keep
        errs = []
    DROP = OPT.get('drop', '')
    if DROP:
        D = DROP.split(',')
        def dropit(i):
            t = i.text
            if 'vccnz' in t: return True
            if 'exp' in D and t.startswith('v_exp'): return True
            if 'add' in D and t.startswith('v_add_f32'): return True
            if 'cvt' in D and t.startswith('v_cvt'): return True
            if 'ds' in D and i.kind == 'ds': return True
            if 'wait' in D and i.kind == 'wait': return True
            if 'bar' in D and i.kind == 'barrier': return True
            if 'adv' in D and (t.startswith('v_add_u32') or t.startswith('s_cmp_ge') or t.startswith('s_cselect') or t.startswith('s_add_u32 s45') or t.startswith('s_add_u32 s46')): return True
            if 'mfma' in D and i.kind == 'mfma': return True
            return False
        for blk in body: blk[:] = [i for i in blk if not dropit(i)]
        errs = []
    order = [pro, qp, ap] + body + last + tail + [p2[1], p4[1], l2r]
    return order, errs

def kernel2():
    ctx = MCtx(8)
    b = Block(ctx, 'k2')
    b.e('s_cmp_ge_u32 s2, 256')
    b.e('s_cbranch_scc1 K2_END')
    b.e('s_load_dwordx8 s[12:19], s[0:1], 32')
    if STAMP:
        for i in range(6): b.e(f's_memtime s[{64+2*i}:{65+2*i}]')
        b.e('s_memrealtime s[86:87]')
    b.e('v_lshrrev_b32 v1, 6, v0')
    b.e('v_and_b32 v0, 63, v0')
    b.e('v_readfirstlane_b32 s42, v1')
    b.e('s_and_b32 s43, s2, 7'); b.e('s_lshr_b32 s44, s2, 3')
    b.e('s_and_b32 s40, s43, 1'); b.e('s_lshl_b32 s40, s40, 2'); b.e('s_and_b32 s45, s44, 3'); b.e('s_add_u32 s40, s40, s45')
    b.e('s_lshr_b32 s41, s43, 1'); b.e('s_lshl_b32 s41, s41, 3'); b.e('s_lshr_b32 s46, s44, 2'); b.e('s_add_u32 s41, s41, s46')
    b.e(f'v_lshlrev_b32 v{VL16}, 4, v0')
    b.e('s_waitcnt lgkmcnt(0)')
    flag_srd(b)
    epoch_load(b, 222)
    b.e('s_waitcnt vmcnt(0)')
    epoch_tags(b, 222)
    run(b, tail_setup())
    t = oproj(ctx)
    errs = []
    for r in ALLW: errs += check_trace([b, t[0], t[1], t[1], t[2], t[2], t[3]], f'k2_{r}', r)
    return [b] + list(t), errs

HEADER = open('standalone__mha_block_cached__near_ridge.s.ref').read().split('; Override')[0]

def kd(name, vgpr, sgpr=96):
    return f'''.amdhsa_kernel {name}
  .amdhsa_next_free_vgpr {vgpr}
  .amdhsa_next_free_sgpr {sgpr}
  .amdhsa_accum_offset {(vgpr+3)//4*4}
  .amdhsa_group_segment_fixed_size 0
  .amdhsa_kernarg_size 64
  .amdhsa_user_sgpr_count 2
  .amdhsa_user_sgpr_kernarg_segment_ptr 1
  .amdhsa_system_sgpr_workgroup_id_x 1
.end_amdhsa_kernel
'''

def main():
    k1, e1 = kernel1()
    k2, e2 = kernel2() if not FUSED else ([], [])
    for e in list(dict.fromkeys(x.split('] ', 1)[1] for x in e1 + e2))[:12]: print('CHECK', e, file=sys.stderr)
    out = HEADER
    if FUSED:
        N = 'standalone__mha_block_cached__near_ridge_kernel'
        out += f'; @launch grid=(256,1,1) block=(512,1,1) lds={LDS_TOT}\n'
        ks = [(N, k1)]
    else:
        out += f'; @launch kernel=mha_attn_kernel grid=(256,1,1) block=(512,1,1) lds={LDS_TOT}\n'
        out += f'; @launch kernel=mha_oproj_kernel grid=(256,1,1) block=(512,1,1) lds={LDS_TOT}\n'
        ks = [('mha_attn_kernel', k1), ('mha_oproj_kernel', k2)]
    out += '.amdgcn_target "amdgcn-amd-amdhsa--gfx950"\n.text\n'
    for name, blocks in ks:
        out += f'.globl {name}\n.p2align 8\n.type {name},@function\n{name}:\n'
        out += '\n'.join(b.text() for b in blocks) + '\n'
    out += '.section .rodata,"a"\n'
    for name, _ in ks: out += '.p2align 6\n' + kd(name, 256, 102)
    open(sys.argv[1], 'w').write(out)
    if e1 or e2: sys.exit(1)
main()
```

```python
import sys, struct, math
from asmlib import *

OPT = dict(a.split('=') for a in sys.argv[2:] if '=' in a)
STAMP = int(OPT.get('stamp', 0))
KVPOL = OPT.get('kvpol', 'nt')
XPOL = OPT.get('xpol', '')
WPOL = OPT.get('wpol', '')
OSTPOL = OPT.get('ostpol', 'sc1' if OPT.get('fused', '1') == '1' else '')
OLDPOL = OPT.get('oldpol', '')
WOPOL = OPT.get('wopol', '')
THR = float(OPT.get('thr', 2048.0))
NOBARQK = int(OPT.get('nobarqk', 1))
SKIPT = int(OPT.get('skipt', 0))
STAG = int(OPT.get('stag', 0))
ROT = int(OPT.get('rot', 1))
ROT2 = int(OPT.get('rot2', 1))
SM_SPLIT = int(OPT.get('split', 24))
CHK_AT = int(OPT.get('chk', 8))
PRIO = int(OPT.get('prio', 0))
K2D = int(OPT.get('k2d', 4))
NODMA = int(OPT.get('nodma', 0))
NOCOMP = int(OPT.get('nocomp', 0))
NOKVQ = int(OPT.get('nokvq', 0))
FUSED = int(OPT.get('fused', 1))
OLD2 = OPT.get('old2', 'sc1')
SLEEP = int(OPT.get('sleep', 1))
F1POL = OPT.get('f1pol', 'sc1')
WOPRE = int(OPT.get('wopre', 5))
TOUCH = int(OPT.get('touch', 0))
WOEARLY = int(OPT.get('woearly', 0))
WARM = int(OPT.get('warm', 1))
FAST = int(OPT.get('fast', 0))
PAIRW = int(OPT.get('pairw', 1))
KVREG = int(OPT.get('kvreg', 0))
KV1 = int(OPT.get('kv1', 1))
NC = int(OPT.get('nc', 1))
EARLY = int(OPT.get('early', 0))
ORD = int(OPT.get('ord', 1))
LSPLIT = int(OPT.get('lsplit', 57))
LEAD = int(OPT.get('lead', 6))
OWARM = int(OPT.get('owarm', 0))
NOX = int(OPT.get('nox', 0))
NOWQ = int(OPT.get('nowq', 0))
MAP = OPT.get('map', '4x8')
KVSCHED = [int(x) for x in OPT.get('kvs', '0,2,3,5,6,8,9,11,12,14').split(',') if x]

def f2u(f): return struct.unpack('<I', struct.pack('<f', f))[0]
SCALE = math.log2(math.e) / math.sqrt(128.0)
MF = 'v_mfma_f32_16x16x32_bf16'
def q4(n): return f'v[{n}:{n+3}]'
def q2(n): return f'v[{n}:{n+1}]'

ACC = 0; QF = 96; SA = 144; SB = 168; KR = 192; VR = 208; NEGM = 224
TMP = 236; VK = 248; VVE = 249; VVO = 250; LS = 251; VL16 = 254; VKV = 255
RING = 10; CH = 16384; LDS_TOT = RING * CH
QB = 114688
SLOT = 40960
S_K, S_V, S_X, S_WQ, S_O = 20, 24, 28, 32, 36
FS = 96
VXD = 208; VWD = 211; VXR = 213; VAE = 215; VAO = 217; VQE = 219; VQO = 220; VQR = 221; VKW = 244
def srd(n): return f's[{n}:{n+3}]'
def acc(t, jt): return ACC + 12 * t + 4 * jt
def qf(s, jt): return QF + 12 * s + 4 * jt
def st(S, kt, jt): return S + 12 * kt + 4 * jt
ALLW = list(range(8))
A, B = (0, 1, 2, 3), (4, 5, 6, 7)

TST = int(OPT.get('tst', 0))
def stamp(b, idx, fine=False, it=False):
    if TST == 2:
        if it or idx in (0, 4): b.e(f's_memtime s[{64+2*idx}:{65+2*idx}]')
        return
    if it: return
    if TST and idx in (1, 2, 3) and not fine: return
    if fine and not TST: return
    if STAMP: b.e(f's_memtime s[{64+2*idx}:{65+2*idx}]')

class role:
    n = 0
    def __init__(self, b, waves): self.b, self.w = b, list(waves)
    def __enter__(self):
        role.n += 1; self.l = f'RL{role.n}'
        self.b.e(f's_bitcmp1_b32 {sum(1 << w for w in self.w)}, s42')
        self.b.e(f's_cbranch_scc0 {self.l}')
        self.b.ctx.active = self.w
    def __exit__(self, *a):
        self.b.ctx.active = ALLW
        self.b.e(f'{self.l}:')

def E(text, tag=None): return lambda b: b.e(text, tag)
def run(b, lst):
    for f in lst: f(b)

def chunk_of(n):
    if n == 0: return ('K', 0)
    if n % 2 == 1: return ('K', (n + 1) // 2)
    return ('V', (n - 2) // 2)

def k1_prologue(ctx):
    b = Block(ctx, 'k1_pro')
    b.e('s_cmp_ge_u32 s2, 256')
    b.e('s_cbranch_scc1 K1_END')
    b.e('s_load_dwordx8 s[4:11], s[0:1], 0')
    b.e('s_load_dwordx8 s[12:19], s[0:1], 32')
    if STAMP:
        b.e('s_memtime s[64:65]')
        b.e('s_memrealtime s[86:87]')
    b.e('v_lshrrev_b32 v1, 6, v0')
    b.e('v_and_b32 v0, 63, v0')
    b.e('v_readfirstlane_b32 s42, v1')
    b.e('s_and_b32 s43, s2, 7')
    b.e('s_lshr_b32 s44, s2, 3')
    nb = int(MAP.split('x')[0]); lb = nb.bit_length() - 1
    nh = 32 // nb; xb = 8 // nb
    b.e(f's_and_b32 s40, s43, {xb - 1}')
    b.e(f's_lshl_b32 s40, s40, {lb}')
    b.e(f's_and_b32 s45, s44, {nb - 1}')
    b.e('s_add_u32 s40, s40, s45')
    b.e(f's_lshr_b32 s41, s43, {xb.bit_length() - 1}')
    b.e(f's_lshl_b32 s41, s41, {nh.bit_length() - 1}')
    b.e(f's_lshr_b32 s46, s44, {lb}')
    b.e('s_add_u32 s41, s41, s46')
    m = max(nb, nh)
    b.e(f's_mul_i32 s45, s45, {32 // nb}')
    b.e(f's_mul_i32 s46, s46, {32 // nh}')
    b.e('s_add_u32 s45, s45, s46')
    b.e('s_and_b32 s45, s45, 31')
    b.e(f's_mul_i32 s45, s45, {9 - NC}')
    b.e('s_lshr_b32 s45, s45, 5')
    b.e(f's_add_u32 s45, s45, {NC}')
    b.e('s_lshl_b32 s100, s45, 7')
    b.e('s_lshl_b32 s101, s45, 19')
    b.e('s_mov_b32 s57, 0' if NC else 's_mov_b32 s57, s100')
    b.e('s_mov_b32 s58, 0' if NC else 's_mov_b32 s58, s101')
    b.e('s_lshl_b32 s45, s40, 5')
    b.e('s_add_u32 s45, s45, s41')
    b.e('s_lshl_b32 s45, s45, 18')
    b.e('s_mul_i32 s46, s40, 221184')
    b.e('s_lshl_b32 s47, s41, 8')
    b.e('s_mul_i32 s48, s40, 1572864')
    b.e('s_and_b32 s53, s42, 3')
    b.e('s_lshr_b32 s54, s42, 2')
    b.e('v_bfe_u32 v4, v0, 2, 3')
    b.e('v_lshrrev_b32 v5, 5, v0')
    b.e('v_and_b32 v3, 3, v0')
    b.e('v_lshrrev_b32 v7, 2, v4')
    b.e('v_lshlrev_b32 v8, 1, v7')
    b.e('v_xor_b32 v6, v3, v8')
    b.e('v_lshlrev_b32 v6, 4, v6')
    b.e('v_lshl_add_u32 v6, v5, 6, v6')
    b.e('s_lshr_b32 s43, s53, 1')
    b.e('s_and_b32 s44, s42, 1')
    b.e('v_and_b32 v9, 3, v4')
    b.e('v_lshl_add_u32 v9, v7, 3, v9')
    b.e('s_lshl_b32 s55, s43, 4')
    b.e('s_lshl_b32 s62, s54, 2')
    b.e('s_add_u32 s55, s55, s62')
    b.e('v_add_u32 v9, s55, v9')
    b.e('v_lshl_add_u32 v9, v9, 13, v6')
    b.e('s_lshl_b32 s55, s44, 7')
    b.e(f'v_add_u32 v{VWD}, s55, v9')
    b.e(f'v_add_u32 v{VWD+1}, {32*8192-1024}, v{VWD}')
    b.e('s_lshl_b32 s60, s42, 11')
    b.e('s_mul_i32 s63, s42, 3')
    for i in range(3):
        b.e(f's_add_u32 s62, s63, {i}')
        b.e('s_and_b32 s56, s62, 1')
        b.e('s_lshl_b32 s56, s56, 3')
        b.e('s_add_u32 s56, s56, 12')
        b.e('s_lshr_b32 s62, s62, 1')
        b.e('s_lshl_b32 s62, s62, 4')
        b.e('v_add_u32 v9, s56, v4')
        b.e('v_and_b32 v9, 15, v9')
        b.e('v_add_u32 v9, s62, v9')
        b.e('v_mul_u32_u24 v9, 1152, v9')
        b.e('v_add_u32 v9, v9, v6')
        if i: b.e(f'v_subrev_u32 v{VXD+i}, {i*1024}, v9')
        else: b.e(f'v_mov_b32 v{VXD}, v9')
    b.e('s_lshl_b32 s59, s63, 10')
    b.e('s_add_u32 s59, s59, 16384')
    b.e('s_waitcnt lgkmcnt(0)')
    b.e(f's_add_u32 s{S_X}, s4, s46');  b.e(f's_addc_u32 s{S_X+1}, s5, 0')
    b.e(f's_mov_b32 s{S_X+2}, 221184'); b.e(f's_mov_b32 s{S_X+3}, 0x20000')
    b.e(f's_add_u32 s{S_WQ}, s10, s47'); b.e(f's_addc_u32 s{S_WQ+1}, s11, 0')
    b.e(f's_sub_u32 s{S_WQ+2}, 4718592, s47'); b.e(f's_mov_b32 s{S_WQ+3}, 0x20000')
    b.e(f's_add_u32 s{S_K}, s6, s45');  b.e(f's_addc_u32 s{S_K+1}, s7, 0')
    b.e(f's_mov_b32 s{S_K+2}, 262144'); b.e(f's_mov_b32 s{S_K+3}, 0x20000')
    b.e(f's_add_u32 s{S_V}, s8, s45');  b.e(f's_addc_u32 s{S_V+1}, s9, 0')
    b.e(f's_mov_b32 s{S_V+2}, 262144'); b.e(f's_mov_b32 s{S_V+3}, 0x20000')
    b.e(f's_add_u32 s{S_O}, s18, s48'); b.e(f's_addc_u32 s{S_O+1}, s19, 0')
    b.e(f's_mov_b32 s{S_O+2}, 1572864'); b.e(f's_mov_b32 s{S_O+3}, 0x20000')
    return b

RC = 1
def slot(n): return ((n + RC) % RING) * CH

def qslot(D): return ((D + 3) % 4) * SLOT

def qnext(b, D):
    if D + 1 == NC:
        b.e('s_mov_b32 s57, s100'); b.e('s_mov_b32 s58, s101')
    else:
        b.e('s_cmp_eq_u32 s61, 1152')
        b.e(f's_cselect_b32 s57, {NC*128}, s61')
        b.e(f's_cselect_b32 s58, {NC*524288}, s58')

def qdma_parts(D):
    P = []
    P.append(lambda b: (b.e(f's_add_u32 m0, s60, {qslot(D)}'), b.e('s_add_u32 s61, s57, 128'),
                        b.e(f'buffer_load_dwordx4 v{VWD}, {srd(S_WQ)}, s58 offen {WPOL} lds', ('q', D))))
    P.append(lambda b: (b.e(f'buffer_load_dwordx4 v{VWD+1}, {srd(S_WQ)}, s58 offen offset:1024 {WPOL} lds', ('q', D)),
                        b.e(f's_add_u32 m0, s59, {qslot(D)}'), b.e('s_add_u32 s58, s58, 524288')))
    for i in range(2): P.append(E(f'buffer_load_dwordx4 v{VXD+i}, {srd(S_X)}, s57 offen offset:{i*1024} {XPOL} lds', ('q', D)))
    P.append(lambda b: (b.e(f'buffer_load_dwordx4 v{VXD+2}, {srd(S_X)}, s57 offen offset:2048 {XPOL} lds', ('q', D)),
                        qnext(b, D)))
    return P

def qdma(b, D):
    b.e(f's_add_u32 m0, s60, {qslot(D)}')
    b.e('s_add_u32 s61, s57, 128')
    for h in range(0 if NOWQ else 2):
        b.e(f'buffer_load_dwordx4 v{VWD+h}, {srd(S_WQ)}, s58 offen offset:{h*1024} {WPOL} lds', ('q', D))
    b.e(f's_add_u32 m0, s59, {qslot(D)}')
    b.e('s_add_u32 s58, s58, 524288')
    for i in range(0 if NOX else 3):
        b.e(f'buffer_load_dwordx4 v{VXD+i}, {srd(S_X)}, s57 offen offset:{i*1024} {XPOL} lds', ('q', D))
    qnext(b, D)

def kvpair_static(b, n):
    c = chunk_of(n)
    S = S_K if c[0] == 'K' else S_V
    b.e(f's_add_u32 m0, s52, {slot(n)}')
    b.e(f's_mov_b32 s56, {c[1] * CH}')
    b.e(f'buffer_load_dwordx4 v{VKV}, {srd(S)}, s56 offen {KVPOL} lds', ('kv', n))
    b.e(f'buffer_load_dwordx4 v{VKV}, {srd(S)}, s56 offen offset:2048 {KVPOL} lds', ('kv', n))

POFF = 0x2000000; FOFF = 0x3000000; INB = 9216
S_F = 92
def flag_srd(b):
    b.e(f's_add_u32 s{S_F}, s18, {FOFF}'); b.e(f's_addc_u32 s{S_F+1}, s19, 0')
    b.e(f's_mov_b32 s{S_F+2}, {32768+1024}'); b.e(f's_mov_b32 s{S_F+3}, 0x20000')
    b.e('s_lshl_b32 s90, s40, 5'); b.e('s_add_u32 s90, s90, s41'); b.e('s_lshl_b32 s90, s90, 7')
    b.e('s_lshl_b32 s96, s40, 7'); b.e('s_add_u32 s96, s96, 32768')

def epoch_load(b, v):
    b.e(f'v_mov_b32 v{v}, 0')
    b.e(f'buffer_load_dword v{v+1}, v{v}, {srd(S_F)}, s96 offen sc1', ('ep',))

def epoch_tags(b, v):
    b.e(f'v_readfirstlane_b32 s97, v{v+1}')
    b.e('s_nop 0')
    b.e('s_mul_i32 s97, s97, 0x9e3779b1')
    b.e('s_add_u32 s97, s97, 0x7f4a7c15')
    b.e('s_xor_b32 s98, s97, 0x80000000')

def one_lane(b, v):
    b.e(f's_lshl_b32 s91, s42, 6')
    b.e(f'v_add_u32 v{v}, s91, v0')
    b.e(f'v_lshlrev_b32 v{v}, 20, v{v}')

def kvreg_of(n): return 48 + 8 * n if n < 6 else 224 + 8 * (n - 6)
def kv_to_regs(b, n):
    c = chunk_of(n)
    S = S_K if c[0] == 'K' else S_V
    r = kvreg_of(n)
    b.e(f's_mov_b32 s56, {c[1] * CH}')
    b.e(f'buffer_load_dwordx4 {q4(r)}, v{VKV}, {srd(S)}, s56 offen {KVPOL}', ('kv', n))
    b.e(f'buffer_load_dwordx4 {q4(r+4)}, v{VKV}, {srd(S)}, s56 offen offset:2048 {KVPOL}', ('kv', n))
def kv_to_lds(n):
    r = kvreg_of(n)
    o = slot(n) % 65536
    v = VKW + slot(n) // 65536
    return [lambda b: (b.wait_vm(('kv', n)), b.e(f'ds_write_b128 v{v}, {q4(r)} offset:{o}', ('kw',))),
            E(f'ds_write_b128 v{v}, {q4(r+4)} offset:{o+2048}', ('kw',))]

def k1_qproj(ctx):
    b = Block(ctx, 'qproj')
    flag_srd(b)
    qdma(b, 0)
    b.e('v_lshl_add_u32 v9, v4, 8, v6')
    b.e('s_lshl_b32 s46, s43, 12')
    b.e('s_lshl_b32 s47, s54, 13')
    b.e('s_add_u32 s46, s46, s47')
    b.e('s_add_u32 s45, s55, s46')
    b.e(f'v_add_u32 v{VKV}, s45, v9')
    b.e('s_lshl_b32 s47, s44, 10')
    b.e('s_add_u32 s52, s46, s47')
    qdma(b, 1)
    b.e('v_lshrrev_b32 v10, 4, v0')
    b.e('v_and_b32 v6, 15, v0')
    b.e('v_lshrrev_b32 v7, 2, v6')
    b.e('v_and_b32 v8, 1, v10')
    b.e('v_lshl_add_u32 v5, v8, 2, v7')
    b.e('v_lshlrev_b32 v5, 6, v5')
    b.e('v_lshl_add_u32 v5, v8, 5, v5')
    b.e('v_lshl_add_u32 v5, v3, 3, v5')
    b.e('v_lshrrev_b32 v9, 1, v10')
    b.e('v_lshl_add_u32 v5, v9, 12, v5')
    b.e('s_lshl_b32 s45, s54, 11')
    b.e(f'v_add_u32 v{VAE}, s45, v5')
    b.e(f'v_add_u32 v{VAE+1}, {2*SLOT}, v{VAE}')
    b.e(f'v_xor_b32 v{VAO}, 32, v{VAE}')
    b.e(f'v_xor_b32 v{VAO+1}, 32, v{VAE+1}')
    b.e('v_add_u32 v5, 4, v6')
    b.e('v_bfe_u32 v11, v5, 3, 1')
    b.e('v_and_b32 v12, 7, v5')
    b.e('v_lshrrev_b32 v13, 2, v12')
    b.e('v_lshlrev_b32 v13, 1, v13')
    b.e('v_lshlrev_b32 v14, 6, v12')
    b.e('v_xor_b32 v15, v13, v10')
    b.e('v_lshl_add_u32 v15, v15, 4, v14')
    b.e('s_mul_i32 s46, s53, 6144')
    b.e('s_add_u32 s46, s46, 16384')
    b.e('v_lshl_add_u32 v5, v11, 10, v15')
    b.e(f'v_add_u32 v{VXR}, s46, v5')
    b.e(f'v_add_u32 v{VXR+1}, {2*SLOT}, v{VXR}')
    b.e('v_lshl_add_u32 v15, v11, 11, v15')
    b.e('v_lshl_add_u32 v14, v11, 11, v14')
    b.e('s_lshl_b32 s47, s54, 13')
    b.e(f'v_add_u32 v{VK}, s47, v15')
    b.e(f'v_add_u32 v{VK}, {slot(0)}, v{VK}')
    b.e('s_mul_i32 s46, s53, 12288')
    b.e(f's_add_u32 s46, s46, {QB}')
    b.e(f'v_add_u32 v{VQR}, s46, v15')
    b.e('v_xor_b32 v15, v13, v9')
    b.e('v_lshl_add_u32 v15, v15, 4, v14')
    b.e('v_lshl_add_u32 v15, v8, 3, v15')
    b.e('s_lshl_b32 s45, s54, 10')
    b.e('s_add_u32 s46, s46, s45')
    b.e(f'v_add_u32 v{VQE}, s46, v15')
    b.e(f'v_xor_b32 v{VQO}, 32, v{VQE}')
    b.e('v_add_u32 v5, 1, v10')
    b.e('v_bfe_u32 v11, v5, 1, 1')
    b.e('v_and_b32 v12, 1, v5')
    b.e('v_lshl_add_u32 v13, v12, 2, v7')
    b.e('v_lshlrev_b32 v13, 6, v13')
    b.e('v_lshl_add_u32 v13, v12, 5, v13')
    b.e('v_lshl_add_u32 v13, v3, 3, v13')
    b.e('v_lshl_add_u32 v13, v11, 11, v13')
    b.e(f's_add_u32 s47, s47, {slot(2)}')
    b.e(f'v_add_u32 v{VVE}, s47, v13')
    b.e(f'v_xor_b32 v{VVO}, 32, v{VVE}')
    b.e(f'v_lshlrev_b32 v{VL16}, 4, v0')
    b.e(f'v_add_u32 v{VKW}, s52, v{VL16}')
    b.e(f'v_add_u32 v{VKW+1}, 65536, v{VKW}')
    b.e(f'v_add_u32 v{VKW+2}, 131072, v{VKW}')
    b.e(f's_mov_b32 s48, {hex(f2u(SCALE))}')
    b.e(f's_mov_b32 s50, {(2*CH - LDS_TOT) & 0xffffffff}')
    b.e(f's_mov_b32 s51, {2*CH}')
    b.e(f's_mov_b32 s46, {slot(2)}')
    def fA(D, h, tt): return FS + 56 * (D % 2) + 28 * h + 4 * tt
    def fB(D, h, jt): return FS + 56 * (D % 2) + 28 * h + 16 + 4 * jt
    def reads(D):
        sl = ((D + 3) % 4); hi = sl // 2; o = (sl % 2) * SLOT
        r = []
        for h in range(2):
            for jt in range(3):
                r.append(E(f'ds_read_b128 {q4(fB(D,h,jt))}, v{VXR+hi} offset:{o + jt*2048 + h*512}', ('f', D)))
            for tt in range(4):
                for u in range(2):
                    r.append(E(f'ds_read_b64_tr_b16 {q2(fA(D,h,tt)+2*u)}, v{(VAO if tt%2 else VAE)+hi} offset:{o + u*8192 + h*1024 + (tt//2)*512}', ('f', D)))
        return r
    zero = [E(f'v_mov_b32 v{i}, 0') for i in range(48, 96)] + [E(f'v_mov_b32 v{LS+i}, 0') for i in range(3)]
    b.wait_vm(('q', 0))
    b.e('s_barrier')
    stamp(b, 1)
    run(b, reads(0))
    qdma(b, 2)
    issue = {0: [3, 4], 1: [5], 2: [6], 3: [7], 4: [8]}
    kvi = {5: [0], 6: [1, 2], 7: [3], 8: [4]}
    kvr = {}; kvw = {}
    if KVREG == 2:
        kvr = {4: [0, 1], 5: [2]}; kvw = {6: [0, 1, 2]}; kvi = {6: [3], 7: [4], 8: [5]}
    if KVREG == 3:
        kvr = {4: [0], 5: [1]}; kvw = {6: [0, 1]}; kvi = {6: [2, 3], 7: [4], 8: [5]}
    if KVREG == 1:
        kvi = {}
        kvr = {KV1 + i: [i] for i in range(6)} if KV1 + 5 <= 6 else {2: [0], 3: [1], 4: [2], 5: [3], 6: [4, 5]}
        kvr[7] = [6]; kvr[8] = [7]
        kvw = {6: [0, 1, 2, 3], 7: [4, 5]}
    for D in range(9):
        b.e('s_waitcnt lgkmcnt(0)')
        if D + 1 < 9: b.wait_vm(('q', D + 1))
        b.e('s_barrier')
        dm = [(lambda b, x=x: qdma(b, x)) for x in issue.get(D, [])] + [(lambda b, x=x: kvpair_static(b, x)) for x in kvi.get(D, [])]
        if D == 5: dm.insert(0, lambda b: epoch_load(b, 222))
        dm += [(lambda b, x=x: kv_to_regs(b, x)) for x in kvr.get(D, [])]
        wr = sum((kv_to_lds(x) for x in kvw.get(D, [])), [])
        if KVREG >= 2: zs = zero[24 + 5 * D:29 + 5 * D] if D < 6 else {7: zero[:24]}.get(D, [])
        elif KVREG: zs = {7: zero[:32] + zero[48:], 8: zero[32:48]}.get(D, [])
        else: zs = zero[7 * D:7 * D + 7]
        mf = []
        if D < 8:
            for h in range(2):
                for tt in range(4):
                    for jt in range(3):
                        d = q4(acc(tt, jt))
                        mf.append(E(f'{MF} {d}, {q4(fA(D,h,tt))}, {q4(fB(D,h,jt))}, {"0" if D == 0 and h == 0 else d}'))
            rd = reads(D + 1)
            fill = []
            QS = int(OPT.get('qs', 1))
            if QS:
                dm = sum((qdma_parts(x) for x in issue.get(D, [])), []) + dm[len(issue.get(D, [])):]
                step = max(1, len(rd) // max(1, len(dm)))
                lastkv = [dm.pop()] if (KVREG == 3 and D == 4) else []
                step = max(1, (len(rd) - 6 * len(lastkv)) // max(1, len(dm)))
                for k, x in enumerate(rd):
                    fill.append(x)
                    if dm and k % step == step - 1: fill.append(dm.pop(0))
                fill += dm + lastkv; dm = []
            for k, x in enumerate(rd if not QS else []):
                fill.append(x)
                if dm and k % 6 == 1: fill.append(dm.pop(0))
            assert not dm
            run(b, interleave(mf, wr + fill + zs, end=int(OPT.get('qe', 21)) + (2 if len(zs) > 8 else 0)))
        else:
            tiles = [(tt, jt) for tt in range(4) for jt in range(3)]
            def conv(tt, jt):
                a = acc(tt, jt)
                return [E(f'v_mul_f32 v{a+i}, s48, v{a+i}') for i in range(4)] + [
                    E(f'v_cvt_pk_bf16_f32 v{a}, v{a}, v{a+1}'), E(f'v_cvt_pk_bf16_f32 v{a+1}, v{a+2}, v{a+3}'),
                    E(f'ds_write_b64 v{VQO if tt%2 else VQE}, {q2(a)} offset:{jt*4096 + (tt//2)*512}', ('qw',))]
            LAG = 3
            run(b, dm)
            run(b, zs)
            for k, (tt, jt) in enumerate(tiles):
                d = q4(acc(tt, jt))
                cv = conv(*tiles[k - LAG]) if k >= LAG else []
                if k == LAG: b.e('s_nop 2')
                b.e(f'{MF} {d}, {q4(fA(D,0,tt))}, {q4(fB(D,0,jt))}, {d}')
                run(b, cv[:3])
                b.e(f'{MF} {d}, {q4(fA(D,1,tt))}, {q4(fB(D,1,jt))}, {d}')
                run(b, cv[3:])
            stamp(b, 2)
            for k in range(12 - LAG, 12):
                if k == 11: b.e('s_nop 0')
                run(b, conv(*tiles[k]))
    b.e('s_waitcnt lgkmcnt(0)')
    b.wait_vm(('kv', 1))
    b.wait_vm(('ep',))
    epoch_tags(b, 222)
    b.e('s_barrier')
    if not KVREG: kvpair_static(b, 5)
    for s in range(4):
        for jt in range(3):
            b.e(f'ds_read_b128 {q4(qf(s,jt))}, v{VQR} offset:{jt*4096 + (s//2)*1024 + (s%2)*512}', ('qr', s))
    return b

def kread(b, f):
    kt, s = f // 4, f % 4
    b.e(f'ds_read_b128 {q4(KR+4*(f%4))}, v{VK} offset:{kt*4096 + (s//2)*1024 + (s%2)*512}', ('k', f))
def vread(b, t):
    tau = t // 2
    a = VVO if t % 2 else VVE
    for u in range(2):
        b.e(f'ds_read_b64_tr_b16 {q2(VR+4*(t%4)+2*u)}, v{a} offset:{u*4096 + (tau//2)*1024 + (tau%2)*512}', ('v', t))
def kadv(b, first=False):
    if first:
        b.e(f'v_add_u32 v{VK}, {CH}, v{VK}')
        b.e(f's_mov_b32 s45, {slot(1)}')
        return
    b.e(f's_cmp_ge_u32 s45, {LDS_TOT - 2*CH}')
    b.e(f's_cselect_b32 s47, s50, s51')
    b.e(f's_add_u32 s45, s45, s47')
    b.e(f'v_add_u32 v{VK}, s47, v{VK}')
def vadv(b):
    b.e(f's_cmp_ge_u32 s46, {LDS_TOT - 2*CH}')
    b.e(f's_cselect_b32 s47, s50, s51')
    b.e(f's_add_u32 s46, s46, s47')
    b.e(f'v_add_u32 v{VVE}, s47, v{VVE}')
    b.e(f'v_add_u32 v{VVO}, s47, v{VVO}')


def dma_k(b):
    b.e('s_mov_b32 m0, s57')
    b.e(f's_cmp_ge_u32 s57, s61')
    b.e(f'buffer_load_dwordx4 v{VKV}, {srd(S_K)}, s59 offen {KVPOL} lds', ('kd',))
    b.e(f'buffer_load_dwordx4 v{VKV}, {srd(S_K)}, s59 offen offset:2048 {KVPOL} lds', ('kd',))
    b.e('s_cselect_b32 s62, s50, s51')
    b.e('s_add_u32 s57, s57, s62')
    b.e(f's_add_u32 s59, s59, {CH}')
def dma_v(b):
    b.e('s_mov_b32 m0, s58')
    b.e(f's_cmp_ge_u32 s58, s61')
    b.e(f'buffer_load_dwordx4 v{VKV}, {srd(S_V)}, s60 offen {KVPOL} lds', ('vd',))
    b.e(f'buffer_load_dwordx4 v{VKV}, {srd(S_V)}, s60 offen offset:2048 {KVPOL} lds', ('vd',))
    b.e('s_cselect_b32 s62, s50, s51')
    b.e('s_add_u32 s58, s58, s62')
    b.e(f's_add_u32 s60, s60, {CH}')

PS = TMP + 8

def guarded(fn, T):
    def g(b):
        if T is None: return fn(b)
        role.n += 1; l = f'SK{role.n}'
        b.e(f's_cmp_eq_u32 s44, {T}')
        b.e(f's_cbranch_scc1 {l}')
        fn(b)
        b.e(f'{l}:')
    return g

def qk_backbone(S, cinit, nextV=True, first=False, qwait=False, dma=None):
    bb = []
    for f in range(8):
        kt, s = f // 4, f % 4
        for jt in range(3):
            def slot(b, f=f, kt=kt, s=s, jt=jt):
                if jt == 0:
                    if qwait and f < 4: b.wait_lgkm(('qr', s))
                    if not PAIRW: b.wait_lgkm(('k', f))
                    elif PAIRW == 2 and f == 0: b.wait_lgkm(('k', 3))
                    elif f % 2 == 0: b.wait_lgkm(('k', f + 1)); b.wait_lgkm(('k', f))
                d = q4(st(S, kt, jt))
                c = d if s else (q4(NEGM + 4 * jt) if cinit == 'negm' else '0')
                b.e(f'{MF} {d}, {q4(KR+4*(f%4))}, {q4(qf(s,jt))}, {c}')
                if jt == 2:
                    if f < 4: kread(b, f + 4)
                    if f == 3: kadv(b, first)
                    if f >= 4:
                        if nextV == 'K': kread(b, f - 4)
                        elif nextV: vread(b, f - 4)
                if dma and not NODMA and f == 0 and jt == 1: dma(b)
            bb.append(slot)
    return bb

def pv_backbone(P, nextK=True, dma=None, adv=True):
    bb = []
    for t in range(8):
        for jt in range(3):
            def slot(b, t=t, jt=jt):
                if jt == 0:
                    if not PAIRW: b.wait_lgkm(('v', t))
                    elif PAIRW == 2 and t == 0: b.wait_lgkm(('v', 3))
                    elif t % 2 == 0: b.wait_lgkm(('v', t + 1)); b.wait_lgkm(('v', t))
                d = q4(acc(t, jt))
                b.e(f'{MF} {d}, {q4(VR+4*(t%4))}, {q4(st(P,0,jt))}, {d}')
                if jt == 2:
                    if t < 4: vread(b, t + 4)
                    if t == 3 and adv: vadv(b)
                    if t >= 4 and nextK: kread(b, t - 4)
                if dma and not NODMA and t == 0 and jt == 1: dma(b)
            bb.append(slot)
    return bb

def sregs(S, jt): return [st(S, 0, jt) + i for i in range(4)] + [st(S, 1, jt) + i for i in range(4)]

def sm_fillers(S):
    fl = []
    for kt in range(2):
        for jt in range(3):
            r = sregs(S, jt)
            o = 4 * kt
            fl.append(E(f'v_exp_f32 v{r[o]}, v{r[o]}'))
            fl.append(E(f'v_exp_f32 v{r[o+1]}, v{r[o+1]}'))
            if kt: fl.append(E(f'v_add_f32 v{PS+jt}, v{PS+jt}, v{r[o]}'))
            fl.append(E(f'v_exp_f32 v{r[o+2]}, v{r[o+2]}'))
            if kt: fl.append(E(f'v_add_f32 v{PS+jt}, v{PS+jt}, v{r[o+1]}'))
            else: fl.append(E(f'v_add_f32 v{PS+jt}, v{r[0]}, v{r[1]}'))
            fl.append(E(f'v_exp_f32 v{r[o+3]}, v{r[o+3]}'))
            fl.append(E(f'v_add_f32 v{PS+jt}, v{PS+jt}, v{r[o+2]}'))
            fl.append(E(f'v_cvt_pk_bf16_f32 v{r[2*kt]}, v{r[o]}, v{r[o+1]}'))
            fl.append(E(f'v_add_f32 v{PS+jt}, v{PS+jt}, v{r[o+3]}'))
            fl.append(E(f'v_cvt_pk_bf16_f32 v{r[2*kt+1]}, v{r[o+2]}, v{r[o+3]}'))
    return fl

def chk_fillers():
    return [E(f'v_max3_f32 v{TMP}, v{PS}, v{PS+1}, v{PS+2}'), E(f'v_cmp_nle_f32 vcc, v{TMP}, v{TMP+11}')]
def ladd_fillers():
    return [E(f'v_add_f32 v{LS+jt}, v{LS+jt}, v{PS+jt}') for jt in range(3)]

def xreduce3(regs, tmps, op):
    fl = []
    for sw in ('v_permlane32_swap_b32', 'v_permlane16_swap_b32'):
        for r, t in zip(regs, tmps): fl.append(E(f'v_mov_b32 v{t}, v{r}'))
        for r, t in zip(regs, tmps): fl.append(E(f'{sw} v{r}, v{t}'))
        for r, t in zip(regs, tmps): fl.append(E(f'{op} v{r}, v{r}, v{t}'))
    return fl

MX = [TMP + 1, TMP + 2, TMP + 3]; MT = [TMP + 4, TMP + 5, TMP + 6]
def rowmax3(S):
    fl = []
    R = [sregs(S, jt) for jt in range(3)]
    for jt in range(3): fl.append(E(f'v_max3_f32 v{MX[jt]}, v{R[jt][0]}, v{R[jt][1]}, v{R[jt][2]}'))
    for jt in range(3): fl.append(E(f'v_max3_f32 v{MX[jt]}, v{MX[jt]}, v{R[jt][3]}, v{R[jt][4]}'))
    for jt in range(3): fl.append(E(f'v_max3_f32 v{MX[jt]}, v{MX[jt]}, v{R[jt][5]}, v{R[jt][6]}'))
    for jt in range(3): fl.append(E(f'v_max_f32 v{MX[jt]}, v{MX[jt]}, v{R[jt][7]}'))
    return fl + xreduce3(MX, MT, 'v_max_f32')

def rare_path(ctx, name, Y, X, back):
    snap = ctx.snap()
    r = Block(ctx, name + 'r')
    r.e(f'{name}_RARE:')
    r.e(f's_cmp_ge_u32 s45, {back*CH}')
    r.e(f's_cselect_b32 s47, 0, {LDS_TOT}')
    r.e(f's_sub_u32 s47, s47, {back*CH}')
    r.e(f'v_add_u32 v{TMP+7}, s47, v{VK}')
    for kt in range(2):
        for s in range(4):
            r.e(f'ds_read_b128 {q4(KR+4*s)}, v{TMP+7} offset:{kt*4096 + (s//2)*1024 + (s%2)*512}', ('rk',))
        r.e('s_waitcnt lgkmcnt(0)')
        for s in range(4):
            for jt in range(3):
                d = q4(st(Y, kt, jt))
                r.e(f'{MF} {d}, {q4(KR+4*s)}, {q4(qf(s,jt))}, {d if s else q4(NEGM+4*jt)}')
    r.e('s_nop 7')
    run(r, rowmax3(Y))
    for jt in range(3): r.e(f'v_max_f32 v{MX[jt]}, 0, v{MX[jt]}')
    for jt in range(3): r.e(f'v_exp_f32 v{MT[jt]}, -v{MX[jt]}')
    for jt in range(3):
        for q in sregs(Y, jt) + (sregs(X, jt) if X else []) + [NEGM + 4 * jt + i for i in range(4)]:
            r.e(f'v_sub_f32 v{q}, v{q}, v{MX[jt]}')
        r.e(f'v_mul_f32 v{LS+jt}, v{LS+jt}, v{MT[jt]}')
        for t in range(8):
            for i in range(4): r.e(f'v_mul_f32 v{acc(t,jt)+i}, v{acc(t,jt)+i}, v{MT[jt]}')
    run(r, sm_fillers(Y))
    r.e('s_nop 1')
    r.e(f's_branch {name}_JOIN')
    ctx.restore(snap)
    return r

def k1_att_prologue(ctx):
    b = Block(ctx, 'att_pro')
    for f in range(4): kread(b, f)
    nk, nv = {0: (7, 8), 1: (11, 10), 2: (9, 8), 3: (9, 8)}[KVREG]
    if LEAD == 8: nk, nv = 9, 8
    b.e(f's_add_u32 s57, s52, {slot(nk)}')
    b.e(f's_add_u32 s58, s52, {slot(nv)}')
    b.e(f's_mov_b32 s59, {chunk_of(nk)[1]*CH}')
    b.e(f's_mov_b32 s60, {chunk_of(nv)[1]*CH}')
    b.e(f's_add_u32 s61, s52, {LDS_TOT - 2*CH}')
    b.e(f'v_mov_b32 v{TMP+11}, {hex(f2u(THR))}')
    if FUSED and WARM:
        b.e('s_lshr_b32 s55, s41, 3'); b.e('s_mul_i32 s55, s55, 1179648')
        b.e('s_and_b32 s56, s41, 3'); b.e('s_mul_i32 s62, s56, 288'); b.e('s_add_u32 s55, s55, s62')
        b.e('s_and_b32 s62, s41, 1'); b.e('s_lshl_b32 s62, s62, 5'); b.e('s_sub_u32 s55, s55, s62')
        b.e('s_lshl_b32 s56, s56, 1'); b.e('s_and_b32 s62, s41, 4'); b.e('s_add_u32 s56, s56, s62')
        b.e('s_and_b32 s62, s40, 3'); b.e('s_add_u32 s56, s56, s62'); b.e('s_and_b32 s56, s56, 7')
        b.e('s_mul_i32 s56, s56, 147456'); b.e('s_add_u32 s55, s55, s56')
        b.e('s_mul_i32 s56, s42, 18432'); b.e('s_add_u32 s55, s55, s56')
        b.e('s_add_u32 s28, s12, s55'); b.e('s_addc_u32 s29, s13, 0')
        b.e('s_sub_u32 s30, 4718592, s55'); b.e('s_mov_b32 s31, 0x20000')
    zero = [E(f'v_mov_b32 v{ACC+i}, 0') for i in range(48)]
    run(b, interleave(qk_backbone(SA, '0', nextV='K', first=True, qwait=True), zero))
    b.wait_vm(('kv', 2))
    b.e('s_barrier')
    if KVREG >= 2:
        kvpair_static(b, 6)
        kvpair_static(b, 7)
    elif KVREG:
        kvpair_static(b, 8)
        kvpair_static(b, 9)
        run(b, kv_to_lds(7)[:1] + kv_to_lds(7)[1:] + kv_to_lds(6))
    else:
        kvpair_static(b, 6)
        if LEAD == 8: kvpair_static(b, 7)
    if TOUCH:
        b.e(f'v_lshlrev_b32 v{TMP+7}, {12 if TOUCH == 1 else 17}, v{VL16}')
        b.e('s_mov_b32 s100, 0x20000')
        for base, size, off in ((12, 4718592, 0), (18, 0x1000000, 0), (18, 0x1000000, 0x400000), (18, 0x1000000, 0x800000), (18, 0x3000000, 0x2000000), (18, 0x3000000, 0x2400000), (18, 0x3000000, 0x2800000), (18, 0x3000000, 0x2c00000), (14, 1769472, 0)):
            b.e(f's_mov_b32 s28, s{base}'); b.e(f's_mov_b32 s29, s{base+1}'); b.e(f's_mov_b32 s30, {size}'); b.e('s_mov_b32 s31, 0x20000')
            b.e(f's_mov_b32 s56, {off}')
            b.e(f'buffer_load_dword v{TMP}, v{TMP+7}, s[28:31], s56 offen', ('touch',))
        b.e('s_waitcnt vmcnt(0)')
    run(b, rowmax3(SA))
    for jt in range(3):
        for i in range(4): b.e(f'v_sub_f32 v{NEGM+4*jt+i}, 0, v{MX[jt]}')
    sub = [E(f'v_sub_f32 v{r}, v{r}, v{MX[jt]}') for kt in range(2) for jt in range(3) for r in sregs(SA, jt)[4*kt:4*kt+4]]
    run(b, interleave(qk_backbone(SB, 'negm', nextV=True), sub + sm_fillers(SA)))
    b.e('s_mov_b32 s44, 0')
    if PRIO:
        b.e('s_cmp_ge_u32 s42, 4'); b.e('s_cbranch_scc0 NOPRIO'); b.e('s_setprio 1'); b.e('NOPRIO:')
    stamp(b, 3)
    return b

def winter(backbone, fillers, start, end):
    if not int(OPT.get('cw', 0)): return interleave(backbone, fillers, start, end)
    class Probe:
        def e(self, t, tag=None): self.t = t
    w = []
    for f in fillers:
        p = Probe(); p.t = ''
        try: f(p)
        except Exception: pass
        w.append(2 if p.t.startswith('v_exp') else 1)
    tot = sum(w); n = len(backbone); span = end - start
    out = []; k = 0; acc_ = 0
    for i in range(n):
        out.append(backbone[i])
        if start <= i < end:
            tgt = tot * (i - start + 1) / span
            while k < len(fillers) and acc_ + w[k] / 2 <= tgt:
                out.append(fillers[k]); acc_ += w[k]; k += 1
    return out + fillers[k:]

def pv_phase(ctx, name, P, S, nextK=True, head=None, dma=None, vmw=4, bar=True, extra=(), split=None):
    a = Block(ctx, name)
    if head: head(a)
    if bar:
        a.e(f's_waitcnt vmcnt({(2 if NOBARQK else vmw) + 2 * (LEAD - 6)})')
        a.e('s_barrier')
    fl = ladd_fillers() + (sm_fillers(S)[:split or SM_SPLIT] if S else []) + list(extra)
    run(a, winter(pv_backbone(P, nextK, dma, adv=bar), fl, int(OPT.get('pvs', 2)), 24))
    return a

def qk_phase(ctx, name, D, S, dma):
    b = Block(ctx, name)
    if not NOBARQK:
        b.e('s_waitcnt vmcnt(4)')
        b.e('s_barrier')
    run(b, winter(qk_backbone(D, 'negm', dma=dma), sm_fillers(S)[SM_SPLIT:] + chk_fillers(), 0, 23))
    b.e(f's_cbranch_vccnz {name}_RARE')
    r = rare_path(ctx, name, S, D, 4)
    j = Block(ctx, name + 'j'); j.e(f'{name}_JOIN:')
    return b, r, j

def pol_store(b, text, tag):
    b.e(text + ' sc1', tag)

EXB = 4 * CH
MLB = 24576
XA = SA + 20
def vread_as(b, t, k):
    tau = t // 2
    a = VVO if t % 2 else VVE
    for u in range(2):
        b.e(f'ds_read_b64_tr_b16 {q2(VR+4*(k%4)+2*u)}, v{a} offset:{u*4096 + (tau//2)*1024 + (tau%2)*512}', ('v', k))
def order_of(r): return [4, 5, 6, 7, 0, 1, 2, 3] if r == A else list(range(8))

def last_pv(ctx):
    b = Block(ctx, 'L3')
    b.e('L2_JOIN:')
    setup = tail_setup()
    red = ladd_fillers() + xreduce3([LS, LS + 1, LS + 2], MT, 'v_add_f32')
    for r in (A, B):
        with role(b, r):
            od = order_of(r)
            bb = []
            for k, t in enumerate(od):
                for jt in range(3):
                    def slot_(b, k=k, t=t, jt=jt):
                        if jt == 0 and k % 2 == 0: b.wait_lgkm(('v', k + 1))
                        d = q4(acc(t, jt))
                        b.e(f'{MF} {d}, {q4(VR+4*(k%4))}, {q4(st(SB,0,jt))}, {d}')
                        if jt == 2 and k < 4: vread_as(b, od[k + 4], k + 4)
                    bb.append(slot_)
            snd = [E(f'ds_write_b128 v{XA}, {q4(acc(t, jt))} offset:{(3*i+jt)*1024}', ('x',)) for i, t in enumerate(od[:4]) for jt in range(3)]
            run(b, interleave(bb[:12], red + setup[:10], start=1))
            mixed = []
            for k in range(max(len(snd), len(setup) - 10)):
                if 10 + k < len(setup): mixed.append(setup[10 + k])
                if k < len(snd): mixed.append(snd[k])
            run(b, interleave(bb[12:], mixed, start=0))
    return b

def k1_epilogue(ctx):
    b = Block(ctx, 'epi')
    stamp(b, 4)
    if STAMP and OPT.get('rt4'): b.e('s_memrealtime s[84:85]')
    b.e('s_xor_b32 s46, s42, 4')
    b.e(f'v_lshrrev_b32 v{VVO}, 1, v{VL16}')
    b.e('s_mul_i32 s43, s42, 1536')
    b.e('s_mul_i32 s45, s46, 1536')
    b.e(f's_add_u32 s43, s43, {MLB}')
    b.e(f's_add_u32 s45, s45, {MLB}')
    b.e(f'v_add_u32 v{VKV}, s43, v{VVO}')
    b.e(f'v_add_u32 v{VVO}, s45, v{VVO}')
    for jt in range(3):
        b.e(f'v_mov_b32 v{NEGM+4*jt+1}, v{LS+jt}')
    for jt in range(3):
        b.e(f'ds_write_b64 v{VKV}, {q2(NEGM+4*jt)} offset:{jt*512}', ('x',))
    b.e('s_and_b32 s43, s42, 3')
    b.e('s_mul_i32 s43, s43, 393216')
    b.e('s_lshl_b32 s45, s41, 12')
    b.e('s_add_u32 s43, s43, s45')
    b.e('s_lshl_b32 s45, s54, 11')
    b.e('s_add_u32 s43, s43, s45')
    b.e('s_add_u32 s45, s43, 131072')
    b.e('s_add_u32 s46, s43, 262144')
    so = ['s43', 's45', 's46']
    b.e('s_waitcnt lgkmcnt(0)')
    b.e('s_barrier')
    RX = QF
    ML = SA
    for jt in range(3):
        b.e(f'ds_read_b64 {q2(ML+2*jt)}, v{VVO} offset:{jt*512}', ('ml',))
    for i in range(12):
        b.e(f'ds_read_b128 {q4(RX+4*i)}, v{XA+1} offset:{i*1024}', ('rx', i))
    b.wait_lgkm(('ml',))
    C = SA + 8
    T = [TMP, TMP + 4, TMP + 8]
    def each(f):
        for jt in range(3): b.e(f(jt, NEGM + 4 * jt, NEGM + 4 * jt + 1, ML + 2 * jt, ML + 2 * jt + 1, T[jt]))
    each(lambda jt, no, lo, np_, lp, t: f'v_min_f32 v{t}, v{no}, v{np_}')
    each(lambda jt, no, lo, np_, lp, t: f'v_sub_f32 v{t+1}, v{t}, v{no}')
    each(lambda jt, no, lo, np_, lp, t: f'v_sub_f32 v{t+2}, v{t}, v{np_}')
    each(lambda jt, no, lo, np_, lp, t: f'v_exp_f32 v{t+1}, v{t+1}')
    each(lambda jt, no, lo, np_, lp, t: f'v_exp_f32 v{t+2}, v{t+2}')
    each(lambda jt, no, lo, np_, lp, t: f'v_mul_f32 v{t+3}, v{t+1}, v{lo}')
    each(lambda jt, no, lo, np_, lp, t: f'v_fmac_f32 v{t+3}, v{t+2}, v{lp}')
    each(lambda jt, no, lo, np_, lp, t: f'v_rcp_f32 v{t+3}, v{t+3}')
    b.e('s_nop 0')
    for x, src in ((0, 1), (1, 1), (2, 2), (3, 2)):
        each(lambda jt, no, lo, np_, lp, t: f'v_mul_f32 v{C+4*jt+x}, v{t+src}, v{t+3}')
    OUT = SB
    snap = ctx.snap()
    for r in (A, B):
        with role(b, r):
            keep = range(0, 4) if r == A else range(4, 8)
            for sp in range(2):
                for jt in range(3):
                    o = OUT + 4 * (3 * sp + jt)
                    for h in range(2):
                        i = 2 * sp + h
                        a = acc(keep[i], jt); x = RX + 4 * (3 * i + jt)
                        b.wait_lgkm(('rx', 3 * i + jt))
                        b.e(f'v_pk_mul_f32 {q2(a)}, {q2(a)}, {q2(C+4*jt)}')
                        b.e(f'v_pk_mul_f32 {q2(a+2)}, {q2(a+2)}, {q2(C+4*jt)}')
                        b.e(f'v_pk_fma_f32 {q2(a)}, {q2(x)}, {q2(C+4*jt+2)}, {q2(a)}')
                        b.e(f'v_pk_fma_f32 {q2(a+2)}, {q2(x+2)}, {q2(C+4*jt+2)}, {q2(a+2)}')
                        b.e(f'v_cvt_pk_bf16_f32 v{o+2*h}, v{a}, v{a+1}')
                        b.e(f'v_cvt_pk_bf16_f32 v{o+2*h+1}, v{a+2}, v{a+3}')
                    pol_store(b, f'buffer_store_dwordx4 {q4(o)}, v{VL16}, {srd(S_O)}, {so[jt]} offen offset:{sp*1024}', ('o',))
    if FUSED:
        b.e('s_bfe_u32 s43, s42, 0x10001')
        b.e('s_cmp_eq_u32 s43, s49')
        b.e('s_cbranch_scc0 OWN_SKIP')
        b.e('s_and_b32 s43, s42, 1'); b.e('s_mul_i32 s43, s43, 6144')
        b.e(f's_mul_i32 s45, s54, {OS_}'); b.e('s_add_u32 s43, s43, s45')
        b.e(f'v_add_u32 v{VK}, s43, v{VL16}')
        for sp in range(2):
            for jt in range(3):
                b.e(f'ds_write_b128 v{VK}, {q4(OUT + 4 * (3 * sp + jt))} offset:{(2*jt+sp)*1024}', ('oo',))
        b.e('OWN_SKIP:')
    if not FUSED:
        if STAMP:
            b.e('s_waitcnt vmcnt(0)')
            stamp(b, 5)
            dump_stamps(b)
        b.e('K1_END:')
        b.e('s_endpgm')
    return b

def dump_stamps(b):
    b.e('s_memrealtime s[88:89]')
    b.e('s_waitcnt lgkmcnt(0)')
    if STAMP == 2:
        b.e(f's_cmp_eq_u32 s2, {int(OPT.get("dbgwg", 0))}'); b.e('s_cbranch_scc0 DBG_SKIP')
        b.e('s_cmp_eq_u32 s42, 2'); b.e('s_cbranch_scc0 DBG_SKIP')
        b.e('s_mov_b32 s56, s16'); b.e('s_mov_b32 s57, s17'); b.e('s_mov_b32 s58, 256'); b.e('s_mov_b32 s59, 0x20000')
        b.e('v_mov_b32 v1, 0')
        for i in range(1, 11):
            b.e(f's_sub_u32 s43, s{64+2*i}, s64'); b.e('v_mov_b32 v2, s43')
            b.e(f'buffer_store_dword v2, v1, s[56:59], 0 offen offset:{4*i}')
            b.e('s_waitcnt vmcnt(0)')
        b.e('s_sub_u32 s43, s88, s86'); b.e('v_mov_b32 v2, s43')
        b.e('buffer_store_dword v2, v1, s[56:59], 0 offen offset:44')
        b.e('s_waitcnt vmcnt(0)')
        b.e('DBG_SKIP:')
        return
    b.e('s_lshl_b32 s43, s2, 3'); b.e('s_add_u32 s43, s43, s42'); b.e('s_lshl_b32 s43, s43, 7')
    b.e('s_add_u32 s43, s43, 0x1000000')
    b.e('s_add_u32 s56, s18, s43'); b.e('s_addc_u32 s57, s19, 0'); b.e('s_mov_b32 s58, 128'); b.e('s_mov_b32 s59, 0x20000')
    b.e('v_mov_b32 v1, 0')
    for i in range(13):
        b.e(f'v_mov_b32 v2, s{64+2*i}'); b.e(f'v_mov_b32 v3, s{65+2*i}')
        b.e(f'buffer_store_dwordx2 v[2:3], v1, s[56:59], 0 offen offset:{8*i}')
        b.e('s_waitcnt vmcnt(0)')

def poll(b, name, load, notyet):
    b.e('s_mov_b32 s91, 0')
    b.e(f'{name}:')
    b.e(load)
    b.e('s_add_u32 s91, s91, 1')
    b.e('s_waitcnt vmcnt(0)')
    b.e(notyet)
    b.e('s_cmp_lt_u32 s91, 0x40000')
    b.e(f's_cbranch_vccz {name}_GO')
    b.e(f's_sleep {SLEEP}')
    b.e(f's_cbranch_scc1 {name}')
    b.e(f'{name}_GO:')

BIG, SML, LW, LO = (2, 3), (0, 1, 4, 5), (6,), (7,)
S_WO, S_OI, S_P, S_PI, S_OUT = 20, 24, 28, 32, 36
VAP = 192; VB = 197; VT = 198; VE = 202; GS = 208; XF = 248
WS_ = 20480; NW_ = 6; OS_ = 12288; NO_ = 3; WOB = NO_ * OS_

def tail_setup():
    P = []
    def piece(*lines): P.append(lambda b: [b.e(l) for l in lines])
    piece('s_lshr_b32 s47, s41, 3', 's_and_b32 s48, s41, 7')
    piece('s_lshr_b32 s49, s48, 2', 's_and_b32 s50, s48, 3')
    piece('s_and_b32 s51, s50, 1', 's_mul_i32 s55, s47, 1179648')
    piece('s_mul_i32 s61, s50, 288', 's_add_u32 s55, s55, s61')
    piece('s_lshl_b32 s61, s51, 5', 's_sub_u32 s55, s55, s61')
    piece('s_mul_i32 s61, s40, 1572864', 's_mul_i32 s100, s49, 786432')
    piece('s_add_u32 s61, s61, s100', 's_lshl_b32 s100, s47, 15')
    piece('s_add_u32 s61, s61, s100', f's_sub_u32 s{S_WO+2}, 4718592, s55')
    piece(f's_add_u32 s{S_WO}, s12, s55', f's_addc_u32 s{S_WO+1}, s13, 0')
    piece(f's_add_u32 s{S_OI}, s18, s61', f's_addc_u32 s{S_OI+1}, s19, 0')
    piece(f's_mov_b32 s{S_WO+3}, 0x20000', f's_mov_b32 s{S_OI+2}, {5*131072 + 32768}', f's_mov_b32 s{S_OI+3}, 0x20000')
    piece('s_lshl_b32 s52, s40, 3', 's_add_u32 s52, s52, s48')
    piece(f's_mul_i32 s52, s52, {16*INB}', f's_add_u32 s52, s52, {POFF}')
    piece(f's_mul_i32 s61, s47, {INB}', 's_add_u32 s61, s61, s52')
    piece(f's_add_u32 s{S_P}, s18, s61', f's_addc_u32 s{S_P+1}, s19, 0')
    piece(f's_mov_b32 s{S_P+2}, {13*INB}', f's_mov_b32 s{S_P+3}, 0x20000')
    piece(f's_mul_i32 s61, s47, {4*INB}', 's_add_u32 s61, s61, s52')
    piece(f's_add_u32 s{S_PI}, s18, s61', f's_addc_u32 s{S_PI+1}, s19, 0')
    piece(f's_mov_b32 s{S_PI+2}, {4*INB}', f's_mov_b32 s{S_PI+3}, 0x20000')
    piece('s_mul_i32 s52, s40, 192', 's_mul_i32 s61, s49, 96')
    piece('s_add_u32 s52, s52, s61', 's_lshl_b32 s61, s47, 2')
    piece('s_add_u32 s52, s52, s61', 's_mul_i32 s52, s52, 1152')
    piece('s_mul_i32 s61, s50, 288', 's_add_u32 s6, s52, s61')
    piece('s_lshr_b32 s100, s50, 1', 's_and_b32 s99, s90, 0xfffffc00')
    return P

def head_of(b, U):
    G = U // 2
    b.e(f's_add_u32 s55, s48, {G >> 1}'); b.e('s_and_b32 s55, s55, 3')
    b.e(f's_xor_b32 s61, s48, {(G & 1) << 2}'); b.e('s_and_b32 s61, s61, 4'); b.e('s_or_b32 s55, s55, s61')

def oproj(ctx):
    FB = 64
    b = Block(ctx, 'op_pre')
    stamp(b, 2, True)
    b.e(f'v_lshrrev_b32 v{VT+3}, 4, v{VL16}')
    T0 = 216
    v3, v4, v5, v6, v7 = (f'v{T0+i}' for i in range(5))
    VL = 224
    b.e(f'v_and_b32 {v3}, 3, v{VT+3}')
    with role(b, BIG + SML):
        b.e('s_and_b32 s43, s42, 1')
        b.e('s_cmp_lt_u32 s42, 2'); b.e('s_cselect_b32 s45, 5, 0')
        b.e('s_cmp_ge_u32 s42, 4'); b.e('s_cselect_b32 s45, 7, s45')
        b.e(f'v_lshrrev_b32 {v4}, 4, v{VT+3}'); b.e(f'v_bfe_u32 {v5}, v{VT+3}, 2, 4')
        b.e(f'v_and_b32 {v7}, 7, {v5}'); b.e(f'v_lshlrev_b32 {v7}, 6, {v7}'); b.e(f'v_lshlrev_b32 {v5}, 6, {v5}')
        b.e(f'v_and_b32 {v6}, 1, {v4}'); b.e(f'v_lshlrev_b32 {v6}, 5, {v6}'); b.e(f'v_lshl_add_u32 {v6}, {v3}, 3, {v6}')
        b.e(f'v_add_u32 {v5}, {v5}, {v6}'); b.e(f'v_add_u32 {v7}, {v7}, {v6}')
        b.e(f'v_lshrrev_b32 {v6}, 1, {v4}'); b.e(f'v_lshl_add_u32 {v7}, {v6}, 12, {v7}')
        b.e('s_add_u32 s101, s45, s51')
        for n in range(5):
            b.e(f's_add_u32 s52, s101, {n}')
            b.e('s_and_b32 s91, s52, 1'); b.e('s_lshl_b32 s91, s91, 5')
            b.e('s_lshr_b32 s52, s52, 1'); b.e('s_sub_u32 s52, s52, s100')
            b.e('s_and_b32 s54, s52, 1'); b.e('s_lshl_b32 s54, s54, 9')
            b.e('s_lshr_b32 s55, s52, 1'); b.e('s_lshl_b32 s55, s55, 13'); b.e('s_add_u32 s54, s54, s55')
            b.e('s_cmp_lt_u32 s52, 4'); b.e('s_cselect_b32 s54, s54, 16384'); b.e('s_cselect_b64 vcc, -1, 0')
            b.e(f's_add_u32 s54, s54, {WOB}')
            b.e(f'v_cndmask_b32 v{VAP+n}, {v5}, {v7}, vcc')
            b.e(f'v_xor_b32 v{VAP+n}, s91, v{VAP+n}'); b.e(f'v_add_u32 v{VAP+n}, s54, v{VAP+n}')
        b.e('s_mul_i32 s52, s43, 6144')
        b.e(f'v_add_u32 v{VB}, s52, v{VL16}')
        b.e(f'v_bfe_u32 {v6}, v{VT+3}, 2, 2'); b.e(f'v_mul_u32_u24 {v6}, {4*INB}, {v6}')
        b.e(f'v_lshl_add_u32 {v6}, {v4}, 6, {v6}'); b.e(f'v_lshl_add_u32 v{VT+2}, {v3}, 4, {v6}')
        b.e('s_mul_i32 s52, s43, 27'); b.e('s_add_u32 s52, s52, s45'); b.e('s_lshl_b32 s5, s52, 8')
        b.e('s_mul_i32 s52, s43, 9'); b.e('s_add_u32 s52, s52, s45'); b.e('s_lshl_b32 s4, s52, 9')
    b.e(f'v_bfe_u32 {v4}, v{VT+3}, 2, 3'); b.e(f'v_lshrrev_b32 {v5}, 2, v{VT+3}')
    b.e('s_cmp_eq_u32 s42, 7'); b.e('s_cselect_b64 vcc, -1, 0')
    b.e(f'v_lshrrev_b32 {v6}, 5, v{VT+3}'); b.e(f'v_lshlrev_b32 {v6}, 6, {v6}')
    b.e(f'v_cndmask_b32 {v4}, {v4}, {v5}, vcc'); b.e(f'v_cndmask_b32 {v6}, {v6}, 0, vcc')
    b.e(f'v_mul_u32_u24 {v5}, 1152, {v4}'); b.e(f'v_add_u32 {v5}, {v5}, {v6}')
    b.e(f'v_bfe_u32 {v4}, {v4}, 2, 1'); b.e(f'v_lshlrev_b32 {v4}, 1, {v4}'); b.e(f'v_xor_b32 {v4}, {v4}, {v3}')
    b.e(f'v_lshl_add_u32 {v5}, {v4}, 4, {v5}')
    b.e('s_lshl_b32 s52, s100, 6'); b.e('s_lshl_b32 s54, s100, 8'); b.e('s_sub_u32 s54, 256, s54')
    b.e('s_cmp_eq_u32 s42, 7'); b.e('s_cselect_b32 s52, s54, s52')
    b.e(f'v_add_u32 v{VL}, s52, {v5}')
    for m in range(1, 4): b.e(f'v_add_u32 v{VL+m}, {m*(18432-1024)}, v{VL}')
    b.e(f'v_add_u32 v{VL+4}, {131072-2048}, v{VL16}')
    b.e(f'v_and_b32 v{VL+5}, 0x70, v{VL16}'); b.e(f'v_lshlrev_b32 v{VL+5}, 3, v{VL+5}')
    b.e('s_lshl_b32 s91, s42, 6')
    b.e(f'v_add_u32 v{VT}, s91, v{VT+3}')
    b.e(f'v_lshlrev_b32 v{VT}, 20, v{VT}')
    b.e(f'v_mov_b32 v{VT+1}, s97')
    b.e('s_waitcnt lgkmcnt(0)')
    b.wait_vm(('o',))
    b.e('s_barrier')
    b.e(f'buffer_store_dword v{VT+1}, v{VT}, {srd(S_F)}, s90 offen sc1', ('f1',))
    stamp(b, 5)
    b.e('s_cmp_eq_u32 s42, 6'); b.e('s_cbranch_scc1 OP_LW')
    b.e('s_cmp_eq_u32 s42, 7'); b.e('s_cbranch_scc1 OP_LO')
    b.e('s_bitcmp1_b32 12, s42'); b.e('s_cbranch_scc1 OP_BIG')

    def wo_off(x, U):
        head_of(x, U)
        x.e('s_mul_i32 s55, s55, 147456')
        if U % 2: x.e('s_add_u32 s55, s55, 73728')
    def wo_full(x, U):
        wo_off(x, U)
        for ty in range(4):
            x.e(f's_mov_b32 m0, {WOB + (U % NW_) * WS_ + ty * 4096}')
            x.e(f's_add_u32 s56, s55, {(ty % 2) * 9216 + (ty // 2) * 128}')
            for m in range(4):
                x.e(f'buffer_load_dwordx4 v{VL+m}, {srd(S_WO)}, s56 offen offset:{m*1024} lds', ('w', U))
    def wo_half(x, U):
        wo_off(x, U)
        x.e(f's_mov_b32 m0, {WOB + (U % NW_) * WS_ + 16384}')
        x.e('s_nop 0')
        for m in range(4):
            x.e(f'buffer_load_dwordx4 v{VL+m}, {srd(S_WO)}, s55 offen offset:{m*1024} lds', ('w', U))
    def o_unit(x, U):
        head_of(x, U)
        if U % 2 == 0:
            role.n += 1; l = f'HP{role.n}'
            x.e('s_bitcmp1_b32 s3, s55')
            x.e(f's_cbranch_scc0 {l}_GO')
            for t in ['s_mov_b32 s91, 0', f'{l}:', f'buffer_load_dword v{VL+6}, v{VL+5}, {srd(S_F)}, s99 offen sc1', 's_add_u32 s91, s91, 1',
                      's_waitcnt vmcnt(0)', f'v_cmp_ne_u32 vcc, s97, v{VL+6}', 's_nop 0', 's_mov_b32 s3, vcc_lo', 's_bitcmp1_b32 s3, s55',
                      f's_cbranch_scc0 {l}_GO', f's_sleep {SLEEP}', 's_cmp_lt_u32 s91, 0x40000', f's_cbranch_scc1 {l}']:
                i = I(t); i.roles = (); x.append(i)
            x.e(f'{l}_GO:')
        x.e('s_lshl_b32 s55, s55, 12')
        if U % 2: x.e('s_add_u32 s55, s55, 2048')
        for g in range(3):
            x.e(f's_mov_b32 m0, {(U % NO_) * OS_ + g * 4096}')
            x.e(f's_add_u32 s56, s55, {g * 262144}')
            for m in range(4):
                x.e(f'buffer_load_dwordx4 v{VL16 if m < 2 else VL+4}, {srd(S_OI)}, s56 offen offset:{m*1024} lds', ('o2', U))
    def vwait(x, *tags):
        n = [ctx.count_after('vm', t) for t in tags]
        n = [k for k in n if k is not None]
        if n: x.e(f's_waitcnt vmcnt({min(min(n), 47)})')
    snap = ctx.snap()
    lw = Block(ctx, 'lw'); ctx.active = list(LW)
    lw.e('OP_LW:')
    wo_full(lw, 0); wo_full(lw, 1)
    lw.e('s_waitcnt vmcnt(0)'); lw.e('s_barrier')
    for U in (2, 3, 4): wo_full(lw, U)
    lw.e('s_waitcnt vmcnt(47)'); wo_full(lw, 5)
    vwait(lw, ('w', 2))
    lw.e('s_barrier')
    wo_full(lw, 6)
    lw.e('s_waitcnt vmcnt(47)'); wo_full(lw, 7)
    for U in range(2, 16):
        if U < 15: vwait(lw, ('w', U + 1))
        lw.e('s_barrier')
        if U + NW_ < 16:
            if len(ctx.c[6].vm) > 47: lw.e('s_waitcnt vmcnt(47)')
            wo_full(lw, U + NW_)
    lw.e('s_barrier')
    lw.e('s_branch OP_DONE')
    lo = Block(ctx, 'lo'); ctx.active = list(LO)
    lo.e('OP_LO:')
    lo.e('s_mov_b32 s3, 0xff')
    wo_half(lo, 0); wo_half(lo, 1)
    lo.e('s_waitcnt vmcnt(0)'); lo.e('s_barrier')
    wo_half(lo, 2); wo_half(lo, 3)
    stamp(lo, 3, True)
    o_unit(lo, 2)
    wo_half(lo, 4); wo_half(lo, 5)
    vwait(lo, ('o2', 2)); lo.e('s_barrier')
    o_unit(lo, 3); o_unit(lo, 4); wo_half(lo, 6); wo_half(lo, 7)
    for U in range(2, 16):
        if U < 15: vwait(lo, ('o2', U + 1), ('w', U + 1))
        lo.e('s_barrier')
        if U + NO_ < 16: o_unit(lo, U + NO_)
        if U + NW_ < 16: wo_half(lo, U + NW_)
    lo.e('s_barrier')
    lo.e('s_branch OP_DONE')

    OWN = 0
    def compute(name, waves, NT):
        ctx.restore(snap); ctx.active = list(waves)
        c = Block(ctx, name); lp = Block(ctx, name + 'l'); e = Block(ctx, name + 'e')
        c.e(f'{name}:')
        SZ = 4 * (NT + 3)
        def fA(U, k, n): return FB + 2 * SZ * (U % 2) + SZ * k + 4 * n
        def fB(U, k, j): return FB + 2 * SZ * (U % 2) + SZ * k + 4 * NT + 4 * j
        def rd(U):
            r = []
            for k in range(2):
                r += [E(f'ds_read_b128 {q4(fB(U,k,j))}, v{VB} offset:{(2*j+k)*1024}', ('f', U)) for j in range(3)]
                for n in range(NT):
                    r += [E(f'ds_read_b64_tr_b16 {q2(fA(U,k,n)+2*u)}, v{VAP+n} offset:{k*2048 + u*1024}', ('f', U)) for u in range(2)]
            return r
        def adv(b):
            b.e(f's_cmp_ge_u32 s46, {(NW_-1)*WS_}'); b.e(f's_cselect_b32 s52, s54, s53'); b.e('s_add_u32 s46, s46, s52')
            for n in range(NT): b.e(f'v_add_u32 v{VAP+n}, s52, v{VAP+n}')
            b.e(f's_cmp_ge_u32 s45, {(NO_-1)*OS_}'); b.e(f's_cselect_b32 s52, s101, s100'); b.e('s_add_u32 s45, s45, s52')
            b.e(f'v_add_u32 v{VB}, s52, v{VB}')
        def mmu(U, first=False):
            return [E(f'{MF} {q4(12*n+4*j)}, {q4(fA(U,k,n))}, {q4(fB(U,k,j))}, {"0" if first and k == 0 else q4(12*n+4*j)}')
                    for k in range(2) for n in range(NT) for j in range(3)]
        c.e('s_mov_b32 s46, 0'); c.e(f's_mov_b32 s53, {WS_}'); c.e(f's_mov_b32 s54, {(-(NW_-1)*WS_) & 0xffffffff}')
        c.e('s_mov_b32 s45, 0'); c.e(f's_mov_b32 s100, {OS_}'); c.e(f's_mov_b32 s101, {(-(NO_-1)*OS_) & 0xffffffff}')
        c.e('s_mov_b32 s44, 0')
        if OWARM:
            c.e(f'v_lshrrev_b32 v{GS}, 5, v{VT+3}'); c.e(f'v_lshlrev_b32 v{GS}, 17, v{GS}')
            c.e(f'v_and_b32 v{GS+1}, 31, v{VT+3}'); c.e(f'v_lshl_add_u32 v{GS}, v{GS+1}, 7, v{GS}')
            c.e('s_lshl_b32 s55, s42, 18'); c.e('s_lshl_b32 s61, s41, 12'); c.e('s_add_u32 s55, s55, s61')
            if OWARM == 2: c.e(f'buffer_load_dword v{XF+3}, v{GS}, {srd(S_O)}, s55 offen', ('ow',))
        c.e('s_barrier')
        stamp(c, 6)
        if OWARM == 1: c.e(f'buffer_load_dword v{XF+3}, v{GS}, {srd(S_O)}, s55 offen', ('ow',))
        c.e(f's_add_u32 s{S_OUT}, s14, s6'); c.e(f's_addc_u32 s{S_OUT+1}, s15, 0')
        c.e(f's_sub_u32 s{S_OUT+2}, 1769472, s6'); c.e(f's_mov_b32 s{S_OUT+3}, 0x20000')
        run(c, rd(0)); adv(c)
        c.e('s_waitcnt lgkmcnt(0)')
        run(c, interleave(mmu(0, True), rd(1) + [adv], end=6 * NT - 2))
        c.e('s_waitcnt lgkmcnt(0)')
        run(c, mmu(1))
        c.e('s_barrier')
        stamp(c, 1, True)
        run(c, rd(0)); adv(c)
        def unit(x, U, extra=(), last=False):
            x.e('s_waitcnt lgkmcnt(0)')
            x.e('s_barrier')
            run(x, interleave(mmu(U), ([] if last else rd(U + 1) + [adv]) + list(extra), end=6 * NT - 2))
        lp.e(f'{name}_LOOP:')
        unit(lp, 0); unit(lp, 1)
        lp.e('s_add_u32 s44, s44, 1'); lp.e('s_cmp_lt_u32 s44, 6'); lp.e(f's_cbranch_scc1 {name}_LOOP')
        fin = []
        def P(*lines): fin.extend(E(l) for l in lines)
        X = GS
        P('s_mov_b32 s7, 288', 's_lshl_b32 s6, s42, 6', f'v_add_u32 v{X}, s6, v{VT+3}')
        P(f'v_cmp_gt_u32 s[8:9], s7, v{X}', f'v_subrev_u32 v{X+1}, 32, v{X}', f'v_mov_b32 v{X+7}, 0x40000000')
        P(f'v_cndmask_b32 v{X}, v{X+1}, v{X}, s[8:9]', f'v_lshrrev_b32 v{X+1}, 4, v{X}')
        P(f'v_and_b32 v{X+2}, 15, v{X}', f'v_lshlrev_b32 v{X+2}, 4, v{X+2}', f'v_lshl_add_u32 v{XF}, v{X+1}, 9, v{X+2}')
        P(f'v_mul_u32_u24 v{X+4}, 57, v{X+1}', f'v_lshrrev_b32 v{X+4}, 9, v{X+4}')
        P(f'v_mul_u32_u24 v{X+5}, 18, v{X+4}', f'v_add_u32 v{X+5}, v{X+5}, v{X+1}')
        P(f'v_lshl_add_u32 v{XF+1}, v{X+5}, 8, v{X+2}')
        P(f'v_mul_u32_u24 v{X+6}, 9, v{X+4}', f'v_sub_u32 v{X+1}, v{X+1}, v{X+6}')
        P(f'v_mul_u32_u24 v{X+4}, 48, v{X+4}', f'v_and_b32 v{X+6}, 3, v{X}', f'v_add_u32 v{X+4}, v{X+4}, v{X+6}')
        P(f'v_mul_u32_u24 v{X+4}, 1152, v{X+4}', f'v_lshl_add_u32 v{X+4}, v{X+1}, 5, v{X+4}')
        P(f'v_bfe_u32 v{X+6}, v{X}, 2, 2', f'v_lshl_add_u32 v{X+4}, v{X+6}, 3, v{X+4}')
        P(f'v_cndmask_b32 v{XF+2}, v{X+7}, v{X+4}, s[8:9]')
        for i in range(3): P(f's_add_u32 s{56+i}, s47, {i+1}', f's_and_b32 s{56+i}, s{56+i}, 3', f's_mul_i32 s{56+i}, s{56+i}, {INB}')
        P('s_mov_b32 s10, 18432', 's_mov_b32 s11, 36864', 's_mov_b32 s59, 0xffff0000')
        fin2 = []
        fin2.append(lambda b: [b.e(l) for l in (f'v_bfe_u32 v{VE+2}, v{VT+3}, 2, 2', f'v_cmp_eq_u32 vcc, s47, v{VE+2}', f'v_mov_b32 v{VE+2}, 0x40000000',
                    f'v_and_b32 v{VE}, 0xff, v{VT+2}', f'v_cndmask_b32 v{VT+2}, v{VT+2}, v{VE+2}, vcc', f'v_lshlrev_b32 v{VE+1}, 2, v{VT+3}',
                    f'v_add_u32 v{VE+1}, {OWN+16384}, v{VE+1}', f'v_add_u32 v{VE}, s5, v{VE}',
                    f'v_and_b32 v{VE+1}, 0xfffffff0, v{VE+1}', f'v_cndmask_b32 v{VE}, v{VE+1}, v{VE}, vcc')])
        fin2 += [E(f'v_mov_b32 v{GS+4*k+3}, s98') for k in range(2 * NT)]
        unit(e, 14, fin)
        e.e('s_waitcnt lgkmcnt(0)')
        e.e('s_barrier')
        m = mmu(15)
        def send(n):
            r = [E(f'v_cvt_pk_bf16_f32 v{GS + 8*n + 4*(x//3) + x%3}, v{12*n+2*x}, v{12*n+2*x+1}') for x in range(6)]
            r += [E(f'buffer_store_dwordx4 {q4(GS+8*n+4*hf)}, v{VT+2}, {srd(S_P)}, s4 offen offset:{n*512 + hf*256} sc1', ('p',)) for hf in range(2)]
            r += [E(f'ds_write_b128 v{VE}, {q4(12*n+4*j)} offset:{j*2304 + n*256}', ('own',)) for j in range(3)]
            return r
        for n in range(NT):
            grp = m[3 * n:3 * n + 3] + m[3 * NT + 3 * n:3 * NT + 3 * n + 3]
            run(e, interleave(grp, fin2 if n == 0 else (send(n - 2) if n >= 2 else [])))
        stamp(e, 7)
        if NT == 2: e.e('s_nop 1')
        run(e, send(NT - 2)); run(e, send(NT - 1))
        if name != 'OP_BIG': e.e('s_branch OP_FIN')
        return c, lp, e
    sm = compute('OP_SML', SML, 2)
    bg = compute('OP_BIG', BIG, 5)
    ctx.active = list(BIG + SML)
    e = Block(ctx, 'op_end')
    e.e('OP_FIN:')
    e.e('s_waitcnt lgkmcnt(0)')
    e.e('s_barrier')
    stamp(e, 8)
    e.e('s_cmp_ge_u32 s42, 5')
    e.e('s_cbranch_scc1 OP_DONE')
    R0 = 168; OW = 64; X = 128
    for j in range(3): e.e(f'ds_read_b128 {q4(OW+4*j)}, v{XF+1} offset:{j*2304}', ('ow',))
    loads = '\n'.join(f'buffer_load_dwordx4 {q4(R0+8*src+4*hf)}, v{XF}, {srd(S_PI)}, s{56+src} offen offset:{hf*256} sc1' for src in range(3) for hf in range(2))
    chk = [f'v_xor_b32 v{X+6}, s98, v{R0+3}']
    for k in range(1, 6):
        chk += [f'v_xor_b32 v{X+7}, s98, v{R0+4*k+3}', f'v_or_b32 v{X+6}, v{X+6}, v{X+7}']
    chk.append(f'v_cmp_ne_u32 vcc, 0, v{X+6}')
    poll(e, 'OP_P2', loads, '\n'.join(chk))
    stamp(e, 9)
    e.e(f'buffer_store_dword v{VT+1}, v{VT}, {srd(S_F)}, s96 offen sc1', ('ep',))
    e.e('s_waitcnt lgkmcnt(0)')
    so = ['0', 's10', 's11']
    for j in range(3):
        for p in range(2):
            x = 2 * j + p
            for src in range(3):
                r = R0 + 8 * src + 4 * (x // 3) + x % 3
                e.e(f'v_lshlrev_b32 v{X+6}, 16, v{r}'); e.e(f'v_and_b32 v{X+7}, s59, v{r}')
                e.e(f'v_add_f32 v{OW+2*x}, v{OW+2*x}, v{X+6}'); e.e(f'v_add_f32 v{OW+2*x+1}, v{OW+2*x+1}, v{X+7}')
            e.e(f'v_cvt_pk_bf16_f32 v{OW+16+x}, v{OW+2*x}, v{OW+2*x+1}')
        e.e(f'buffer_store_dwordx2 {q2(OW+16+2*j)}, v{XF+2}, {srd(S_OUT)}, {so[j]} offen {OPT.get("outpol", "")}')
    ctx.active = ALLW
    e.e('OP_DONE:')
    if STAMP:
        if not OPT.get('rt4'): stamp(e, 10)
        dump_stamps(e)
    e.e('K1_END:')
    e.e('s_endpgm')
    traces = {}
    for w in SML: traces[w] = [b, sm[0], sm[1], sm[1], sm[2], e]
    for w in BIG: traces[w] = [b, bg[0], bg[1], bg[1], bg[2], e]
    traces[6] = [b, lw]; traces[7] = [b, lo]
    TXN = OPT.get('tx', '')
    if TXN:
        def after_c(blk):
            n = 0; out = []
            for i in blk:
                if i.kind == 'barrier': n += 1
                drop = n >= 2 and getattr(i, 'sub', '') == 'dma' and (TXN == 'none' or (TXN == 'noo' and 's[24:27]' in i.text) or (TXN == 'nowo' and 's[20:23]' in i.text))
                if not drop: out.append(i)
            blk[:] = out
        after_c(lw); after_c(lo); after_c(sm[0])
        if TXN in ('none', 'nowo'):
            for blk in sm[1:]: blk[:] = [i for i in blk if getattr(i, 'sub', '') != 'dma']
    return [b] + list(sm) + list(bg) + [e, lw, lo], traces

def kernel1():
    ctx = MCtx(8)
    pro = k1_prologue(ctx)
    qp = k1_qproj(ctx)
    ap = k1_att_prologue(ctx)
    p1 = pv_phase(ctx, 'P1', SA, SB, head=lambda a: a.e('K1_LOOP:'), dma=guarded(dma_v, 0) if LEAD == 6 else dma_v)
    SK2 = int(OPT.get('sk2', 2))
    p2 = qk_phase(ctx, 'P2', SA, SB, guarded(dma_k, 0) if KVREG else dma_k)
    p3 = pv_phase(ctx, 'P3', SB, SA, dma=guarded(dma_v, SK2) if KVREG == 1 else dma_v)
    p4 = qk_phase(ctx, 'P4', SB, SA, guarded(dma_k, SK2) if KVREG == 1 else dma_k)
    p4[2].e('s_add_u32 s44, s44, 1')
    p4[2].e('s_cmp_lt_u32 s44, 7')
    p4[2].e('s_cbranch_scc1 K1_LOOP')
    def warm(b):
        b.e(f'v_lshrrev_b32 v{KR}, 6, v{VL16}'); b.e(f'v_mul_u32_u24 v{KR}, 1152, v{KR}')
        b.e(f'v_and_b32 v{KR+1}, 48, v{VL16}'); b.e(f'v_lshlrev_b32 v{KR+1}, 3, v{KR+1}'); b.e(f'v_min_u32 v{KR+1}, 316, v{KR+1}')
        b.e(f'v_add_u32 v{KR}, v{KR}, v{KR+1}')
        b.e(f'buffer_load_dword v{SA+23}, v{KR}, s[28:31], 0 offen', ('warm',))
    l1 = pv_phase(ctx, 'L1', SA, SB, nextK=False, dma=warm if (FUSED and WARM) else None, split=LSPLIT)
    l2 = Block(ctx, 'L2')
    l2.e(f's_waitcnt vmcnt({1 if WARM else 0})')
    l2.e('s_barrier')
    if OPT.get('l2s'): stamp(l2, 2)
    for r in (A, B):
        with role(l2, r):
            for k in range(4): vread_as(l2, order_of(r)[k], k)
    l2.e('s_mul_i32 s43, s42, 12288'); l2.e('s_xor_b32 s46, s42, 4'); l2.e('s_mul_i32 s46, s46, 12288')
    l2.e(f's_add_u32 s43, s43, {EXB}'); l2.e(f's_add_u32 s46, s46, {EXB}')
    l2.e(f'v_add_u32 v{XA}, s43, v{VL16}'); l2.e(f'v_add_u32 v{XA+1}, s46, v{VL16}')
    run(l2, sm_fillers(SB)[LSPLIT:] + chk_fillers())
    l2.e('s_cbranch_vccnz L2_RARE')
    l2r = rare_path(ctx, 'L2', SB, None, 2)
    l3 = last_pv(ctx)
    ep = k1_epilogue(ctx)
    errs = []
    body = [p1, p2[0], p2[2], p3, p4[0], p4[2]]
    bodyr = [p1, p2[0], p2[1], p2[2], p3, p4[0], p4[1], p4[2]]
    last = [l1, l2, l3, ep]
    lastr = [l1, l2, l2r, l3, ep]
    tail, ttr = oproj(ctx)
    for r in ALLW:
        errs += check_trace([pro, qp, ap] + body + body + last + ttr[r], f'main{r}', r)
        errs += check_trace([pro, qp, ap] + bodyr + bodyr + body + lastr, f'rare{r}', r)
    if NOCOMP:
        for blk in body:
            keep = [i for i in blk if i.kind not in ('mfma', 'valu', 'trans') and not (NOCOMP > 1 and i.kind == 'ds') and 'vccnz' not in i.text]
            blk[:] = keep
        errs = []
    DROP = OPT.get('drop', '')
    if DROP:
        D = DROP.split(',')
        def dropit(i):
            t = i.text
            if 'vccnz' in t: return True
            if 'exp' in D and t.startswith('v_exp'): return True
            if 'add' in D and t.startswith('v_add_f32'): return True
            if 'cvt' in D and t.startswith('v_cvt'): return True
            if 'ds' in D and i.kind == 'ds': return True
            if 'wait' in D and i.kind == 'wait': return True
            if 'bar' in D and i.kind == 'barrier': return True
            if 'adv' in D and (t.startswith('v_add_u32') or t.startswith('s_cmp_ge') or t.startswith('s_cselect') or t.startswith('s_add_u32 s45') or t.startswith('s_add_u32 s46')): return True
            if 'mfma' in D and i.kind == 'mfma': return True
            return False
        for blk in body: blk[:] = [i for i in blk if not dropit(i)]
        errs = []
    order = [pro, qp, ap] + body + last + tail + [p2[1], p4[1], l2r]
    return order, errs

def kernel2():
    ctx = MCtx(8)
    b = Block(ctx, 'k2')
    b.e('s_cmp_ge_u32 s2, 256')
    b.e('s_cbranch_scc1 K2_END')
    b.e('s_load_dwordx8 s[12:19], s[0:1], 32')
    if STAMP:
        for i in range(6): b.e(f's_memtime s[{64+2*i}:{65+2*i}]')
        b.e('s_memrealtime s[86:87]')
    b.e('v_lshrrev_b32 v1, 6, v0')
    b.e('v_and_b32 v0, 63, v0')
    b.e('v_readfirstlane_b32 s42, v1')
    b.e('s_and_b32 s43, s2, 7'); b.e('s_lshr_b32 s44, s2, 3')
    b.e('s_and_b32 s40, s43, 1'); b.e('s_lshl_b32 s40, s40, 2'); b.e('s_and_b32 s45, s44, 3'); b.e('s_add_u32 s40, s40, s45')
    b.e('s_lshr_b32 s41, s43, 1'); b.e('s_lshl_b32 s41, s41, 3'); b.e('s_lshr_b32 s46, s44, 2'); b.e('s_add_u32 s41, s41, s46')
    b.e(f'v_lshlrev_b32 v{VL16}, 4, v0')
    b.e('s_waitcnt lgkmcnt(0)')
    flag_srd(b)
    epoch_load(b, 222)
    b.e('s_waitcnt vmcnt(0)')
    epoch_tags(b, 222)
    run(b, tail_setup())
    t = oproj(ctx)
    errs = []
    for r in ALLW: errs += check_trace([b, t[0], t[1], t[1], t[2], t[2], t[3]], f'k2_{r}', r)
    return [b] + list(t), errs

HEADER = open('standalone__mha_block_cached__near_ridge.s.ref').read().split('; Override')[0]

def kd(name, vgpr, sgpr=96):
    return f'''.amdhsa_kernel {name}
  .amdhsa_next_free_vgpr {vgpr}
  .amdhsa_next_free_sgpr {sgpr}
  .amdhsa_accum_offset {(vgpr+3)//4*4}
  .amdhsa_group_segment_fixed_size 0
  .amdhsa_kernarg_size 64
  .amdhsa_user_sgpr_count 2
  .amdhsa_user_sgpr_kernarg_segment_ptr 1
  .amdhsa_system_sgpr_workgroup_id_x 1
.end_amdhsa_kernel
'''

def main():
    k1, e1 = kernel1()
    k2, e2 = kernel2() if not FUSED else ([], [])
    for e in list(dict.fromkeys(x.split('] ', 1)[1] for x in e1 + e2))[:12]: print('CHECK', e, file=sys.stderr)
    out = HEADER
    if FUSED:
        N = 'standalone__mha_block_cached__near_ridge_kernel'
        out += f'; @launch grid=(256,1,1) block=(512,1,1) lds={LDS_TOT}\n'
        ks = [(N, k1)]
    else:
        out += f'; @launch kernel=mha_attn_kernel grid=(256,1,1) block=(512,1,1) lds={LDS_TOT}\n'
        out += f'; @launch kernel=mha_oproj_kernel grid=(256,1,1) block=(512,1,1) lds={LDS_TOT}\n'
        ks = [('mha_attn_kernel', k1), ('mha_oproj_kernel', k2)]
    out += '.amdgcn_target "amdgcn-amd-amdhsa--gfx950"\n.text\n'
    for name, blocks in ks:
        out += f'.globl {name}\n.p2align 8\n.type {name},@function\n{name}:\n'
        out += '\n'.join(b.text() for b in blocks) + '\n'
    out += '.section .rodata,"a"\n'
    for name, _ in ks: out += '.p2align 6\n' + kd(name, 256, 102)
    open(sys.argv[1], 'w').write(out)
    if e1 or e2: sys.exit(1)
main()
```

```python
import sys, struct, math
from asmlib import *

OPT = dict(a.split('=') for a in sys.argv[2:] if '=' in a)
STAMP = int(OPT.get('stamp', 0))
KVPOL = OPT.get('kvpol', 'nt')
XPOL = OPT.get('xpol', '')
WPOL = OPT.get('wpol', '')
OSTPOL = OPT.get('ostpol', 'sc1' if OPT.get('fused', '1') == '1' else '')
OLDPOL = OPT.get('oldpol', '')
WOPOL = OPT.get('wopol', '')
THR = float(OPT.get('thr', 2048.0))
NOBARQK = int(OPT.get('nobarqk', 1))
SKIPT = int(OPT.get('skipt', 0))
STAG = int(OPT.get('stag', 0))
ROT = int(OPT.get('rot', 1))
ROT2 = int(OPT.get('rot2', 1))
SM_SPLIT = int(OPT.get('split', 24))
CHK_AT = int(OPT.get('chk', 8))
PRIO = int(OPT.get('prio', 0))
K2D = int(OPT.get('k2d', 4))
NODMA = int(OPT.get('nodma', 0))
NOCOMP = int(OPT.get('nocomp', 0))
NOKVQ = int(OPT.get('nokvq', 0))
FUSED = int(OPT.get('fused', 1))
OLD2 = OPT.get('old2', 'sc1')
SLEEP = int(OPT.get('sleep', 1))
F1POL = OPT.get('f1pol', 'sc1')
WOPRE = int(OPT.get('wopre', 5))
TOUCH = int(OPT.get('touch', 0))
WOEARLY = int(OPT.get('woearly', 0))
WARM = int(OPT.get('warm', 1))
FAST = int(OPT.get('fast', 0))
PAIRW = int(OPT.get('pairw', 1))
KVREG = int(OPT.get('kvreg', 0))
KV1 = int(OPT.get('kv1', 1))
NC = int(OPT.get('nc', 1))
EARLY = int(OPT.get('early', 0))
ORD = int(OPT.get('ord', 1))
LSPLIT = int(OPT.get('lsplit', 57))
LEAD = int(OPT.get('lead', 6))
OWARM = int(OPT.get('owarm', 0))
NOX = int(OPT.get('nox', 0))
NOWQ = int(OPT.get('nowq', 0))
MAP = OPT.get('map', '4x8')
KVSCHED = [int(x) for x in OPT.get('kvs', '0,2,3,5,6,8,9,11,12,14').split(',') if x]

def f2u(f): return struct.unpack('<I', struct.pack('<f', f))[0]
SCALE = math.log2(math.e) / math.sqrt(128.0)
MF = 'v_mfma_f32_16x16x32_bf16'
def q4(n): return f'v[{n}:{n+3}]'
def q2(n): return f'v[{n}:{n+1}]'

ACC = 0; QF = 96; SA = 144; SB = 168; KR = 192; VR = 208; NEGM = 224
TMP = 236; VK = 248; VVE = 249; VVO = 250; LS = 251; VL16 = 254; VKV = 255
RING = 10; CH = 16384; LDS_TOT = RING * CH
QB = 114688
SLOT = 40960
S_K, S_V, S_X, S_WQ, S_O = 20, 24, 28, 32, 36
FS = 96
VXD = 208; VWD = 211; VXR = 213; VAE = 215; VAO = 217; VQE = 219; VQO = 220; VQR = 221; VKW = 244
def srd(n): return f's[{n}:{n+3}]'
def acc(t, jt): return ACC + 12 * t + 4 * jt
def qf(s, jt): return QF + 12 * s + 4 * jt
def st(S, kt, jt): return S + 12 * kt + 4 * jt
ALLW = list(range(8))
A, B = (0, 1, 2, 3), (4, 5, 6, 7)

TST = int(OPT.get('tst', 0))
def stamp(b, idx, fine=False, it=False):
    if TST == 2:
        if it or idx in (0, 4): b.e(f's_memtime s[{64+2*idx}:{65+2*idx}]')
        return
    if it: return
    if TST and idx in (1, 2, 3) and not fine: return
    if fine and not TST: return
    if STAMP: b.e(f's_memtime s[{64+2*idx}:{65+2*idx}]')

class role:
    n = 0
    def __init__(self, b, waves): self.b, self.w = b, list(waves)
    def __enter__(self):
        role.n += 1; self.l = f'RL{role.n}'
        self.b.e(f's_bitcmp1_b32 {sum(1 << w for w in self.w)}, s42')
        self.b.e(f's_cbranch_scc0 {self.l}')
        self.b.ctx.active = self.w
    def __exit__(self, *a):
        self.b.ctx.active = ALLW
        self.b.e(f'{self.l}:')

def E(text, tag=None): return lambda b: b.e(text, tag)
def run(b, lst):
    for f in lst: f(b)

def chunk_of(n):
    if n == 0: return ('K', 0)
    if n % 2 == 1: return ('K', (n + 1) // 2)
    return ('V', (n - 2) // 2)

def k1_prologue(ctx):
    b = Block(ctx, 'k1_pro')
    b.e('s_cmp_ge_u32 s2, 256')
    b.e('s_cbranch_scc1 K1_END')
    b.e('s_load_dwordx8 s[4:11], s[0:1], 0')
    b.e('s_load_dwordx8 s[12:19], s[0:1], 32')
    if STAMP:
        b.e('s_memtime s[64:65]')
        b.e('s_memrealtime s[86:87]')
    b.e('v_lshrrev_b32 v1, 6, v0')
    b.e('v_and_b32 v0, 63, v0')
    b.e('v_readfirstlane_b32 s42, v1')
    b.e('s_and_b32 s43, s2, 7')
    b.e('s_lshr_b32 s44, s2, 3')
    nb = int(MAP.split('x')[0]); lb = nb.bit_length() - 1
    nh = 32 // nb; xb = 8 // nb
    b.e(f's_and_b32 s40, s43, {xb - 1}')
    b.e(f's_lshl_b32 s40, s40, {lb}')
    b.e(f's_and_b32 s45, s44, {nb - 1}')
    b.e('s_add_u32 s40, s40, s45')
    b.e(f's_lshr_b32 s41, s43, {xb.bit_length() - 1}')
    b.e(f's_lshl_b32 s41, s41, {nh.bit_length() - 1}')
    b.e(f's_lshr_b32 s46, s44, {lb}')
    b.e('s_add_u32 s41, s41, s46')
    m = max(nb, nh)
    b.e(f's_mul_i32 s45, s45, {32 // nb}')
    b.e(f's_mul_i32 s46, s46, {32 // nh}')
    b.e('s_add_u32 s45, s45, s46')
    b.e('s_and_b32 s45, s45, 31')
    b.e(f's_mul_i32 s45, s45, {9 - NC}')
    b.e('s_lshr_b32 s45, s45, 5')
    b.e(f's_add_u32 s45, s45, {NC}')
    b.e('s_lshl_b32 s100, s45, 7')
    b.e('s_lshl_b32 s101, s45, 19')
    b.e('s_mov_b32 s57, 0' if NC else 's_mov_b32 s57, s100')
    b.e('s_mov_b32 s58, 0' if NC else 's_mov_b32 s58, s101')
    b.e('s_lshl_b32 s45, s40, 5')
    b.e('s_add_u32 s45, s45, s41')
    b.e('s_lshl_b32 s45, s45, 18')
    b.e('s_mul_i32 s46, s40, 221184')
    b.e('s_lshl_b32 s47, s41, 8')
    b.e('s_mul_i32 s48, s40, 1572864')
    b.e('s_and_b32 s53, s42, 3')
    b.e('s_lshr_b32 s54, s42, 2')
    b.e('v_bfe_u32 v4, v0, 2, 3')
    b.e('v_lshrrev_b32 v5, 5, v0')
    b.e('v_and_b32 v3, 3, v0')
    b.e('v_lshrrev_b32 v7, 2, v4')
    b.e('v_lshlrev_b32 v8, 1, v7')
    b.e('v_xor_b32 v6, v3, v8')
    b.e('v_lshlrev_b32 v6, 4, v6')
    b.e('v_lshl_add_u32 v6, v5, 6, v6')
    b.e('s_lshr_b32 s43, s53, 1')
    b.e('s_and_b32 s44, s42, 1')
    b.e('v_and_b32 v9, 3, v4')
    b.e('v_lshl_add_u32 v9, v7, 3, v9')
    b.e('s_lshl_b32 s55, s43, 4')
    b.e('s_lshl_b32 s62, s54, 2')
    b.e('s_add_u32 s55, s55, s62')
    b.e('v_add_u32 v9, s55, v9')
    b.e('v_lshl_add_u32 v9, v9, 13, v6')
    b.e('s_lshl_b32 s55, s44, 7')
    b.e(f'v_add_u32 v{VWD}, s55, v9')
    b.e(f'v_add_u32 v{VWD+1}, {32*8192-1024}, v{VWD}')
    b.e('s_lshl_b32 s60, s42, 11')
    b.e('s_mul_i32 s63, s42, 3')
    for i in range(3):
        b.e(f's_add_u32 s62, s63, {i}')
        b.e('s_and_b32 s56, s62, 1')
        b.e('s_lshl_b32 s56, s56, 3')
        b.e('s_add_u32 s56, s56, 12')
        b.e('s_lshr_b32 s62, s62, 1')
        b.e('s_lshl_b32 s62, s62, 4')
        b.e('v_add_u32 v9, s56, v4')
        b.e('v_and_b32 v9, 15, v9')
        b.e('v_add_u32 v9, s62, v9')
        b.e('v_mul_u32_u24 v9, 1152, v9')
        b.e('v_add_u32 v9, v9, v6')
        if i: b.e(f'v_subrev_u32 v{VXD+i}, {i*1024}, v9')
        else: b.e(f'v_mov_b32 v{VXD}, v9')
    b.e('s_lshl_b32 s59, s63, 10')
    b.e('s_add_u32 s59, s59, 16384')
    b.e('s_waitcnt lgkmcnt(0)')
    b.e(f's_add_u32 s{S_X}, s4, s46');  b.e(f's_addc_u32 s{S_X+1}, s5, 0')
    b.e(f's_mov_b32 s{S_X+2}, 221184'); b.e(f's_mov_b32 s{S_X+3}, 0x20000')
    b.e(f's_add_u32 s{S_WQ}, s10, s47'); b.e(f's_addc_u32 s{S_WQ+1}, s11, 0')
    b.e(f's_sub_u32 s{S_WQ+2}, 4718592, s47'); b.e(f's_mov_b32 s{S_WQ+3}, 0x20000')
    b.e(f's_add_u32 s{S_K}, s6, s45');  b.e(f's_addc_u32 s{S_K+1}, s7, 0')
    b.e(f's_mov_b32 s{S_K+2}, 262144'); b.e(f's_mov_b32 s{S_K+3}, 0x20000')
    b.e(f's_add_u32 s{S_V}, s8, s45');  b.e(f's_addc_u32 s{S_V+1}, s9, 0')
    b.e(f's_mov_b32 s{S_V+2}, 262144'); b.e(f's_mov_b32 s{S_V+3}, 0x20000')
    b.e(f's_add_u32 s{S_O}, s18, s48'); b.e(f's_addc_u32 s{S_O+1}, s19, 0')
    b.e(f's_mov_b32 s{S_O+2}, 1572864'); b.e(f's_mov_b32 s{S_O+3}, 0x20000')
    return b

RC = 1
def slot(n): return ((n + RC) % RING) * CH

def qslot(D): return ((D + 3) % 4) * SLOT

def qnext(b, D):
    if D + 1 == NC:
        b.e('s_mov_b32 s57, s100'); b.e('s_mov_b32 s58, s101')
    else:
        b.e('s_cmp_eq_u32 s61, 1152')
        b.e(f's_cselect_b32 s57, {NC*128}, s61')
        b.e(f's_cselect_b32 s58, {NC*524288}, s58')

def qdma_parts(D):
    P = []
    P.append(lambda b: (b.e(f's_add_u32 m0, s60, {qslot(D)}'), b.e('s_add_u32 s61, s57, 128'),
                        b.e(f'buffer_load_dwordx4 v{VWD}, {srd(S_WQ)}, s58 offen {WPOL} lds', ('q', D))))
    P.append(lambda b: (b.e(f'buffer_load_dwordx4 v{VWD+1}, {srd(S_WQ)}, s58 offen offset:1024 {WPOL} lds', ('q', D)),
                        b.e(f's_add_u32 m0, s59, {qslot(D)}'), b.e('s_add_u32 s58, s58, 524288')))
    for i in range(2): P.append(E(f'buffer_load_dwordx4 v{VXD+i}, {srd(S_X)}, s57 offen offset:{i*1024} {XPOL} lds', ('q', D)))
    P.append(lambda b: (b.e(f'buffer_load_dwordx4 v{VXD+2}, {srd(S_X)}, s57 offen offset:2048 {XPOL} lds', ('q', D)),
                        qnext(b, D)))
    return P

def qdma(b, D):
    b.e(f's_add_u32 m0, s60, {qslot(D)}')
    b.e('s_add_u32 s61, s57, 128')
    for h in range(0 if NOWQ else 2):
        b.e(f'buffer_load_dwordx4 v{VWD+h}, {srd(S_WQ)}, s58 offen offset:{h*1024} {WPOL} lds', ('q', D))
    b.e(f's_add_u32 m0, s59, {qslot(D)}')
    b.e('s_add_u32 s58, s58, 524288')
    for i in range(0 if NOX else 3):
        b.e(f'buffer_load_dwordx4 v{VXD+i}, {srd(S_X)}, s57 offen offset:{i*1024} {XPOL} lds', ('q', D))
    qnext(b, D)

def kvpair_static(b, n):
    c = chunk_of(n)
    S = S_K if c[0] == 'K' else S_V
    b.e(f's_add_u32 m0, s52, {slot(n)}')
    b.e(f's_mov_b32 s56, {c[1] * CH}')
    b.e(f'buffer_load_dwordx4 v{VKV}, {srd(S)}, s56 offen {KVPOL} lds', ('kv', n))
    b.e(f'buffer_load_dwordx4 v{VKV}, {srd(S)}, s56 offen offset:2048 {KVPOL} lds', ('kv', n))

POFF = 0x2000000; FOFF = 0x3000000; INB = 9216
S_F = 92
def flag_srd(b):
    b.e(f's_add_u32 s{S_F}, s18, {FOFF}'); b.e(f's_addc_u32 s{S_F+1}, s19, 0')
    b.e(f's_mov_b32 s{S_F+2}, {32768+1024}'); b.e(f's_mov_b32 s{S_F+3}, 0x20000')
    b.e('s_lshl_b32 s90, s40, 5'); b.e('s_add_u32 s90, s90, s41'); b.e('s_lshl_b32 s90, s90, 7')
    b.e('s_lshl_b32 s96, s40, 7'); b.e('s_add_u32 s96, s96, 32768')

def epoch_load(b, v):
    b.e(f'v_mov_b32 v{v}, 0')
    b.e(f'buffer_load_dword v{v+1}, v{v}, {srd(S_F)}, s96 offen sc1', ('ep',))

def epoch_tags(b, v):
    b.e(f'v_readfirstlane_b32 s97, v{v+1}')
    b.e('s_nop 0')
    b.e('s_mul_i32 s97, s97, 0x9e3779b1')
    b.e('s_add_u32 s97, s97, 0x7f4a7c15')
    b.e('s_xor_b32 s98, s97, 0x80000000')

def one_lane(b, v):
    b.e(f's_lshl_b32 s91, s42, 6')
    b.e(f'v_add_u32 v{v}, s91, v0')
    b.e(f'v_lshlrev_b32 v{v}, 20, v{v}')

def kvreg_of(n): return 48 + 8 * n if n < 6 else 224 + 8 * (n - 6)
def kv_to_regs(b, n):
    c = chunk_of(n)
    S = S_K if c[0] == 'K' else S_V
    r = kvreg_of(n)
    b.e(f's_mov_b32 s56, {c[1] * CH}')
    b.e(f'buffer_load_dwordx4 {q4(r)}, v{VKV}, {srd(S)}, s56 offen {KVPOL}', ('kv', n))
    b.e(f'buffer_load_dwordx4 {q4(r+4)}, v{VKV}, {srd(S)}, s56 offen offset:2048 {KVPOL}', ('kv', n))
def kv_to_lds(n):
    r = kvreg_of(n)
    o = slot(n) % 65536
    v = VKW + slot(n) // 65536
    return [lambda b: (b.wait_vm(('kv', n)), b.e(f'ds_write_b128 v{v}, {q4(r)} offset:{o}', ('kw',))),
            E(f'ds_write_b128 v{v}, {q4(r+4)} offset:{o+2048}', ('kw',))]

def k1_qproj(ctx):
    b = Block(ctx, 'qproj')
    flag_srd(b)
    qdma(b, 0)
    b.e('v_lshl_add_u32 v9, v4, 8, v6')
    b.e('s_lshl_b32 s46, s43, 12')
    b.e('s_lshl_b32 s47, s54, 13')
    b.e('s_add_u32 s46, s46, s47')
    b.e('s_add_u32 s45, s55, s46')
    b.e(f'v_add_u32 v{VKV}, s45, v9')
    b.e('s_lshl_b32 s47, s44, 10')
    b.e('s_add_u32 s52, s46, s47')
    qdma(b, 1)
    b.e('v_lshrrev_b32 v10, 4, v0')
    b.e('v_and_b32 v6, 15, v0')
    b.e('v_lshrrev_b32 v7, 2, v6')
    b.e('v_and_b32 v8, 1, v10')
    b.e('v_lshl_add_u32 v5, v8, 2, v7')
    b.e('v_lshlrev_b32 v5, 6, v5')
    b.e('v_lshl_add_u32 v5, v8, 5, v5')
    b.e('v_lshl_add_u32 v5, v3, 3, v5')
    b.e('v_lshrrev_b32 v9, 1, v10')
    b.e('v_lshl_add_u32 v5, v9, 12, v5')
    b.e('s_lshl_b32 s45, s54, 11')
    b.e(f'v_add_u32 v{VAE}, s45, v5')
    b.e(f'v_add_u32 v{VAE+1}, {2*SLOT}, v{VAE}')
    b.e(f'v_xor_b32 v{VAO}, 32, v{VAE}')
    b.e(f'v_xor_b32 v{VAO+1}, 32, v{VAE+1}')
    b.e('v_add_u32 v5, 4, v6')
    b.e('v_bfe_u32 v11, v5, 3, 1')
    b.e('v_and_b32 v12, 7, v5')
    b.e('v_lshrrev_b32 v13, 2, v12')
    b.e('v_lshlrev_b32 v13, 1, v13')
    b.e('v_lshlrev_b32 v14, 6, v12')
    b.e('v_xor_b32 v15, v13, v10')
    b.e('v_lshl_add_u32 v15, v15, 4, v14')
    b.e('s_mul_i32 s46, s53, 6144')
    b.e('s_add_u32 s46, s46, 16384')
    b.e('v_lshl_add_u32 v5, v11, 10, v15')
    b.e(f'v_add_u32 v{VXR}, s46, v5')
    b.e(f'v_add_u32 v{VXR+1}, {2*SLOT}, v{VXR}')
    b.e('v_lshl_add_u32 v15, v11, 11, v15')
    b.e('v_lshl_add_u32 v14, v11, 11, v14')
    b.e('s_lshl_b32 s47, s54, 13')
    b.e(f'v_add_u32 v{VK}, s47, v15')
    b.e(f'v_add_u32 v{VK}, {slot(0)}, v{VK}')
    b.e('s_mul_i32 s46, s53, 12288')
    b.e(f's_add_u32 s46, s46, {QB}')
    b.e(f'v_add_u32 v{VQR}, s46, v15')
    b.e('v_xor_b32 v15, v13, v9')
    b.e('v_lshl_add_u32 v15, v15, 4, v14')
    b.e('v_lshl_add_u32 v15, v8, 3, v15')
    b.e('s_lshl_b32 s45, s54, 10')
    b.e('s_add_u32 s46, s46, s45')
    b.e(f'v_add_u32 v{VQE}, s46, v15')
    b.e(f'v_xor_b32 v{VQO}, 32, v{VQE}')
    b.e('v_add_u32 v5, 1, v10')
    b.e('v_bfe_u32 v11, v5, 1, 1')
    b.e('v_and_b32 v12, 1, v5')
    b.e('v_lshl_add_u32 v13, v12, 2, v7')
    b.e('v_lshlrev_b32 v13, 6, v13')
    b.e('v_lshl_add_u32 v13, v12, 5, v13')
    b.e('v_lshl_add_u32 v13, v3, 3, v13')
    b.e('v_lshl_add_u32 v13, v11, 11, v13')
    b.e(f's_add_u32 s47, s47, {slot(2)}')
    b.e(f'v_add_u32 v{VVE}, s47, v13')
    b.e(f'v_xor_b32 v{VVO}, 32, v{VVE}')
    b.e(f'v_lshlrev_b32 v{VL16}, 4, v0')
    b.e(f'v_add_u32 v{VKW}, s52, v{VL16}')
    b.e(f'v_add_u32 v{VKW+1}, 65536, v{VKW}')
    b.e(f'v_add_u32 v{VKW+2}, 131072, v{VKW}')
    b.e(f's_mov_b32 s48, {hex(f2u(SCALE))}')
    b.e(f's_mov_b32 s50, {(2*CH - LDS_TOT) & 0xffffffff}')
    b.e(f's_mov_b32 s51, {2*CH}')
    b.e(f's_mov_b32 s46, {slot(2)}')
    def fA(D, h, tt): return FS + 56 * (D % 2) + 28 * h + 4 * tt
    def fB(D, h, jt): return FS + 56 * (D % 2) + 28 * h + 16 + 4 * jt
    def reads(D):
        sl = ((D + 3) % 4); hi = sl // 2; o = (sl % 2) * SLOT
        r = []
        for h in range(2):
            for jt in range(3):
                r.append(E(f'ds_read_b128 {q4(fB(D,h,jt))}, v{VXR+hi} offset:{o + jt*2048 + h*512}', ('f', D)))
            for tt in range(4):
                for u in range(2):
                    r.append(E(f'ds_read_b64_tr_b16 {q2(fA(D,h,tt)+2*u)}, v{(VAO if tt%2 else VAE)+hi} offset:{o + u*8192 + h*1024 + (tt//2)*512}', ('f', D)))
        return r
    zero = [E(f'v_mov_b32 v{i}, 0') for i in range(48, 96)] + [E(f'v_mov_b32 v{LS+i}, 0') for i in range(3)]
    b.wait_vm(('q', 0))
    b.e('s_barrier')
    stamp(b, 1)
    run(b, reads(0))
    qdma(b, 2)
    issue = {0: [3, 4], 1: [5], 2: [6], 3: [7], 4: [8]}
    kvi = {5: [0], 6: [1, 2], 7: [3], 8: [4]}
    kvr = {}; kvw = {}
    if KVREG == 2:
        kvr = {4: [0, 1], 5: [2]}; kvw = {6: [0, 1, 2]}; kvi = {6: [3], 7: [4], 8: [5]}
    if KVREG == 3:
        kvr = {4: [0], 5: [1]}; kvw = {6: [0, 1]}; kvi = {6: [2, 3], 7: [4], 8: [5]}
    if KVREG == 1:
        kvi = {}
        kvr = {KV1 + i: [i] for i in range(6)} if KV1 + 5 <= 6 else {2: [0], 3: [1], 4: [2], 5: [3], 6: [4, 5]}
        kvr[7] = [6]; kvr[8] = [7]
        kvw = {6: [0, 1, 2, 3], 7: [4, 5]}
    for D in range(9):
        b.e('s_waitcnt lgkmcnt(0)')
        if D + 1 < 9: b.wait_vm(('q', D + 1))
        b.e('s_barrier')
        dm = [(lambda b, x=x: qdma(b, x)) for x in issue.get(D, [])] + [(lambda b, x=x: kvpair_static(b, x)) for x in kvi.get(D, [])]
        if D == 5: dm.insert(0, lambda b: epoch_load(b, 222))
        dm += [(lambda b, x=x: kv_to_regs(b, x)) for x in kvr.get(D, [])]
        wr = sum((kv_to_lds(x) for x in kvw.get(D, [])), [])
        if KVREG >= 2: zs = zero[24 + 5 * D:29 + 5 * D] if D < 6 else {7: zero[:24]}.get(D, [])
        elif KVREG: zs = {7: zero[:32] + zero[48:], 8: zero[32:48]}.get(D, [])
        else: zs = zero[7 * D:7 * D + 7]
        mf = []
        if D < 8:
            for h in range(2):
                for tt in range(4):
                    for jt in range(3):
                        d = q4(acc(tt, jt))
                        mf.append(E(f'{MF} {d}, {q4(fA(D,h,tt))}, {q4(fB(D,h,jt))}, {"0" if D == 0 and h == 0 else d}'))
            rd = reads(D + 1)
            fill = []
            QS = int(OPT.get('qs', 1))
            if QS:
                dm = sum((qdma_parts(x) for x in issue.get(D, [])), []) + dm[len(issue.get(D, [])):]
                step = max(1, len(rd) // max(1, len(dm)))
                lastkv = [dm.pop()] if (KVREG == 3 and D == 4) else []
                step = max(1, (len(rd) - 6 * len(lastkv)) // max(1, len(dm)))
                for k, x in enumerate(rd):
                    fill.append(x)
                    if dm and k % step == step - 1: fill.append(dm.pop(0))
                fill += dm + lastkv; dm = []
            for k, x in enumerate(rd if not QS else []):
                fill.append(x)
                if dm and k % 6 == 1: fill.append(dm.pop(0))
            assert not dm
            run(b, interleave(mf, wr + fill + zs, end=int(OPT.get('qe', 21)) + (2 if len(zs) > 8 else 0)))
        else:
            tiles = [(tt, jt) for tt in range(4) for jt in range(3)]
            def conv(tt, jt):
                a = acc(tt, jt)
                return [E(f'v_mul_f32 v{a+i}, s48, v{a+i}') for i in range(4)] + [
                    E(f'v_cvt_pk_bf16_f32 v{a}, v{a}, v{a+1}'), E(f'v_cvt_pk_bf16_f32 v{a+1}, v{a+2}, v{a+3}'),
                    E(f'ds_write_b64 v{VQO if tt%2 else VQE}, {q2(a)} offset:{jt*4096 + (tt//2)*512}', ('qw',))]
            LAG = 3
            run(b, dm)
            run(b, zs)
            for k, (tt, jt) in enumerate(tiles):
                d = q4(acc(tt, jt))
                cv = conv(*tiles[k - LAG]) if k >= LAG else []
                if k == LAG: b.e('s_nop 2')
                b.e(f'{MF} {d}, {q4(fA(D,0,tt))}, {q4(fB(D,0,jt))}, {d}')
                run(b, cv[:3])
                b.e(f'{MF} {d}, {q4(fA(D,1,tt))}, {q4(fB(D,1,jt))}, {d}')
                run(b, cv[3:])
            stamp(b, 2)
            for k in range(12 - LAG, 12):
                if k == 11: b.e('s_nop 0')
                run(b, conv(*tiles[k]))
    b.e('s_waitcnt lgkmcnt(0)')
    b.wait_vm(('kv', 1))
    b.wait_vm(('ep',))
    epoch_tags(b, 222)
    b.e('s_barrier')
    if not KVREG: kvpair_static(b, 5)
    for s in range(4):
        for jt in range(3):
            b.e(f'ds_read_b128 {q4(qf(s,jt))}, v{VQR} offset:{jt*4096 + (s//2)*1024 + (s%2)*512}', ('qr', s))
    return b

def kread(b, f):
    kt, s = f // 4, f % 4
    b.e(f'ds_read_b128 {q4(KR+4*(f%4))}, v{VK} offset:{kt*4096 + (s//2)*1024 + (s%2)*512}', ('k', f))
def vread(b, t):
    tau = t // 2
    a = VVO if t % 2 else VVE
    for u in range(2):
        b.e(f'ds_read_b64_tr_b16 {q2(VR+4*(t%4)+2*u)}, v{a} offset:{u*4096 + (tau//2)*1024 + (tau%2)*512}', ('v', t))
def kadv(b, first=False):
    if first:
        b.e(f'v_add_u32 v{VK}, {CH}, v{VK}')
        b.e(f's_mov_b32 s45, {slot(1)}')
        return
    b.e(f's_cmp_ge_u32 s45, {LDS_TOT - 2*CH}')
    b.e(f's_cselect_b32 s47, s50, s51')
    b.e(f's_add_u32 s45, s45, s47')
    b.e(f'v_add_u32 v{VK}, s47, v{VK}')
def vadv(b):
    b.e(f's_cmp_ge_u32 s46, {LDS_TOT - 2*CH}')
    b.e(f's_cselect_b32 s47, s50, s51')
    b.e(f's_add_u32 s46, s46, s47')
    b.e(f'v_add_u32 v{VVE}, s47, v{VVE}')
    b.e(f'v_add_u32 v{VVO}, s47, v{VVO}')


def dma_k(b):
    b.e('s_mov_b32 m0, s57')
    b.e(f's_cmp_ge_u32 s57, s61')
    b.e(f'buffer_load_dwordx4 v{VKV}, {srd(S_K)}, s59 offen {KVPOL} lds', ('kd',))
    b.e(f'buffer_load_dwordx4 v{VKV}, {srd(S_K)}, s59 offen offset:2048 {KVPOL} lds', ('kd',))
    b.e('s_cselect_b32 s62, s50, s51')
    b.e('s_add_u32 s57, s57, s62')
    b.e(f's_add_u32 s59, s59, {CH}')
def dma_v(b):
    b.e('s_mov_b32 m0, s58')
    b.e(f's_cmp_ge_u32 s58, s61')
    b.e(f'buffer_load_dwordx4 v{VKV}, {srd(S_V)}, s60 offen {KVPOL} lds', ('vd',))
    b.e(f'buffer_load_dwordx4 v{VKV}, {srd(S_V)}, s60 offen offset:2048 {KVPOL} lds', ('vd',))
    b.e('s_cselect_b32 s62, s50, s51')
    b.e('s_add_u32 s58, s58, s62')
    b.e(f's_add_u32 s60, s60, {CH}')

PS = TMP + 8

def guarded(fn, T):
    def g(b):
        if T is None: return fn(b)
        role.n += 1; l = f'SK{role.n}'
        b.e(f's_cmp_eq_u32 s44, {T}')
        b.e(f's_cbranch_scc1 {l}')
        fn(b)
        b.e(f'{l}:')
    return g

def qk_backbone(S, cinit, nextV=True, first=False, qwait=False, dma=None):
    bb = []
    for f in range(8):
        kt, s = f // 4, f % 4
        for jt in range(3):
            def slot(b, f=f, kt=kt, s=s, jt=jt):
                if jt == 0:
                    if qwait and f < 4: b.wait_lgkm(('qr', s))
                    if not PAIRW: b.wait_lgkm(('k', f))
                    elif PAIRW == 2 and f == 0: b.wait_lgkm(('k', 3))
                    elif f % 2 == 0: b.wait_lgkm(('k', f + 1)); b.wait_lgkm(('k', f))
                d = q4(st(S, kt, jt))
                c = d if s else (q4(NEGM + 4 * jt) if cinit == 'negm' else '0')
                b.e(f'{MF} {d}, {q4(KR+4*(f%4))}, {q4(qf(s,jt))}, {c}')
                if jt == 2:
                    if f < 4: kread(b, f + 4)
                    if f == 3: kadv(b, first)
                    if f >= 4:
                        if nextV == 'K': kread(b, f - 4)
                        elif nextV: vread(b, f - 4)
                if dma and not NODMA and f == 0 and jt == 1: dma(b)
            bb.append(slot)
    return bb

def pv_backbone(P, nextK=True, dma=None, adv=True):
    bb = []
    for t in range(8):
        for jt in range(3):
            def slot(b, t=t, jt=jt):
                if jt == 0:
                    if not PAIRW: b.wait_lgkm(('v', t))
                    elif PAIRW == 2 and t == 0: b.wait_lgkm(('v', 3))
                    elif t % 2 == 0: b.wait_lgkm(('v', t + 1)); b.wait_lgkm(('v', t))
                d = q4(acc(t, jt))
                b.e(f'{MF} {d}, {q4(VR+4*(t%4))}, {q4(st(P,0,jt))}, {d}')
                if jt == 2:
                    if t < 4: vread(b, t + 4)
                    if t == 3 and adv: vadv(b)
                    if t >= 4 and nextK: kread(b, t - 4)
                if dma and not NODMA and t == 0 and jt == 1: dma(b)
            bb.append(slot)
    return bb

def sregs(S, jt): return [st(S, 0, jt) + i for i in range(4)] + [st(S, 1, jt) + i for i in range(4)]

def sm_fillers(S):
    fl = []
    for kt in range(2):
        for jt in range(3):
            r = sregs(S, jt)
            o = 4 * kt
            fl.append(E(f'v_exp_f32 v{r[o]}, v{r[o]}'))
            fl.append(E(f'v_exp_f32 v{r[o+1]}, v{r[o+1]}'))
            if kt: fl.append(E(f'v_add_f32 v{PS+jt}, v{PS+jt}, v{r[o]}'))
            fl.append(E(f'v_exp_f32 v{r[o+2]}, v{r[o+2]}'))
            if kt: fl.append(E(f'v_add_f32 v{PS+jt}, v{PS+jt}, v{r[o+1]}'))
            else: fl.append(E(f'v_add_f32 v{PS+jt}, v{r[0]}, v{r[1]}'))
            fl.append(E(f'v_exp_f32 v{r[o+3]}, v{r[o+3]}'))
            fl.append(E(f'v_add_f32 v{PS+jt}, v{PS+jt}, v{r[o+2]}'))
            fl.append(E(f'v_cvt_pk_bf16_f32 v{r[2*kt]}, v{r[o]}, v{r[o+1]}'))
            fl.append(E(f'v_add_f32 v{PS+jt}, v{PS+jt}, v{r[o+3]}'))
            fl.append(E(f'v_cvt_pk_bf16_f32 v{r[2*kt+1]}, v{r[o+2]}, v{r[o+3]}'))
    return fl

def chk_fillers():
    return [E(f'v_max3_f32 v{TMP}, v{PS}, v{PS+1}, v{PS+2}'), E(f'v_cmp_nle_f32 vcc, v{TMP}, v{TMP+11}')]
def ladd_fillers():
    return [E(f'v_add_f32 v{LS+jt}, v{LS+jt}, v{PS+jt}') for jt in range(3)]

def xreduce3(regs, tmps, op):
    fl = []
    for sw in ('v_permlane32_swap_b32', 'v_permlane16_swap_b32'):
        for r, t in zip(regs, tmps): fl.append(E(f'v_mov_b32 v{t}, v{r}'))
        for r, t in zip(regs, tmps): fl.append(E(f'{sw} v{r}, v{t}'))
        for r, t in zip(regs, tmps): fl.append(E(f'{op} v{r}, v{r}, v{t}'))
    return fl

MX = [TMP + 1, TMP + 2, TMP + 3]; MT = [TMP + 4, TMP + 5, TMP + 6]
def rowmax3(S):
    fl = []
    R = [sregs(S, jt) for jt in range(3)]
    for jt in range(3): fl.append(E(f'v_max3_f32 v{MX[jt]}, v{R[jt][0]}, v{R[jt][1]}, v{R[jt][2]}'))
    for jt in range(3): fl.append(E(f'v_max3_f32 v{MX[jt]}, v{MX[jt]}, v{R[jt][3]}, v{R[jt][4]}'))
    for jt in range(3): fl.append(E(f'v_max3_f32 v{MX[jt]}, v{MX[jt]}, v{R[jt][5]}, v{R[jt][6]}'))
    for jt in range(3): fl.append(E(f'v_max_f32 v{MX[jt]}, v{MX[jt]}, v{R[jt][7]}'))
    return fl + xreduce3(MX, MT, 'v_max_f32')

def rare_path(ctx, name, Y, X, back):
    snap = ctx.snap()
    r = Block(ctx, name + 'r')
    r.e(f'{name}_RARE:')
    r.e(f's_cmp_ge_u32 s45, {back*CH}')
    r.e(f's_cselect_b32 s47, 0, {LDS_TOT}')
    r.e(f's_sub_u32 s47, s47, {back*CH}')
    r.e(f'v_add_u32 v{TMP+7}, s47, v{VK}')
    for kt in range(2):
        for s in range(4):
            r.e(f'ds_read_b128 {q4(KR+4*s)}, v{TMP+7} offset:{kt*4096 + (s//2)*1024 + (s%2)*512}', ('rk',))
        r.e('s_waitcnt lgkmcnt(0)')
        for s in range(4):
            for jt in range(3):
                d = q4(st(Y, kt, jt))
                r.e(f'{MF} {d}, {q4(KR+4*s)}, {q4(qf(s,jt))}, {d if s else q4(NEGM+4*jt)}')
    r.e('s_nop 7')
    run(r, rowmax3(Y))
    for jt in range(3): r.e(f'v_max_f32 v{MX[jt]}, 0, v{MX[jt]}')
    for jt in range(3): r.e(f'v_exp_f32 v{MT[jt]}, -v{MX[jt]}')
    for jt in range(3):
        for q in sregs(Y, jt) + (sregs(X, jt) if X else []) + [NEGM + 4 * jt + i for i in range(4)]:
            r.e(f'v_sub_f32 v{q}, v{q}, v{MX[jt]}')
        r.e(f'v_mul_f32 v{LS+jt}, v{LS+jt}, v{MT[jt]}')
        for t in range(8):
            for i in range(4): r.e(f'v_mul_f32 v{acc(t,jt)+i}, v{acc(t,jt)+i}, v{MT[jt]}')
    run(r, sm_fillers(Y))
    r.e('s_nop 1')
    r.e(f's_branch {name}_JOIN')
    ctx.restore(snap)
    return r

def k1_att_prologue(ctx):
    b = Block(ctx, 'att_pro')
    for f in range(4): kread(b, f)
    nk, nv = {0: (7, 8), 1: (11, 10), 2: (9, 8), 3: (9, 8)}[KVREG]
    if LEAD == 8: nk, nv = 9, 8
    b.e(f's_add_u32 s57, s52, {slot(nk)}')
    b.e(f's_add_u32 s58, s52, {slot(nv)}')
    b.e(f's_mov_b32 s59, {chunk_of(nk)[1]*CH}')
    b.e(f's_mov_b32 s60, {chunk_of(nv)[1]*CH}')
    b.e(f's_add_u32 s61, s52, {LDS_TOT - 2*CH}')
    b.e(f'v_mov_b32 v{TMP+11}, {hex(f2u(THR))}')
    if FUSED and WARM:
        b.e('s_lshr_b32 s55, s41, 3'); b.e('s_mul_i32 s55, s55, 1179648')
        b.e('s_and_b32 s56, s41, 3'); b.e('s_mul_i32 s62, s56, 288'); b.e('s_add_u32 s55, s55, s62')
        b.e('s_and_b32 s62, s41, 1'); b.e('s_lshl_b32 s62, s62, 5'); b.e('s_sub_u32 s55, s55, s62')
        b.e('s_lshl_b32 s56, s56, 1'); b.e('s_and_b32 s62, s41, 4'); b.e('s_add_u32 s56, s56, s62')
        b.e('s_and_b32 s62, s40, 3'); b.e('s_add_u32 s56, s56, s62'); b.e('s_and_b32 s56, s56, 7')
        b.e('s_mul_i32 s56, s56, 147456'); b.e('s_add_u32 s55, s55, s56')
        b.e('s_mul_i32 s56, s42, 18432'); b.e('s_add_u32 s55, s55, s56')
        b.e('s_add_u32 s28, s12, s55'); b.e('s_addc_u32 s29, s13, 0')
        b.e('s_sub_u32 s30, 4718592, s55'); b.e('s_mov_b32 s31, 0x20000')
    zero = [E(f'v_mov_b32 v{ACC+i}, 0') for i in range(48)]
    run(b, interleave(qk_backbone(SA, '0', nextV='K', first=True, qwait=True), zero))
    b.wait_vm(('kv', 2))
    b.e('s_barrier')
    if KVREG >= 2:
        kvpair_static(b, 6)
        kvpair_static(b, 7)
    elif KVREG:
        kvpair_static(b, 8)
        kvpair_static(b, 9)
        run(b, kv_to_lds(7)[:1] + kv_to_lds(7)[1:] + kv_to_lds(6))
    else:
        kvpair_static(b, 6)
        if LEAD == 8: kvpair_static(b, 7)
    if TOUCH:
        b.e(f'v_lshlrev_b32 v{TMP+7}, {12 if TOUCH == 1 else 17}, v{VL16}')
        b.e('s_mov_b32 s100, 0x20000')
        for base, size, off in ((12, 4718592, 0), (18, 0x1000000, 0), (18, 0x1000000, 0x400000), (18, 0x1000000, 0x800000), (18, 0x3000000, 0x2000000), (18, 0x3000000, 0x2400000), (18, 0x3000000, 0x2800000), (18, 0x3000000, 0x2c00000), (14, 1769472, 0)):
            b.e(f's_mov_b32 s28, s{base}'); b.e(f's_mov_b32 s29, s{base+1}'); b.e(f's_mov_b32 s30, {size}'); b.e('s_mov_b32 s31, 0x20000')
            b.e(f's_mov_b32 s56, {off}')
            b.e(f'buffer_load_dword v{TMP}, v{TMP+7}, s[28:31], s56 offen', ('touch',))
        b.e('s_waitcnt vmcnt(0)')
    run(b, rowmax3(SA))
    for jt in range(3):
        for i in range(4): b.e(f'v_sub_f32 v{NEGM+4*jt+i}, 0, v{MX[jt]}')
    sub = [E(f'v_sub_f32 v{r}, v{r}, v{MX[jt]}') for kt in range(2) for jt in range(3) for r in sregs(SA, jt)[4*kt:4*kt+4]]
    run(b, interleave(qk_backbone(SB, 'negm', nextV=True), sub + sm_fillers(SA)))
    b.e('s_mov_b32 s44, 0')
    if PRIO:
        b.e('s_cmp_ge_u32 s42, 4'); b.e('s_cbranch_scc0 NOPRIO'); b.e('s_setprio 1'); b.e('NOPRIO:')
    stamp(b, 3)
    return b

def winter(backbone, fillers, start, end):
    if not int(OPT.get('cw', 0)): return interleave(backbone, fillers, start, end)
    class Probe:
        def e(self, t, tag=None): self.t = t
    w = []
    for f in fillers:
        p = Probe(); p.t = ''
        try: f(p)
        except Exception: pass
        w.append(2 if p.t.startswith('v_exp') else 1)
    tot = sum(w); n = len(backbone); span = end - start
    out = []; k = 0; acc_ = 0
    for i in range(n):
        out.append(backbone[i])
        if start <= i < end:
            tgt = tot * (i - start + 1) / span
            while k < len(fillers) and acc_ + w[k] / 2 <= tgt:
                out.append(fillers[k]); acc_ += w[k]; k += 1
    return out + fillers[k:]

def pv_phase(ctx, name, P, S, nextK=True, head=None, dma=None, vmw=4, bar=True, extra=(), split=None):
    a = Block(ctx, name)
    if head: head(a)
    if bar:
        a.e(f's_waitcnt vmcnt({(2 if NOBARQK else vmw) + 2 * (LEAD - 6)})')
        a.e('s_barrier')
    fl = ladd_fillers() + (sm_fillers(S)[:split or SM_SPLIT] if S else []) + list(extra)
    run(a, winter(pv_backbone(P, nextK, dma, adv=bar), fl, int(OPT.get('pvs', 2)), 24))
    return a

def qk_phase(ctx, name, D, S, dma):
    b = Block(ctx, name)
    if not NOBARQK:
        b.e('s_waitcnt vmcnt(4)')
        b.e('s_barrier')
    run(b, winter(qk_backbone(D, 'negm', dma=dma), sm_fillers(S)[SM_SPLIT:] + chk_fillers(), 0, 23))
    b.e(f's_cbranch_vccnz {name}_RARE')
    r = rare_path(ctx, name, S, D, 4)
    j = Block(ctx, name + 'j'); j.e(f'{name}_JOIN:')
    return b, r, j

def pol_store(b, text, tag):
    b.e(text + ' sc1', tag)

EXB = 4 * CH
MLB = 24576
def k1_epilogue(ctx):
    b = Block(ctx, 'epi')
    stamp(b, 4)
    if STAMP and OPT.get('rt4'): b.e('s_memrealtime s[84:85]')
    run(b, xreduce3([LS, LS + 1, LS + 2], MT, 'v_add_f32'))
    b.e('s_mul_i32 s43, s42, 12288')
    b.e('s_xor_b32 s46, s42, 4')
    b.e('s_mul_i32 s45, s46, 12288')
    b.e(f's_add_u32 s43, s43, {EXB}')
    b.e(f's_add_u32 s45, s45, {EXB}')
    b.e(f'v_add_u32 v{VK}, s43, v{VL16}')
    b.e(f'v_add_u32 v{VVE}, s45, v{VL16}')
    b.e(f'v_lshrrev_b32 v{VVO}, 1, v{VL16}')
    b.e('s_mul_i32 s43, s42, 1536')
    b.e('s_mul_i32 s45, s46, 1536')
    b.e(f's_add_u32 s43, s43, {MLB}')
    b.e(f's_add_u32 s45, s45, {MLB}')
    b.e(f'v_add_u32 v{VKV}, s43, v{VVO}')
    b.e(f'v_add_u32 v{VVO}, s45, v{VVO}')
    for jt in range(3):
        b.e(f'v_mov_b32 v{NEGM+4*jt+1}, v{LS+jt}')
    for jt in range(3):
        b.e(f'ds_write_b64 v{VKV}, {q2(NEGM+4*jt)} offset:{jt*512}', ('x',))
    b.e('s_and_b32 s43, s42, 3')
    b.e('s_mul_i32 s43, s43, 393216')
    b.e('s_lshl_b32 s45, s41, 12')
    b.e('s_add_u32 s43, s43, s45')
    b.e('s_lshl_b32 s45, s54, 11')
    b.e('s_add_u32 s43, s43, s45')
    b.e('s_add_u32 s45, s43, 131072')
    b.e('s_add_u32 s46, s43, 262144')
    so = ['s43', 's45', 's46']
    for r in (A, B):
        with role(b, r):
            send = range(4, 8) if r == A else range(0, 4)
            for i, t in enumerate(send):
                for jt in range(3):
                    b.e(f'ds_write_b128 v{VK}, {q4(acc(t,jt))} offset:{(3*i+jt)*1024}', ('x',))
    b.e('s_waitcnt lgkmcnt(0)')
    b.e('s_barrier')
    RX = QF
    ML = SA
    for jt in range(3):
        b.e(f'ds_read_b64 {q2(ML+2*jt)}, v{VVO} offset:{jt*512}', ('ml',))
    for i in range(12):
        b.e(f'ds_read_b128 {q4(RX+4*i)}, v{VVE} offset:{i*1024}', ('rx', i))
    b.wait_lgkm(('ml',))
    C = SA + 8
    T = [TMP, TMP + 4, TMP + 8]
    def each(f):
        for jt in range(3): b.e(f(jt, NEGM + 4 * jt, NEGM + 4 * jt + 1, ML + 2 * jt, ML + 2 * jt + 1, T[jt]))
    each(lambda jt, no, lo, np_, lp, t: f'v_min_f32 v{t}, v{no}, v{np_}')
    each(lambda jt, no, lo, np_, lp, t: f'v_sub_f32 v{t+1}, v{t}, v{no}')
    each(lambda jt, no, lo, np_, lp, t: f'v_sub_f32 v{t+2}, v{t}, v{np_}')
    each(lambda jt, no, lo, np_, lp, t: f'v_exp_f32 v{t+1}, v{t+1}')
    each(lambda jt, no, lo, np_, lp, t: f'v_exp_f32 v{t+2}, v{t+2}')
    each(lambda jt, no, lo, np_, lp, t: f'v_mul_f32 v{t+3}, v{t+1}, v{lo}')
    each(lambda jt, no, lo, np_, lp, t: f'v_fmac_f32 v{t+3}, v{t+2}, v{lp}')
    each(lambda jt, no, lo, np_, lp, t: f'v_rcp_f32 v{t+3}, v{t+3}')
    b.e('s_nop 0')
    for x, src in ((0, 1), (1, 1), (2, 2), (3, 2)):
        each(lambda jt, no, lo, np_, lp, t: f'v_mul_f32 v{C+4*jt+x}, v{t+src}, v{t+3}')
    OUT = SB
    snap = ctx.snap()
    for r in (A, B):
        with role(b, r):
            keep = range(0, 4) if r == A else range(4, 8)
            for sp in range(2):
                for jt in range(3):
                    o = OUT + 4 * (3 * sp + jt)
                    for h in range(2):
                        i = 2 * sp + h
                        a = acc(keep[i], jt); x = RX + 4 * (3 * i + jt)
                        b.wait_lgkm(('rx', 3 * i + jt))
                        b.e(f'v_pk_mul_f32 {q2(a)}, {q2(a)}, {q2(C+4*jt)}')
                        b.e(f'v_pk_mul_f32 {q2(a+2)}, {q2(a+2)}, {q2(C+4*jt)}')
                        b.e(f'v_pk_fma_f32 {q2(a)}, {q2(x)}, {q2(C+4*jt+2)}, {q2(a)}')
                        b.e(f'v_pk_fma_f32 {q2(a+2)}, {q2(x+2)}, {q2(C+4*jt+2)}, {q2(a+2)}')
                        b.e(f'v_cvt_pk_bf16_f32 v{o+2*h}, v{a}, v{a+1}')
                        b.e(f'v_cvt_pk_bf16_f32 v{o+2*h+1}, v{a+2}, v{a+3}')
                    pol_store(b, f'buffer_store_dwordx4 {q4(o)}, v{VL16}, {srd(S_O)}, {so[jt]} offen offset:{sp*1024}', ('o',))
    if FUSED:
        b.e('s_bfe_u32 s43, s42, 0x10001')
        b.e('s_cmp_eq_u32 s43, s49')
        b.e('s_cbranch_scc0 OWN_SKIP')
        b.e('s_and_b32 s43, s42, 1'); b.e('s_mul_i32 s43, s43, 6144')
        b.e(f's_mul_i32 s45, s54, {OS_}'); b.e('s_add_u32 s43, s43, s45')
        b.e(f'v_add_u32 v{VK}, s43, v{VL16}')
        for sp in range(2):
            for jt in range(3):
                b.e(f'ds_write_b128 v{VK}, {q4(OUT + 4 * (3 * sp + jt))} offset:{(2*jt+sp)*1024}', ('oo',))
        b.e('OWN_SKIP:')
    if not FUSED:
        if STAMP:
            b.e('s_waitcnt vmcnt(0)')
            stamp(b, 5)
            dump_stamps(b)
        b.e('K1_END:')
        b.e('s_endpgm')
    return b

def dump_stamps(b):
    b.e('s_memrealtime s[88:89]')
    b.e('s_waitcnt lgkmcnt(0)')
    if STAMP == 2:
        b.e(f's_cmp_eq_u32 s2, {int(OPT.get("dbgwg", 0))}'); b.e('s_cbranch_scc0 DBG_SKIP')
        b.e('s_cmp_eq_u32 s42, 2'); b.e('s_cbranch_scc0 DBG_SKIP')
        b.e('s_mov_b32 s56, s16'); b.e('s_mov_b32 s57, s17'); b.e('s_mov_b32 s58, 256'); b.e('s_mov_b32 s59, 0x20000')
        b.e('v_mov_b32 v1, 0')
        for i in range(1, 11):
            b.e(f's_sub_u32 s43, s{64+2*i}, s64'); b.e('v_mov_b32 v2, s43')
            b.e(f'buffer_store_dword v2, v1, s[56:59], 0 offen offset:{4*i}')
            b.e('s_waitcnt vmcnt(0)')
        b.e('s_sub_u32 s43, s88, s86'); b.e('v_mov_b32 v2, s43')
        b.e('buffer_store_dword v2, v1, s[56:59], 0 offen offset:44')
        b.e('s_waitcnt vmcnt(0)')
        b.e('DBG_SKIP:')
        return
    b.e('s_lshl_b32 s43, s2, 3'); b.e('s_add_u32 s43, s43, s42'); b.e('s_lshl_b32 s43, s43, 7')
    b.e('s_add_u32 s43, s43, 0x1000000')
    b.e('s_add_u32 s56, s18, s43'); b.e('s_addc_u32 s57, s19, 0'); b.e('s_mov_b32 s58, 128'); b.e('s_mov_b32 s59, 0x20000')
    b.e('v_mov_b32 v1, 0')
    for i in range(13):
        b.e(f'v_mov_b32 v2, s{64+2*i}'); b.e(f'v_mov_b32 v3, s{65+2*i}')
        b.e(f'buffer_store_dwordx2 v[2:3], v1, s[56:59], 0 offen offset:{8*i}')
        b.e('s_waitcnt vmcnt(0)')

def poll(b, name, load, notyet):
    b.e('s_mov_b32 s91, 0')
    b.e(f'{name}:')
    b.e(load)
    b.e('s_add_u32 s91, s91, 1')
    b.e('s_waitcnt vmcnt(0)')
    b.e(notyet)
    b.e('s_cmp_lt_u32 s91, 0x40000')
    b.e(f's_cbranch_vccz {name}_GO')
    b.e(f's_sleep {SLEEP}')
    b.e(f's_cbranch_scc1 {name}')
    b.e(f'{name}_GO:')

BIG, SML, LW, LO = (2, 3), (0, 1, 4, 5), (6,), (7,)
S_WO, S_OI, S_P, S_PI, S_OUT = 20, 24, 28, 32, 36
VAP = 192; VB = 197; VT = 198; VE = 202; GS = 208; XF = 248
WS_ = 20480; NW_ = 6; OS_ = 12288; NO_ = 3; WOB = NO_ * OS_

def tail_setup():
    P = []
    def piece(*lines): P.append(lambda b: [b.e(l) for l in lines])
    piece('s_lshr_b32 s47, s41, 3', 's_and_b32 s48, s41, 7')
    piece('s_lshr_b32 s49, s48, 2', 's_and_b32 s50, s48, 3')
    piece('s_and_b32 s51, s50, 1', 's_mul_i32 s55, s47, 1179648')
    piece('s_mul_i32 s61, s50, 288', 's_add_u32 s55, s55, s61')
    piece('s_lshl_b32 s61, s51, 5', 's_sub_u32 s55, s55, s61')
    piece('s_mul_i32 s61, s40, 1572864', 's_mul_i32 s100, s49, 786432')
    piece('s_add_u32 s61, s61, s100', 's_lshl_b32 s100, s47, 15')
    piece('s_add_u32 s61, s61, s100', f's_sub_u32 s{S_WO+2}, 4718592, s55')
    piece(f's_add_u32 s{S_WO}, s12, s55', f's_addc_u32 s{S_WO+1}, s13, 0')
    piece(f's_add_u32 s{S_OI}, s18, s61', f's_addc_u32 s{S_OI+1}, s19, 0')
    piece(f's_mov_b32 s{S_WO+3}, 0x20000', f's_mov_b32 s{S_OI+2}, {5*131072 + 32768}', f's_mov_b32 s{S_OI+3}, 0x20000')
    piece('s_lshl_b32 s52, s40, 3', 's_add_u32 s52, s52, s48')
    piece(f's_mul_i32 s52, s52, {16*INB}', f's_add_u32 s52, s52, {POFF}')
    piece(f's_mul_i32 s61, s47, {INB}', 's_add_u32 s61, s61, s52')
    piece(f's_add_u32 s{S_P}, s18, s61', f's_addc_u32 s{S_P+1}, s19, 0')
    piece(f's_mov_b32 s{S_P+2}, {13*INB}', f's_mov_b32 s{S_P+3}, 0x20000')
    piece(f's_mul_i32 s61, s47, {4*INB}', 's_add_u32 s61, s61, s52')
    piece(f's_add_u32 s{S_PI}, s18, s61', f's_addc_u32 s{S_PI+1}, s19, 0')
    piece(f's_mov_b32 s{S_PI+2}, {4*INB}', f's_mov_b32 s{S_PI+3}, 0x20000')
    piece('s_mul_i32 s52, s40, 192', 's_mul_i32 s61, s49, 96')
    piece('s_add_u32 s52, s52, s61', 's_lshl_b32 s61, s47, 2')
    piece('s_add_u32 s52, s52, s61', 's_mul_i32 s52, s52, 1152')
    piece('s_mul_i32 s61, s50, 288', 's_add_u32 s6, s52, s61')
    piece('s_lshr_b32 s100, s50, 1', 's_and_b32 s99, s90, 0xfffffc00')
    return P

def head_of(b, U):
    G = U // 2
    b.e(f's_add_u32 s55, s48, {G >> 1}'); b.e('s_and_b32 s55, s55, 3')
    b.e(f's_xor_b32 s61, s48, {(G & 1) << 2}'); b.e('s_and_b32 s61, s61, 4'); b.e('s_or_b32 s55, s55, s61')

def oproj(ctx):
    FB = 64
    b = Block(ctx, 'op_pre')
    stamp(b, 2, True)
    b.e(f'v_lshrrev_b32 v{VT+3}, 4, v{VL16}')
    T0 = 216
    v3, v4, v5, v6, v7 = (f'v{T0+i}' for i in range(5))
    VL = 224
    b.e(f'v_and_b32 {v3}, 3, v{VT+3}')
    with role(b, BIG + SML):
        b.e('s_and_b32 s43, s42, 1')
        b.e('s_cmp_lt_u32 s42, 2'); b.e('s_cselect_b32 s45, 5, 0')
        b.e('s_cmp_ge_u32 s42, 4'); b.e('s_cselect_b32 s45, 7, s45')
        b.e(f'v_lshrrev_b32 {v4}, 4, v{VT+3}'); b.e(f'v_bfe_u32 {v5}, v{VT+3}, 2, 4')
        b.e(f'v_and_b32 {v7}, 7, {v5}'); b.e(f'v_lshlrev_b32 {v7}, 6, {v7}'); b.e(f'v_lshlrev_b32 {v5}, 6, {v5}')
        b.e(f'v_and_b32 {v6}, 1, {v4}'); b.e(f'v_lshlrev_b32 {v6}, 5, {v6}'); b.e(f'v_lshl_add_u32 {v6}, {v3}, 3, {v6}')
        b.e(f'v_add_u32 {v5}, {v5}, {v6}'); b.e(f'v_add_u32 {v7}, {v7}, {v6}')
        b.e(f'v_lshrrev_b32 {v6}, 1, {v4}'); b.e(f'v_lshl_add_u32 {v7}, {v6}, 12, {v7}')
        b.e('s_add_u32 s101, s45, s51')
        for n in range(5):
            b.e(f's_add_u32 s52, s101, {n}')
            b.e('s_and_b32 s91, s52, 1'); b.e('s_lshl_b32 s91, s91, 5')
            b.e('s_lshr_b32 s52, s52, 1'); b.e('s_sub_u32 s52, s52, s100')
            b.e('s_and_b32 s54, s52, 1'); b.e('s_lshl_b32 s54, s54, 9')
            b.e('s_lshr_b32 s55, s52, 1'); b.e('s_lshl_b32 s55, s55, 13'); b.e('s_add_u32 s54, s54, s55')
            b.e('s_cmp_lt_u32 s52, 4'); b.e('s_cselect_b32 s54, s54, 16384'); b.e('s_cselect_b64 vcc, -1, 0')
            b.e(f's_add_u32 s54, s54, {WOB}')
            b.e(f'v_cndmask_b32 v{VAP+n}, {v5}, {v7}, vcc')
            b.e(f'v_xor_b32 v{VAP+n}, s91, v{VAP+n}'); b.e(f'v_add_u32 v{VAP+n}, s54, v{VAP+n}')
        b.e('s_mul_i32 s52, s43, 6144')
        b.e(f'v_add_u32 v{VB}, s52, v{VL16}')
        b.e(f'v_bfe_u32 {v6}, v{VT+3}, 2, 2'); b.e(f'v_mul_u32_u24 {v6}, {4*INB}, {v6}')
        b.e(f'v_lshl_add_u32 {v6}, {v4}, 6, {v6}'); b.e(f'v_lshl_add_u32 v{VT+2}, {v3}, 4, {v6}')
        b.e('s_mul_i32 s52, s43, 27'); b.e('s_add_u32 s52, s52, s45'); b.e('s_lshl_b32 s5, s52, 8')
        b.e('s_mul_i32 s52, s43, 9'); b.e('s_add_u32 s52, s52, s45'); b.e('s_lshl_b32 s4, s52, 9')
    b.e(f'v_bfe_u32 {v4}, v{VT+3}, 2, 3'); b.e(f'v_lshrrev_b32 {v5}, 2, v{VT+3}')
    b.e('s_cmp_eq_u32 s42, 7'); b.e('s_cselect_b64 vcc, -1, 0')
    b.e(f'v_lshrrev_b32 {v6}, 5, v{VT+3}'); b.e(f'v_lshlrev_b32 {v6}, 6, {v6}')
    b.e(f'v_cndmask_b32 {v4}, {v4}, {v5}, vcc'); b.e(f'v_cndmask_b32 {v6}, {v6}, 0, vcc')
    b.e(f'v_mul_u32_u24 {v5}, 1152, {v4}'); b.e(f'v_add_u32 {v5}, {v5}, {v6}')
    b.e(f'v_bfe_u32 {v4}, {v4}, 2, 1'); b.e(f'v_lshlrev_b32 {v4}, 1, {v4}'); b.e(f'v_xor_b32 {v4}, {v4}, {v3}')
    b.e(f'v_lshl_add_u32 {v5}, {v4}, 4, {v5}')
    b.e('s_lshl_b32 s52, s100, 6'); b.e('s_lshl_b32 s54, s100, 8'); b.e('s_sub_u32 s54, 256, s54')
    b.e('s_cmp_eq_u32 s42, 7'); b.e('s_cselect_b32 s52, s54, s52')
    b.e(f'v_add_u32 v{VL}, s52, {v5}')
    for m in range(1, 4): b.e(f'v_add_u32 v{VL+m}, {m*(18432-1024)}, v{VL}')
    b.e(f'v_add_u32 v{VL+4}, {131072-2048}, v{VL16}')
    b.e(f'v_and_b32 v{VL+5}, 0x70, v{VL16}'); b.e(f'v_lshlrev_b32 v{VL+5}, 3, v{VL+5}')
    b.e('s_lshl_b32 s91, s42, 6')
    b.e(f'v_add_u32 v{VT}, s91, v{VT+3}')
    b.e(f'v_lshlrev_b32 v{VT}, 20, v{VT}')
    b.e(f'v_mov_b32 v{VT+1}, s97')
    b.e('s_waitcnt lgkmcnt(0)')
    b.wait_vm(('o',))
    b.e('s_barrier')
    b.e(f'buffer_store_dword v{VT+1}, v{VT}, {srd(S_F)}, s90 offen sc1', ('f1',))
    stamp(b, 5)
    b.e('s_cmp_eq_u32 s42, 6'); b.e('s_cbranch_scc1 OP_LW')
    b.e('s_cmp_eq_u32 s42, 7'); b.e('s_cbranch_scc1 OP_LO')
    b.e('s_bitcmp1_b32 12, s42'); b.e('s_cbranch_scc1 OP_BIG')

    def wo_off(x, U):
        head_of(x, U)
        x.e('s_mul_i32 s55, s55, 147456')
        if U % 2: x.e('s_add_u32 s55, s55, 73728')
    def wo_full(x, U):
        wo_off(x, U)
        for ty in range(4):
            x.e(f's_mov_b32 m0, {WOB + (U % NW_) * WS_ + ty * 4096}')
            x.e(f's_add_u32 s56, s55, {(ty % 2) * 9216 + (ty // 2) * 128}')
            for m in range(4):
                x.e(f'buffer_load_dwordx4 v{VL+m}, {srd(S_WO)}, s56 offen offset:{m*1024} lds', ('w', U))
    def wo_half(x, U):
        wo_off(x, U)
        x.e(f's_mov_b32 m0, {WOB + (U % NW_) * WS_ + 16384}')
        x.e('s_nop 0')
        for m in range(4):
            x.e(f'buffer_load_dwordx4 v{VL+m}, {srd(S_WO)}, s55 offen offset:{m*1024} lds', ('w', U))
    def o_unit(x, U):
        head_of(x, U)
        if U % 2 == 0:
            role.n += 1; l = f'HP{role.n}'
            x.e('s_bitcmp1_b32 s3, s55')
            x.e(f's_cbranch_scc0 {l}_GO')
            for t in ['s_mov_b32 s91, 0', f'{l}:', f'buffer_load_dword v{VL+6}, v{VL+5}, {srd(S_F)}, s99 offen sc1', 's_add_u32 s91, s91, 1',
                      's_waitcnt vmcnt(0)', f'v_cmp_ne_u32 vcc, s97, v{VL+6}', 's_nop 0', 's_mov_b32 s3, vcc_lo', 's_bitcmp1_b32 s3, s55',
                      f's_cbranch_scc0 {l}_GO', f's_sleep {SLEEP}', 's_cmp_lt_u32 s91, 0x40000', f's_cbranch_scc1 {l}']:
                i = I(t); i.roles = (); x.append(i)
            x.e(f'{l}_GO:')
        x.e('s_lshl_b32 s55, s55, 12')
        if U % 2: x.e('s_add_u32 s55, s55, 2048')
        for g in range(3):
            x.e(f's_mov_b32 m0, {(U % NO_) * OS_ + g * 4096}')
            x.e(f's_add_u32 s56, s55, {g * 262144}')
            for m in range(4):
                x.e(f'buffer_load_dwordx4 v{VL16 if m < 2 else VL+4}, {srd(S_OI)}, s56 offen offset:{m*1024} lds', ('o2', U))
    def vwait(x, *tags):
        n = [ctx.count_after('vm', t) for t in tags]
        n = [k for k in n if k is not None]
        if n: x.e(f's_waitcnt vmcnt({min(min(n), 47)})')
    snap = ctx.snap()
    lw = Block(ctx, 'lw'); ctx.active = list(LW)
    lw.e('OP_LW:')
    wo_full(lw, 0); wo_full(lw, 1)
    lw.e('s_waitcnt vmcnt(0)'); lw.e('s_barrier')
    for U in (2, 3, 4): wo_full(lw, U)
    lw.e('s_waitcnt vmcnt(47)'); wo_full(lw, 5)
    vwait(lw, ('w', 2))
    lw.e('s_barrier')
    wo_full(lw, 6)
    lw.e('s_waitcnt vmcnt(47)'); wo_full(lw, 7)
    for U in range(2, 16):
        if U < 15: vwait(lw, ('w', U + 1))
        lw.e('s_barrier')
        if U + NW_ < 16:
            if len(ctx.c[6].vm) > 47: lw.e('s_waitcnt vmcnt(47)')
            wo_full(lw, U + NW_)
    lw.e('s_barrier')
    lw.e('s_branch OP_DONE')
    lo = Block(ctx, 'lo'); ctx.active = list(LO)
    lo.e('OP_LO:')
    lo.e('s_mov_b32 s3, 0xff')
    wo_half(lo, 0); wo_half(lo, 1)
    lo.e('s_waitcnt vmcnt(0)'); lo.e('s_barrier')
    wo_half(lo, 2); wo_half(lo, 3)
    stamp(lo, 3, True)
    o_unit(lo, 2)
    wo_half(lo, 4); wo_half(lo, 5)
    vwait(lo, ('o2', 2)); lo.e('s_barrier')
    o_unit(lo, 3); o_unit(lo, 4); wo_half(lo, 6); wo_half(lo, 7)
    for U in range(2, 16):
        if U < 15: vwait(lo, ('o2', U + 1), ('w', U + 1))
        lo.e('s_barrier')
        if U + NO_ < 16: o_unit(lo, U + NO_)
        if U + NW_ < 16: wo_half(lo, U + NW_)
    lo.e('s_barrier')
    lo.e('s_branch OP_DONE')

    OWN = 0
    def compute(name, waves, NT):
        ctx.restore(snap); ctx.active = list(waves)
        c = Block(ctx, name); lp = Block(ctx, name + 'l'); e = Block(ctx, name + 'e')
        c.e(f'{name}:')
        SZ = 4 * (NT + 3)
        def fA(U, k, n): return FB + 2 * SZ * (U % 2) + SZ * k + 4 * n
        def fB(U, k, j): return FB + 2 * SZ * (U % 2) + SZ * k + 4 * NT + 4 * j
        def rd(U):
            r = []
            for k in range(2):
                r += [E(f'ds_read_b128 {q4(fB(U,k,j))}, v{VB} offset:{(2*j+k)*1024}', ('f', U)) for j in range(3)]
                for n in range(NT):
                    r += [E(f'ds_read_b64_tr_b16 {q2(fA(U,k,n)+2*u)}, v{VAP+n} offset:{k*2048 + u*1024}', ('f', U)) for u in range(2)]
            return r
        def adv(b):
            b.e(f's_cmp_ge_u32 s46, {(NW_-1)*WS_}'); b.e(f's_cselect_b32 s52, s54, s53'); b.e('s_add_u32 s46, s46, s52')
            for n in range(NT): b.e(f'v_add_u32 v{VAP+n}, s52, v{VAP+n}')
            b.e(f's_cmp_ge_u32 s45, {(NO_-1)*OS_}'); b.e(f's_cselect_b32 s52, s101, s100'); b.e('s_add_u32 s45, s45, s52')
            b.e(f'v_add_u32 v{VB}, s52, v{VB}')
        def mmu(U, first=False):
            return [E(f'{MF} {q4(12*n+4*j)}, {q4(fA(U,k,n))}, {q4(fB(U,k,j))}, {"0" if first and k == 0 else q4(12*n+4*j)}')
                    for k in range(2) for n in range(NT) for j in range(3)]
        c.e('s_mov_b32 s46, 0'); c.e(f's_mov_b32 s53, {WS_}'); c.e(f's_mov_b32 s54, {(-(NW_-1)*WS_) & 0xffffffff}')
        c.e('s_mov_b32 s45, 0'); c.e(f's_mov_b32 s100, {OS_}'); c.e(f's_mov_b32 s101, {(-(NO_-1)*OS_) & 0xffffffff}')
        c.e('s_mov_b32 s44, 0')
        if OWARM:
            c.e(f'v_lshrrev_b32 v{GS}, 5, v{VT+3}'); c.e(f'v_lshlrev_b32 v{GS}, 17, v{GS}')
            c.e(f'v_and_b32 v{GS+1}, 31, v{VT+3}'); c.e(f'v_lshl_add_u32 v{GS}, v{GS+1}, 7, v{GS}')
            c.e('s_lshl_b32 s55, s42, 18'); c.e('s_lshl_b32 s61, s41, 12'); c.e('s_add_u32 s55, s55, s61')
            if OWARM == 2: c.e(f'buffer_load_dword v{XF+3}, v{GS}, {srd(S_O)}, s55 offen', ('ow',))
        c.e('s_barrier')
        stamp(c, 6)
        if OWARM == 1: c.e(f'buffer_load_dword v{XF+3}, v{GS}, {srd(S_O)}, s55 offen', ('ow',))
        c.e(f's_add_u32 s{S_OUT}, s14, s6'); c.e(f's_addc_u32 s{S_OUT+1}, s15, 0')
        c.e(f's_sub_u32 s{S_OUT+2}, 1769472, s6'); c.e(f's_mov_b32 s{S_OUT+3}, 0x20000')
        run(c, rd(0)); adv(c)
        c.e('s_waitcnt lgkmcnt(0)')
        run(c, interleave(mmu(0, True), rd(1) + [adv], end=6 * NT - 2))
        c.e('s_waitcnt lgkmcnt(0)')
        run(c, mmu(1))
        c.e('s_barrier')
        stamp(c, 1, True)
        run(c, rd(0)); adv(c)
        def unit(x, U, extra=(), last=False):
            x.e('s_waitcnt lgkmcnt(0)')
            x.e('s_barrier')
            run(x, interleave(mmu(U), ([] if last else rd(U + 1) + [adv]) + list(extra), end=6 * NT - 2))
        lp.e(f'{name}_LOOP:')
        unit(lp, 0); unit(lp, 1)
        lp.e('s_add_u32 s44, s44, 1'); lp.e('s_cmp_lt_u32 s44, 6'); lp.e(f's_cbranch_scc1 {name}_LOOP')
        fin = []
        def P(*lines): fin.extend(E(l) for l in lines)
        X = GS
        P('s_mov_b32 s7, 288', 's_lshl_b32 s6, s42, 6', f'v_add_u32 v{X}, s6, v{VT+3}')
        P(f'v_cmp_gt_u32 s[8:9], s7, v{X}', f'v_subrev_u32 v{X+1}, 32, v{X}', f'v_mov_b32 v{X+7}, 0x40000000')
        P(f'v_cndmask_b32 v{X}, v{X+1}, v{X}, s[8:9]', f'v_lshrrev_b32 v{X+1}, 4, v{X}')
        P(f'v_and_b32 v{X+2}, 15, v{X}', f'v_lshlrev_b32 v{X+2}, 4, v{X+2}', f'v_lshl_add_u32 v{XF}, v{X+1}, 9, v{X+2}')
        P(f'v_mul_u32_u24 v{X+4}, 57, v{X+1}', f'v_lshrrev_b32 v{X+4}, 9, v{X+4}')
        P(f'v_mul_u32_u24 v{X+5}, 18, v{X+4}', f'v_add_u32 v{X+5}, v{X+5}, v{X+1}')
        P(f'v_lshl_add_u32 v{XF+1}, v{X+5}, 8, v{X+2}')
        P(f'v_mul_u32_u24 v{X+6}, 9, v{X+4}', f'v_sub_u32 v{X+1}, v{X+1}, v{X+6}')
        P(f'v_mul_u32_u24 v{X+4}, 48, v{X+4}', f'v_and_b32 v{X+6}, 3, v{X}', f'v_add_u32 v{X+4}, v{X+4}, v{X+6}')
        P(f'v_mul_u32_u24 v{X+4}, 1152, v{X+4}', f'v_lshl_add_u32 v{X+4}, v{X+1}, 5, v{X+4}')
        P(f'v_bfe_u32 v{X+6}, v{X}, 2, 2', f'v_lshl_add_u32 v{X+4}, v{X+6}, 3, v{X+4}')
        P(f'v_cndmask_b32 v{XF+2}, v{X+7}, v{X+4}, s[8:9]')
        for i in range(3): P(f's_add_u32 s{56+i}, s47, {i+1}', f's_and_b32 s{56+i}, s{56+i}, 3', f's_mul_i32 s{56+i}, s{56+i}, {INB}')
        P('s_mov_b32 s10, 18432', 's_mov_b32 s11, 36864', 's_mov_b32 s59, 0xffff0000')
        fin2 = []
        fin2.append(lambda b: [b.e(l) for l in (f'v_bfe_u32 v{VE+2}, v{VT+3}, 2, 2', f'v_cmp_eq_u32 vcc, s47, v{VE+2}', f'v_mov_b32 v{VE+2}, 0x40000000',
                    f'v_and_b32 v{VE}, 0xff, v{VT+2}', f'v_cndmask_b32 v{VT+2}, v{VT+2}, v{VE+2}, vcc', f'v_lshlrev_b32 v{VE+1}, 2, v{VT+3}',
                    f'v_add_u32 v{VE+1}, {OWN+16384}, v{VE+1}', f'v_add_u32 v{VE}, s5, v{VE}',
                    f'v_and_b32 v{VE+1}, 0xfffffff0, v{VE+1}', f'v_cndmask_b32 v{VE}, v{VE+1}, v{VE}, vcc')])
        fin2 += [E(f'v_mov_b32 v{GS+4*k+3}, s98') for k in range(2 * NT)]
        unit(e, 14, fin)
        e.e('s_waitcnt lgkmcnt(0)')
        e.e('s_barrier')
        m = mmu(15)
        def send(n):
            r = [E(f'v_cvt_pk_bf16_f32 v{GS + 8*n + 4*(x//3) + x%3}, v{12*n+2*x}, v{12*n+2*x+1}') for x in range(6)]
            r += [E(f'buffer_store_dwordx4 {q4(GS+8*n+4*hf)}, v{VT+2}, {srd(S_P)}, s4 offen offset:{n*512 + hf*256} sc1', ('p',)) for hf in range(2)]
            r += [E(f'ds_write_b128 v{VE}, {q4(12*n+4*j)} offset:{j*2304 + n*256}', ('own',)) for j in range(3)]
            return r
        for n in range(NT):
            grp = m[3 * n:3 * n + 3] + m[3 * NT + 3 * n:3 * NT + 3 * n + 3]
            run(e, interleave(grp, fin2 if n == 0 else (send(n - 2) if n >= 2 else [])))
        stamp(e, 7)
        if NT == 2: e.e('s_nop 1')
        run(e, send(NT - 2)); run(e, send(NT - 1))
        if name != 'OP_BIG': e.e('s_branch OP_FIN')
        return c, lp, e
    sm = compute('OP_SML', SML, 2)
    bg = compute('OP_BIG', BIG, 5)
    ctx.active = list(BIG + SML)
    e = Block(ctx, 'op_end')
    e.e('OP_FIN:')
    e.e('s_waitcnt lgkmcnt(0)')
    e.e('s_barrier')
    stamp(e, 8)
    e.e('s_cmp_ge_u32 s42, 5')
    e.e('s_cbranch_scc1 OP_DONE')
    R0 = 168; OW = 64; X = 128
    for j in range(3): e.e(f'ds_read_b128 {q4(OW+4*j)}, v{XF+1} offset:{j*2304}', ('ow',))
    loads = '\n'.join(f'buffer_load_dwordx4 {q4(R0+8*src+4*hf)}, v{XF}, {srd(S_PI)}, s{56+src} offen offset:{hf*256} sc1' for src in range(3) for hf in range(2))
    chk = [f'v_xor_b32 v{X+6}, s98, v{R0+3}']
    for k in range(1, 6):
        chk += [f'v_xor_b32 v{X+7}, s98, v{R0+4*k+3}', f'v_or_b32 v{X+6}, v{X+6}, v{X+7}']
    chk.append(f'v_cmp_ne_u32 vcc, 0, v{X+6}')
    poll(e, 'OP_P2', loads, '\n'.join(chk))
    stamp(e, 9)
    e.e(f'buffer_store_dword v{VT+1}, v{VT}, {srd(S_F)}, s96 offen sc1', ('ep',))
    e.e('s_waitcnt lgkmcnt(0)')
    so = ['0', 's10', 's11']
    for j in range(3):
        for p in range(2):
            x = 2 * j + p
            for src in range(3):
                r = R0 + 8 * src + 4 * (x // 3) + x % 3
                e.e(f'v_lshlrev_b32 v{X+6}, 16, v{r}'); e.e(f'v_and_b32 v{X+7}, s59, v{r}')
                e.e(f'v_add_f32 v{OW+2*x}, v{OW+2*x}, v{X+6}'); e.e(f'v_add_f32 v{OW+2*x+1}, v{OW+2*x+1}, v{X+7}')
            e.e(f'v_cvt_pk_bf16_f32 v{OW+16+x}, v{OW+2*x}, v{OW+2*x+1}')
        e.e(f'buffer_store_dwordx2 {q2(OW+16+2*j)}, v{XF+2}, {srd(S_OUT)}, {so[j]} offen {OPT.get("outpol", "")}')
    ctx.active = ALLW
    e.e('OP_DONE:')
    if STAMP:
        if not OPT.get('rt4'): stamp(e, 10)
        dump_stamps(e)
    e.e('K1_END:')
    e.e('s_endpgm')
    traces = {}
    for w in SML: traces[w] = [b, sm[0], sm[1], sm[1], sm[2], e]
    for w in BIG: traces[w] = [b, bg[0], bg[1], bg[1], bg[2], e]
    traces[6] = [b, lw]; traces[7] = [b, lo]
    TXN = OPT.get('tx', '')
    if TXN:
        def after_c(blk):
            n = 0; out = []
            for i in blk:
                if i.kind == 'barrier': n += 1
                drop = n >= 2 and getattr(i, 'sub', '') == 'dma' and (TXN == 'none' or (TXN == 'noo' and 's[24:27]' in i.text) or (TXN == 'nowo' and 's[20:23]' in i.text))
                if not drop: out.append(i)
            blk[:] = out
        after_c(lw); after_c(lo); after_c(sm[0])
        if TXN in ('none', 'nowo'):
            for blk in sm[1:]: blk[:] = [i for i in blk if getattr(i, 'sub', '') != 'dma']
    return [b] + list(sm) + list(bg) + [e, lw, lo], traces

def kernel1():
    ctx = MCtx(8)
    pro = k1_prologue(ctx)
    qp = k1_qproj(ctx)
    ap = k1_att_prologue(ctx)
    p1 = pv_phase(ctx, 'P1', SA, SB, head=lambda a: a.e('K1_LOOP:'), dma=guarded(dma_v, 0) if LEAD == 6 else dma_v)
    SK2 = int(OPT.get('sk2', 2))
    p2 = qk_phase(ctx, 'P2', SA, SB, guarded(dma_k, 0) if KVREG else dma_k)
    p3 = pv_phase(ctx, 'P3', SB, SA, dma=guarded(dma_v, SK2) if KVREG == 1 else dma_v)
    p4 = qk_phase(ctx, 'P4', SB, SA, guarded(dma_k, SK2) if KVREG == 1 else dma_k)
    p4[2].e('s_add_u32 s44, s44, 1')
    p4[2].e('s_cmp_lt_u32 s44, 7')
    p4[2].e('s_cbranch_scc1 K1_LOOP')
    def warm(b):
        b.e(f'v_lshrrev_b32 v{KR}, 6, v{VL16}'); b.e(f'v_mul_u32_u24 v{KR}, 1152, v{KR}')
        b.e(f'v_and_b32 v{KR+1}, 48, v{VL16}'); b.e(f'v_lshlrev_b32 v{KR+1}, 3, v{KR+1}'); b.e(f'v_min_u32 v{KR+1}, 316, v{KR+1}')
        b.e(f'v_add_u32 v{KR}, v{KR}, v{KR+1}')
        b.e(f'buffer_load_dword v{SA+23}, v{KR}, s[28:31], 0 offen', ('warm',))
    l1 = pv_phase(ctx, 'L1', SA, SB, nextK=False, dma=warm if (FUSED and WARM) else None, split=LSPLIT)
    l2 = Block(ctx, 'L2')
    l2.e(f's_waitcnt vmcnt({1 if WARM else 0})')
    l2.e('s_barrier')
    if OPT.get('l2s'): stamp(l2, 2)
    for t in range(4): vread(l2, t)
    run(l2, sm_fillers(SB)[LSPLIT:] + chk_fillers())
    l2.e('s_cbranch_vccnz L2_RARE')
    l2r = rare_path(ctx, 'L2', SB, None, 2)
    l3 = pv_phase(ctx, 'L3', SB, None, nextK=False, bar=False, head=lambda a: a.e('L2_JOIN:'), extra=tail_setup() if FUSED else ())
    l3.e('s_nop 7')
    ep = k1_epilogue(ctx)
    errs = []
    body = [p1, p2[0], p2[2], p3, p4[0], p4[2]]
    bodyr = [p1, p2[0], p2[1], p2[2], p3, p4[0], p4[1], p4[2]]
    last = [l1, l2, l3, ep]
    lastr = [l1, l2, l2r, l3, ep]
    tail, ttr = oproj(ctx)
    for r in ALLW:
        errs += check_trace([pro, qp, ap] + body + body + last + ttr[r], f'main{r}', r)
        errs += check_trace([pro, qp, ap] + bodyr + bodyr + body + lastr, f'rare{r}', r)
    if NOCOMP:
        for blk in body:
            keep = [i for i in blk if i.kind not in ('mfma', 'valu', 'trans') and not (NOCOMP > 1 and i.kind == 'ds') and 'vccnz' not in i.text]
            blk[:] = keep
        errs = []
    DROP = OPT.get('drop', '')
    if DROP:
        D = DROP.split(',')
        def dropit(i):
            t = i.text
            if 'vccnz' in t: return True
            if 'exp' in D and t.startswith('v_exp'): return True
            if 'add' in D and t.startswith('v_add_f32'): return True
            if 'cvt' in D and t.startswith('v_cvt'): return True
            if 'ds' in D and i.kind == 'ds': return True
            if 'wait' in D and i.kind == 'wait': return True
            if 'bar' in D and i.kind == 'barrier': return True
            if 'adv' in D and (t.startswith('v_add_u32') or t.startswith('s_cmp_ge') or t.startswith('s_cselect') or t.startswith('s_add_u32 s45') or t.startswith('s_add_u32 s46')): return True
            if 'mfma' in D and i.kind == 'mfma': return True
            return False
        for blk in body: blk[:] = [i for i in blk if not dropit(i)]
        errs = []
    order = [pro, qp, ap] + body + last + tail + [p2[1], p4[1], l2r]
    return order, errs

def kernel2():
    ctx = MCtx(8)
    b = Block(ctx, 'k2')
    b.e('s_cmp_ge_u32 s2, 256')
    b.e('s_cbranch_scc1 K2_END')
    b.e('s_load_dwordx8 s[12:19], s[0:1], 32')
    if STAMP:
        for i in range(6): b.e(f's_memtime s[{64+2*i}:{65+2*i}]')
        b.e('s_memrealtime s[86:87]')
    b.e('v_lshrrev_b32 v1, 6, v0')
    b.e('v_and_b32 v0, 63, v0')
    b.e('v_readfirstlane_b32 s42, v1')
    b.e('s_and_b32 s43, s2, 7'); b.e('s_lshr_b32 s44, s2, 3')
    b.e('s_and_b32 s40, s43, 1'); b.e('s_lshl_b32 s40, s40, 2'); b.e('s_and_b32 s45, s44, 3'); b.e('s_add_u32 s40, s40, s45')
    b.e('s_lshr_b32 s41, s43, 1'); b.e('s_lshl_b32 s41, s41, 3'); b.e('s_lshr_b32 s46, s44, 2'); b.e('s_add_u32 s41, s41, s46')
    b.e(f'v_lshlrev_b32 v{VL16}, 4, v0')
    b.e('s_waitcnt lgkmcnt(0)')
    flag_srd(b)
    epoch_load(b, 222)
    b.e('s_waitcnt vmcnt(0)')
    epoch_tags(b, 222)
    run(b, tail_setup())
    t = oproj(ctx)
    errs = []
    for r in ALLW: errs += check_trace([b, t[0], t[1], t[1], t[2], t[2], t[3]], f'k2_{r}', r)
    return [b] + list(t), errs

HEADER = open('standalone__mha_block_cached__near_ridge.s.ref').read().split('; Override')[0]

def kd(name, vgpr, sgpr=96):
    return f'''.amdhsa_kernel {name}
  .amdhsa_next_free_vgpr {vgpr}
  .amdhsa_next_free_sgpr {sgpr}
  .amdhsa_accum_offset {(vgpr+3)//4*4}
  .amdhsa_group_segment_fixed_size 0
  .amdhsa_kernarg_size 64
  .amdhsa_user_sgpr_count 2
  .amdhsa_user_sgpr_kernarg_segment_ptr 1
  .amdhsa_system_sgpr_workgroup_id_x 1
.end_amdhsa_kernel
'''

def main():
    k1, e1 = kernel1()
    k2, e2 = kernel2() if not FUSED else ([], [])
    for e in list(dict.fromkeys(x.split('] ', 1)[1] for x in e1 + e2))[:12]: print('CHECK', e, file=sys.stderr)
    out = HEADER
    if FUSED:
        N = 'standalone__mha_block_cached__near_ridge_kernel'
        out += f'; @launch grid=(256,1,1) block=(512,1,1) lds={LDS_TOT}\n'
        ks = [(N, k1)]
    else:
        out += f'; @launch kernel=mha_attn_kernel grid=(256,1,1) block=(512,1,1) lds={LDS_TOT}\n'
        out += f'; @launch kernel=mha_oproj_kernel grid=(256,1,1) block=(512,1,1) lds={LDS_TOT}\n'
        ks = [('mha_attn_kernel', k1), ('mha_oproj_kernel', k2)]
    out += '.amdgcn_target "amdgcn-amd-amdhsa--gfx950"\n.text\n'
    for name, blocks in ks:
        out += f'.globl {name}\n.p2align 8\n.type {name},@function\n{name}:\n'
        out += '\n'.join(b.text() for b in blocks) + '\n'
    out += '.section .rodata,"a"\n'
    for name, _ in ks: out += '.p2align 6\n' + kd(name, 256, 102)
    open(sys.argv[1], 'w').write(out)
    if e1 or e2: sys.exit(1)
main()
```

```python
import sys, struct, math
from asmlib import *

OPT = dict(a.split('=') for a in sys.argv[2:] if '=' in a)
STAMP = int(OPT.get('stamp', 0))
KVPOL = OPT.get('kvpol', 'nt')
XPOL = OPT.get('xpol', '')
WPOL = OPT.get('wpol', '')
OSTPOL = OPT.get('ostpol', 'sc1' if OPT.get('fused', '1') == '1' else '')
OLDPOL = OPT.get('oldpol', '')
WOPOL = OPT.get('wopol', '')
THR = float(OPT.get('thr', 2048.0))
NOBARQK = int(OPT.get('nobarqk', 1))
SKIPT = int(OPT.get('skipt', 0))
STAG = int(OPT.get('stag', 0))
ROT = int(OPT.get('rot', 1))
ROT2 = int(OPT.get('rot2', 1))
SM_SPLIT = int(OPT.get('split', 24))
CHK_AT = int(OPT.get('chk', 8))
PRIO = int(OPT.get('prio', 0))
K2D = int(OPT.get('k2d', 4))
NODMA = int(OPT.get('nodma', 0))
NOCOMP = int(OPT.get('nocomp', 0))
NOKVQ = int(OPT.get('nokvq', 0))
FUSED = int(OPT.get('fused', 1))
OLD2 = OPT.get('old2', 'sc1')
SLEEP = int(OPT.get('sleep', 1))
F1POL = OPT.get('f1pol', 'sc1')
WOPRE = int(OPT.get('wopre', 5))
TOUCH = int(OPT.get('touch', 0))
WOEARLY = int(OPT.get('woearly', 0))
WARM = int(OPT.get('warm', 1))
FAST = int(OPT.get('fast', 0))
PAIRW = int(OPT.get('pairw', 1))
KVREG = int(OPT.get('kvreg', 0))
KV1 = int(OPT.get('kv1', 1))
NC = int(OPT.get('nc', 1))
EARLY = int(OPT.get('early', 0))
ORD = int(OPT.get('ord', 1))
LSPLIT = int(OPT.get('lsplit', 57))
LEAD = int(OPT.get('lead', 6))
OWARM = int(OPT.get('owarm', 0))
NOX = int(OPT.get('nox', 0))
NOWQ = int(OPT.get('nowq', 0))
MAP = OPT.get('map', '4x8')
KVSCHED = [int(x) for x in OPT.get('kvs', '0,2,3,5,6,8,9,11,12,14').split(',') if x]

def f2u(f): return struct.unpack('<I', struct.pack('<f', f))[0]
SCALE = math.log2(math.e) / math.sqrt(128.0)
MF = 'v_mfma_f32_16x16x32_bf16'
def q4(n): return f'v[{n}:{n+3}]'
def q2(n): return f'v[{n}:{n+1}]'

ACC = 0; QF = 96; SA = 144; SB = 168; KR = 192; VR = 208; NEGM = 224
TMP = 236; VK = 248; VVE = 249; VVO = 250; LS = 251; VL16 = 254; VKV = 255
RING = 10; CH = 16384; LDS_TOT = RING * CH
QB = 114688
SLOT = 40960
S_K, S_V, S_X, S_WQ, S_O = 20, 24, 28, 32, 36
FS = 96
VXD = 208; VWD = 211; VXR = 213; VAE = 215; VAO = 217; VQE = 219; VQO = 220; VQR = 221; VKW = 244
def srd(n): return f's[{n}:{n+3}]'
def acc(t, jt): return ACC + 12 * t + 4 * jt
def qf(s, jt): return QF + 12 * s + 4 * jt
def st(S, kt, jt): return S + 12 * kt + 4 * jt
ALLW = list(range(8))
A, B = (0, 1, 2, 3), (4, 5, 6, 7)

TST = int(OPT.get('tst', 0))
def stamp(b, idx, fine=False, it=False):
    if TST == 2:
        if it or idx in (0, 4): b.e(f's_memtime s[{64+2*idx}:{65+2*idx}]')
        return
    if it: return
    if TST and idx in (1, 2, 3) and not fine: return
    if fine and not TST: return
    if STAMP: b.e(f's_memtime s[{64+2*idx}:{65+2*idx}]')

class role:
    n = 0
    def __init__(self, b, waves): self.b, self.w = b, list(waves)
    def __enter__(self):
        role.n += 1; self.l = f'RL{role.n}'
        self.b.e(f's_bitcmp1_b32 {sum(1 << w for w in self.w)}, s42')
        self.b.e(f's_cbranch_scc0 {self.l}')
        self.b.ctx.active = self.w
    def __exit__(self, *a):
        self.b.ctx.active = ALLW
        self.b.e(f'{self.l}:')

def E(text, tag=None): return lambda b: b.e(text, tag)
def run(b, lst):
    for f in lst: f(b)

def chunk_of(n):
    if n == 0: return ('K', 0)
    if n % 2 == 1: return ('K', (n + 1) // 2)
    return ('V', (n - 2) // 2)

def k1_prologue(ctx):
    b = Block(ctx, 'k1_pro')
    b.e('s_cmp_ge_u32 s2, 256')
    b.e('s_cbranch_scc1 K1_END')
    b.e('s_load_dwordx8 s[4:11], s[0:1], 0')
    b.e('s_load_dwordx8 s[12:19], s[0:1], 32')
    if STAMP:
        b.e('s_memtime s[64:65]')
        b.e('s_memrealtime s[86:87]')
    b.e('v_lshrrev_b32 v1, 6, v0')
    b.e('v_and_b32 v0, 63, v0')
    b.e('v_readfirstlane_b32 s42, v1')
    b.e('s_and_b32 s43, s2, 7')
    b.e('s_lshr_b32 s44, s2, 3')
    nb = int(MAP.split('x')[0]); lb = nb.bit_length() - 1
    nh = 32 // nb; xb = 8 // nb
    b.e(f's_and_b32 s40, s43, {xb - 1}')
    b.e(f's_lshl_b32 s40, s40, {lb}')
    b.e(f's_and_b32 s45, s44, {nb - 1}')
    b.e('s_add_u32 s40, s40, s45')
    b.e(f's_lshr_b32 s41, s43, {xb.bit_length() - 1}')
    b.e(f's_lshl_b32 s41, s41, {nh.bit_length() - 1}')
    b.e(f's_lshr_b32 s46, s44, {lb}')
    b.e('s_add_u32 s41, s41, s46')
    m = max(nb, nh)
    b.e(f's_mul_i32 s45, s45, {32 // nb}')
    b.e(f's_mul_i32 s46, s46, {32 // nh}')
    b.e('s_add_u32 s45, s45, s46')
    b.e('s_and_b32 s45, s45, 31')
    b.e(f's_mul_i32 s45, s45, {9 - NC}')
    b.e('s_lshr_b32 s45, s45, 5')
    b.e(f's_add_u32 s45, s45, {NC}')
    b.e('s_lshl_b32 s100, s45, 7')
    b.e('s_lshl_b32 s101, s45, 19')
    b.e('s_mov_b32 s57, 0' if NC else 's_mov_b32 s57, s100')
    b.e('s_mov_b32 s58, 0' if NC else 's_mov_b32 s58, s101')
    b.e('s_lshl_b32 s45, s40, 5')
    b.e('s_add_u32 s45, s45, s41')
    b.e('s_lshl_b32 s45, s45, 18')
    b.e('s_mul_i32 s46, s40, 221184')
    b.e('s_lshl_b32 s47, s41, 8')
    b.e('s_mul_i32 s48, s40, 1572864')
    b.e('s_and_b32 s53, s42, 3')
    b.e('s_lshr_b32 s54, s42, 2')
    b.e('v_bfe_u32 v4, v0, 2, 3')
    b.e('v_lshrrev_b32 v5, 5, v0')
    b.e('v_and_b32 v3, 3, v0')
    b.e('v_lshrrev_b32 v7, 2, v4')
    b.e('v_lshlrev_b32 v8, 1, v7')
    b.e('v_xor_b32 v6, v3, v8')
    b.e('v_lshlrev_b32 v6, 4, v6')
    b.e('v_lshl_add_u32 v6, v5, 6, v6')
    b.e('s_lshr_b32 s43, s53, 1')
    b.e('s_and_b32 s44, s42, 1')
    b.e('v_and_b32 v9, 3, v4')
    b.e('v_lshl_add_u32 v9, v7, 3, v9')
    b.e('s_lshl_b32 s55, s43, 4')
    b.e('s_lshl_b32 s62, s54, 2')
    b.e('s_add_u32 s55, s55, s62')
    b.e('v_add_u32 v9, s55, v9')
    b.e('v_lshl_add_u32 v9, v9, 13, v6')
    b.e('s_lshl_b32 s55, s44, 7')
    b.e(f'v_add_u32 v{VWD}, s55, v9')
    b.e(f'v_add_u32 v{VWD+1}, {32*8192-1024}, v{VWD}')
    b.e('s_lshl_b32 s60, s42, 11')
    b.e('s_mul_i32 s63, s42, 3')
    for i in range(3):
        b.e(f's_add_u32 s62, s63, {i}')
        b.e('s_and_b32 s56, s62, 1')
        b.e('s_lshl_b32 s56, s56, 3')
        b.e('s_add_u32 s56, s56, 12')
        b.e('s_lshr_b32 s62, s62, 1')
        b.e('s_lshl_b32 s62, s62, 4')
        b.e('v_add_u32 v9, s56, v4')
        b.e('v_and_b32 v9, 15, v9')
        b.e('v_add_u32 v9, s62, v9')
        b.e('v_mul_u32_u24 v9, 1152, v9')
        b.e('v_add_u32 v9, v9, v6')
        if i: b.e(f'v_subrev_u32 v{VXD+i}, {i*1024}, v9')
        else: b.e(f'v_mov_b32 v{VXD}, v9')
    b.e('s_lshl_b32 s59, s63, 10')
    b.e('s_add_u32 s59, s59, 16384')
    b.e('s_waitcnt lgkmcnt(0)')
    b.e(f's_add_u32 s{S_X}, s4, s46');  b.e(f's_addc_u32 s{S_X+1}, s5, 0')
    b.e(f's_mov_b32 s{S_X+2}, 221184'); b.e(f's_mov_b32 s{S_X+3}, 0x20000')
    b.e(f's_add_u32 s{S_WQ}, s10, s47'); b.e(f's_addc_u32 s{S_WQ+1}, s11, 0')
    b.e(f's_sub_u32 s{S_WQ+2}, 4718592, s47'); b.e(f's_mov_b32 s{S_WQ+3}, 0x20000')
    b.e(f's_add_u32 s{S_K}, s6, s45');  b.e(f's_addc_u32 s{S_K+1}, s7, 0')
    b.e(f's_mov_b32 s{S_K+2}, 262144'); b.e(f's_mov_b32 s{S_K+3}, 0x20000')
    b.e(f's_add_u32 s{S_V}, s8, s45');  b.e(f's_addc_u32 s{S_V+1}, s9, 0')
    b.e(f's_mov_b32 s{S_V+2}, 262144'); b.e(f's_mov_b32 s{S_V+3}, 0x20000')
    b.e(f's_add_u32 s{S_O}, s18, s48'); b.e(f's_addc_u32 s{S_O+1}, s19, 0')
    b.e(f's_mov_b32 s{S_O+2}, 1572864'); b.e(f's_mov_b32 s{S_O+3}, 0x20000')
    return b

RC = 1
def slot(n): return ((n + RC) % RING) * CH

def qslot(D): return ((D + 3) % 4) * SLOT

def qnext(b, D):
    if D + 1 == NC:
        b.e('s_mov_b32 s57, s100'); b.e('s_mov_b32 s58, s101')
    else:
        b.e('s_cmp_eq_u32 s61, 1152')
        b.e(f's_cselect_b32 s57, {NC*128}, s61')
        b.e(f's_cselect_b32 s58, {NC*524288}, s58')

def qdma_parts(D):
    P = []
    P.append(lambda b: (b.e(f's_add_u32 m0, s60, {qslot(D)}'), b.e('s_add_u32 s61, s57, 128'),
                        b.e(f'buffer_load_dwordx4 v{VWD}, {srd(S_WQ)}, s58 offen {WPOL} lds', ('q', D))))
    P.append(lambda b: (b.e(f'buffer_load_dwordx4 v{VWD+1}, {srd(S_WQ)}, s58 offen offset:1024 {WPOL} lds', ('q', D)),
                        b.e(f's_add_u32 m0, s59, {qslot(D)}'), b.e('s_add_u32 s58, s58, 524288')))
    for i in range(2): P.append(E(f'buffer_load_dwordx4 v{VXD+i}, {srd(S_X)}, s57 offen offset:{i*1024} {XPOL} lds', ('q', D)))
    P.append(lambda b: (b.e(f'buffer_load_dwordx4 v{VXD+2}, {srd(S_X)}, s57 offen offset:2048 {XPOL} lds', ('q', D)),
                        qnext(b, D)))
    return P

def qdma(b, D):
    b.e(f's_add_u32 m0, s60, {qslot(D)}')
    b.e('s_add_u32 s61, s57, 128')
    for h in range(0 if NOWQ else 2):
        b.e(f'buffer_load_dwordx4 v{VWD+h}, {srd(S_WQ)}, s58 offen offset:{h*1024} {WPOL} lds', ('q', D))
    b.e(f's_add_u32 m0, s59, {qslot(D)}')
    b.e('s_add_u32 s58, s58, 524288')
    for i in range(0 if NOX else 3):
        b.e(f'buffer_load_dwordx4 v{VXD+i}, {srd(S_X)}, s57 offen offset:{i*1024} {XPOL} lds', ('q', D))
    qnext(b, D)

def kvpair_static(b, n):
    c = chunk_of(n)
    S = S_K if c[0] == 'K' else S_V
    b.e(f's_add_u32 m0, s52, {slot(n)}')
    b.e(f's_mov_b32 s56, {c[1] * CH}')
    b.e(f'buffer_load_dwordx4 v{VKV}, {srd(S)}, s56 offen {KVPOL} lds', ('kv', n))
    b.e(f'buffer_load_dwordx4 v{VKV}, {srd(S)}, s56 offen offset:2048 {KVPOL} lds', ('kv', n))

POFF = 0x2000000; FOFF = 0x3000000; INB = 9216
S_F = 92
def flag_srd(b):
    b.e(f's_add_u32 s{S_F}, s18, {FOFF}'); b.e(f's_addc_u32 s{S_F+1}, s19, 0')
    b.e(f's_mov_b32 s{S_F+2}, {32768+1024}'); b.e(f's_mov_b32 s{S_F+3}, 0x20000')
    b.e('s_lshl_b32 s90, s40, 5'); b.e('s_add_u32 s90, s90, s41'); b.e('s_lshl_b32 s90, s90, 7')
    b.e('s_lshl_b32 s96, s40, 7'); b.e('s_add_u32 s96, s96, 32768')

def epoch_load(b, v):
    b.e(f'v_mov_b32 v{v}, 0')
    b.e(f'buffer_load_dword v{v+1}, v{v}, {srd(S_F)}, s96 offen sc1', ('ep',))

def epoch_tags(b, v):
    b.e(f'v_readfirstlane_b32 s97, v{v+1}')
    b.e('s_nop 0')
    b.e('s_mul_i32 s97, s97, 0x9e3779b1')
    b.e('s_add_u32 s97, s97, 0x7f4a7c15')
    b.e('s_xor_b32 s98, s97, 0x80000000')

def one_lane(b, v):
    b.e(f's_lshl_b32 s91, s42, 6')
    b.e(f'v_add_u32 v{v}, s91, v0')
    b.e(f'v_lshlrev_b32 v{v}, 20, v{v}')

def kvreg_of(n): return 48 + 8 * n if n < 6 else 224 + 8 * (n - 6)
def kv_to_regs(b, n):
    c = chunk_of(n)
    S = S_K if c[0] == 'K' else S_V
    r = kvreg_of(n)
    b.e(f's_mov_b32 s56, {c[1] * CH}')
    b.e(f'buffer_load_dwordx4 {q4(r)}, v{VKV}, {srd(S)}, s56 offen {KVPOL}', ('kv', n))
    b.e(f'buffer_load_dwordx4 {q4(r+4)}, v{VKV}, {srd(S)}, s56 offen offset:2048 {KVPOL}', ('kv', n))
def kv_to_lds(n):
    r = kvreg_of(n)
    o = slot(n) % 65536
    v = VKW + slot(n) // 65536
    return [lambda b: (b.wait_vm(('kv', n)), b.e(f'ds_write_b128 v{v}, {q4(r)} offset:{o}', ('kw',))),
            E(f'ds_write_b128 v{v}, {q4(r+4)} offset:{o+2048}', ('kw',))]

def k1_qproj(ctx):
    b = Block(ctx, 'qproj')
    flag_srd(b)
    qdma(b, 0)
    b.e('v_lshl_add_u32 v9, v4, 8, v6')
    b.e('s_lshl_b32 s46, s43, 12')
    b.e('s_lshl_b32 s47, s54, 13')
    b.e('s_add_u32 s46, s46, s47')
    b.e('s_add_u32 s45, s55, s46')
    b.e(f'v_add_u32 v{VKV}, s45, v9')
    b.e('s_lshl_b32 s47, s44, 10')
    b.e('s_add_u32 s52, s46, s47')
    qdma(b, 1)
    b.e('v_lshrrev_b32 v10, 4, v0')
    b.e('v_and_b32 v6, 15, v0')
    b.e('v_lshrrev_b32 v7, 2, v6')
    b.e('v_and_b32 v8, 1, v10')
    b.e('v_lshl_add_u32 v5, v8, 2, v7')
    b.e('v_lshlrev_b32 v5, 6, v5')
    b.e('v_lshl_add_u32 v5, v8, 5, v5')
    b.e('v_lshl_add_u32 v5, v3, 3, v5')
    b.e('v_lshrrev_b32 v9, 1, v10')
    b.e('v_lshl_add_u32 v5, v9, 12, v5')
    b.e('s_lshl_b32 s45, s54, 11')
    b.e(f'v_add_u32 v{VAE}, s45, v5')
    b.e(f'v_add_u32 v{VAE+1}, {2*SLOT}, v{VAE}')
    b.e(f'v_xor_b32 v{VAO}, 32, v{VAE}')
    b.e(f'v_xor_b32 v{VAO+1}, 32, v{VAE+1}')
    b.e('v_add_u32 v5, 4, v6')
    b.e('v_bfe_u32 v11, v5, 3, 1')
    b.e('v_and_b32 v12, 7, v5')
    b.e('v_lshrrev_b32 v13, 2, v12')
    b.e('v_lshlrev_b32 v13, 1, v13')
    b.e('v_lshlrev_b32 v14, 6, v12')
    b.e('v_xor_b32 v15, v13, v10')
    b.e('v_lshl_add_u32 v15, v15, 4, v14')
    b.e('s_mul_i32 s46, s53, 6144')
    b.e('s_add_u32 s46, s46, 16384')
    b.e('v_lshl_add_u32 v5, v11, 10, v15')
    b.e(f'v_add_u32 v{VXR}, s46, v5')
    b.e(f'v_add_u32 v{VXR+1}, {2*SLOT}, v{VXR}')
    b.e('v_lshl_add_u32 v15, v11, 11, v15')
    b.e('v_lshl_add_u32 v14, v11, 11, v14')
    b.e('s_lshl_b32 s47, s54, 13')
    b.e(f'v_add_u32 v{VK}, s47, v15')
    b.e(f'v_add_u32 v{VK}, {slot(0)}, v{VK}')
    b.e('s_mul_i32 s46, s53, 12288')
    b.e(f's_add_u32 s46, s46, {QB}')
    b.e(f'v_add_u32 v{VQR}, s46, v15')
    b.e('v_xor_b32 v15, v13, v9')
    b.e('v_lshl_add_u32 v15, v15, 4, v14')
    b.e('v_lshl_add_u32 v15, v8, 3, v15')
    b.e('s_lshl_b32 s45, s54, 10')
    b.e('s_add_u32 s46, s46, s45')
    b.e(f'v_add_u32 v{VQE}, s46, v15')
    b.e(f'v_xor_b32 v{VQO}, 32, v{VQE}')
    b.e('v_add_u32 v5, 1, v10')
    b.e('v_bfe_u32 v11, v5, 1, 1')
    b.e('v_and_b32 v12, 1, v5')
    b.e('v_lshl_add_u32 v13, v12, 2, v7')
    b.e('v_lshlrev_b32 v13, 6, v13')
    b.e('v_lshl_add_u32 v13, v12, 5, v13')
    b.e('v_lshl_add_u32 v13, v3, 3, v13')
    b.e('v_lshl_add_u32 v13, v11, 11, v13')
    b.e(f's_add_u32 s47, s47, {slot(2)}')
    b.e(f'v_add_u32 v{VVE}, s47, v13')
    b.e(f'v_xor_b32 v{VVO}, 32, v{VVE}')
    b.e(f'v_lshlrev_b32 v{VL16}, 4, v0')
    b.e(f'v_add_u32 v{VKW}, s52, v{VL16}')
    b.e(f'v_add_u32 v{VKW+1}, 65536, v{VKW}')
    b.e(f'v_add_u32 v{VKW+2}, 131072, v{VKW}')
    b.e(f's_mov_b32 s48, {hex(f2u(SCALE))}')
    b.e(f's_mov_b32 s50, {(2*CH - LDS_TOT) & 0xffffffff}')
    b.e(f's_mov_b32 s51, {2*CH}')
    b.e(f's_mov_b32 s46, {slot(2)}')
    def fA(D, h, tt): return FS + 56 * (D % 2) + 28 * h + 4 * tt
    def fB(D, h, jt): return FS + 56 * (D % 2) + 28 * h + 16 + 4 * jt
    def reads(D):
        sl = ((D + 3) % 4); hi = sl // 2; o = (sl % 2) * SLOT
        r = []
        for h in range(2):
            for jt in range(3):
                r.append(E(f'ds_read_b128 {q4(fB(D,h,jt))}, v{VXR+hi} offset:{o + jt*2048 + h*512}', ('f', D)))
            for tt in range(4):
                for u in range(2):
                    r.append(E(f'ds_read_b64_tr_b16 {q2(fA(D,h,tt)+2*u)}, v{(VAO if tt%2 else VAE)+hi} offset:{o + u*8192 + h*1024 + (tt//2)*512}', ('f', D)))
        return r
    zero = [E(f'v_mov_b32 v{i}, 0') for i in range(48, 96)] + [E(f'v_mov_b32 v{LS+i}, 0') for i in range(3)]
    b.wait_vm(('q', 0))
    b.e('s_barrier')
    stamp(b, 1)
    run(b, reads(0))
    qdma(b, 2)
    issue = {0: [3, 4], 1: [5], 2: [6], 3: [7], 4: [8]}
    kvi = {5: [0], 6: [1, 2], 7: [3], 8: [4]}
    kvr = {}; kvw = {}
    if KVREG == 2:
        kvr = {3: [0], 4: [1], 5: [2]}; kvw = {7: [0, 1, 2]}; kvi = {6: [3], 7: [4], 8: [5]}
    if KVREG == 3:
        kvr = {4: [0], 5: [1]}; kvw = {7: [0, 1]}; kvi = {6: [2, 3], 7: [4], 8: [5]}
    if KVREG == 1:
        kvi = {}
        kvr = {KV1 + i: [i] for i in range(6)} if KV1 + 5 <= 6 else {2: [0], 3: [1], 4: [2], 5: [3], 6: [4, 5]}
        kvr[7] = [6]; kvr[8] = [7]
        kvw = {6: [0, 1, 2, 3], 7: [4, 5]}
    for D in range(9):
        b.e('s_waitcnt lgkmcnt(0)')
        if D + 1 < 9: b.wait_vm(('q', D + 1))
        b.e('s_barrier')
        dm = [(lambda b, x=x: qdma(b, x)) for x in issue.get(D, [])] + [(lambda b, x=x: kvpair_static(b, x)) for x in kvi.get(D, [])]
        if D == 5: dm.insert(0, lambda b: epoch_load(b, 222))
        dm += [(lambda b, x=x: kv_to_regs(b, x)) for x in kvr.get(D, [])]
        wr = sum((kv_to_lds(x) for x in kvw.get(D, [])), [])
        if KVREG >= 2: zs = zero[24 + 5 * D:29 + 5 * D] if D < 6 else {7: zero[:24]}.get(D, [])
        elif KVREG: zs = {7: zero[:32] + zero[48:], 8: zero[32:48]}.get(D, [])
        else: zs = zero[7 * D:7 * D + 7]
        mf = []
        if D < 8:
            for h in range(2):
                for tt in range(4):
                    for jt in range(3):
                        d = q4(acc(tt, jt))
                        mf.append(E(f'{MF} {d}, {q4(fA(D,h,tt))}, {q4(fB(D,h,jt))}, {"0" if D == 0 and h == 0 else d}'))
            rd = reads(D + 1)
            fill = []
            QS = int(OPT.get('qs', 1))
            if QS:
                dm = sum((qdma_parts(x) for x in issue.get(D, [])), []) + dm[len(issue.get(D, [])):]
                step = max(1, len(rd) // max(1, len(dm)))
                lastkv = [dm.pop()] if (KVREG >= 2 and D in (3, 4) and D in kvr) else []
                step = max(1, (len(rd) - 6 * len(lastkv)) // max(1, len(dm)))
                for k, x in enumerate(rd):
                    fill.append(x)
                    if dm and k % step == step - 1: fill.append(dm.pop(0))
                fill += dm + lastkv; dm = []
            for k, x in enumerate(rd if not QS else []):
                fill.append(x)
                if dm and k % 6 == 1: fill.append(dm.pop(0))
            assert not dm
            run(b, interleave(mf, wr + fill + zs, end=int(OPT.get('qe', 21)) + (2 if len(zs) > 8 else 0)))
        else:
            tiles = [(tt, jt) for tt in range(4) for jt in range(3)]
            def conv(tt, jt):
                a = acc(tt, jt)
                return [E(f'v_mul_f32 v{a+i}, s48, v{a+i}') for i in range(4)] + [
                    E(f'v_cvt_pk_bf16_f32 v{a}, v{a}, v{a+1}'), E(f'v_cvt_pk_bf16_f32 v{a+1}, v{a+2}, v{a+3}'),
                    E(f'ds_write_b64 v{VQO if tt%2 else VQE}, {q2(a)} offset:{jt*4096 + (tt//2)*512}', ('qw',))]
            LAG = 3
            run(b, dm)
            run(b, zs)
            for k, (tt, jt) in enumerate(tiles):
                d = q4(acc(tt, jt))
                cv = conv(*tiles[k - LAG]) if k >= LAG else []
                if k == LAG: b.e('s_nop 2')
                b.e(f'{MF} {d}, {q4(fA(D,0,tt))}, {q4(fB(D,0,jt))}, {d}')
                run(b, cv[:3])
                b.e(f'{MF} {d}, {q4(fA(D,1,tt))}, {q4(fB(D,1,jt))}, {d}')
                run(b, cv[3:])
            stamp(b, 2)
            for k in range(12 - LAG, 12):
                if k == 11: b.e('s_nop 0')
                run(b, conv(*tiles[k]))
    b.e('s_waitcnt lgkmcnt(0)')
    b.wait_vm(('kv', 1))
    b.wait_vm(('ep',))
    epoch_tags(b, 222)
    b.e('s_barrier')
    if not KVREG: kvpair_static(b, 5)
    for s in range(4):
        for jt in range(3):
            b.e(f'ds_read_b128 {q4(qf(s,jt))}, v{VQR} offset:{jt*4096 + (s//2)*1024 + (s%2)*512}', ('qr', s))
    return b

def kread(b, f):
    kt, s = f // 4, f % 4
    b.e(f'ds_read_b128 {q4(KR+4*(f%4))}, v{VK} offset:{kt*4096 + (s//2)*1024 + (s%2)*512}', ('k', f))
def vread(b, t):
    tau = t // 2
    a = VVO if t % 2 else VVE
    for u in range(2):
        b.e(f'ds_read_b64_tr_b16 {q2(VR+4*(t%4)+2*u)}, v{a} offset:{u*4096 + (tau//2)*1024 + (tau%2)*512}', ('v', t))
def kadv(b, first=False):
    if first:
        b.e(f'v_add_u32 v{VK}, {CH}, v{VK}')
        b.e(f's_mov_b32 s45, {slot(1)}')
        return
    b.e(f's_cmp_ge_u32 s45, {LDS_TOT - 2*CH}')
    b.e(f's_cselect_b32 s47, s50, s51')
    b.e(f's_add_u32 s45, s45, s47')
    b.e(f'v_add_u32 v{VK}, s47, v{VK}')
def vadv(b):
    b.e(f's_cmp_ge_u32 s46, {LDS_TOT - 2*CH}')
    b.e(f's_cselect_b32 s47, s50, s51')
    b.e(f's_add_u32 s46, s46, s47')
    b.e(f'v_add_u32 v{VVE}, s47, v{VVE}')
    b.e(f'v_add_u32 v{VVO}, s47, v{VVO}')


def dma_k(b):
    b.e('s_mov_b32 m0, s57')
    b.e(f's_cmp_ge_u32 s57, s61')
    b.e(f'buffer_load_dwordx4 v{VKV}, {srd(S_K)}, s59 offen {KVPOL} lds', ('kd',))
    b.e(f'buffer_load_dwordx4 v{VKV}, {srd(S_K)}, s59 offen offset:2048 {KVPOL} lds', ('kd',))
    b.e('s_cselect_b32 s62, s50, s51')
    b.e('s_add_u32 s57, s57, s62')
    b.e(f's_add_u32 s59, s59, {CH}')
def dma_v(b):
    b.e('s_mov_b32 m0, s58')
    b.e(f's_cmp_ge_u32 s58, s61')
    b.e(f'buffer_load_dwordx4 v{VKV}, {srd(S_V)}, s60 offen {KVPOL} lds', ('vd',))
    b.e(f'buffer_load_dwordx4 v{VKV}, {srd(S_V)}, s60 offen offset:2048 {KVPOL} lds', ('vd',))
    b.e('s_cselect_b32 s62, s50, s51')
    b.e('s_add_u32 s58, s58, s62')
    b.e(f's_add_u32 s60, s60, {CH}')

PS = TMP + 8

def guarded(fn, T):
    def g(b):
        if T is None: return fn(b)
        role.n += 1; l = f'SK{role.n}'
        b.e(f's_cmp_eq_u32 s44, {T}')
        b.e(f's_cbranch_scc1 {l}')
        fn(b)
        b.e(f'{l}:')
    return g

def qk_backbone(S, cinit, nextV=True, first=False, qwait=False, dma=None):
    bb = []
    for f in range(8):
        kt, s = f // 4, f % 4
        for jt in range(3):
            def slot(b, f=f, kt=kt, s=s, jt=jt):
                if jt == 0:
                    if qwait and f < 4: b.wait_lgkm(('qr', s))
                    if not PAIRW: b.wait_lgkm(('k', f))
                    elif PAIRW == 2 and f == 0: b.wait_lgkm(('k', 3))
                    elif f % 2 == 0: b.wait_lgkm(('k', f + 1)); b.wait_lgkm(('k', f))
                d = q4(st(S, kt, jt))
                c = d if s else (q4(NEGM + 4 * jt) if cinit == 'negm' else '0')
                b.e(f'{MF} {d}, {q4(KR+4*(f%4))}, {q4(qf(s,jt))}, {c}')
                if jt == 2:
                    if f < 4: kread(b, f + 4)
                    if f == 3: kadv(b, first)
                    if f >= 4:
                        if nextV == 'K': kread(b, f - 4)
                        elif nextV: vread(b, f - 4)
                if dma and not NODMA and f == 0 and jt == 1: dma(b)
            bb.append(slot)
    return bb

def pv_backbone(P, nextK=True, dma=None, adv=True):
    bb = []
    for t in range(8):
        for jt in range(3):
            def slot(b, t=t, jt=jt):
                if jt == 0:
                    if not PAIRW: b.wait_lgkm(('v', t))
                    elif PAIRW == 2 and t == 0: b.wait_lgkm(('v', 3))
                    elif t % 2 == 0: b.wait_lgkm(('v', t + 1)); b.wait_lgkm(('v', t))
                d = q4(acc(t, jt))
                b.e(f'{MF} {d}, {q4(VR+4*(t%4))}, {q4(st(P,0,jt))}, {d}')
                if jt == 2:
                    if t < 4: vread(b, t + 4)
                    if t == 3 and adv: vadv(b)
                    if t >= 4 and nextK: kread(b, t - 4)
                if dma and not NODMA and t == 0 and jt == 1: dma(b)
            bb.append(slot)
    return bb

def sregs(S, jt): return [st(S, 0, jt) + i for i in range(4)] + [st(S, 1, jt) + i for i in range(4)]

def sm_fillers(S):
    fl = []
    for kt in range(2):
        for jt in range(3):
            r = sregs(S, jt)
            o = 4 * kt
            fl.append(E(f'v_exp_f32 v{r[o]}, v{r[o]}'))
            fl.append(E(f'v_exp_f32 v{r[o+1]}, v{r[o+1]}'))
            if kt: fl.append(E(f'v_add_f32 v{PS+jt}, v{PS+jt}, v{r[o]}'))
            fl.append(E(f'v_exp_f32 v{r[o+2]}, v{r[o+2]}'))
            if kt: fl.append(E(f'v_add_f32 v{PS+jt}, v{PS+jt}, v{r[o+1]}'))
            else: fl.append(E(f'v_add_f32 v{PS+jt}, v{r[0]}, v{r[1]}'))
            fl.append(E(f'v_exp_f32 v{r[o+3]}, v{r[o+3]}'))
            fl.append(E(f'v_add_f32 v{PS+jt}, v{PS+jt}, v{r[o+2]}'))
            fl.append(E(f'v_cvt_pk_bf16_f32 v{r[2*kt]}, v{r[o]}, v{r[o+1]}'))
            fl.append(E(f'v_add_f32 v{PS+jt}, v{PS+jt}, v{r[o+3]}'))
            fl.append(E(f'v_cvt_pk_bf16_f32 v{r[2*kt+1]}, v{r[o+2]}, v{r[o+3]}'))
    return fl

def chk_fillers():
    return [E(f'v_max3_f32 v{TMP}, v{PS}, v{PS+1}, v{PS+2}'), E(f'v_cmp_nle_f32 vcc, v{TMP}, v{TMP+11}')]
def ladd_fillers():
    return [E(f'v_add_f32 v{LS+jt}, v{LS+jt}, v{PS+jt}') for jt in range(3)]

def xreduce3(regs, tmps, op):
    fl = []
    for sw in ('v_permlane32_swap_b32', 'v_permlane16_swap_b32'):
        for r, t in zip(regs, tmps): fl.append(E(f'v_mov_b32 v{t}, v{r}'))
        for r, t in zip(regs, tmps): fl.append(E(f'{sw} v{r}, v{t}'))
        for r, t in zip(regs, tmps): fl.append(E(f'{op} v{r}, v{r}, v{t}'))
    return fl

MX = [TMP + 1, TMP + 2, TMP + 3]; MT = [TMP + 4, TMP + 5, TMP + 6]
def rowmax3(S):
    fl = []
    R = [sregs(S, jt) for jt in range(3)]
    for jt in range(3): fl.append(E(f'v_max3_f32 v{MX[jt]}, v{R[jt][0]}, v{R[jt][1]}, v{R[jt][2]}'))
    for jt in range(3): fl.append(E(f'v_max3_f32 v{MX[jt]}, v{MX[jt]}, v{R[jt][3]}, v{R[jt][4]}'))
    for jt in range(3): fl.append(E(f'v_max3_f32 v{MX[jt]}, v{MX[jt]}, v{R[jt][5]}, v{R[jt][6]}'))
    for jt in range(3): fl.append(E(f'v_max_f32 v{MX[jt]}, v{MX[jt]}, v{R[jt][7]}'))
    return fl + xreduce3(MX, MT, 'v_max_f32')

def rare_path(ctx, name, Y, X, back):
    snap = ctx.snap()
    r = Block(ctx, name + 'r')
    r.e(f'{name}_RARE:')
    r.e(f's_cmp_ge_u32 s45, {back*CH}')
    r.e(f's_cselect_b32 s47, 0, {LDS_TOT}')
    r.e(f's_sub_u32 s47, s47, {back*CH}')
    r.e(f'v_add_u32 v{TMP+7}, s47, v{VK}')
    for kt in range(2):
        for s in range(4):
            r.e(f'ds_read_b128 {q4(KR+4*s)}, v{TMP+7} offset:{kt*4096 + (s//2)*1024 + (s%2)*512}', ('rk',))
        r.e('s_waitcnt lgkmcnt(0)')
        for s in range(4):
            for jt in range(3):
                d = q4(st(Y, kt, jt))
                r.e(f'{MF} {d}, {q4(KR+4*s)}, {q4(qf(s,jt))}, {d if s else q4(NEGM+4*jt)}')
    r.e('s_nop 7')
    run(r, rowmax3(Y))
    for jt in range(3): r.e(f'v_max_f32 v{MX[jt]}, 0, v{MX[jt]}')
    for jt in range(3): r.e(f'v_exp_f32 v{MT[jt]}, -v{MX[jt]}')
    for jt in range(3):
        for q in sregs(Y, jt) + (sregs(X, jt) if X else []) + [NEGM + 4 * jt + i for i in range(4)]:
            r.e(f'v_sub_f32 v{q}, v{q}, v{MX[jt]}')
        r.e(f'v_mul_f32 v{LS+jt}, v{LS+jt}, v{MT[jt]}')
        for t in range(8):
            for i in range(4): r.e(f'v_mul_f32 v{acc(t,jt)+i}, v{acc(t,jt)+i}, v{MT[jt]}')
    run(r, sm_fillers(Y))
    r.e('s_nop 1')
    r.e(f's_branch {name}_JOIN')
    ctx.restore(snap)
    return r

def k1_att_prologue(ctx):
    b = Block(ctx, 'att_pro')
    for f in range(4): kread(b, f)
    nk, nv = {0: (7, 8), 1: (11, 10), 2: (9, 8), 3: (9, 8)}[KVREG]
    if LEAD == 8: nk, nv = 9, 8
    b.e(f's_add_u32 s57, s52, {slot(nk)}')
    b.e(f's_add_u32 s58, s52, {slot(nv)}')
    b.e(f's_mov_b32 s59, {chunk_of(nk)[1]*CH}')
    b.e(f's_mov_b32 s60, {chunk_of(nv)[1]*CH}')
    b.e(f's_add_u32 s61, s52, {LDS_TOT - 2*CH}')
    b.e(f'v_mov_b32 v{TMP+11}, {hex(f2u(THR))}')
    if FUSED and WARM:
        b.e('s_lshr_b32 s55, s41, 3'); b.e('s_mul_i32 s55, s55, 1179648')
        b.e('s_and_b32 s56, s41, 3'); b.e('s_mul_i32 s62, s56, 288'); b.e('s_add_u32 s55, s55, s62')
        b.e('s_and_b32 s62, s41, 1'); b.e('s_lshl_b32 s62, s62, 5'); b.e('s_sub_u32 s55, s55, s62')
        b.e('s_lshl_b32 s56, s56, 1'); b.e('s_and_b32 s62, s41, 4'); b.e('s_add_u32 s56, s56, s62')
        b.e('s_and_b32 s62, s40, 3'); b.e('s_add_u32 s56, s56, s62'); b.e('s_and_b32 s56, s56, 7')
        b.e('s_mul_i32 s56, s56, 147456'); b.e('s_add_u32 s55, s55, s56')
        b.e('s_mul_i32 s56, s42, 18432'); b.e('s_add_u32 s55, s55, s56')
        b.e('s_add_u32 s28, s12, s55'); b.e('s_addc_u32 s29, s13, 0')
        b.e('s_sub_u32 s30, 4718592, s55'); b.e('s_mov_b32 s31, 0x20000')
    zero = [E(f'v_mov_b32 v{ACC+i}, 0') for i in range(48)]
    run(b, interleave(qk_backbone(SA, '0', nextV='K', first=True, qwait=True), zero))
    b.wait_vm(('kv', 2))
    b.e('s_barrier')
    if KVREG >= 2:
        kvpair_static(b, 6)
        kvpair_static(b, 7)
    elif KVREG:
        kvpair_static(b, 8)
        kvpair_static(b, 9)
        run(b, kv_to_lds(7)[:1] + kv_to_lds(7)[1:] + kv_to_lds(6))
    else:
        kvpair_static(b, 6)
        if LEAD == 8: kvpair_static(b, 7)
    if TOUCH:
        b.e(f'v_lshlrev_b32 v{TMP+7}, {12 if TOUCH == 1 else 17}, v{VL16}')
        b.e('s_mov_b32 s100, 0x20000')
        for base, size, off in ((12, 4718592, 0), (18, 0x1000000, 0), (18, 0x1000000, 0x400000), (18, 0x1000000, 0x800000), (18, 0x3000000, 0x2000000), (18, 0x3000000, 0x2400000), (18, 0x3000000, 0x2800000), (18, 0x3000000, 0x2c00000), (14, 1769472, 0)):
            b.e(f's_mov_b32 s28, s{base}'); b.e(f's_mov_b32 s29, s{base+1}'); b.e(f's_mov_b32 s30, {size}'); b.e('s_mov_b32 s31, 0x20000')
            b.e(f's_mov_b32 s56, {off}')
            b.e(f'buffer_load_dword v{TMP}, v{TMP+7}, s[28:31], s56 offen', ('touch',))
        b.e('s_waitcnt vmcnt(0)')
    run(b, rowmax3(SA))
    for jt in range(3):
        for i in range(4): b.e(f'v_sub_f32 v{NEGM+4*jt+i}, 0, v{MX[jt]}')
    sub = [E(f'v_sub_f32 v{r}, v{r}, v{MX[jt]}') for kt in range(2) for jt in range(3) for r in sregs(SA, jt)[4*kt:4*kt+4]]
    run(b, interleave(qk_backbone(SB, 'negm', nextV=True), sub + sm_fillers(SA)))
    b.e('s_mov_b32 s44, 0')
    if PRIO:
        b.e('s_cmp_ge_u32 s42, 4'); b.e('s_cbranch_scc0 NOPRIO'); b.e('s_setprio 1'); b.e('NOPRIO:')
    stamp(b, 3)
    return b

def winter(backbone, fillers, start, end):
    if not int(OPT.get('cw', 0)): return interleave(backbone, fillers, start, end)
    class Probe:
        def e(self, t, tag=None): self.t = t
    w = []
    for f in fillers:
        p = Probe(); p.t = ''
        try: f(p)
        except Exception: pass
        w.append(2 if p.t.startswith('v_exp') else 1)
    tot = sum(w); n = len(backbone); span = end - start
    out = []; k = 0; acc_ = 0
    for i in range(n):
        out.append(backbone[i])
        if start <= i < end:
            tgt = tot * (i - start + 1) / span
            while k < len(fillers) and acc_ + w[k] / 2 <= tgt:
                out.append(fillers[k]); acc_ += w[k]; k += 1
    return out + fillers[k:]

def pv_phase(ctx, name, P, S, nextK=True, head=None, dma=None, vmw=4, bar=True, extra=(), split=None):
    a = Block(ctx, name)
    if head: head(a)
    if bar:
        a.e(f's_waitcnt vmcnt({(2 if NOBARQK else vmw) + 2 * (LEAD - 6)})')
        a.e('s_barrier')
    fl = ladd_fillers() + (sm_fillers(S)[:split or SM_SPLIT] if S else []) + list(extra)
    run(a, winter(pv_backbone(P, nextK, dma, adv=bar), fl, int(OPT.get('pvs', 2)), 24))
    return a

def qk_phase(ctx, name, D, S, dma):
    b = Block(ctx, name)
    if not NOBARQK:
        b.e('s_waitcnt vmcnt(4)')
        b.e('s_barrier')
    run(b, winter(qk_backbone(D, 'negm', dma=dma), sm_fillers(S)[SM_SPLIT:] + chk_fillers(), 0, 23))
    b.e(f's_cbranch_vccnz {name}_RARE')
    r = rare_path(ctx, name, S, D, 4)
    j = Block(ctx, name + 'j'); j.e(f'{name}_JOIN:')
    return b, r, j

def pol_store(b, text, tag):
    b.e(text + ' sc1', tag)

EXB = 4 * CH
MLB = 24576
XA = SA + 20
def vread_as(b, t, k):
    tau = t // 2
    a = VVO if t % 2 else VVE
    for u in range(2):
        b.e(f'ds_read_b64_tr_b16 {q2(VR+4*(k%4)+2*u)}, v{a} offset:{u*4096 + (tau//2)*1024 + (tau%2)*512}', ('v', k))
def order_of(r): return [4, 5, 6, 7, 0, 1, 2, 3] if r == A else list(range(8))

def last_pv(ctx):
    b = Block(ctx, 'L3')
    b.e('L2_JOIN:')
    setup = tail_setup()
    red = ladd_fillers() + xreduce3([LS, LS + 1, LS + 2], MT, 'v_add_f32')
    for r in (A, B):
        with role(b, r):
            od = order_of(r)
            bb = []
            for k, t in enumerate(od):
                for jt in range(3):
                    def slot_(b, k=k, t=t, jt=jt):
                        if jt == 0 and k % 2 == 0: b.wait_lgkm(('v', k + 1))
                        d = q4(acc(t, jt))
                        b.e(f'{MF} {d}, {q4(VR+4*(k%4))}, {q4(st(SB,0,jt))}, {d}')
                        if jt == 2 and k < 4: vread_as(b, od[k + 4], k + 4)
                    bb.append(slot_)
            snd = [E(f'ds_write_b128 v{XA}, {q4(acc(t, jt))} offset:{(3*i+jt)*1024}', ('x',)) for i, t in enumerate(od[:4]) for jt in range(3)]
            run(b, interleave(bb[:12], red + setup[:10], start=1))
            mixed = []
            for k in range(max(len(snd), len(setup) - 10)):
                if 10 + k < len(setup): mixed.append(setup[10 + k])
                if k < len(snd): mixed.append(snd[k])
            run(b, interleave(bb[12:], mixed, start=0))
    return b

def k1_epilogue(ctx):
    b = Block(ctx, 'epi')
    stamp(b, 4)
    if STAMP and OPT.get('rt4'): b.e('s_memrealtime s[84:85]')
    b.e('s_xor_b32 s46, s42, 4')
    b.e(f'v_lshrrev_b32 v{VVO}, 1, v{VL16}')
    b.e('s_mul_i32 s43, s42, 1536')
    b.e('s_mul_i32 s45, s46, 1536')
    b.e(f's_add_u32 s43, s43, {MLB}')
    b.e(f's_add_u32 s45, s45, {MLB}')
    b.e(f'v_add_u32 v{VKV}, s43, v{VVO}')
    b.e(f'v_add_u32 v{VVO}, s45, v{VVO}')
    for jt in range(3):
        b.e(f'v_mov_b32 v{NEGM+4*jt+1}, v{LS+jt}')
    for jt in range(3):
        b.e(f'ds_write_b64 v{VKV}, {q2(NEGM+4*jt)} offset:{jt*512}', ('x',))
    b.e('s_and_b32 s43, s42, 3')
    b.e('s_mul_i32 s43, s43, 393216')
    b.e('s_lshl_b32 s45, s41, 12')
    b.e('s_add_u32 s43, s43, s45')
    b.e('s_lshl_b32 s45, s54, 11')
    b.e('s_add_u32 s43, s43, s45')
    b.e('s_add_u32 s45, s43, 131072')
    b.e('s_add_u32 s46, s43, 262144')
    so = ['s43', 's45', 's46']
    b.e('s_waitcnt lgkmcnt(0)')
    b.e('s_barrier')
    RX = QF
    ML = SA
    for jt in range(3):
        b.e(f'ds_read_b64 {q2(ML+2*jt)}, v{VVO} offset:{jt*512}', ('ml',))
    for i in range(12):
        b.e(f'ds_read_b128 {q4(RX+4*i)}, v{XA+1} offset:{i*1024}', ('rx', i))
    b.wait_lgkm(('ml',))
    C = SA + 8
    T = [TMP, TMP + 4, TMP + 8]
    def each(f):
        for jt in range(3): b.e(f(jt, NEGM + 4 * jt, NEGM + 4 * jt + 1, ML + 2 * jt, ML + 2 * jt + 1, T[jt]))
    each(lambda jt, no, lo, np_, lp, t: f'v_min_f32 v{t}, v{no}, v{np_}')
    each(lambda jt, no, lo, np_, lp, t: f'v_sub_f32 v{t+1}, v{t}, v{no}')
    each(lambda jt, no, lo, np_, lp, t: f'v_sub_f32 v{t+2}, v{t}, v{np_}')
    each(lambda jt, no, lo, np_, lp, t: f'v_exp_f32 v{t+1}, v{t+1}')
    each(lambda jt, no, lo, np_, lp, t: f'v_exp_f32 v{t+2}, v{t+2}')
    each(lambda jt, no, lo, np_, lp, t: f'v_mul_f32 v{t+3}, v{t+1}, v{lo}')
    each(lambda jt, no, lo, np_, lp, t: f'v_fmac_f32 v{t+3}, v{t+2}, v{lp}')
    each(lambda jt, no, lo, np_, lp, t: f'v_rcp_f32 v{t+3}, v{t+3}')
    b.e('s_nop 0')
    for x, src in ((0, 1), (1, 1), (2, 2), (3, 2)):
        each(lambda jt, no, lo, np_, lp, t: f'v_mul_f32 v{C+4*jt+x}, v{t+src}, v{t+3}')
    OUT = SB
    snap = ctx.snap()
    for r in (A, B):
        with role(b, r):
            keep = range(0, 4) if r == A else range(4, 8)
            for sp in range(2):
                for jt in range(3):
                    o = OUT + 4 * (3 * sp + jt)
                    for h in range(2):
                        i = 2 * sp + h
                        a = acc(keep[i], jt); x = RX + 4 * (3 * i + jt)
                        b.wait_lgkm(('rx', 3 * i + jt))
                        b.e(f'v_pk_mul_f32 {q2(a)}, {q2(a)}, {q2(C+4*jt)}')
                        b.e(f'v_pk_mul_f32 {q2(a+2)}, {q2(a+2)}, {q2(C+4*jt)}')
                        b.e(f'v_pk_fma_f32 {q2(a)}, {q2(x)}, {q2(C+4*jt+2)}, {q2(a)}')
                        b.e(f'v_pk_fma_f32 {q2(a+2)}, {q2(x+2)}, {q2(C+4*jt+2)}, {q2(a+2)}')
                        b.e(f'v_cvt_pk_bf16_f32 v{o+2*h}, v{a}, v{a+1}')
                        b.e(f'v_cvt_pk_bf16_f32 v{o+2*h+1}, v{a+2}, v{a+3}')
                    pol_store(b, f'buffer_store_dwordx4 {q4(o)}, v{VL16}, {srd(S_O)}, {so[jt]} offen offset:{sp*1024}', ('o',))
    if FUSED:
        b.e('s_bfe_u32 s43, s42, 0x10001')
        b.e('s_cmp_eq_u32 s43, s49')
        b.e('s_cbranch_scc0 OWN_SKIP')
        b.e('s_and_b32 s43, s42, 1'); b.e('s_mul_i32 s43, s43, 6144')
        b.e(f's_mul_i32 s45, s54, {OS_}'); b.e('s_add_u32 s43, s43, s45')
        b.e(f'v_add_u32 v{VK}, s43, v{VL16}')
        for sp in range(2):
            for jt in range(3):
                b.e(f'ds_write_b128 v{VK}, {q4(OUT + 4 * (3 * sp + jt))} offset:{(2*jt+sp)*1024}', ('oo',))
        b.e('OWN_SKIP:')
    if not FUSED:
        if STAMP:
            b.e('s_waitcnt vmcnt(0)')
            stamp(b, 5)
            dump_stamps(b)
        b.e('K1_END:')
        b.e('s_endpgm')
    return b

def dump_stamps(b):
    b.e('s_memrealtime s[88:89]')
    b.e('s_waitcnt lgkmcnt(0)')
    if STAMP == 2:
        b.e(f's_cmp_eq_u32 s2, {int(OPT.get("dbgwg", 0))}'); b.e('s_cbranch_scc0 DBG_SKIP')
        b.e('s_cmp_eq_u32 s42, 2'); b.e('s_cbranch_scc0 DBG_SKIP')
        b.e('s_mov_b32 s56, s16'); b.e('s_mov_b32 s57, s17'); b.e('s_mov_b32 s58, 256'); b.e('s_mov_b32 s59, 0x20000')
        b.e('v_mov_b32 v1, 0')
        for i in range(1, 11):
            b.e(f's_sub_u32 s43, s{64+2*i}, s64'); b.e('v_mov_b32 v2, s43')
            b.e(f'buffer_store_dword v2, v1, s[56:59], 0 offen offset:{4*i}')
            b.e('s_waitcnt vmcnt(0)')
        b.e('s_sub_u32 s43, s88, s86'); b.e('v_mov_b32 v2, s43')
        b.e('buffer_store_dword v2, v1, s[56:59], 0 offen offset:44')
        b.e('s_waitcnt vmcnt(0)')
        b.e('DBG_SKIP:')
        return
    b.e('s_lshl_b32 s43, s2, 3'); b.e('s_add_u32 s43, s43, s42'); b.e('s_lshl_b32 s43, s43, 7')
    b.e('s_add_u32 s43, s43, 0x1000000')
    b.e('s_add_u32 s56, s18, s43'); b.e('s_addc_u32 s57, s19, 0'); b.e('s_mov_b32 s58, 128'); b.e('s_mov_b32 s59, 0x20000')
    b.e('v_mov_b32 v1, 0')
    for i in range(13):
        b.e(f'v_mov_b32 v2, s{64+2*i}'); b.e(f'v_mov_b32 v3, s{65+2*i}')
        b.e(f'buffer_store_dwordx2 v[2:3], v1, s[56:59], 0 offen offset:{8*i}')
        b.e('s_waitcnt vmcnt(0)')

def poll(b, name, load, notyet):
    b.e('s_mov_b32 s91, 0')
    b.e(f'{name}:')
    b.e(load)
    b.e('s_add_u32 s91, s91, 1')
    b.e('s_waitcnt vmcnt(0)')
    b.e(notyet)
    b.e('s_cmp_lt_u32 s91, 0x40000')
    b.e(f's_cbranch_vccz {name}_GO')
    b.e(f's_sleep {SLEEP}')
    b.e(f's_cbranch_scc1 {name}')
    b.e(f'{name}_GO:')

BIG, SML, LW, LO = (2, 3), (0, 1, 4, 5), (6,), (7,)
S_WO, S_OI, S_P, S_PI, S_OUT = 20, 24, 28, 32, 36
VAP = 192; VB = 197; VT = 198; VE = 202; GS = 208; XF = 248
WS_ = 20480; NW_ = 6; OS_ = 12288; NO_ = 3; WOB = NO_ * OS_

def tail_setup():
    P = []
    def piece(*lines): P.append(lambda b: [b.e(l) for l in lines])
    piece('s_lshr_b32 s47, s41, 3', 's_and_b32 s48, s41, 7')
    piece('s_lshr_b32 s49, s48, 2', 's_and_b32 s50, s48, 3')
    piece('s_and_b32 s51, s50, 1', 's_mul_i32 s55, s47, 1179648')
    piece('s_mul_i32 s61, s50, 288', 's_add_u32 s55, s55, s61')
    piece('s_lshl_b32 s61, s51, 5', 's_sub_u32 s55, s55, s61')
    piece('s_mul_i32 s61, s40, 1572864', 's_mul_i32 s100, s49, 786432')
    piece('s_add_u32 s61, s61, s100', 's_lshl_b32 s100, s47, 15')
    piece('s_add_u32 s61, s61, s100', f's_sub_u32 s{S_WO+2}, 4718592, s55')
    piece(f's_add_u32 s{S_WO}, s12, s55', f's_addc_u32 s{S_WO+1}, s13, 0')
    piece(f's_add_u32 s{S_OI}, s18, s61', f's_addc_u32 s{S_OI+1}, s19, 0')
    piece(f's_mov_b32 s{S_WO+3}, 0x20000', f's_mov_b32 s{S_OI+2}, {5*131072 + 32768}', f's_mov_b32 s{S_OI+3}, 0x20000')
    piece('s_lshl_b32 s52, s40, 3', 's_add_u32 s52, s52, s48')
    piece(f's_mul_i32 s52, s52, {16*INB}', f's_add_u32 s52, s52, {POFF}')
    piece(f's_mul_i32 s61, s47, {INB}', 's_add_u32 s61, s61, s52')
    piece(f's_add_u32 s{S_P}, s18, s61', f's_addc_u32 s{S_P+1}, s19, 0')
    piece(f's_mov_b32 s{S_P+2}, {13*INB}', f's_mov_b32 s{S_P+3}, 0x20000')
    piece(f's_mul_i32 s61, s47, {4*INB}', 's_add_u32 s61, s61, s52')
    piece(f's_add_u32 s{S_PI}, s18, s61', f's_addc_u32 s{S_PI+1}, s19, 0')
    piece(f's_mov_b32 s{S_PI+2}, {4*INB}', f's_mov_b32 s{S_PI+3}, 0x20000')
    piece('s_mul_i32 s52, s40, 192', 's_mul_i32 s61, s49, 96')
    piece('s_add_u32 s52, s52, s61', 's_lshl_b32 s61, s47, 2')
    piece('s_add_u32 s52, s52, s61', 's_mul_i32 s52, s52, 1152')
    piece('s_mul_i32 s61, s50, 288', 's_add_u32 s6, s52, s61')
    piece('s_lshr_b32 s100, s50, 1', 's_and_b32 s99, s90, 0xfffffc00')
    return P

def head_of(b, U):
    G = U // 2
    b.e(f's_add_u32 s55, s48, {G >> 1}'); b.e('s_and_b32 s55, s55, 3')
    b.e(f's_xor_b32 s61, s48, {(G & 1) << 2}'); b.e('s_and_b32 s61, s61, 4'); b.e('s_or_b32 s55, s55, s61')

def oproj(ctx):
    FB = 64
    b = Block(ctx, 'op_pre')
    stamp(b, 2, True)
    b.e(f'v_lshrrev_b32 v{VT+3}, 4, v{VL16}')
    T0 = 216
    v3, v4, v5, v6, v7 = (f'v{T0+i}' for i in range(5))
    VL = 224
    b.e(f'v_and_b32 {v3}, 3, v{VT+3}')
    with role(b, BIG + SML):
        b.e('s_and_b32 s43, s42, 1')
        b.e('s_cmp_lt_u32 s42, 2'); b.e('s_cselect_b32 s45, 5, 0')
        b.e('s_cmp_ge_u32 s42, 4'); b.e('s_cselect_b32 s45, 7, s45')
        b.e(f'v_lshrrev_b32 {v4}, 4, v{VT+3}'); b.e(f'v_bfe_u32 {v5}, v{VT+3}, 2, 4')
        b.e(f'v_and_b32 {v7}, 7, {v5}'); b.e(f'v_lshlrev_b32 {v7}, 6, {v7}'); b.e(f'v_lshlrev_b32 {v5}, 6, {v5}')
        b.e(f'v_and_b32 {v6}, 1, {v4}'); b.e(f'v_lshlrev_b32 {v6}, 5, {v6}'); b.e(f'v_lshl_add_u32 {v6}, {v3}, 3, {v6}')
        b.e(f'v_add_u32 {v5}, {v5}, {v6}'); b.e(f'v_add_u32 {v7}, {v7}, {v6}')
        b.e(f'v_lshrrev_b32 {v6}, 1, {v4}'); b.e(f'v_lshl_add_u32 {v7}, {v6}, 12, {v7}')
        b.e('s_add_u32 s101, s45, s51')
        for n in range(5):
            b.e(f's_add_u32 s52, s101, {n}')
            b.e('s_and_b32 s91, s52, 1'); b.e('s_lshl_b32 s91, s91, 5')
            b.e('s_lshr_b32 s52, s52, 1'); b.e('s_sub_u32 s52, s52, s100')
            b.e('s_and_b32 s54, s52, 1'); b.e('s_lshl_b32 s54, s54, 9')
            b.e('s_lshr_b32 s55, s52, 1'); b.e('s_lshl_b32 s55, s55, 13'); b.e('s_add_u32 s54, s54, s55')
            b.e('s_cmp_lt_u32 s52, 4'); b.e('s_cselect_b32 s54, s54, 16384'); b.e('s_cselect_b64 vcc, -1, 0')
            b.e(f's_add_u32 s54, s54, {WOB}')
            b.e(f'v_cndmask_b32 v{VAP+n}, {v5}, {v7}, vcc')
            b.e(f'v_xor_b32 v{VAP+n}, s91, v{VAP+n}'); b.e(f'v_add_u32 v{VAP+n}, s54, v{VAP+n}')
        b.e('s_mul_i32 s52, s43, 6144')
        b.e(f'v_add_u32 v{VB}, s52, v{VL16}')
        b.e(f'v_bfe_u32 {v6}, v{VT+3}, 2, 2'); b.e(f'v_mul_u32_u24 {v6}, {4*INB}, {v6}')
        b.e(f'v_lshl_add_u32 {v6}, {v4}, 6, {v6}'); b.e(f'v_lshl_add_u32 v{VT+2}, {v3}, 4, {v6}')
        b.e('s_mul_i32 s52, s43, 27'); b.e('s_add_u32 s52, s52, s45'); b.e('s_lshl_b32 s5, s52, 8')
        b.e('s_mul_i32 s52, s43, 9'); b.e('s_add_u32 s52, s52, s45'); b.e('s_lshl_b32 s4, s52, 9')
    b.e(f'v_bfe_u32 {v4}, v{VT+3}, 2, 3'); b.e(f'v_lshrrev_b32 {v5}, 2, v{VT+3}')
    b.e('s_cmp_eq_u32 s42, 7'); b.e('s_cselect_b64 vcc, -1, 0')
    b.e(f'v_lshrrev_b32 {v6}, 5, v{VT+3}'); b.e(f'v_lshlrev_b32 {v6}, 6, {v6}')
    b.e(f'v_cndmask_b32 {v4}, {v4}, {v5}, vcc'); b.e(f'v_cndmask_b32 {v6}, {v6}, 0, vcc')
    b.e(f'v_mul_u32_u24 {v5}, 1152, {v4}'); b.e(f'v_add_u32 {v5}, {v5}, {v6}')
    b.e(f'v_bfe_u32 {v4}, {v4}, 2, 1'); b.e(f'v_lshlrev_b32 {v4}, 1, {v4}'); b.e(f'v_xor_b32 {v4}, {v4}, {v3}')
    b.e(f'v_lshl_add_u32 {v5}, {v4}, 4, {v5}')
    b.e('s_lshl_b32 s52, s100, 6'); b.e('s_lshl_b32 s54, s100, 8'); b.e('s_sub_u32 s54, 256, s54')
    b.e('s_cmp_eq_u32 s42, 7'); b.e('s_cselect_b32 s52, s54, s52')
    b.e(f'v_add_u32 v{VL}, s52, {v5}')
    for m in range(1, 4): b.e(f'v_add_u32 v{VL+m}, {m*(18432-1024)}, v{VL}')
    b.e(f'v_add_u32 v{VL+4}, {131072-2048}, v{VL16}')
    b.e(f'v_and_b32 v{VL+5}, 0x70, v{VL16}'); b.e(f'v_lshlrev_b32 v{VL+5}, 3, v{VL+5}')
    b.e('s_lshl_b32 s91, s42, 6')
    b.e(f'v_add_u32 v{VT}, s91, v{VT+3}')
    b.e(f'v_lshlrev_b32 v{VT}, 20, v{VT}')
    b.e(f'v_mov_b32 v{VT+1}, s97')
    b.e('s_waitcnt lgkmcnt(0)')
    b.wait_vm(('o',))
    b.e('s_barrier')
    b.e(f'buffer_store_dword v{VT+1}, v{VT}, {srd(S_F)}, s90 offen sc1', ('f1',))
    stamp(b, 5)
    b.e('s_cmp_eq_u32 s42, 6'); b.e('s_cbranch_scc1 OP_LW')
    b.e('s_cmp_eq_u32 s42, 7'); b.e('s_cbranch_scc1 OP_LO')
    b.e('s_bitcmp1_b32 12, s42'); b.e('s_cbranch_scc1 OP_BIG')

    def wo_off(x, U):
        head_of(x, U)
        x.e('s_mul_i32 s55, s55, 147456')
        if U % 2: x.e('s_add_u32 s55, s55, 73728')
    def wo_full(x, U):
        wo_off(x, U)
        for ty in range(4):
            x.e(f's_mov_b32 m0, {WOB + (U % NW_) * WS_ + ty * 4096}')
            x.e(f's_add_u32 s56, s55, {(ty % 2) * 9216 + (ty // 2) * 128}')
            for m in range(4):
                x.e(f'buffer_load_dwordx4 v{VL+m}, {srd(S_WO)}, s56 offen offset:{m*1024} lds', ('w', U))
    def wo_half(x, U):
        wo_off(x, U)
        x.e(f's_mov_b32 m0, {WOB + (U % NW_) * WS_ + 16384}')
        x.e('s_nop 0')
        for m in range(4):
            x.e(f'buffer_load_dwordx4 v{VL+m}, {srd(S_WO)}, s55 offen offset:{m*1024} lds', ('w', U))
    def o_unit(x, U):
        head_of(x, U)
        if U % 2 == 0:
            role.n += 1; l = f'HP{role.n}'
            x.e('s_bitcmp1_b32 s3, s55')
            x.e(f's_cbranch_scc0 {l}_GO')
            for t in ['s_mov_b32 s91, 0', f'{l}:', f'buffer_load_dword v{VL+6}, v{VL+5}, {srd(S_F)}, s99 offen sc1', 's_add_u32 s91, s91, 1',
                      's_waitcnt vmcnt(0)', f'v_cmp_ne_u32 vcc, s97, v{VL+6}', 's_nop 0', 's_mov_b32 s3, vcc_lo', 's_bitcmp1_b32 s3, s55',
                      f's_cbranch_scc0 {l}_GO', f's_sleep {SLEEP}', 's_cmp_lt_u32 s91, 0x40000', f's_cbranch_scc1 {l}']:
                i = I(t); i.roles = (); x.append(i)
            x.e(f'{l}_GO:')
        x.e('s_lshl_b32 s55, s55, 12')
        if U % 2: x.e('s_add_u32 s55, s55, 2048')
        for g in range(3):
            x.e(f's_mov_b32 m0, {(U % NO_) * OS_ + g * 4096}')
            x.e(f's_add_u32 s56, s55, {g * 262144}')
            for m in range(4):
                x.e(f'buffer_load_dwordx4 v{VL16 if m < 2 else VL+4}, {srd(S_OI)}, s56 offen offset:{m*1024} lds', ('o2', U))
    def vwait(x, *tags):
        n = [ctx.count_after('vm', t) for t in tags]
        n = [k for k in n if k is not None]
        if n: x.e(f's_waitcnt vmcnt({min(min(n), 47)})')
    snap = ctx.snap()
    lw = Block(ctx, 'lw'); ctx.active = list(LW)
    lw.e('OP_LW:')
    wo_full(lw, 0); wo_full(lw, 1)
    lw.e('s_waitcnt vmcnt(0)'); lw.e('s_barrier')
    for U in (2, 3, 4): wo_full(lw, U)
    lw.e('s_waitcnt vmcnt(47)'); wo_full(lw, 5)
    vwait(lw, ('w', 2))
    lw.e('s_barrier')
    wo_full(lw, 6)
    lw.e('s_waitcnt vmcnt(47)'); wo_full(lw, 7)
    for U in range(2, 16):
        if U < 15: vwait(lw, ('w', U + 1))
        lw.e('s_barrier')
        if U + NW_ < 16:
            if len(ctx.c[6].vm) > 47: lw.e('s_waitcnt vmcnt(47)')
            wo_full(lw, U + NW_)
    lw.e('s_barrier')
    lw.e('s_branch OP_DONE')
    lo = Block(ctx, 'lo'); ctx.active = list(LO)
    lo.e('OP_LO:')
    lo.e('s_mov_b32 s3, 0xff')
    wo_half(lo, 0); wo_half(lo, 1)
    lo.e('s_waitcnt vmcnt(0)'); lo.e('s_barrier')
    wo_half(lo, 2); wo_half(lo, 3)
    stamp(lo, 3, True)
    o_unit(lo, 2)
    wo_half(lo, 4); wo_half(lo, 5)
    vwait(lo, ('o2', 2)); lo.e('s_barrier')
    o_unit(lo, 3); o_unit(lo, 4); wo_half(lo, 6); wo_half(lo, 7)
    for U in range(2, 16):
        if U < 15: vwait(lo, ('o2', U + 1), ('w', U + 1))
        lo.e('s_barrier')
        if U + NO_ < 16: o_unit(lo, U + NO_)
        if U + NW_ < 16: wo_half(lo, U + NW_)
    lo.e('s_barrier')
    lo.e('s_branch OP_DONE')

    OWN = 0
    def compute(name, waves, NT):
        ctx.restore(snap); ctx.active = list(waves)
        c = Block(ctx, name); lp = Block(ctx, name + 'l'); e = Block(ctx, name + 'e')
        c.e(f'{name}:')
        SZ = 4 * (NT + 3)
        def fA(U, k, n): return FB + 2 * SZ * (U % 2) + SZ * k + 4 * n
        def fB(U, k, j): return FB + 2 * SZ * (U % 2) + SZ * k + 4 * NT + 4 * j
        def rd(U):
            r = []
            for k in range(2):
                r += [E(f'ds_read_b128 {q4(fB(U,k,j))}, v{VB} offset:{(2*j+k)*1024}', ('f', U)) for j in range(3)]
                for n in range(NT):
                    r += [E(f'ds_read_b64_tr_b16 {q2(fA(U,k,n)+2*u)}, v{VAP+n} offset:{k*2048 + u*1024}', ('f', U)) for u in range(2)]
            return r
        def adv(b):
            b.e(f's_cmp_ge_u32 s46, {(NW_-1)*WS_}'); b.e(f's_cselect_b32 s52, s54, s53'); b.e('s_add_u32 s46, s46, s52')
            for n in range(NT): b.e(f'v_add_u32 v{VAP+n}, s52, v{VAP+n}')
            b.e(f's_cmp_ge_u32 s45, {(NO_-1)*OS_}'); b.e(f's_cselect_b32 s52, s101, s100'); b.e('s_add_u32 s45, s45, s52')
            b.e(f'v_add_u32 v{VB}, s52, v{VB}')
        def mmu(U, first=False):
            return [E(f'{MF} {q4(12*n+4*j)}, {q4(fA(U,k,n))}, {q4(fB(U,k,j))}, {"0" if first and k == 0 else q4(12*n+4*j)}')
                    for k in range(2) for n in range(NT) for j in range(3)]
        c.e('s_mov_b32 s46, 0'); c.e(f's_mov_b32 s53, {WS_}'); c.e(f's_mov_b32 s54, {(-(NW_-1)*WS_) & 0xffffffff}')
        c.e('s_mov_b32 s45, 0'); c.e(f's_mov_b32 s100, {OS_}'); c.e(f's_mov_b32 s101, {(-(NO_-1)*OS_) & 0xffffffff}')
        c.e('s_mov_b32 s44, 0')
        if OWARM:
            c.e(f'v_lshrrev_b32 v{GS}, 5, v{VT+3}'); c.e(f'v_lshlrev_b32 v{GS}, 17, v{GS}')
            c.e(f'v_and_b32 v{GS+1}, 31, v{VT+3}'); c.e(f'v_lshl_add_u32 v{GS}, v{GS+1}, 7, v{GS}')
            c.e('s_lshl_b32 s55, s42, 18'); c.e('s_lshl_b32 s61, s41, 12'); c.e('s_add_u32 s55, s55, s61')
            if OWARM == 2: c.e(f'buffer_load_dword v{XF+3}, v{GS}, {srd(S_O)}, s55 offen', ('ow',))
        c.e('s_barrier')
        stamp(c, 6)
        if OWARM == 1: c.e(f'buffer_load_dword v{XF+3}, v{GS}, {srd(S_O)}, s55 offen', ('ow',))
        c.e(f's_add_u32 s{S_OUT}, s14, s6'); c.e(f's_addc_u32 s{S_OUT+1}, s15, 0')
        c.e(f's_sub_u32 s{S_OUT+2}, 1769472, s6'); c.e(f's_mov_b32 s{S_OUT+3}, 0x20000')
        run(c, rd(0)); adv(c)
        c.e('s_waitcnt lgkmcnt(0)')
        run(c, interleave(mmu(0, True), rd(1) + [adv], end=6 * NT - 2))
        c.e('s_waitcnt lgkmcnt(0)')
        run(c, mmu(1))
        c.e('s_barrier')
        stamp(c, 1, True)
        run(c, rd(0)); adv(c)
        def unit(x, U, extra=(), last=False):
            x.e('s_waitcnt lgkmcnt(0)')
            x.e('s_barrier')
            run(x, interleave(mmu(U), ([] if last else rd(U + 1) + [adv]) + list(extra), end=6 * NT - 2))
        lp.e(f'{name}_LOOP:')
        unit(lp, 0); unit(lp, 1)
        lp.e('s_add_u32 s44, s44, 1'); lp.e('s_cmp_lt_u32 s44, 6'); lp.e(f's_cbranch_scc1 {name}_LOOP')
        fin = []
        def P(*lines): fin.extend(E(l) for l in lines)
        X = GS
        P('s_mov_b32 s7, 288', 's_lshl_b32 s6, s42, 6', f'v_add_u32 v{X}, s6, v{VT+3}')
        P(f'v_cmp_gt_u32 s[8:9], s7, v{X}', f'v_subrev_u32 v{X+1}, 32, v{X}', f'v_mov_b32 v{X+7}, 0x40000000')
        P(f'v_cndmask_b32 v{X}, v{X+1}, v{X}, s[8:9]', f'v_lshrrev_b32 v{X+1}, 4, v{X}')
        P(f'v_and_b32 v{X+2}, 15, v{X}', f'v_lshlrev_b32 v{X+2}, 4, v{X+2}', f'v_lshl_add_u32 v{XF}, v{X+1}, 9, v{X+2}')
        P(f'v_mul_u32_u24 v{X+4}, 57, v{X+1}', f'v_lshrrev_b32 v{X+4}, 9, v{X+4}')
        P(f'v_mul_u32_u24 v{X+5}, 18, v{X+4}', f'v_add_u32 v{X+5}, v{X+5}, v{X+1}')
        P(f'v_lshl_add_u32 v{XF+1}, v{X+5}, 8, v{X+2}')
        P(f'v_mul_u32_u24 v{X+6}, 9, v{X+4}', f'v_sub_u32 v{X+1}, v{X+1}, v{X+6}')
        P(f'v_mul_u32_u24 v{X+4}, 48, v{X+4}', f'v_and_b32 v{X+6}, 3, v{X}', f'v_add_u32 v{X+4}, v{X+4}, v{X+6}')
        P(f'v_mul_u32_u24 v{X+4}, 1152, v{X+4}', f'v_lshl_add_u32 v{X+4}, v{X+1}, 5, v{X+4}')
        P(f'v_bfe_u32 v{X+6}, v{X}, 2, 2', f'v_lshl_add_u32 v{X+4}, v{X+6}, 3, v{X+4}')
        P(f'v_cndmask_b32 v{XF+2}, v{X+7}, v{X+4}, s[8:9]')
        for i in range(3): P(f's_add_u32 s{56+i}, s47, {i+1}', f's_and_b32 s{56+i}, s{56+i}, 3', f's_mul_i32 s{56+i}, s{56+i}, {INB}')
        P('s_mov_b32 s10, 18432', 's_mov_b32 s11, 36864', 's_mov_b32 s59, 0xffff0000')
        fin2 = []
        fin2.append(lambda b: [b.e(l) for l in (f'v_bfe_u32 v{VE+2}, v{VT+3}, 2, 2', f'v_cmp_eq_u32 vcc, s47, v{VE+2}', f'v_mov_b32 v{VE+2}, 0x40000000',
                    f'v_and_b32 v{VE}, 0xff, v{VT+2}', f'v_cndmask_b32 v{VT+2}, v{VT+2}, v{VE+2}, vcc', f'v_lshlrev_b32 v{VE+1}, 2, v{VT+3}',
                    f'v_add_u32 v{VE+1}, {OWN+16384}, v{VE+1}', f'v_add_u32 v{VE}, s5, v{VE}',
                    f'v_and_b32 v{VE+1}, 0xfffffff0, v{VE+1}', f'v_cndmask_b32 v{VE}, v{VE+1}, v{VE}, vcc')])
        fin2 += [E(f'v_mov_b32 v{GS+4*k+3}, s98') for k in range(2 * NT)]
        unit(e, 14, fin)
        e.e('s_waitcnt lgkmcnt(0)')
        e.e('s_barrier')
        m = mmu(15)
        def send(n):
            r = [E(f'v_cvt_pk_bf16_f32 v{GS + 8*n + 4*(x//3) + x%3}, v{12*n+2*x}, v{12*n+2*x+1}') for x in range(6)]
            r += [E(f'buffer_store_dwordx4 {q4(GS+8*n+4*hf)}, v{VT+2}, {srd(S_P)}, s4 offen offset:{n*512 + hf*256} sc1', ('p',)) for hf in range(2)]
            r += [E(f'ds_write_b128 v{VE}, {q4(12*n+4*j)} offset:{j*2304 + n*256}', ('own',)) for j in range(3)]
            return r
        for n in range(NT):
            grp = m[3 * n:3 * n + 3] + m[3 * NT + 3 * n:3 * NT + 3 * n + 3]
            run(e, interleave(grp, fin2 if n == 0 else (send(n - 2) if n >= 2 else [])))
        stamp(e, 7)
        if NT == 2: e.e('s_nop 1')
        run(e, send(NT - 2)); run(e, send(NT - 1))
        if name != 'OP_BIG': e.e('s_branch OP_FIN')
        return c, lp, e
    sm = compute('OP_SML', SML, 2)
    bg = compute('OP_BIG', BIG, 5)
    ctx.active = list(BIG + SML)
    e = Block(ctx, 'op_end')
    e.e('OP_FIN:')
    e.e('s_waitcnt lgkmcnt(0)')
    e.e('s_barrier')
    stamp(e, 8)
    e.e('s_cmp_ge_u32 s42, 5')
    e.e('s_cbranch_scc1 OP_DONE')
    R0 = 168; OW = 64; X = 128
    for j in range(3): e.e(f'ds_read_b128 {q4(OW+4*j)}, v{XF+1} offset:{j*2304}', ('ow',))
    loads = '\n'.join(f'buffer_load_dwordx4 {q4(R0+8*src+4*hf)}, v{XF}, {srd(S_PI)}, s{56+src} offen offset:{hf*256} sc1' for src in range(3) for hf in range(2))
    chk = [f'v_xor_b32 v{X+6}, s98, v{R0+3}']
    for k in range(1, 6):
        chk += [f'v_xor_b32 v{X+7}, s98, v{R0+4*k+3}', f'v_or_b32 v{X+6}, v{X+6}, v{X+7}']
    chk.append(f'v_cmp_ne_u32 vcc, 0, v{X+6}')
    poll(e, 'OP_P2', loads, '\n'.join(chk))
    stamp(e, 9)
    e.e(f'buffer_store_dword v{VT+1}, v{VT}, {srd(S_F)}, s96 offen sc1', ('ep',))
    e.e('s_waitcnt lgkmcnt(0)')
    so = ['0', 's10', 's11']
    for j in range(3):
        for p in range(2):
            x = 2 * j + p
            for src in range(3):
                r = R0 + 8 * src + 4 * (x // 3) + x % 3
                e.e(f'v_lshlrev_b32 v{X+6}, 16, v{r}'); e.e(f'v_and_b32 v{X+7}, s59, v{r}')
                e.e(f'v_add_f32 v{OW+2*x}, v{OW+2*x}, v{X+6}'); e.e(f'v_add_f32 v{OW+2*x+1}, v{OW+2*x+1}, v{X+7}')
            e.e(f'v_cvt_pk_bf16_f32 v{OW+16+x}, v{OW+2*x}, v{OW+2*x+1}')
        e.e(f'buffer_store_dwordx2 {q2(OW+16+2*j)}, v{XF+2}, {srd(S_OUT)}, {so[j]} offen {OPT.get("outpol", "")}')
    ctx.active = ALLW
    e.e('OP_DONE:')
    if STAMP:
        if not OPT.get('rt4'): stamp(e, 10)
        dump_stamps(e)
    e.e('K1_END:')
    e.e('s_endpgm')
    traces = {}
    for w in SML: traces[w] = [b, sm[0], sm[1], sm[1], sm[2], e]
    for w in BIG: traces[w] = [b, bg[0], bg[1], bg[1], bg[2], e]
    traces[6] = [b, lw]; traces[7] = [b, lo]
    TXN = OPT.get('tx', '')
    if TXN:
        def after_c(blk):
            n = 0; out = []
            for i in blk:
                if i.kind == 'barrier': n += 1
                drop = n >= 2 and getattr(i, 'sub', '') == 'dma' and (TXN == 'none' or (TXN == 'noo' and 's[24:27]' in i.text) or (TXN == 'nowo' and 's[20:23]' in i.text))
                if not drop: out.append(i)
            blk[:] = out
        after_c(lw); after_c(lo); after_c(sm[0])
        if TXN in ('none', 'nowo'):
            for blk in sm[1:]: blk[:] = [i for i in blk if getattr(i, 'sub', '') != 'dma']
    return [b] + list(sm) + list(bg) + [e, lw, lo], traces

def kernel1():
    ctx = MCtx(8)
    pro = k1_prologue(ctx)
    qp = k1_qproj(ctx)
    ap = k1_att_prologue(ctx)
    p1 = pv_phase(ctx, 'P1', SA, SB, head=lambda a: a.e('K1_LOOP:'), dma=guarded(dma_v, 0) if LEAD == 6 else dma_v)
    SK2 = int(OPT.get('sk2', 2))
    p2 = qk_phase(ctx, 'P2', SA, SB, guarded(dma_k, 0) if KVREG else dma_k)
    p3 = pv_phase(ctx, 'P3', SB, SA, dma=guarded(dma_v, SK2) if KVREG == 1 else dma_v)
    p4 = qk_phase(ctx, 'P4', SB, SA, guarded(dma_k, SK2) if KVREG == 1 else dma_k)
    p4[2].e('s_add_u32 s44, s44, 1')
    p4[2].e('s_cmp_lt_u32 s44, 7')
    p4[2].e('s_cbranch_scc1 K1_LOOP')
    def warm(b):
        b.e(f'v_lshrrev_b32 v{KR}, 6, v{VL16}'); b.e(f'v_mul_u32_u24 v{KR}, 1152, v{KR}')
        b.e(f'v_and_b32 v{KR+1}, 48, v{VL16}'); b.e(f'v_lshlrev_b32 v{KR+1}, 3, v{KR+1}'); b.e(f'v_min_u32 v{KR+1}, 316, v{KR+1}')
        b.e(f'v_add_u32 v{KR}, v{KR}, v{KR+1}')
        b.e(f'buffer_load_dword v{SA+23}, v{KR}, s[28:31], 0 offen', ('warm',))
    l1 = pv_phase(ctx, 'L1', SA, SB, nextK=False, dma=warm if (FUSED and WARM) else None, split=LSPLIT)
    l2 = Block(ctx, 'L2')
    l2.e(f's_waitcnt vmcnt({1 if WARM else 0})')
    l2.e('s_barrier')
    if OPT.get('l2s'): stamp(l2, 2)
    for r in (A, B):
        with role(l2, r):
            for k in range(4): vread_as(l2, order_of(r)[k], k)
    l2.e('s_mul_i32 s43, s42, 12288'); l2.e('s_xor_b32 s46, s42, 4'); l2.e('s_mul_i32 s46, s46, 12288')
    l2.e(f's_add_u32 s43, s43, {EXB}'); l2.e(f's_add_u32 s46, s46, {EXB}')
    l2.e(f'v_add_u32 v{XA}, s43, v{VL16}'); l2.e(f'v_add_u32 v{XA+1}, s46, v{VL16}')
    run(l2, sm_fillers(SB)[LSPLIT:] + chk_fillers())
    l2.e('s_cbranch_vccnz L2_RARE')
    l2r = rare_path(ctx, 'L2', SB, None, 2)
    l3 = last_pv(ctx)
    ep = k1_epilogue(ctx)
    errs = []
    body = [p1, p2[0], p2[2], p3, p4[0], p4[2]]
    bodyr = [p1, p2[0], p2[1], p2[2], p3, p4[0], p4[1], p4[2]]
    last = [l1, l2, l3, ep]
    lastr = [l1, l2, l2r, l3, ep]
    tail, ttr = oproj(ctx)
    for r in ALLW:
        errs += check_trace([pro, qp, ap] + body + body + last + ttr[r], f'main{r}', r)
        errs += check_trace([pro, qp, ap] + bodyr + bodyr + body + lastr, f'rare{r}', r)
    if NOCOMP:
        for blk in body:
            keep = [i for i in blk if i.kind not in ('mfma', 'valu', 'trans') and not (NOCOMP > 1 and i.kind == 'ds') and 'vccnz' not in i.text]
            blk[:] = keep
        errs = []
    DROP = OPT.get('drop', '')
    if DROP:
        D = DROP.split(',')
        def dropit(i):
            t = i.text
            if 'vccnz' in t: return True
            if 'exp' in D and t.startswith('v_exp'): return True
            if 'add' in D and t.startswith('v_add_f32'): return True
            if 'cvt' in D and t.startswith('v_cvt'): return True
            if 'ds' in D and i.kind == 'ds': return True
            if 'wait' in D and i.kind == 'wait': return True
            if 'bar' in D and i.kind == 'barrier': return True
            if 'adv' in D and (t.startswith('v_add_u32') or t.startswith('s_cmp_ge') or t.startswith('s_cselect') or t.startswith('s_add_u32 s45') or t.startswith('s_add_u32 s46')): return True
            if 'mfma' in D and i.kind == 'mfma': return True
            return False
        for blk in body: blk[:] = [i for i in blk if not dropit(i)]
        errs = []
    order = [pro, qp, ap] + body + last + tail + [p2[1], p4[1], l2r]
    return order, errs

def kernel2():
    ctx = MCtx(8)
    b = Block(ctx, 'k2')
    b.e('s_cmp_ge_u32 s2, 256')
    b.e('s_cbranch_scc1 K2_END')
    b.e('s_load_dwordx8 s[12:19], s[0:1], 32')
    if STAMP:
        for i in range(6): b.e(f's_memtime s[{64+2*i}:{65+2*i}]')
        b.e('s_memrealtime s[86:87]')
    b.e('v_lshrrev_b32 v1, 6, v0')
    b.e('v_and_b32 v0, 63, v0')
    b.e('v_readfirstlane_b32 s42, v1')
    b.e('s_and_b32 s43, s2, 7'); b.e('s_lshr_b32 s44, s2, 3')
    b.e('s_and_b32 s40, s43, 1'); b.e('s_lshl_b32 s40, s40, 2'); b.e('s_and_b32 s45, s44, 3'); b.e('s_add_u32 s40, s40, s45')
    b.e('s_lshr_b32 s41, s43, 1'); b.e('s_lshl_b32 s41, s41, 3'); b.e('s_lshr_b32 s46, s44, 2'); b.e('s_add_u32 s41, s41, s46')
    b.e(f'v_lshlrev_b32 v{VL16}, 4, v0')
    b.e('s_waitcnt lgkmcnt(0)')
    flag_srd(b)
    epoch_load(b, 222)
    b.e('s_waitcnt vmcnt(0)')
    epoch_tags(b, 222)
    run(b, tail_setup())
    t = oproj(ctx)
    errs = []
    for r in ALLW: errs += check_trace([b, t[0], t[1], t[1], t[2], t[2], t[3]], f'k2_{r}', r)
    return [b] + list(t), errs

HEADER = open('standalone__mha_block_cached__near_ridge.s.ref').read().split('; Override')[0]

DOC = '''; One workgroup per (batch, head), 8 waves, one launch:
;  3. the 8 heads of a group trade o through d_ws; every workgroup multiplies a 96 x 144 output tile over
;     these 8 heads; the 4 head groups trade the partial sums (tagged granules) and each finishes a quarter.
; Hand-off words carry a launch tag derived from an epoch word in d_ws that the launch advances at its end.
'''

def kd(name, vgpr, sgpr=96):
    return f'''.amdhsa_kernel {name}
  .amdhsa_next_free_vgpr {vgpr}
  .amdhsa_next_free_sgpr {sgpr}
  .amdhsa_accum_offset {(vgpr+3)//4*4}
  .amdhsa_group_segment_fixed_size 0
  .amdhsa_kernarg_size 64
  .amdhsa_user_sgpr_count 2
  .amdhsa_user_sgpr_kernarg_segment_ptr 1
  .amdhsa_system_sgpr_workgroup_id_x 1
.end_amdhsa_kernel
'''

def main():
    k1, e1 = kernel1()
    k2, e2 = kernel2() if not FUSED else ([], [])
    for e in list(dict.fromkeys(x.split('] ', 1)[1] for x in e1 + e2))[:12]: print('CHECK', e, file=sys.stderr)
    out = HEADER
    if FUSED:
        N = 'standalone__mha_block_cached__near_ridge_kernel'
        out += f'; @launch grid=(256,1,1) block=(512,1,1) lds={LDS_TOT}\n'
        ks = [(N, k1)]
    else:
        out += f'; @launch kernel=mha_attn_kernel grid=(256,1,1) block=(512,1,1) lds={LDS_TOT}\n'
        out += f'; @launch kernel=mha_oproj_kernel grid=(256,1,1) block=(512,1,1) lds={LDS_TOT}\n'
        ks = [('mha_attn_kernel', k1), ('mha_oproj_kernel', k2)]
    out += DOC + '.amdgcn_target "amdgcn-amd-amdhsa--gfx950"\n.text\n'
    for name, blocks in ks:
        out += f'.globl {name}\n.p2align 8\n.type {name},@function\n{name}:\n'
        out += '\n'.join(b.text() for b in blocks) + '\n'
    out += '.section .rodata,"a"\n'
    for name, _ in ks: out += '.p2align 6\n' + kd(name, 256, 102)
    open(sys.argv[1], 'w').write(out)
    if e1 or e2: sys.exit(1)
main()
```

```python
import sys, struct, math
from asmlib import *

OPT = dict(a.split('=') for a in sys.argv[2:] if '=' in a)
STAMP = int(OPT.get('stamp', 0))
KVPOL = OPT.get('kvpol', 'nt')
XPOL = OPT.get('xpol', '')
WPOL = OPT.get('wpol', '')
OSTPOL = OPT.get('ostpol', 'sc1' if OPT.get('fused', '1') == '1' else '')
OLDPOL = OPT.get('oldpol', '')
WOPOL = OPT.get('wopol', '')
THR = float(OPT.get('thr', 2048.0))
NOBARQK = int(OPT.get('nobarqk', 1))
SKIPT = int(OPT.get('skipt', 0))
STAG = int(OPT.get('stag', 0))
ROT = int(OPT.get('rot', 1))
ROT2 = int(OPT.get('rot2', 1))
SM_SPLIT = int(OPT.get('split', 24))
CHK_AT = int(OPT.get('chk', 8))
PRIO = int(OPT.get('prio', 0))
K2D = int(OPT.get('k2d', 4))
NODMA = int(OPT.get('nodma', 0))
NOCOMP = int(OPT.get('nocomp', 0))
NOKVQ = int(OPT.get('nokvq', 0))
FUSED = int(OPT.get('fused', 1))
OLD2 = OPT.get('old2', 'sc1')
SLEEP = int(OPT.get('sleep', 1))
F1POL = OPT.get('f1pol', 'sc1')
WOPRE = int(OPT.get('wopre', 5))
TOUCH = int(OPT.get('touch', 0))
WOEARLY = int(OPT.get('woearly', 0))
WARM = int(OPT.get('warm', 1))
FAST = int(OPT.get('fast', 0))
PAIRW = int(OPT.get('pairw', 1))
KVREG = int(OPT.get('kvreg', 0))
KV1 = int(OPT.get('kv1', 1))
NC = int(OPT.get('nc', 1))
EARLY = int(OPT.get('early', 0))
ORD = int(OPT.get('ord', 1))
LSPLIT = int(OPT.get('lsplit', 57))
LEAD = int(OPT.get('lead', 6))
OWARM = int(OPT.get('owarm', 0))
KROT = int(OPT.get('krot', 0))
NOX = int(OPT.get('nox', 0))
NOWQ = int(OPT.get('nowq', 0))
MAP = OPT.get('map', '4x8')
KVSCHED = [int(x) for x in OPT.get('kvs', '0,2,3,5,6,8,9,11,12,14').split(',') if x]

def f2u(f): return struct.unpack('<I', struct.pack('<f', f))[0]
SCALE = math.log2(math.e) / math.sqrt(128.0)
MF = 'v_mfma_f32_16x16x32_bf16'
def q4(n): return f'v[{n}:{n+3}]'
def q2(n): return f'v[{n}:{n+1}]'

ACC = 0; QF = 96; SA = 144; SB = 168; KR = 192; VR = 208; NEGM = 224
TMP = 236; VK = 248; VVE = 249; VVO = 250; LS = 251; VL16 = 254; VKV = 255
RING = 10; CH = 16384; LDS_TOT = RING * CH
QB = 114688
SLOT = 40960
S_K, S_V, S_X, S_WQ, S_O = 20, 24, 28, 32, 36
FS = 96
VXD = 208; VWD = 211; VXR = 213; VAE = 215; VAO = 217; VQE = 219; VQO = 220; VQR = 221; VKW = 244
def srd(n): return f's[{n}:{n+3}]'
def acc(t, jt): return ACC + 12 * t + 4 * jt
def qf(s, jt): return QF + 12 * s + 4 * jt
def st(S, kt, jt): return S + 12 * kt + 4 * jt
ALLW = list(range(8))
A, B = (0, 1, 2, 3), (4, 5, 6, 7)

TST = int(OPT.get('tst', 0))
def stamp(b, idx, fine=False, it=False):
    if TST == 2:
        if it or idx in (0, 4): b.e(f's_memtime s[{64+2*idx}:{65+2*idx}]')
        return
    if it: return
    if TST and idx in (1, 2, 3) and not fine: return
    if fine and not TST: return
    if STAMP: b.e(f's_memtime s[{64+2*idx}:{65+2*idx}]')

class role:
    n = 0
    def __init__(self, b, waves): self.b, self.w = b, list(waves)
    def __enter__(self):
        role.n += 1; self.l = f'RL{role.n}'
        self.b.e(f's_bitcmp1_b32 {sum(1 << w for w in self.w)}, s42')
        self.b.e(f's_cbranch_scc0 {self.l}')
        self.b.ctx.active = self.w
    def __exit__(self, *a):
        self.b.ctx.active = ALLW
        self.b.e(f'{self.l}:')

def E(text, tag=None): return lambda b: b.e(text, tag)
def run(b, lst):
    for f in lst: f(b)

def chunk_of(n):
    if n == 0: return ('K', 0)
    if n % 2 == 1: return ('K', (n + 1) // 2)
    return ('V', (n - 2) // 2)

def k1_prologue(ctx):
    b = Block(ctx, 'k1_pro')
    b.e('s_cmp_ge_u32 s2, 256')
    b.e('s_cbranch_scc1 K1_END')
    b.e('s_load_dwordx8 s[4:11], s[0:1], 0')
    b.e('s_load_dwordx8 s[12:19], s[0:1], 32')
    if STAMP:
        b.e('s_memtime s[64:65]')
        b.e('s_memrealtime s[86:87]')
    b.e('v_lshrrev_b32 v1, 6, v0')
    b.e('v_and_b32 v0, 63, v0')
    b.e('v_readfirstlane_b32 s42, v1')
    b.e('s_and_b32 s43, s2, 7')
    b.e('s_lshr_b32 s44, s2, 3')
    nb = int(MAP.split('x')[0]); lb = nb.bit_length() - 1
    nh = 32 // nb; xb = 8 // nb
    b.e(f's_and_b32 s40, s43, {xb - 1}')
    b.e(f's_lshl_b32 s40, s40, {lb}')
    b.e(f's_and_b32 s45, s44, {nb - 1}')
    b.e('s_add_u32 s40, s40, s45')
    b.e(f's_lshr_b32 s41, s43, {xb.bit_length() - 1}')
    b.e(f's_lshl_b32 s41, s41, {nh.bit_length() - 1}')
    b.e(f's_lshr_b32 s46, s44, {lb}')
    b.e('s_add_u32 s41, s41, s46')
    m = max(nb, nh)
    b.e(f's_mul_i32 s45, s45, {32 // nb}')
    b.e(f's_mul_i32 s46, s46, {32 // nh}')
    b.e('s_add_u32 s45, s45, s46')
    b.e('s_and_b32 s45, s45, 31')
    b.e(f's_mul_i32 s45, s45, {9 - NC}')
    b.e('s_lshr_b32 s45, s45, 5')
    b.e(f's_add_u32 s45, s45, {NC}')
    b.e('s_lshl_b32 s100, s45, 7')
    b.e('s_lshl_b32 s101, s45, 19')
    b.e('s_mov_b32 s57, 0' if NC else 's_mov_b32 s57, s100')
    b.e('s_mov_b32 s58, 0' if NC else 's_mov_b32 s58, s101')
    b.e('s_lshl_b32 s45, s40, 5')
    b.e('s_add_u32 s45, s45, s41')
    b.e('s_lshl_b32 s45, s45, 18')
    b.e('s_mul_i32 s46, s40, 221184')
    b.e('s_lshl_b32 s47, s41, 8')
    b.e('s_mul_i32 s48, s40, 1572864')
    b.e('s_and_b32 s53, s42, 3')
    b.e('s_lshr_b32 s54, s42, 2')
    b.e('v_bfe_u32 v4, v0, 2, 3')
    b.e('v_lshrrev_b32 v5, 5, v0')
    b.e('v_and_b32 v3, 3, v0')
    b.e('v_lshrrev_b32 v7, 2, v4')
    b.e('v_lshlrev_b32 v8, 1, v7')
    b.e('v_xor_b32 v6, v3, v8')
    b.e('v_lshlrev_b32 v6, 4, v6')
    b.e('v_lshl_add_u32 v6, v5, 6, v6')
    b.e('s_lshr_b32 s43, s53, 1')
    b.e('s_and_b32 s44, s42, 1')
    b.e('v_and_b32 v9, 3, v4')
    b.e('v_lshl_add_u32 v9, v7, 3, v9')
    b.e('s_lshl_b32 s55, s43, 4')
    b.e('s_lshl_b32 s62, s54, 2')
    b.e('s_add_u32 s55, s55, s62')
    b.e('v_add_u32 v9, s55, v9')
    b.e('v_lshl_add_u32 v9, v9, 13, v6')
    b.e('s_lshl_b32 s55, s44, 7')
    b.e(f'v_add_u32 v{VWD}, s55, v9')
    b.e(f'v_add_u32 v{VWD+1}, {32*8192-1024}, v{VWD}')
    b.e('s_lshl_b32 s60, s42, 11')
    b.e('s_mul_i32 s63, s42, 3')
    for i in range(3):
        b.e(f's_add_u32 s62, s63, {i}')
        b.e('s_and_b32 s56, s62, 1')
        b.e('s_lshl_b32 s56, s56, 3')
        b.e('s_add_u32 s56, s56, 12')
        b.e('s_lshr_b32 s62, s62, 1')
        b.e('s_lshl_b32 s62, s62, 4')
        b.e('v_add_u32 v9, s56, v4')
        b.e('v_and_b32 v9, 15, v9')
        b.e('v_add_u32 v9, s62, v9')
        b.e('v_mul_u32_u24 v9, 1152, v9')
        b.e('v_add_u32 v9, v9, v6')
        if i: b.e(f'v_subrev_u32 v{VXD+i}, {i*1024}, v9')
        else: b.e(f'v_mov_b32 v{VXD}, v9')
    b.e('s_lshl_b32 s59, s63, 10')
    b.e('s_add_u32 s59, s59, 16384')
    b.e('s_waitcnt lgkmcnt(0)')
    b.e(f's_add_u32 s{S_X}, s4, s46');  b.e(f's_addc_u32 s{S_X+1}, s5, 0')
    b.e(f's_mov_b32 s{S_X+2}, 221184'); b.e(f's_mov_b32 s{S_X+3}, 0x20000')
    b.e(f's_add_u32 s{S_WQ}, s10, s47'); b.e(f's_addc_u32 s{S_WQ+1}, s11, 0')
    b.e(f's_sub_u32 s{S_WQ+2}, 4718592, s47'); b.e(f's_mov_b32 s{S_WQ+3}, 0x20000')
    b.e(f's_add_u32 s{S_K}, s6, s45');  b.e(f's_addc_u32 s{S_K+1}, s7, 0')
    b.e(f's_mov_b32 s{S_K+2}, 262144'); b.e(f's_mov_b32 s{S_K+3}, 0x20000')
    b.e(f's_add_u32 s{S_V}, s8, s45');  b.e(f's_addc_u32 s{S_V+1}, s9, 0')
    b.e(f's_mov_b32 s{S_V+2}, 262144'); b.e(f's_mov_b32 s{S_V+3}, 0x20000')
    b.e(f's_add_u32 s{S_O}, s18, s48'); b.e(f's_addc_u32 s{S_O+1}, s19, 0')
    b.e(f's_mov_b32 s{S_O+2}, 1572864'); b.e(f's_mov_b32 s{S_O+3}, 0x20000')
    return b

RC = 1
def slot(n): return ((n + RC) % RING) * CH

def qslot(D): return ((D + 3) % 4) * SLOT

def qnext(b, D):
    if D + 1 == NC:
        b.e('s_mov_b32 s57, s100'); b.e('s_mov_b32 s58, s101')
    else:
        b.e('s_cmp_eq_u32 s61, 1152')
        b.e(f's_cselect_b32 s57, {NC*128}, s61')
        b.e(f's_cselect_b32 s58, {NC*524288}, s58')

def qdma_parts(D):
    P = []
    P.append(lambda b: (b.e(f's_add_u32 m0, s60, {qslot(D)}'), b.e('s_add_u32 s61, s57, 128'),
                        b.e(f'buffer_load_dwordx4 v{VWD}, {srd(S_WQ)}, s58 offen {WPOL} lds', ('q', D))))
    P.append(lambda b: (b.e(f'buffer_load_dwordx4 v{VWD+1}, {srd(S_WQ)}, s58 offen offset:1024 {WPOL} lds', ('q', D)),
                        b.e(f's_add_u32 m0, s59, {qslot(D)}'), b.e('s_add_u32 s58, s58, 524288')))
    for i in range(2): P.append(E(f'buffer_load_dwordx4 v{VXD+i}, {srd(S_X)}, s57 offen offset:{i*1024} {XPOL} lds', ('q', D)))
    P.append(lambda b: (b.e(f'buffer_load_dwordx4 v{VXD+2}, {srd(S_X)}, s57 offen offset:2048 {XPOL} lds', ('q', D)),
                        qnext(b, D)))
    return P

def qdma(b, D):
    b.e(f's_add_u32 m0, s60, {qslot(D)}')
    b.e('s_add_u32 s61, s57, 128')
    for h in range(0 if NOWQ else 2):
        b.e(f'buffer_load_dwordx4 v{VWD+h}, {srd(S_WQ)}, s58 offen offset:{h*1024} {WPOL} lds', ('q', D))
    b.e(f's_add_u32 m0, s59, {qslot(D)}')
    b.e('s_add_u32 s58, s58, 524288')
    for i in range(0 if NOX else 3):
        b.e(f'buffer_load_dwordx4 v{VXD+i}, {srd(S_X)}, s57 offen offset:{i*1024} {XPOL} lds', ('q', D))
    qnext(b, D)

def kvpair_static(b, n):
    c = chunk_of(n)
    S = S_K if c[0] == 'K' else S_V
    b.e(f's_add_u32 m0, s52, {slot(n)}')
    if KROT: b.e(f's_add_u32 s56, s7, {c[1] * CH}'); b.e('s_and_b32 s56, s56, 0x3ffff')
    else: b.e(f's_mov_b32 s56, {c[1] * CH}')
    b.e(f'buffer_load_dwordx4 v{VKV}, {srd(S)}, s56 offen {KVPOL} lds', ('kv', n))
    b.e(f'buffer_load_dwordx4 v{VKV}, {srd(S)}, s56 offen offset:2048 {KVPOL} lds', ('kv', n))

POFF = 0x2000000; FOFF = 0x3000000; INB = 9216
S_F = 92
def flag_srd(b):
    b.e(f's_add_u32 s{S_F}, s18, {FOFF}'); b.e(f's_addc_u32 s{S_F+1}, s19, 0')
    b.e(f's_mov_b32 s{S_F+2}, {32768+1024}'); b.e(f's_mov_b32 s{S_F+3}, 0x20000')
    b.e('s_lshl_b32 s90, s40, 5'); b.e('s_add_u32 s90, s90, s41'); b.e('s_lshl_b32 s90, s90, 7')
    b.e('s_lshl_b32 s96, s40, 7'); b.e('s_add_u32 s96, s96, 32768')

def epoch_load(b, v):
    b.e(f'v_mov_b32 v{v}, 0')
    b.e(f'buffer_load_dword v{v+1}, v{v}, {srd(S_F)}, s96 offen sc1', ('ep',))

def epoch_tags(b, v):
    b.e(f'v_readfirstlane_b32 s97, v{v+1}')
    b.e('s_nop 0')
    b.e('s_mul_i32 s97, s97, 0x9e3779b1')
    b.e('s_add_u32 s97, s97, 0x7f4a7c15')
    b.e('s_xor_b32 s98, s97, 0x80000000')

def one_lane(b, v):
    b.e(f's_lshl_b32 s91, s42, 6')
    b.e(f'v_add_u32 v{v}, s91, v0')
    b.e(f'v_lshlrev_b32 v{v}, 20, v{v}')

def kvreg_of(n): return 48 + 8 * n if n < 6 else 224 + 8 * (n - 6)
def kv_to_regs(b, n):
    c = chunk_of(n)
    S = S_K if c[0] == 'K' else S_V
    r = kvreg_of(n)
    b.e(f's_mov_b32 s56, {c[1] * CH}')
    b.e(f'buffer_load_dwordx4 {q4(r)}, v{VKV}, {srd(S)}, s56 offen {KVPOL}', ('kv', n))
    b.e(f'buffer_load_dwordx4 {q4(r+4)}, v{VKV}, {srd(S)}, s56 offen offset:2048 {KVPOL}', ('kv', n))
def kv_to_lds(n):
    r = kvreg_of(n)
    o = slot(n) % 65536
    v = VKW + slot(n) // 65536
    return [lambda b: (b.wait_vm(('kv', n)), b.e(f'ds_write_b128 v{v}, {q4(r)} offset:{o}', ('kw',))),
            E(f'ds_write_b128 v{v}, {q4(r+4)} offset:{o+2048}', ('kw',))]

def k1_qproj(ctx):
    b = Block(ctx, 'qproj')
    flag_srd(b)
    qdma(b, 0)
    b.e('v_lshl_add_u32 v9, v4, 8, v6')
    b.e('s_lshl_b32 s46, s43, 12')
    b.e('s_lshl_b32 s47, s54, 13')
    b.e('s_add_u32 s46, s46, s47')
    b.e('s_add_u32 s45, s55, s46')
    b.e(f'v_add_u32 v{VKV}, s45, v9')
    b.e('s_lshl_b32 s47, s44, 10')
    b.e('s_add_u32 s52, s46, s47')
    if KROT == 1: b.e('s_lshr_b32 s7, s2, 3')
    elif KROT == 2: b.e('s_mul_i32 s7, s2, 5')
    elif KROT == 3: b.e('s_lshr_b32 s7, s2, 4'); b.e('s_add_u32 s7, s7, s2')
    elif KROT == 4: b.e('s_mov_b32 s7, s41')
    elif KROT == 5: b.e('s_lshl_b32 s7, s40, 2'); b.e('s_add_u32 s7, s7, s41')
    elif KROT == 6: b.e('s_lshl_b32 s7, s40, 1'); b.e('s_xor_b32 s7, s7, s41'); b.e('s_mul_i32 s7, s7, 7')
    elif KROT == 7: b.e('s_lshr_b32 s7, s2, 4'); b.e('s_mul_i32 s7, s7, 3'); b.e('s_mul_i32 s6, s2, 5'); b.e('s_add_u32 s7, s7, s6')
    elif KROT == 8: b.e('s_and_b32 s7, s2, 7'); b.e('s_lshl_b32 s7, s7, 1')
    elif KROT == 9: b.e('s_mul_i32 s7, s40, 2'); b.e('s_lshr_b32 s6, s41, 4'); b.e('s_add_u32 s7, s7, s6')
    if KROT: b.e('s_and_b32 s7, s7, 15'); b.e('s_lshl_b32 s7, s7, 14')
    qdma(b, 1)
    b.e('v_lshrrev_b32 v10, 4, v0')
    b.e('v_and_b32 v6, 15, v0')
    b.e('v_lshrrev_b32 v7, 2, v6')
    b.e('v_and_b32 v8, 1, v10')
    b.e('v_lshl_add_u32 v5, v8, 2, v7')
    b.e('v_lshlrev_b32 v5, 6, v5')
    b.e('v_lshl_add_u32 v5, v8, 5, v5')
    b.e('v_lshl_add_u32 v5, v3, 3, v5')
    b.e('v_lshrrev_b32 v9, 1, v10')
    b.e('v_lshl_add_u32 v5, v9, 12, v5')
    b.e('s_lshl_b32 s45, s54, 11')
    b.e(f'v_add_u32 v{VAE}, s45, v5')
    b.e(f'v_add_u32 v{VAE+1}, {2*SLOT}, v{VAE}')
    b.e(f'v_xor_b32 v{VAO}, 32, v{VAE}')
    b.e(f'v_xor_b32 v{VAO+1}, 32, v{VAE+1}')
    b.e('v_add_u32 v5, 4, v6')
    b.e('v_bfe_u32 v11, v5, 3, 1')
    b.e('v_and_b32 v12, 7, v5')
    b.e('v_lshrrev_b32 v13, 2, v12')
    b.e('v_lshlrev_b32 v13, 1, v13')
    b.e('v_lshlrev_b32 v14, 6, v12')
    b.e('v_xor_b32 v15, v13, v10')
    b.e('v_lshl_add_u32 v15, v15, 4, v14')
    b.e('s_mul_i32 s46, s53, 6144')
    b.e('s_add_u32 s46, s46, 16384')
    b.e('v_lshl_add_u32 v5, v11, 10, v15')
    b.e(f'v_add_u32 v{VXR}, s46, v5')
    b.e(f'v_add_u32 v{VXR+1}, {2*SLOT}, v{VXR}')
    b.e('v_lshl_add_u32 v15, v11, 11, v15')
    b.e('v_lshl_add_u32 v14, v11, 11, v14')
    b.e('s_lshl_b32 s47, s54, 13')
    b.e(f'v_add_u32 v{VK}, s47, v15')
    b.e(f'v_add_u32 v{VK}, {slot(0)}, v{VK}')
    b.e('s_mul_i32 s46, s53, 12288')
    b.e(f's_add_u32 s46, s46, {QB}')
    b.e(f'v_add_u32 v{VQR}, s46, v15')
    b.e('v_xor_b32 v15, v13, v9')
    b.e('v_lshl_add_u32 v15, v15, 4, v14')
    b.e('v_lshl_add_u32 v15, v8, 3, v15')
    b.e('s_lshl_b32 s45, s54, 10')
    b.e('s_add_u32 s46, s46, s45')
    b.e(f'v_add_u32 v{VQE}, s46, v15')
    b.e(f'v_xor_b32 v{VQO}, 32, v{VQE}')
    b.e('v_add_u32 v5, 1, v10')
    b.e('v_bfe_u32 v11, v5, 1, 1')
    b.e('v_and_b32 v12, 1, v5')
    b.e('v_lshl_add_u32 v13, v12, 2, v7')
    b.e('v_lshlrev_b32 v13, 6, v13')
    b.e('v_lshl_add_u32 v13, v12, 5, v13')
    b.e('v_lshl_add_u32 v13, v3, 3, v13')
    b.e('v_lshl_add_u32 v13, v11, 11, v13')
    b.e(f's_add_u32 s47, s47, {slot(2)}')
    b.e(f'v_add_u32 v{VVE}, s47, v13')
    b.e(f'v_xor_b32 v{VVO}, 32, v{VVE}')
    b.e(f'v_lshlrev_b32 v{VL16}, 4, v0')
    b.e(f'v_add_u32 v{VKW}, s52, v{VL16}')
    b.e(f'v_add_u32 v{VKW+1}, 65536, v{VKW}')
    b.e(f'v_add_u32 v{VKW+2}, 131072, v{VKW}')
    b.e(f's_mov_b32 s48, {hex(f2u(SCALE))}')
    b.e(f's_mov_b32 s50, {(2*CH - LDS_TOT) & 0xffffffff}')
    b.e(f's_mov_b32 s51, {2*CH}')
    b.e(f's_mov_b32 s46, {slot(2)}')
    def fA(D, h, tt): return FS + 56 * (D % 2) + 28 * h + 4 * tt
    def fB(D, h, jt): return FS + 56 * (D % 2) + 28 * h + 16 + 4 * jt
    def reads(D):
        sl = ((D + 3) % 4); hi = sl // 2; o = (sl % 2) * SLOT
        r = []
        for h in range(2):
            for jt in range(3):
                r.append(E(f'ds_read_b128 {q4(fB(D,h,jt))}, v{VXR+hi} offset:{o + jt*2048 + h*512}', ('f', D)))
            for tt in range(4):
                for u in range(2):
                    r.append(E(f'ds_read_b64_tr_b16 {q2(fA(D,h,tt)+2*u)}, v{(VAO if tt%2 else VAE)+hi} offset:{o + u*8192 + h*1024 + (tt//2)*512}', ('f', D)))
        return r
    zero = [E(f'v_mov_b32 v{i}, 0') for i in range(48, 96)] + [E(f'v_mov_b32 v{LS+i}, 0') for i in range(3)]
    b.wait_vm(('q', 0))
    b.e('s_barrier')
    stamp(b, 1)
    run(b, reads(0))
    qdma(b, 2)
    issue = {0: [3, 4], 1: [5], 2: [6], 3: [7], 4: [8]}
    kvi = {5: [0], 6: [1, 2], 7: [3], 8: [4]}
    kvr = {}; kvw = {}
    if KVREG == 2:
        kvr = {3: [0], 4: [1], 5: [2]}; kvw = {7: [0, 1, 2]}; kvi = {6: [3], 7: [4], 8: [5]}
    if KVREG == 3:
        kvr = {4: [0], 5: [1]}; kvw = {7: [0, 1]}; kvi = {6: [2, 3], 7: [4], 8: [5]}
    if KVREG == 1:
        kvi = {}
        kvr = {KV1 + i: [i] for i in range(6)} if KV1 + 5 <= 6 else {2: [0], 3: [1], 4: [2], 5: [3], 6: [4, 5]}
        kvr[7] = [6]; kvr[8] = [7]
        kvw = {6: [0, 1, 2, 3], 7: [4, 5]}
    for D in range(9):
        b.e('s_waitcnt lgkmcnt(0)')
        if D + 1 < 9: b.wait_vm(('q', D + 1))
        b.e('s_barrier')
        dm = [(lambda b, x=x: qdma(b, x)) for x in issue.get(D, [])] + [(lambda b, x=x: kvpair_static(b, x)) for x in kvi.get(D, [])]
        if D == 5: dm.insert(0, lambda b: epoch_load(b, 222))
        dm += [(lambda b, x=x: kv_to_regs(b, x)) for x in kvr.get(D, [])]
        wr = sum((kv_to_lds(x) for x in kvw.get(D, [])), [])
        if KVREG >= 2: zs = zero[24 + 5 * D:29 + 5 * D] if D < 6 else {7: zero[:24]}.get(D, [])
        elif KVREG: zs = {7: zero[:32] + zero[48:], 8: zero[32:48]}.get(D, [])
        else: zs = zero[7 * D:7 * D + 7]
        mf = []
        if D < 8:
            for h in range(2):
                for tt in range(4):
                    for jt in range(3):
                        d = q4(acc(tt, jt))
                        mf.append(E(f'{MF} {d}, {q4(fA(D,h,tt))}, {q4(fB(D,h,jt))}, {"0" if D == 0 and h == 0 else d}'))
            rd = reads(D + 1)
            fill = []
            QS = int(OPT.get('qs', 1))
            if QS:
                dm = sum((qdma_parts(x) for x in issue.get(D, [])), []) + dm[len(issue.get(D, [])):]
                step = max(1, len(rd) // max(1, len(dm)))
                lastkv = [dm.pop()] if (KVREG >= 2 and D in (3, 4) and D in kvr) else []
                step = max(1, (len(rd) - 6 * len(lastkv)) // max(1, len(dm)))
                for k, x in enumerate(rd):
                    fill.append(x)
                    if dm and k % step == step - 1: fill.append(dm.pop(0))
                fill += dm + lastkv; dm = []
            for k, x in enumerate(rd if not QS else []):
                fill.append(x)
                if dm and k % 6 == 1: fill.append(dm.pop(0))
            assert not dm
            run(b, interleave(mf, wr + fill + zs, end=int(OPT.get('qe', 21)) + (2 if len(zs) > 8 else 0)))
        else:
            tiles = [(tt, jt) for tt in range(4) for jt in range(3)]
            def conv(tt, jt):
                a = acc(tt, jt)
                return [E(f'v_mul_f32 v{a+i}, s48, v{a+i}') for i in range(4)] + [
                    E(f'v_cvt_pk_bf16_f32 v{a}, v{a}, v{a+1}'), E(f'v_cvt_pk_bf16_f32 v{a+1}, v{a+2}, v{a+3}'),
                    E(f'ds_write_b64 v{VQO if tt%2 else VQE}, {q2(a)} offset:{jt*4096 + (tt//2)*512}', ('qw',))]
            LAG = 3
            run(b, dm)
            run(b, zs)
            for k, (tt, jt) in enumerate(tiles):
                d = q4(acc(tt, jt))
                cv = conv(*tiles[k - LAG]) if k >= LAG else []
                if k == LAG: b.e('s_nop 2')
                b.e(f'{MF} {d}, {q4(fA(D,0,tt))}, {q4(fB(D,0,jt))}, {d}')
                run(b, cv[:3])
                b.e(f'{MF} {d}, {q4(fA(D,1,tt))}, {q4(fB(D,1,jt))}, {d}')
                run(b, cv[3:])
            stamp(b, 2)
            for k in range(12 - LAG, 12):
                if k == 11: b.e('s_nop 0')
                run(b, conv(*tiles[k]))
    b.e('s_waitcnt lgkmcnt(0)')
    b.wait_vm(('kv', 1))
    b.wait_vm(('ep',))
    epoch_tags(b, 222)
    b.e('s_barrier')
    if not KVREG: kvpair_static(b, 5)
    for s in range(4):
        for jt in range(3):
            b.e(f'ds_read_b128 {q4(qf(s,jt))}, v{VQR} offset:{jt*4096 + (s//2)*1024 + (s%2)*512}', ('qr', s))
    return b

def kread(b, f):
    kt, s = f // 4, f % 4
    b.e(f'ds_read_b128 {q4(KR+4*(f%4))}, v{VK} offset:{kt*4096 + (s//2)*1024 + (s%2)*512}', ('k', f))
def vread(b, t):
    tau = t // 2
    a = VVO if t % 2 else VVE
    for u in range(2):
        b.e(f'ds_read_b64_tr_b16 {q2(VR+4*(t%4)+2*u)}, v{a} offset:{u*4096 + (tau//2)*1024 + (tau%2)*512}', ('v', t))
def kadv(b, first=False):
    if first:
        b.e(f'v_add_u32 v{VK}, {CH}, v{VK}')
        b.e(f's_mov_b32 s45, {slot(1)}')
        return
    b.e(f's_cmp_ge_u32 s45, {LDS_TOT - 2*CH}')
    b.e(f's_cselect_b32 s47, s50, s51')
    b.e(f's_add_u32 s45, s45, s47')
    b.e(f'v_add_u32 v{VK}, s47, v{VK}')
def vadv(b):
    b.e(f's_cmp_ge_u32 s46, {LDS_TOT - 2*CH}')
    b.e(f's_cselect_b32 s47, s50, s51')
    b.e(f's_add_u32 s46, s46, s47')
    b.e(f'v_add_u32 v{VVE}, s47, v{VVE}')
    b.e(f'v_add_u32 v{VVO}, s47, v{VVO}')


def dma_k(b):
    b.e('s_mov_b32 m0, s57')
    b.e(f's_cmp_ge_u32 s57, s61')
    b.e('s_cselect_b32 s62, s50, s51')
    so = 's59'
    if KROT:
        b.e('s_add_u32 s56, s7, s59'); b.e('s_and_b32 s56, s56, 0x3ffff')
        b.e('s_cmp_lt_u32 s59, 0x40000'); b.e('s_cselect_b32 s56, s56, s59'); so = 's56'
    b.e(f'buffer_load_dwordx4 v{VKV}, {srd(S_K)}, {so} offen {KVPOL} lds', ('kd',))
    b.e(f'buffer_load_dwordx4 v{VKV}, {srd(S_K)}, {so} offen offset:2048 {KVPOL} lds', ('kd',))
    b.e('s_add_u32 s57, s57, s62')
    b.e(f's_add_u32 s59, s59, {CH}')
def dma_v(b):
    b.e('s_mov_b32 m0, s58')
    b.e(f's_cmp_ge_u32 s58, s61')
    b.e('s_cselect_b32 s62, s50, s51')
    so = 's60'
    if KROT:
        b.e('s_add_u32 s56, s7, s60'); b.e('s_and_b32 s56, s56, 0x3ffff')
        b.e('s_cmp_lt_u32 s60, 0x40000'); b.e('s_cselect_b32 s56, s56, s60'); so = 's56'
    b.e(f'buffer_load_dwordx4 v{VKV}, {srd(S_V)}, {so} offen {KVPOL} lds', ('vd',))
    b.e(f'buffer_load_dwordx4 v{VKV}, {srd(S_V)}, {so} offen offset:2048 {KVPOL} lds', ('vd',))
    b.e('s_add_u32 s58, s58, s62')
    b.e(f's_add_u32 s60, s60, {CH}')

PS = TMP + 8

def guarded(fn, T):
    def g(b):
        if T is None: return fn(b)
        role.n += 1; l = f'SK{role.n}'
        b.e(f's_cmp_eq_u32 s44, {T}')
        b.e(f's_cbranch_scc1 {l}')
        fn(b)
        b.e(f'{l}:')
    return g

def qk_backbone(S, cinit, nextV=True, first=False, qwait=False, dma=None):
    bb = []
    for f in range(8):
        kt, s = f // 4, f % 4
        for jt in range(3):
            def slot(b, f=f, kt=kt, s=s, jt=jt):
                if jt == 0:
                    if qwait and f < 4: b.wait_lgkm(('qr', s))
                    if not PAIRW: b.wait_lgkm(('k', f))
                    elif PAIRW == 2 and f == 0: b.wait_lgkm(('k', 3))
                    elif f % 2 == 0: b.wait_lgkm(('k', f + 1)); b.wait_lgkm(('k', f))
                d = q4(st(S, kt, jt))
                c = d if s else (q4(NEGM + 4 * jt) if cinit == 'negm' else '0')
                b.e(f'{MF} {d}, {q4(KR+4*(f%4))}, {q4(qf(s,jt))}, {c}')
                if jt == 2:
                    if f < 4: kread(b, f + 4)
                    if f == 3: kadv(b, first)
                    if f >= 4:
                        if nextV == 'K': kread(b, f - 4)
                        elif nextV: vread(b, f - 4)
                if dma and not NODMA and f == 0 and jt == 1: dma(b)
            bb.append(slot)
    return bb

def pv_backbone(P, nextK=True, dma=None, adv=True):
    bb = []
    for t in range(8):
        for jt in range(3):
            def slot(b, t=t, jt=jt):
                if jt == 0:
                    if not PAIRW: b.wait_lgkm(('v', t))
                    elif PAIRW == 2 and t == 0: b.wait_lgkm(('v', 3))
                    elif t % 2 == 0: b.wait_lgkm(('v', t + 1)); b.wait_lgkm(('v', t))
                d = q4(acc(t, jt))
                b.e(f'{MF} {d}, {q4(VR+4*(t%4))}, {q4(st(P,0,jt))}, {d}')
                if jt == 2:
                    if t < 4: vread(b, t + 4)
                    if t == 3 and adv: vadv(b)
                    if t >= 4 and nextK: kread(b, t - 4)
                if dma and not NODMA and t == 0 and jt == 1: dma(b)
            bb.append(slot)
    return bb

def sregs(S, jt): return [st(S, 0, jt) + i for i in range(4)] + [st(S, 1, jt) + i for i in range(4)]

def sm_fillers(S):
    fl = []
    for kt in range(2):
        for jt in range(3):
            r = sregs(S, jt)
            o = 4 * kt
            fl.append(E(f'v_exp_f32 v{r[o]}, v{r[o]}'))
            fl.append(E(f'v_exp_f32 v{r[o+1]}, v{r[o+1]}'))
            if kt: fl.append(E(f'v_add_f32 v{PS+jt}, v{PS+jt}, v{r[o]}'))
            fl.append(E(f'v_exp_f32 v{r[o+2]}, v{r[o+2]}'))
            if kt: fl.append(E(f'v_add_f32 v{PS+jt}, v{PS+jt}, v{r[o+1]}'))
            else: fl.append(E(f'v_add_f32 v{PS+jt}, v{r[0]}, v{r[1]}'))
            fl.append(E(f'v_exp_f32 v{r[o+3]}, v{r[o+3]}'))
            fl.append(E(f'v_add_f32 v{PS+jt}, v{PS+jt}, v{r[o+2]}'))
            fl.append(E(f'v_cvt_pk_bf16_f32 v{r[2*kt]}, v{r[o]}, v{r[o+1]}'))
            fl.append(E(f'v_add_f32 v{PS+jt}, v{PS+jt}, v{r[o+3]}'))
            fl.append(E(f'v_cvt_pk_bf16_f32 v{r[2*kt+1]}, v{r[o+2]}, v{r[o+3]}'))
    return fl

def chk_fillers():
    return [E(f'v_max3_f32 v{TMP}, v{PS}, v{PS+1}, v{PS+2}'), E(f'v_cmp_nle_f32 vcc, v{TMP}, v{TMP+11}')]
def ladd_fillers():
    return [E(f'v_add_f32 v{LS+jt}, v{LS+jt}, v{PS+jt}') for jt in range(3)]

def xreduce3(regs, tmps, op):
    fl = []
    for sw in ('v_permlane32_swap_b32', 'v_permlane16_swap_b32'):
        for r, t in zip(regs, tmps): fl.append(E(f'v_mov_b32 v{t}, v{r}'))
        for r, t in zip(regs, tmps): fl.append(E(f'{sw} v{r}, v{t}'))
        for r, t in zip(regs, tmps): fl.append(E(f'{op} v{r}, v{r}, v{t}'))
    return fl

MX = [TMP + 1, TMP + 2, TMP + 3]; MT = [TMP + 4, TMP + 5, TMP + 6]
def rowmax3(S):
    fl = []
    R = [sregs(S, jt) for jt in range(3)]
    for jt in range(3): fl.append(E(f'v_max3_f32 v{MX[jt]}, v{R[jt][0]}, v{R[jt][1]}, v{R[jt][2]}'))
    for jt in range(3): fl.append(E(f'v_max3_f32 v{MX[jt]}, v{MX[jt]}, v{R[jt][3]}, v{R[jt][4]}'))
    for jt in range(3): fl.append(E(f'v_max3_f32 v{MX[jt]}, v{MX[jt]}, v{R[jt][5]}, v{R[jt][6]}'))
    for jt in range(3): fl.append(E(f'v_max_f32 v{MX[jt]}, v{MX[jt]}, v{R[jt][7]}'))
    return fl + xreduce3(MX, MT, 'v_max_f32')

def rare_path(ctx, name, Y, X, back):
    snap = ctx.snap()
    r = Block(ctx, name + 'r')
    r.e(f'{name}_RARE:')
    r.e(f's_cmp_ge_u32 s45, {back*CH}')
    r.e(f's_cselect_b32 s47, 0, {LDS_TOT}')
    r.e(f's_sub_u32 s47, s47, {back*CH}')
    r.e(f'v_add_u32 v{TMP+7}, s47, v{VK}')
    for kt in range(2):
        for s in range(4):
            r.e(f'ds_read_b128 {q4(KR+4*s)}, v{TMP+7} offset:{kt*4096 + (s//2)*1024 + (s%2)*512}', ('rk',))
        r.e('s_waitcnt lgkmcnt(0)')
        for s in range(4):
            for jt in range(3):
                d = q4(st(Y, kt, jt))
                r.e(f'{MF} {d}, {q4(KR+4*s)}, {q4(qf(s,jt))}, {d if s else q4(NEGM+4*jt)}')
    r.e('s_nop 7')
    run(r, rowmax3(Y))
    for jt in range(3): r.e(f'v_max_f32 v{MX[jt]}, 0, v{MX[jt]}')
    for jt in range(3): r.e(f'v_exp_f32 v{MT[jt]}, -v{MX[jt]}')
    for jt in range(3):
        for q in sregs(Y, jt) + (sregs(X, jt) if X else []) + [NEGM + 4 * jt + i for i in range(4)]:
            r.e(f'v_sub_f32 v{q}, v{q}, v{MX[jt]}')
        r.e(f'v_mul_f32 v{LS+jt}, v{LS+jt}, v{MT[jt]}')
        for t in range(8):
            for i in range(4): r.e(f'v_mul_f32 v{acc(t,jt)+i}, v{acc(t,jt)+i}, v{MT[jt]}')
    run(r, sm_fillers(Y))
    r.e('s_nop 1')
    r.e(f's_branch {name}_JOIN')
    ctx.restore(snap)
    return r

def k1_att_prologue(ctx):
    b = Block(ctx, 'att_pro')
    for f in range(4): kread(b, f)
    nk, nv = {0: (7, 8), 1: (11, 10), 2: (9, 8), 3: (9, 8)}[KVREG]
    if LEAD == 8: nk, nv = 9, 8
    b.e(f's_add_u32 s57, s52, {slot(nk)}')
    b.e(f's_add_u32 s58, s52, {slot(nv)}')
    b.e(f's_mov_b32 s59, {chunk_of(nk)[1]*CH}')
    b.e(f's_mov_b32 s60, {chunk_of(nv)[1]*CH}')
    b.e(f's_add_u32 s61, s52, {LDS_TOT - 2*CH}')
    b.e(f'v_mov_b32 v{TMP+11}, {hex(f2u(THR))}')
    if FUSED and WARM:
        b.e('s_lshr_b32 s55, s41, 3'); b.e('s_mul_i32 s55, s55, 1179648')
        b.e('s_and_b32 s56, s41, 3'); b.e('s_mul_i32 s62, s56, 288'); b.e('s_add_u32 s55, s55, s62')
        b.e('s_and_b32 s62, s41, 1'); b.e('s_lshl_b32 s62, s62, 5'); b.e('s_sub_u32 s55, s55, s62')
        b.e('s_lshl_b32 s56, s56, 1'); b.e('s_and_b32 s62, s41, 4'); b.e('s_add_u32 s56, s56, s62')
        b.e('s_and_b32 s62, s40, 3'); b.e('s_add_u32 s56, s56, s62'); b.e('s_and_b32 s56, s56, 7')
        b.e('s_mul_i32 s56, s56, 147456'); b.e('s_add_u32 s55, s55, s56')
        b.e('s_mul_i32 s56, s42, 18432'); b.e('s_add_u32 s55, s55, s56')
        b.e('s_add_u32 s28, s12, s55'); b.e('s_addc_u32 s29, s13, 0')
        b.e('s_sub_u32 s30, 4718592, s55'); b.e('s_mov_b32 s31, 0x20000')
    zero = [E(f'v_mov_b32 v{ACC+i}, 0') for i in range(48)]
    run(b, interleave(qk_backbone(SA, '0', nextV='K', first=True, qwait=True), zero))
    b.wait_vm(('kv', 2))
    b.e('s_barrier')
    if KVREG >= 2:
        kvpair_static(b, 6)
        kvpair_static(b, 7)
    elif KVREG:
        kvpair_static(b, 8)
        kvpair_static(b, 9)
        run(b, kv_to_lds(7)[:1] + kv_to_lds(7)[1:] + kv_to_lds(6))
    else:
        kvpair_static(b, 6)
        if LEAD == 8: kvpair_static(b, 7)
    if TOUCH:
        b.e(f'v_lshlrev_b32 v{TMP+7}, {12 if TOUCH == 1 else 17}, v{VL16}')
        b.e('s_mov_b32 s100, 0x20000')
        for base, size, off in ((12, 4718592, 0), (18, 0x1000000, 0), (18, 0x1000000, 0x400000), (18, 0x1000000, 0x800000), (18, 0x3000000, 0x2000000), (18, 0x3000000, 0x2400000), (18, 0x3000000, 0x2800000), (18, 0x3000000, 0x2c00000), (14, 1769472, 0)):
            b.e(f's_mov_b32 s28, s{base}'); b.e(f's_mov_b32 s29, s{base+1}'); b.e(f's_mov_b32 s30, {size}'); b.e('s_mov_b32 s31, 0x20000')
            b.e(f's_mov_b32 s56, {off}')
            b.e(f'buffer_load_dword v{TMP}, v{TMP+7}, s[28:31], s56 offen', ('touch',))
        b.e('s_waitcnt vmcnt(0)')
    run(b, rowmax3(SA))
    for jt in range(3):
        for i in range(4): b.e(f'v_sub_f32 v{NEGM+4*jt+i}, 0, v{MX[jt]}')
    sub = [E(f'v_sub_f32 v{r}, v{r}, v{MX[jt]}') for kt in range(2) for jt in range(3) for r in sregs(SA, jt)[4*kt:4*kt+4]]
    run(b, interleave(qk_backbone(SB, 'negm', nextV=True), sub + sm_fillers(SA)))
    b.e('s_mov_b32 s44, 0')
    if PRIO:
        b.e('s_cmp_ge_u32 s42, 4'); b.e('s_cbranch_scc0 NOPRIO'); b.e('s_setprio 1'); b.e('NOPRIO:')
    stamp(b, 3)
    return b

def winter(backbone, fillers, start, end):
    if not int(OPT.get('cw', 0)): return interleave(backbone, fillers, start, end)
    class Probe:
        def e(self, t, tag=None): self.t = t
    w = []
    for f in fillers:
        p = Probe(); p.t = ''
        try: f(p)
        except Exception: pass
        w.append(2 if p.t.startswith('v_exp') else 1)
    tot = sum(w); n = len(backbone); span = end - start
    out = []; k = 0; acc_ = 0
    for i in range(n):
        out.append(backbone[i])
        if start <= i < end:
            tgt = tot * (i - start + 1) / span
            while k < len(fillers) and acc_ + w[k] / 2 <= tgt:
                out.append(fillers[k]); acc_ += w[k]; k += 1
    return out + fillers[k:]

def pv_phase(ctx, name, P, S, nextK=True, head=None, dma=None, vmw=4, bar=True, extra=(), split=None):
    a = Block(ctx, name)
    if head: head(a)
    if bar:
        a.e(f's_waitcnt vmcnt({(2 if NOBARQK else vmw) + 2 * (LEAD - 6)})')
        a.e('s_barrier')
    fl = ladd_fillers() + (sm_fillers(S)[:split or SM_SPLIT] if S else []) + list(extra)
    run(a, winter(pv_backbone(P, nextK, dma, adv=bar), fl, int(OPT.get('pvs', 2)), 24))
    return a

def qk_phase(ctx, name, D, S, dma):
    b = Block(ctx, name)
    if not NOBARQK:
        b.e('s_waitcnt vmcnt(4)')
        b.e('s_barrier')
    run(b, winter(qk_backbone(D, 'negm', dma=dma), sm_fillers(S)[SM_SPLIT:] + chk_fillers(), 0, 23))
    b.e(f's_cbranch_vccnz {name}_RARE')
    r = rare_path(ctx, name, S, D, 4)
    j = Block(ctx, name + 'j'); j.e(f'{name}_JOIN:')
    return b, r, j

def pol_store(b, text, tag):
    b.e(text + ' sc1', tag)

EXB = 4 * CH
MLB = 24576
XA = SA + 20
def vread_as(b, t, k):
    tau = t // 2
    a = VVO if t % 2 else VVE
    for u in range(2):
        b.e(f'ds_read_b64_tr_b16 {q2(VR+4*(k%4)+2*u)}, v{a} offset:{u*4096 + (tau//2)*1024 + (tau%2)*512}', ('v', k))
def order_of(r): return [4, 5, 6, 7, 0, 1, 2, 3] if r == A else list(range(8))

def last_pv(ctx):
    b = Block(ctx, 'L3')
    b.e('L2_JOIN:')
    setup = tail_setup()
    red = ladd_fillers() + xreduce3([LS, LS + 1, LS + 2], MT, 'v_add_f32')
    for r in (A, B):
        with role(b, r):
            od = order_of(r)
            bb = []
            for k, t in enumerate(od):
                for jt in range(3):
                    def slot_(b, k=k, t=t, jt=jt):
                        if jt == 0 and k % 2 == 0: b.wait_lgkm(('v', k + 1))
                        d = q4(acc(t, jt))
                        b.e(f'{MF} {d}, {q4(VR+4*(k%4))}, {q4(st(SB,0,jt))}, {d}')
                        if jt == 2 and k < 4: vread_as(b, od[k + 4], k + 4)
                    bb.append(slot_)
            snd = [E(f'ds_write_b128 v{XA}, {q4(acc(t, jt))} offset:{(3*i+jt)*1024}', ('x',)) for i, t in enumerate(od[:4]) for jt in range(3)]
            run(b, interleave(bb[:12], red + setup[:10], start=1))
            mixed = []
            for k in range(max(len(snd), len(setup) - 10)):
                if 10 + k < len(setup): mixed.append(setup[10 + k])
                if k < len(snd): mixed.append(snd[k])
            run(b, interleave(bb[12:], mixed, start=0))
    return b

def k1_epilogue(ctx):
    b = Block(ctx, 'epi')
    stamp(b, 4)
    if STAMP and OPT.get('rt4'): b.e('s_memrealtime s[84:85]')
    b.e('s_xor_b32 s46, s42, 4')
    b.e(f'v_lshrrev_b32 v{VVO}, 1, v{VL16}')
    b.e('s_mul_i32 s43, s42, 1536')
    b.e('s_mul_i32 s45, s46, 1536')
    b.e(f's_add_u32 s43, s43, {MLB}')
    b.e(f's_add_u32 s45, s45, {MLB}')
    b.e(f'v_add_u32 v{VKV}, s43, v{VVO}')
    b.e(f'v_add_u32 v{VVO}, s45, v{VVO}')
    for jt in range(3):
        b.e(f'v_mov_b32 v{NEGM+4*jt+1}, v{LS+jt}')
    for jt in range(3):
        b.e(f'ds_write_b64 v{VKV}, {q2(NEGM+4*jt)} offset:{jt*512}', ('x',))
    b.e('s_and_b32 s43, s42, 3')
    b.e('s_mul_i32 s43, s43, 393216')
    b.e('s_lshl_b32 s45, s41, 12')
    b.e('s_add_u32 s43, s43, s45')
    b.e('s_lshl_b32 s45, s54, 11')
    b.e('s_add_u32 s43, s43, s45')
    b.e('s_add_u32 s45, s43, 131072')
    b.e('s_add_u32 s46, s43, 262144')
    so = ['s43', 's45', 's46']
    b.e('s_waitcnt lgkmcnt(0)')
    b.e('s_barrier')
    RX = QF
    ML = SA
    for jt in range(3):
        b.e(f'ds_read_b64 {q2(ML+2*jt)}, v{VVO} offset:{jt*512}', ('ml',))
    for i in range(12):
        b.e(f'ds_read_b128 {q4(RX+4*i)}, v{XA+1} offset:{i*1024}', ('rx', i))
    b.wait_lgkm(('ml',))
    C = SA + 8
    T = [TMP, TMP + 4, TMP + 8]
    def each(f):
        for jt in range(3): b.e(f(jt, NEGM + 4 * jt, NEGM + 4 * jt + 1, ML + 2 * jt, ML + 2 * jt + 1, T[jt]))
    each(lambda jt, no, lo, np_, lp, t: f'v_min_f32 v{t}, v{no}, v{np_}')
    each(lambda jt, no, lo, np_, lp, t: f'v_sub_f32 v{t+1}, v{t}, v{no}')
    each(lambda jt, no, lo, np_, lp, t: f'v_sub_f32 v{t+2}, v{t}, v{np_}')
    each(lambda jt, no, lo, np_, lp, t: f'v_exp_f32 v{t+1}, v{t+1}')
    each(lambda jt, no, lo, np_, lp, t: f'v_exp_f32 v{t+2}, v{t+2}')
    each(lambda jt, no, lo, np_, lp, t: f'v_mul_f32 v{t+3}, v{t+1}, v{lo}')
    each(lambda jt, no, lo, np_, lp, t: f'v_fmac_f32 v{t+3}, v{t+2}, v{lp}')
    each(lambda jt, no, lo, np_, lp, t: f'v_rcp_f32 v{t+3}, v{t+3}')
    b.e('s_nop 0')
    for x, src in ((0, 1), (1, 1), (2, 2), (3, 2)):
        each(lambda jt, no, lo, np_, lp, t: f'v_mul_f32 v{C+4*jt+x}, v{t+src}, v{t+3}')
    OUT = SB
    snap = ctx.snap()
    for r in (A, B):
        with role(b, r):
            keep = range(0, 4) if r == A else range(4, 8)
            for sp in range(2):
                for jt in range(3):
                    o = OUT + 4 * (3 * sp + jt)
                    for h in range(2):
                        i = 2 * sp + h
                        a = acc(keep[i], jt); x = RX + 4 * (3 * i + jt)
                        b.wait_lgkm(('rx', 3 * i + jt))
                        b.e(f'v_pk_mul_f32 {q2(a)}, {q2(a)}, {q2(C+4*jt)}')
                        b.e(f'v_pk_mul_f32 {q2(a+2)}, {q2(a+2)}, {q2(C+4*jt)}')
                        b.e(f'v_pk_fma_f32 {q2(a)}, {q2(x)}, {q2(C+4*jt+2)}, {q2(a)}')
                        b.e(f'v_pk_fma_f32 {q2(a+2)}, {q2(x+2)}, {q2(C+4*jt+2)}, {q2(a+2)}')
                        b.e(f'v_cvt_pk_bf16_f32 v{o+2*h}, v{a}, v{a+1}')
                        b.e(f'v_cvt_pk_bf16_f32 v{o+2*h+1}, v{a+2}, v{a+3}')
                    pol_store(b, f'buffer_store_dwordx4 {q4(o)}, v{VL16}, {srd(S_O)}, {so[jt]} offen offset:{sp*1024}', ('o',))
    if FUSED:
        b.e('s_bfe_u32 s43, s42, 0x10001')
        b.e('s_cmp_eq_u32 s43, s49')
        b.e('s_cbranch_scc0 OWN_SKIP')
        b.e('s_and_b32 s43, s42, 1'); b.e('s_mul_i32 s43, s43, 6144')
        b.e(f's_mul_i32 s45, s54, {OS_}'); b.e('s_add_u32 s43, s43, s45')
        b.e(f'v_add_u32 v{VK}, s43, v{VL16}')
        for sp in range(2):
            for jt in range(3):
                b.e(f'ds_write_b128 v{VK}, {q4(OUT + 4 * (3 * sp + jt))} offset:{(2*jt+sp)*1024}', ('oo',))
        b.e('OWN_SKIP:')
    if not FUSED:
        if STAMP:
            b.e('s_waitcnt vmcnt(0)')
            stamp(b, 5)
            dump_stamps(b)
        b.e('K1_END:')
        b.e('s_endpgm')
    return b

def dump_stamps(b):
    b.e('s_memrealtime s[88:89]')
    b.e('s_waitcnt lgkmcnt(0)')
    if STAMP == 2:
        b.e(f's_cmp_eq_u32 s2, {int(OPT.get("dbgwg", 0))}'); b.e('s_cbranch_scc0 DBG_SKIP')
        b.e('s_cmp_eq_u32 s42, 2'); b.e('s_cbranch_scc0 DBG_SKIP')
        b.e('s_mov_b32 s56, s16'); b.e('s_mov_b32 s57, s17'); b.e('s_mov_b32 s58, 256'); b.e('s_mov_b32 s59, 0x20000')
        b.e('v_mov_b32 v1, 0')
        for i in range(1, 11):
            b.e(f's_sub_u32 s43, s{64+2*i}, s64'); b.e('v_mov_b32 v2, s43')
            b.e(f'buffer_store_dword v2, v1, s[56:59], 0 offen offset:{4*i}')
            b.e('s_waitcnt vmcnt(0)')
        b.e('s_sub_u32 s43, s88, s86'); b.e('v_mov_b32 v2, s43')
        b.e('buffer_store_dword v2, v1, s[56:59], 0 offen offset:44')
        b.e('s_waitcnt vmcnt(0)')
        b.e('DBG_SKIP:')
        return
    b.e('s_lshl_b32 s43, s2, 3'); b.e('s_add_u32 s43, s43, s42'); b.e('s_lshl_b32 s43, s43, 7')
    b.e('s_add_u32 s43, s43, 0x1000000')
    b.e('s_add_u32 s56, s18, s43'); b.e('s_addc_u32 s57, s19, 0'); b.e('s_mov_b32 s58, 128'); b.e('s_mov_b32 s59, 0x20000')
    b.e('v_mov_b32 v1, 0')
    for i in range(13):
        b.e(f'v_mov_b32 v2, s{64+2*i}'); b.e(f'v_mov_b32 v3, s{65+2*i}')
        b.e(f'buffer_store_dwordx2 v[2:3], v1, s[56:59], 0 offen offset:{8*i}')
        b.e('s_waitcnt vmcnt(0)')

def poll(b, name, load, notyet):
    b.e('s_mov_b32 s91, 0')
    b.e(f'{name}:')
    b.e(load)
    b.e('s_add_u32 s91, s91, 1')
    b.e('s_waitcnt vmcnt(0)')
    b.e(notyet)
    b.e('s_cmp_lt_u32 s91, 0x40000')
    b.e(f's_cbranch_vccz {name}_GO')
    b.e(f's_sleep {SLEEP}')
    b.e(f's_cbranch_scc1 {name}')
    b.e(f'{name}_GO:')

BIG, SML, LW, LO = (2, 3), (0, 1, 4, 5), (6,), (7,)
S_WO, S_OI, S_P, S_PI, S_OUT = 20, 24, 28, 32, 36
VAP = 192; VB = 197; VT = 198; VE = 202; GS = 208; XF = 248
WS_ = 20480; NW_ = 6; OS_ = 12288; NO_ = 3; WOB = NO_ * OS_

def tail_setup():
    P = []
    def piece(*lines): P.append(lambda b: [b.e(l) for l in lines])
    piece('s_lshr_b32 s47, s41, 3', 's_and_b32 s48, s41, 7')
    piece('s_lshr_b32 s49, s48, 2', 's_and_b32 s50, s48, 3')
    piece('s_and_b32 s51, s50, 1', 's_mul_i32 s55, s47, 1179648')
    piece('s_mul_i32 s61, s50, 288', 's_add_u32 s55, s55, s61')
    piece('s_lshl_b32 s61, s51, 5', 's_sub_u32 s55, s55, s61')
    piece('s_mul_i32 s61, s40, 1572864', 's_mul_i32 s100, s49, 786432')
    piece('s_add_u32 s61, s61, s100', 's_lshl_b32 s100, s47, 15')
    piece('s_add_u32 s61, s61, s100', f's_sub_u32 s{S_WO+2}, 4718592, s55')
    piece(f's_add_u32 s{S_WO}, s12, s55', f's_addc_u32 s{S_WO+1}, s13, 0')
    piece(f's_add_u32 s{S_OI}, s18, s61', f's_addc_u32 s{S_OI+1}, s19, 0')
    piece(f's_mov_b32 s{S_WO+3}, 0x20000', f's_mov_b32 s{S_OI+2}, {5*131072 + 32768}', f's_mov_b32 s{S_OI+3}, 0x20000')
    piece('s_lshl_b32 s52, s40, 3', 's_add_u32 s52, s52, s48')
    piece(f's_mul_i32 s52, s52, {16*INB}', f's_add_u32 s52, s52, {POFF}')
    piece(f's_mul_i32 s61, s47, {INB}', 's_add_u32 s61, s61, s52')
    piece(f's_add_u32 s{S_P}, s18, s61', f's_addc_u32 s{S_P+1}, s19, 0')
    piece(f's_mov_b32 s{S_P+2}, {13*INB}', f's_mov_b32 s{S_P+3}, 0x20000')
    piece(f's_mul_i32 s61, s47, {4*INB}', 's_add_u32 s61, s61, s52')
    piece(f's_add_u32 s{S_PI}, s18, s61', f's_addc_u32 s{S_PI+1}, s19, 0')
    piece(f's_mov_b32 s{S_PI+2}, {4*INB}', f's_mov_b32 s{S_PI+3}, 0x20000')
    piece('s_mul_i32 s52, s40, 192', 's_mul_i32 s61, s49, 96')
    piece('s_add_u32 s52, s52, s61', 's_lshl_b32 s61, s47, 2')
    piece('s_add_u32 s52, s52, s61', 's_mul_i32 s52, s52, 1152')
    piece('s_mul_i32 s61, s50, 288', 's_add_u32 s6, s52, s61')
    piece('s_lshr_b32 s100, s50, 1', 's_and_b32 s99, s90, 0xfffffc00')
    return P

def head_of(b, U):
    G = U // 2
    b.e(f's_add_u32 s55, s48, {G >> 1}'); b.e('s_and_b32 s55, s55, 3')
    b.e(f's_xor_b32 s61, s48, {(G & 1) << 2}'); b.e('s_and_b32 s61, s61, 4'); b.e('s_or_b32 s55, s55, s61')

def oproj(ctx):
    FB = 64
    b = Block(ctx, 'op_pre')
    stamp(b, 2, True)
    b.e(f'v_lshrrev_b32 v{VT+3}, 4, v{VL16}')
    T0 = 216
    v3, v4, v5, v6, v7 = (f'v{T0+i}' for i in range(5))
    VL = 224
    b.e(f'v_and_b32 {v3}, 3, v{VT+3}')
    with role(b, BIG + SML):
        b.e('s_and_b32 s43, s42, 1')
        b.e('s_cmp_lt_u32 s42, 2'); b.e('s_cselect_b32 s45, 5, 0')
        b.e('s_cmp_ge_u32 s42, 4'); b.e('s_cselect_b32 s45, 7, s45')
        b.e(f'v_lshrrev_b32 {v4}, 4, v{VT+3}'); b.e(f'v_bfe_u32 {v5}, v{VT+3}, 2, 4')
        b.e(f'v_and_b32 {v7}, 7, {v5}'); b.e(f'v_lshlrev_b32 {v7}, 6, {v7}'); b.e(f'v_lshlrev_b32 {v5}, 6, {v5}')
        b.e(f'v_and_b32 {v6}, 1, {v4}'); b.e(f'v_lshlrev_b32 {v6}, 5, {v6}'); b.e(f'v_lshl_add_u32 {v6}, {v3}, 3, {v6}')
        b.e(f'v_add_u32 {v5}, {v5}, {v6}'); b.e(f'v_add_u32 {v7}, {v7}, {v6}')
        b.e(f'v_lshrrev_b32 {v6}, 1, {v4}'); b.e(f'v_lshl_add_u32 {v7}, {v6}, 12, {v7}')
        b.e('s_add_u32 s101, s45, s51')
        for n in range(5):
            b.e(f's_add_u32 s52, s101, {n}')
            b.e('s_and_b32 s91, s52, 1'); b.e('s_lshl_b32 s91, s91, 5')
            b.e('s_lshr_b32 s52, s52, 1'); b.e('s_sub_u32 s52, s52, s100')
            b.e('s_and_b32 s54, s52, 1'); b.e('s_lshl_b32 s54, s54, 9')
            b.e('s_lshr_b32 s55, s52, 1'); b.e('s_lshl_b32 s55, s55, 13'); b.e('s_add_u32 s54, s54, s55')
            b.e('s_cmp_lt_u32 s52, 4'); b.e('s_cselect_b32 s54, s54, 16384'); b.e('s_cselect_b64 vcc, -1, 0')
            b.e(f's_add_u32 s54, s54, {WOB}')
            b.e(f'v_cndmask_b32 v{VAP+n}, {v5}, {v7}, vcc')
            b.e(f'v_xor_b32 v{VAP+n}, s91, v{VAP+n}'); b.e(f'v_add_u32 v{VAP+n}, s54, v{VAP+n}')
        b.e('s_mul_i32 s52, s43, 6144')
        b.e(f'v_add_u32 v{VB}, s52, v{VL16}')
        b.e(f'v_bfe_u32 {v6}, v{VT+3}, 2, 2'); b.e(f'v_mul_u32_u24 {v6}, {4*INB}, {v6}')
        b.e(f'v_lshl_add_u32 {v6}, {v4}, 6, {v6}'); b.e(f'v_lshl_add_u32 v{VT+2}, {v3}, 4, {v6}')
        b.e('s_mul_i32 s52, s43, 27'); b.e('s_add_u32 s52, s52, s45'); b.e('s_lshl_b32 s5, s52, 8')
        b.e('s_mul_i32 s52, s43, 9'); b.e('s_add_u32 s52, s52, s45'); b.e('s_lshl_b32 s4, s52, 9')
    b.e(f'v_bfe_u32 {v4}, v{VT+3}, 2, 3'); b.e(f'v_lshrrev_b32 {v5}, 2, v{VT+3}')
    b.e('s_cmp_eq_u32 s42, 7'); b.e('s_cselect_b64 vcc, -1, 0')
    b.e(f'v_lshrrev_b32 {v6}, 5, v{VT+3}'); b.e(f'v_lshlrev_b32 {v6}, 6, {v6}')
    b.e(f'v_cndmask_b32 {v4}, {v4}, {v5}, vcc'); b.e(f'v_cndmask_b32 {v6}, {v6}, 0, vcc')
    b.e(f'v_mul_u32_u24 {v5}, 1152, {v4}'); b.e(f'v_add_u32 {v5}, {v5}, {v6}')
    b.e(f'v_bfe_u32 {v4}, {v4}, 2, 1'); b.e(f'v_lshlrev_b32 {v4}, 1, {v4}'); b.e(f'v_xor_b32 {v4}, {v4}, {v3}')
    b.e(f'v_lshl_add_u32 {v5}, {v4}, 4, {v5}')
    b.e('s_lshl_b32 s52, s100, 6'); b.e('s_lshl_b32 s54, s100, 8'); b.e('s_sub_u32 s54, 256, s54')
    b.e('s_cmp_eq_u32 s42, 7'); b.e('s_cselect_b32 s52, s54, s52')
    b.e(f'v_add_u32 v{VL}, s52, {v5}')
    for m in range(1, 4): b.e(f'v_add_u32 v{VL+m}, {m*(18432-1024)}, v{VL}')
    b.e(f'v_add_u32 v{VL+4}, {131072-2048}, v{VL16}')
    b.e(f'v_and_b32 v{VL+5}, 0x70, v{VL16}'); b.e(f'v_lshlrev_b32 v{VL+5}, 3, v{VL+5}')
    b.e('s_lshl_b32 s91, s42, 6')
    b.e(f'v_add_u32 v{VT}, s91, v{VT+3}')
    b.e(f'v_lshlrev_b32 v{VT}, 20, v{VT}')
    b.e(f'v_mov_b32 v{VT+1}, s97')
    b.e('s_waitcnt lgkmcnt(0)')
    b.wait_vm(('o',))
    b.e('s_barrier')
    b.e(f'buffer_store_dword v{VT+1}, v{VT}, {srd(S_F)}, s90 offen sc1', ('f1',))
    stamp(b, 5)
    b.e('s_cmp_eq_u32 s42, 6'); b.e('s_cbranch_scc1 OP_LW')
    b.e('s_cmp_eq_u32 s42, 7'); b.e('s_cbranch_scc1 OP_LO')
    b.e('s_bitcmp1_b32 12, s42'); b.e('s_cbranch_scc1 OP_BIG')

    def wo_off(x, U):
        head_of(x, U)
        x.e('s_mul_i32 s55, s55, 147456')
        if U % 2: x.e('s_add_u32 s55, s55, 73728')
    def wo_full(x, U):
        wo_off(x, U)
        for ty in range(4):
            x.e(f's_mov_b32 m0, {WOB + (U % NW_) * WS_ + ty * 4096}')
            x.e(f's_add_u32 s56, s55, {(ty % 2) * 9216 + (ty // 2) * 128}')
            for m in range(4):
                x.e(f'buffer_load_dwordx4 v{VL+m}, {srd(S_WO)}, s56 offen offset:{m*1024} lds', ('w', U))
    def wo_half(x, U):
        wo_off(x, U)
        x.e(f's_mov_b32 m0, {WOB + (U % NW_) * WS_ + 16384}')
        x.e('s_nop 0')
        for m in range(4):
            x.e(f'buffer_load_dwordx4 v{VL+m}, {srd(S_WO)}, s55 offen offset:{m*1024} lds', ('w', U))
    def o_unit(x, U):
        head_of(x, U)
        if U % 2 == 0:
            role.n += 1; l = f'HP{role.n}'
            x.e('s_bitcmp1_b32 s3, s55')
            x.e(f's_cbranch_scc0 {l}_GO')
            for t in ['s_mov_b32 s91, 0', f'{l}:', f'buffer_load_dword v{VL+6}, v{VL+5}, {srd(S_F)}, s99 offen sc1', 's_add_u32 s91, s91, 1',
                      's_waitcnt vmcnt(0)', f'v_cmp_ne_u32 vcc, s97, v{VL+6}', 's_nop 0', 's_mov_b32 s3, vcc_lo', 's_bitcmp1_b32 s3, s55',
                      f's_cbranch_scc0 {l}_GO', f's_sleep {SLEEP}', 's_cmp_lt_u32 s91, 0x40000', f's_cbranch_scc1 {l}']:
                i = I(t); i.roles = (); x.append(i)
            x.e(f'{l}_GO:')
        x.e('s_lshl_b32 s55, s55, 12')
        if U % 2: x.e('s_add_u32 s55, s55, 2048')
        for g in range(3):
            x.e(f's_mov_b32 m0, {(U % NO_) * OS_ + g * 4096}')
            x.e(f's_add_u32 s56, s55, {g * 262144}')
            for m in range(4):
                x.e(f'buffer_load_dwordx4 v{VL16 if m < 2 else VL+4}, {srd(S_OI)}, s56 offen offset:{m*1024} lds', ('o2', U))
    def vwait(x, *tags):
        n = [ctx.count_after('vm', t) for t in tags]
        n = [k for k in n if k is not None]
        if n: x.e(f's_waitcnt vmcnt({min(min(n), 47)})')
    snap = ctx.snap()
    lw = Block(ctx, 'lw'); ctx.active = list(LW)
    lw.e('OP_LW:')
    wo_full(lw, 0); wo_full(lw, 1)
    lw.e('s_waitcnt vmcnt(0)'); lw.e('s_barrier')
    for U in (2, 3, 4): wo_full(lw, U)
    lw.e('s_waitcnt vmcnt(47)'); wo_full(lw, 5)
    vwait(lw, ('w', 2))
    lw.e('s_barrier')
    wo_full(lw, 6)
    lw.e('s_waitcnt vmcnt(47)'); wo_full(lw, 7)
    for U in range(2, 16):
        if U < 15: vwait(lw, ('w', U + 1))
        lw.e('s_barrier')
        if U + NW_ < 16:
            if len(ctx.c[6].vm) > 47: lw.e('s_waitcnt vmcnt(47)')
            wo_full(lw, U + NW_)
    lw.e('s_barrier')
    lw.e('s_branch OP_DONE')
    lo = Block(ctx, 'lo'); ctx.active = list(LO)
    lo.e('OP_LO:')
    lo.e('s_mov_b32 s3, 0xff')
    wo_half(lo, 0); wo_half(lo, 1)
    lo.e('s_waitcnt vmcnt(0)'); lo.e('s_barrier')
    wo_half(lo, 2); wo_half(lo, 3)
    stamp(lo, 3, True)
    o_unit(lo, 2)
    wo_half(lo, 4); wo_half(lo, 5)
    vwait(lo, ('o2', 2)); lo.e('s_barrier')
    o_unit(lo, 3); o_unit(lo, 4); wo_half(lo, 6); wo_half(lo, 7)
    for U in range(2, 16):
        if U < 15: vwait(lo, ('o2', U + 1), ('w', U + 1))
        lo.e('s_barrier')
        if U + NO_ < 16: o_unit(lo, U + NO_)
        if U + NW_ < 16: wo_half(lo, U + NW_)
    lo.e('s_barrier')
    lo.e('s_branch OP_DONE')

    OWN = 0
    def compute(name, waves, NT):
        ctx.restore(snap); ctx.active = list(waves)
        c = Block(ctx, name); lp = Block(ctx, name + 'l'); e = Block(ctx, name + 'e')
        c.e(f'{name}:')
        SZ = 4 * (NT + 3)
        def fA(U, k, n): return FB + 2 * SZ * (U % 2) + SZ * k + 4 * n
        def fB(U, k, j): return FB + 2 * SZ * (U % 2) + SZ * k + 4 * NT + 4 * j
        def rd(U):
            r = []
            for k in range(2):
                r += [E(f'ds_read_b128 {q4(fB(U,k,j))}, v{VB} offset:{(2*j+k)*1024}', ('f', U)) for j in range(3)]
                for n in range(NT):
                    r += [E(f'ds_read_b64_tr_b16 {q2(fA(U,k,n)+2*u)}, v{VAP+n} offset:{k*2048 + u*1024}', ('f', U)) for u in range(2)]
            return r
        def adv(b):
            b.e(f's_cmp_ge_u32 s46, {(NW_-1)*WS_}'); b.e(f's_cselect_b32 s52, s54, s53'); b.e('s_add_u32 s46, s46, s52')
            for n in range(NT): b.e(f'v_add_u32 v{VAP+n}, s52, v{VAP+n}')
            b.e(f's_cmp_ge_u32 s45, {(NO_-1)*OS_}'); b.e(f's_cselect_b32 s52, s101, s100'); b.e('s_add_u32 s45, s45, s52')
            b.e(f'v_add_u32 v{VB}, s52, v{VB}')
        def mmu(U, first=False):
            return [E(f'{MF} {q4(12*n+4*j)}, {q4(fA(U,k,n))}, {q4(fB(U,k,j))}, {"0" if first and k == 0 else q4(12*n+4*j)}')
                    for k in range(2) for n in range(NT) for j in range(3)]
        c.e('s_mov_b32 s46, 0'); c.e(f's_mov_b32 s53, {WS_}'); c.e(f's_mov_b32 s54, {(-(NW_-1)*WS_) & 0xffffffff}')
        c.e('s_mov_b32 s45, 0'); c.e(f's_mov_b32 s100, {OS_}'); c.e(f's_mov_b32 s101, {(-(NO_-1)*OS_) & 0xffffffff}')
        c.e('s_mov_b32 s44, 0')
        if OWARM:
            c.e(f'v_lshrrev_b32 v{GS}, 5, v{VT+3}'); c.e(f'v_lshlrev_b32 v{GS}, 17, v{GS}')
            c.e(f'v_and_b32 v{GS+1}, 31, v{VT+3}'); c.e(f'v_lshl_add_u32 v{GS}, v{GS+1}, 7, v{GS}')
            c.e('s_lshl_b32 s55, s42, 18'); c.e('s_lshl_b32 s61, s41, 12'); c.e('s_add_u32 s55, s55, s61')
            if OWARM == 2: c.e(f'buffer_load_dword v{XF+3}, v{GS}, {srd(S_O)}, s55 offen', ('ow',))
        c.e('s_barrier')
        stamp(c, 6)
        if OWARM == 1: c.e(f'buffer_load_dword v{XF+3}, v{GS}, {srd(S_O)}, s55 offen', ('ow',))
        c.e(f's_add_u32 s{S_OUT}, s14, s6'); c.e(f's_addc_u32 s{S_OUT+1}, s15, 0')
        c.e(f's_sub_u32 s{S_OUT+2}, 1769472, s6'); c.e(f's_mov_b32 s{S_OUT+3}, 0x20000')
        run(c, rd(0)); adv(c)
        c.e('s_waitcnt lgkmcnt(0)')
        run(c, interleave(mmu(0, True), rd(1) + [adv], end=6 * NT - 2))
        c.e('s_waitcnt lgkmcnt(0)')
        run(c, mmu(1))
        c.e('s_barrier')
        stamp(c, 1, True)
        run(c, rd(0)); adv(c)
        def unit(x, U, extra=(), last=False):
            x.e('s_waitcnt lgkmcnt(0)')
            x.e('s_barrier')
            run(x, interleave(mmu(U), ([] if last else rd(U + 1) + [adv]) + list(extra), end=6 * NT - 2))
        lp.e(f'{name}_LOOP:')
        unit(lp, 0); unit(lp, 1)
        lp.e('s_add_u32 s44, s44, 1'); lp.e('s_cmp_lt_u32 s44, 6'); lp.e(f's_cbranch_scc1 {name}_LOOP')
        fin = []
        def P(*lines): fin.extend(E(l) for l in lines)
        X = GS
        P('s_mov_b32 s7, 288', 's_lshl_b32 s6, s42, 6', f'v_add_u32 v{X}, s6, v{VT+3}')
        P(f'v_cmp_gt_u32 s[8:9], s7, v{X}', f'v_subrev_u32 v{X+1}, 32, v{X}', f'v_mov_b32 v{X+7}, 0x40000000')
        P(f'v_cndmask_b32 v{X}, v{X+1}, v{X}, s[8:9]', f'v_lshrrev_b32 v{X+1}, 4, v{X}')
        P(f'v_and_b32 v{X+2}, 15, v{X}', f'v_lshlrev_b32 v{X+2}, 4, v{X+2}', f'v_lshl_add_u32 v{XF}, v{X+1}, 9, v{X+2}')
        P(f'v_mul_u32_u24 v{X+4}, 57, v{X+1}', f'v_lshrrev_b32 v{X+4}, 9, v{X+4}')
        P(f'v_mul_u32_u24 v{X+5}, 18, v{X+4}', f'v_add_u32 v{X+5}, v{X+5}, v{X+1}')
        P(f'v_lshl_add_u32 v{XF+1}, v{X+5}, 8, v{X+2}')
        P(f'v_mul_u32_u24 v{X+6}, 9, v{X+4}', f'v_sub_u32 v{X+1}, v{X+1}, v{X+6}')
        P(f'v_mul_u32_u24 v{X+4}, 48, v{X+4}', f'v_and_b32 v{X+6}, 3, v{X}', f'v_add_u32 v{X+4}, v{X+4}, v{X+6}')
        P(f'v_mul_u32_u24 v{X+4}, 1152, v{X+4}', f'v_lshl_add_u32 v{X+4}, v{X+1}, 5, v{X+4}')
        P(f'v_bfe_u32 v{X+6}, v{X}, 2, 2', f'v_lshl_add_u32 v{X+4}, v{X+6}, 3, v{X+4}')
        P(f'v_cndmask_b32 v{XF+2}, v{X+7}, v{X+4}, s[8:9]')
        for i in range(3): P(f's_add_u32 s{56+i}, s47, {i+1}', f's_and_b32 s{56+i}, s{56+i}, 3', f's_mul_i32 s{56+i}, s{56+i}, {INB}')
        P('s_mov_b32 s10, 18432', 's_mov_b32 s11, 36864', 's_mov_b32 s59, 0xffff0000')
        fin2 = []
        fin2.append(lambda b: [b.e(l) for l in (f'v_bfe_u32 v{VE+2}, v{VT+3}, 2, 2', f'v_cmp_eq_u32 vcc, s47, v{VE+2}', f'v_mov_b32 v{VE+2}, 0x40000000',
                    f'v_and_b32 v{VE}, 0xff, v{VT+2}', f'v_cndmask_b32 v{VT+2}, v{VT+2}, v{VE+2}, vcc', f'v_lshlrev_b32 v{VE+1}, 2, v{VT+3}',
                    f'v_add_u32 v{VE+1}, {OWN+16384}, v{VE+1}', f'v_add_u32 v{VE}, s5, v{VE}',
                    f'v_and_b32 v{VE+1}, 0xfffffff0, v{VE+1}', f'v_cndmask_b32 v{VE}, v{VE+1}, v{VE}, vcc')])
        fin2 += [E(f'v_mov_b32 v{GS+4*k+3}, s98') for k in range(2 * NT)]
        unit(e, 14, fin)
        e.e('s_waitcnt lgkmcnt(0)')
        e.e('s_barrier')
        m = mmu(15)
        def send(n):
            r = [E(f'v_cvt_pk_bf16_f32 v{GS + 8*n + 4*(x//3) + x%3}, v{12*n+2*x}, v{12*n+2*x+1}') for x in range(6)]
            r += [E(f'buffer_store_dwordx4 {q4(GS+8*n+4*hf)}, v{VT+2}, {srd(S_P)}, s4 offen offset:{n*512 + hf*256} sc1', ('p',)) for hf in range(2)]
            r += [E(f'ds_write_b128 v{VE}, {q4(12*n+4*j)} offset:{j*2304 + n*256}', ('own',)) for j in range(3)]
            return r
        for n in range(NT):
            grp = m[3 * n:3 * n + 3] + m[3 * NT + 3 * n:3 * NT + 3 * n + 3]
            run(e, interleave(grp, fin2 if n == 0 else (send(n - 2) if n >= 2 else [])))
        stamp(e, 7)
        if NT == 2: e.e('s_nop 1')
        run(e, send(NT - 2)); run(e, send(NT - 1))
        if name != 'OP_BIG': e.e('s_branch OP_FIN')
        return c, lp, e
    sm = compute('OP_SML', SML, 2)
    bg = compute('OP_BIG', BIG, 5)
    ctx.active = list(BIG + SML)
    e = Block(ctx, 'op_end')
    e.e('OP_FIN:')
    e.e('s_waitcnt lgkmcnt(0)')
    e.e('s_barrier')
    stamp(e, 8)
    e.e('s_cmp_ge_u32 s42, 5')
    e.e('s_cbranch_scc1 OP_DONE')
    R0 = 168; OW = 64; X = 128
    for j in range(3): e.e(f'ds_read_b128 {q4(OW+4*j)}, v{XF+1} offset:{j*2304}', ('ow',))
    loads = '\n'.join(f'buffer_load_dwordx4 {q4(R0+8*src+4*hf)}, v{XF}, {srd(S_PI)}, s{56+src} offen offset:{hf*256} sc1' for src in range(3) for hf in range(2))
    chk = [f'v_xor_b32 v{X+6}, s98, v{R0+3}']
    for k in range(1, 6):
        chk += [f'v_xor_b32 v{X+7}, s98, v{R0+4*k+3}', f'v_or_b32 v{X+6}, v{X+6}, v{X+7}']
    chk.append(f'v_cmp_ne_u32 vcc, 0, v{X+6}')
    poll(e, 'OP_P2', loads, '\n'.join(chk))
    stamp(e, 9)
    e.e(f'buffer_store_dword v{VT+1}, v{VT}, {srd(S_F)}, s96 offen sc1', ('ep',))
    e.e('s_waitcnt lgkmcnt(0)')
    so = ['0', 's10', 's11']
    for j in range(3):
        for p in range(2):
            x = 2 * j + p
            for src in range(3):
                r = R0 + 8 * src + 4 * (x // 3) + x % 3
                e.e(f'v_lshlrev_b32 v{X+6}, 16, v{r}'); e.e(f'v_and_b32 v{X+7}, s59, v{r}')
                e.e(f'v_add_f32 v{OW+2*x}, v{OW+2*x}, v{X+6}'); e.e(f'v_add_f32 v{OW+2*x+1}, v{OW+2*x+1}, v{X+7}')
            e.e(f'v_cvt_pk_bf16_f32 v{OW+16+x}, v{OW+2*x}, v{OW+2*x+1}')
        e.e(f'buffer_store_dwordx2 {q2(OW+16+2*j)}, v{XF+2}, {srd(S_OUT)}, {so[j]} offen {OPT.get("outpol", "")}')
    ctx.active = ALLW
    e.e('OP_DONE:')
    if STAMP:
        if not OPT.get('rt4'): stamp(e, 10)
        dump_stamps(e)
    e.e('K1_END:')
    e.e('s_endpgm')
    traces = {}
    for w in SML: traces[w] = [b, sm[0], sm[1], sm[1], sm[2], e]
    for w in BIG: traces[w] = [b, bg[0], bg[1], bg[1], bg[2], e]
    traces[6] = [b, lw]; traces[7] = [b, lo]
    TXN = OPT.get('tx', '')
    if TXN:
        def after_c(blk):
            n = 0; out = []
            for i in blk:
                if i.kind == 'barrier': n += 1
                drop = n >= 2 and getattr(i, 'sub', '') == 'dma' and (TXN == 'none' or (TXN == 'noo' and 's[24:27]' in i.text) or (TXN == 'nowo' and 's[20:23]' in i.text))
                if not drop: out.append(i)
            blk[:] = out
        after_c(lw); after_c(lo); after_c(sm[0])
        if TXN in ('none', 'nowo'):
            for blk in sm[1:]: blk[:] = [i for i in blk if getattr(i, 'sub', '') != 'dma']
    return [b] + list(sm) + list(bg) + [e, lw, lo], traces

def kernel1():
    ctx = MCtx(8)
    pro = k1_prologue(ctx)
    qp = k1_qproj(ctx)
    ap = k1_att_prologue(ctx)
    p1 = pv_phase(ctx, 'P1', SA, SB, head=lambda a: a.e('K1_LOOP:'), dma=guarded(dma_v, 0) if LEAD == 6 else dma_v)
    SK2 = int(OPT.get('sk2', 2))
    p2 = qk_phase(ctx, 'P2', SA, SB, guarded(dma_k, 0) if KVREG else dma_k)
    p3 = pv_phase(ctx, 'P3', SB, SA, dma=guarded(dma_v, SK2) if KVREG == 1 else dma_v)
    p4 = qk_phase(ctx, 'P4', SB, SA, guarded(dma_k, SK2) if KVREG == 1 else dma_k)
    p4[2].e('s_add_u32 s44, s44, 1')
    p4[2].e('s_cmp_lt_u32 s44, 7')
    p4[2].e('s_cbranch_scc1 K1_LOOP')
    def warm(b):
        b.e(f'v_lshrrev_b32 v{KR}, 6, v{VL16}'); b.e(f'v_mul_u32_u24 v{KR}, 1152, v{KR}')
        b.e(f'v_and_b32 v{KR+1}, 48, v{VL16}'); b.e(f'v_lshlrev_b32 v{KR+1}, 3, v{KR+1}'); b.e(f'v_min_u32 v{KR+1}, 316, v{KR+1}')
        b.e(f'v_add_u32 v{KR}, v{KR}, v{KR+1}')
        b.e(f'buffer_load_dword v{SA+23}, v{KR}, s[28:31], 0 offen', ('warm',))
    l1 = pv_phase(ctx, 'L1', SA, SB, nextK=False, dma=warm if (FUSED and WARM) else None, split=LSPLIT)
    l2 = Block(ctx, 'L2')
    l2.e(f's_waitcnt vmcnt({1 if WARM else 0})')
    l2.e('s_barrier')
    if OPT.get('l2s'): stamp(l2, 2)
    for r in (A, B):
        with role(l2, r):
            for k in range(4): vread_as(l2, order_of(r)[k], k)
    l2.e('s_mul_i32 s43, s42, 12288'); l2.e('s_xor_b32 s46, s42, 4'); l2.e('s_mul_i32 s46, s46, 12288')
    l2.e(f's_add_u32 s43, s43, {EXB}'); l2.e(f's_add_u32 s46, s46, {EXB}')
    l2.e(f'v_add_u32 v{XA}, s43, v{VL16}'); l2.e(f'v_add_u32 v{XA+1}, s46, v{VL16}')
    run(l2, sm_fillers(SB)[LSPLIT:] + chk_fillers())
    l2.e('s_cbranch_vccnz L2_RARE')
    l2r = rare_path(ctx, 'L2', SB, None, 2)
    l3 = last_pv(ctx)
    ep = k1_epilogue(ctx)
    errs = []
    body = [p1, p2[0], p2[2], p3, p4[0], p4[2]]
    bodyr = [p1, p2[0], p2[1], p2[2], p3, p4[0], p4[1], p4[2]]
    last = [l1, l2, l3, ep]
    lastr = [l1, l2, l2r, l3, ep]
    tail, ttr = oproj(ctx)
    for r in ALLW:
        errs += check_trace([pro, qp, ap] + body + body + last + ttr[r], f'main{r}', r)
        errs += check_trace([pro, qp, ap] + bodyr + bodyr + body + lastr, f'rare{r}', r)
    if NOCOMP:
        for blk in body:
            keep = [i for i in blk if i.kind not in ('mfma', 'valu', 'trans') and not (NOCOMP > 1 and i.kind == 'ds') and 'vccnz' not in i.text]
            blk[:] = keep
        errs = []
    DROP = OPT.get('drop', '')
    if DROP:
        D = DROP.split(',')
        def dropit(i):
            t = i.text
            if 'vccnz' in t: return True
            if 'exp' in D and t.startswith('v_exp'): return True
            if 'add' in D and t.startswith('v_add_f32'): return True
            if 'cvt' in D and t.startswith('v_cvt'): return True
            if 'ds' in D and i.kind == 'ds': return True
            if 'wait' in D and i.kind == 'wait': return True
            if 'bar' in D and i.kind == 'barrier': return True
            if 'adv' in D and (t.startswith('v_add_u32') or t.startswith('s_cmp_ge') or t.startswith('s_cselect') or t.startswith('s_add_u32 s45') or t.startswith('s_add_u32 s46')): return True
            if 'mfma' in D and i.kind == 'mfma': return True
            return False
        for blk in body: blk[:] = [i for i in blk if not dropit(i)]
        errs = []
    order = [pro, qp, ap] + body + last + tail + [p2[1], p4[1], l2r]
    return order, errs

def kernel2():
    ctx = MCtx(8)
    b = Block(ctx, 'k2')
    b.e('s_cmp_ge_u32 s2, 256')
    b.e('s_cbranch_scc1 K2_END')
    b.e('s_load_dwordx8 s[12:19], s[0:1], 32')
    if STAMP:
        for i in range(6): b.e(f's_memtime s[{64+2*i}:{65+2*i}]')
        b.e('s_memrealtime s[86:87]')
    b.e('v_lshrrev_b32 v1, 6, v0')
    b.e('v_and_b32 v0, 63, v0')
    b.e('v_readfirstlane_b32 s42, v1')
    b.e('s_and_b32 s43, s2, 7'); b.e('s_lshr_b32 s44, s2, 3')
    b.e('s_and_b32 s40, s43, 1'); b.e('s_lshl_b32 s40, s40, 2'); b.e('s_and_b32 s45, s44, 3'); b.e('s_add_u32 s40, s40, s45')
    b.e('s_lshr_b32 s41, s43, 1'); b.e('s_lshl_b32 s41, s41, 3'); b.e('s_lshr_b32 s46, s44, 2'); b.e('s_add_u32 s41, s41, s46')
    b.e(f'v_lshlrev_b32 v{VL16}, 4, v0')
    b.e('s_waitcnt lgkmcnt(0)')
    flag_srd(b)
    epoch_load(b, 222)
    b.e('s_waitcnt vmcnt(0)')
    epoch_tags(b, 222)
    run(b, tail_setup())
    t = oproj(ctx)
    errs = []
    for r in ALLW: errs += check_trace([b, t[0], t[1], t[1], t[2], t[2], t[3]], f'k2_{r}', r)
    return [b] + list(t), errs

HEADER = open('standalone__mha_block_cached__near_ridge.s.ref').read().split('; Override')[0]

DOC = '''; One workgroup per (batch, head), 8 waves, one launch:
;  3. the 8 heads of a group trade o through d_ws; every workgroup multiplies a 96 x 144 output tile over
;     these 8 heads; the 4 head groups trade the partial sums (tagged granules) and each finishes a quarter.
; Hand-off words carry a launch tag derived from an epoch word in d_ws that the launch advances at its end.
'''

def kd(name, vgpr, sgpr=96):
    return f'''.amdhsa_kernel {name}
  .amdhsa_next_free_vgpr {vgpr}
  .amdhsa_next_free_sgpr {sgpr}
  .amdhsa_accum_offset {(vgpr+3)//4*4}
  .amdhsa_group_segment_fixed_size 0
  .amdhsa_kernarg_size 64
  .amdhsa_user_sgpr_count 2
  .amdhsa_user_sgpr_kernarg_segment_ptr 1
  .amdhsa_system_sgpr_workgroup_id_x 1
.end_amdhsa_kernel
'''

def main():
    k1, e1 = kernel1()
    k2, e2 = kernel2() if not FUSED else ([], [])
    for e in list(dict.fromkeys(x.split('] ', 1)[1] for x in e1 + e2))[:12]: print('CHECK', e, file=sys.stderr)
    out = HEADER
    if FUSED:
        N = 'standalone__mha_block_cached__near_ridge_kernel'
        out += f'; @launch grid=(256,1,1) block=(512,1,1) lds={LDS_TOT}\n'
        ks = [(N, k1)]
    else:
        out += f'; @launch kernel=mha_attn_kernel grid=(256,1,1) block=(512,1,1) lds={LDS_TOT}\n'
        out += f'; @launch kernel=mha_oproj_kernel grid=(256,1,1) block=(512,1,1) lds={LDS_TOT}\n'
        ks = [('mha_attn_kernel', k1), ('mha_oproj_kernel', k2)]
    out += DOC + '.amdgcn_target "amdgcn-amd-amdhsa--gfx950"\n.text\n'
    for name, blocks in ks:
        out += f'.globl {name}\n.p2align 8\n.type {name},@function\n{name}:\n'
        out += '\n'.join(b.text() for b in blocks) + '\n'
    out += '.section .rodata,"a"\n'
    for name, _ in ks: out += '.p2align 6\n' + kd(name, 256, 102)
    open(sys.argv[1], 'w').write(out)
    if e1 or e2: sys.exit(1)
main()
```

```python
import sys, struct, math
from asmlib import *

OPT = dict(a.split('=') for a in sys.argv[2:] if '=' in a)
STAMP = int(OPT.get('stamp', 0))
KVPOL = OPT.get('kvpol', 'nt')
XPOL = OPT.get('xpol', '')
WPOL = OPT.get('wpol', '')
OSTPOL = OPT.get('ostpol', 'sc1' if OPT.get('fused', '1') == '1' else '')
OLDPOL = OPT.get('oldpol', '')
WOPOL = OPT.get('wopol', '')
THR = float(OPT.get('thr', 2048.0))
NOBARQK = int(OPT.get('nobarqk', 1))
SKIPT = int(OPT.get('skipt', 0))
STAG = int(OPT.get('stag', 0))
ROT = int(OPT.get('rot', 1))
ROT2 = int(OPT.get('rot2', 1))
SM_SPLIT = int(OPT.get('split', 24))
CHK_AT = int(OPT.get('chk', 8))
PRIO = int(OPT.get('prio', 0))
K2D = int(OPT.get('k2d', 4))
NODMA = int(OPT.get('nodma', 0))
NOCOMP = int(OPT.get('nocomp', 0))
NOKVQ = int(OPT.get('nokvq', 0))
FUSED = int(OPT.get('fused', 1))
OLD2 = OPT.get('old2', 'sc1')
SLEEP = int(OPT.get('sleep', 1))
F1POL = OPT.get('f1pol', 'sc1')
WOPRE = int(OPT.get('wopre', 5))
TOUCH = int(OPT.get('touch', 0))
WOEARLY = int(OPT.get('woearly', 0))
WARM = int(OPT.get('warm', 1))
FAST = int(OPT.get('fast', 0))
PAIRW = int(OPT.get('pairw', 1))
KVREG = int(OPT.get('kvreg', 0))
KV1 = int(OPT.get('kv1', 1))
NC = int(OPT.get('nc', 1))
EARLY = int(OPT.get('early', 0))
ORD = int(OPT.get('ord', 1))
LSPLIT = int(OPT.get('lsplit', 57))
LEAD = int(OPT.get('lead', 6))
OWARM = int(OPT.get('owarm', 0))
KROT = int(OPT.get('krot', 0))
NOX = int(OPT.get('nox', 0))
NOWQ = int(OPT.get('nowq', 0))
MAP = OPT.get('map', '4x8')
KVSCHED = [int(x) for x in OPT.get('kvs', '0,2,3,5,6,8,9,11,12,14').split(',') if x]

def f2u(f): return struct.unpack('<I', struct.pack('<f', f))[0]
SCALE = math.log2(math.e) / math.sqrt(128.0)
MF = 'v_mfma_f32_16x16x32_bf16'
def q4(n): return f'v[{n}:{n+3}]'
def q2(n): return f'v[{n}:{n+1}]'

ACC = 0; QF = 96; SA = 144; SB = 168; KR = 192; VR = 208; NEGM = 224
TMP = 236; VK = 248; VVE = 249; VVO = 250; LS = 251; VL16 = 254; VKV = 255
RING = 10; CH = 16384; LDS_TOT = RING * CH
QB = 114688
SLOT = 40960
S_K, S_V, S_X, S_WQ, S_O = 20, 24, 28, 32, 36
FS = 96
VXD = 208; VWD = 211; VXR = 213; VAE = 215; VAO = 217; VQE = 219; VQO = 220; VQR = 221; VKW = 244
def srd(n): return f's[{n}:{n+3}]'
def acc(t, jt): return ACC + 12 * t + 4 * jt
def qf(s, jt): return QF + 12 * s + 4 * jt
def st(S, kt, jt): return S + 12 * kt + 4 * jt
ALLW = list(range(8))
A, B = (0, 1, 2, 3), (4, 5, 6, 7)

TST = int(OPT.get('tst', 0))
def stamp(b, idx, fine=False, it=False):
    if TST == 2:
        if it or idx in (0, 4): b.e(f's_memtime s[{64+2*idx}:{65+2*idx}]')
        return
    if it: return
    if TST and idx in (1, 2, 3) and not fine: return
    if fine and not TST: return
    if STAMP: b.e(f's_memtime s[{64+2*idx}:{65+2*idx}]')

class role:
    n = 0
    def __init__(self, b, waves): self.b, self.w = b, list(waves)
    def __enter__(self):
        role.n += 1; self.l = f'RL{role.n}'
        self.b.e(f's_bitcmp1_b32 {sum(1 << w for w in self.w)}, s42')
        self.b.e(f's_cbranch_scc0 {self.l}')
        self.b.ctx.active = self.w
    def __exit__(self, *a):
        self.b.ctx.active = ALLW
        self.b.e(f'{self.l}:')

def E(text, tag=None): return lambda b: b.e(text, tag)
def run(b, lst):
    for f in lst: f(b)

def chunk_of(n):
    if n == 0: return ('K', 0)
    if n % 2 == 1: return ('K', (n + 1) // 2)
    return ('V', (n - 2) // 2)

def k1_prologue(ctx):
    b = Block(ctx, 'k1_pro')
    b.e('s_cmp_ge_u32 s2, 256')
    b.e('s_cbranch_scc1 K1_END')
    b.e('s_load_dwordx8 s[4:11], s[0:1], 0')
    b.e('s_load_dwordx8 s[12:19], s[0:1], 32')
    if STAMP:
        b.e('s_memtime s[64:65]')
        b.e('s_memrealtime s[86:87]')
    b.e('v_lshrrev_b32 v1, 6, v0')
    b.e('v_and_b32 v0, 63, v0')
    b.e('v_readfirstlane_b32 s42, v1')
    b.e('s_and_b32 s43, s2, 7')
    b.e('s_lshr_b32 s44, s2, 3')
    nb = int(MAP.split('x')[0]); lb = nb.bit_length() - 1
    nh = 32 // nb; xb = 8 // nb
    b.e(f's_and_b32 s40, s43, {xb - 1}')
    b.e(f's_lshl_b32 s40, s40, {lb}')
    b.e(f's_and_b32 s45, s44, {nb - 1}')
    b.e('s_add_u32 s40, s40, s45')
    b.e(f's_lshr_b32 s41, s43, {xb.bit_length() - 1}')
    b.e(f's_lshl_b32 s41, s41, {nh.bit_length() - 1}')
    b.e(f's_lshr_b32 s46, s44, {lb}')
    b.e('s_add_u32 s41, s41, s46')
    m = max(nb, nh)
    b.e(f's_mul_i32 s45, s45, {32 // nb}')
    b.e(f's_mul_i32 s46, s46, {32 // nh}')
    b.e('s_add_u32 s45, s45, s46')
    b.e('s_and_b32 s45, s45, 31')
    b.e(f's_mul_i32 s45, s45, {9 - NC}')
    b.e('s_lshr_b32 s45, s45, 5')
    b.e(f's_add_u32 s45, s45, {NC}')
    b.e('s_lshl_b32 s100, s45, 7')
    b.e('s_lshl_b32 s101, s45, 19')
    b.e('s_mov_b32 s57, 0' if NC else 's_mov_b32 s57, s100')
    b.e('s_mov_b32 s58, 0' if NC else 's_mov_b32 s58, s101')
    b.e('s_lshl_b32 s45, s40, 5')
    b.e('s_add_u32 s45, s45, s41')
    b.e('s_lshl_b32 s45, s45, 18')
    b.e('s_mul_i32 s46, s40, 221184')
    b.e('s_lshl_b32 s47, s41, 8')
    b.e('s_mul_i32 s48, s40, 1572864')
    b.e('s_and_b32 s53, s42, 3')
    b.e('s_lshr_b32 s54, s42, 2')
    b.e('v_bfe_u32 v4, v0, 2, 3')
    b.e('v_lshrrev_b32 v5, 5, v0')
    b.e('v_and_b32 v3, 3, v0')
    b.e('v_lshrrev_b32 v7, 2, v4')
    b.e('v_lshlrev_b32 v8, 1, v7')
    b.e('v_xor_b32 v6, v3, v8')
    b.e('v_lshlrev_b32 v6, 4, v6')
    b.e('v_lshl_add_u32 v6, v5, 6, v6')
    b.e('s_lshr_b32 s43, s53, 1')
    b.e('s_and_b32 s44, s42, 1')
    b.e('v_and_b32 v9, 3, v4')
    b.e('v_lshl_add_u32 v9, v7, 3, v9')
    b.e('s_lshl_b32 s55, s43, 4')
    b.e('s_lshl_b32 s62, s54, 2')
    b.e('s_add_u32 s55, s55, s62')
    b.e('v_add_u32 v9, s55, v9')
    b.e('v_lshl_add_u32 v9, v9, 13, v6')
    b.e('s_lshl_b32 s55, s44, 7')
    b.e(f'v_add_u32 v{VWD}, s55, v9')
    b.e(f'v_add_u32 v{VWD+1}, {32*8192-1024}, v{VWD}')
    b.e('s_lshl_b32 s60, s42, 11')
    b.e('s_mul_i32 s63, s42, 3')
    for i in range(3):
        b.e(f's_add_u32 s62, s63, {i}')
        b.e('s_and_b32 s56, s62, 1')
        b.e('s_lshl_b32 s56, s56, 3')
        b.e('s_add_u32 s56, s56, 12')
        b.e('s_lshr_b32 s62, s62, 1')
        b.e('s_lshl_b32 s62, s62, 4')
        b.e('v_add_u32 v9, s56, v4')
        b.e('v_and_b32 v9, 15, v9')
        b.e('v_add_u32 v9, s62, v9')
        b.e('v_mul_u32_u24 v9, 1152, v9')
        b.e('v_add_u32 v9, v9, v6')
        if i: b.e(f'v_subrev_u32 v{VXD+i}, {i*1024}, v9')
        else: b.e(f'v_mov_b32 v{VXD}, v9')
    b.e('s_lshl_b32 s59, s63, 10')
    b.e('s_add_u32 s59, s59, 16384')
    b.e('s_waitcnt lgkmcnt(0)')
    b.e(f's_add_u32 s{S_X}, s4, s46');  b.e(f's_addc_u32 s{S_X+1}, s5, 0')
    b.e(f's_mov_b32 s{S_X+2}, 221184'); b.e(f's_mov_b32 s{S_X+3}, 0x20000')
    b.e(f's_add_u32 s{S_WQ}, s10, s47'); b.e(f's_addc_u32 s{S_WQ+1}, s11, 0')
    b.e(f's_sub_u32 s{S_WQ+2}, 4718592, s47'); b.e(f's_mov_b32 s{S_WQ+3}, 0x20000')
    b.e(f's_add_u32 s{S_K}, s6, s45');  b.e(f's_addc_u32 s{S_K+1}, s7, 0')
    b.e(f's_mov_b32 s{S_K+2}, 262144'); b.e(f's_mov_b32 s{S_K+3}, 0x20000')
    b.e(f's_add_u32 s{S_V}, s8, s45');  b.e(f's_addc_u32 s{S_V+1}, s9, 0')
    b.e(f's_mov_b32 s{S_V+2}, 262144'); b.e(f's_mov_b32 s{S_V+3}, 0x20000')
    b.e(f's_add_u32 s{S_O}, s18, s48'); b.e(f's_addc_u32 s{S_O+1}, s19, 0')
    b.e(f's_mov_b32 s{S_O+2}, 1572864'); b.e(f's_mov_b32 s{S_O+3}, 0x20000')
    return b

RC = 1
def slot(n): return ((n + RC) % RING) * CH

def qslot(D): return ((D + 3) % 4) * SLOT

def qnext(b, D):
    if D + 1 == NC:
        b.e('s_mov_b32 s57, s100'); b.e('s_mov_b32 s58, s101')
    else:
        b.e('s_cmp_eq_u32 s61, 1152')
        b.e(f's_cselect_b32 s57, {NC*128}, s61')
        b.e(f's_cselect_b32 s58, {NC*524288}, s58')

def qdma_parts(D):
    P = []
    P.append(lambda b: (b.e(f's_add_u32 m0, s60, {qslot(D)}'), b.e('s_add_u32 s61, s57, 128'),
                        b.e(f'buffer_load_dwordx4 v{VWD}, {srd(S_WQ)}, s58 offen {WPOL} lds', ('q', D))))
    P.append(lambda b: (b.e(f'buffer_load_dwordx4 v{VWD+1}, {srd(S_WQ)}, s58 offen offset:1024 {WPOL} lds', ('q', D)),
                        b.e(f's_add_u32 m0, s59, {qslot(D)}'), b.e('s_add_u32 s58, s58, 524288')))
    for i in range(2): P.append(E(f'buffer_load_dwordx4 v{VXD+i}, {srd(S_X)}, s57 offen offset:{i*1024} {XPOL} lds', ('q', D)))
    P.append(lambda b: (b.e(f'buffer_load_dwordx4 v{VXD+2}, {srd(S_X)}, s57 offen offset:2048 {XPOL} lds', ('q', D)),
                        qnext(b, D)))
    return P

def qdma(b, D):
    b.e(f's_add_u32 m0, s60, {qslot(D)}')
    b.e('s_add_u32 s61, s57, 128')
    for h in range(0 if NOWQ else 2):
        b.e(f'buffer_load_dwordx4 v{VWD+h}, {srd(S_WQ)}, s58 offen offset:{h*1024} {WPOL} lds', ('q', D))
    b.e(f's_add_u32 m0, s59, {qslot(D)}')
    b.e('s_add_u32 s58, s58, 524288')
    for i in range(0 if NOX else 3):
        b.e(f'buffer_load_dwordx4 v{VXD+i}, {srd(S_X)}, s57 offen offset:{i*1024} {XPOL} lds', ('q', D))
    qnext(b, D)

def kvpair_static(b, n):
    c = chunk_of(n)
    S = S_K if c[0] == 'K' else S_V
    b.e(f's_add_u32 m0, s52, {slot(n)}')
    if KROT: b.e(f's_add_u32 s56, s7, {c[1] * CH}'); b.e('s_and_b32 s56, s56, 0x3ffff')
    else: b.e(f's_mov_b32 s56, {c[1] * CH}')
    b.e(f'buffer_load_dwordx4 v{VKV}, {srd(S)}, s56 offen {KVPOL} lds', ('kv', n))
    b.e(f'buffer_load_dwordx4 v{VKV}, {srd(S)}, s56 offen offset:2048 {KVPOL} lds', ('kv', n))

POFF = 0x2000000; FOFF = 0x3000000; INB = 9216
S_F = 92
def flag_srd(b):
    b.e(f's_add_u32 s{S_F}, s18, {FOFF}'); b.e(f's_addc_u32 s{S_F+1}, s19, 0')
    b.e(f's_mov_b32 s{S_F+2}, {32768+1024}'); b.e(f's_mov_b32 s{S_F+3}, 0x20000')
    b.e('s_lshl_b32 s90, s40, 5'); b.e('s_add_u32 s90, s90, s41'); b.e('s_lshl_b32 s90, s90, 7')
    b.e('s_lshl_b32 s96, s40, 7'); b.e('s_add_u32 s96, s96, 32768')

def epoch_load(b, v):
    b.e(f'v_mov_b32 v{v}, 0')
    b.e(f'buffer_load_dword v{v+1}, v{v}, {srd(S_F)}, s96 offen sc1', ('ep',))

def epoch_tags(b, v):
    b.e(f'v_readfirstlane_b32 s97, v{v+1}')
    b.e('s_nop 0')
    b.e('s_mul_i32 s97, s97, 0x9e3779b1')
    b.e('s_add_u32 s97, s97, 0x7f4a7c15')
    b.e('s_xor_b32 s98, s97, 0x80000000')

def one_lane(b, v):
    b.e(f's_lshl_b32 s91, s42, 6')
    b.e(f'v_add_u32 v{v}, s91, v0')
    b.e(f'v_lshlrev_b32 v{v}, 20, v{v}')

def kvreg_of(n): return 48 + 8 * n if n < 6 else 224 + 8 * (n - 6)
def kv_to_regs(b, n):
    c = chunk_of(n)
    S = S_K if c[0] == 'K' else S_V
    r = kvreg_of(n)
    b.e(f's_mov_b32 s56, {c[1] * CH}')
    b.e(f'buffer_load_dwordx4 {q4(r)}, v{VKV}, {srd(S)}, s56 offen {KVPOL}', ('kv', n))
    b.e(f'buffer_load_dwordx4 {q4(r+4)}, v{VKV}, {srd(S)}, s56 offen offset:2048 {KVPOL}', ('kv', n))
def kv_to_lds(n):
    r = kvreg_of(n)
    o = slot(n) % 65536
    v = VKW + slot(n) // 65536
    return [lambda b: (b.wait_vm(('kv', n)), b.e(f'ds_write_b128 v{v}, {q4(r)} offset:{o}', ('kw',))),
            E(f'ds_write_b128 v{v}, {q4(r+4)} offset:{o+2048}', ('kw',))]

def k1_qproj(ctx):
    b = Block(ctx, 'qproj')
    flag_srd(b)
    qdma(b, 0)
    b.e('v_lshl_add_u32 v9, v4, 8, v6')
    b.e('s_lshl_b32 s46, s43, 12')
    b.e('s_lshl_b32 s47, s54, 13')
    b.e('s_add_u32 s46, s46, s47')
    b.e('s_add_u32 s45, s55, s46')
    b.e(f'v_add_u32 v{VKV}, s45, v9')
    b.e('s_lshl_b32 s47, s44, 10')
    b.e('s_add_u32 s52, s46, s47')
    if KROT == 1: b.e('s_lshr_b32 s7, s2, 3')
    elif KROT == 2: b.e('s_mul_i32 s7, s2, 5')
    elif KROT == 3: b.e('s_lshr_b32 s7, s2, 4'); b.e('s_add_u32 s7, s7, s2')
    elif KROT == 4: b.e('s_mov_b32 s7, s41')
    elif KROT == 5: b.e('s_lshl_b32 s7, s40, 2'); b.e('s_add_u32 s7, s7, s41')
    elif KROT == 6: b.e('s_lshl_b32 s7, s40, 1'); b.e('s_xor_b32 s7, s7, s41'); b.e('s_mul_i32 s7, s7, 7')
    elif KROT == 7: b.e('s_lshr_b32 s7, s2, 4'); b.e('s_mul_i32 s7, s7, 3'); b.e('s_mul_i32 s6, s2, 5'); b.e('s_add_u32 s7, s7, s6')
    elif KROT == 8: b.e('s_and_b32 s7, s2, 7'); b.e('s_lshl_b32 s7, s7, 1')
    elif KROT == 9: b.e('s_mul_i32 s7, s40, 2'); b.e('s_lshr_b32 s6, s41, 4'); b.e('s_add_u32 s7, s7, s6')
    if KROT: b.e('s_and_b32 s7, s7, 15'); b.e('s_lshl_b32 s7, s7, 14')
    qdma(b, 1)
    b.e('v_lshrrev_b32 v10, 4, v0')
    b.e('v_and_b32 v6, 15, v0')
    b.e('v_lshrrev_b32 v7, 2, v6')
    b.e('v_and_b32 v8, 1, v10')
    b.e('v_lshl_add_u32 v5, v8, 2, v7')
    b.e('v_lshlrev_b32 v5, 6, v5')
    b.e('v_lshl_add_u32 v5, v8, 5, v5')
    b.e('v_lshl_add_u32 v5, v3, 3, v5')
    b.e('v_lshrrev_b32 v9, 1, v10')
    b.e('v_lshl_add_u32 v5, v9, 12, v5')
    b.e('s_lshl_b32 s45, s54, 11')
    b.e(f'v_add_u32 v{VAE}, s45, v5')
    b.e(f'v_add_u32 v{VAE+1}, {2*SLOT}, v{VAE}')
    b.e(f'v_xor_b32 v{VAO}, 32, v{VAE}')
    b.e(f'v_xor_b32 v{VAO+1}, 32, v{VAE+1}')
    b.e('v_add_u32 v5, 4, v6')
    b.e('v_bfe_u32 v11, v5, 3, 1')
    b.e('v_and_b32 v12, 7, v5')
    b.e('v_lshrrev_b32 v13, 2, v12')
    b.e('v_lshlrev_b32 v13, 1, v13')
    b.e('v_lshlrev_b32 v14, 6, v12')
    b.e('v_xor_b32 v15, v13, v10')
    b.e('v_lshl_add_u32 v15, v15, 4, v14')
    b.e('s_mul_i32 s46, s53, 6144')
    b.e('s_add_u32 s46, s46, 16384')
    b.e('v_lshl_add_u32 v5, v11, 10, v15')
    b.e(f'v_add_u32 v{VXR}, s46, v5')
    b.e(f'v_add_u32 v{VXR+1}, {2*SLOT}, v{VXR}')
    b.e('v_lshl_add_u32 v15, v11, 11, v15')
    b.e('v_lshl_add_u32 v14, v11, 11, v14')
    b.e('s_lshl_b32 s47, s54, 13')
    b.e(f'v_add_u32 v{VK}, s47, v15')
    b.e(f'v_add_u32 v{VK}, {slot(0)}, v{VK}')
    b.e('s_mul_i32 s46, s53, 12288')
    b.e(f's_add_u32 s46, s46, {QB}')
    b.e(f'v_add_u32 v{VQR}, s46, v15')
    b.e('v_xor_b32 v15, v13, v9')
    b.e('v_lshl_add_u32 v15, v15, 4, v14')
    b.e('v_lshl_add_u32 v15, v8, 3, v15')
    b.e('s_lshl_b32 s45, s54, 10')
    b.e('s_add_u32 s46, s46, s45')
    b.e(f'v_add_u32 v{VQE}, s46, v15')
    b.e(f'v_xor_b32 v{VQO}, 32, v{VQE}')
    b.e('v_add_u32 v5, 1, v10')
    b.e('v_bfe_u32 v11, v5, 1, 1')
    b.e('v_and_b32 v12, 1, v5')
    b.e('v_lshl_add_u32 v13, v12, 2, v7')
    b.e('v_lshlrev_b32 v13, 6, v13')
    b.e('v_lshl_add_u32 v13, v12, 5, v13')
    b.e('v_lshl_add_u32 v13, v3, 3, v13')
    b.e('v_lshl_add_u32 v13, v11, 11, v13')
    b.e(f's_add_u32 s47, s47, {slot(2)}')
    b.e(f'v_add_u32 v{VVE}, s47, v13')
    b.e(f'v_xor_b32 v{VVO}, 32, v{VVE}')
    b.e(f'v_lshlrev_b32 v{VL16}, 4, v0')
    b.e(f'v_add_u32 v{VKW}, s52, v{VL16}')
    b.e(f'v_add_u32 v{VKW+1}, 65536, v{VKW}')
    b.e(f'v_add_u32 v{VKW+2}, 131072, v{VKW}')
    b.e(f's_mov_b32 s48, {hex(f2u(SCALE))}')
    b.e(f's_mov_b32 s50, {(2*CH - LDS_TOT) & 0xffffffff}')
    b.e(f's_mov_b32 s51, {2*CH}')
    b.e(f's_mov_b32 s46, {slot(2)}')
    def fA(D, h, tt): return FS + 56 * (D % 2) + 28 * h + 4 * tt
    def fB(D, h, jt): return FS + 56 * (D % 2) + 28 * h + 16 + 4 * jt
    def reads(D):
        sl = ((D + 3) % 4); hi = sl // 2; o = (sl % 2) * SLOT
        r = []
        for h in range(2):
            for jt in range(3):
                r.append(E(f'ds_read_b128 {q4(fB(D,h,jt))}, v{VXR+hi} offset:{o + jt*2048 + h*512}', ('f', D)))
            for tt in range(4):
                for u in range(2):
                    r.append(E(f'ds_read_b64_tr_b16 {q2(fA(D,h,tt)+2*u)}, v{(VAO if tt%2 else VAE)+hi} offset:{o + u*8192 + h*1024 + (tt//2)*512}', ('f', D)))
        return r
    zero = [E(f'v_mov_b32 v{i}, 0') for i in range(48, 96)] + [E(f'v_mov_b32 v{LS+i}, 0') for i in range(3)]
    b.wait_vm(('q', 0))
    b.e('s_barrier')
    stamp(b, 1)
    run(b, reads(0))
    qdma(b, 2)
    issue = {0: [3, 4], 1: [5], 2: [6], 3: [7], 4: [8]}
    kvi = {5: [0], 6: [1, 2], 7: [3], 8: [4]}
    kvr = {}; kvw = {}
    if KVREG == 2:
        kvr = {3: [0], 4: [1], 5: [2]}; kvw = {7: [0, 1, 2]}; kvi = {6: [3], 7: [4], 8: [5]}
    if KVREG == 3:
        kvr = {4: [0], 5: [1]}; kvw = {7: [0, 1]}; kvi = {6: [2, 3], 7: [4], 8: [5]}
    if KVREG == 1:
        kvi = {}
        kvr = {KV1 + i: [i] for i in range(6)} if KV1 + 5 <= 6 else {2: [0], 3: [1], 4: [2], 5: [3], 6: [4, 5]}
        kvr[7] = [6]; kvr[8] = [7]
        kvw = {6: [0, 1, 2, 3], 7: [4, 5]}
    for D in range(9):
        b.e('s_waitcnt lgkmcnt(0)')
        if D + 1 < 9: b.wait_vm(('q', D + 1))
        b.e('s_barrier')
        dm = [(lambda b, x=x: qdma(b, x)) for x in issue.get(D, [])] + [(lambda b, x=x: kvpair_static(b, x)) for x in kvi.get(D, [])]
        if D == 5: dm.insert(0, lambda b: epoch_load(b, 222))
        dm += [(lambda b, x=x: kv_to_regs(b, x)) for x in kvr.get(D, [])]
        wr = sum((kv_to_lds(x) for x in kvw.get(D, [])), [])
        if KVREG >= 2: zs = zero[24 + 5 * D:29 + 5 * D] if D < 6 else {7: zero[:24]}.get(D, [])
        elif KVREG: zs = {7: zero[:32] + zero[48:], 8: zero[32:48]}.get(D, [])
        else: zs = zero[7 * D:7 * D + 7]
        mf = []
        if D < 8:
            for h in range(2):
                for tt in range(4):
                    for jt in range(3):
                        d = q4(acc(tt, jt))
                        mf.append(E(f'{MF} {d}, {q4(fA(D,h,tt))}, {q4(fB(D,h,jt))}, {"0" if D == 0 and h == 0 else d}'))
            rd = reads(D + 1)
            fill = []
            QS = int(OPT.get('qs', 1))
            if QS:
                dm = sum((qdma_parts(x) for x in issue.get(D, [])), []) + dm[len(issue.get(D, [])):]
                step = max(1, len(rd) // max(1, len(dm)))
                lastkv = [dm.pop()] if (KVREG >= 2 and D in (3, 4) and D in kvr) else []
                step = max(1, (len(rd) - 6 * len(lastkv)) // max(1, len(dm)))
                for k, x in enumerate(rd):
                    fill.append(x)
                    if dm and k % step == step - 1: fill.append(dm.pop(0))
                fill += dm + lastkv; dm = []
            for k, x in enumerate(rd if not QS else []):
                fill.append(x)
                if dm and k % 6 == 1: fill.append(dm.pop(0))
            assert not dm
            run(b, interleave(mf, wr + fill + zs, end=int(OPT.get('qe', 21)) + (2 if len(zs) > 8 else 0)))
        else:
            tiles = [(tt, jt) for tt in range(4) for jt in range(3)]
            def conv(tt, jt):
                a = acc(tt, jt)
                return [E(f'v_mul_f32 v{a+i}, s48, v{a+i}') for i in range(4)] + [
                    E(f'v_cvt_pk_bf16_f32 v{a}, v{a}, v{a+1}'), E(f'v_cvt_pk_bf16_f32 v{a+1}, v{a+2}, v{a+3}'),
                    E(f'ds_write_b64 v{VQO if tt%2 else VQE}, {q2(a)} offset:{jt*4096 + (tt//2)*512}', ('qw',))]
            LAG = 3
            run(b, dm)
            run(b, zs)
            for k, (tt, jt) in enumerate(tiles):
                d = q4(acc(tt, jt))
                cv = conv(*tiles[k - LAG]) if k >= LAG else []
                if k == LAG: b.e('s_nop 2')
                b.e(f'{MF} {d}, {q4(fA(D,0,tt))}, {q4(fB(D,0,jt))}, {d}')
                run(b, cv[:3])
                b.e(f'{MF} {d}, {q4(fA(D,1,tt))}, {q4(fB(D,1,jt))}, {d}')
                run(b, cv[3:])
            stamp(b, 2)
            for k in range(12 - LAG, 12):
                if k == 11: b.e('s_nop 0')
                run(b, conv(*tiles[k]))
    b.e('s_waitcnt lgkmcnt(0)')
    b.wait_vm(('kv', 1))
    b.wait_vm(('ep',))
    epoch_tags(b, 222)
    b.e('s_barrier')
    if not KVREG: kvpair_static(b, 5)
    for s in range(4):
        for jt in range(3):
            b.e(f'ds_read_b128 {q4(qf(s,jt))}, v{VQR} offset:{jt*4096 + (s//2)*1024 + (s%2)*512}', ('qr', s))
    return b

def kread(b, f):
    kt, s = f // 4, f % 4
    b.e(f'ds_read_b128 {q4(KR+4*(f%4))}, v{VK} offset:{kt*4096 + (s//2)*1024 + (s%2)*512}', ('k', f))
def vread(b, t):
    tau = t // 2
    a = VVO if t % 2 else VVE
    for u in range(2):
        b.e(f'ds_read_b64_tr_b16 {q2(VR+4*(t%4)+2*u)}, v{a} offset:{u*4096 + (tau//2)*1024 + (tau%2)*512}', ('v', t))
def kadv(b, first=False):
    if first:
        b.e(f'v_add_u32 v{VK}, {CH}, v{VK}')
        b.e(f's_mov_b32 s45, {slot(1)}')
        return
    b.e(f's_cmp_ge_u32 s45, {LDS_TOT - 2*CH}')
    b.e(f's_cselect_b32 s47, s50, s51')
    b.e(f's_add_u32 s45, s45, s47')
    b.e(f'v_add_u32 v{VK}, s47, v{VK}')
def vadv(b):
    b.e(f's_cmp_ge_u32 s46, {LDS_TOT - 2*CH}')
    b.e(f's_cselect_b32 s47, s50, s51')
    b.e(f's_add_u32 s46, s46, s47')
    b.e(f'v_add_u32 v{VVE}, s47, v{VVE}')
    b.e(f'v_add_u32 v{VVO}, s47, v{VVO}')


def dma_k(b):
    b.e('s_mov_b32 m0, s57')
    b.e(f's_cmp_ge_u32 s57, s61')
    b.e('s_cselect_b32 s62, s50, s51')
    so = 's59'
    if KROT:
        b.e('s_add_u32 s56, s7, s59'); b.e('s_and_b32 s56, s56, 0x3ffff')
        b.e('s_cmp_lt_u32 s59, 0x40000'); b.e('s_cselect_b32 s56, s56, s59'); so = 's56'
    b.e(f'buffer_load_dwordx4 v{VKV}, {srd(S_K)}, {so} offen {KVPOL} lds', ('kd',))
    b.e(f'buffer_load_dwordx4 v{VKV}, {srd(S_K)}, {so} offen offset:2048 {KVPOL} lds', ('kd',))
    b.e('s_add_u32 s57, s57, s62')
    b.e(f's_add_u32 s59, s59, {CH}')
def dma_v(b):
    b.e('s_mov_b32 m0, s58')
    b.e(f's_cmp_ge_u32 s58, s61')
    b.e('s_cselect_b32 s62, s50, s51')
    so = 's60'
    if KROT:
        b.e('s_add_u32 s56, s7, s60'); b.e('s_and_b32 s56, s56, 0x3ffff')
        b.e('s_cmp_lt_u32 s60, 0x40000'); b.e('s_cselect_b32 s56, s56, s60'); so = 's56'
    b.e(f'buffer_load_dwordx4 v{VKV}, {srd(S_V)}, {so} offen {KVPOL} lds', ('vd',))
    b.e(f'buffer_load_dwordx4 v{VKV}, {srd(S_V)}, {so} offen offset:2048 {KVPOL} lds', ('vd',))
    b.e('s_add_u32 s58, s58, s62')
    b.e(f's_add_u32 s60, s60, {CH}')

PS = TMP + 8

def guarded(fn, T):
    def g(b):
        if T is None: return fn(b)
        role.n += 1; l = f'SK{role.n}'
        b.e(f's_cmp_eq_u32 s44, {T}')
        b.e(f's_cbranch_scc1 {l}')
        fn(b)
        b.e(f'{l}:')
    return g

def qk_backbone(S, cinit, nextV=True, first=False, qwait=False, dma=None):
    bb = []
    for f in range(8):
        kt, s = f // 4, f % 4
        for jt in range(3):
            def slot(b, f=f, kt=kt, s=s, jt=jt):
                if jt == 0:
                    if qwait and f < 4: b.wait_lgkm(('qr', s))
                    if not PAIRW: b.wait_lgkm(('k', f))
                    elif PAIRW == 2 and f == 0: b.wait_lgkm(('k', 3))
                    elif f % 2 == 0: b.wait_lgkm(('k', f + 1)); b.wait_lgkm(('k', f))
                d = q4(st(S, kt, jt))
                c = d if s else (q4(NEGM + 4 * jt) if cinit == 'negm' else '0')
                b.e(f'{MF} {d}, {q4(KR+4*(f%4))}, {q4(qf(s,jt))}, {c}')
                if jt == 2:
                    if f < 4: kread(b, f + 4)
                    if f == 3: kadv(b, first)
                    if f >= 4:
                        if nextV == 'K': kread(b, f - 4)
                        elif nextV: vread(b, f - 4)
                if dma and not NODMA and f == 0 and jt == 1: dma(b)
            bb.append(slot)
    return bb

def pv_backbone(P, nextK=True, dma=None, adv=True):
    bb = []
    for t in range(8):
        for jt in range(3):
            def slot(b, t=t, jt=jt):
                if jt == 0:
                    if not PAIRW: b.wait_lgkm(('v', t))
                    elif PAIRW == 2 and t == 0: b.wait_lgkm(('v', 3))
                    elif t % 2 == 0: b.wait_lgkm(('v', t + 1)); b.wait_lgkm(('v', t))
                d = q4(acc(t, jt))
                b.e(f'{MF} {d}, {q4(VR+4*(t%4))}, {q4(st(P,0,jt))}, {d}')
                if jt == 2:
                    if t < 4: vread(b, t + 4)
                    if t == 3 and adv: vadv(b)
                    if t >= 4 and nextK: kread(b, t - 4)
                if dma and not NODMA and t == 0 and jt == 1: dma(b)
            bb.append(slot)
    return bb

def sregs(S, jt): return [st(S, 0, jt) + i for i in range(4)] + [st(S, 1, jt) + i for i in range(4)]

def sm_fillers(S):
    fl = []
    for kt in range(2):
        for jt in range(3):
            r = sregs(S, jt)
            o = 4 * kt
            fl.append(E(f'v_exp_f32 v{r[o]}, v{r[o]}'))
            fl.append(E(f'v_exp_f32 v{r[o+1]}, v{r[o+1]}'))
            if kt: fl.append(E(f'v_add_f32 v{PS+jt}, v{PS+jt}, v{r[o]}'))
            fl.append(E(f'v_exp_f32 v{r[o+2]}, v{r[o+2]}'))
            if kt: fl.append(E(f'v_add_f32 v{PS+jt}, v{PS+jt}, v{r[o+1]}'))
            else: fl.append(E(f'v_add_f32 v{PS+jt}, v{r[0]}, v{r[1]}'))
            fl.append(E(f'v_exp_f32 v{r[o+3]}, v{r[o+3]}'))
            fl.append(E(f'v_add_f32 v{PS+jt}, v{PS+jt}, v{r[o+2]}'))
            fl.append(E(f'v_cvt_pk_bf16_f32 v{r[2*kt]}, v{r[o]}, v{r[o+1]}'))
            fl.append(E(f'v_add_f32 v{PS+jt}, v{PS+jt}, v{r[o+3]}'))
            fl.append(E(f'v_cvt_pk_bf16_f32 v{r[2*kt+1]}, v{r[o+2]}, v{r[o+3]}'))
    return fl

def chk_fillers():
    return [E(f'v_max3_f32 v{TMP}, v{PS}, v{PS+1}, v{PS+2}'), E(f'v_cmp_nle_f32 vcc, v{TMP}, v{TMP+11}')]
def ladd_fillers():
    return [E(f'v_add_f32 v{LS+jt}, v{LS+jt}, v{PS+jt}') for jt in range(3)]

def xreduce3(regs, tmps, op):
    fl = []
    for sw in ('v_permlane32_swap_b32', 'v_permlane16_swap_b32'):
        for r, t in zip(regs, tmps): fl.append(E(f'v_mov_b32 v{t}, v{r}'))
        for r, t in zip(regs, tmps): fl.append(E(f'{sw} v{r}, v{t}'))
        for r, t in zip(regs, tmps): fl.append(E(f'{op} v{r}, v{r}, v{t}'))
    return fl

MX = [TMP + 1, TMP + 2, TMP + 3]; MT = [TMP + 4, TMP + 5, TMP + 6]
def rowmax3(S):
    fl = []
    R = [sregs(S, jt) for jt in range(3)]
    for jt in range(3): fl.append(E(f'v_max3_f32 v{MX[jt]}, v{R[jt][0]}, v{R[jt][1]}, v{R[jt][2]}'))
    for jt in range(3): fl.append(E(f'v_max3_f32 v{MX[jt]}, v{MX[jt]}, v{R[jt][3]}, v{R[jt][4]}'))
    for jt in range(3): fl.append(E(f'v_max3_f32 v{MX[jt]}, v{MX[jt]}, v{R[jt][5]}, v{R[jt][6]}'))
    for jt in range(3): fl.append(E(f'v_max_f32 v{MX[jt]}, v{MX[jt]}, v{R[jt][7]}'))
    return fl + xreduce3(MX, MT, 'v_max_f32')

def rare_path(ctx, name, Y, X, back):
    snap = ctx.snap()
    r = Block(ctx, name + 'r')
    r.e(f'{name}_RARE:')
    r.e(f's_cmp_ge_u32 s45, {back*CH}')
    r.e(f's_cselect_b32 s47, 0, {LDS_TOT}')
    r.e(f's_sub_u32 s47, s47, {back*CH}')
    r.e(f'v_add_u32 v{TMP+7}, s47, v{VK}')
    for kt in range(2):
        for s in range(4):
            r.e(f'ds_read_b128 {q4(KR+4*s)}, v{TMP+7} offset:{kt*4096 + (s//2)*1024 + (s%2)*512}', ('rk',))
        r.e('s_waitcnt lgkmcnt(0)')
        for s in range(4):
            for jt in range(3):
                d = q4(st(Y, kt, jt))
                r.e(f'{MF} {d}, {q4(KR+4*s)}, {q4(qf(s,jt))}, {d if s else q4(NEGM+4*jt)}')
    r.e('s_nop 7')
    run(r, rowmax3(Y))
    for jt in range(3): r.e(f'v_max_f32 v{MX[jt]}, 0, v{MX[jt]}')
    for jt in range(3): r.e(f'v_exp_f32 v{MT[jt]}, -v{MX[jt]}')
    for jt in range(3):
        for q in sregs(Y, jt) + (sregs(X, jt) if X else []) + [NEGM + 4 * jt + i for i in range(4)]:
            r.e(f'v_sub_f32 v{q}, v{q}, v{MX[jt]}')
        r.e(f'v_mul_f32 v{LS+jt}, v{LS+jt}, v{MT[jt]}')
        for t in range(8):
            for i in range(4): r.e(f'v_mul_f32 v{acc(t,jt)+i}, v{acc(t,jt)+i}, v{MT[jt]}')
    run(r, sm_fillers(Y))
    r.e('s_nop 1')
    r.e(f's_branch {name}_JOIN')
    ctx.restore(snap)
    return r

def k1_att_prologue(ctx):
    b = Block(ctx, 'att_pro')
    for f in range(4): kread(b, f)
    nk, nv = {0: (7, 8), 1: (11, 10), 2: (9, 8), 3: (9, 8)}[KVREG]
    if LEAD == 8: nk, nv = 9, 8
    b.e(f's_add_u32 s57, s52, {slot(nk)}')
    b.e(f's_add_u32 s58, s52, {slot(nv)}')
    b.e(f's_mov_b32 s59, {chunk_of(nk)[1]*CH}')
    b.e(f's_mov_b32 s60, {chunk_of(nv)[1]*CH}')
    b.e(f's_add_u32 s61, s52, {LDS_TOT - 2*CH}')
    b.e(f'v_mov_b32 v{TMP+11}, {hex(f2u(THR))}')
    if FUSED and WARM:
        b.e('s_lshr_b32 s55, s41, 3'); b.e('s_mul_i32 s55, s55, 1179648')
        b.e('s_and_b32 s56, s41, 3'); b.e('s_mul_i32 s62, s56, 288'); b.e('s_add_u32 s55, s55, s62')
        b.e('s_and_b32 s62, s41, 1'); b.e('s_lshl_b32 s62, s62, 5'); b.e('s_sub_u32 s55, s55, s62')
        b.e('s_lshl_b32 s56, s56, 1'); b.e('s_and_b32 s62, s41, 4'); b.e('s_add_u32 s56, s56, s62')
        b.e('s_and_b32 s62, s40, 3'); b.e('s_add_u32 s56, s56, s62'); b.e('s_and_b32 s56, s56, 7')
        b.e('s_mul_i32 s56, s56, 147456'); b.e('s_add_u32 s55, s55, s56')
        b.e('s_mul_i32 s56, s42, 18432'); b.e('s_add_u32 s55, s55, s56')
        b.e('s_add_u32 s28, s12, s55'); b.e('s_addc_u32 s29, s13, 0')
        b.e('s_sub_u32 s30, 4718592, s55'); b.e('s_mov_b32 s31, 0x20000')
    zero = [E(f'v_mov_b32 v{ACC+i}, 0') for i in range(48)]
    run(b, interleave(qk_backbone(SA, '0', nextV='K', first=True, qwait=True), zero))
    b.wait_vm(('kv', 2))
    b.e('s_barrier')
    if WARM >= 2:
        b.e(f'v_lshrrev_b32 v{TMP+7}, 6, v{VL16}'); b.e(f'v_mul_u32_u24 v{TMP+7}, 1152, v{TMP+7}')
        b.e(f'v_and_b32 v{TMP}, 48, v{VL16}'); b.e(f'v_lshlrev_b32 v{TMP}, 3, v{TMP}'); b.e(f'v_min_u32 v{TMP}, 316, v{TMP}')
        b.e(f'v_add_u32 v{TMP+7}, v{TMP+7}, v{TMP}')
        b.e(f'buffer_load_dword v{TMP}, v{TMP+7}, s[28:31], 0 offen', ('warm0',))
    if KVREG >= 2:
        kvpair_static(b, 6)
        kvpair_static(b, 7)
    elif KVREG:
        kvpair_static(b, 8)
        kvpair_static(b, 9)
        run(b, kv_to_lds(7)[:1] + kv_to_lds(7)[1:] + kv_to_lds(6))
    else:
        kvpair_static(b, 6)
        if LEAD == 8: kvpair_static(b, 7)
    if TOUCH:
        b.e(f'v_lshlrev_b32 v{TMP+7}, {12 if TOUCH == 1 else 17}, v{VL16}')
        b.e('s_mov_b32 s100, 0x20000')
        for base, size, off in ((12, 4718592, 0), (18, 0x1000000, 0), (18, 0x1000000, 0x400000), (18, 0x1000000, 0x800000), (18, 0x3000000, 0x2000000), (18, 0x3000000, 0x2400000), (18, 0x3000000, 0x2800000), (18, 0x3000000, 0x2c00000), (14, 1769472, 0)):
            b.e(f's_mov_b32 s28, s{base}'); b.e(f's_mov_b32 s29, s{base+1}'); b.e(f's_mov_b32 s30, {size}'); b.e('s_mov_b32 s31, 0x20000')
            b.e(f's_mov_b32 s56, {off}')
            b.e(f'buffer_load_dword v{TMP}, v{TMP+7}, s[28:31], s56 offen', ('touch',))
        b.e('s_waitcnt vmcnt(0)')
    run(b, rowmax3(SA))
    for jt in range(3):
        for i in range(4): b.e(f'v_sub_f32 v{NEGM+4*jt+i}, 0, v{MX[jt]}')
    sub = [E(f'v_sub_f32 v{r}, v{r}, v{MX[jt]}') for kt in range(2) for jt in range(3) for r in sregs(SA, jt)[4*kt:4*kt+4]]
    run(b, interleave(qk_backbone(SB, 'negm', nextV=True), sub + sm_fillers(SA)))
    b.e('s_mov_b32 s44, 0')
    if PRIO:
        b.e('s_cmp_ge_u32 s42, 4'); b.e('s_cbranch_scc0 NOPRIO'); b.e('s_setprio 1'); b.e('NOPRIO:')
    stamp(b, 3)
    return b

def winter(backbone, fillers, start, end):
    if not int(OPT.get('cw', 0)): return interleave(backbone, fillers, start, end)
    class Probe:
        def e(self, t, tag=None): self.t = t
    w = []
    for f in fillers:
        p = Probe(); p.t = ''
        try: f(p)
        except Exception: pass
        w.append(2 if p.t.startswith('v_exp') else 1)
    tot = sum(w); n = len(backbone); span = end - start
    out = []; k = 0; acc_ = 0
    for i in range(n):
        out.append(backbone[i])
        if start <= i < end:
            tgt = tot * (i - start + 1) / span
            while k < len(fillers) and acc_ + w[k] / 2 <= tgt:
                out.append(fillers[k]); acc_ += w[k]; k += 1
    return out + fillers[k:]

def pv_phase(ctx, name, P, S, nextK=True, head=None, dma=None, vmw=4, bar=True, extra=(), split=None):
    a = Block(ctx, name)
    if head: head(a)
    if bar:
        a.e(f's_waitcnt vmcnt({(2 if NOBARQK else vmw) + 2 * (LEAD - 6)})')
        a.e('s_barrier')
    fl = ladd_fillers() + (sm_fillers(S)[:split or SM_SPLIT] if S else []) + list(extra)
    run(a, winter(pv_backbone(P, nextK, dma, adv=bar), fl, int(OPT.get('pvs', 2)), 24))
    return a

def qk_phase(ctx, name, D, S, dma):
    b = Block(ctx, name)
    if not NOBARQK:
        b.e('s_waitcnt vmcnt(4)')
        b.e('s_barrier')
    run(b, winter(qk_backbone(D, 'negm', dma=dma), sm_fillers(S)[SM_SPLIT:] + chk_fillers(), 0, 23))
    b.e(f's_cbranch_vccnz {name}_RARE')
    r = rare_path(ctx, name, S, D, 4)
    j = Block(ctx, name + 'j'); j.e(f'{name}_JOIN:')
    return b, r, j

def pol_store(b, text, tag):
    b.e(text + ' sc1', tag)

EXB = 4 * CH
MLB = 24576
XA = SA + 20
def vread_as(b, t, k):
    tau = t // 2
    a = VVO if t % 2 else VVE
    for u in range(2):
        b.e(f'ds_read_b64_tr_b16 {q2(VR+4*(k%4)+2*u)}, v{a} offset:{u*4096 + (tau//2)*1024 + (tau%2)*512}', ('v', k))
def order_of(r): return [4, 5, 6, 7, 0, 1, 2, 3] if r == A else list(range(8))

def last_pv(ctx):
    b = Block(ctx, 'L3')
    b.e('L2_JOIN:')
    setup = tail_setup()
    red = ladd_fillers() + xreduce3([LS, LS + 1, LS + 2], MT, 'v_add_f32')
    for r in (A, B):
        with role(b, r):
            od = order_of(r)
            bb = []
            for k, t in enumerate(od):
                for jt in range(3):
                    def slot_(b, k=k, t=t, jt=jt):
                        if jt == 0 and k % 2 == 0: b.wait_lgkm(('v', k + 1))
                        d = q4(acc(t, jt))
                        b.e(f'{MF} {d}, {q4(VR+4*(k%4))}, {q4(st(SB,0,jt))}, {d}')
                        if jt == 2 and k < 4: vread_as(b, od[k + 4], k + 4)
                    bb.append(slot_)
            snd = [E(f'ds_write_b128 v{XA}, {q4(acc(t, jt))} offset:{(3*i+jt)*1024}', ('x',)) for i, t in enumerate(od[:4]) for jt in range(3)]
            run(b, interleave(bb[:12], red + setup[:10], start=1))
            mixed = []
            for k in range(max(len(snd), len(setup) - 10)):
                if 10 + k < len(setup): mixed.append(setup[10 + k])
                if k < len(snd): mixed.append(snd[k])
            run(b, interleave(bb[12:], mixed, start=0))
    return b

def k1_epilogue(ctx):
    b = Block(ctx, 'epi')
    stamp(b, 4)
    if STAMP and OPT.get('rt4'): b.e('s_memrealtime s[84:85]')
    b.e('s_xor_b32 s46, s42, 4')
    b.e(f'v_lshrrev_b32 v{VVO}, 1, v{VL16}')
    b.e('s_mul_i32 s43, s42, 1536')
    b.e('s_mul_i32 s45, s46, 1536')
    b.e(f's_add_u32 s43, s43, {MLB}')
    b.e(f's_add_u32 s45, s45, {MLB}')
    b.e(f'v_add_u32 v{VKV}, s43, v{VVO}')
    b.e(f'v_add_u32 v{VVO}, s45, v{VVO}')
    for jt in range(3):
        b.e(f'v_mov_b32 v{NEGM+4*jt+1}, v{LS+jt}')
    for jt in range(3):
        b.e(f'ds_write_b64 v{VKV}, {q2(NEGM+4*jt)} offset:{jt*512}', ('x',))
    b.e('s_and_b32 s43, s42, 3')
    b.e('s_mul_i32 s43, s43, 393216')
    b.e('s_lshl_b32 s45, s41, 12')
    b.e('s_add_u32 s43, s43, s45')
    b.e('s_lshl_b32 s45, s54, 11')
    b.e('s_add_u32 s43, s43, s45')
    b.e('s_add_u32 s45, s43, 131072')
    b.e('s_add_u32 s46, s43, 262144')
    so = ['s43', 's45', 's46']
    b.e('s_waitcnt lgkmcnt(0)')
    b.e('s_barrier')
    RX = QF
    ML = SA
    for jt in range(3):
        b.e(f'ds_read_b64 {q2(ML+2*jt)}, v{VVO} offset:{jt*512}', ('ml',))
    for i in range(12):
        b.e(f'ds_read_b128 {q4(RX+4*i)}, v{XA+1} offset:{i*1024}', ('rx', i))
    b.wait_lgkm(('ml',))
    C = SA + 8
    T = [TMP, TMP + 4, TMP + 8]
    def each(f):
        for jt in range(3): b.e(f(jt, NEGM + 4 * jt, NEGM + 4 * jt + 1, ML + 2 * jt, ML + 2 * jt + 1, T[jt]))
    each(lambda jt, no, lo, np_, lp, t: f'v_min_f32 v{t}, v{no}, v{np_}')
    each(lambda jt, no, lo, np_, lp, t: f'v_sub_f32 v{t+1}, v{t}, v{no}')
    each(lambda jt, no, lo, np_, lp, t: f'v_sub_f32 v{t+2}, v{t}, v{np_}')
    each(lambda jt, no, lo, np_, lp, t: f'v_exp_f32 v{t+1}, v{t+1}')
    each(lambda jt, no, lo, np_, lp, t: f'v_exp_f32 v{t+2}, v{t+2}')
    each(lambda jt, no, lo, np_, lp, t: f'v_mul_f32 v{t+3}, v{t+1}, v{lo}')
    each(lambda jt, no, lo, np_, lp, t: f'v_fmac_f32 v{t+3}, v{t+2}, v{lp}')
    each(lambda jt, no, lo, np_, lp, t: f'v_rcp_f32 v{t+3}, v{t+3}')
    b.e('s_nop 0')
    for x, src in ((0, 1), (1, 1), (2, 2), (3, 2)):
        each(lambda jt, no, lo, np_, lp, t: f'v_mul_f32 v{C+4*jt+x}, v{t+src}, v{t+3}')
    OUT = SB
    snap = ctx.snap()
    for r in (A, B):
        with role(b, r):
            keep = range(0, 4) if r == A else range(4, 8)
            for sp in range(2):
                for jt in range(3):
                    o = OUT + 4 * (3 * sp + jt)
                    for h in range(2):
                        i = 2 * sp + h
                        a = acc(keep[i], jt); x = RX + 4 * (3 * i + jt)
                        b.wait_lgkm(('rx', 3 * i + jt))
                        b.e(f'v_pk_mul_f32 {q2(a)}, {q2(a)}, {q2(C+4*jt)}')
                        b.e(f'v_pk_mul_f32 {q2(a+2)}, {q2(a+2)}, {q2(C+4*jt)}')
                        b.e(f'v_pk_fma_f32 {q2(a)}, {q2(x)}, {q2(C+4*jt+2)}, {q2(a)}')
                        b.e(f'v_pk_fma_f32 {q2(a+2)}, {q2(x+2)}, {q2(C+4*jt+2)}, {q2(a+2)}')
                        b.e(f'v_cvt_pk_bf16_f32 v{o+2*h}, v{a}, v{a+1}')
                        b.e(f'v_cvt_pk_bf16_f32 v{o+2*h+1}, v{a+2}, v{a+3}')
                    pol_store(b, f'buffer_store_dwordx4 {q4(o)}, v{VL16}, {srd(S_O)}, {so[jt]} offen offset:{sp*1024}', ('o',))
    if FUSED:
        b.e('s_bfe_u32 s43, s42, 0x10001')
        b.e('s_cmp_eq_u32 s43, s49')
        b.e('s_cbranch_scc0 OWN_SKIP')
        b.e('s_and_b32 s43, s42, 1'); b.e('s_mul_i32 s43, s43, 6144')
        b.e(f's_mul_i32 s45, s54, {OS_}'); b.e('s_add_u32 s43, s43, s45')
        b.e(f'v_add_u32 v{VK}, s43, v{VL16}')
        for sp in range(2):
            for jt in range(3):
                b.e(f'ds_write_b128 v{VK}, {q4(OUT + 4 * (3 * sp + jt))} offset:{(2*jt+sp)*1024}', ('oo',))
        b.e('OWN_SKIP:')
    if not FUSED:
        if STAMP:
            b.e('s_waitcnt vmcnt(0)')
            stamp(b, 5)
            dump_stamps(b)
        b.e('K1_END:')
        b.e('s_endpgm')
    return b

def dump_stamps(b):
    b.e('s_memrealtime s[88:89]')
    b.e('s_waitcnt lgkmcnt(0)')
    if STAMP == 2:
        b.e(f's_cmp_eq_u32 s2, {int(OPT.get("dbgwg", 0))}'); b.e('s_cbranch_scc0 DBG_SKIP')
        b.e('s_cmp_eq_u32 s42, 2'); b.e('s_cbranch_scc0 DBG_SKIP')
        b.e('s_mov_b32 s56, s16'); b.e('s_mov_b32 s57, s17'); b.e('s_mov_b32 s58, 256'); b.e('s_mov_b32 s59, 0x20000')
        b.e('v_mov_b32 v1, 0')
        for i in range(1, 11):
            b.e(f's_sub_u32 s43, s{64+2*i}, s64'); b.e('v_mov_b32 v2, s43')
            b.e(f'buffer_store_dword v2, v1, s[56:59], 0 offen offset:{4*i}')
            b.e('s_waitcnt vmcnt(0)')
        b.e('s_sub_u32 s43, s88, s86'); b.e('v_mov_b32 v2, s43')
        b.e('buffer_store_dword v2, v1, s[56:59], 0 offen offset:44')
        b.e('s_waitcnt vmcnt(0)')
        b.e('DBG_SKIP:')
        return
    b.e('s_lshl_b32 s43, s2, 3'); b.e('s_add_u32 s43, s43, s42'); b.e('s_lshl_b32 s43, s43, 7')
    b.e('s_add_u32 s43, s43, 0x1000000')
    b.e('s_add_u32 s56, s18, s43'); b.e('s_addc_u32 s57, s19, 0'); b.e('s_mov_b32 s58, 128'); b.e('s_mov_b32 s59, 0x20000')
    b.e('v_mov_b32 v1, 0')
    for i in range(13):
        b.e(f'v_mov_b32 v2, s{64+2*i}'); b.e(f'v_mov_b32 v3, s{65+2*i}')
        b.e(f'buffer_store_dwordx2 v[2:3], v1, s[56:59], 0 offen offset:{8*i}')
        b.e('s_waitcnt vmcnt(0)')

def poll(b, name, load, notyet):
    b.e('s_mov_b32 s91, 0')
    b.e(f'{name}:')
    b.e(load)
    b.e('s_add_u32 s91, s91, 1')
    b.e('s_waitcnt vmcnt(0)')
    b.e(notyet)
    b.e('s_cmp_lt_u32 s91, 0x40000')
    b.e(f's_cbranch_vccz {name}_GO')
    b.e(f's_sleep {SLEEP}')
    b.e(f's_cbranch_scc1 {name}')
    b.e(f'{name}_GO:')

BIG, SML, LW, LO = (2, 3), (0, 1, 4, 5), (6,), (7,)
S_WO, S_OI, S_P, S_PI, S_OUT = 20, 24, 28, 32, 36
VAP = 192; VB = 197; VT = 198; VE = 202; GS = 208; XF = 248
WS_ = 20480; NW_ = 6; OS_ = 12288; NO_ = 3; WOB = NO_ * OS_

def tail_setup():
    P = []
    def piece(*lines): P.append(lambda b: [b.e(l) for l in lines])
    piece('s_lshr_b32 s47, s41, 3', 's_and_b32 s48, s41, 7')
    piece('s_lshr_b32 s49, s48, 2', 's_and_b32 s50, s48, 3')
    piece('s_and_b32 s51, s50, 1', 's_mul_i32 s55, s47, 1179648')
    piece('s_mul_i32 s61, s50, 288', 's_add_u32 s55, s55, s61')
    piece('s_lshl_b32 s61, s51, 5', 's_sub_u32 s55, s55, s61')
    piece('s_mul_i32 s61, s40, 1572864', 's_mul_i32 s100, s49, 786432')
    piece('s_add_u32 s61, s61, s100', 's_lshl_b32 s100, s47, 15')
    piece('s_add_u32 s61, s61, s100', f's_sub_u32 s{S_WO+2}, 4718592, s55')
    piece(f's_add_u32 s{S_WO}, s12, s55', f's_addc_u32 s{S_WO+1}, s13, 0')
    piece(f's_add_u32 s{S_OI}, s18, s61', f's_addc_u32 s{S_OI+1}, s19, 0')
    piece(f's_mov_b32 s{S_WO+3}, 0x20000', f's_mov_b32 s{S_OI+2}, {5*131072 + 32768}', f's_mov_b32 s{S_OI+3}, 0x20000')
    piece('s_lshl_b32 s52, s40, 3', 's_add_u32 s52, s52, s48')
    piece(f's_mul_i32 s52, s52, {16*INB}', f's_add_u32 s52, s52, {POFF}')
    piece(f's_mul_i32 s61, s47, {INB}', 's_add_u32 s61, s61, s52')
    piece(f's_add_u32 s{S_P}, s18, s61', f's_addc_u32 s{S_P+1}, s19, 0')
    piece(f's_mov_b32 s{S_P+2}, {13*INB}', f's_mov_b32 s{S_P+3}, 0x20000')
    piece(f's_mul_i32 s61, s47, {4*INB}', 's_add_u32 s61, s61, s52')
    piece(f's_add_u32 s{S_PI}, s18, s61', f's_addc_u32 s{S_PI+1}, s19, 0')
    piece(f's_mov_b32 s{S_PI+2}, {4*INB}', f's_mov_b32 s{S_PI+3}, 0x20000')
    piece('s_mul_i32 s52, s40, 192', 's_mul_i32 s61, s49, 96')
    piece('s_add_u32 s52, s52, s61', 's_lshl_b32 s61, s47, 2')
    piece('s_add_u32 s52, s52, s61', 's_mul_i32 s52, s52, 1152')
    piece('s_mul_i32 s61, s50, 288', 's_add_u32 s6, s52, s61')
    piece('s_lshr_b32 s100, s50, 1', 's_and_b32 s99, s90, 0xfffffc00')
    return P

def head_of(b, U):
    G = U // 2
    b.e(f's_add_u32 s55, s48, {G >> 1}'); b.e('s_and_b32 s55, s55, 3')
    b.e(f's_xor_b32 s61, s48, {(G & 1) << 2}'); b.e('s_and_b32 s61, s61, 4'); b.e('s_or_b32 s55, s55, s61')

def oproj(ctx):
    FB = 64
    b = Block(ctx, 'op_pre')
    stamp(b, 2, True)
    b.e(f'v_lshrrev_b32 v{VT+3}, 4, v{VL16}')
    T0 = 216
    v3, v4, v5, v6, v7 = (f'v{T0+i}' for i in range(5))
    VL = 224
    b.e(f'v_and_b32 {v3}, 3, v{VT+3}')
    with role(b, BIG + SML):
        b.e('s_and_b32 s43, s42, 1')
        b.e('s_cmp_lt_u32 s42, 2'); b.e('s_cselect_b32 s45, 5, 0')
        b.e('s_cmp_ge_u32 s42, 4'); b.e('s_cselect_b32 s45, 7, s45')
        b.e(f'v_lshrrev_b32 {v4}, 4, v{VT+3}'); b.e(f'v_bfe_u32 {v5}, v{VT+3}, 2, 4')
        b.e(f'v_and_b32 {v7}, 7, {v5}'); b.e(f'v_lshlrev_b32 {v7}, 6, {v7}'); b.e(f'v_lshlrev_b32 {v5}, 6, {v5}')
        b.e(f'v_and_b32 {v6}, 1, {v4}'); b.e(f'v_lshlrev_b32 {v6}, 5, {v6}'); b.e(f'v_lshl_add_u32 {v6}, {v3}, 3, {v6}')
        b.e(f'v_add_u32 {v5}, {v5}, {v6}'); b.e(f'v_add_u32 {v7}, {v7}, {v6}')
        b.e(f'v_lshrrev_b32 {v6}, 1, {v4}'); b.e(f'v_lshl_add_u32 {v7}, {v6}, 12, {v7}')
        b.e('s_add_u32 s101, s45, s51')
        for n in range(5):
            b.e(f's_add_u32 s52, s101, {n}')
            b.e('s_and_b32 s91, s52, 1'); b.e('s_lshl_b32 s91, s91, 5')
            b.e('s_lshr_b32 s52, s52, 1'); b.e('s_sub_u32 s52, s52, s100')
            b.e('s_and_b32 s54, s52, 1'); b.e('s_lshl_b32 s54, s54, 9')
            b.e('s_lshr_b32 s55, s52, 1'); b.e('s_lshl_b32 s55, s55, 13'); b.e('s_add_u32 s54, s54, s55')
            b.e('s_cmp_lt_u32 s52, 4'); b.e('s_cselect_b32 s54, s54, 16384'); b.e('s_cselect_b64 vcc, -1, 0')
            b.e(f's_add_u32 s54, s54, {WOB}')
            b.e(f'v_cndmask_b32 v{VAP+n}, {v5}, {v7}, vcc')
            b.e(f'v_xor_b32 v{VAP+n}, s91, v{VAP+n}'); b.e(f'v_add_u32 v{VAP+n}, s54, v{VAP+n}')
        b.e('s_mul_i32 s52, s43, 6144')
        b.e(f'v_add_u32 v{VB}, s52, v{VL16}')
        b.e(f'v_bfe_u32 {v6}, v{VT+3}, 2, 2'); b.e(f'v_mul_u32_u24 {v6}, {4*INB}, {v6}')
        b.e(f'v_lshl_add_u32 {v6}, {v4}, 6, {v6}'); b.e(f'v_lshl_add_u32 v{VT+2}, {v3}, 4, {v6}')
        b.e('s_mul_i32 s52, s43, 27'); b.e('s_add_u32 s52, s52, s45'); b.e('s_lshl_b32 s5, s52, 8')
        b.e('s_mul_i32 s52, s43, 9'); b.e('s_add_u32 s52, s52, s45'); b.e('s_lshl_b32 s4, s52, 9')
    b.e(f'v_bfe_u32 {v4}, v{VT+3}, 2, 3'); b.e(f'v_lshrrev_b32 {v5}, 2, v{VT+3}')
    b.e('s_cmp_eq_u32 s42, 7'); b.e('s_cselect_b64 vcc, -1, 0')
    b.e(f'v_lshrrev_b32 {v6}, 5, v{VT+3}'); b.e(f'v_lshlrev_b32 {v6}, 6, {v6}')
    b.e(f'v_cndmask_b32 {v4}, {v4}, {v5}, vcc'); b.e(f'v_cndmask_b32 {v6}, {v6}, 0, vcc')
    b.e(f'v_mul_u32_u24 {v5}, 1152, {v4}'); b.e(f'v_add_u32 {v5}, {v5}, {v6}')
    b.e(f'v_bfe_u32 {v4}, {v4}, 2, 1'); b.e(f'v_lshlrev_b32 {v4}, 1, {v4}'); b.e(f'v_xor_b32 {v4}, {v4}, {v3}')
    b.e(f'v_lshl_add_u32 {v5}, {v4}, 4, {v5}')
    b.e('s_lshl_b32 s52, s100, 6'); b.e('s_lshl_b32 s54, s100, 8'); b.e('s_sub_u32 s54, 256, s54')
    b.e('s_cmp_eq_u32 s42, 7'); b.e('s_cselect_b32 s52, s54, s52')
    b.e(f'v_add_u32 v{VL}, s52, {v5}')
    for m in range(1, 4): b.e(f'v_add_u32 v{VL+m}, {m*(18432-1024)}, v{VL}')
    b.e(f'v_add_u32 v{VL+4}, {131072-2048}, v{VL16}')
    b.e(f'v_and_b32 v{VL+5}, 0x70, v{VL16}'); b.e(f'v_lshlrev_b32 v{VL+5}, 3, v{VL+5}')
    b.e('s_lshl_b32 s91, s42, 6')
    b.e(f'v_add_u32 v{VT}, s91, v{VT+3}')
    b.e(f'v_lshlrev_b32 v{VT}, 20, v{VT}')
    b.e(f'v_mov_b32 v{VT+1}, s97')
    b.e('s_waitcnt lgkmcnt(0)')
    b.wait_vm(('o',))
    b.e('s_barrier')
    FL = int(OPT.get('fl', 0))
    if FL == 0: b.e(f'buffer_store_dword v{VT+1}, v{VT}, {srd(S_F)}, s90 offen sc1', ('f1',))
    stamp(b, 5)
    b.e('s_cmp_eq_u32 s42, 6'); b.e('s_cbranch_scc1 OP_LW')
    b.e('s_cmp_eq_u32 s42, 7'); b.e('s_cbranch_scc1 OP_LO')
    b.e('s_bitcmp1_b32 12, s42'); b.e('s_cbranch_scc1 OP_BIG')

    def wo_off(x, U):
        head_of(x, U)
        x.e('s_mul_i32 s55, s55, 147456')
        if U % 2: x.e('s_add_u32 s55, s55, 73728')
    def wo_full(x, U):
        wo_off(x, U)
        for ty in range(4):
            x.e(f's_mov_b32 m0, {WOB + (U % NW_) * WS_ + ty * 4096}')
            x.e(f's_add_u32 s56, s55, {(ty % 2) * 9216 + (ty // 2) * 128}')
            for m in range(4):
                x.e(f'buffer_load_dwordx4 v{VL+m}, {srd(S_WO)}, s56 offen offset:{m*1024} lds', ('w', U))
    def wo_half(x, U):
        wo_off(x, U)
        x.e(f's_mov_b32 m0, {WOB + (U % NW_) * WS_ + 16384}')
        x.e('s_nop 0')
        for m in range(4):
            x.e(f'buffer_load_dwordx4 v{VL+m}, {srd(S_WO)}, s55 offen offset:{m*1024} lds', ('w', U))
    def o_unit(x, U):
        head_of(x, U)
        if U % 2 == 0:
            role.n += 1; l = f'HP{role.n}'
            x.e('s_bitcmp1_b32 s3, s55')
            x.e(f's_cbranch_scc0 {l}_GO')
            for t in ['s_mov_b32 s91, 0', f'{l}:', f'buffer_load_dword v{VL+6}, v{VL+5}, {srd(S_F)}, s99 offen sc1', 's_add_u32 s91, s91, 1',
                      's_waitcnt vmcnt(0)', f'v_cmp_ne_u32 vcc, s97, v{VL+6}', 's_nop 0', 's_mov_b32 s3, vcc_lo', 's_bitcmp1_b32 s3, s55',
                      f's_cbranch_scc0 {l}_GO', f's_sleep {SLEEP}', 's_cmp_lt_u32 s91, 0x40000', f's_cbranch_scc1 {l}']:
                i = I(t); i.roles = (); x.append(i)
            x.e(f'{l}_GO:')
        x.e('s_lshl_b32 s55, s55, 12')
        if U % 2: x.e('s_add_u32 s55, s55, 2048')
        for g in range(3):
            x.e(f's_mov_b32 m0, {(U % NO_) * OS_ + g * 4096}')
            x.e(f's_add_u32 s56, s55, {g * 262144}')
            for m in range(4):
                x.e(f'buffer_load_dwordx4 v{VL16 if m < 2 else VL+4}, {srd(S_OI)}, s56 offen offset:{m*1024} lds', ('o2', U))
    def vwait(x, *tags):
        n = [ctx.count_after('vm', t) for t in tags]
        n = [k for k in n if k is not None]
        if n: x.e(f's_waitcnt vmcnt({min(min(n), 47)})')
    snap = ctx.snap()
    lw = Block(ctx, 'lw'); ctx.active = list(LW)
    lw.e('OP_LW:')
    wo_full(lw, 0); wo_full(lw, 1)
    lw.e('s_waitcnt vmcnt(0)'); lw.e('s_barrier')
    for U in (2, 3, 4): wo_full(lw, U)
    lw.e('s_waitcnt vmcnt(47)'); wo_full(lw, 5)
    vwait(lw, ('w', 2))
    lw.e('s_barrier')
    wo_full(lw, 6)
    lw.e('s_waitcnt vmcnt(47)'); wo_full(lw, 7)
    for U in range(2, 16):
        if U < 15: vwait(lw, ('w', U + 1))
        lw.e('s_barrier')
        if U + NW_ < 16:
            if len(ctx.c[6].vm) > 47: lw.e('s_waitcnt vmcnt(47)')
            wo_full(lw, U + NW_)
    lw.e('s_barrier')
    lw.e('s_branch OP_DONE')
    lo = Block(ctx, 'lo'); ctx.active = list(LO)
    lo.e('OP_LO:')
    lo.e('s_mov_b32 s3, 0xff')
    wo_half(lo, 0); wo_half(lo, 1)
    lo.e('s_waitcnt vmcnt(0)'); lo.e('s_barrier')
    wo_half(lo, 2); wo_half(lo, 3)
    stamp(lo, 3, True)
    o_unit(lo, 2)
    wo_half(lo, 4); wo_half(lo, 5)
    vwait(lo, ('o2', 2)); lo.e('s_barrier')
    o_unit(lo, 3); o_unit(lo, 4); wo_half(lo, 6); wo_half(lo, 7)
    for U in range(2, 16):
        if U < 15: vwait(lo, ('o2', U + 1), ('w', U + 1))
        lo.e('s_barrier')
        if U + NO_ < 16: o_unit(lo, U + NO_)
        if U + NW_ < 16: wo_half(lo, U + NW_)
    lo.e('s_barrier')
    lo.e('s_branch OP_DONE')

    OWN = 0
    def compute(name, waves, NT):
        ctx.restore(snap); ctx.active = list(waves)
        c = Block(ctx, name); lp = Block(ctx, name + 'l'); e = Block(ctx, name + 'e')
        c.e(f'{name}:')
        SZ = 4 * (NT + 3)
        def fA(U, k, n): return FB + 2 * SZ * (U % 2) + SZ * k + 4 * n
        def fB(U, k, j): return FB + 2 * SZ * (U % 2) + SZ * k + 4 * NT + 4 * j
        def rd(U):
            r = []
            for k in range(2):
                r += [E(f'ds_read_b128 {q4(fB(U,k,j))}, v{VB} offset:{(2*j+k)*1024}', ('f', U)) for j in range(3)]
                for n in range(NT):
                    r += [E(f'ds_read_b64_tr_b16 {q2(fA(U,k,n)+2*u)}, v{VAP+n} offset:{k*2048 + u*1024}', ('f', U)) for u in range(2)]
            return r
        def adv(b):
            b.e(f's_cmp_ge_u32 s46, {(NW_-1)*WS_}'); b.e(f's_cselect_b32 s52, s54, s53'); b.e('s_add_u32 s46, s46, s52')
            for n in range(NT): b.e(f'v_add_u32 v{VAP+n}, s52, v{VAP+n}')
            b.e(f's_cmp_ge_u32 s45, {(NO_-1)*OS_}'); b.e(f's_cselect_b32 s52, s101, s100'); b.e('s_add_u32 s45, s45, s52')
            b.e(f'v_add_u32 v{VB}, s52, v{VB}')
        def mmu(U, first=False):
            return [E(f'{MF} {q4(12*n+4*j)}, {q4(fA(U,k,n))}, {q4(fB(U,k,j))}, {"0" if first and k == 0 else q4(12*n+4*j)}')
                    for k in range(2) for n in range(NT) for j in range(3)]
        c.e('s_mov_b32 s46, 0'); c.e(f's_mov_b32 s53, {WS_}'); c.e(f's_mov_b32 s54, {(-(NW_-1)*WS_) & 0xffffffff}')
        c.e('s_mov_b32 s45, 0'); c.e(f's_mov_b32 s100, {OS_}'); c.e(f's_mov_b32 s101, {(-(NO_-1)*OS_) & 0xffffffff}')
        c.e('s_mov_b32 s44, 0')
        if OWARM:
            c.e(f'v_lshrrev_b32 v{GS}, 5, v{VT+3}'); c.e(f'v_lshlrev_b32 v{GS}, 17, v{GS}')
            c.e(f'v_and_b32 v{GS+1}, 31, v{VT+3}'); c.e(f'v_lshl_add_u32 v{GS}, v{GS+1}, 7, v{GS}')
            c.e('s_lshl_b32 s55, s42, 18'); c.e('s_lshl_b32 s61, s41, 12'); c.e('s_add_u32 s55, s55, s61')
            if OWARM == 2: c.e(f'buffer_load_dword v{XF+3}, v{GS}, {srd(S_O)}, s55 offen', ('ow',))
        if FL == 1 and NT == 2:
            c.e('s_nop 15'); c.e('s_nop 15'); c.e('s_nop 15'); c.e('s_nop 15'); c.e('s_nop 15'); c.e('s_nop 15')
            c.e(f'buffer_store_dword v{VT+1}, v{VT}, {srd(S_F)}, s90 offen sc1', ('f1',))
        c.e('s_barrier')
        stamp(c, 6)
        if FL == 2 and NT == 2: c.e(f'buffer_store_dword v{VT+1}, v{VT}, {srd(S_F)}, s90 offen sc1', ('f1',))
        if OWARM == 1: c.e(f'buffer_load_dword v{XF+3}, v{GS}, {srd(S_O)}, s55 offen', ('ow',))
        c.e(f's_add_u32 s{S_OUT}, s14, s6'); c.e(f's_addc_u32 s{S_OUT+1}, s15, 0')
        c.e(f's_sub_u32 s{S_OUT+2}, 1769472, s6'); c.e(f's_mov_b32 s{S_OUT+3}, 0x20000')
        run(c, rd(0)); adv(c)
        c.e('s_waitcnt lgkmcnt(0)')
        run(c, interleave(mmu(0, True), rd(1) + [adv], end=6 * NT - 2))
        c.e('s_waitcnt lgkmcnt(0)')
        run(c, mmu(1))
        c.e('s_barrier')
        stamp(c, 1, True)
        run(c, rd(0)); adv(c)
        def unit(x, U, extra=(), last=False):
            x.e('s_waitcnt lgkmcnt(0)')
            x.e('s_barrier')
            run(x, interleave(mmu(U), ([] if last else rd(U + 1) + [adv]) + list(extra), end=6 * NT - 2))
        lp.e(f'{name}_LOOP:')
        unit(lp, 0); unit(lp, 1)
        lp.e('s_add_u32 s44, s44, 1'); lp.e('s_cmp_lt_u32 s44, 6'); lp.e(f's_cbranch_scc1 {name}_LOOP')
        fin = []
        def P(*lines): fin.extend(E(l) for l in lines)
        X = GS
        P('s_mov_b32 s7, 288', 's_lshl_b32 s6, s42, 6', f'v_add_u32 v{X}, s6, v{VT+3}')
        P(f'v_cmp_gt_u32 s[8:9], s7, v{X}', f'v_subrev_u32 v{X+1}, 32, v{X}', f'v_mov_b32 v{X+7}, 0x40000000')
        P(f'v_cndmask_b32 v{X}, v{X+1}, v{X}, s[8:9]', f'v_lshrrev_b32 v{X+1}, 4, v{X}')
        P(f'v_and_b32 v{X+2}, 15, v{X}', f'v_lshlrev_b32 v{X+2}, 4, v{X+2}', f'v_lshl_add_u32 v{XF}, v{X+1}, 9, v{X+2}')
        P(f'v_mul_u32_u24 v{X+4}, 57, v{X+1}', f'v_lshrrev_b32 v{X+4}, 9, v{X+4}')
        P(f'v_mul_u32_u24 v{X+5}, 18, v{X+4}', f'v_add_u32 v{X+5}, v{X+5}, v{X+1}')
        P(f'v_lshl_add_u32 v{XF+1}, v{X+5}, 8, v{X+2}')
        P(f'v_mul_u32_u24 v{X+6}, 9, v{X+4}', f'v_sub_u32 v{X+1}, v{X+1}, v{X+6}')
        P(f'v_mul_u32_u24 v{X+4}, 48, v{X+4}', f'v_and_b32 v{X+6}, 3, v{X}', f'v_add_u32 v{X+4}, v{X+4}, v{X+6}')
        P(f'v_mul_u32_u24 v{X+4}, 1152, v{X+4}', f'v_lshl_add_u32 v{X+4}, v{X+1}, 5, v{X+4}')
        P(f'v_bfe_u32 v{X+6}, v{X}, 2, 2', f'v_lshl_add_u32 v{X+4}, v{X+6}, 3, v{X+4}')
        P(f'v_cndmask_b32 v{XF+2}, v{X+7}, v{X+4}, s[8:9]')
        for i in range(3): P(f's_add_u32 s{56+i}, s47, {i+1}', f's_and_b32 s{56+i}, s{56+i}, 3', f's_mul_i32 s{56+i}, s{56+i}, {INB}')
        P('s_mov_b32 s10, 18432', 's_mov_b32 s11, 36864', 's_mov_b32 s59, 0xffff0000')
        fin2 = []
        fin2.append(lambda b: [b.e(l) for l in (f'v_bfe_u32 v{VE+2}, v{VT+3}, 2, 2', f'v_cmp_eq_u32 vcc, s47, v{VE+2}', f'v_mov_b32 v{VE+2}, 0x40000000',
                    f'v_and_b32 v{VE}, 0xff, v{VT+2}', f'v_cndmask_b32 v{VT+2}, v{VT+2}, v{VE+2}, vcc', f'v_lshlrev_b32 v{VE+1}, 2, v{VT+3}',
                    f'v_add_u32 v{VE+1}, {OWN+16384}, v{VE+1}', f'v_add_u32 v{VE}, s5, v{VE}',
                    f'v_and_b32 v{VE+1}, 0xfffffff0, v{VE+1}', f'v_cndmask_b32 v{VE}, v{VE+1}, v{VE}, vcc')])
        fin2 += [E(f'v_mov_b32 v{GS+4*k+3}, s98') for k in range(2 * NT)]
        unit(e, 14, fin)
        e.e('s_waitcnt lgkmcnt(0)')
        e.e('s_barrier')
        m = mmu(15)
        def send(n):
            r = [E(f'v_cvt_pk_bf16_f32 v{GS + 8*n + 4*(x//3) + x%3}, v{12*n+2*x}, v{12*n+2*x+1}') for x in range(6)]
            r += [E(f'buffer_store_dwordx4 {q4(GS+8*n+4*hf)}, v{VT+2}, {srd(S_P)}, s4 offen offset:{n*512 + hf*256} sc1', ('p',)) for hf in range(2)]
            r += [E(f'ds_write_b128 v{VE}, {q4(12*n+4*j)} offset:{j*2304 + n*256}', ('own',)) for j in range(3)]
            return r
        for n in range(NT):
            grp = m[3 * n:3 * n + 3] + m[3 * NT + 3 * n:3 * NT + 3 * n + 3]
            run(e, interleave(grp, fin2 if n == 0 else (send(n - 2) if n >= 2 else [])))
        stamp(e, 7)
        if NT == 2: e.e('s_nop 1')
        run(e, send(NT - 2)); run(e, send(NT - 1))
        if name != 'OP_BIG': e.e('s_branch OP_FIN')
        return c, lp, e
    sm = compute('OP_SML', SML, 2)
    bg = compute('OP_BIG', BIG, 5)
    ctx.active = list(BIG + SML)
    e = Block(ctx, 'op_end')
    e.e('OP_FIN:')
    e.e('s_waitcnt lgkmcnt(0)')
    e.e('s_barrier')
    stamp(e, 8)
    e.e('s_cmp_ge_u32 s42, 5')
    e.e('s_cbranch_scc1 OP_DONE')
    R0 = 168; OW = 64; X = 128
    for j in range(3): e.e(f'ds_read_b128 {q4(OW+4*j)}, v{XF+1} offset:{j*2304}', ('ow',))
    loads = '\n'.join(f'buffer_load_dwordx4 {q4(R0+8*src+4*hf)}, v{XF}, {srd(S_PI)}, s{56+src} offen offset:{hf*256} sc1' for src in range(3) for hf in range(2))
    chk = [f'v_xor_b32 v{X+6}, s98, v{R0+3}']
    for k in range(1, 6):
        chk += [f'v_xor_b32 v{X+7}, s98, v{R0+4*k+3}', f'v_or_b32 v{X+6}, v{X+6}, v{X+7}']
    chk.append(f'v_cmp_ne_u32 vcc, 0, v{X+6}')
    poll(e, 'OP_P2', loads, '\n'.join(chk))
    stamp(e, 9)
    e.e(f'buffer_store_dword v{VT+1}, v{VT}, {srd(S_F)}, s96 offen sc1', ('ep',))
    e.e('s_waitcnt lgkmcnt(0)')
    so = ['0', 's10', 's11']
    for j in range(3):
        for p in range(2):
            x = 2 * j + p
            for src in range(3):
                r = R0 + 8 * src + 4 * (x // 3) + x % 3
                e.e(f'v_lshlrev_b32 v{X+6}, 16, v{r}'); e.e(f'v_and_b32 v{X+7}, s59, v{r}')
                e.e(f'v_add_f32 v{OW+2*x}, v{OW+2*x}, v{X+6}'); e.e(f'v_add_f32 v{OW+2*x+1}, v{OW+2*x+1}, v{X+7}')
            e.e(f'v_cvt_pk_bf16_f32 v{OW+16+x}, v{OW+2*x}, v{OW+2*x+1}')
        e.e(f'buffer_store_dwordx2 {q2(OW+16+2*j)}, v{XF+2}, {srd(S_OUT)}, {so[j]} offen {OPT.get("outpol", "")}')
    ctx.active = ALLW
    e.e('OP_DONE:')
    if STAMP:
        if not OPT.get('rt4'): stamp(e, 10)
        dump_stamps(e)
    e.e('K1_END:')
    e.e('s_endpgm')
    traces = {}
    for w in SML: traces[w] = [b, sm[0], sm[1], sm[1], sm[2], e]
    for w in BIG: traces[w] = [b, bg[0], bg[1], bg[1], bg[2], e]
    traces[6] = [b, lw]; traces[7] = [b, lo]
    TXN = OPT.get('tx', '')
    if TXN:
        def after_c(blk):
            n = 0; out = []
            for i in blk:
                if i.kind == 'barrier': n += 1
                drop = n >= 2 and getattr(i, 'sub', '') == 'dma' and (TXN == 'none' or (TXN == 'noo' and 's[24:27]' in i.text) or (TXN == 'nowo' and 's[20:23]' in i.text))
                if not drop: out.append(i)
            blk[:] = out
        after_c(lw); after_c(lo); after_c(sm[0])
        if TXN in ('none', 'nowo'):
            for blk in sm[1:]: blk[:] = [i for i in blk if getattr(i, 'sub', '') != 'dma']
    return [b] + list(sm) + list(bg) + [e, lw, lo], traces

def kernel1():
    ctx = MCtx(8)
    pro = k1_prologue(ctx)
    qp = k1_qproj(ctx)
    ap = k1_att_prologue(ctx)
    p1 = pv_phase(ctx, 'P1', SA, SB, head=lambda a: a.e('K1_LOOP:'), dma=guarded(dma_v, 0) if LEAD == 6 else dma_v)
    SK2 = int(OPT.get('sk2', 2))
    p2 = qk_phase(ctx, 'P2', SA, SB, guarded(dma_k, 0) if KVREG else dma_k)
    p3 = pv_phase(ctx, 'P3', SB, SA, dma=guarded(dma_v, SK2) if KVREG == 1 else dma_v)
    p4 = qk_phase(ctx, 'P4', SB, SA, guarded(dma_k, SK2) if KVREG == 1 else dma_k)
    p4[2].e('s_add_u32 s44, s44, 1')
    p4[2].e('s_cmp_lt_u32 s44, 7')
    p4[2].e('s_cbranch_scc1 K1_LOOP')
    def warm(b):
        b.e(f'v_lshrrev_b32 v{KR}, 6, v{VL16}'); b.e(f'v_mul_u32_u24 v{KR}, 1152, v{KR}')
        b.e(f'v_and_b32 v{KR+1}, 48, v{VL16}'); b.e(f'v_lshlrev_b32 v{KR+1}, 3, v{KR+1}'); b.e(f'v_min_u32 v{KR+1}, 316, v{KR+1}')
        b.e(f'v_add_u32 v{KR}, v{KR}, v{KR+1}')
        b.e(f'buffer_load_dword v{SA+23}, v{KR}, s[28:31], 0 offen', ('warm',))
    l1 = pv_phase(ctx, 'L1', SA, SB, nextK=False, dma=warm if WARM in (1, 2) else None, split=LSPLIT)
    l2 = Block(ctx, 'L2')
    l2.e(f's_waitcnt vmcnt({1 if WARM in (1, 2) else 0})')
    l2.e('s_barrier')
    if OPT.get('l2s'): stamp(l2, 2)
    for r in (A, B):
        with role(l2, r):
            for k in range(4): vread_as(l2, order_of(r)[k], k)
    l2.e('s_mul_i32 s43, s42, 12288'); l2.e('s_xor_b32 s46, s42, 4'); l2.e('s_mul_i32 s46, s46, 12288')
    l2.e(f's_add_u32 s43, s43, {EXB}'); l2.e(f's_add_u32 s46, s46, {EXB}')
    l2.e(f'v_add_u32 v{XA}, s43, v{VL16}'); l2.e(f'v_add_u32 v{XA+1}, s46, v{VL16}')
    run(l2, sm_fillers(SB)[LSPLIT:] + chk_fillers())
    l2.e('s_cbranch_vccnz L2_RARE')
    l2r = rare_path(ctx, 'L2', SB, None, 2)
    l3 = last_pv(ctx)
    ep = k1_epilogue(ctx)
    errs = []
    body = [p1, p2[0], p2[2], p3, p4[0], p4[2]]
    bodyr = [p1, p2[0], p2[1], p2[2], p3, p4[0], p4[1], p4[2]]
    last = [l1, l2, l3, ep]
    lastr = [l1, l2, l2r, l3, ep]
    tail, ttr = oproj(ctx)
    for r in ALLW:
        errs += check_trace([pro, qp, ap] + body + body + last + ttr[r], f'main{r}', r)
        errs += check_trace([pro, qp, ap] + bodyr + bodyr + body + lastr, f'rare{r}', r)
    if NOCOMP:
        for blk in body:
            keep = [i for i in blk if i.kind not in ('mfma', 'valu', 'trans') and not (NOCOMP > 1 and i.kind == 'ds') and 'vccnz' not in i.text]
            blk[:] = keep
        errs = []
    DROP = OPT.get('drop', '')
    if DROP:
        D = DROP.split(',')
        def dropit(i):
            t = i.text
            if 'vccnz' in t: return True
            if 'exp' in D and t.startswith('v_exp'): return True
            if 'add' in D and t.startswith('v_add_f32'): return True
            if 'cvt' in D and t.startswith('v_cvt'): return True
            if 'ds' in D and i.kind == 'ds': return True
            if 'wait' in D and i.kind == 'wait': return True
            if 'bar' in D and i.kind == 'barrier': return True
            if 'adv' in D and (t.startswith('v_add_u32') or t.startswith('s_cmp_ge') or t.startswith('s_cselect') or t.startswith('s_add_u32 s45') or t.startswith('s_add_u32 s46')): return True
            if 'mfma' in D and i.kind == 'mfma': return True
            return False
        for blk in body: blk[:] = [i for i in blk if not dropit(i)]
        errs = []
    order = [pro, qp, ap] + body + last + tail + [p2[1], p4[1], l2r]
    return order, errs

def kernel2():
    ctx = MCtx(8)
    b = Block(ctx, 'k2')
    b.e('s_cmp_ge_u32 s2, 256')
    b.e('s_cbranch_scc1 K2_END')
    b.e('s_load_dwordx8 s[12:19], s[0:1], 32')
    if STAMP:
        for i in range(6): b.e(f's_memtime s[{64+2*i}:{65+2*i}]')
        b.e('s_memrealtime s[86:87]')
    b.e('v_lshrrev_b32 v1, 6, v0')
    b.e('v_and_b32 v0, 63, v0')
    b.e('v_readfirstlane_b32 s42, v1')
    b.e('s_and_b32 s43, s2, 7'); b.e('s_lshr_b32 s44, s2, 3')
    b.e('s_and_b32 s40, s43, 1'); b.e('s_lshl_b32 s40, s40, 2'); b.e('s_and_b32 s45, s44, 3'); b.e('s_add_u32 s40, s40, s45')
    b.e('s_lshr_b32 s41, s43, 1'); b.e('s_lshl_b32 s41, s41, 3'); b.e('s_lshr_b32 s46, s44, 2'); b.e('s_add_u32 s41, s41, s46')
    b.e(f'v_lshlrev_b32 v{VL16}, 4, v0')
    b.e('s_waitcnt lgkmcnt(0)')
    flag_srd(b)
    epoch_load(b, 222)
    b.e('s_waitcnt vmcnt(0)')
    epoch_tags(b, 222)
    run(b, tail_setup())
    t = oproj(ctx)
    errs = []
    for r in ALLW: errs += check_trace([b, t[0], t[1], t[1], t[2], t[2], t[3]], f'k2_{r}', r)
    return [b] + list(t), errs

HEADER = open('standalone__mha_block_cached__near_ridge.s.ref').read().split('; Override')[0]

DOC = '''; One workgroup per (batch, head), 8 waves, one launch:
;  3. the 8 heads of a group trade o through d_ws; every workgroup multiplies a 96 x 144 output tile over
;     these 8 heads; the 4 head groups trade the partial sums (tagged granules) and each finishes a quarter.
; Hand-off words carry a launch tag derived from an epoch word in d_ws that the launch advances at its end.
'''

def kd(name, vgpr, sgpr=96):
    return f'''.amdhsa_kernel {name}
  .amdhsa_next_free_vgpr {vgpr}
  .amdhsa_next_free_sgpr {sgpr}
  .amdhsa_accum_offset {(vgpr+3)//4*4}
  .amdhsa_group_segment_fixed_size 0
  .amdhsa_kernarg_size 64
  .amdhsa_user_sgpr_count 2
  .amdhsa_user_sgpr_kernarg_segment_ptr 1
  .amdhsa_system_sgpr_workgroup_id_x 1
.end_amdhsa_kernel
'''

def main():
    k1, e1 = kernel1()
    k2, e2 = kernel2() if not FUSED else ([], [])
    for e in list(dict.fromkeys(x.split('] ', 1)[1] for x in e1 + e2))[:12]: print('CHECK', e, file=sys.stderr)
    out = HEADER
    if FUSED:
        N = 'standalone__mha_block_cached__near_ridge_kernel'
        out += f'; @launch grid=(256,1,1) block=(512,1,1) lds={LDS_TOT}\n'
        ks = [(N, k1)]
    else:
        out += f'; @launch kernel=mha_attn_kernel grid=(256,1,1) block=(512,1,1) lds={LDS_TOT}\n'
        out += f'; @launch kernel=mha_oproj_kernel grid=(256,1,1) block=(512,1,1) lds={LDS_TOT}\n'
        ks = [('mha_attn_kernel', k1), ('mha_oproj_kernel', k2)]
    out += DOC + '.amdgcn_target "amdgcn-amd-amdhsa--gfx950"\n.text\n'
    for name, blocks in ks:
        out += f'.globl {name}\n.p2align 8\n.type {name},@function\n{name}:\n'
        out += '\n'.join(b.text() for b in blocks) + '\n'
    out += '.section .rodata,"a"\n'
    for name, _ in ks: out += '.p2align 6\n' + kd(name, 256, 102)
    open(sys.argv[1], 'w').write(out)
    if e1 or e2: sys.exit(1)
main()
```

```python
import sys, struct, math
from asmlib import *

OPT = dict(a.split('=') for a in sys.argv[2:] if '=' in a)
STAMP = int(OPT.get('stamp', 0))
KVPOL = OPT.get('kvpol', 'nt')
XPOL = OPT.get('xpol', '')
WPOL = OPT.get('wpol', '')
OSTPOL = OPT.get('ostpol', 'sc1' if OPT.get('fused', '1') == '1' else '')
OLDPOL = OPT.get('oldpol', '')
WOPOL = OPT.get('wopol', '')
THR = float(OPT.get('thr', 2048.0))
NOBARQK = int(OPT.get('nobarqk', 1))
SKIPT = int(OPT.get('skipt', 0))
STAG = int(OPT.get('stag', 0))
ROT = int(OPT.get('rot', 1))
ROT2 = int(OPT.get('rot2', 1))
SM_SPLIT = int(OPT.get('split', 24))
CHK_AT = int(OPT.get('chk', 8))
PRIO = int(OPT.get('prio', 0))
K2D = int(OPT.get('k2d', 4))
NODMA = int(OPT.get('nodma', 0))
NOCOMP = int(OPT.get('nocomp', 0))
NOKVQ = int(OPT.get('nokvq', 0))
FUSED = int(OPT.get('fused', 1))
OLD2 = OPT.get('old2', 'sc1')
SLEEP = int(OPT.get('sleep', 1))
F1POL = OPT.get('f1pol', 'sc1')
WOPRE = int(OPT.get('wopre', 5))
TOUCH = int(OPT.get('touch', 0))
WOEARLY = int(OPT.get('woearly', 0))
WARM = int(OPT.get('warm', 1))
FAST = int(OPT.get('fast', 0))
PAIRW = int(OPT.get('pairw', 1))
KVREG = int(OPT.get('kvreg', 0))
KV1 = int(OPT.get('kv1', 1))
NC = int(OPT.get('nc', 1))
EARLY = int(OPT.get('early', 0))
ORD = int(OPT.get('ord', 1))
LSPLIT = int(OPT.get('lsplit', 57))
LEAD = int(OPT.get('lead', 6))
OWARM = int(OPT.get('owarm', 0))
KROT = int(OPT.get('krot', 0))
NOX = int(OPT.get('nox', 0))
NOWQ = int(OPT.get('nowq', 0))
MAP = OPT.get('map', '4x8')
KVSCHED = [int(x) for x in OPT.get('kvs', '0,2,3,5,6,8,9,11,12,14').split(',') if x]

def f2u(f): return struct.unpack('<I', struct.pack('<f', f))[0]
SCALE = math.log2(math.e) / math.sqrt(128.0)
MF = 'v_mfma_f32_16x16x32_bf16'
def q4(n): return f'v[{n}:{n+3}]'
def q2(n): return f'v[{n}:{n+1}]'

ACC = 0; QF = 96; SA = 144; SB = 168; KR = 192; VR = 208; NEGM = 224
TMP = 236; VK = 248; VVE = 249; VVO = 250; LS = 251; VL16 = 254; VKV = 255
RING = 10; CH = 16384; LDS_TOT = RING * CH
QB = 114688
SLOT = 40960
S_K, S_V, S_X, S_WQ, S_O = 20, 24, 28, 32, 36
FS = 96
VXD = 208; VWD = 211; VXR = 213; VAE = 215; VAO = 217; VQE = 219; VQO = 220; VQR = 221; VKW = 244
def srd(n): return f's[{n}:{n+3}]'
def acc(t, jt): return ACC + 12 * t + 4 * jt
def qf(s, jt): return QF + 12 * s + 4 * jt
def st(S, kt, jt): return S + 12 * kt + 4 * jt
ALLW = list(range(8))
A, B = (0, 1, 2, 3), (4, 5, 6, 7)

TST = int(OPT.get('tst', 0))
def stamp(b, idx, fine=False, it=False):
    if TST == 2:
        if it or idx in (0, 4): b.e(f's_memtime s[{64+2*idx}:{65+2*idx}]')
        return
    if it: return
    if TST and idx in (1, 2, 3) and not fine: return
    if fine and not TST: return
    if STAMP: b.e(f's_memtime s[{64+2*idx}:{65+2*idx}]')

class role:
    n = 0
    def __init__(self, b, waves): self.b, self.w = b, list(waves)
    def __enter__(self):
        role.n += 1; self.l = f'RL{role.n}'
        self.b.e(f's_bitcmp1_b32 {sum(1 << w for w in self.w)}, s42')
        self.b.e(f's_cbranch_scc0 {self.l}')
        self.b.ctx.active = self.w
    def __exit__(self, *a):
        self.b.ctx.active = ALLW
        self.b.e(f'{self.l}:')

def E(text, tag=None): return lambda b: b.e(text, tag)
def run(b, lst):
    for f in lst: f(b)

def chunk_of(n):
    if n == 0: return ('K', 0)
    if n % 2 == 1: return ('K', (n + 1) // 2)
    return ('V', (n - 2) // 2)

def k1_prologue(ctx):
    b = Block(ctx, 'k1_pro')
    b.e('s_cmp_ge_u32 s2, 256')
    b.e('s_cbranch_scc1 K1_END')
    b.e('s_load_dwordx8 s[4:11], s[0:1], 0')
    b.e('s_load_dwordx8 s[12:19], s[0:1], 32')
    if STAMP:
        b.e('s_memtime s[64:65]')
        b.e('s_memrealtime s[86:87]')
    b.e('v_lshrrev_b32 v1, 6, v0')
    b.e('v_and_b32 v0, 63, v0')
    b.e('v_readfirstlane_b32 s42, v1')
    b.e('s_and_b32 s43, s2, 7')
    b.e('s_lshr_b32 s44, s2, 3')
    nb = int(MAP.split('x')[0]); lb = nb.bit_length() - 1
    nh = 32 // nb; xb = 8 // nb
    b.e(f's_and_b32 s40, s43, {xb - 1}')
    b.e(f's_lshl_b32 s40, s40, {lb}')
    b.e(f's_and_b32 s45, s44, {nb - 1}')
    b.e('s_add_u32 s40, s40, s45')
    b.e(f's_lshr_b32 s41, s43, {xb.bit_length() - 1}')
    b.e(f's_lshl_b32 s41, s41, {nh.bit_length() - 1}')
    b.e(f's_lshr_b32 s46, s44, {lb}')
    b.e('s_add_u32 s41, s41, s46')
    m = max(nb, nh)
    b.e(f's_mul_i32 s45, s45, {32 // nb}')
    b.e(f's_mul_i32 s46, s46, {32 // nh}')
    b.e('s_add_u32 s45, s45, s46')
    b.e('s_and_b32 s45, s45, 31')
    b.e(f's_mul_i32 s45, s45, {9 - NC}')
    b.e('s_lshr_b32 s45, s45, 5')
    b.e(f's_add_u32 s45, s45, {NC}')
    b.e('s_lshl_b32 s100, s45, 7')
    b.e('s_lshl_b32 s101, s45, 19')
    b.e('s_mov_b32 s57, 0' if NC else 's_mov_b32 s57, s100')
    b.e('s_mov_b32 s58, 0' if NC else 's_mov_b32 s58, s101')
    b.e('s_lshl_b32 s45, s40, 5')
    b.e('s_add_u32 s45, s45, s41')
    b.e('s_lshl_b32 s45, s45, 18')
    b.e('s_mul_i32 s46, s40, 221184')
    b.e('s_lshl_b32 s47, s41, 8')
    b.e('s_mul_i32 s48, s40, 1572864')
    b.e('s_and_b32 s53, s42, 3')
    b.e('s_lshr_b32 s54, s42, 2')
    b.e('v_bfe_u32 v4, v0, 2, 3')
    b.e('v_lshrrev_b32 v5, 5, v0')
    b.e('v_and_b32 v3, 3, v0')
    b.e('v_lshrrev_b32 v7, 2, v4')
    b.e('v_lshlrev_b32 v8, 1, v7')
    b.e('v_xor_b32 v6, v3, v8')
    b.e('v_lshlrev_b32 v6, 4, v6')
    b.e('v_lshl_add_u32 v6, v5, 6, v6')
    b.e('s_lshr_b32 s43, s53, 1')
    b.e('s_and_b32 s44, s42, 1')
    b.e('v_and_b32 v9, 3, v4')
    b.e('v_lshl_add_u32 v9, v7, 3, v9')
    b.e('s_lshl_b32 s55, s43, 4')
    b.e('s_lshl_b32 s62, s54, 2')
    b.e('s_add_u32 s55, s55, s62')
    b.e('v_add_u32 v9, s55, v9')
    b.e('v_lshl_add_u32 v9, v9, 13, v6')
    b.e('s_lshl_b32 s55, s44, 7')
    b.e(f'v_add_u32 v{VWD}, s55, v9')
    b.e(f'v_add_u32 v{VWD+1}, {32*8192-1024}, v{VWD}')
    b.e('s_lshl_b32 s60, s42, 11')
    b.e('s_mul_i32 s63, s42, 3')
    for i in range(3):
        b.e(f's_add_u32 s62, s63, {i}')
        b.e('s_and_b32 s56, s62, 1')
        b.e('s_lshl_b32 s56, s56, 3')
        b.e('s_add_u32 s56, s56, 12')
        b.e('s_lshr_b32 s62, s62, 1')
        b.e('s_lshl_b32 s62, s62, 4')
        b.e('v_add_u32 v9, s56, v4')
        b.e('v_and_b32 v9, 15, v9')
        b.e('v_add_u32 v9, s62, v9')
        b.e('v_mul_u32_u24 v9, 1152, v9')
        b.e('v_add_u32 v9, v9, v6')
        if i: b.e(f'v_subrev_u32 v{VXD+i}, {i*1024}, v9')
        else: b.e(f'v_mov_b32 v{VXD}, v9')
    b.e('s_lshl_b32 s59, s63, 10')
    b.e('s_add_u32 s59, s59, 16384')
    b.e('s_waitcnt lgkmcnt(0)')
    b.e(f's_add_u32 s{S_X}, s4, s46');  b.e(f's_addc_u32 s{S_X+1}, s5, 0')
    b.e(f's_mov_b32 s{S_X+2}, 221184'); b.e(f's_mov_b32 s{S_X+3}, 0x20000')
    b.e(f's_add_u32 s{S_WQ}, s10, s47'); b.e(f's_addc_u32 s{S_WQ+1}, s11, 0')
    b.e(f's_sub_u32 s{S_WQ+2}, 4718592, s47'); b.e(f's_mov_b32 s{S_WQ+3}, 0x20000')
    b.e(f's_add_u32 s{S_K}, s6, s45');  b.e(f's_addc_u32 s{S_K+1}, s7, 0')
    b.e(f's_mov_b32 s{S_K+2}, 262144'); b.e(f's_mov_b32 s{S_K+3}, 0x20000')
    b.e(f's_add_u32 s{S_V}, s8, s45');  b.e(f's_addc_u32 s{S_V+1}, s9, 0')
    b.e(f's_mov_b32 s{S_V+2}, 262144'); b.e(f's_mov_b32 s{S_V+3}, 0x20000')
    b.e(f's_add_u32 s{S_O}, s18, s48'); b.e(f's_addc_u32 s{S_O+1}, s19, 0')
    b.e(f's_mov_b32 s{S_O+2}, 1572864'); b.e(f's_mov_b32 s{S_O+3}, 0x20000')
    return b

RC = 1
def slot(n): return ((n + RC) % RING) * CH

def qslot(D): return ((D + 3) % 4) * SLOT

def qnext(b, D):
    if D + 1 == NC:
        b.e('s_mov_b32 s57, s100'); b.e('s_mov_b32 s58, s101')
    else:
        b.e('s_cmp_eq_u32 s61, 1152')
        b.e(f's_cselect_b32 s57, {NC*128}, s61')
        b.e(f's_cselect_b32 s58, {NC*524288}, s58')

def qdma_parts(D):
    P = []
    P.append(lambda b: (b.e(f's_add_u32 m0, s60, {qslot(D)}'), b.e('s_add_u32 s61, s57, 128'),
                        b.e(f'buffer_load_dwordx4 v{VWD}, {srd(S_WQ)}, s58 offen {WPOL} lds', ('q', D))))
    P.append(lambda b: (b.e(f'buffer_load_dwordx4 v{VWD+1}, {srd(S_WQ)}, s58 offen offset:1024 {WPOL} lds', ('q', D)),
                        b.e(f's_add_u32 m0, s59, {qslot(D)}'), b.e('s_add_u32 s58, s58, 524288')))
    for i in range(2): P.append(E(f'buffer_load_dwordx4 v{VXD+i}, {srd(S_X)}, s57 offen offset:{i*1024} {XPOL} lds', ('q', D)))
    P.append(lambda b: (b.e(f'buffer_load_dwordx4 v{VXD+2}, {srd(S_X)}, s57 offen offset:2048 {XPOL} lds', ('q', D)),
                        qnext(b, D)))
    return P

def qdma(b, D):
    b.e(f's_add_u32 m0, s60, {qslot(D)}')
    b.e('s_add_u32 s61, s57, 128')
    for h in range(0 if NOWQ else 2):
        b.e(f'buffer_load_dwordx4 v{VWD+h}, {srd(S_WQ)}, s58 offen offset:{h*1024} {WPOL} lds', ('q', D))
    b.e(f's_add_u32 m0, s59, {qslot(D)}')
    b.e('s_add_u32 s58, s58, 524288')
    for i in range(0 if NOX else 3):
        b.e(f'buffer_load_dwordx4 v{VXD+i}, {srd(S_X)}, s57 offen offset:{i*1024} {XPOL} lds', ('q', D))
    qnext(b, D)

def kvpair_static(b, n):
    c = chunk_of(n)
    S = S_K if c[0] == 'K' else S_V
    b.e(f's_add_u32 m0, s52, {slot(n)}')
    if KROT: b.e(f's_add_u32 s56, s7, {c[1] * CH}'); b.e('s_and_b32 s56, s56, 0x3ffff')
    else: b.e(f's_mov_b32 s56, {c[1] * CH}')
    b.e(f'buffer_load_dwordx4 v{VKV}, {srd(S)}, s56 offen {KVPOL} lds', ('kv', n))
    b.e(f'buffer_load_dwordx4 v{VKV}, {srd(S)}, s56 offen offset:2048 {KVPOL} lds', ('kv', n))

POFF = 0x2000000; FOFF = 0x3000000; INB = 9216
S_F = 92
def flag_srd(b):
    b.e(f's_add_u32 s{S_F}, s18, {FOFF}'); b.e(f's_addc_u32 s{S_F+1}, s19, 0')
    b.e(f's_mov_b32 s{S_F+2}, {32768+1024}'); b.e(f's_mov_b32 s{S_F+3}, 0x20000')
    b.e('s_lshl_b32 s90, s40, 5'); b.e('s_add_u32 s90, s90, s41'); b.e('s_lshl_b32 s90, s90, 7')
    b.e('s_lshl_b32 s96, s40, 7'); b.e('s_add_u32 s96, s96, 32768')

def epoch_load(b, v):
    b.e(f'v_mov_b32 v{v}, 0')
    b.e(f'buffer_load_dword v{v+1}, v{v}, {srd(S_F)}, s96 offen sc1', ('ep',))

def epoch_tags(b, v):
    b.e(f'v_readfirstlane_b32 s97, v{v+1}')
    b.e('s_nop 0')
    b.e('s_mul_i32 s97, s97, 0x9e3779b1')
    b.e('s_add_u32 s97, s97, 0x7f4a7c15')
    b.e('s_xor_b32 s98, s97, 0x80000000')

def one_lane(b, v):
    b.e(f's_lshl_b32 s91, s42, 6')
    b.e(f'v_add_u32 v{v}, s91, v0')
    b.e(f'v_lshlrev_b32 v{v}, 20, v{v}')

def kvreg_of(n): return 48 + 8 * n if n < 6 else 224 + 8 * (n - 6)
def kv_to_regs(b, n):
    c = chunk_of(n)
    S = S_K if c[0] == 'K' else S_V
    r = kvreg_of(n)
    b.e(f's_mov_b32 s56, {c[1] * CH}')
    b.e(f'buffer_load_dwordx4 {q4(r)}, v{VKV}, {srd(S)}, s56 offen {KVPOL}', ('kv', n))
    b.e(f'buffer_load_dwordx4 {q4(r+4)}, v{VKV}, {srd(S)}, s56 offen offset:2048 {KVPOL}', ('kv', n))
def kv_to_lds(n):
    r = kvreg_of(n)
    o = slot(n) % 65536
    v = VKW + slot(n) // 65536
    return [lambda b: (b.wait_vm(('kv', n)), b.e(f'ds_write_b128 v{v}, {q4(r)} offset:{o}', ('kw',))),
            E(f'ds_write_b128 v{v}, {q4(r+4)} offset:{o+2048}', ('kw',))]

def k1_qproj(ctx):
    b = Block(ctx, 'qproj')
    flag_srd(b)
    qdma(b, 0)
    b.e('v_lshl_add_u32 v9, v4, 8, v6')
    b.e('s_lshl_b32 s46, s43, 12')
    b.e('s_lshl_b32 s47, s54, 13')
    b.e('s_add_u32 s46, s46, s47')
    b.e('s_add_u32 s45, s55, s46')
    b.e(f'v_add_u32 v{VKV}, s45, v9')
    b.e('s_lshl_b32 s47, s44, 10')
    b.e('s_add_u32 s52, s46, s47')
    if KROT == 1: b.e('s_lshr_b32 s7, s2, 3')
    elif KROT == 2: b.e('s_mul_i32 s7, s2, 5')
    elif KROT == 3: b.e('s_lshr_b32 s7, s2, 4'); b.e('s_add_u32 s7, s7, s2')
    elif KROT == 4: b.e('s_mov_b32 s7, s41')
    elif KROT == 5: b.e('s_lshl_b32 s7, s40, 2'); b.e('s_add_u32 s7, s7, s41')
    elif KROT == 6: b.e('s_lshl_b32 s7, s40, 1'); b.e('s_xor_b32 s7, s7, s41'); b.e('s_mul_i32 s7, s7, 7')
    elif KROT == 7: b.e('s_lshr_b32 s7, s2, 4'); b.e('s_mul_i32 s7, s7, 3'); b.e('s_mul_i32 s6, s2, 5'); b.e('s_add_u32 s7, s7, s6')
    elif KROT == 8: b.e('s_and_b32 s7, s2, 7'); b.e('s_lshl_b32 s7, s7, 1')
    elif KROT == 9: b.e('s_mul_i32 s7, s40, 2'); b.e('s_lshr_b32 s6, s41, 4'); b.e('s_add_u32 s7, s7, s6')
    if KROT: b.e('s_and_b32 s7, s7, 15'); b.e('s_lshl_b32 s7, s7, 14')
    qdma(b, 1)
    b.e('v_lshrrev_b32 v10, 4, v0')
    b.e('v_and_b32 v6, 15, v0')
    b.e('v_lshrrev_b32 v7, 2, v6')
    b.e('v_and_b32 v8, 1, v10')
    b.e('v_lshl_add_u32 v5, v8, 2, v7')
    b.e('v_lshlrev_b32 v5, 6, v5')
    b.e('v_lshl_add_u32 v5, v8, 5, v5')
    b.e('v_lshl_add_u32 v5, v3, 3, v5')
    b.e('v_lshrrev_b32 v9, 1, v10')
    b.e('v_lshl_add_u32 v5, v9, 12, v5')
    b.e('s_lshl_b32 s45, s54, 11')
    b.e(f'v_add_u32 v{VAE}, s45, v5')
    b.e(f'v_add_u32 v{VAE+1}, {2*SLOT}, v{VAE}')
    b.e(f'v_xor_b32 v{VAO}, 32, v{VAE}')
    b.e(f'v_xor_b32 v{VAO+1}, 32, v{VAE+1}')
    b.e('v_add_u32 v5, 4, v6')
    b.e('v_bfe_u32 v11, v5, 3, 1')
    b.e('v_and_b32 v12, 7, v5')
    b.e('v_lshrrev_b32 v13, 2, v12')
    b.e('v_lshlrev_b32 v13, 1, v13')
    b.e('v_lshlrev_b32 v14, 6, v12')
    b.e('v_xor_b32 v15, v13, v10')
    b.e('v_lshl_add_u32 v15, v15, 4, v14')
    b.e('s_mul_i32 s46, s53, 6144')
    b.e('s_add_u32 s46, s46, 16384')
    b.e('v_lshl_add_u32 v5, v11, 10, v15')
    b.e(f'v_add_u32 v{VXR}, s46, v5')
    b.e(f'v_add_u32 v{VXR+1}, {2*SLOT}, v{VXR}')
    b.e('v_lshl_add_u32 v15, v11, 11, v15')
    b.e('v_lshl_add_u32 v14, v11, 11, v14')
    b.e('s_lshl_b32 s47, s54, 13')
    b.e(f'v_add_u32 v{VK}, s47, v15')
    b.e(f'v_add_u32 v{VK}, {slot(0)}, v{VK}')
    b.e('s_mul_i32 s46, s53, 12288')
    b.e(f's_add_u32 s46, s46, {QB}')
    b.e(f'v_add_u32 v{VQR}, s46, v15')
    b.e('v_xor_b32 v15, v13, v9')
    b.e('v_lshl_add_u32 v15, v15, 4, v14')
    b.e('v_lshl_add_u32 v15, v8, 3, v15')
    b.e('s_lshl_b32 s45, s54, 10')
    b.e('s_add_u32 s46, s46, s45')
    b.e(f'v_add_u32 v{VQE}, s46, v15')
    b.e(f'v_xor_b32 v{VQO}, 32, v{VQE}')
    b.e('v_add_u32 v5, 1, v10')
    b.e('v_bfe_u32 v11, v5, 1, 1')
    b.e('v_and_b32 v12, 1, v5')
    b.e('v_lshl_add_u32 v13, v12, 2, v7')
    b.e('v_lshlrev_b32 v13, 6, v13')
    b.e('v_lshl_add_u32 v13, v12, 5, v13')
    b.e('v_lshl_add_u32 v13, v3, 3, v13')
    b.e('v_lshl_add_u32 v13, v11, 11, v13')
    b.e(f's_add_u32 s47, s47, {slot(2)}')
    b.e(f'v_add_u32 v{VVE}, s47, v13')
    b.e(f'v_xor_b32 v{VVO}, 32, v{VVE}')
    b.e(f'v_lshlrev_b32 v{VL16}, 4, v0')
    b.e(f'v_add_u32 v{VKW}, s52, v{VL16}')
    b.e(f'v_add_u32 v{VKW+1}, 65536, v{VKW}')
    b.e(f'v_add_u32 v{VKW+2}, 131072, v{VKW}')
    b.e(f's_mov_b32 s48, {hex(f2u(SCALE))}')
    b.e(f's_mov_b32 s50, {(2*CH - LDS_TOT) & 0xffffffff}')
    b.e(f's_mov_b32 s51, {2*CH}')
    b.e(f's_mov_b32 s46, {slot(2)}')
    def fA(D, h, tt): return FS + 56 * (D % 2) + 28 * h + 4 * tt
    def fB(D, h, jt): return FS + 56 * (D % 2) + 28 * h + 16 + 4 * jt
    def reads(D):
        sl = ((D + 3) % 4); hi = sl // 2; o = (sl % 2) * SLOT
        r = []
        for h in range(2):
            for jt in range(3):
                r.append(E(f'ds_read_b128 {q4(fB(D,h,jt))}, v{VXR+hi} offset:{o + jt*2048 + h*512}', ('f', D)))
            for tt in range(4):
                for u in range(2):
                    r.append(E(f'ds_read_b64_tr_b16 {q2(fA(D,h,tt)+2*u)}, v{(VAO if tt%2 else VAE)+hi} offset:{o + u*8192 + h*1024 + (tt//2)*512}', ('f', D)))
        return r
    zero = [E(f'v_mov_b32 v{i}, 0') for i in range(48, 96)] + [E(f'v_mov_b32 v{LS+i}, 0') for i in range(3)]
    b.wait_vm(('q', 0))
    b.e('s_barrier')
    stamp(b, 1)
    run(b, reads(0))
    qdma(b, 2)
    issue = {0: [3, 4], 1: [5], 2: [6], 3: [7], 4: [8]}
    kvi = {5: [0], 6: [1, 2], 7: [3], 8: [4]}
    kvr = {}; kvw = {}
    if KVREG == 2:
        kvr = {3: [0], 4: [1], 5: [2]}; kvw = {7: [0, 1, 2]}; kvi = {6: [3], 7: [4], 8: [5]}
    if KVREG == 3:
        kvr = {4: [0], 5: [1]}; kvw = {7: [0, 1]}; kvi = {6: [2, 3], 7: [4], 8: [5]}
    if KVREG == 1:
        kvi = {}
        kvr = {KV1 + i: [i] for i in range(6)} if KV1 + 5 <= 6 else {2: [0], 3: [1], 4: [2], 5: [3], 6: [4, 5]}
        kvr[7] = [6]; kvr[8] = [7]
        kvw = {6: [0, 1, 2, 3], 7: [4, 5]}
    for D in range(9):
        b.e('s_waitcnt lgkmcnt(0)')
        if D + 1 < 9: b.wait_vm(('q', D + 1))
        b.e('s_barrier')
        dm = [(lambda b, x=x: qdma(b, x)) for x in issue.get(D, [])] + [(lambda b, x=x: kvpair_static(b, x)) for x in kvi.get(D, [])]
        if D == 5: dm.insert(0, lambda b: epoch_load(b, 222))
        dm += [(lambda b, x=x: kv_to_regs(b, x)) for x in kvr.get(D, [])]
        wr = sum((kv_to_lds(x) for x in kvw.get(D, [])), [])
        if KVREG >= 2: zs = zero[24 + 5 * D:29 + 5 * D] if D < 6 else {7: zero[:24]}.get(D, [])
        elif KVREG: zs = {7: zero[:32] + zero[48:], 8: zero[32:48]}.get(D, [])
        else: zs = zero[7 * D:7 * D + 7]
        mf = []
        if D < 8:
            for h in range(2):
                for tt in range(4):
                    for jt in range(3):
                        d = q4(acc(tt, jt))
                        mf.append(E(f'{MF} {d}, {q4(fA(D,h,tt))}, {q4(fB(D,h,jt))}, {"0" if D == 0 and h == 0 else d}'))
            rd = reads(D + 1)
            fill = []
            QS = int(OPT.get('qs', 1))
            if QS:
                dm = sum((qdma_parts(x) for x in issue.get(D, [])), []) + dm[len(issue.get(D, [])):]
                step = max(1, len(rd) // max(1, len(dm)))
                lastkv = [dm.pop()] if (KVREG >= 2 and D in (3, 4) and D in kvr) else []
                step = max(1, (len(rd) - 6 * len(lastkv)) // max(1, len(dm)))
                for k, x in enumerate(rd):
                    fill.append(x)
                    if dm and k % step == step - 1: fill.append(dm.pop(0))
                fill += dm + lastkv; dm = []
            for k, x in enumerate(rd if not QS else []):
                fill.append(x)
                if dm and k % 6 == 1: fill.append(dm.pop(0))
            assert not dm
            run(b, interleave(mf, wr + fill + zs, end=int(OPT.get('qe', 21)) + (2 if len(zs) > 8 else 0)))
        else:
            tiles = [(tt, jt) for tt in range(4) for jt in range(3)]
            def conv(tt, jt):
                a = acc(tt, jt)
                return [E(f'v_mul_f32 v{a+i}, s48, v{a+i}') for i in range(4)] + [
                    E(f'v_cvt_pk_bf16_f32 v{a}, v{a}, v{a+1}'), E(f'v_cvt_pk_bf16_f32 v{a+1}, v{a+2}, v{a+3}'),
                    E(f'ds_write_b64 v{VQO if tt%2 else VQE}, {q2(a)} offset:{jt*4096 + (tt//2)*512}', ('qw',))]
            LAG = 3
            run(b, dm)
            run(b, zs)
            for k, (tt, jt) in enumerate(tiles):
                d = q4(acc(tt, jt))
                cv = conv(*tiles[k - LAG]) if k >= LAG else []
                if k == LAG: b.e('s_nop 2')
                b.e(f'{MF} {d}, {q4(fA(D,0,tt))}, {q4(fB(D,0,jt))}, {d}')
                run(b, cv[:3])
                b.e(f'{MF} {d}, {q4(fA(D,1,tt))}, {q4(fB(D,1,jt))}, {d}')
                run(b, cv[3:])
            stamp(b, 2)
            for k in range(12 - LAG, 12):
                if k == 11: b.e('s_nop 0')
                run(b, conv(*tiles[k]))
    b.e('s_waitcnt lgkmcnt(0)')
    b.wait_vm(('kv', 1))
    b.wait_vm(('ep',))
    epoch_tags(b, 222)
    b.e('s_barrier')
    if not KVREG: kvpair_static(b, 5)
    for s in range(4):
        for jt in range(3):
            b.e(f'ds_read_b128 {q4(qf(s,jt))}, v{VQR} offset:{jt*4096 + (s//2)*1024 + (s%2)*512}', ('qr', s))
    return b

def kread(b, f):
    kt, s = f // 4, f % 4
    b.e(f'ds_read_b128 {q4(KR+4*(f%4))}, v{VK} offset:{kt*4096 + (s//2)*1024 + (s%2)*512}', ('k', f))
def vread(b, t):
    tau = t // 2
    a = VVO if t % 2 else VVE
    for u in range(2):
        b.e(f'ds_read_b64_tr_b16 {q2(VR+4*(t%4)+2*u)}, v{a} offset:{u*4096 + (tau//2)*1024 + (tau%2)*512}', ('v', t))
def kadv(b, first=False):
    if first:
        b.e(f'v_add_u32 v{VK}, {CH}, v{VK}')
        b.e(f's_mov_b32 s45, {slot(1)}')
        return
    b.e(f's_cmp_ge_u32 s45, {LDS_TOT - 2*CH}')
    b.e(f's_cselect_b32 s47, s50, s51')
    b.e(f's_add_u32 s45, s45, s47')
    b.e(f'v_add_u32 v{VK}, s47, v{VK}')
def vadv(b):
    b.e(f's_cmp_ge_u32 s46, {LDS_TOT - 2*CH}')
    b.e(f's_cselect_b32 s47, s50, s51')
    b.e(f's_add_u32 s46, s46, s47')
    b.e(f'v_add_u32 v{VVE}, s47, v{VVE}')
    b.e(f'v_add_u32 v{VVO}, s47, v{VVO}')


def dma_k(b):
    b.e('s_mov_b32 m0, s57')
    b.e(f's_cmp_ge_u32 s57, s61')
    b.e('s_cselect_b32 s62, s50, s51')
    so = 's59'
    if KROT:
        b.e('s_add_u32 s56, s7, s59'); b.e('s_and_b32 s56, s56, 0x3ffff')
        b.e('s_cmp_lt_u32 s59, 0x40000'); b.e('s_cselect_b32 s56, s56, s59'); so = 's56'
    b.e(f'buffer_load_dwordx4 v{VKV}, {srd(S_K)}, {so} offen {KVPOL} lds', ('kd',))
    b.e(f'buffer_load_dwordx4 v{VKV}, {srd(S_K)}, {so} offen offset:2048 {KVPOL} lds', ('kd',))
    b.e('s_add_u32 s57, s57, s62')
    b.e(f's_add_u32 s59, s59, {CH}')
def dma_v(b):
    b.e('s_mov_b32 m0, s58')
    b.e(f's_cmp_ge_u32 s58, s61')
    b.e('s_cselect_b32 s62, s50, s51')
    so = 's60'
    if KROT:
        b.e('s_add_u32 s56, s7, s60'); b.e('s_and_b32 s56, s56, 0x3ffff')
        b.e('s_cmp_lt_u32 s60, 0x40000'); b.e('s_cselect_b32 s56, s56, s60'); so = 's56'
    b.e(f'buffer_load_dwordx4 v{VKV}, {srd(S_V)}, {so} offen {KVPOL} lds', ('vd',))
    b.e(f'buffer_load_dwordx4 v{VKV}, {srd(S_V)}, {so} offen offset:2048 {KVPOL} lds', ('vd',))
    b.e('s_add_u32 s58, s58, s62')
    b.e(f's_add_u32 s60, s60, {CH}')

PS = TMP + 8

def guarded(fn, T):
    def g(b):
        if T is None: return fn(b)
        role.n += 1; l = f'SK{role.n}'
        b.e(f's_cmp_eq_u32 s44, {T}')
        b.e(f's_cbranch_scc1 {l}')
        fn(b)
        b.e(f'{l}:')
    return g

def qk_backbone(S, cinit, nextV=True, first=False, qwait=False, dma=None):
    bb = []
    for f in range(8):
        kt, s = f // 4, f % 4
        for jt in range(3):
            def slot(b, f=f, kt=kt, s=s, jt=jt):
                if jt == 0:
                    if qwait and f < 4: b.wait_lgkm(('qr', s))
                    if not PAIRW: b.wait_lgkm(('k', f))
                    elif PAIRW == 2 and f == 0: b.wait_lgkm(('k', 3))
                    elif f % 2 == 0: b.wait_lgkm(('k', f + 1)); b.wait_lgkm(('k', f))
                d = q4(st(S, kt, jt))
                c = d if s else (q4(NEGM + 4 * jt) if cinit == 'negm' else '0')
                b.e(f'{MF} {d}, {q4(KR+4*(f%4))}, {q4(qf(s,jt))}, {c}')
                if jt == 2:
                    if f < 4: kread(b, f + 4)
                    if f == 3: kadv(b, first)
                    if f >= 4:
                        if nextV == 'K': kread(b, f - 4)
                        elif nextV: vread(b, f - 4)
                if dma and not NODMA and f == 0 and jt == 1: dma(b)
            bb.append(slot)
    return bb

def pv_backbone(P, nextK=True, dma=None, adv=True):
    bb = []
    for t in range(8):
        for jt in range(3):
            def slot(b, t=t, jt=jt):
                if jt == 0:
                    if not PAIRW: b.wait_lgkm(('v', t))
                    elif PAIRW == 2 and t == 0: b.wait_lgkm(('v', 3))
                    elif t % 2 == 0: b.wait_lgkm(('v', t + 1)); b.wait_lgkm(('v', t))
                d = q4(acc(t, jt))
                b.e(f'{MF} {d}, {q4(VR+4*(t%4))}, {q4(st(P,0,jt))}, {d}')
                if jt == 2:
                    if t < 4: vread(b, t + 4)
                    if t == 3 and adv: vadv(b)
                    if t >= 4 and nextK: kread(b, t - 4)
                if dma and not NODMA and t == 0 and jt == 1: dma(b)
            bb.append(slot)
    return bb

def sregs(S, jt): return [st(S, 0, jt) + i for i in range(4)] + [st(S, 1, jt) + i for i in range(4)]

def sm_fillers(S):
    fl = []
    for kt in range(2):
        for jt in range(3):
            r = sregs(S, jt)
            o = 4 * kt
            fl.append(E(f'v_exp_f32 v{r[o]}, v{r[o]}'))
            fl.append(E(f'v_exp_f32 v{r[o+1]}, v{r[o+1]}'))
            if kt: fl.append(E(f'v_add_f32 v{PS+jt}, v{PS+jt}, v{r[o]}'))
            fl.append(E(f'v_exp_f32 v{r[o+2]}, v{r[o+2]}'))
            if kt: fl.append(E(f'v_add_f32 v{PS+jt}, v{PS+jt}, v{r[o+1]}'))
            else: fl.append(E(f'v_add_f32 v{PS+jt}, v{r[0]}, v{r[1]}'))
            fl.append(E(f'v_exp_f32 v{r[o+3]}, v{r[o+3]}'))
            fl.append(E(f'v_add_f32 v{PS+jt}, v{PS+jt}, v{r[o+2]}'))
            fl.append(E(f'v_cvt_pk_bf16_f32 v{r[2*kt]}, v{r[o]}, v{r[o+1]}'))
            fl.append(E(f'v_add_f32 v{PS+jt}, v{PS+jt}, v{r[o+3]}'))
            fl.append(E(f'v_cvt_pk_bf16_f32 v{r[2*kt+1]}, v{r[o+2]}, v{r[o+3]}'))
    return fl

def chk_fillers():
    return [E(f'v_max3_f32 v{TMP}, v{PS}, v{PS+1}, v{PS+2}'), E(f'v_cmp_nle_f32 vcc, v{TMP}, v{TMP+11}')]
def ladd_fillers():
    return [E(f'v_add_f32 v{LS+jt}, v{LS+jt}, v{PS+jt}') for jt in range(3)]

def xreduce3(regs, tmps, op):
    fl = []
    for sw in ('v_permlane32_swap_b32', 'v_permlane16_swap_b32'):
        for r, t in zip(regs, tmps): fl.append(E(f'v_mov_b32 v{t}, v{r}'))
        for r, t in zip(regs, tmps): fl.append(E(f'{sw} v{r}, v{t}'))
        for r, t in zip(regs, tmps): fl.append(E(f'{op} v{r}, v{r}, v{t}'))
    return fl

MX = [TMP + 1, TMP + 2, TMP + 3]; MT = [TMP + 4, TMP + 5, TMP + 6]
def rowmax3(S):
    fl = []
    R = [sregs(S, jt) for jt in range(3)]
    for jt in range(3): fl.append(E(f'v_max3_f32 v{MX[jt]}, v{R[jt][0]}, v{R[jt][1]}, v{R[jt][2]}'))
    for jt in range(3): fl.append(E(f'v_max3_f32 v{MX[jt]}, v{MX[jt]}, v{R[jt][3]}, v{R[jt][4]}'))
    for jt in range(3): fl.append(E(f'v_max3_f32 v{MX[jt]}, v{MX[jt]}, v{R[jt][5]}, v{R[jt][6]}'))
    for jt in range(3): fl.append(E(f'v_max_f32 v{MX[jt]}, v{MX[jt]}, v{R[jt][7]}'))
    return fl + xreduce3(MX, MT, 'v_max_f32')

def rare_path(ctx, name, Y, X, back):
    snap = ctx.snap()
    r = Block(ctx, name + 'r')
    r.e(f'{name}_RARE:')
    r.e(f's_cmp_ge_u32 s45, {back*CH}')
    r.e(f's_cselect_b32 s47, 0, {LDS_TOT}')
    r.e(f's_sub_u32 s47, s47, {back*CH}')
    r.e(f'v_add_u32 v{TMP+7}, s47, v{VK}')
    for kt in range(2):
        for s in range(4):
            r.e(f'ds_read_b128 {q4(KR+4*s)}, v{TMP+7} offset:{kt*4096 + (s//2)*1024 + (s%2)*512}', ('rk',))
        r.e('s_waitcnt lgkmcnt(0)')
        for s in range(4):
            for jt in range(3):
                d = q4(st(Y, kt, jt))
                r.e(f'{MF} {d}, {q4(KR+4*s)}, {q4(qf(s,jt))}, {d if s else q4(NEGM+4*jt)}')
    r.e('s_nop 7')
    run(r, rowmax3(Y))
    for jt in range(3): r.e(f'v_max_f32 v{MX[jt]}, 0, v{MX[jt]}')
    for jt in range(3): r.e(f'v_exp_f32 v{MT[jt]}, -v{MX[jt]}')
    for jt in range(3):
        for q in sregs(Y, jt) + (sregs(X, jt) if X else []) + [NEGM + 4 * jt + i for i in range(4)]:
            r.e(f'v_sub_f32 v{q}, v{q}, v{MX[jt]}')
        r.e(f'v_mul_f32 v{LS+jt}, v{LS+jt}, v{MT[jt]}')
        for t in range(8):
            for i in range(4): r.e(f'v_mul_f32 v{acc(t,jt)+i}, v{acc(t,jt)+i}, v{MT[jt]}')
    run(r, sm_fillers(Y))
    r.e('s_nop 1')
    r.e(f's_branch {name}_JOIN')
    ctx.restore(snap)
    return r

def k1_att_prologue(ctx):
    b = Block(ctx, 'att_pro')
    for f in range(4): kread(b, f)
    nk, nv = {0: (7, 8), 1: (11, 10), 2: (9, 8), 3: (9, 8)}[KVREG]
    if LEAD == 8: nk, nv = 9, 8
    b.e(f's_add_u32 s57, s52, {slot(nk)}')
    b.e(f's_add_u32 s58, s52, {slot(nv)}')
    b.e(f's_mov_b32 s59, {chunk_of(nk)[1]*CH}')
    b.e(f's_mov_b32 s60, {chunk_of(nv)[1]*CH}')
    b.e(f's_add_u32 s61, s52, {LDS_TOT - 2*CH}')
    b.e(f'v_mov_b32 v{TMP+11}, {hex(f2u(THR))}')
    if FUSED and WARM:
        b.e('s_lshr_b32 s55, s41, 3'); b.e('s_mul_i32 s55, s55, 1179648')
        b.e('s_and_b32 s56, s41, 3'); b.e('s_mul_i32 s62, s56, 288'); b.e('s_add_u32 s55, s55, s62')
        b.e('s_and_b32 s62, s41, 1'); b.e('s_lshl_b32 s62, s62, 5'); b.e('s_sub_u32 s55, s55, s62')
        b.e('s_lshl_b32 s56, s56, 1'); b.e('s_and_b32 s62, s41, 4'); b.e('s_add_u32 s56, s56, s62')
        b.e('s_and_b32 s62, s40, 3'); b.e('s_add_u32 s56, s56, s62'); b.e('s_and_b32 s56, s56, 7')
        b.e('s_mul_i32 s56, s56, 147456'); b.e('s_add_u32 s55, s55, s56')
        b.e('s_mul_i32 s56, s42, 18432'); b.e('s_add_u32 s55, s55, s56')
        b.e('s_add_u32 s28, s12, s55'); b.e('s_addc_u32 s29, s13, 0')
        b.e('s_sub_u32 s30, 4718592, s55'); b.e('s_mov_b32 s31, 0x20000')
    zero = [E(f'v_mov_b32 v{ACC+i}, 0') for i in range(48)]
    run(b, interleave(qk_backbone(SA, '0', nextV='K', first=True, qwait=True), zero))
    b.wait_vm(('kv', 2))
    b.e('s_barrier')
    if WARM >= 2:
        b.e(f'v_lshrrev_b32 v{TMP+7}, 6, v{VL16}'); b.e(f'v_mul_u32_u24 v{TMP+7}, 1152, v{TMP+7}')
        b.e(f'v_and_b32 v{TMP}, 48, v{VL16}'); b.e(f'v_lshlrev_b32 v{TMP}, 3, v{TMP}'); b.e(f'v_min_u32 v{TMP}, 316, v{TMP}')
        b.e(f'v_add_u32 v{TMP+7}, v{TMP+7}, v{TMP}')
        b.e(f'buffer_load_dword v{TMP}, v{TMP+7}, s[28:31], 0 offen', ('warm0',))
    if KVREG >= 2:
        kvpair_static(b, 6)
        kvpair_static(b, 7)
    elif KVREG:
        kvpair_static(b, 8)
        kvpair_static(b, 9)
        run(b, kv_to_lds(7)[:1] + kv_to_lds(7)[1:] + kv_to_lds(6))
    else:
        kvpair_static(b, 6)
        if LEAD == 8: kvpair_static(b, 7)
    if TOUCH:
        b.e(f'v_lshlrev_b32 v{TMP+7}, {12 if TOUCH == 1 else 17}, v{VL16}')
        b.e('s_mov_b32 s100, 0x20000')
        for base, size, off in ((12, 4718592, 0), (18, 0x1000000, 0), (18, 0x1000000, 0x400000), (18, 0x1000000, 0x800000), (18, 0x3000000, 0x2000000), (18, 0x3000000, 0x2400000), (18, 0x3000000, 0x2800000), (18, 0x3000000, 0x2c00000), (14, 1769472, 0)):
            b.e(f's_mov_b32 s28, s{base}'); b.e(f's_mov_b32 s29, s{base+1}'); b.e(f's_mov_b32 s30, {size}'); b.e('s_mov_b32 s31, 0x20000')
            b.e(f's_mov_b32 s56, {off}')
            b.e(f'buffer_load_dword v{TMP}, v{TMP+7}, s[28:31], s56 offen', ('touch',))
        b.e('s_waitcnt vmcnt(0)')
    run(b, rowmax3(SA))
    for jt in range(3):
        for i in range(4): b.e(f'v_sub_f32 v{NEGM+4*jt+i}, 0, v{MX[jt]}')
    sub = [E(f'v_sub_f32 v{r}, v{r}, v{MX[jt]}') for kt in range(2) for jt in range(3) for r in sregs(SA, jt)[4*kt:4*kt+4]]
    run(b, interleave(qk_backbone(SB, 'negm', nextV=True), sub + sm_fillers(SA)))
    b.e('s_mov_b32 s44, 0')
    if PRIO:
        b.e('s_cmp_ge_u32 s42, 4'); b.e('s_cbranch_scc0 NOPRIO'); b.e('s_setprio 1'); b.e('NOPRIO:')
    stamp(b, 3)
    return b

def winter(backbone, fillers, start, end):
    if not int(OPT.get('cw', 0)): return interleave(backbone, fillers, start, end)
    class Probe:
        def e(self, t, tag=None): self.t = t
    w = []
    for f in fillers:
        p = Probe(); p.t = ''
        try: f(p)
        except Exception: pass
        w.append(2 if p.t.startswith('v_exp') else 1)
    tot = sum(w); n = len(backbone); span = end - start
    out = []; k = 0; acc_ = 0
    for i in range(n):
        out.append(backbone[i])
        if start <= i < end:
            tgt = tot * (i - start + 1) / span
            while k < len(fillers) and acc_ + w[k] / 2 <= tgt:
                out.append(fillers[k]); acc_ += w[k]; k += 1
    return out + fillers[k:]

def pv_phase(ctx, name, P, S, nextK=True, head=None, dma=None, vmw=4, bar=True, extra=(), split=None):
    a = Block(ctx, name)
    if head: head(a)
    if bar:
        a.e(f's_waitcnt vmcnt({(2 if NOBARQK else vmw) + 2 * (LEAD - 6)})')
        a.e('s_barrier')
    fl = ladd_fillers() + (sm_fillers(S)[:split or SM_SPLIT] if S else []) + list(extra)
    run(a, winter(pv_backbone(P, nextK, dma, adv=bar), fl, int(OPT.get('pvs', 2)), 24))
    return a

def qk_phase(ctx, name, D, S, dma):
    b = Block(ctx, name)
    if not NOBARQK:
        b.e('s_waitcnt vmcnt(4)')
        b.e('s_barrier')
    run(b, winter(qk_backbone(D, 'negm', dma=dma), sm_fillers(S)[SM_SPLIT:] + chk_fillers(), 0, 23))
    b.e(f's_cbranch_vccnz {name}_RARE')
    r = rare_path(ctx, name, S, D, 4)
    j = Block(ctx, name + 'j'); j.e(f'{name}_JOIN:')
    return b, r, j

def pol_store(b, text, tag):
    b.e(text + ' sc1', tag)

EXB = 4 * CH
MLB = 24576
XA = SA + 20
def vread_as(b, t, k):
    tau = t // 2
    a = VVO if t % 2 else VVE
    for u in range(2):
        b.e(f'ds_read_b64_tr_b16 {q2(VR+4*(k%4)+2*u)}, v{a} offset:{u*4096 + (tau//2)*1024 + (tau%2)*512}', ('v', k))
def order_of(r): return [4, 5, 6, 7, 0, 1, 2, 3] if r == A else list(range(8))

def last_pv(ctx):
    b = Block(ctx, 'L3')
    b.e('L2_JOIN:')
    setup = tail_setup()
    red = ladd_fillers() + xreduce3([LS, LS + 1, LS + 2], MT, 'v_add_f32')
    for r in (A, B):
        with role(b, r):
            od = order_of(r)
            bb = []
            for k, t in enumerate(od):
                for jt in range(3):
                    def slot_(b, k=k, t=t, jt=jt):
                        if jt == 0 and k % 2 == 0: b.wait_lgkm(('v', k + 1))
                        d = q4(acc(t, jt))
                        b.e(f'{MF} {d}, {q4(VR+4*(k%4))}, {q4(st(SB,0,jt))}, {d}')
                        if jt == 2 and k < 4: vread_as(b, od[k + 4], k + 4)
                    bb.append(slot_)
            snd = [E(f'ds_write_b128 v{XA}, {q4(acc(t, jt))} offset:{(3*i+jt)*1024}', ('x',)) for i, t in enumerate(od[:4]) for jt in range(3)]
            run(b, interleave(bb[:12], red + setup[:10], start=1))
            mixed = []
            for k in range(max(len(snd), len(setup) - 10)):
                if 10 + k < len(setup): mixed.append(setup[10 + k])
                if k < len(snd): mixed.append(snd[k])
            run(b, interleave(bb[12:], mixed, start=0))
    return b

def k1_epilogue(ctx):
    b = Block(ctx, 'epi')
    stamp(b, 4)
    if STAMP and OPT.get('rt4'): b.e('s_memrealtime s[84:85]')
    b.e('s_xor_b32 s46, s42, 4')
    b.e(f'v_lshrrev_b32 v{VVO}, 1, v{VL16}')
    b.e('s_mul_i32 s43, s42, 1536')
    b.e('s_mul_i32 s45, s46, 1536')
    b.e(f's_add_u32 s43, s43, {MLB}')
    b.e(f's_add_u32 s45, s45, {MLB}')
    b.e(f'v_add_u32 v{VKV}, s43, v{VVO}')
    b.e(f'v_add_u32 v{VVO}, s45, v{VVO}')
    for jt in range(3):
        b.e(f'v_mov_b32 v{NEGM+4*jt+1}, v{LS+jt}')
    for jt in range(3):
        b.e(f'ds_write_b64 v{VKV}, {q2(NEGM+4*jt)} offset:{jt*512}', ('x',))
    b.e('s_and_b32 s43, s42, 3')
    b.e('s_mul_i32 s43, s43, 393216')
    b.e('s_lshl_b32 s45, s41, 12')
    b.e('s_add_u32 s43, s43, s45')
    b.e('s_lshl_b32 s45, s54, 11')
    b.e('s_add_u32 s43, s43, s45')
    b.e('s_add_u32 s45, s43, 131072')
    b.e('s_add_u32 s46, s43, 262144')
    so = ['s43', 's45', 's46']
    b.e('s_waitcnt lgkmcnt(0)')
    b.e('s_barrier')
    RX = QF
    ML = SA
    for jt in range(3):
        b.e(f'ds_read_b64 {q2(ML+2*jt)}, v{VVO} offset:{jt*512}', ('ml',))
    for i in range(12):
        b.e(f'ds_read_b128 {q4(RX+4*i)}, v{XA+1} offset:{i*1024}', ('rx', i))
    b.wait_lgkm(('ml',))
    C = SA + 8
    T = [TMP, TMP + 4, TMP + 8]
    def each(f):
        for jt in range(3): b.e(f(jt, NEGM + 4 * jt, NEGM + 4 * jt + 1, ML + 2 * jt, ML + 2 * jt + 1, T[jt]))
    each(lambda jt, no, lo, np_, lp, t: f'v_min_f32 v{t}, v{no}, v{np_}')
    each(lambda jt, no, lo, np_, lp, t: f'v_sub_f32 v{t+1}, v{t}, v{no}')
    each(lambda jt, no, lo, np_, lp, t: f'v_sub_f32 v{t+2}, v{t}, v{np_}')
    each(lambda jt, no, lo, np_, lp, t: f'v_exp_f32 v{t+1}, v{t+1}')
    each(lambda jt, no, lo, np_, lp, t: f'v_exp_f32 v{t+2}, v{t+2}')
    each(lambda jt, no, lo, np_, lp, t: f'v_mul_f32 v{t+3}, v{t+1}, v{lo}')
    each(lambda jt, no, lo, np_, lp, t: f'v_fmac_f32 v{t+3}, v{t+2}, v{lp}')
    each(lambda jt, no, lo, np_, lp, t: f'v_rcp_f32 v{t+3}, v{t+3}')
    b.e('s_nop 0')
    for x, src in ((0, 1), (1, 1), (2, 2), (3, 2)):
        each(lambda jt, no, lo, np_, lp, t: f'v_mul_f32 v{C+4*jt+x}, v{t+src}, v{t+3}')
    OUT = SB
    snap = ctx.snap()
    for r in (A, B):
        with role(b, r):
            keep = range(0, 4) if r == A else range(4, 8)
            for sp in range(2):
                for jt in range(3):
                    o = OUT + 4 * (3 * sp + jt)
                    for h in range(2):
                        i = 2 * sp + h
                        a = acc(keep[i], jt); x = RX + 4 * (3 * i + jt)
                        b.wait_lgkm(('rx', 3 * i + jt))
                        b.e(f'v_pk_mul_f32 {q2(a)}, {q2(a)}, {q2(C+4*jt)}')
                        b.e(f'v_pk_mul_f32 {q2(a+2)}, {q2(a+2)}, {q2(C+4*jt)}')
                        b.e(f'v_pk_fma_f32 {q2(a)}, {q2(x)}, {q2(C+4*jt+2)}, {q2(a)}')
                        b.e(f'v_pk_fma_f32 {q2(a+2)}, {q2(x+2)}, {q2(C+4*jt+2)}, {q2(a+2)}')
                        b.e(f'v_cvt_pk_bf16_f32 v{o+2*h}, v{a}, v{a+1}')
                        b.e(f'v_cvt_pk_bf16_f32 v{o+2*h+1}, v{a+2}, v{a+3}')
                    pol_store(b, f'buffer_store_dwordx4 {q4(o)}, v{VL16}, {srd(S_O)}, {so[jt]} offen offset:{sp*1024}', ('o',))
    if FUSED:
        b.e('s_bfe_u32 s43, s42, 0x10001')
        b.e('s_cmp_eq_u32 s43, s49')
        b.e('s_cbranch_scc0 OWN_SKIP')
        b.e('s_and_b32 s43, s42, 1'); b.e('s_mul_i32 s43, s43, 6144')
        b.e(f's_mul_i32 s45, s54, {OS_}'); b.e('s_add_u32 s43, s43, s45')
        b.e(f'v_add_u32 v{VK}, s43, v{VL16}')
        for sp in range(2):
            for jt in range(3):
                b.e(f'ds_write_b128 v{VK}, {q4(OUT + 4 * (3 * sp + jt))} offset:{(2*jt+sp)*1024}', ('oo',))
        b.e('OWN_SKIP:')
    if not FUSED:
        if STAMP:
            b.e('s_waitcnt vmcnt(0)')
            stamp(b, 5)
            dump_stamps(b)
        b.e('K1_END:')
        b.e('s_endpgm')
    return b

def dump_stamps(b):
    b.e('s_memrealtime s[88:89]')
    b.e('s_waitcnt lgkmcnt(0)')
    if STAMP == 2:
        b.e(f's_cmp_eq_u32 s2, {int(OPT.get("dbgwg", 0))}'); b.e('s_cbranch_scc0 DBG_SKIP')
        b.e('s_cmp_eq_u32 s42, 2'); b.e('s_cbranch_scc0 DBG_SKIP')
        b.e('s_mov_b32 s56, s16'); b.e('s_mov_b32 s57, s17'); b.e('s_mov_b32 s58, 256'); b.e('s_mov_b32 s59, 0x20000')
        b.e('v_mov_b32 v1, 0')
        for i in range(1, 11):
            b.e(f's_sub_u32 s43, s{64+2*i}, s64'); b.e('v_mov_b32 v2, s43')
            b.e(f'buffer_store_dword v2, v1, s[56:59], 0 offen offset:{4*i}')
            b.e('s_waitcnt vmcnt(0)')
        b.e('s_sub_u32 s43, s88, s86'); b.e('v_mov_b32 v2, s43')
        b.e('buffer_store_dword v2, v1, s[56:59], 0 offen offset:44')
        b.e('s_waitcnt vmcnt(0)')
        b.e('DBG_SKIP:')
        return
    b.e('s_lshl_b32 s43, s2, 3'); b.e('s_add_u32 s43, s43, s42'); b.e('s_lshl_b32 s43, s43, 7')
    b.e('s_add_u32 s43, s43, 0x1000000')
    b.e('s_add_u32 s56, s18, s43'); b.e('s_addc_u32 s57, s19, 0'); b.e('s_mov_b32 s58, 128'); b.e('s_mov_b32 s59, 0x20000')
    b.e('v_mov_b32 v1, 0')
    for i in range(13):
        b.e(f'v_mov_b32 v2, s{64+2*i}'); b.e(f'v_mov_b32 v3, s{65+2*i}')
        b.e(f'buffer_store_dwordx2 v[2:3], v1, s[56:59], 0 offen offset:{8*i}')
        b.e('s_waitcnt vmcnt(0)')

def poll(b, name, load, notyet):
    b.e('s_mov_b32 s91, 0')
    b.e(f'{name}:')
    b.e(load)
    b.e('s_add_u32 s91, s91, 1')
    b.e('s_waitcnt vmcnt(0)')
    b.e(notyet)
    b.e('s_cmp_lt_u32 s91, 0x40000')
    b.e(f's_cbranch_vccz {name}_GO')
    b.e(f's_sleep {SLEEP}')
    b.e(f's_cbranch_scc1 {name}')
    b.e(f'{name}_GO:')

BIG, SML, LW, LO = (2, 3), (0, 1, 4, 5), (6,), (7,)
S_WO, S_OI, S_P, S_PI, S_OUT = 20, 24, 28, 32, 36
VAP = 192; VB = 197; VT = 198; VE = 202; GS = 208; XF = 248
WS_ = 20480; NW_ = 6; OS_ = 12288; NO_ = 3; WOB = NO_ * OS_

def tail_setup():
    P = []
    def piece(*lines): P.append(lambda b: [b.e(l) for l in lines])
    piece('s_lshr_b32 s47, s41, 3', 's_and_b32 s48, s41, 7')
    piece('s_lshr_b32 s49, s48, 2', 's_and_b32 s50, s48, 3')
    piece('s_and_b32 s51, s50, 1', 's_mul_i32 s55, s47, 1179648')
    piece('s_mul_i32 s61, s50, 288', 's_add_u32 s55, s55, s61')
    piece('s_lshl_b32 s61, s51, 5', 's_sub_u32 s55, s55, s61')
    piece('s_mul_i32 s61, s40, 1572864', 's_mul_i32 s100, s49, 786432')
    piece('s_add_u32 s61, s61, s100', 's_lshl_b32 s100, s47, 15')
    piece('s_add_u32 s61, s61, s100', f's_sub_u32 s{S_WO+2}, 4718592, s55')
    piece(f's_add_u32 s{S_WO}, s12, s55', f's_addc_u32 s{S_WO+1}, s13, 0')
    piece(f's_add_u32 s{S_OI}, s18, s61', f's_addc_u32 s{S_OI+1}, s19, 0')
    piece(f's_mov_b32 s{S_WO+3}, 0x20000', f's_mov_b32 s{S_OI+2}, {5*131072 + 32768}', f's_mov_b32 s{S_OI+3}, 0x20000')
    piece('s_lshl_b32 s52, s40, 3', 's_add_u32 s52, s52, s48')
    piece(f's_mul_i32 s52, s52, {16*INB}', f's_add_u32 s52, s52, {POFF}')
    piece(f's_mul_i32 s61, s47, {INB}', 's_add_u32 s61, s61, s52')
    piece(f's_add_u32 s{S_P}, s18, s61', f's_addc_u32 s{S_P+1}, s19, 0')
    piece(f's_mov_b32 s{S_P+2}, {13*INB}', f's_mov_b32 s{S_P+3}, 0x20000')
    piece(f's_mul_i32 s61, s47, {4*INB}', 's_add_u32 s61, s61, s52')
    piece(f's_add_u32 s{S_PI}, s18, s61', f's_addc_u32 s{S_PI+1}, s19, 0')
    piece(f's_mov_b32 s{S_PI+2}, {4*INB}', f's_mov_b32 s{S_PI+3}, 0x20000')
    piece('s_mul_i32 s52, s40, 192', 's_mul_i32 s61, s49, 96')
    piece('s_add_u32 s52, s52, s61', 's_lshl_b32 s61, s47, 2')
    piece('s_add_u32 s52, s52, s61', 's_mul_i32 s52, s52, 1152')
    piece('s_mul_i32 s61, s50, 288', 's_add_u32 s6, s52, s61')
    piece('s_lshr_b32 s100, s50, 1', 's_and_b32 s99, s90, 0xfffffc00')
    return P

def head_of(b, U):
    G = U // 2
    b.e(f's_add_u32 s55, s48, {G >> 1}'); b.e('s_and_b32 s55, s55, 3')
    b.e(f's_xor_b32 s61, s48, {(G & 1) << 2}'); b.e('s_and_b32 s61, s61, 4'); b.e('s_or_b32 s55, s55, s61')

def oproj(ctx):
    FB = 64
    b = Block(ctx, 'op_pre')
    stamp(b, 2, True)
    b.e(f'v_lshrrev_b32 v{VT+3}, 4, v{VL16}')
    T0 = 216
    v3, v4, v5, v6, v7 = (f'v{T0+i}' for i in range(5))
    VL = 224
    b.e(f'v_and_b32 {v3}, 3, v{VT+3}')
    with role(b, BIG + SML):
        b.e('s_and_b32 s43, s42, 1')
        b.e('s_cmp_lt_u32 s42, 2'); b.e('s_cselect_b32 s45, 5, 0')
        b.e('s_cmp_ge_u32 s42, 4'); b.e('s_cselect_b32 s45, 7, s45')
        b.e(f'v_lshrrev_b32 {v4}, 4, v{VT+3}'); b.e(f'v_bfe_u32 {v5}, v{VT+3}, 2, 4')
        b.e(f'v_and_b32 {v7}, 7, {v5}'); b.e(f'v_lshlrev_b32 {v7}, 6, {v7}'); b.e(f'v_lshlrev_b32 {v5}, 6, {v5}')
        b.e(f'v_and_b32 {v6}, 1, {v4}'); b.e(f'v_lshlrev_b32 {v6}, 5, {v6}'); b.e(f'v_lshl_add_u32 {v6}, {v3}, 3, {v6}')
        b.e(f'v_add_u32 {v5}, {v5}, {v6}'); b.e(f'v_add_u32 {v7}, {v7}, {v6}')
        b.e(f'v_lshrrev_b32 {v6}, 1, {v4}'); b.e(f'v_lshl_add_u32 {v7}, {v6}, 12, {v7}')
        b.e('s_add_u32 s101, s45, s51')
        for n in range(5):
            b.e(f's_add_u32 s52, s101, {n}')
            b.e('s_and_b32 s91, s52, 1'); b.e('s_lshl_b32 s91, s91, 5')
            b.e('s_lshr_b32 s52, s52, 1'); b.e('s_sub_u32 s52, s52, s100')
            b.e('s_and_b32 s54, s52, 1'); b.e('s_lshl_b32 s54, s54, 9')
            b.e('s_lshr_b32 s55, s52, 1'); b.e('s_lshl_b32 s55, s55, 13'); b.e('s_add_u32 s54, s54, s55')
            b.e('s_cmp_lt_u32 s52, 4'); b.e('s_cselect_b32 s54, s54, 16384'); b.e('s_cselect_b64 vcc, -1, 0')
            b.e(f's_add_u32 s54, s54, {WOB}')
            b.e(f'v_cndmask_b32 v{VAP+n}, {v5}, {v7}, vcc')
            b.e(f'v_xor_b32 v{VAP+n}, s91, v{VAP+n}'); b.e(f'v_add_u32 v{VAP+n}, s54, v{VAP+n}')
        b.e('s_mul_i32 s52, s43, 6144')
        b.e(f'v_add_u32 v{VB}, s52, v{VL16}')
        b.e(f'v_bfe_u32 {v6}, v{VT+3}, 2, 2'); b.e(f'v_mul_u32_u24 {v6}, {4*INB}, {v6}')
        b.e(f'v_lshl_add_u32 {v6}, {v4}, 6, {v6}'); b.e(f'v_lshl_add_u32 v{VT+2}, {v3}, 4, {v6}')
        b.e('s_mul_i32 s52, s43, 27'); b.e('s_add_u32 s52, s52, s45'); b.e('s_lshl_b32 s5, s52, 8')
        b.e('s_mul_i32 s52, s43, 9'); b.e('s_add_u32 s52, s52, s45'); b.e('s_lshl_b32 s4, s52, 9')
    VH = VL + 8
    with role(b, LW + LO):
        for V, full in ((VL, True), (VH, False)):
            if full:
                b.e(f'v_bfe_u32 {v4}, v{VT+3}, 2, 3'); b.e(f'v_lshrrev_b32 {v6}, 5, v{VT+3}')
                b.e(f'v_mul_u32_u24 {v5}, 1152, {v4}'); b.e(f'v_lshl_add_u32 {v5}, {v6}, 6, {v5}')
                b.e('s_lshl_b32 s52, s100, 6')
            else:
                b.e(f'v_lshrrev_b32 {v4}, 2, v{VT+3}'); b.e(f'v_mul_u32_u24 {v5}, 1152, {v4}')
                b.e('s_lshl_b32 s52, s100, 8'); b.e('s_sub_u32 s52, 256, s52')
            b.e(f'v_bfe_u32 {v4}, {v4}, 2, 1'); b.e(f'v_lshlrev_b32 {v4}, 1, {v4}'); b.e(f'v_xor_b32 {v4}, {v4}, {v3}')
            b.e(f'v_lshl_add_u32 {v5}, {v4}, 4, {v5}')
            b.e(f'v_add_u32 v{V}, s52, {v5}')
            for m in range(1, 4): b.e(f'v_add_u32 v{V+m}, {m*(18432-1024)}, v{V}')
    b.e(f'v_add_u32 v{VL+4}, {131072-2048}, v{VL16}')
    b.e(f'v_and_b32 v{VL+5}, 0x70, v{VL16}'); b.e(f'v_lshlrev_b32 v{VL+5}, 3, v{VL+5}')
    b.e('s_lshl_b32 s91, s42, 6')
    b.e(f'v_add_u32 v{VT}, s91, v{VT+3}')
    b.e(f'v_lshlrev_b32 v{VT}, 20, v{VT}')
    b.e(f'v_mov_b32 v{VT+1}, s97')
    b.e('s_waitcnt lgkmcnt(0)')
    b.wait_vm(('o',))
    b.e('s_barrier')
    FL = int(OPT.get('fl', 0))
    if FL == 0: b.e(f'buffer_store_dword v{VT+1}, v{VT}, {srd(S_F)}, s90 offen sc1', ('f1',))
    stamp(b, 5)
    b.e('s_cmp_eq_u32 s42, 6'); b.e('s_cbranch_scc1 OP_LW')
    b.e('s_cmp_eq_u32 s42, 7'); b.e('s_cbranch_scc1 OP_LO')
    b.e('s_bitcmp1_b32 12, s42'); b.e('s_cbranch_scc1 OP_BIG')

    def wo_off(x, U):
        head_of(x, U)
        x.e('s_mul_i32 s55, s55, 147456')
        if U % 2: x.e('s_add_u32 s55, s55, 73728')
    def wo_groups(x, groups):
        cur = None
        for U, ty in groups:
            if U != cur: wo_off(x, U); cur = U
            if len(ctx.c[ctx.active[0]].vm) > 59: x.e('s_waitcnt vmcnt(47)')
            x.e(f's_mov_b32 m0, {WOB + (U % NW_) * WS_ + ty * 4096}')
            x.e(f's_add_u32 s56, s55, {(ty % 2) * 9216 + (ty // 2) * 128 if ty < 4 else 0}')
            for m in range(4):
                x.e(f'buffer_load_dwordx4 v{(VL if ty < 4 else VH)+m}, {srd(S_WO)}, s56 offen offset:{m*1024} lds', ('w', U))
    def o_unit(x, U):
        head_of(x, U)
        if U % 2 == 0:
            role.n += 1; l = f'HP{role.n}'
            x.e('s_bitcmp1_b32 s3, s55')
            x.e(f's_cbranch_scc0 {l}_GO')
            for t in ['s_mov_b32 s91, 0', f'{l}:', f'buffer_load_dword v{VL+6}, v{VL+5}, {srd(S_F)}, s99 offen sc1', 's_add_u32 s91, s91, 1',
                      's_waitcnt vmcnt(0)', f'v_cmp_ne_u32 vcc, s97, v{VL+6}', 's_nop 0', 's_mov_b32 s3, vcc_lo', 's_bitcmp1_b32 s3, s55',
                      f's_cbranch_scc0 {l}_GO', f's_sleep {SLEEP}', 's_cmp_lt_u32 s91, 0x40000', f's_cbranch_scc1 {l}']:
                i = I(t); i.roles = (); x.append(i)
            x.e(f'{l}_GO:')
        x.e('s_lshl_b32 s55, s55, 12')
        if U % 2: x.e('s_add_u32 s55, s55, 2048')
        for g in range(3):
            x.e(f's_mov_b32 m0, {(U % NO_) * OS_ + g * 4096}')
            x.e(f's_add_u32 s56, s55, {g * 262144}')
            for m in range(4):
                x.e(f'buffer_load_dwordx4 v{VL16 if m < 2 else VL+4}, {srd(S_OI)}, s56 offen offset:{m*1024} lds', ('o2', U))
    def vwait(x, *tags):
        n = [ctx.count_after('vm', t) for t in tags]
        n = [k for k in n if k is not None]
        if n: x.e(f's_waitcnt vmcnt({min(min(n), 47)})')
    snap = ctx.snap()
    rest = [(U, ty) for U in range(6, 16) for ty in range(5)]
    PLAN = [int(x) for x in OPT.get('plan', '5,4,4,4,5,4,4,4,4,4,4,4').split(',')]
    assert sum(PLAN) == 50
    sched = []
    for k, n in enumerate(PLAN):
        g, rest = rest[:n], rest[n:]
        assert all(U - 7 <= k and U - 3 >= k for U, _ in g), (k, g)
        n6 = min(n, 4 if (k % 2 or k == 0) else 3)
        sched.append((g[:n6], g[n6:]))
    def loader(name, waves, me):
        lo = Block(ctx, name); ctx.active = list(waves)
        lo.e(f'{name}:')
        if me: lo.e('s_mov_b32 s3, 0xff')
        first = [(0, 0), (0, 1), (0, 2), (1, 0), (1, 1)] if me == 0 else [(0, 3), (0, 4), (1, 2), (1, 3), (1, 4)]
        wo_groups(lo, first)
        lo.e('s_waitcnt vmcnt(0)'); lo.e('s_barrier')
        if me == 0:
            wo_groups(lo, [(U, ty) for U in range(2, 6) for ty in range(4)])
        else:
            wo_groups(lo, [(2, 4), (3, 4)])
            stamp(lo, 3, True)
            o_unit(lo, 2)
            wo_groups(lo, [(4, 4), (5, 4)])
        vwait(lo, ('o2', 2), ('w', 2)); lo.e('s_barrier')
        if me: o_unit(lo, 3); o_unit(lo, 4)
        wo_groups(lo, sched[0][me])
        for U in range(2, 16):
            if U < 15: vwait(lo, ('o2', U + 1), ('w', U + 1))
            lo.e('s_barrier')
            if me and U + NO_ < 16: o_unit(lo, U + NO_)
            if U - 1 < len(sched): wo_groups(lo, sched[U - 1][me])
        lo.e('s_barrier')
        lo.e('s_branch OP_DONE')
        return lo
    lw = loader('OP_LW', LW, 0)
    lo = loader('OP_LO', LO, 1)

    OWN = 0
    def GEND(NT): return int(OPT.get('gend', 28)) if NT == 5 else int(OPT.get('gens', 10))
    def compute(name, waves, NT):
        ctx.restore(snap); ctx.active = list(waves)
        c = Block(ctx, name); lp = Block(ctx, name + 'l'); e = Block(ctx, name + 'e')
        c.e(f'{name}:')
        SZ = 4 * (NT + 3)
        def fA(U, k, n): return FB + 2 * SZ * (U % 2) + SZ * k + 4 * n
        def fB(U, k, j): return FB + 2 * SZ * (U % 2) + SZ * k + 4 * NT + 4 * j
        def rd(U):
            r = []
            for k in range(2):
                r += [E(f'ds_read_b128 {q4(fB(U,k,j))}, v{VB} offset:{(2*j+k)*1024}', ('f', U)) for j in range(3)]
                for n in range(NT):
                    r += [E(f'ds_read_b64_tr_b16 {q2(fA(U,k,n)+2*u)}, v{VAP+n} offset:{k*2048 + u*1024}', ('f', U)) for u in range(2)]
            return r
        def adv(b):
            b.e(f's_cmp_ge_u32 s46, {(NW_-1)*WS_}'); b.e(f's_cselect_b32 s52, s54, s53'); b.e('s_add_u32 s46, s46, s52')
            for n in range(NT): b.e(f'v_add_u32 v{VAP+n}, s52, v{VAP+n}')
            b.e(f's_cmp_ge_u32 s45, {(NO_-1)*OS_}'); b.e(f's_cselect_b32 s52, s101, s100'); b.e('s_add_u32 s45, s45, s52')
            b.e(f'v_add_u32 v{VB}, s52, v{VB}')
        def mmu(U, first=False):
            return [E(f'{MF} {q4(12*n+4*j)}, {q4(fA(U,k,n))}, {q4(fB(U,k,j))}, {"0" if first and k == 0 else q4(12*n+4*j)}')
                    for k in range(2) for n in range(NT) for j in range(3)]
        c.e('s_mov_b32 s46, 0'); c.e(f's_mov_b32 s53, {WS_}'); c.e(f's_mov_b32 s54, {(-(NW_-1)*WS_) & 0xffffffff}')
        c.e('s_mov_b32 s45, 0'); c.e(f's_mov_b32 s100, {OS_}'); c.e(f's_mov_b32 s101, {(-(NO_-1)*OS_) & 0xffffffff}')
        c.e('s_mov_b32 s44, 0')
        if OWARM:
            c.e(f'v_lshrrev_b32 v{GS}, 5, v{VT+3}'); c.e(f'v_lshlrev_b32 v{GS}, 17, v{GS}')
            c.e(f'v_and_b32 v{GS+1}, 31, v{VT+3}'); c.e(f'v_lshl_add_u32 v{GS}, v{GS+1}, 7, v{GS}')
            c.e('s_lshl_b32 s55, s42, 18'); c.e('s_lshl_b32 s61, s41, 12'); c.e('s_add_u32 s55, s55, s61')
            if OWARM == 2: c.e(f'buffer_load_dword v{XF+3}, v{GS}, {srd(S_O)}, s55 offen', ('ow',))
        if FL == 1 and NT == 2:
            c.e('s_nop 15'); c.e('s_nop 15'); c.e('s_nop 15'); c.e('s_nop 15'); c.e('s_nop 15'); c.e('s_nop 15')
            c.e(f'buffer_store_dword v{VT+1}, v{VT}, {srd(S_F)}, s90 offen sc1', ('f1',))
        c.e('s_barrier')
        stamp(c, 6)
        if FL == 2 and NT == 2: c.e(f'buffer_store_dword v{VT+1}, v{VT}, {srd(S_F)}, s90 offen sc1', ('f1',))
        if OWARM == 1: c.e(f'buffer_load_dword v{XF+3}, v{GS}, {srd(S_O)}, s55 offen', ('ow',))
        c.e(f's_add_u32 s{S_OUT}, s14, s6'); c.e(f's_addc_u32 s{S_OUT+1}, s15, 0')
        c.e(f's_sub_u32 s{S_OUT+2}, 1769472, s6'); c.e(f's_mov_b32 s{S_OUT+3}, 0x20000')
        run(c, rd(0)); adv(c)
        c.e('s_waitcnt lgkmcnt(0)')
        run(c, interleave(mmu(0, True), rd(1) + [adv], end=GEND(NT)))
        c.e('s_waitcnt lgkmcnt(0)')
        run(c, mmu(1))
        c.e('s_barrier')
        stamp(c, 1, True)
        run(c, rd(0)); adv(c)
        def unit(x, U, extra=(), last=False):
            x.e('s_waitcnt lgkmcnt(0)')
            x.e('s_barrier')
            run(x, interleave(mmu(U), ([] if last else rd(U + 1) + [adv]) + list(extra), end=GEND(NT)))
        lp.e(f'{name}_LOOP:')
        unit(lp, 0); unit(lp, 1)
        lp.e('s_add_u32 s44, s44, 1'); lp.e('s_cmp_lt_u32 s44, 6'); lp.e(f's_cbranch_scc1 {name}_LOOP')
        fin = []
        def P(*lines): fin.extend(E(l) for l in lines)
        X = GS
        P('s_mov_b32 s7, 288', 's_lshl_b32 s6, s42, 6', f'v_add_u32 v{X}, s6, v{VT+3}')
        P(f'v_cmp_gt_u32 s[8:9], s7, v{X}', f'v_subrev_u32 v{X+1}, 32, v{X}', f'v_mov_b32 v{X+7}, 0x40000000')
        P(f'v_cndmask_b32 v{X}, v{X+1}, v{X}, s[8:9]', f'v_lshrrev_b32 v{X+1}, 4, v{X}')
        P(f'v_and_b32 v{X+2}, 15, v{X}', f'v_lshlrev_b32 v{X+2}, 4, v{X+2}', f'v_lshl_add_u32 v{XF}, v{X+1}, 9, v{X+2}')
        P(f'v_mul_u32_u24 v{X+4}, 57, v{X+1}', f'v_lshrrev_b32 v{X+4}, 9, v{X+4}')
        P(f'v_mul_u32_u24 v{X+5}, 18, v{X+4}', f'v_add_u32 v{X+5}, v{X+5}, v{X+1}')
        P(f'v_lshl_add_u32 v{XF+1}, v{X+5}, 8, v{X+2}')
        P(f'v_mul_u32_u24 v{X+6}, 9, v{X+4}', f'v_sub_u32 v{X+1}, v{X+1}, v{X+6}')
        P(f'v_mul_u32_u24 v{X+4}, 48, v{X+4}', f'v_and_b32 v{X+6}, 3, v{X}', f'v_add_u32 v{X+4}, v{X+4}, v{X+6}')
        P(f'v_mul_u32_u24 v{X+4}, 1152, v{X+4}', f'v_lshl_add_u32 v{X+4}, v{X+1}, 5, v{X+4}')
        P(f'v_bfe_u32 v{X+6}, v{X}, 2, 2', f'v_lshl_add_u32 v{X+4}, v{X+6}, 3, v{X+4}')
        P(f'v_cndmask_b32 v{XF+2}, v{X+7}, v{X+4}, s[8:9]')
        for i in range(3): P(f's_add_u32 s{56+i}, s47, {i+1}', f's_and_b32 s{56+i}, s{56+i}, 3', f's_mul_i32 s{56+i}, s{56+i}, {INB}')
        P('s_mov_b32 s10, 18432', 's_mov_b32 s11, 36864', 's_mov_b32 s59, 0xffff0000')
        fin2 = []
        fin2.append(lambda b: [b.e(l) for l in (f'v_bfe_u32 v{VE+2}, v{VT+3}, 2, 2', f'v_cmp_eq_u32 vcc, s47, v{VE+2}', f'v_mov_b32 v{VE+2}, 0x40000000',
                    f'v_and_b32 v{VE}, 0xff, v{VT+2}', f'v_cndmask_b32 v{VT+2}, v{VT+2}, v{VE+2}, vcc', f'v_lshlrev_b32 v{VE+1}, 2, v{VT+3}',
                    f'v_add_u32 v{VE+1}, {OWN+16384}, v{VE+1}', f'v_add_u32 v{VE}, s5, v{VE}',
                    f'v_and_b32 v{VE+1}, 0xfffffff0, v{VE+1}', f'v_cndmask_b32 v{VE}, v{VE+1}, v{VE}, vcc')])
        fin2 += [E(f'v_mov_b32 v{GS+4*k+3}, s98') for k in range(2 * NT)]
        unit(e, 14, fin)
        e.e('s_waitcnt lgkmcnt(0)')
        e.e('s_barrier')
        m = mmu(15)
        def send(n):
            r = [E(f'v_cvt_pk_bf16_f32 v{GS + 8*n + 4*(x//3) + x%3}, v{12*n+2*x}, v{12*n+2*x+1}') for x in range(6)]
            r += [E(f'buffer_store_dwordx4 {q4(GS+8*n+4*hf)}, v{VT+2}, {srd(S_P)}, s4 offen offset:{n*512 + hf*256} sc1', ('p',)) for hf in range(2)]
            r += [E(f'ds_write_b128 v{VE}, {q4(12*n+4*j)} offset:{j*2304 + n*256}', ('own',)) for j in range(3)]
            return r
        for n in range(NT):
            grp = m[3 * n:3 * n + 3] + m[3 * NT + 3 * n:3 * NT + 3 * n + 3]
            run(e, interleave(grp, fin2 if n == 0 else (send(n - 2) if n >= 2 else [])))
        stamp(e, 7)
        if NT == 2: e.e('s_nop 1')
        run(e, send(NT - 2)); run(e, send(NT - 1))
        if name != 'OP_BIG': e.e('s_branch OP_FIN')
        return c, lp, e
    sm = compute('OP_SML', SML, 2)
    bg = compute('OP_BIG', BIG, 5)
    ctx.active = list(BIG + SML)
    e = Block(ctx, 'op_end')
    e.e('OP_FIN:')
    e.e('s_waitcnt lgkmcnt(0)')
    e.e('s_barrier')
    stamp(e, 8)
    e.e('s_cmp_ge_u32 s42, 5')
    e.e('s_cbranch_scc1 OP_DONE')
    R0 = 168; OW = 64; X = 128
    for j in range(3): e.e(f'ds_read_b128 {q4(OW+4*j)}, v{XF+1} offset:{j*2304}', ('ow',))
    loads = '\n'.join(f'buffer_load_dwordx4 {q4(R0+8*src+4*hf)}, v{XF}, {srd(S_PI)}, s{56+src} offen offset:{hf*256} sc1' for src in range(3) for hf in range(2))
    chk = [f'v_xor_b32 v{X+6}, s98, v{R0+3}']
    for k in range(1, 6):
        chk += [f'v_xor_b32 v{X+7}, s98, v{R0+4*k+3}', f'v_or_b32 v{X+6}, v{X+6}, v{X+7}']
    chk.append(f'v_cmp_ne_u32 vcc, 0, v{X+6}')
    poll(e, 'OP_P2', loads, '\n'.join(chk))
    stamp(e, 9)
    e.e(f'buffer_store_dword v{VT+1}, v{VT}, {srd(S_F)}, s96 offen sc1', ('ep',))
    e.e('s_waitcnt lgkmcnt(0)')
    so = ['0', 's10', 's11']
    for j in range(3):
        for p in range(2):
            x = 2 * j + p
            for src in range(3):
                r = R0 + 8 * src + 4 * (x // 3) + x % 3
                e.e(f'v_lshlrev_b32 v{X+6}, 16, v{r}'); e.e(f'v_and_b32 v{X+7}, s59, v{r}')
                e.e(f'v_add_f32 v{OW+2*x}, v{OW+2*x}, v{X+6}'); e.e(f'v_add_f32 v{OW+2*x+1}, v{OW+2*x+1}, v{X+7}')
            e.e(f'v_cvt_pk_bf16_f32 v{OW+16+x}, v{OW+2*x}, v{OW+2*x+1}')
        e.e(f'buffer_store_dwordx2 {q2(OW+16+2*j)}, v{XF+2}, {srd(S_OUT)}, {so[j]} offen {OPT.get("outpol", "")}')
    ctx.active = ALLW
    e.e('OP_DONE:')
    if STAMP:
        if not OPT.get('rt4'): stamp(e, 10)
        dump_stamps(e)
    e.e('K1_END:')
    e.e('s_endpgm')
    traces = {}
    for w in SML: traces[w] = [b, sm[0], sm[1], sm[1], sm[2], e]
    for w in BIG: traces[w] = [b, bg[0], bg[1], bg[1], bg[2], e]
    traces[6] = [b, lw]; traces[7] = [b, lo]
    TXN = OPT.get('tx', '')
    if TXN:
        def after_c(blk):
            n = 0; out = []
            for i in blk:
                if i.kind == 'barrier': n += 1
                drop = n >= 2 and getattr(i, 'sub', '') == 'dma' and (TXN == 'none' or (TXN == 'noo' and 's[24:27]' in i.text) or (TXN == 'nowo' and 's[20:23]' in i.text))
                if not drop: out.append(i)
            blk[:] = out
        after_c(lw); after_c(lo); after_c(sm[0])
        if TXN in ('none', 'nowo'):
            for blk in sm[1:]: blk[:] = [i for i in blk if getattr(i, 'sub', '') != 'dma']
    return [b] + list(sm) + list(bg) + [e, lw, lo], traces

def kernel1():
    ctx = MCtx(8)
    pro = k1_prologue(ctx)
    qp = k1_qproj(ctx)
    ap = k1_att_prologue(ctx)
    p1 = pv_phase(ctx, 'P1', SA, SB, head=lambda a: a.e('K1_LOOP:'), dma=guarded(dma_v, 0) if LEAD == 6 else dma_v)
    SK2 = int(OPT.get('sk2', 2))
    p2 = qk_phase(ctx, 'P2', SA, SB, guarded(dma_k, 0) if KVREG else dma_k)
    p3 = pv_phase(ctx, 'P3', SB, SA, dma=guarded(dma_v, SK2) if KVREG == 1 else dma_v)
    p4 = qk_phase(ctx, 'P4', SB, SA, guarded(dma_k, SK2) if KVREG == 1 else dma_k)
    p4[2].e('s_add_u32 s44, s44, 1')
    p4[2].e('s_cmp_lt_u32 s44, 7')
    p4[2].e('s_cbranch_scc1 K1_LOOP')
    def warm(b):
        b.e(f'v_lshrrev_b32 v{KR}, 6, v{VL16}'); b.e(f'v_mul_u32_u24 v{KR}, 1152, v{KR}')
        b.e(f'v_and_b32 v{KR+1}, 48, v{VL16}'); b.e(f'v_lshlrev_b32 v{KR+1}, 3, v{KR+1}'); b.e(f'v_min_u32 v{KR+1}, 316, v{KR+1}')
        b.e(f'v_add_u32 v{KR}, v{KR}, v{KR+1}')
        b.e(f'buffer_load_dword v{SA+23}, v{KR}, s[28:31], 0 offen', ('warm',))
    l1 = pv_phase(ctx, 'L1', SA, SB, nextK=False, dma=warm if WARM in (1, 2) else None, split=LSPLIT)
    l2 = Block(ctx, 'L2')
    l2.e(f's_waitcnt vmcnt({1 if WARM in (1, 2) else 0})')
    l2.e('s_barrier')
    if OPT.get('l2s'): stamp(l2, 2)
    for r in (A, B):
        with role(l2, r):
            for k in range(4): vread_as(l2, order_of(r)[k], k)
    l2.e('s_mul_i32 s43, s42, 12288'); l2.e('s_xor_b32 s46, s42, 4'); l2.e('s_mul_i32 s46, s46, 12288')
    l2.e(f's_add_u32 s43, s43, {EXB}'); l2.e(f's_add_u32 s46, s46, {EXB}')
    l2.e(f'v_add_u32 v{XA}, s43, v{VL16}'); l2.e(f'v_add_u32 v{XA+1}, s46, v{VL16}')
    run(l2, sm_fillers(SB)[LSPLIT:] + chk_fillers())
    l2.e('s_cbranch_vccnz L2_RARE')
    l2r = rare_path(ctx, 'L2', SB, None, 2)
    l3 = last_pv(ctx)
    ep = k1_epilogue(ctx)
    errs = []
    body = [p1, p2[0], p2[2], p3, p4[0], p4[2]]
    bodyr = [p1, p2[0], p2[1], p2[2], p3, p4[0], p4[1], p4[2]]
    last = [l1, l2, l3, ep]
    lastr = [l1, l2, l2r, l3, ep]
    tail, ttr = oproj(ctx)
    for r in ALLW:
        errs += check_trace([pro, qp, ap] + body + body + last + ttr[r], f'main{r}', r)
        errs += check_trace([pro, qp, ap] + bodyr + bodyr + body + lastr, f'rare{r}', r)
    if NOCOMP:
        for blk in body:
            keep = [i for i in blk if i.kind not in ('mfma', 'valu', 'trans') and not (NOCOMP > 1 and i.kind == 'ds') and 'vccnz' not in i.text]
            blk[:] = keep
        errs = []
    DROP = OPT.get('drop', '')
    if DROP:
        D = DROP.split(',')
        def dropit(i):
            t = i.text
            if 'vccnz' in t: return True
            if 'exp' in D and t.startswith('v_exp'): return True
            if 'add' in D and t.startswith('v_add_f32'): return True
            if 'cvt' in D and t.startswith('v_cvt'): return True
            if 'ds' in D and i.kind == 'ds': return True
            if 'wait' in D and i.kind == 'wait': return True
            if 'bar' in D and i.kind == 'barrier': return True
            if 'adv' in D and (t.startswith('v_add_u32') or t.startswith('s_cmp_ge') or t.startswith('s_cselect') or t.startswith('s_add_u32 s45') or t.startswith('s_add_u32 s46')): return True
            if 'mfma' in D and i.kind == 'mfma': return True
            return False
        for blk in body: blk[:] = [i for i in blk if not dropit(i)]
        errs = []
    order = [pro, qp, ap] + body + last + tail + [p2[1], p4[1], l2r]
    return order, errs

def kernel2():
    ctx = MCtx(8)
    b = Block(ctx, 'k2')
    b.e('s_cmp_ge_u32 s2, 256')
    b.e('s_cbranch_scc1 K2_END')
    b.e('s_load_dwordx8 s[12:19], s[0:1], 32')
    if STAMP:
        for i in range(6): b.e(f's_memtime s[{64+2*i}:{65+2*i}]')
        b.e('s_memrealtime s[86:87]')
    b.e('v_lshrrev_b32 v1, 6, v0')
    b.e('v_and_b32 v0, 63, v0')
    b.e('v_readfirstlane_b32 s42, v1')
    b.e('s_and_b32 s43, s2, 7'); b.e('s_lshr_b32 s44, s2, 3')
    b.e('s_and_b32 s40, s43, 1'); b.e('s_lshl_b32 s40, s40, 2'); b.e('s_and_b32 s45, s44, 3'); b.e('s_add_u32 s40, s40, s45')
    b.e('s_lshr_b32 s41, s43, 1'); b.e('s_lshl_b32 s41, s41, 3'); b.e('s_lshr_b32 s46, s44, 2'); b.e('s_add_u32 s41, s41, s46')
    b.e(f'v_lshlrev_b32 v{VL16}, 4, v0')
    b.e('s_waitcnt lgkmcnt(0)')
    flag_srd(b)
    epoch_load(b, 222)
    b.e('s_waitcnt vmcnt(0)')
    epoch_tags(b, 222)
    run(b, tail_setup())
    t = oproj(ctx)
    errs = []
    for r in ALLW: errs += check_trace([b, t[0], t[1], t[1], t[2], t[2], t[3]], f'k2_{r}', r)
    return [b] + list(t), errs

HEADER = open('standalone__mha_block_cached__near_ridge.s.ref').read().split('; Override')[0]

DOC = '''; One workgroup per (batch, head), 8 waves, one launch:
;  3. the 8 heads of a group trade o through d_ws; every workgroup multiplies a 96 x 144 output tile over
;     these 8 heads; the 4 head groups trade the partial sums (tagged granules) and each finishes a quarter.
; Hand-off words carry a launch tag derived from an epoch word in d_ws that the launch advances at its end.
'''

def kd(name, vgpr, sgpr=96):
    return f'''.amdhsa_kernel {name}
  .amdhsa_next_free_vgpr {vgpr}
  .amdhsa_next_free_sgpr {sgpr}
  .amdhsa_accum_offset {(vgpr+3)//4*4}
  .amdhsa_group_segment_fixed_size 0
  .amdhsa_kernarg_size 64
  .amdhsa_user_sgpr_count 2
  .amdhsa_user_sgpr_kernarg_segment_ptr 1
  .amdhsa_system_sgpr_workgroup_id_x 1
.end_amdhsa_kernel
'''

def main():
    k1, e1 = kernel1()
    k2, e2 = kernel2() if not FUSED else ([], [])
    for e in list(dict.fromkeys(x.split('] ', 1)[1] for x in e1 + e2))[:12]: print('CHECK', e, file=sys.stderr)
    out = HEADER
    if FUSED:
        N = 'standalone__mha_block_cached__near_ridge_kernel'
        out += f'; @launch grid=(256,1,1) block=(512,1,1) lds={LDS_TOT}\n'
        ks = [(N, k1)]
    else:
        out += f'; @launch kernel=mha_attn_kernel grid=(256,1,1) block=(512,1,1) lds={LDS_TOT}\n'
        out += f'; @launch kernel=mha_oproj_kernel grid=(256,1,1) block=(512,1,1) lds={LDS_TOT}\n'
        ks = [('mha_attn_kernel', k1), ('mha_oproj_kernel', k2)]
    out += DOC + '.amdgcn_target "amdgcn-amd-amdhsa--gfx950"\n.text\n'
    for name, blocks in ks:
        out += f'.globl {name}\n.p2align 8\n.type {name},@function\n{name}:\n'
        out += '\n'.join(b.text() for b in blocks) + '\n'
    out += '.section .rodata,"a"\n'
    for name, _ in ks: out += '.p2align 6\n' + kd(name, 256, 102)
    open(sys.argv[1], 'w').write(out)
    if e1 or e2: sys.exit(1)
main()
```

```python
import sys, struct, math
from asmlib import *

OPT = dict(a.split('=') for a in sys.argv[2:] if '=' in a)
STAMP = int(OPT.get('stamp', 0))
KVPOL = OPT.get('kvpol', 'nt')
XPOL = OPT.get('xpol', '')
WPOL = OPT.get('wpol', '')
OSTPOL = OPT.get('ostpol', 'sc1' if OPT.get('fused', '1') == '1' else '')
OLDPOL = OPT.get('oldpol', '')
WOPOL = OPT.get('wopol', '')
THR = float(OPT.get('thr', 2048.0))
NOBARQK = int(OPT.get('nobarqk', 1))
SKIPT = int(OPT.get('skipt', 0))
STAG = int(OPT.get('stag', 0))
ROT = int(OPT.get('rot', 1))
ROT2 = int(OPT.get('rot2', 1))
SM_SPLIT = int(OPT.get('split', 24))
CHK_AT = int(OPT.get('chk', 8))
PRIO = int(OPT.get('prio', 0))
K2D = int(OPT.get('k2d', 4))
NODMA = int(OPT.get('nodma', 0))
NOCOMP = int(OPT.get('nocomp', 0))
NOKVQ = int(OPT.get('nokvq', 0))
FUSED = int(OPT.get('fused', 1))
OLD2 = OPT.get('old2', 'sc1')
SLEEP = int(OPT.get('sleep', 1))
F1POL = OPT.get('f1pol', 'sc1')
WOPRE = int(OPT.get('wopre', 5))
TOUCH = int(OPT.get('touch', 0))
WOEARLY = int(OPT.get('woearly', 0))
WARM = int(OPT.get('warm', 1))
FAST = int(OPT.get('fast', 0))
PAIRW = int(OPT.get('pairw', 1))
KVREG = int(OPT.get('kvreg', 0))
KV1 = int(OPT.get('kv1', 1))
NC = int(OPT.get('nc', 1))
EARLY = int(OPT.get('early', 0))
ORD = int(OPT.get('ord', 1))
LSPLIT = int(OPT.get('lsplit', 57))
LEAD = int(OPT.get('lead', 6))
OWARM = int(OPT.get('owarm', 0))
KROT = int(OPT.get('krot', 0))
BOTH = int(OPT.get('both', 0))
SMOOTH = int(OPT.get('smooth', 1))
POS = [int(x) for x in OPT.get('pos', '').split(',') if x]
NOX = int(OPT.get('nox', 0))
NOWQ = int(OPT.get('nowq', 0))
MAP = OPT.get('map', '4x8')
KVSCHED = [int(x) for x in OPT.get('kvs', '0,2,3,5,6,8,9,11,12,14').split(',') if x]

def f2u(f): return struct.unpack('<I', struct.pack('<f', f))[0]
SCALE = math.log2(math.e) / math.sqrt(128.0)
MF = 'v_mfma_f32_16x16x32_bf16'
def q4(n): return f'v[{n}:{n+3}]'
def q2(n): return f'v[{n}:{n+1}]'

ACC = 0; QF = 96; SA = 144; SB = 168; KR = 192; VR = 208; NEGM = 224
TMP = 236; VK = 248; VVE = 249; VVO = 250; LS = 251; VL16 = 254; VKV = 255
RING = 10; CH = 16384; LDS_TOT = RING * CH
QB = 114688
SLOT = 40960
S_K, S_V, S_X, S_WQ, S_O = 20, 24, 28, 32, 36
FS = 96
VXD = 208; VWD = 211; VXR = 213; VAE = 215; VAO = 217; VQE = 219; VQO = 220; VQR = 221; VKW = 244
def srd(n): return f's[{n}:{n+3}]'
def acc(t, jt): return ACC + 12 * t + 4 * jt
def qf(s, jt): return QF + 12 * s + 4 * jt
def st(S, kt, jt): return S + 12 * kt + 4 * jt
ALLW = list(range(8))
A, B = (0, 1, 2, 3), (4, 5, 6, 7)

TST = int(OPT.get('tst', 0))
def stamp(b, idx, fine=False, it=False):
    if TST == 2:
        if it or idx in (0, 4): b.e(f's_memtime s[{64+2*idx}:{65+2*idx}]')
        return
    if it: return
    if TST and idx in (1, 2, 3) and not fine: return
    if fine and not TST: return
    if STAMP: b.e(f's_memtime s[{64+2*idx}:{65+2*idx}]')

class role:
    n = 0
    def __init__(self, b, waves): self.b, self.w = b, list(waves)
    def __enter__(self):
        role.n += 1; self.l = f'RL{role.n}'
        self.b.e(f's_bitcmp1_b32 {sum(1 << w for w in self.w)}, s42')
        self.b.e(f's_cbranch_scc0 {self.l}')
        self.b.ctx.active = self.w
    def __exit__(self, *a):
        self.b.ctx.active = ALLW
        self.b.e(f'{self.l}:')

def E(text, tag=None): return lambda b: b.e(text, tag)
def run(b, lst):
    for f in lst: f(b)

def chunk_of(n):
    if n == 0: return ('K', 0)
    if n % 2 == 1: return ('K', (n + 1) // 2)
    return ('V', (n - 2) // 2)

def k1_prologue(ctx):
    b = Block(ctx, 'k1_pro')
    b.e('s_cmp_ge_u32 s2, 256')
    b.e('s_cbranch_scc1 K1_END')
    b.e('s_load_dwordx8 s[4:11], s[0:1], 0')
    b.e('s_load_dwordx8 s[12:19], s[0:1], 32')
    if STAMP:
        b.e('s_memtime s[64:65]')
        b.e('s_memrealtime s[86:87]')
    b.e('v_lshrrev_b32 v1, 6, v0')
    b.e('v_and_b32 v0, 63, v0')
    b.e('v_readfirstlane_b32 s42, v1')
    b.e('s_and_b32 s43, s2, 7')
    b.e('s_lshr_b32 s44, s2, 3')
    nb = int(MAP.split('x')[0]); lb = nb.bit_length() - 1
    nh = 32 // nb; xb = 8 // nb
    b.e(f's_and_b32 s40, s43, {xb - 1}')
    b.e(f's_lshl_b32 s40, s40, {lb}')
    b.e(f's_and_b32 s45, s44, {nb - 1}')
    b.e('s_add_u32 s40, s40, s45')
    b.e(f's_lshr_b32 s41, s43, {xb.bit_length() - 1}')
    b.e(f's_lshl_b32 s41, s41, {nh.bit_length() - 1}')
    b.e(f's_lshr_b32 s46, s44, {lb}')
    b.e('s_add_u32 s41, s41, s46')
    m = max(nb, nh)
    b.e(f's_mul_i32 s45, s45, {32 // nb}')
    b.e(f's_mul_i32 s46, s46, {32 // nh}')
    b.e('s_add_u32 s45, s45, s46')
    b.e('s_and_b32 s45, s45, 31')
    b.e(f's_mul_i32 s45, s45, {9 - NC}')
    b.e('s_lshr_b32 s45, s45, 5')
    b.e(f's_add_u32 s45, s45, {NC}')
    b.e('s_lshl_b32 s100, s45, 7')
    b.e('s_lshl_b32 s101, s45, 19')
    b.e('s_mov_b32 s57, 0' if NC else 's_mov_b32 s57, s100')
    b.e('s_mov_b32 s58, 0' if NC else 's_mov_b32 s58, s101')
    b.e('s_lshl_b32 s45, s40, 5')
    b.e('s_add_u32 s45, s45, s41')
    b.e('s_lshl_b32 s45, s45, 18')
    b.e('s_mul_i32 s46, s40, 221184')
    b.e('s_lshl_b32 s47, s41, 8')
    b.e('s_mul_i32 s48, s40, 1572864')
    b.e('s_and_b32 s53, s42, 3')
    b.e('s_lshr_b32 s54, s42, 2')
    b.e('v_bfe_u32 v4, v0, 2, 3')
    b.e('v_lshrrev_b32 v5, 5, v0')
    b.e('v_and_b32 v3, 3, v0')
    b.e('v_lshrrev_b32 v7, 2, v4')
    b.e('v_lshlrev_b32 v8, 1, v7')
    b.e('v_xor_b32 v6, v3, v8')
    b.e('v_lshlrev_b32 v6, 4, v6')
    b.e('v_lshl_add_u32 v6, v5, 6, v6')
    b.e('s_lshr_b32 s43, s53, 1')
    b.e('s_and_b32 s44, s42, 1')
    b.e('v_and_b32 v9, 3, v4')
    b.e('v_lshl_add_u32 v9, v7, 3, v9')
    b.e('s_lshl_b32 s55, s43, 4')
    b.e('s_lshl_b32 s62, s54, 2')
    b.e('s_add_u32 s55, s55, s62')
    b.e('v_add_u32 v9, s55, v9')
    b.e('v_lshl_add_u32 v9, v9, 13, v6')
    b.e('s_lshl_b32 s55, s44, 7')
    b.e(f'v_add_u32 v{VWD}, s55, v9')
    b.e(f'v_add_u32 v{VWD+1}, {32*8192-1024}, v{VWD}')
    b.e('s_lshl_b32 s60, s42, 11')
    b.e('s_mul_i32 s63, s42, 3')
    for i in range(3):
        b.e(f's_add_u32 s62, s63, {i}')
        b.e('s_and_b32 s56, s62, 1')
        b.e('s_lshl_b32 s56, s56, 3')
        b.e('s_add_u32 s56, s56, 12')
        b.e('s_lshr_b32 s62, s62, 1')
        b.e('s_lshl_b32 s62, s62, 4')
        b.e('v_add_u32 v9, s56, v4')
        b.e('v_and_b32 v9, 15, v9')
        b.e('v_add_u32 v9, s62, v9')
        b.e('v_mul_u32_u24 v9, 1152, v9')
        b.e('v_add_u32 v9, v9, v6')
        if i: b.e(f'v_subrev_u32 v{VXD+i}, {i*1024}, v9')
        else: b.e(f'v_mov_b32 v{VXD}, v9')
    b.e('s_lshl_b32 s59, s63, 10')
    b.e('s_add_u32 s59, s59, 16384')
    b.e('s_waitcnt lgkmcnt(0)')
    b.e(f's_add_u32 s{S_X}, s4, s46');  b.e(f's_addc_u32 s{S_X+1}, s5, 0')
    b.e(f's_mov_b32 s{S_X+2}, 221184'); b.e(f's_mov_b32 s{S_X+3}, 0x20000')
    b.e(f's_add_u32 s{S_WQ}, s10, s47'); b.e(f's_addc_u32 s{S_WQ+1}, s11, 0')
    b.e(f's_sub_u32 s{S_WQ+2}, 4718592, s47'); b.e(f's_mov_b32 s{S_WQ+3}, 0x20000')
    b.e(f's_add_u32 s{S_K}, s6, s45');  b.e(f's_addc_u32 s{S_K+1}, s7, 0')
    b.e(f's_mov_b32 s{S_K+2}, 262144'); b.e(f's_mov_b32 s{S_K+3}, 0x20000')
    b.e(f's_add_u32 s{S_V}, s8, s45');  b.e(f's_addc_u32 s{S_V+1}, s9, 0')
    b.e(f's_mov_b32 s{S_V+2}, 262144'); b.e(f's_mov_b32 s{S_V+3}, 0x20000')
    b.e(f's_add_u32 s{S_O}, s18, s48'); b.e(f's_addc_u32 s{S_O+1}, s19, 0')
    b.e(f's_mov_b32 s{S_O+2}, 1572864'); b.e(f's_mov_b32 s{S_O+3}, 0x20000')
    return b

RC = 1
def slot(n): return ((n + RC) % RING) * CH

def qslot(D): return ((D + 3) % 4) * SLOT

def qnext(b, D):
    if D + 1 == NC:
        b.e('s_mov_b32 s57, s100'); b.e('s_mov_b32 s58, s101')
    else:
        b.e('s_cmp_eq_u32 s61, 1152')
        b.e(f's_cselect_b32 s57, {NC*128}, s61')
        b.e(f's_cselect_b32 s58, {NC*524288}, s58')

def qdma_parts(D):
    P = []
    P.append(lambda b: (b.e(f's_add_u32 m0, s60, {qslot(D)}'), b.e('s_add_u32 s61, s57, 128'),
                        b.e(f'buffer_load_dwordx4 v{VWD}, {srd(S_WQ)}, s58 offen {WPOL} lds', ('q', D))))
    P.append(lambda b: (b.e(f'buffer_load_dwordx4 v{VWD+1}, {srd(S_WQ)}, s58 offen offset:1024 {WPOL} lds', ('q', D)),
                        b.e(f's_add_u32 m0, s59, {qslot(D)}'), b.e('s_add_u32 s58, s58, 524288')))
    for i in range(2): P.append(E(f'buffer_load_dwordx4 v{VXD+i}, {srd(S_X)}, s57 offen offset:{i*1024} {XPOL} lds', ('q', D)))
    P.append(lambda b: (b.e(f'buffer_load_dwordx4 v{VXD+2}, {srd(S_X)}, s57 offen offset:2048 {XPOL} lds', ('q', D)),
                        qnext(b, D)))
    return P

def qdma(b, D):
    b.e(f's_add_u32 m0, s60, {qslot(D)}')
    b.e('s_add_u32 s61, s57, 128')
    for h in range(0 if NOWQ else 2):
        b.e(f'buffer_load_dwordx4 v{VWD+h}, {srd(S_WQ)}, s58 offen offset:{h*1024} {WPOL} lds', ('q', D))
    b.e(f's_add_u32 m0, s59, {qslot(D)}')
    b.e('s_add_u32 s58, s58, 524288')
    for i in range(0 if NOX else 3):
        b.e(f'buffer_load_dwordx4 v{VXD+i}, {srd(S_X)}, s57 offen offset:{i*1024} {XPOL} lds', ('q', D))
    qnext(b, D)

def kvpair_static(b, n):
    c = chunk_of(n)
    S = S_K if c[0] == 'K' else S_V
    b.e(f's_add_u32 m0, s52, {slot(n)}')
    if KROT: b.e(f's_add_u32 s56, s7, {c[1] * CH}'); b.e('s_and_b32 s56, s56, 0x3ffff')
    else: b.e(f's_mov_b32 s56, {c[1] * CH}')
    b.e(f'buffer_load_dwordx4 v{VKV}, {srd(S)}, s56 offen {KVPOL} lds', ('kv', n))
    b.e(f'buffer_load_dwordx4 v{VKV}, {srd(S)}, s56 offen offset:2048 {KVPOL} lds', ('kv', n))

POFF = 0x2000000; FOFF = 0x3000000; INB = 9216
S_F = 92
def flag_srd(b):
    b.e(f's_add_u32 s{S_F}, s18, {FOFF}'); b.e(f's_addc_u32 s{S_F+1}, s19, 0')
    b.e(f's_mov_b32 s{S_F+2}, {32768+1024}'); b.e(f's_mov_b32 s{S_F+3}, 0x20000')
    b.e('s_lshl_b32 s90, s40, 5'); b.e('s_add_u32 s90, s90, s41'); b.e('s_lshl_b32 s90, s90, 7')
    b.e('s_lshl_b32 s96, s40, 7'); b.e('s_add_u32 s96, s96, 32768')

def epoch_load(b, v):
    b.e(f'v_mov_b32 v{v}, 0')
    b.e(f'buffer_load_dword v{v+1}, v{v}, {srd(S_F)}, s96 offen sc1', ('ep',))

def epoch_tags(b, v):
    b.e(f'v_readfirstlane_b32 s97, v{v+1}')
    b.e('s_nop 0')
    b.e('s_mul_i32 s97, s97, 0x9e3779b1')
    b.e('s_add_u32 s97, s97, 0x7f4a7c15')
    b.e('s_xor_b32 s98, s97, 0x80000000')

def one_lane(b, v):
    b.e(f's_lshl_b32 s91, s42, 6')
    b.e(f'v_add_u32 v{v}, s91, v0')
    b.e(f'v_lshlrev_b32 v{v}, 20, v{v}')

def kvreg_of(n): return 48 + 8 * n if n < 6 else 224 + 8 * (n - 6)
def kv_to_regs(b, n):
    c = chunk_of(n)
    S = S_K if c[0] == 'K' else S_V
    r = kvreg_of(n)
    b.e(f's_mov_b32 s56, {c[1] * CH}')
    b.e(f'buffer_load_dwordx4 {q4(r)}, v{VKV}, {srd(S)}, s56 offen {KVPOL}', ('kv', n))
    b.e(f'buffer_load_dwordx4 {q4(r+4)}, v{VKV}, {srd(S)}, s56 offen offset:2048 {KVPOL}', ('kv', n))
def kv_to_lds(n):
    r = kvreg_of(n)
    o = slot(n) % 65536
    v = VKW + slot(n) // 65536
    return [lambda b: (b.wait_vm(('kv', n)), b.e(f'ds_write_b128 v{v}, {q4(r)} offset:{o}', ('kw',))),
            E(f'ds_write_b128 v{v}, {q4(r+4)} offset:{o+2048}', ('kw',))]

def k1_qproj(ctx):
    b = Block(ctx, 'qproj')
    flag_srd(b)
    qdma(b, 0)
    b.e('v_lshl_add_u32 v9, v4, 8, v6')
    b.e('s_lshl_b32 s46, s43, 12')
    b.e('s_lshl_b32 s47, s54, 13')
    b.e('s_add_u32 s46, s46, s47')
    b.e('s_add_u32 s45, s55, s46')
    b.e(f'v_add_u32 v{VKV}, s45, v9')
    b.e('s_lshl_b32 s47, s44, 10')
    b.e('s_add_u32 s52, s46, s47')
    if KROT == 1: b.e('s_lshr_b32 s7, s2, 3')
    elif KROT == 2: b.e('s_mul_i32 s7, s2, 5')
    elif KROT == 3: b.e('s_lshr_b32 s7, s2, 4'); b.e('s_add_u32 s7, s7, s2')
    elif KROT == 4: b.e('s_mov_b32 s7, s41')
    elif KROT == 5: b.e('s_lshl_b32 s7, s40, 2'); b.e('s_add_u32 s7, s7, s41')
    elif KROT == 6: b.e('s_lshl_b32 s7, s40, 1'); b.e('s_xor_b32 s7, s7, s41'); b.e('s_mul_i32 s7, s7, 7')
    elif KROT == 7: b.e('s_lshr_b32 s7, s2, 4'); b.e('s_mul_i32 s7, s7, 3'); b.e('s_mul_i32 s6, s2, 5'); b.e('s_add_u32 s7, s7, s6')
    elif KROT == 8: b.e('s_and_b32 s7, s2, 7'); b.e('s_lshl_b32 s7, s7, 1')
    elif KROT == 9: b.e('s_mul_i32 s7, s40, 2'); b.e('s_lshr_b32 s6, s41, 4'); b.e('s_add_u32 s7, s7, s6')
    if KROT: b.e('s_and_b32 s7, s7, 15'); b.e('s_lshl_b32 s7, s7, 14')
    qdma(b, 1)
    b.e('v_lshrrev_b32 v10, 4, v0')
    b.e('v_and_b32 v6, 15, v0')
    b.e('v_lshrrev_b32 v7, 2, v6')
    b.e('v_and_b32 v8, 1, v10')
    b.e('v_lshl_add_u32 v5, v8, 2, v7')
    b.e('v_lshlrev_b32 v5, 6, v5')
    b.e('v_lshl_add_u32 v5, v8, 5, v5')
    b.e('v_lshl_add_u32 v5, v3, 3, v5')
    b.e('v_lshrrev_b32 v9, 1, v10')
    b.e('v_lshl_add_u32 v5, v9, 12, v5')
    b.e('s_lshl_b32 s45, s54, 11')
    b.e(f'v_add_u32 v{VAE}, s45, v5')
    b.e(f'v_add_u32 v{VAE+1}, {2*SLOT}, v{VAE}')
    b.e(f'v_xor_b32 v{VAO}, 32, v{VAE}')
    b.e(f'v_xor_b32 v{VAO+1}, 32, v{VAE+1}')
    b.e('v_add_u32 v5, 4, v6')
    b.e('v_bfe_u32 v11, v5, 3, 1')
    b.e('v_and_b32 v12, 7, v5')
    b.e('v_lshrrev_b32 v13, 2, v12')
    b.e('v_lshlrev_b32 v13, 1, v13')
    b.e('v_lshlrev_b32 v14, 6, v12')
    b.e('v_xor_b32 v15, v13, v10')
    b.e('v_lshl_add_u32 v15, v15, 4, v14')
    b.e('s_mul_i32 s46, s53, 6144')
    b.e('s_add_u32 s46, s46, 16384')
    b.e('v_lshl_add_u32 v5, v11, 10, v15')
    b.e(f'v_add_u32 v{VXR}, s46, v5')
    b.e(f'v_add_u32 v{VXR+1}, {2*SLOT}, v{VXR}')
    b.e('v_lshl_add_u32 v15, v11, 11, v15')
    b.e('v_lshl_add_u32 v14, v11, 11, v14')
    b.e('s_lshl_b32 s47, s54, 13')
    b.e(f'v_add_u32 v{VK}, s47, v15')
    b.e(f'v_add_u32 v{VK}, {slot(0)}, v{VK}')
    b.e('s_mul_i32 s46, s53, 12288')
    b.e(f's_add_u32 s46, s46, {QB}')
    b.e(f'v_add_u32 v{VQR}, s46, v15')
    b.e('v_xor_b32 v15, v13, v9')
    b.e('v_lshl_add_u32 v15, v15, 4, v14')
    b.e('v_lshl_add_u32 v15, v8, 3, v15')
    b.e('s_lshl_b32 s45, s54, 10')
    b.e('s_add_u32 s46, s46, s45')
    b.e(f'v_add_u32 v{VQE}, s46, v15')
    b.e(f'v_xor_b32 v{VQO}, 32, v{VQE}')
    b.e('v_add_u32 v5, 1, v10')
    b.e('v_bfe_u32 v11, v5, 1, 1')
    b.e('v_and_b32 v12, 1, v5')
    b.e('v_lshl_add_u32 v13, v12, 2, v7')
    b.e('v_lshlrev_b32 v13, 6, v13')
    b.e('v_lshl_add_u32 v13, v12, 5, v13')
    b.e('v_lshl_add_u32 v13, v3, 3, v13')
    b.e('v_lshl_add_u32 v13, v11, 11, v13')
    b.e(f's_add_u32 s47, s47, {slot(2)}')
    b.e(f'v_add_u32 v{VVE}, s47, v13')
    b.e(f'v_xor_b32 v{VVO}, 32, v{VVE}')
    b.e(f'v_lshlrev_b32 v{VL16}, 4, v0')
    b.e(f'v_add_u32 v{VKW}, s52, v{VL16}')
    b.e(f'v_add_u32 v{VKW+1}, 65536, v{VKW}')
    b.e(f'v_add_u32 v{VKW+2}, 131072, v{VKW}')
    b.e(f's_mov_b32 s48, {hex(f2u(SCALE))}')
    b.e(f's_mov_b32 s50, {(2*CH - LDS_TOT) & 0xffffffff}')
    b.e(f's_mov_b32 s51, {2*CH}')
    b.e(f's_mov_b32 s46, {slot(2)}')
    def fA(D, h, tt): return FS + 56 * (D % 2) + 28 * h + 4 * tt
    def fB(D, h, jt): return FS + 56 * (D % 2) + 28 * h + 16 + 4 * jt
    def reads(D):
        sl = ((D + 3) % 4); hi = sl // 2; o = (sl % 2) * SLOT
        r = []
        for h in range(2):
            for jt in range(3):
                r.append(E(f'ds_read_b128 {q4(fB(D,h,jt))}, v{VXR+hi} offset:{o + jt*2048 + h*512}', ('f', D)))
            for tt in range(4):
                for u in range(2):
                    r.append(E(f'ds_read_b64_tr_b16 {q2(fA(D,h,tt)+2*u)}, v{(VAO if tt%2 else VAE)+hi} offset:{o + u*8192 + h*1024 + (tt//2)*512}', ('f', D)))
        return r
    zero = [E(f'v_mov_b32 v{i}, 0') for i in range(48, 96)] + [E(f'v_mov_b32 v{LS+i}, 0') for i in range(3)]
    b.wait_vm(('q', 0))
    b.e('s_barrier')
    stamp(b, 1)
    run(b, reads(0))
    qdma(b, 2)
    issue = {0: [3, 4], 1: [5], 2: [6], 3: [7], 4: [8]}
    kvi = {5: [0], 6: [1, 2], 7: [3], 8: [4]}
    kvr = {}; kvw = {}
    if KVREG == 2:
        kvr = {3: [0], 4: [1], 5: [2]}; kvw = {7: [0, 1, 2]}; kvi = {6: [3], 7: [4], 8: [5]}
    if KVREG == 3:
        kvr = {4: [0], 5: [1]}; kvw = {7: [0, 1]}; kvi = {6: [2, 3], 7: [4], 8: [5]}
    if KVREG == 1:
        kvi = {}
        kvr = {KV1 + i: [i] for i in range(6)} if KV1 + 5 <= 6 else {2: [0], 3: [1], 4: [2], 5: [3], 6: [4, 5]}
        kvr[7] = [6]; kvr[8] = [7]
        kvw = {6: [0, 1, 2, 3], 7: [4, 5]}
    for D in range(9):
        b.e('s_waitcnt lgkmcnt(0)')
        if D + 1 < 9: b.wait_vm(('q', D + 1))
        b.e('s_barrier')
        dm = [(lambda b, x=x: qdma(b, x)) for x in issue.get(D, [])] + [(lambda b, x=x: kvpair_static(b, x)) for x in kvi.get(D, [])]
        if D == 5: dm.insert(0, lambda b: epoch_load(b, 222))
        dm += [(lambda b, x=x: kv_to_regs(b, x)) for x in kvr.get(D, [])]
        wr = sum((kv_to_lds(x) for x in kvw.get(D, [])), [])
        if KVREG >= 2: zs = zero[24 + 5 * D:29 + 5 * D] if D < 6 else {7: zero[:24]}.get(D, [])
        elif KVREG: zs = {7: zero[:32] + zero[48:], 8: zero[32:48]}.get(D, [])
        else: zs = zero[7 * D:7 * D + 7]
        mf = []
        if D < 8:
            for h in range(2):
                for tt in range(4):
                    for jt in range(3):
                        d = q4(acc(tt, jt))
                        mf.append(E(f'{MF} {d}, {q4(fA(D,h,tt))}, {q4(fB(D,h,jt))}, {"0" if D == 0 and h == 0 else d}'))
            rd = reads(D + 1)
            fill = []
            QS = int(OPT.get('qs', 1))
            if QS:
                dm = sum((qdma_parts(x) for x in issue.get(D, [])), []) + dm[len(issue.get(D, [])):]
                step = max(1, len(rd) // max(1, len(dm)))
                lastkv = [dm.pop()] if (KVREG >= 2 and D in (3, 4) and D in kvr) else []
                step = max(1, (len(rd) - 6 * len(lastkv)) // max(1, len(dm)))
                for k, x in enumerate(rd):
                    fill.append(x)
                    if dm and k % step == step - 1: fill.append(dm.pop(0))
                fill += dm + lastkv; dm = []
            for k, x in enumerate(rd if not QS else []):
                fill.append(x)
                if dm and k % 6 == 1: fill.append(dm.pop(0))
            assert not dm
            run(b, interleave(mf, wr + fill + zs, end=int(OPT.get('qe', 21)) + (2 if len(zs) > 8 else 0)))
        else:
            tiles = [(tt, jt) for tt in range(4) for jt in range(3)]
            def conv(tt, jt):
                a = acc(tt, jt)
                return [E(f'v_mul_f32 v{a+i}, s48, v{a+i}') for i in range(4)] + [
                    E(f'v_cvt_pk_bf16_f32 v{a}, v{a}, v{a+1}'), E(f'v_cvt_pk_bf16_f32 v{a+1}, v{a+2}, v{a+3}'),
                    E(f'ds_write_b64 v{VQO if tt%2 else VQE}, {q2(a)} offset:{jt*4096 + (tt//2)*512}', ('qw',))]
            LAG = 3
            run(b, dm)
            run(b, zs)
            for k, (tt, jt) in enumerate(tiles):
                d = q4(acc(tt, jt))
                cv = conv(*tiles[k - LAG]) if k >= LAG else []
                if k == LAG: b.e('s_nop 2')
                b.e(f'{MF} {d}, {q4(fA(D,0,tt))}, {q4(fB(D,0,jt))}, {d}')
                run(b, cv[:3])
                b.e(f'{MF} {d}, {q4(fA(D,1,tt))}, {q4(fB(D,1,jt))}, {d}')
                run(b, cv[3:])
            stamp(b, 2)
            for k in range(12 - LAG, 12):
                if k == 11: b.e('s_nop 0')
                run(b, conv(*tiles[k]))
    b.e('s_waitcnt lgkmcnt(0)')
    b.wait_vm(('kv', 1))
    b.wait_vm(('ep',))
    epoch_tags(b, 222)
    b.e('s_barrier')
    if not KVREG: kvpair_static(b, 5)
    for s in range(4):
        for jt in range(3):
            b.e(f'ds_read_b128 {q4(qf(s,jt))}, v{VQR} offset:{jt*4096 + (s//2)*1024 + (s%2)*512}', ('qr', s))
    return b

def kread(b, f):
    kt, s = f // 4, f % 4
    b.e(f'ds_read_b128 {q4(KR+4*(f%4))}, v{VK} offset:{kt*4096 + (s//2)*1024 + (s%2)*512}', ('k', f))
def vread(b, t):
    tau = t // 2
    a = VVO if t % 2 else VVE
    for u in range(2):
        b.e(f'ds_read_b64_tr_b16 {q2(VR+4*(t%4)+2*u)}, v{a} offset:{u*4096 + (tau//2)*1024 + (tau%2)*512}', ('v', t))
def kadv(b, first=False):
    if first:
        b.e(f'v_add_u32 v{VK}, {CH}, v{VK}')
        b.e(f's_mov_b32 s45, {slot(1)}')
        return
    b.e(f's_cmp_ge_u32 s45, {LDS_TOT - 2*CH}')
    b.e(f's_cselect_b32 s47, s50, s51')
    b.e(f's_add_u32 s45, s45, s47')
    b.e(f'v_add_u32 v{VK}, s47, v{VK}')
def vadv(b):
    b.e(f's_cmp_ge_u32 s46, {LDS_TOT - 2*CH}')
    b.e(f's_cselect_b32 s47, s50, s51')
    b.e(f's_add_u32 s46, s46, s47')
    b.e(f'v_add_u32 v{VVE}, s47, v{VVE}')
    b.e(f'v_add_u32 v{VVO}, s47, v{VVO}')


def dma_k(b, part=None):
    b.e('s_mov_b32 m0, s57')
    b.e(f's_cmp_ge_u32 s57, s61')
    b.e('s_cselect_b32 s62, s50, s51')
    so = 's59'
    if KROT:
        b.e('s_add_u32 s56, s7, s59'); b.e('s_and_b32 s56, s56, 0x3ffff')
        b.e('s_cmp_lt_u32 s59, 0x40000'); b.e('s_cselect_b32 s56, s56, s59'); so = 's56'
    b.e(f'buffer_load_dwordx4 v{VKV}, {srd(S_K)}, {so} offen {KVPOL} lds', ('kd',))
    if SMOOTH: return
    dma2_k(b)
def dma2_k(b):
    so = 's56' if KROT else 's59'
    b.e(f'buffer_load_dwordx4 v{VKV}, {srd(S_K)}, {so} offen offset:2048 {KVPOL} lds', ('kd',))
    b.e('s_add_u32 s57, s57, s62')
    b.e(f's_add_u32 s59, s59, {CH}')
def dma_v(b, part=None):
    b.e('s_mov_b32 m0, s58')
    b.e(f's_cmp_ge_u32 s58, s61')
    b.e('s_cselect_b32 s62, s50, s51')
    so = 's60'
    if KROT:
        b.e('s_add_u32 s56, s7, s60'); b.e('s_and_b32 s56, s56, 0x3ffff')
        b.e('s_cmp_lt_u32 s60, 0x40000'); b.e('s_cselect_b32 s56, s56, s60'); so = 's56'
    b.e(f'buffer_load_dwordx4 v{VKV}, {srd(S_V)}, {so} offen {KVPOL} lds', ('vd',))
    if SMOOTH: return
    dma2_v(b)
def dma2_v(b):
    so = 's56' if KROT else 's60'
    b.e(f'buffer_load_dwordx4 v{VKV}, {srd(S_V)}, {so} offen offset:2048 {KVPOL} lds', ('vd',))
    b.e('s_add_u32 s58, s58, s62')
    b.e(f's_add_u32 s60, s60, {CH}')

PS = TMP + 8

def guarded(fn, T):
    def g(b):
        if T is None: return fn(b)
        role.n += 1; l = f'SK{role.n}'
        b.e(f's_cmp_eq_u32 s44, {T}')
        b.e(f's_cbranch_scc1 {l}')
        fn(b)
        b.e(f'{l}:')
    return g

def qk_backbone(S, cinit, nextV=True, first=False, qwait=False, dma=None):
    bb = []
    for f in range(8):
        kt, s = f // 4, f % 4
        for jt in range(3):
            def slot(b, f=f, kt=kt, s=s, jt=jt):
                if jt == 0:
                    if qwait and f < 4: b.wait_lgkm(('qr', s))
                    if not PAIRW: b.wait_lgkm(('k', f))
                    elif PAIRW == 2 and f == 0: b.wait_lgkm(('k', 3))
                    elif f % 2 == 0: b.wait_lgkm(('k', f + 1)); b.wait_lgkm(('k', f))
                d = q4(st(S, kt, jt))
                c = d if s else (q4(NEGM + 4 * jt) if cinit == 'negm' else '0')
                b.e(f'{MF} {d}, {q4(KR+4*(f%4))}, {q4(qf(s,jt))}, {c}')
                if jt == 2:
                    if f < 4: kread(b, f + 4)
                    if f == 3: kadv(b, first)
                    if f >= 4:
                        if nextV == 'K': kread(b, f - 4)
                        elif nextV: vread(b, f - 4)
                if POS and dma:
                    if jt == 1:
                        for p, fn in zip(POS[2:], (dma_k, dma2_k)):
                            if p == 8 + f: fn(b)
                    return
                if dma and not NODMA and not BOTH and f == int(OPT.get('kat', 0)) and jt == 1: dma(b)
                if SMOOTH and dma and not NODMA and f == int(OPT.get('kat', 0)) + 4 and jt == 1: dma2_k(b)
            bb.append(slot)
    return bb

def pv_backbone(P, nextK=True, dma=None, adv=True):
    first_guard = (P == SA and LEAD == 6)
    bb = []
    for t in range(8):
        for jt in range(3):
            def slot(b, t=t, jt=jt):
                if jt == 0:
                    if not PAIRW: b.wait_lgkm(('v', t))
                    elif PAIRW == 2 and t == 0: b.wait_lgkm(('v', 3))
                    elif t % 2 == 0: b.wait_lgkm(('v', t + 1)); b.wait_lgkm(('v', t))
                d = q4(acc(t, jt))
                b.e(f'{MF} {d}, {q4(VR+4*(t%4))}, {q4(st(P,0,jt))}, {d}')
                if jt == 2:
                    if t < 4: vread(b, t + 4)
                    if t == 3 and adv: vadv(b)
                    if t >= 4 and nextK: kread(b, t - 4)
                if POS and nextK:
                    if jt == 1:
                        for p, fn in zip(POS, (dma, guarded(dma2_v, 0) if first_guard else dma2_v, dma_k, dma2_k)):
                            if p == t: fn(b)
                    return
                if dma and not NODMA and t == (int(OPT.get('vat', 0)) if nextK else 0) and jt == 1: dma(b)
                if SMOOTH and nextK and dma and not NODMA and t == int(OPT.get('vat', 0)) + 4 and jt == 1: (guarded(dma2_v, 0) if first_guard else dma2_v)(b)
                if BOTH and nextK and not NODMA and t == BOTH and jt == 1: dma_k(b)
            bb.append(slot)
    return bb

def sregs(S, jt): return [st(S, 0, jt) + i for i in range(4)] + [st(S, 1, jt) + i for i in range(4)]

def sm_fillers(S):
    fl = []
    for kt in range(2):
        for jt in range(3):
            r = sregs(S, jt)
            o = 4 * kt
            fl.append(E(f'v_exp_f32 v{r[o]}, v{r[o]}'))
            fl.append(E(f'v_exp_f32 v{r[o+1]}, v{r[o+1]}'))
            if kt: fl.append(E(f'v_add_f32 v{PS+jt}, v{PS+jt}, v{r[o]}'))
            fl.append(E(f'v_exp_f32 v{r[o+2]}, v{r[o+2]}'))
            if kt: fl.append(E(f'v_add_f32 v{PS+jt}, v{PS+jt}, v{r[o+1]}'))
            else: fl.append(E(f'v_add_f32 v{PS+jt}, v{r[0]}, v{r[1]}'))
            fl.append(E(f'v_exp_f32 v{r[o+3]}, v{r[o+3]}'))
            fl.append(E(f'v_add_f32 v{PS+jt}, v{PS+jt}, v{r[o+2]}'))
            fl.append(E(f'v_cvt_pk_bf16_f32 v{r[2*kt]}, v{r[o]}, v{r[o+1]}'))
            fl.append(E(f'v_add_f32 v{PS+jt}, v{PS+jt}, v{r[o+3]}'))
            fl.append(E(f'v_cvt_pk_bf16_f32 v{r[2*kt+1]}, v{r[o+2]}, v{r[o+3]}'))
    return fl

def chk_fillers():
    return [E(f'v_max3_f32 v{TMP}, v{PS}, v{PS+1}, v{PS+2}'), E(f'v_cmp_nle_f32 vcc, v{TMP}, v{TMP+11}')]
def ladd_fillers():
    return [E(f'v_add_f32 v{LS+jt}, v{LS+jt}, v{PS+jt}') for jt in range(3)]

def xreduce3(regs, tmps, op):
    fl = []
    for sw in ('v_permlane32_swap_b32', 'v_permlane16_swap_b32'):
        for r, t in zip(regs, tmps): fl.append(E(f'v_mov_b32 v{t}, v{r}'))
        for r, t in zip(regs, tmps): fl.append(E(f'{sw} v{r}, v{t}'))
        for r, t in zip(regs, tmps): fl.append(E(f'{op} v{r}, v{r}, v{t}'))
    return fl

MX = [TMP + 1, TMP + 2, TMP + 3]; MT = [TMP + 4, TMP + 5, TMP + 6]
def rowmax3(S):
    fl = []
    R = [sregs(S, jt) for jt in range(3)]
    for jt in range(3): fl.append(E(f'v_max3_f32 v{MX[jt]}, v{R[jt][0]}, v{R[jt][1]}, v{R[jt][2]}'))
    for jt in range(3): fl.append(E(f'v_max3_f32 v{MX[jt]}, v{MX[jt]}, v{R[jt][3]}, v{R[jt][4]}'))
    for jt in range(3): fl.append(E(f'v_max3_f32 v{MX[jt]}, v{MX[jt]}, v{R[jt][5]}, v{R[jt][6]}'))
    for jt in range(3): fl.append(E(f'v_max_f32 v{MX[jt]}, v{MX[jt]}, v{R[jt][7]}'))
    return fl + xreduce3(MX, MT, 'v_max_f32')

def rare_path(ctx, name, Y, X, back):
    snap = ctx.snap()
    r = Block(ctx, name + 'r')
    r.e(f'{name}_RARE:')
    r.e(f's_cmp_ge_u32 s45, {back*CH}')
    r.e(f's_cselect_b32 s47, 0, {LDS_TOT}')
    r.e(f's_sub_u32 s47, s47, {back*CH}')
    r.e(f'v_add_u32 v{TMP+7}, s47, v{VK}')
    for kt in range(2):
        for s in range(4):
            r.e(f'ds_read_b128 {q4(KR+4*s)}, v{TMP+7} offset:{kt*4096 + (s//2)*1024 + (s%2)*512}', ('rk',))
        r.e('s_waitcnt lgkmcnt(0)')
        for s in range(4):
            for jt in range(3):
                d = q4(st(Y, kt, jt))
                r.e(f'{MF} {d}, {q4(KR+4*s)}, {q4(qf(s,jt))}, {d if s else q4(NEGM+4*jt)}')
    r.e('s_nop 7')
    run(r, rowmax3(Y))
    for jt in range(3): r.e(f'v_max_f32 v{MX[jt]}, 0, v{MX[jt]}')
    for jt in range(3): r.e(f'v_exp_f32 v{MT[jt]}, -v{MX[jt]}')
    for jt in range(3):
        for q in sregs(Y, jt) + (sregs(X, jt) if X else []) + [NEGM + 4 * jt + i for i in range(4)]:
            r.e(f'v_sub_f32 v{q}, v{q}, v{MX[jt]}')
        r.e(f'v_mul_f32 v{LS+jt}, v{LS+jt}, v{MT[jt]}')
        for t in range(8):
            for i in range(4): r.e(f'v_mul_f32 v{acc(t,jt)+i}, v{acc(t,jt)+i}, v{MT[jt]}')
    run(r, sm_fillers(Y))
    r.e('s_nop 1')
    r.e(f's_branch {name}_JOIN')
    ctx.restore(snap)
    return r

def k1_att_prologue(ctx):
    b = Block(ctx, 'att_pro')
    for f in range(4): kread(b, f)
    nk, nv = {0: (7, 8), 1: (11, 10), 2: (9, 8), 3: (9, 8)}[KVREG]
    if LEAD == 8: nk, nv = 9, 8
    b.e(f's_add_u32 s57, s52, {slot(nk)}')
    b.e(f's_add_u32 s58, s52, {slot(nv)}')
    b.e(f's_mov_b32 s59, {chunk_of(nk)[1]*CH}')
    b.e(f's_mov_b32 s60, {chunk_of(nv)[1]*CH}')
    b.e(f's_add_u32 s61, s52, {LDS_TOT - 2*CH}')
    b.e(f'v_mov_b32 v{TMP+11}, {hex(f2u(THR))}')
    if FUSED and WARM:
        b.e('s_lshr_b32 s55, s41, 3'); b.e('s_mul_i32 s55, s55, 1179648')
        b.e('s_and_b32 s56, s41, 3'); b.e('s_mul_i32 s62, s56, 288'); b.e('s_add_u32 s55, s55, s62')
        b.e('s_and_b32 s62, s41, 1'); b.e('s_lshl_b32 s62, s62, 5'); b.e('s_sub_u32 s55, s55, s62')
        b.e('s_lshl_b32 s56, s56, 1'); b.e('s_and_b32 s62, s41, 4'); b.e('s_add_u32 s56, s56, s62')
        b.e('s_and_b32 s62, s40, 3'); b.e('s_add_u32 s56, s56, s62'); b.e('s_and_b32 s56, s56, 7')
        b.e('s_mul_i32 s56, s56, 147456'); b.e('s_add_u32 s55, s55, s56')
        b.e('s_mul_i32 s56, s42, 18432'); b.e('s_add_u32 s55, s55, s56')
        b.e('s_add_u32 s28, s12, s55'); b.e('s_addc_u32 s29, s13, 0')
        b.e('s_sub_u32 s30, 4718592, s55'); b.e('s_mov_b32 s31, 0x20000')
    zero = [E(f'v_mov_b32 v{ACC+i}, 0') for i in range(48)]
    run(b, interleave(qk_backbone(SA, '0', nextV='K', first=True, qwait=True), zero))
    b.wait_vm(('kv', 2))
    b.e('s_barrier')
    if WARM >= 2:
        b.e(f'v_lshrrev_b32 v{TMP+7}, 6, v{VL16}'); b.e(f'v_mul_u32_u24 v{TMP+7}, 1152, v{TMP+7}')
        b.e(f'v_and_b32 v{TMP}, 48, v{VL16}'); b.e(f'v_lshlrev_b32 v{TMP}, 3, v{TMP}'); b.e(f'v_min_u32 v{TMP}, 316, v{TMP}')
        b.e(f'v_add_u32 v{TMP+7}, v{TMP+7}, v{TMP}')
        b.e(f'buffer_load_dword v{TMP}, v{TMP+7}, s[28:31], 0 offen', ('warm0',))
    if KVREG >= 2:
        kvpair_static(b, 6)
        kvpair_static(b, 7)
    elif KVREG:
        kvpair_static(b, 8)
        kvpair_static(b, 9)
        run(b, kv_to_lds(7)[:1] + kv_to_lds(7)[1:] + kv_to_lds(6))
    else:
        kvpair_static(b, 6)
        if LEAD == 8: kvpair_static(b, 7)
    if TOUCH:
        b.e(f'v_lshlrev_b32 v{TMP+7}, {12 if TOUCH == 1 else 17}, v{VL16}')
        b.e('s_mov_b32 s100, 0x20000')
        for base, size, off in ((12, 4718592, 0), (18, 0x1000000, 0), (18, 0x1000000, 0x400000), (18, 0x1000000, 0x800000), (18, 0x3000000, 0x2000000), (18, 0x3000000, 0x2400000), (18, 0x3000000, 0x2800000), (18, 0x3000000, 0x2c00000), (14, 1769472, 0)):
            b.e(f's_mov_b32 s28, s{base}'); b.e(f's_mov_b32 s29, s{base+1}'); b.e(f's_mov_b32 s30, {size}'); b.e('s_mov_b32 s31, 0x20000')
            b.e(f's_mov_b32 s56, {off}')
            b.e(f'buffer_load_dword v{TMP}, v{TMP+7}, s[28:31], s56 offen', ('touch',))
        b.e('s_waitcnt vmcnt(0)')
    run(b, rowmax3(SA))
    for jt in range(3):
        for i in range(4): b.e(f'v_sub_f32 v{NEGM+4*jt+i}, 0, v{MX[jt]}')
    sub = [E(f'v_sub_f32 v{r}, v{r}, v{MX[jt]}') for kt in range(2) for jt in range(3) for r in sregs(SA, jt)[4*kt:4*kt+4]]
    run(b, interleave(qk_backbone(SB, 'negm', nextV=True), sub + sm_fillers(SA)))
    b.e('s_mov_b32 s44, 0')
    if PRIO:
        b.e('s_cmp_ge_u32 s42, 4'); b.e('s_cbranch_scc0 NOPRIO'); b.e('s_setprio 1'); b.e('NOPRIO:')
    stamp(b, 3)
    return b

def winter(backbone, fillers, start, end):
    if not int(OPT.get('cw', 0)): return interleave(backbone, fillers, start, end)
    class Probe:
        def e(self, t, tag=None): self.t = t
    w = []
    for f in fillers:
        p = Probe(); p.t = ''
        try: f(p)
        except Exception: pass
        w.append(2 if p.t.startswith('v_exp') else 1)
    tot = sum(w); n = len(backbone); span = end - start
    out = []; k = 0; acc_ = 0
    for i in range(n):
        out.append(backbone[i])
        if start <= i < end:
            tgt = tot * (i - start + 1) / span
            while k < len(fillers) and acc_ + w[k] / 2 <= tgt:
                out.append(fillers[k]); acc_ += w[k]; k += 1
    return out + fillers[k:]

def pv_phase(ctx, name, P, S, nextK=True, head=None, dma=None, vmw=4, bar=True, extra=(), split=None):
    a = Block(ctx, name)
    if head: head(a)
    if bar:
        a.e(f's_waitcnt vmcnt({(int(OPT.get("vmb", 2)) if NOBARQK else vmw) + 2 * (LEAD - 6)})')
        a.e('s_barrier')
    fl = ladd_fillers() + (sm_fillers(S)[:split or SM_SPLIT] if S else []) + list(extra)
    run(a, winter(pv_backbone(P, nextK, dma, adv=bar), fl, int(OPT.get('pvs', 2)), 24))
    return a

def qk_phase(ctx, name, D, S, dma):
    b = Block(ctx, name)
    if not NOBARQK:
        b.e('s_waitcnt vmcnt(4)')
        b.e('s_barrier')
    run(b, winter(qk_backbone(D, 'negm', dma=dma), sm_fillers(S)[SM_SPLIT:] + chk_fillers(), 0, 23))
    b.e(f's_cbranch_vccnz {name}_RARE')
    r = rare_path(ctx, name, S, D, 4)
    j = Block(ctx, name + 'j'); j.e(f'{name}_JOIN:')
    return b, r, j

def pol_store(b, text, tag):
    b.e(text + ' sc1', tag)

EXB = 4 * CH
MLB = 24576
XA = SA + 20
def vread_as(b, t, k):
    tau = t // 2
    a = VVO if t % 2 else VVE
    for u in range(2):
        b.e(f'ds_read_b64_tr_b16 {q2(VR+4*(k%4)+2*u)}, v{a} offset:{u*4096 + (tau//2)*1024 + (tau%2)*512}', ('v', k))
def order_of(r): return [4, 5, 6, 7, 0, 1, 2, 3] if r == A else list(range(8))

def last_pv(ctx):
    b = Block(ctx, 'L3')
    b.e('L2_JOIN:')
    setup = tail_setup()
    red = ladd_fillers() + xreduce3([LS, LS + 1, LS + 2], MT, 'v_add_f32')
    for r in (A, B):
        with role(b, r):
            od = order_of(r)
            bb = []
            for k, t in enumerate(od):
                for jt in range(3):
                    def slot_(b, k=k, t=t, jt=jt):
                        if jt == 0 and k % 2 == 0: b.wait_lgkm(('v', k + 1))
                        d = q4(acc(t, jt))
                        b.e(f'{MF} {d}, {q4(VR+4*(k%4))}, {q4(st(SB,0,jt))}, {d}')
                        if jt == 2 and k < 4: vread_as(b, od[k + 4], k + 4)
                    bb.append(slot_)
            snd = [E(f'ds_write_b128 v{XA}, {q4(acc(t, jt))} offset:{(3*i+jt)*1024}', ('x',)) for i, t in enumerate(od[:4]) for jt in range(3)]
            run(b, interleave(bb[:12], red + setup[:10], start=1))
            mixed = []
            for k in range(max(len(snd), len(setup) - 10)):
                if 10 + k < len(setup): mixed.append(setup[10 + k])
                if k < len(snd): mixed.append(snd[k])
            run(b, interleave(bb[12:], mixed, start=0))
    return b

def k1_epilogue(ctx):
    b = Block(ctx, 'epi')
    stamp(b, 4)
    if STAMP and OPT.get('rt4'): b.e('s_memrealtime s[84:85]')
    b.e('s_xor_b32 s46, s42, 4')
    b.e(f'v_lshrrev_b32 v{VVO}, 1, v{VL16}')
    b.e('s_mul_i32 s43, s42, 1536')
    b.e('s_mul_i32 s45, s46, 1536')
    b.e(f's_add_u32 s43, s43, {MLB}')
    b.e(f's_add_u32 s45, s45, {MLB}')
    b.e(f'v_add_u32 v{VKV}, s43, v{VVO}')
    b.e(f'v_add_u32 v{VVO}, s45, v{VVO}')
    for jt in range(3):
        b.e(f'v_mov_b32 v{NEGM+4*jt+1}, v{LS+jt}')
    for jt in range(3):
        b.e(f'ds_write_b64 v{VKV}, {q2(NEGM+4*jt)} offset:{jt*512}', ('x',))
    b.e('s_and_b32 s43, s42, 3')
    b.e('s_mul_i32 s43, s43, 393216')
    b.e('s_lshl_b32 s45, s41, 12')
    b.e('s_add_u32 s43, s43, s45')
    b.e('s_lshl_b32 s45, s54, 11')
    b.e('s_add_u32 s43, s43, s45')
    b.e('s_add_u32 s45, s43, 131072')
    b.e('s_add_u32 s46, s43, 262144')
    so = ['s43', 's45', 's46']
    b.e('s_waitcnt lgkmcnt(0)')
    b.e('s_barrier')
    RX = QF
    ML = SA
    for jt in range(3):
        b.e(f'ds_read_b64 {q2(ML+2*jt)}, v{VVO} offset:{jt*512}', ('ml',))
    for i in range(12):
        b.e(f'ds_read_b128 {q4(RX+4*i)}, v{XA+1} offset:{i*1024}', ('rx', i))
    b.wait_lgkm(('ml',))
    C = SA + 8
    T = [TMP, TMP + 4, TMP + 8]
    def each(f):
        for jt in range(3): b.e(f(jt, NEGM + 4 * jt, NEGM + 4 * jt + 1, ML + 2 * jt, ML + 2 * jt + 1, T[jt]))
    each(lambda jt, no, lo, np_, lp, t: f'v_min_f32 v{t}, v{no}, v{np_}')
    each(lambda jt, no, lo, np_, lp, t: f'v_sub_f32 v{t+1}, v{t}, v{no}')
    each(lambda jt, no, lo, np_, lp, t: f'v_sub_f32 v{t+2}, v{t}, v{np_}')
    each(lambda jt, no, lo, np_, lp, t: f'v_exp_f32 v{t+1}, v{t+1}')
    each(lambda jt, no, lo, np_, lp, t: f'v_exp_f32 v{t+2}, v{t+2}')
    each(lambda jt, no, lo, np_, lp, t: f'v_mul_f32 v{t+3}, v{t+1}, v{lo}')
    each(lambda jt, no, lo, np_, lp, t: f'v_fmac_f32 v{t+3}, v{t+2}, v{lp}')
    each(lambda jt, no, lo, np_, lp, t: f'v_rcp_f32 v{t+3}, v{t+3}')
    b.e('s_nop 0')
    for x, src in ((0, 1), (1, 1), (2, 2), (3, 2)):
        each(lambda jt, no, lo, np_, lp, t: f'v_mul_f32 v{C+4*jt+x}, v{t+src}, v{t+3}')
    OUT = SB
    snap = ctx.snap()
    for r in (A, B):
        with role(b, r):
            keep = range(0, 4) if r == A else range(4, 8)
            for sp in range(2):
                for jt in range(3):
                    o = OUT + 4 * (3 * sp + jt)
                    for h in range(2):
                        i = 2 * sp + h
                        a = acc(keep[i], jt); x = RX + 4 * (3 * i + jt)
                        b.wait_lgkm(('rx', 3 * i + jt))
                        b.e(f'v_pk_mul_f32 {q2(a)}, {q2(a)}, {q2(C+4*jt)}')
                        b.e(f'v_pk_mul_f32 {q2(a+2)}, {q2(a+2)}, {q2(C+4*jt)}')
                        b.e(f'v_pk_fma_f32 {q2(a)}, {q2(x)}, {q2(C+4*jt+2)}, {q2(a)}')
                        b.e(f'v_pk_fma_f32 {q2(a+2)}, {q2(x+2)}, {q2(C+4*jt+2)}, {q2(a+2)}')
                        b.e(f'v_cvt_pk_bf16_f32 v{o+2*h}, v{a}, v{a+1}')
                        b.e(f'v_cvt_pk_bf16_f32 v{o+2*h+1}, v{a+2}, v{a+3}')
                    pol_store(b, f'buffer_store_dwordx4 {q4(o)}, v{VL16}, {srd(S_O)}, {so[jt]} offen offset:{sp*1024}', ('o',))
    if FUSED:
        b.e('s_bfe_u32 s43, s42, 0x10001')
        b.e('s_cmp_eq_u32 s43, s49')
        b.e('s_cbranch_scc0 OWN_SKIP')
        b.e('s_and_b32 s43, s42, 1'); b.e('s_mul_i32 s43, s43, 6144')
        b.e(f's_mul_i32 s45, s54, {OS_}'); b.e('s_add_u32 s43, s43, s45')
        b.e(f'v_add_u32 v{VK}, s43, v{VL16}')
        for sp in range(2):
            for jt in range(3):
                b.e(f'ds_write_b128 v{VK}, {q4(OUT + 4 * (3 * sp + jt))} offset:{(2*jt+sp)*1024}', ('oo',))
        b.e('OWN_SKIP:')
    if not FUSED:
        if STAMP:
            b.e('s_waitcnt vmcnt(0)')
            stamp(b, 5)
            dump_stamps(b)
        b.e('K1_END:')
        b.e('s_endpgm')
    return b

def dump_stamps(b):
    b.e('s_memrealtime s[88:89]')
    b.e('s_waitcnt lgkmcnt(0)')
    if STAMP == 2:
        b.e(f's_cmp_eq_u32 s2, {int(OPT.get("dbgwg", 0))}'); b.e('s_cbranch_scc0 DBG_SKIP')
        b.e('s_cmp_eq_u32 s42, 2'); b.e('s_cbranch_scc0 DBG_SKIP')
        b.e('s_mov_b32 s56, s16'); b.e('s_mov_b32 s57, s17'); b.e('s_mov_b32 s58, 256'); b.e('s_mov_b32 s59, 0x20000')
        b.e('v_mov_b32 v1, 0')
        for i in range(1, 11):
            b.e(f's_sub_u32 s43, s{64+2*i}, s64'); b.e('v_mov_b32 v2, s43')
            b.e(f'buffer_store_dword v2, v1, s[56:59], 0 offen offset:{4*i}')
            b.e('s_waitcnt vmcnt(0)')
        b.e('s_sub_u32 s43, s88, s86'); b.e('v_mov_b32 v2, s43')
        b.e('buffer_store_dword v2, v1, s[56:59], 0 offen offset:44')
        b.e('s_waitcnt vmcnt(0)')
        b.e('DBG_SKIP:')
        return
    b.e('s_lshl_b32 s43, s2, 3'); b.e('s_add_u32 s43, s43, s42'); b.e('s_lshl_b32 s43, s43, 7')
    b.e('s_add_u32 s43, s43, 0x1000000')
    b.e('s_add_u32 s56, s18, s43'); b.e('s_addc_u32 s57, s19, 0'); b.e('s_mov_b32 s58, 128'); b.e('s_mov_b32 s59, 0x20000')
    b.e('v_mov_b32 v1, 0')
    for i in range(13):
        b.e(f'v_mov_b32 v2, s{64+2*i}'); b.e(f'v_mov_b32 v3, s{65+2*i}')
        b.e(f'buffer_store_dwordx2 v[2:3], v1, s[56:59], 0 offen offset:{8*i}')
        b.e('s_waitcnt vmcnt(0)')

def poll(b, name, load, notyet):
    b.e('s_mov_b32 s91, 0')
    b.e(f'{name}:')
    b.e(load)
    b.e('s_add_u32 s91, s91, 1')
    b.e('s_waitcnt vmcnt(0)')
    b.e(notyet)
    b.e('s_cmp_lt_u32 s91, 0x40000')
    b.e(f's_cbranch_vccz {name}_GO')
    b.e(f's_sleep {SLEEP}')
    b.e(f's_cbranch_scc1 {name}')
    b.e(f'{name}_GO:')

BIG, SML, LW, LO = (2, 3), (0, 1, 4, 5), (6,), (7,)
S_WO, S_OI, S_P, S_PI, S_OUT = 20, 24, 28, 32, 36
VAP = 192; VB = 197; VT = 198; VE = 202; GS = 208; XF = 248
WS_ = 20480; NW_ = 6; OS_ = 12288; NO_ = 3; WOB = NO_ * OS_

def tail_setup():
    P = []
    def piece(*lines): P.append(lambda b: [b.e(l) for l in lines])
    piece('s_lshr_b32 s47, s41, 3', 's_and_b32 s48, s41, 7')
    piece('s_lshr_b32 s49, s48, 2', 's_and_b32 s50, s48, 3')
    piece('s_and_b32 s51, s50, 1', 's_mul_i32 s55, s47, 1179648')
    piece('s_mul_i32 s61, s50, 288', 's_add_u32 s55, s55, s61')
    piece('s_lshl_b32 s61, s51, 5', 's_sub_u32 s55, s55, s61')
    piece('s_mul_i32 s61, s40, 1572864', 's_mul_i32 s100, s49, 786432')
    piece('s_add_u32 s61, s61, s100', 's_lshl_b32 s100, s47, 15')
    piece('s_add_u32 s61, s61, s100', f's_sub_u32 s{S_WO+2}, 4718592, s55')
    piece(f's_add_u32 s{S_WO}, s12, s55', f's_addc_u32 s{S_WO+1}, s13, 0')
    piece(f's_add_u32 s{S_OI}, s18, s61', f's_addc_u32 s{S_OI+1}, s19, 0')
    piece(f's_mov_b32 s{S_WO+3}, 0x20000', f's_mov_b32 s{S_OI+2}, {5*131072 + 32768}', f's_mov_b32 s{S_OI+3}, 0x20000')
    piece('s_lshl_b32 s52, s40, 3', 's_add_u32 s52, s52, s48')
    piece(f's_mul_i32 s52, s52, {16*INB}', f's_add_u32 s52, s52, {POFF}')
    piece(f's_mul_i32 s61, s47, {INB}', 's_add_u32 s61, s61, s52')
    piece(f's_add_u32 s{S_P}, s18, s61', f's_addc_u32 s{S_P+1}, s19, 0')
    piece(f's_mov_b32 s{S_P+2}, {13*INB}', f's_mov_b32 s{S_P+3}, 0x20000')
    piece(f's_mul_i32 s61, s47, {4*INB}', 's_add_u32 s61, s61, s52')
    piece(f's_add_u32 s{S_PI}, s18, s61', f's_addc_u32 s{S_PI+1}, s19, 0')
    piece(f's_mov_b32 s{S_PI+2}, {4*INB}', f's_mov_b32 s{S_PI+3}, 0x20000')
    piece('s_mul_i32 s52, s40, 192', 's_mul_i32 s61, s49, 96')
    piece('s_add_u32 s52, s52, s61', 's_lshl_b32 s61, s47, 2')
    piece('s_add_u32 s52, s52, s61', 's_mul_i32 s52, s52, 1152')
    piece('s_mul_i32 s61, s50, 288', 's_add_u32 s6, s52, s61')
    piece('s_lshr_b32 s100, s50, 1', 's_and_b32 s99, s90, 0xfffffc00')
    return P

def head_of(b, U):
    G = U // 2
    b.e(f's_add_u32 s55, s48, {G >> 1}'); b.e('s_and_b32 s55, s55, 3')
    b.e(f's_xor_b32 s61, s48, {(G & 1) << 2}'); b.e('s_and_b32 s61, s61, 4'); b.e('s_or_b32 s55, s55, s61')

def oproj(ctx):
    FB = 64
    b = Block(ctx, 'op_pre')
    stamp(b, 2, True)
    b.e(f'v_lshrrev_b32 v{VT+3}, 4, v{VL16}')
    T0 = 216
    v3, v4, v5, v6, v7 = (f'v{T0+i}' for i in range(5))
    VL = 224
    b.e(f'v_and_b32 {v3}, 3, v{VT+3}')
    with role(b, BIG + SML):
        b.e('s_and_b32 s43, s42, 1')
        b.e('s_cmp_lt_u32 s42, 2'); b.e('s_cselect_b32 s45, 5, 0')
        b.e('s_cmp_ge_u32 s42, 4'); b.e('s_cselect_b32 s45, 7, s45')
        b.e(f'v_lshrrev_b32 {v4}, 4, v{VT+3}'); b.e(f'v_bfe_u32 {v5}, v{VT+3}, 2, 4')
        b.e(f'v_and_b32 {v7}, 7, {v5}'); b.e(f'v_lshlrev_b32 {v7}, 6, {v7}'); b.e(f'v_lshlrev_b32 {v5}, 6, {v5}')
        b.e(f'v_and_b32 {v6}, 1, {v4}'); b.e(f'v_lshlrev_b32 {v6}, 5, {v6}'); b.e(f'v_lshl_add_u32 {v6}, {v3}, 3, {v6}')
        b.e(f'v_add_u32 {v5}, {v5}, {v6}'); b.e(f'v_add_u32 {v7}, {v7}, {v6}')
        b.e(f'v_lshrrev_b32 {v6}, 1, {v4}'); b.e(f'v_lshl_add_u32 {v7}, {v6}, 12, {v7}')
        b.e('s_add_u32 s101, s45, s51')
        for n in range(5):
            b.e(f's_add_u32 s52, s101, {n}')
            b.e('s_and_b32 s91, s52, 1'); b.e('s_lshl_b32 s91, s91, 5')
            b.e('s_lshr_b32 s52, s52, 1'); b.e('s_sub_u32 s52, s52, s100')
            b.e('s_and_b32 s54, s52, 1'); b.e('s_lshl_b32 s54, s54, 9')
            b.e('s_lshr_b32 s55, s52, 1'); b.e('s_lshl_b32 s55, s55, 13'); b.e('s_add_u32 s54, s54, s55')
            b.e('s_cmp_lt_u32 s52, 4'); b.e('s_cselect_b32 s54, s54, 16384'); b.e('s_cselect_b64 vcc, -1, 0')
            b.e(f's_add_u32 s54, s54, {WOB}')
            b.e(f'v_cndmask_b32 v{VAP+n}, {v5}, {v7}, vcc')
            b.e(f'v_xor_b32 v{VAP+n}, s91, v{VAP+n}'); b.e(f'v_add_u32 v{VAP+n}, s54, v{VAP+n}')
        b.e('s_mul_i32 s52, s43, 6144')
        b.e(f'v_add_u32 v{VB}, s52, v{VL16}')
        b.e(f'v_bfe_u32 {v6}, v{VT+3}, 2, 2'); b.e(f'v_mul_u32_u24 {v6}, {4*INB}, {v6}')
        b.e(f'v_lshl_add_u32 {v6}, {v4}, 6, {v6}'); b.e(f'v_lshl_add_u32 v{VT+2}, {v3}, 4, {v6}')
        b.e('s_mul_i32 s52, s43, 27'); b.e('s_add_u32 s52, s52, s45'); b.e('s_lshl_b32 s5, s52, 8')
        b.e('s_mul_i32 s52, s43, 9'); b.e('s_add_u32 s52, s52, s45'); b.e('s_lshl_b32 s4, s52, 9')
    VH = VL + 8
    with role(b, LW + LO):
        for V, full in ((VL, True), (VH, False)):
            if full:
                b.e(f'v_bfe_u32 {v4}, v{VT+3}, 2, 3'); b.e(f'v_lshrrev_b32 {v6}, 5, v{VT+3}')
                b.e(f'v_mul_u32_u24 {v5}, 1152, {v4}'); b.e(f'v_lshl_add_u32 {v5}, {v6}, 6, {v5}')
                b.e('s_lshl_b32 s52, s100, 6')
            else:
                b.e(f'v_lshrrev_b32 {v4}, 2, v{VT+3}'); b.e(f'v_mul_u32_u24 {v5}, 1152, {v4}')
                b.e('s_lshl_b32 s52, s100, 8'); b.e('s_sub_u32 s52, 256, s52')
            b.e(f'v_bfe_u32 {v4}, {v4}, 2, 1'); b.e(f'v_lshlrev_b32 {v4}, 1, {v4}'); b.e(f'v_xor_b32 {v4}, {v4}, {v3}')
            b.e(f'v_lshl_add_u32 {v5}, {v4}, 4, {v5}')
            b.e(f'v_add_u32 v{V}, s52, {v5}')
            for m in range(1, 4): b.e(f'v_add_u32 v{V+m}, {m*(18432-1024)}, v{V}')
    b.e(f'v_add_u32 v{VL+4}, {131072-2048}, v{VL16}')
    b.e(f'v_and_b32 v{VL+5}, 0x70, v{VL16}'); b.e(f'v_lshlrev_b32 v{VL+5}, 3, v{VL+5}')
    b.e('s_lshl_b32 s91, s42, 6')
    b.e(f'v_add_u32 v{VT}, s91, v{VT+3}')
    b.e(f'v_lshlrev_b32 v{VT}, 20, v{VT}')
    b.e(f'v_mov_b32 v{VT+1}, s97')
    b.e('s_waitcnt lgkmcnt(0)')
    b.wait_vm(('o',))
    b.e('s_barrier')
    FL = int(OPT.get('fl', 0))
    if FL == 0: b.e(f'buffer_store_dword v{VT+1}, v{VT}, {srd(S_F)}, s90 offen sc1', ('f1',))
    stamp(b, 5)
    b.e('s_cmp_eq_u32 s42, 6'); b.e('s_cbranch_scc1 OP_LW')
    b.e('s_cmp_eq_u32 s42, 7'); b.e('s_cbranch_scc1 OP_LO')
    b.e('s_bitcmp1_b32 12, s42'); b.e('s_cbranch_scc1 OP_BIG')

    def wo_off(x, U):
        head_of(x, U)
        x.e('s_mul_i32 s55, s55, 147456')
        if U % 2: x.e('s_add_u32 s55, s55, 73728')
    def wo_groups(x, groups):
        cur = None
        for U, ty in groups:
            if U != cur: wo_off(x, U); cur = U
            if len(ctx.c[ctx.active[0]].vm) > 59: x.e('s_waitcnt vmcnt(47)')
            x.e(f's_mov_b32 m0, {WOB + (U % NW_) * WS_ + ty * 4096}')
            x.e(f's_add_u32 s56, s55, {(ty % 2) * 9216 + (ty // 2) * 128 if ty < 4 else 0}')
            for m in range(4):
                x.e(f'buffer_load_dwordx4 v{(VL if ty < 4 else VH)+m}, {srd(S_WO)}, s56 offen offset:{m*1024} lds', ('w', U))
    def o_unit(x, U):
        head_of(x, U)
        if U % 2 == 0:
            role.n += 1; l = f'HP{role.n}'
            x.e('s_bitcmp1_b32 s3, s55')
            x.e(f's_cbranch_scc0 {l}_GO')
            for t in ['s_mov_b32 s91, 0', f'{l}:', f'buffer_load_dword v{VL+6}, v{VL+5}, {srd(S_F)}, s99 offen sc1', 's_add_u32 s91, s91, 1',
                      's_waitcnt vmcnt(0)', f'v_cmp_ne_u32 vcc, s97, v{VL+6}', 's_nop 0', 's_mov_b32 s3, vcc_lo', 's_bitcmp1_b32 s3, s55',
                      f's_cbranch_scc0 {l}_GO', f's_sleep {SLEEP}', 's_cmp_lt_u32 s91, 0x40000', f's_cbranch_scc1 {l}']:
                i = I(t); i.roles = (); x.append(i)
            x.e(f'{l}_GO:')
        x.e('s_lshl_b32 s55, s55, 12')
        if U % 2: x.e('s_add_u32 s55, s55, 2048')
        for g in range(3):
            x.e(f's_mov_b32 m0, {(U % NO_) * OS_ + g * 4096}')
            x.e(f's_add_u32 s56, s55, {g * 262144}')
            for m in range(4):
                x.e(f'buffer_load_dwordx4 v{VL16 if m < 2 else VL+4}, {srd(S_OI)}, s56 offen offset:{m*1024} lds', ('o2', U))
    def vwait(x, *tags):
        n = [ctx.count_after('vm', t) for t in tags]
        n = [k for k in n if k is not None]
        if n: x.e(f's_waitcnt vmcnt({min(min(n), 47)})')
    snap = ctx.snap()
    rest = [(U, ty) for U in range(6, 16) for ty in range(5)]
    PLAN = [int(x) for x in OPT.get('plan', '5,4,4,4,5,4,4,4,4,4,4,4').split(',')]
    assert sum(PLAN) == 50
    sched = []
    for k, n in enumerate(PLAN):
        g, rest = rest[:n], rest[n:]
        assert all(U - 7 <= k and U - 3 >= k for U, _ in g), (k, g)
        n6 = min(n, 4 if (k % 2 or k == 0) else 3)
        sched.append((g[:n6], g[n6:]))
    def loader(name, waves, me):
        lo = Block(ctx, name); ctx.active = list(waves)
        lo.e(f'{name}:')
        if me: lo.e('s_mov_b32 s3, 0xff')
        first = [(0, 0), (0, 1), (0, 2), (1, 0), (1, 1)] if me == 0 else [(0, 3), (0, 4), (1, 2), (1, 3), (1, 4)]
        wo_groups(lo, first)
        lo.e('s_waitcnt vmcnt(0)'); lo.e('s_barrier')
        if me == 0:
            wo_groups(lo, [(U, ty) for U in range(2, 6) for ty in range(4)])
        else:
            wo_groups(lo, [(2, 4), (3, 4)])
            stamp(lo, 3, True)
            o_unit(lo, 2)
            wo_groups(lo, [(4, 4), (5, 4)])
        vwait(lo, ('o2', 2), ('w', 2)); lo.e('s_barrier')
        if me: o_unit(lo, 3); o_unit(lo, 4)
        wo_groups(lo, sched[0][me])
        for U in range(2, 16):
            if U < 15: vwait(lo, ('o2', U + 1), ('w', U + 1))
            lo.e('s_barrier')
            if me and U + NO_ < 16: o_unit(lo, U + NO_)
            if U - 1 < len(sched): wo_groups(lo, sched[U - 1][me])
        lo.e('s_barrier')
        lo.e('s_branch OP_DONE')
        return lo
    lw = loader('OP_LW', LW, 0)
    lo = loader('OP_LO', LO, 1)

    OWN = 0
    def GEND(NT): return int(OPT.get('gend', 28)) if NT == 5 else int(OPT.get('gens', 10))
    def compute(name, waves, NT):
        ctx.restore(snap); ctx.active = list(waves)
        c = Block(ctx, name); lp = Block(ctx, name + 'l'); e = Block(ctx, name + 'e')
        c.e(f'{name}:')
        SZ = 4 * (NT + 3)
        def fA(U, k, n): return FB + 2 * SZ * (U % 2) + SZ * k + 4 * n
        def fB(U, k, j): return FB + 2 * SZ * (U % 2) + SZ * k + 4 * NT + 4 * j
        def rd(U):
            r = []
            for k in range(2):
                r += [E(f'ds_read_b128 {q4(fB(U,k,j))}, v{VB} offset:{(2*j+k)*1024}', ('f', U)) for j in range(3)]
                for n in range(NT):
                    r += [E(f'ds_read_b64_tr_b16 {q2(fA(U,k,n)+2*u)}, v{VAP+n} offset:{k*2048 + u*1024}', ('f', U)) for u in range(2)]
            return r
        def adv(b):
            b.e(f's_cmp_ge_u32 s46, {(NW_-1)*WS_}'); b.e(f's_cselect_b32 s52, s54, s53'); b.e('s_add_u32 s46, s46, s52')
            for n in range(NT): b.e(f'v_add_u32 v{VAP+n}, s52, v{VAP+n}')
            b.e(f's_cmp_ge_u32 s45, {(NO_-1)*OS_}'); b.e(f's_cselect_b32 s52, s101, s100'); b.e('s_add_u32 s45, s45, s52')
            b.e(f'v_add_u32 v{VB}, s52, v{VB}')
        def mmu(U, first=False):
            return [E(f'{MF} {q4(12*n+4*j)}, {q4(fA(U,k,n))}, {q4(fB(U,k,j))}, {"0" if first and k == 0 else q4(12*n+4*j)}')
                    for k in range(2) for n in range(NT) for j in range(3)]
        c.e('s_mov_b32 s46, 0'); c.e(f's_mov_b32 s53, {WS_}'); c.e(f's_mov_b32 s54, {(-(NW_-1)*WS_) & 0xffffffff}')
        c.e('s_mov_b32 s45, 0'); c.e(f's_mov_b32 s100, {OS_}'); c.e(f's_mov_b32 s101, {(-(NO_-1)*OS_) & 0xffffffff}')
        c.e('s_mov_b32 s44, 0')
        if OWARM:
            c.e(f'v_lshrrev_b32 v{GS}, 5, v{VT+3}'); c.e(f'v_lshlrev_b32 v{GS}, 17, v{GS}')
            c.e(f'v_and_b32 v{GS+1}, 31, v{VT+3}'); c.e(f'v_lshl_add_u32 v{GS}, v{GS+1}, 7, v{GS}')
            c.e('s_lshl_b32 s55, s42, 18'); c.e('s_lshl_b32 s61, s41, 12'); c.e('s_add_u32 s55, s55, s61')
            if OWARM == 2: c.e(f'buffer_load_dword v{XF+3}, v{GS}, {srd(S_O)}, s55 offen', ('ow',))
        if FL == 1 and NT == 2:
            c.e('s_nop 15'); c.e('s_nop 15'); c.e('s_nop 15'); c.e('s_nop 15'); c.e('s_nop 15'); c.e('s_nop 15')
            c.e(f'buffer_store_dword v{VT+1}, v{VT}, {srd(S_F)}, s90 offen sc1', ('f1',))
        c.e('s_barrier')
        stamp(c, 6)
        if FL == 2 and NT == 2: c.e(f'buffer_store_dword v{VT+1}, v{VT}, {srd(S_F)}, s90 offen sc1', ('f1',))
        if OWARM == 1: c.e(f'buffer_load_dword v{XF+3}, v{GS}, {srd(S_O)}, s55 offen', ('ow',))
        c.e(f's_add_u32 s{S_OUT}, s14, s6'); c.e(f's_addc_u32 s{S_OUT+1}, s15, 0')
        c.e(f's_sub_u32 s{S_OUT+2}, 1769472, s6'); c.e(f's_mov_b32 s{S_OUT+3}, 0x20000')
        run(c, rd(0)); adv(c)
        c.e('s_waitcnt lgkmcnt(0)')
        run(c, interleave(mmu(0, True), rd(1) + [adv], end=GEND(NT)))
        c.e('s_waitcnt lgkmcnt(0)')
        run(c, mmu(1))
        c.e('s_barrier')
        stamp(c, 1, True)
        run(c, rd(0)); adv(c)
        def unit(x, U, extra=(), last=False):
            x.e('s_waitcnt lgkmcnt(0)')
            x.e('s_barrier')
            run(x, interleave(mmu(U), ([] if last else rd(U + 1) + [adv]) + list(extra), end=GEND(NT)))
        lp.e(f'{name}_LOOP:')
        unit(lp, 0); unit(lp, 1)
        lp.e('s_add_u32 s44, s44, 1'); lp.e('s_cmp_lt_u32 s44, 6'); lp.e(f's_cbranch_scc1 {name}_LOOP')
        fin = []
        def P(*lines): fin.extend(E(l) for l in lines)
        X = GS
        P('s_mov_b32 s7, 288', 's_lshl_b32 s6, s42, 6', f'v_add_u32 v{X}, s6, v{VT+3}')
        P(f'v_cmp_gt_u32 s[8:9], s7, v{X}', f'v_subrev_u32 v{X+1}, 32, v{X}', f'v_mov_b32 v{X+7}, 0x40000000')
        P(f'v_cndmask_b32 v{X}, v{X+1}, v{X}, s[8:9]', f'v_lshrrev_b32 v{X+1}, 4, v{X}')
        P(f'v_and_b32 v{X+2}, 15, v{X}', f'v_lshlrev_b32 v{X+2}, 4, v{X+2}', f'v_lshl_add_u32 v{XF}, v{X+1}, 9, v{X+2}')
        P(f'v_mul_u32_u24 v{X+4}, 57, v{X+1}', f'v_lshrrev_b32 v{X+4}, 9, v{X+4}')
        P(f'v_mul_u32_u24 v{X+5}, 18, v{X+4}', f'v_add_u32 v{X+5}, v{X+5}, v{X+1}')
        P(f'v_lshl_add_u32 v{XF+1}, v{X+5}, 8, v{X+2}')
        P(f'v_mul_u32_u24 v{X+6}, 9, v{X+4}', f'v_sub_u32 v{X+1}, v{X+1}, v{X+6}')
        P(f'v_mul_u32_u24 v{X+4}, 48, v{X+4}', f'v_and_b32 v{X+6}, 3, v{X}', f'v_add_u32 v{X+4}, v{X+4}, v{X+6}')
        P(f'v_mul_u32_u24 v{X+4}, 1152, v{X+4}', f'v_lshl_add_u32 v{X+4}, v{X+1}, 5, v{X+4}')
        P(f'v_bfe_u32 v{X+6}, v{X}, 2, 2', f'v_lshl_add_u32 v{X+4}, v{X+6}, 3, v{X+4}')
        P(f'v_cndmask_b32 v{XF+2}, v{X+7}, v{X+4}, s[8:9]')
        for i in range(3): P(f's_add_u32 s{56+i}, s47, {i+1}', f's_and_b32 s{56+i}, s{56+i}, 3', f's_mul_i32 s{56+i}, s{56+i}, {INB}')
        P('s_mov_b32 s10, 18432', 's_mov_b32 s11, 36864', 's_mov_b32 s59, 0xffff0000')
        fin2 = []
        fin2.append(lambda b: [b.e(l) for l in (f'v_bfe_u32 v{VE+2}, v{VT+3}, 2, 2', f'v_cmp_eq_u32 vcc, s47, v{VE+2}', f'v_mov_b32 v{VE+2}, 0x40000000',
                    f'v_and_b32 v{VE}, 0xff, v{VT+2}', f'v_cndmask_b32 v{VT+2}, v{VT+2}, v{VE+2}, vcc', f'v_lshlrev_b32 v{VE+1}, 2, v{VT+3}',
                    f'v_add_u32 v{VE+1}, {OWN+16384}, v{VE+1}', f'v_add_u32 v{VE}, s5, v{VE}',
                    f'v_and_b32 v{VE+1}, 0xfffffff0, v{VE+1}', f'v_cndmask_b32 v{VE}, v{VE+1}, v{VE}, vcc')])
        fin2 += [E(f'v_mov_b32 v{GS+4*k+3}, s98') for k in range(2 * NT)]
        unit(e, 14, fin)
        e.e('s_waitcnt lgkmcnt(0)')
        e.e('s_barrier')
        m = mmu(15)
        def send(n):
            r = [E(f'v_cvt_pk_bf16_f32 v{GS + 8*n + 4*(x//3) + x%3}, v{12*n+2*x}, v{12*n+2*x+1}') for x in range(6)]
            r += [E(f'buffer_store_dwordx4 {q4(GS+8*n+4*hf)}, v{VT+2}, {srd(S_P)}, s4 offen offset:{n*512 + hf*256} sc1', ('p',)) for hf in range(2)]
            r += [E(f'ds_write_b128 v{VE}, {q4(12*n+4*j)} offset:{j*2304 + n*256}', ('own',)) for j in range(3)]
            return r
        for n in range(NT):
            grp = m[3 * n:3 * n + 3] + m[3 * NT + 3 * n:3 * NT + 3 * n + 3]
            run(e, interleave(grp, fin2 if n == 0 else (send(n - 2) if n >= 2 else [])))
        stamp(e, 7)
        if NT == 2: e.e('s_nop 1')
        run(e, send(NT - 2)); run(e, send(NT - 1))
        if name != 'OP_BIG': e.e('s_branch OP_FIN')
        return c, lp, e
    sm = compute('OP_SML', SML, 2)
    bg = compute('OP_BIG', BIG, 5)
    ctx.active = list(BIG + SML)
    e = Block(ctx, 'op_end')
    e.e('OP_FIN:')
    e.e('s_waitcnt lgkmcnt(0)')
    e.e('s_barrier')
    stamp(e, 8)
    e.e('s_cmp_ge_u32 s42, 5')
    e.e('s_cbranch_scc1 OP_DONE')
    R0 = 168; OW = 64; X = 128
    for j in range(3): e.e(f'ds_read_b128 {q4(OW+4*j)}, v{XF+1} offset:{j*2304}', ('ow',))
    loads = '\n'.join(f'buffer_load_dwordx4 {q4(R0+8*src+4*hf)}, v{XF}, {srd(S_PI)}, s{56+src} offen offset:{hf*256} sc1' for src in range(3) for hf in range(2))
    chk = [f'v_xor_b32 v{X+6}, s98, v{R0+3}']
    for k in range(1, 6):
        chk += [f'v_xor_b32 v{X+7}, s98, v{R0+4*k+3}', f'v_or_b32 v{X+6}, v{X+6}, v{X+7}']
    chk.append(f'v_cmp_ne_u32 vcc, 0, v{X+6}')
    poll(e, 'OP_P2', loads, '\n'.join(chk))
    stamp(e, 9)
    e.e(f'buffer_store_dword v{VT+1}, v{VT}, {srd(S_F)}, s96 offen sc1', ('ep',))
    e.e('s_waitcnt lgkmcnt(0)')
    so = ['0', 's10', 's11']
    for j in range(3):
        for p in range(2):
            x = 2 * j + p
            for src in range(3):
                r = R0 + 8 * src + 4 * (x // 3) + x % 3
                e.e(f'v_lshlrev_b32 v{X+6}, 16, v{r}'); e.e(f'v_and_b32 v{X+7}, s59, v{r}')
                e.e(f'v_add_f32 v{OW+2*x}, v{OW+2*x}, v{X+6}'); e.e(f'v_add_f32 v{OW+2*x+1}, v{OW+2*x+1}, v{X+7}')
            e.e(f'v_cvt_pk_bf16_f32 v{OW+16+x}, v{OW+2*x}, v{OW+2*x+1}')
        e.e(f'buffer_store_dwordx2 {q2(OW+16+2*j)}, v{XF+2}, {srd(S_OUT)}, {so[j]} offen {OPT.get("outpol", "")}')
    ctx.active = ALLW
    e.e('OP_DONE:')
    if STAMP:
        if not OPT.get('rt4'): stamp(e, 10)
        dump_stamps(e)
    e.e('K1_END:')
    e.e('s_endpgm')
    traces = {}
    for w in SML: traces[w] = [b, sm[0], sm[1], sm[1], sm[2], e]
    for w in BIG: traces[w] = [b, bg[0], bg[1], bg[1], bg[2], e]
    traces[6] = [b, lw]; traces[7] = [b, lo]
    TXN = OPT.get('tx', '')
    if TXN:
        def after_c(blk):
            n = 0; out = []
            for i in blk:
                if i.kind == 'barrier': n += 1
                drop = n >= 2 and getattr(i, 'sub', '') == 'dma' and (TXN == 'none' or (TXN == 'noo' and 's[24:27]' in i.text) or (TXN == 'nowo' and 's[20:23]' in i.text))
                if not drop: out.append(i)
            blk[:] = out
        after_c(lw); after_c(lo); after_c(sm[0])
        if TXN in ('none', 'nowo'):
            for blk in sm[1:]: blk[:] = [i for i in blk if getattr(i, 'sub', '') != 'dma']
    return [b] + list(sm) + list(bg) + [e, lw, lo], traces

def kernel1():
    ctx = MCtx(8)
    pro = k1_prologue(ctx)
    qp = k1_qproj(ctx)
    ap = k1_att_prologue(ctx)
    p1 = pv_phase(ctx, 'P1', SA, SB, head=lambda a: a.e('K1_LOOP:'), dma=guarded(dma_v, 0) if LEAD == 6 else dma_v)
    SK2 = int(OPT.get('sk2', 2))
    p2 = qk_phase(ctx, 'P2', SA, SB, guarded(dma_k, 0) if KVREG else dma_k)
    p3 = pv_phase(ctx, 'P3', SB, SA, dma=guarded(dma_v, SK2) if KVREG == 1 else dma_v)
    p4 = qk_phase(ctx, 'P4', SB, SA, guarded(dma_k, SK2) if KVREG == 1 else dma_k)
    p4[2].e('s_add_u32 s44, s44, 1')
    p4[2].e('s_cmp_lt_u32 s44, 7')
    p4[2].e('s_cbranch_scc1 K1_LOOP')
    def warm(b):
        b.e(f'v_lshrrev_b32 v{KR}, 6, v{VL16}'); b.e(f'v_mul_u32_u24 v{KR}, 1152, v{KR}')
        b.e(f'v_and_b32 v{KR+1}, 48, v{VL16}'); b.e(f'v_lshlrev_b32 v{KR+1}, 3, v{KR+1}'); b.e(f'v_min_u32 v{KR+1}, 316, v{KR+1}')
        b.e(f'v_add_u32 v{KR}, v{KR}, v{KR+1}')
        b.e(f'buffer_load_dword v{SA+23}, v{KR}, s[28:31], 0 offen', ('warm',))
    l1 = pv_phase(ctx, 'L1', SA, SB, nextK=False, dma=warm if WARM in (1, 2) else None, split=LSPLIT)
    l2 = Block(ctx, 'L2')
    l2.e(f's_waitcnt vmcnt({1 if WARM in (1, 2) else 0})')
    l2.e('s_barrier')
    if OPT.get('l2s'): stamp(l2, 2)
    for r in (A, B):
        with role(l2, r):
            for k in range(4): vread_as(l2, order_of(r)[k], k)
    l2.e('s_mul_i32 s43, s42, 12288'); l2.e('s_xor_b32 s46, s42, 4'); l2.e('s_mul_i32 s46, s46, 12288')
    l2.e(f's_add_u32 s43, s43, {EXB}'); l2.e(f's_add_u32 s46, s46, {EXB}')
    l2.e(f'v_add_u32 v{XA}, s43, v{VL16}'); l2.e(f'v_add_u32 v{XA+1}, s46, v{VL16}')
    run(l2, sm_fillers(SB)[LSPLIT:] + chk_fillers())
    l2.e('s_cbranch_vccnz L2_RARE')
    l2r = rare_path(ctx, 'L2', SB, None, 2)
    l3 = last_pv(ctx)
    ep = k1_epilogue(ctx)
    errs = []
    body = [p1, p2[0], p2[2], p3, p4[0], p4[2]]
    bodyr = [p1, p2[0], p2[1], p2[2], p3, p4[0], p4[1], p4[2]]
    last = [l1, l2, l3, ep]
    lastr = [l1, l2, l2r, l3, ep]
    tail, ttr = oproj(ctx)
    for r in ALLW:
        errs += check_trace([pro, qp, ap] + body + body + last + ttr[r], f'main{r}', r)
        errs += check_trace([pro, qp, ap] + bodyr + bodyr + body + lastr, f'rare{r}', r)
    if NOCOMP:
        for blk in body:
            keep = [i for i in blk if i.kind not in ('mfma', 'valu', 'trans') and not (NOCOMP > 1 and i.kind == 'ds') and 'vccnz' not in i.text]
            blk[:] = keep
        errs = []
    DROP = OPT.get('drop', '')
    if DROP:
        D = DROP.split(',')
        def dropit(i):
            t = i.text
            if 'vccnz' in t: return True
            if 'exp' in D and t.startswith('v_exp'): return True
            if 'add' in D and t.startswith('v_add_f32'): return True
            if 'cvt' in D and t.startswith('v_cvt'): return True
            if 'ds' in D and i.kind == 'ds': return True
            if 'wait' in D and i.kind == 'wait': return True
            if 'bar' in D and i.kind == 'barrier': return True
            if 'adv' in D and (t.startswith('v_add_u32') or t.startswith('s_cmp_ge') or t.startswith('s_cselect') or t.startswith('s_add_u32 s45') or t.startswith('s_add_u32 s46')): return True
            if 'mfma' in D and i.kind == 'mfma': return True
            return False
        for blk in body: blk[:] = [i for i in blk if not dropit(i)]
        errs = []
    order = [pro, qp, ap] + body + last + tail + [p2[1], p4[1], l2r]
    return order, errs

def kernel2():
    ctx = MCtx(8)
    b = Block(ctx, 'k2')
    b.e('s_cmp_ge_u32 s2, 256')
    b.e('s_cbranch_scc1 K2_END')
    b.e('s_load_dwordx8 s[12:19], s[0:1], 32')
    if STAMP:
        for i in range(6): b.e(f's_memtime s[{64+2*i}:{65+2*i}]')
        b.e('s_memrealtime s[86:87]')
    b.e('v_lshrrev_b32 v1, 6, v0')
    b.e('v_and_b32 v0, 63, v0')
    b.e('v_readfirstlane_b32 s42, v1')
    b.e('s_and_b32 s43, s2, 7'); b.e('s_lshr_b32 s44, s2, 3')
    b.e('s_and_b32 s40, s43, 1'); b.e('s_lshl_b32 s40, s40, 2'); b.e('s_and_b32 s45, s44, 3'); b.e('s_add_u32 s40, s40, s45')
    b.e('s_lshr_b32 s41, s43, 1'); b.e('s_lshl_b32 s41, s41, 3'); b.e('s_lshr_b32 s46, s44, 2'); b.e('s_add_u32 s41, s41, s46')
    b.e(f'v_lshlrev_b32 v{VL16}, 4, v0')
    b.e('s_waitcnt lgkmcnt(0)')
    flag_srd(b)
    epoch_load(b, 222)
    b.e('s_waitcnt vmcnt(0)')
    epoch_tags(b, 222)
    run(b, tail_setup())
    t = oproj(ctx)
    errs = []
    for r in ALLW: errs += check_trace([b, t[0], t[1], t[1], t[2], t[2], t[3]], f'k2_{r}', r)
    return [b] + list(t), errs

HEADER = open('standalone__mha_block_cached__near_ridge.s.ref').read().split('; Override')[0]

DOC = '''; One workgroup per (batch, head), 8 waves, one launch:
;  3. the 8 heads of a group trade o through d_ws; every workgroup multiplies a 96 x 144 output tile over
;     these 8 heads; the 4 head groups trade the partial sums (tagged granules) and each finishes a quarter.
; Hand-off words carry a launch tag derived from an epoch word in d_ws that the launch advances at its end.
'''

def kd(name, vgpr, sgpr=96):
    return f'''.amdhsa_kernel {name}
  .amdhsa_next_free_vgpr {vgpr}
  .amdhsa_next_free_sgpr {sgpr}
  .amdhsa_accum_offset {(vgpr+3)//4*4}
  .amdhsa_group_segment_fixed_size 0
  .amdhsa_kernarg_size 64
  .amdhsa_user_sgpr_count 2
  .amdhsa_user_sgpr_kernarg_segment_ptr 1
  .amdhsa_system_sgpr_workgroup_id_x 1
.end_amdhsa_kernel
'''

def main():
    k1, e1 = kernel1()
    k2, e2 = kernel2() if not FUSED else ([], [])
    for e in list(dict.fromkeys(x.split('] ', 1)[1] for x in e1 + e2))[:12]: print('CHECK', e, file=sys.stderr)
    out = HEADER
    if FUSED:
        N = 'standalone__mha_block_cached__near_ridge_kernel'
        out += f'; @launch grid=(256,1,1) block=(512,1,1) lds={LDS_TOT}\n'
        ks = [(N, k1)]
    else:
        out += f'; @launch kernel=mha_attn_kernel grid=(256,1,1) block=(512,1,1) lds={LDS_TOT}\n'
        out += f'; @launch kernel=mha_oproj_kernel grid=(256,1,1) block=(512,1,1) lds={LDS_TOT}\n'
        ks = [('mha_attn_kernel', k1), ('mha_oproj_kernel', k2)]
    out += DOC + '.amdgcn_target "amdgcn-amd-amdhsa--gfx950"\n.text\n'
    for name, blocks in ks:
        out += f'.globl {name}\n.p2align 8\n.type {name},@function\n{name}:\n'
        out += '\n'.join(b.text() for b in blocks) + '\n'
    out += '.section .rodata,"a"\n'
    for name, _ in ks: out += '.p2align 6\n' + kd(name, 256, 102)
    open(sys.argv[1], 'w').write(out)
    if e1 or e2: sys.exit(1)
main()
```

```python
import sys, struct, math
from asmlib import *

OPT = dict(a.split('=') for a in sys.argv[2:] if '=' in a)
STAMP = int(OPT.get('stamp', 0))
KVPOL = OPT.get('kvpol', 'nt')
XPOL = OPT.get('xpol', '')
WPOL = OPT.get('wpol', '')
OSTPOL = OPT.get('ostpol', 'sc1' if OPT.get('fused', '1') == '1' else '')
OLDPOL = OPT.get('oldpol', '')
WOPOL = OPT.get('wopol', '')
THR = float(OPT.get('thr', 2048.0))
NOBARQK = int(OPT.get('nobarqk', 1))
SKIPT = int(OPT.get('skipt', 0))
STAG = int(OPT.get('stag', 0))
ROT = int(OPT.get('rot', 1))
ROT2 = int(OPT.get('rot2', 1))
SM_SPLIT = int(OPT.get('split', 24))
CHK_AT = int(OPT.get('chk', 8))
PRIO = int(OPT.get('prio', 0))
K2D = int(OPT.get('k2d', 4))
NODMA = int(OPT.get('nodma', 0))
NOCOMP = int(OPT.get('nocomp', 0))
NOKVQ = int(OPT.get('nokvq', 0))
FUSED = int(OPT.get('fused', 1))
OLD2 = OPT.get('old2', 'sc1')
SLEEP = int(OPT.get('sleep', 1))
F1POL = OPT.get('f1pol', 'sc1')
WOPRE = int(OPT.get('wopre', 5))
TOUCH = int(OPT.get('touch', 0))
WOEARLY = int(OPT.get('woearly', 0))
WARM = int(OPT.get('warm', 1))
FAST = int(OPT.get('fast', 0))
PAIRW = int(OPT.get('pairw', 1))
KVREG = int(OPT.get('kvreg', 0))
KV1 = int(OPT.get('kv1', 1))
NC = int(OPT.get('nc', 1))
EARLY = int(OPT.get('early', 0))
ORD = int(OPT.get('ord', 1))
LSPLIT = int(OPT.get('lsplit', 57))
LEAD = int(OPT.get('lead', 6))
OWARM = int(OPT.get('owarm', 0))
KROT = int(OPT.get('krot', 0))
BOTH = int(OPT.get('both', 0))
SMOOTH = int(OPT.get('smooth', 1))
POS = [int(x) for x in OPT.get('pos', '').split(',') if x]
TLB = int(OPT.get('tlb', 1))
NOX = int(OPT.get('nox', 0))
NOWQ = int(OPT.get('nowq', 0))
MAP = OPT.get('map', '4x8')
KVSCHED = [int(x) for x in OPT.get('kvs', '0,2,3,5,6,8,9,11,12,14').split(',') if x]

def f2u(f): return struct.unpack('<I', struct.pack('<f', f))[0]
SCALE = math.log2(math.e) / math.sqrt(128.0)
MF = 'v_mfma_f32_16x16x32_bf16'
def q4(n): return f'v[{n}:{n+3}]'
def q2(n): return f'v[{n}:{n+1}]'

ACC = 0; QF = 96; SA = 144; SB = 168; KR = 192; VR = 208; NEGM = 224
TMP = 236; VK = 248; VVE = 249; VVO = 250; LS = 251; VL16 = 254; VKV = 255
RING = 10; CH = 16384; LDS_TOT = RING * CH
QB = 114688
SLOT = 40960
S_K, S_V, S_X, S_WQ, S_O = 20, 24, 28, 32, 36
FS = 96
VXD = 208; VWD = 211; VXR = 213; VAE = 215; VAO = 217; VQE = 219; VQO = 220; VQR = 221; VKW = 244
def srd(n): return f's[{n}:{n+3}]'
def acc(t, jt): return ACC + 12 * t + 4 * jt
def qf(s, jt): return QF + 12 * s + 4 * jt
def st(S, kt, jt): return S + 12 * kt + 4 * jt
ALLW = list(range(8))
A, B = (0, 1, 2, 3), (4, 5, 6, 7)

TST = int(OPT.get('tst', 0))
def stamp(b, idx, fine=False, it=False):
    if TST == 2:
        if it or idx in (0, 4): b.e(f's_memtime s[{64+2*idx}:{65+2*idx}]')
        return
    if it: return
    if TST and idx in (1, 2, 3) and not fine: return
    if fine and not TST: return
    if STAMP: b.e(f's_memtime s[{64+2*idx}:{65+2*idx}]')

class role:
    n = 0
    def __init__(self, b, waves): self.b, self.w = b, list(waves)
    def __enter__(self):
        role.n += 1; self.l = f'RL{role.n}'
        self.b.e(f's_bitcmp1_b32 {sum(1 << w for w in self.w)}, s42')
        self.b.e(f's_cbranch_scc0 {self.l}')
        self.b.ctx.active = self.w
    def __exit__(self, *a):
        self.b.ctx.active = ALLW
        self.b.e(f'{self.l}:')

def E(text, tag=None): return lambda b: b.e(text, tag)
def run(b, lst):
    for f in lst: f(b)

def chunk_of(n):
    if n == 0: return ('K', 0)
    if n % 2 == 1: return ('K', (n + 1) // 2)
    return ('V', (n - 2) // 2)

def k1_prologue(ctx):
    b = Block(ctx, 'k1_pro')
    b.e('s_cmp_ge_u32 s2, 256')
    b.e('s_cbranch_scc1 K1_END')
    b.e('s_load_dwordx8 s[4:11], s[0:1], 0')
    b.e('s_load_dwordx8 s[12:19], s[0:1], 32')
    if STAMP:
        b.e('s_memtime s[64:65]')
        b.e('s_memrealtime s[86:87]')
    b.e('v_lshrrev_b32 v1, 6, v0')
    b.e('v_and_b32 v0, 63, v0')
    b.e('v_readfirstlane_b32 s42, v1')
    b.e('s_and_b32 s43, s2, 7')
    b.e('s_lshr_b32 s44, s2, 3')
    nb = int(MAP.split('x')[0]); lb = nb.bit_length() - 1
    nh = 32 // nb; xb = 8 // nb
    b.e(f's_and_b32 s40, s43, {xb - 1}')
    b.e(f's_lshl_b32 s40, s40, {lb}')
    b.e(f's_and_b32 s45, s44, {nb - 1}')
    b.e('s_add_u32 s40, s40, s45')
    b.e(f's_lshr_b32 s41, s43, {xb.bit_length() - 1}')
    b.e(f's_lshl_b32 s41, s41, {nh.bit_length() - 1}')
    b.e(f's_lshr_b32 s46, s44, {lb}')
    b.e('s_add_u32 s41, s41, s46')
    m = max(nb, nh)
    b.e(f's_mul_i32 s45, s45, {32 // nb}')
    b.e(f's_mul_i32 s46, s46, {32 // nh}')
    b.e('s_add_u32 s45, s45, s46')
    b.e('s_and_b32 s45, s45, 31')
    b.e(f's_mul_i32 s45, s45, {9 - NC}')
    b.e('s_lshr_b32 s45, s45, 5')
    b.e(f's_add_u32 s45, s45, {NC}')
    b.e('s_lshl_b32 s100, s45, 7')
    b.e('s_lshl_b32 s101, s45, 19')
    b.e('s_mov_b32 s57, 0' if NC else 's_mov_b32 s57, s100')
    b.e('s_mov_b32 s58, 0' if NC else 's_mov_b32 s58, s101')
    b.e('s_lshl_b32 s45, s40, 5')
    b.e('s_add_u32 s45, s45, s41')
    b.e('s_lshl_b32 s45, s45, 18')
    b.e('s_mul_i32 s46, s40, 221184')
    b.e('s_lshl_b32 s47, s41, 8')
    b.e('s_mul_i32 s48, s40, 1572864')
    b.e('s_and_b32 s53, s42, 3')
    b.e('s_lshr_b32 s54, s42, 2')
    b.e('v_bfe_u32 v4, v0, 2, 3')
    b.e('v_lshrrev_b32 v5, 5, v0')
    b.e('v_and_b32 v3, 3, v0')
    b.e('v_lshrrev_b32 v7, 2, v4')
    b.e('v_lshlrev_b32 v8, 1, v7')
    b.e('v_xor_b32 v6, v3, v8')
    b.e('v_lshlrev_b32 v6, 4, v6')
    b.e('v_lshl_add_u32 v6, v5, 6, v6')
    b.e('s_lshr_b32 s43, s53, 1')
    b.e('s_and_b32 s44, s42, 1')
    b.e('v_and_b32 v9, 3, v4')
    b.e('v_lshl_add_u32 v9, v7, 3, v9')
    b.e('s_lshl_b32 s55, s43, 4')
    b.e('s_lshl_b32 s62, s54, 2')
    b.e('s_add_u32 s55, s55, s62')
    b.e('v_add_u32 v9, s55, v9')
    b.e('v_lshl_add_u32 v9, v9, 13, v6')
    b.e('s_lshl_b32 s55, s44, 7')
    b.e(f'v_add_u32 v{VWD}, s55, v9')
    b.e(f'v_add_u32 v{VWD+1}, {32*8192-1024}, v{VWD}')
    b.e('s_lshl_b32 s60, s42, 11')
    b.e('s_mul_i32 s63, s42, 3')
    for i in range(3):
        b.e(f's_add_u32 s62, s63, {i}')
        b.e('s_and_b32 s56, s62, 1')
        b.e('s_lshl_b32 s56, s56, 3')
        b.e('s_add_u32 s56, s56, 12')
        b.e('s_lshr_b32 s62, s62, 1')
        b.e('s_lshl_b32 s62, s62, 4')
        b.e('v_add_u32 v9, s56, v4')
        b.e('v_and_b32 v9, 15, v9')
        b.e('v_add_u32 v9, s62, v9')
        b.e('v_mul_u32_u24 v9, 1152, v9')
        b.e('v_add_u32 v9, v9, v6')
        if i: b.e(f'v_subrev_u32 v{VXD+i}, {i*1024}, v9')
        else: b.e(f'v_mov_b32 v{VXD}, v9')
    b.e('s_lshl_b32 s59, s63, 10')
    b.e('s_add_u32 s59, s59, 16384')
    b.e('s_waitcnt lgkmcnt(0)')
    b.e(f's_add_u32 s{S_X}, s4, s46');  b.e(f's_addc_u32 s{S_X+1}, s5, 0')
    b.e(f's_mov_b32 s{S_X+2}, 221184'); b.e(f's_mov_b32 s{S_X+3}, 0x20000')
    b.e(f's_add_u32 s{S_WQ}, s10, s47'); b.e(f's_addc_u32 s{S_WQ+1}, s11, 0')
    b.e(f's_sub_u32 s{S_WQ+2}, 4718592, s47'); b.e(f's_mov_b32 s{S_WQ+3}, 0x20000')
    b.e(f's_add_u32 s{S_K}, s6, s45');  b.e(f's_addc_u32 s{S_K+1}, s7, 0')
    b.e(f's_mov_b32 s{S_K+2}, 262144'); b.e(f's_mov_b32 s{S_K+3}, 0x20000')
    b.e(f's_add_u32 s{S_V}, s8, s45');  b.e(f's_addc_u32 s{S_V+1}, s9, 0')
    b.e(f's_mov_b32 s{S_V+2}, 262144'); b.e(f's_mov_b32 s{S_V+3}, 0x20000')
    b.e(f's_add_u32 s{S_O}, s18, s48'); b.e(f's_addc_u32 s{S_O+1}, s19, 0')
    b.e(f's_mov_b32 s{S_O+2}, 1572864'); b.e(f's_mov_b32 s{S_O+3}, 0x20000')
    return b

RC = 1
def slot(n): return ((n + RC) % RING) * CH

def qslot(D): return ((D + 3) % 4) * SLOT

def qnext(b, D):
    if D + 1 == NC:
        b.e('s_mov_b32 s57, s100'); b.e('s_mov_b32 s58, s101')
    else:
        b.e('s_cmp_eq_u32 s61, 1152')
        b.e(f's_cselect_b32 s57, {NC*128}, s61')
        b.e(f's_cselect_b32 s58, {NC*524288}, s58')

def qdma_parts(D):
    P = []
    P.append(lambda b: (b.e(f's_add_u32 m0, s60, {qslot(D)}'), b.e('s_add_u32 s61, s57, 128'),
                        b.e(f'buffer_load_dwordx4 v{VWD}, {srd(S_WQ)}, s58 offen {WPOL} lds', ('q', D))))
    P.append(lambda b: (b.e(f'buffer_load_dwordx4 v{VWD+1}, {srd(S_WQ)}, s58 offen offset:1024 {WPOL} lds', ('q', D)),
                        b.e(f's_add_u32 m0, s59, {qslot(D)}'), b.e('s_add_u32 s58, s58, 524288')))
    for i in range(2): P.append(E(f'buffer_load_dwordx4 v{VXD+i}, {srd(S_X)}, s57 offen offset:{i*1024} {XPOL} lds', ('q', D)))
    P.append(lambda b: (b.e(f'buffer_load_dwordx4 v{VXD+2}, {srd(S_X)}, s57 offen offset:2048 {XPOL} lds', ('q', D)),
                        qnext(b, D)))
    return P

def qdma(b, D):
    b.e(f's_add_u32 m0, s60, {qslot(D)}')
    b.e('s_add_u32 s61, s57, 128')
    for h in range(0 if NOWQ else 2):
        b.e(f'buffer_load_dwordx4 v{VWD+h}, {srd(S_WQ)}, s58 offen offset:{h*1024} {WPOL} lds', ('q', D))
    b.e(f's_add_u32 m0, s59, {qslot(D)}')
    b.e('s_add_u32 s58, s58, 524288')
    for i in range(0 if NOX else 3):
        b.e(f'buffer_load_dwordx4 v{VXD+i}, {srd(S_X)}, s57 offen offset:{i*1024} {XPOL} lds', ('q', D))
    qnext(b, D)

def kvpair_static(b, n):
    c = chunk_of(n)
    S = S_K if c[0] == 'K' else S_V
    b.e(f's_add_u32 m0, s52, {slot(n)}')
    if KROT: b.e(f's_add_u32 s56, s7, {c[1] * CH}'); b.e('s_and_b32 s56, s56, 0x3ffff')
    else: b.e(f's_mov_b32 s56, {c[1] * CH}')
    b.e(f'buffer_load_dwordx4 v{VKV}, {srd(S)}, s56 offen {KVPOL} lds', ('kv', n))
    b.e(f'buffer_load_dwordx4 v{VKV}, {srd(S)}, s56 offen offset:2048 {KVPOL} lds', ('kv', n))

POFF = 0x2000000; FOFF = 0x3000000; INB = 9216
S_F = 92
def flag_srd(b):
    b.e(f's_add_u32 s{S_F}, s18, {FOFF}'); b.e(f's_addc_u32 s{S_F+1}, s19, 0')
    b.e(f's_mov_b32 s{S_F+2}, {32768+1024}'); b.e(f's_mov_b32 s{S_F+3}, 0x20000')
    b.e('s_lshl_b32 s90, s40, 5'); b.e('s_add_u32 s90, s90, s41'); b.e('s_lshl_b32 s90, s90, 7')
    b.e('s_lshl_b32 s96, s40, 7'); b.e('s_add_u32 s96, s96, 32768')

def epoch_load(b, v):
    b.e(f'v_mov_b32 v{v}, 0')
    b.e(f'buffer_load_dword v{v+1}, v{v}, {srd(S_F)}, s96 offen sc1', ('ep',))

def epoch_tags(b, v):
    b.e(f'v_readfirstlane_b32 s97, v{v+1}')
    b.e('s_nop 0')
    b.e('s_mul_i32 s97, s97, 0x9e3779b1')
    b.e('s_add_u32 s97, s97, 0x7f4a7c15')
    b.e('s_xor_b32 s98, s97, 0x80000000')

def one_lane(b, v):
    b.e(f's_lshl_b32 s91, s42, 6')
    b.e(f'v_add_u32 v{v}, s91, v0')
    b.e(f'v_lshlrev_b32 v{v}, 20, v{v}')

def kvreg_of(n): return 48 + 8 * n if n < 6 else 224 + 8 * (n - 6)
def kv_to_regs(b, n):
    c = chunk_of(n)
    S = S_K if c[0] == 'K' else S_V
    r = kvreg_of(n)
    b.e(f's_mov_b32 s56, {c[1] * CH}')
    b.e(f'buffer_load_dwordx4 {q4(r)}, v{VKV}, {srd(S)}, s56 offen {KVPOL}', ('kv', n))
    b.e(f'buffer_load_dwordx4 {q4(r+4)}, v{VKV}, {srd(S)}, s56 offen offset:2048 {KVPOL}', ('kv', n))
def kv_to_lds(n):
    r = kvreg_of(n)
    o = slot(n) % 65536
    v = VKW + slot(n) // 65536
    return [lambda b: (b.wait_vm(('kv', n)), b.e(f'ds_write_b128 v{v}, {q4(r)} offset:{o}', ('kw',))),
            E(f'ds_write_b128 v{v}, {q4(r+4)} offset:{o+2048}', ('kw',))]

def k1_qproj(ctx):
    b = Block(ctx, 'qproj')
    flag_srd(b)
    qdma(b, 0)
    b.e('v_lshl_add_u32 v9, v4, 8, v6')
    b.e('s_lshl_b32 s46, s43, 12')
    b.e('s_lshl_b32 s47, s54, 13')
    b.e('s_add_u32 s46, s46, s47')
    b.e('s_add_u32 s45, s55, s46')
    b.e(f'v_add_u32 v{VKV}, s45, v9')
    b.e('s_lshl_b32 s47, s44, 10')
    b.e('s_add_u32 s52, s46, s47')
    if KROT == 1: b.e('s_lshr_b32 s7, s2, 3')
    elif KROT == 2: b.e('s_mul_i32 s7, s2, 5')
    elif KROT == 3: b.e('s_lshr_b32 s7, s2, 4'); b.e('s_add_u32 s7, s7, s2')
    elif KROT == 4: b.e('s_mov_b32 s7, s41')
    elif KROT == 5: b.e('s_lshl_b32 s7, s40, 2'); b.e('s_add_u32 s7, s7, s41')
    elif KROT == 6: b.e('s_lshl_b32 s7, s40, 1'); b.e('s_xor_b32 s7, s7, s41'); b.e('s_mul_i32 s7, s7, 7')
    elif KROT == 7: b.e('s_lshr_b32 s7, s2, 4'); b.e('s_mul_i32 s7, s7, 3'); b.e('s_mul_i32 s6, s2, 5'); b.e('s_add_u32 s7, s7, s6')
    elif KROT == 8: b.e('s_and_b32 s7, s2, 7'); b.e('s_lshl_b32 s7, s7, 1')
    elif KROT == 9: b.e('s_mul_i32 s7, s40, 2'); b.e('s_lshr_b32 s6, s41, 4'); b.e('s_add_u32 s7, s7, s6')
    if KROT: b.e('s_and_b32 s7, s7, 15'); b.e('s_lshl_b32 s7, s7, 14')
    qdma(b, 1)
    b.e('v_lshrrev_b32 v10, 4, v0')
    b.e('v_and_b32 v6, 15, v0')
    b.e('v_lshrrev_b32 v7, 2, v6')
    b.e('v_and_b32 v8, 1, v10')
    b.e('v_lshl_add_u32 v5, v8, 2, v7')
    b.e('v_lshlrev_b32 v5, 6, v5')
    b.e('v_lshl_add_u32 v5, v8, 5, v5')
    b.e('v_lshl_add_u32 v5, v3, 3, v5')
    b.e('v_lshrrev_b32 v9, 1, v10')
    b.e('v_lshl_add_u32 v5, v9, 12, v5')
    b.e('s_lshl_b32 s45, s54, 11')
    b.e(f'v_add_u32 v{VAE}, s45, v5')
    b.e(f'v_add_u32 v{VAE+1}, {2*SLOT}, v{VAE}')
    b.e(f'v_xor_b32 v{VAO}, 32, v{VAE}')
    b.e(f'v_xor_b32 v{VAO+1}, 32, v{VAE+1}')
    b.e('v_add_u32 v5, 4, v6')
    b.e('v_bfe_u32 v11, v5, 3, 1')
    b.e('v_and_b32 v12, 7, v5')
    b.e('v_lshrrev_b32 v13, 2, v12')
    b.e('v_lshlrev_b32 v13, 1, v13')
    b.e('v_lshlrev_b32 v14, 6, v12')
    b.e('v_xor_b32 v15, v13, v10')
    b.e('v_lshl_add_u32 v15, v15, 4, v14')
    b.e('s_mul_i32 s46, s53, 6144')
    b.e('s_add_u32 s46, s46, 16384')
    b.e('v_lshl_add_u32 v5, v11, 10, v15')
    b.e(f'v_add_u32 v{VXR}, s46, v5')
    b.e(f'v_add_u32 v{VXR+1}, {2*SLOT}, v{VXR}')
    b.e('v_lshl_add_u32 v15, v11, 11, v15')
    b.e('v_lshl_add_u32 v14, v11, 11, v14')
    b.e('s_lshl_b32 s47, s54, 13')
    b.e(f'v_add_u32 v{VK}, s47, v15')
    b.e(f'v_add_u32 v{VK}, {slot(0)}, v{VK}')
    b.e('s_mul_i32 s46, s53, 12288')
    b.e(f's_add_u32 s46, s46, {QB}')
    b.e(f'v_add_u32 v{VQR}, s46, v15')
    b.e('v_xor_b32 v15, v13, v9')
    b.e('v_lshl_add_u32 v15, v15, 4, v14')
    b.e('v_lshl_add_u32 v15, v8, 3, v15')
    b.e('s_lshl_b32 s45, s54, 10')
    b.e('s_add_u32 s46, s46, s45')
    b.e(f'v_add_u32 v{VQE}, s46, v15')
    b.e(f'v_xor_b32 v{VQO}, 32, v{VQE}')
    b.e('v_add_u32 v5, 1, v10')
    b.e('v_bfe_u32 v11, v5, 1, 1')
    b.e('v_and_b32 v12, 1, v5')
    b.e('v_lshl_add_u32 v13, v12, 2, v7')
    b.e('v_lshlrev_b32 v13, 6, v13')
    b.e('v_lshl_add_u32 v13, v12, 5, v13')
    b.e('v_lshl_add_u32 v13, v3, 3, v13')
    b.e('v_lshl_add_u32 v13, v11, 11, v13')
    b.e(f's_add_u32 s47, s47, {slot(2)}')
    b.e(f'v_add_u32 v{VVE}, s47, v13')
    b.e(f'v_xor_b32 v{VVO}, 32, v{VVE}')
    b.e(f'v_lshlrev_b32 v{VL16}, 4, v0')
    b.e(f'v_add_u32 v{VKW}, s52, v{VL16}')
    b.e(f'v_add_u32 v{VKW+1}, 65536, v{VKW}')
    b.e(f'v_add_u32 v{VKW+2}, 131072, v{VKW}')
    b.e(f's_mov_b32 s48, {hex(f2u(SCALE))}')
    b.e(f's_mov_b32 s50, {(2*CH - LDS_TOT) & 0xffffffff}')
    b.e(f's_mov_b32 s51, {2*CH}')
    b.e(f's_mov_b32 s46, {slot(2)}')
    def fA(D, h, tt): return FS + 56 * (D % 2) + 28 * h + 4 * tt
    def fB(D, h, jt): return FS + 56 * (D % 2) + 28 * h + 16 + 4 * jt
    def reads(D):
        sl = ((D + 3) % 4); hi = sl // 2; o = (sl % 2) * SLOT
        r = []
        for h in range(2):
            for jt in range(3):
                r.append(E(f'ds_read_b128 {q4(fB(D,h,jt))}, v{VXR+hi} offset:{o + jt*2048 + h*512}', ('f', D)))
            for tt in range(4):
                for u in range(2):
                    r.append(E(f'ds_read_b64_tr_b16 {q2(fA(D,h,tt)+2*u)}, v{(VAO if tt%2 else VAE)+hi} offset:{o + u*8192 + h*1024 + (tt//2)*512}', ('f', D)))
        return r
    zero = [E(f'v_mov_b32 v{i}, 0') for i in range(48, 96)] + [E(f'v_mov_b32 v{LS+i}, 0') for i in range(3)]
    b.wait_vm(('q', 0))
    b.e('s_barrier')
    stamp(b, 1)
    run(b, reads(0))
    qdma(b, 2)
    issue = {0: [3, 4], 1: [5], 2: [6], 3: [7], 4: [8]}
    kvi = {5: [0], 6: [1, 2], 7: [3], 8: [4]}
    kvr = {}; kvw = {}
    if KVREG == 2:
        kvr = {3: [0], 4: [1], 5: [2]}; kvw = {7: [0, 1, 2]}; kvi = {6: [3], 7: [4], 8: [5]}
    if KVREG == 3:
        kvr = {4: [0], 5: [1]}; kvw = {7: [0, 1]}; kvi = {6: [2, 3], 7: [4], 8: [5]}
    if KVREG == 1:
        kvi = {}
        kvr = {KV1 + i: [i] for i in range(6)} if KV1 + 5 <= 6 else {2: [0], 3: [1], 4: [2], 5: [3], 6: [4, 5]}
        kvr[7] = [6]; kvr[8] = [7]
        kvw = {6: [0, 1, 2, 3], 7: [4, 5]}
    for D in range(9):
        b.e('s_waitcnt lgkmcnt(0)')
        if D + 1 < 9: b.wait_vm(('q', D + 1))
        b.e('s_barrier')
        dm = [(lambda b, x=x: qdma(b, x)) for x in issue.get(D, [])] + [(lambda b, x=x: kvpair_static(b, x)) for x in kvi.get(D, [])]
        if D == 5: dm.insert(0, lambda b: epoch_load(b, 222))
        dm += [(lambda b, x=x: kv_to_regs(b, x)) for x in kvr.get(D, [])]
        wr = sum((kv_to_lds(x) for x in kvw.get(D, [])), [])
        if KVREG >= 2: zs = zero[24 + 5 * D:29 + 5 * D] if D < 6 else {7: zero[:24]}.get(D, [])
        elif KVREG: zs = {7: zero[:32] + zero[48:], 8: zero[32:48]}.get(D, [])
        else: zs = zero[7 * D:7 * D + 7]
        mf = []
        if D < 8:
            for h in range(2):
                for tt in range(4):
                    for jt in range(3):
                        d = q4(acc(tt, jt))
                        mf.append(E(f'{MF} {d}, {q4(fA(D,h,tt))}, {q4(fB(D,h,jt))}, {"0" if D == 0 and h == 0 else d}'))
            rd = reads(D + 1)
            fill = []
            QS = int(OPT.get('qs', 1))
            if QS:
                dm = sum((qdma_parts(x) for x in issue.get(D, [])), []) + dm[len(issue.get(D, [])):]
                step = max(1, len(rd) // max(1, len(dm)))
                lastkv = [dm.pop()] if (KVREG >= 2 and D in (3, 4) and D in kvr) else []
                step = max(1, (len(rd) - 6 * len(lastkv)) // max(1, len(dm)))
                for k, x in enumerate(rd):
                    fill.append(x)
                    if dm and k % step == step - 1: fill.append(dm.pop(0))
                fill += dm + lastkv; dm = []
            for k, x in enumerate(rd if not QS else []):
                fill.append(x)
                if dm and k % 6 == 1: fill.append(dm.pop(0))
            assert not dm
            run(b, interleave(mf, wr + fill + zs, end=int(OPT.get('qe', 21)) + (2 if len(zs) > 8 else 0)))
        else:
            tiles = [(tt, jt) for tt in range(4) for jt in range(3)]
            def conv(tt, jt):
                a = acc(tt, jt)
                return [E(f'v_mul_f32 v{a+i}, s48, v{a+i}') for i in range(4)] + [
                    E(f'v_cvt_pk_bf16_f32 v{a}, v{a}, v{a+1}'), E(f'v_cvt_pk_bf16_f32 v{a+1}, v{a+2}, v{a+3}'),
                    E(f'ds_write_b64 v{VQO if tt%2 else VQE}, {q2(a)} offset:{jt*4096 + (tt//2)*512}', ('qw',))]
            LAG = 3
            run(b, dm)
            run(b, zs)
            for k, (tt, jt) in enumerate(tiles):
                d = q4(acc(tt, jt))
                cv = conv(*tiles[k - LAG]) if k >= LAG else []
                if k == LAG: b.e('s_nop 2')
                b.e(f'{MF} {d}, {q4(fA(D,0,tt))}, {q4(fB(D,0,jt))}, {d}')
                run(b, cv[:3])
                b.e(f'{MF} {d}, {q4(fA(D,1,tt))}, {q4(fB(D,1,jt))}, {d}')
                run(b, cv[3:])
            stamp(b, 2)
            for k in range(12 - LAG, 12):
                if k == 11: b.e('s_nop 0')
                run(b, conv(*tiles[k]))
    b.e('s_waitcnt lgkmcnt(0)')
    b.wait_vm(('kv', 1))
    b.wait_vm(('ep',))
    epoch_tags(b, 222)
    b.e('s_barrier')
    if not KVREG: kvpair_static(b, 5)
    for s in range(4):
        for jt in range(3):
            b.e(f'ds_read_b128 {q4(qf(s,jt))}, v{VQR} offset:{jt*4096 + (s//2)*1024 + (s%2)*512}', ('qr', s))
    return b

def kread(b, f):
    kt, s = f // 4, f % 4
    b.e(f'ds_read_b128 {q4(KR+4*(f%4))}, v{VK} offset:{kt*4096 + (s//2)*1024 + (s%2)*512}', ('k', f))
def vread(b, t):
    tau = t // 2
    a = VVO if t % 2 else VVE
    for u in range(2):
        b.e(f'ds_read_b64_tr_b16 {q2(VR+4*(t%4)+2*u)}, v{a} offset:{u*4096 + (tau//2)*1024 + (tau%2)*512}', ('v', t))
def kadv(b, first=False):
    if first:
        b.e(f'v_add_u32 v{VK}, {CH}, v{VK}')
        b.e(f's_mov_b32 s45, {slot(1)}')
        return
    b.e(f's_cmp_ge_u32 s45, {LDS_TOT - 2*CH}')
    b.e(f's_cselect_b32 s47, s50, s51')
    b.e(f's_add_u32 s45, s45, s47')
    b.e(f'v_add_u32 v{VK}, s47, v{VK}')
def vadv(b):
    b.e(f's_cmp_ge_u32 s46, {LDS_TOT - 2*CH}')
    b.e(f's_cselect_b32 s47, s50, s51')
    b.e(f's_add_u32 s46, s46, s47')
    b.e(f'v_add_u32 v{VVE}, s47, v{VVE}')
    b.e(f'v_add_u32 v{VVO}, s47, v{VVO}')


def dma_k(b, part=None):
    b.e('s_mov_b32 m0, s57')
    b.e(f's_cmp_ge_u32 s57, s61')
    b.e('s_cselect_b32 s62, s50, s51')
    so = 's59'
    if KROT:
        b.e('s_add_u32 s56, s7, s59'); b.e('s_and_b32 s56, s56, 0x3ffff')
        b.e('s_cmp_lt_u32 s59, 0x40000'); b.e('s_cselect_b32 s56, s56, s59'); so = 's56'
    b.e(f'buffer_load_dwordx4 v{VKV}, {srd(S_K)}, {so} offen {KVPOL} lds', ('kd',))
    if SMOOTH: return
    dma2_k(b)
def dma2_k(b):
    so = 's56' if KROT else 's59'
    b.e(f'buffer_load_dwordx4 v{VKV}, {srd(S_K)}, {so} offen offset:2048 {KVPOL} lds', ('kd',))
    b.e('s_add_u32 s57, s57, s62')
    b.e(f's_add_u32 s59, s59, {CH}')
def dma_v(b, part=None):
    b.e('s_mov_b32 m0, s58')
    b.e(f's_cmp_ge_u32 s58, s61')
    b.e('s_cselect_b32 s62, s50, s51')
    so = 's60'
    if KROT:
        b.e('s_add_u32 s56, s7, s60'); b.e('s_and_b32 s56, s56, 0x3ffff')
        b.e('s_cmp_lt_u32 s60, 0x40000'); b.e('s_cselect_b32 s56, s56, s60'); so = 's56'
    b.e(f'buffer_load_dwordx4 v{VKV}, {srd(S_V)}, {so} offen {KVPOL} lds', ('vd',))
    if SMOOTH: return
    dma2_v(b)
def dma2_v(b):
    so = 's56' if KROT else 's60'
    b.e(f'buffer_load_dwordx4 v{VKV}, {srd(S_V)}, {so} offen offset:2048 {KVPOL} lds', ('vd',))
    b.e('s_add_u32 s58, s58, s62')
    b.e(f's_add_u32 s60, s60, {CH}')

PS = TMP + 8

def guarded(fn, T):
    def g(b):
        if T is None: return fn(b)
        role.n += 1; l = f'SK{role.n}'
        b.e(f's_cmp_eq_u32 s44, {T}')
        b.e(f's_cbranch_scc1 {l}')
        fn(b)
        b.e(f'{l}:')
    return g

def qk_backbone(S, cinit, nextV=True, first=False, qwait=False, dma=None):
    bb = []
    for f in range(8):
        kt, s = f // 4, f % 4
        for jt in range(3):
            def slot(b, f=f, kt=kt, s=s, jt=jt):
                if jt == 0:
                    if qwait and f < 4: b.wait_lgkm(('qr', s))
                    if not PAIRW: b.wait_lgkm(('k', f))
                    elif PAIRW == 2 and f == 0: b.wait_lgkm(('k', 3))
                    elif f % 2 == 0: b.wait_lgkm(('k', f + 1)); b.wait_lgkm(('k', f))
                d = q4(st(S, kt, jt))
                c = d if s else (q4(NEGM + 4 * jt) if cinit == 'negm' else '0')
                b.e(f'{MF} {d}, {q4(KR+4*(f%4))}, {q4(qf(s,jt))}, {c}')
                if jt == 2:
                    if f < 4: kread(b, f + 4)
                    if f == 3: kadv(b, first)
                    if f >= 4:
                        if nextV == 'K': kread(b, f - 4)
                        elif nextV: vread(b, f - 4)
                if POS and dma:
                    if jt == 1:
                        for p, fn in zip(POS[2:], (dma_k, dma2_k)):
                            if p == 8 + f: fn(b)
                    return
                if dma and not NODMA and not BOTH and f == int(OPT.get('kat', 0)) and jt == 1: dma(b)
                if SMOOTH and dma and not NODMA and f == int(OPT.get('kat', 0)) + 4 and jt == 1: dma2_k(b)
            bb.append(slot)
    return bb

def pv_backbone(P, nextK=True, dma=None, adv=True):
    first_guard = (P == SA and LEAD == 6)
    bb = []
    for t in range(8):
        for jt in range(3):
            def slot(b, t=t, jt=jt):
                if jt == 0:
                    if not PAIRW: b.wait_lgkm(('v', t))
                    elif PAIRW == 2 and t == 0: b.wait_lgkm(('v', 3))
                    elif t % 2 == 0: b.wait_lgkm(('v', t + 1)); b.wait_lgkm(('v', t))
                d = q4(acc(t, jt))
                b.e(f'{MF} {d}, {q4(VR+4*(t%4))}, {q4(st(P,0,jt))}, {d}')
                if jt == 2:
                    if t < 4: vread(b, t + 4)
                    if t == 3 and adv: vadv(b)
                    if t >= 4 and nextK: kread(b, t - 4)
                if POS and nextK:
                    if jt == 1:
                        for p, fn in zip(POS, (dma, guarded(dma2_v, 0) if first_guard else dma2_v, dma_k, dma2_k)):
                            if p == t: fn(b)
                    return
                if dma and not NODMA and t == (int(OPT.get('vat', 0)) if nextK else 0) and jt == 1: dma(b)
                if SMOOTH and nextK and dma and not NODMA and t == int(OPT.get('vat', 0)) + 4 and jt == 1: (guarded(dma2_v, 0) if first_guard else dma2_v)(b)
                if BOTH and nextK and not NODMA and t == BOTH and jt == 1: dma_k(b)
            bb.append(slot)
    return bb

def sregs(S, jt): return [st(S, 0, jt) + i for i in range(4)] + [st(S, 1, jt) + i for i in range(4)]

def sm_fillers(S):
    fl = []
    for kt in range(2):
        for jt in range(3):
            r = sregs(S, jt)
            o = 4 * kt
            fl.append(E(f'v_exp_f32 v{r[o]}, v{r[o]}'))
            fl.append(E(f'v_exp_f32 v{r[o+1]}, v{r[o+1]}'))
            if kt: fl.append(E(f'v_add_f32 v{PS+jt}, v{PS+jt}, v{r[o]}'))
            fl.append(E(f'v_exp_f32 v{r[o+2]}, v{r[o+2]}'))
            if kt: fl.append(E(f'v_add_f32 v{PS+jt}, v{PS+jt}, v{r[o+1]}'))
            else: fl.append(E(f'v_add_f32 v{PS+jt}, v{r[0]}, v{r[1]}'))
            fl.append(E(f'v_exp_f32 v{r[o+3]}, v{r[o+3]}'))
            fl.append(E(f'v_add_f32 v{PS+jt}, v{PS+jt}, v{r[o+2]}'))
            fl.append(E(f'v_cvt_pk_bf16_f32 v{r[2*kt]}, v{r[o]}, v{r[o+1]}'))
            fl.append(E(f'v_add_f32 v{PS+jt}, v{PS+jt}, v{r[o+3]}'))
            fl.append(E(f'v_cvt_pk_bf16_f32 v{r[2*kt+1]}, v{r[o+2]}, v{r[o+3]}'))
    return fl

def chk_fillers():
    return [E(f'v_max3_f32 v{TMP}, v{PS}, v{PS+1}, v{PS+2}'), E(f'v_cmp_nle_f32 vcc, v{TMP}, v{TMP+11}')]
def ladd_fillers():
    return [E(f'v_add_f32 v{LS+jt}, v{LS+jt}, v{PS+jt}') for jt in range(3)]

def xreduce3(regs, tmps, op):
    fl = []
    for sw in ('v_permlane32_swap_b32', 'v_permlane16_swap_b32'):
        for r, t in zip(regs, tmps): fl.append(E(f'v_mov_b32 v{t}, v{r}'))
        for r, t in zip(regs, tmps): fl.append(E(f'{sw} v{r}, v{t}'))
        for r, t in zip(regs, tmps): fl.append(E(f'{op} v{r}, v{r}, v{t}'))
    return fl

MX = [TMP + 1, TMP + 2, TMP + 3]; MT = [TMP + 4, TMP + 5, TMP + 6]
def rowmax3(S):
    fl = []
    R = [sregs(S, jt) for jt in range(3)]
    for jt in range(3): fl.append(E(f'v_max3_f32 v{MX[jt]}, v{R[jt][0]}, v{R[jt][1]}, v{R[jt][2]}'))
    for jt in range(3): fl.append(E(f'v_max3_f32 v{MX[jt]}, v{MX[jt]}, v{R[jt][3]}, v{R[jt][4]}'))
    for jt in range(3): fl.append(E(f'v_max3_f32 v{MX[jt]}, v{MX[jt]}, v{R[jt][5]}, v{R[jt][6]}'))
    for jt in range(3): fl.append(E(f'v_max_f32 v{MX[jt]}, v{MX[jt]}, v{R[jt][7]}'))
    return fl + xreduce3(MX, MT, 'v_max_f32')

def rare_path(ctx, name, Y, X, back):
    snap = ctx.snap()
    r = Block(ctx, name + 'r')
    r.e(f'{name}_RARE:')
    r.e(f's_cmp_ge_u32 s45, {back*CH}')
    r.e(f's_cselect_b32 s47, 0, {LDS_TOT}')
    r.e(f's_sub_u32 s47, s47, {back*CH}')
    r.e(f'v_add_u32 v{TMP+7}, s47, v{VK}')
    for kt in range(2):
        for s in range(4):
            r.e(f'ds_read_b128 {q4(KR+4*s)}, v{TMP+7} offset:{kt*4096 + (s//2)*1024 + (s%2)*512}', ('rk',))
        r.e('s_waitcnt lgkmcnt(0)')
        for s in range(4):
            for jt in range(3):
                d = q4(st(Y, kt, jt))
                r.e(f'{MF} {d}, {q4(KR+4*s)}, {q4(qf(s,jt))}, {d if s else q4(NEGM+4*jt)}')
    r.e('s_nop 7')
    run(r, rowmax3(Y))
    for jt in range(3): r.e(f'v_max_f32 v{MX[jt]}, 0, v{MX[jt]}')
    for jt in range(3): r.e(f'v_exp_f32 v{MT[jt]}, -v{MX[jt]}')
    for jt in range(3):
        for q in sregs(Y, jt) + (sregs(X, jt) if X else []) + [NEGM + 4 * jt + i for i in range(4)]:
            r.e(f'v_sub_f32 v{q}, v{q}, v{MX[jt]}')
        r.e(f'v_mul_f32 v{LS+jt}, v{LS+jt}, v{MT[jt]}')
        for t in range(8):
            for i in range(4): r.e(f'v_mul_f32 v{acc(t,jt)+i}, v{acc(t,jt)+i}, v{MT[jt]}')
    run(r, sm_fillers(Y))
    r.e('s_nop 1')
    r.e(f's_branch {name}_JOIN')
    ctx.restore(snap)
    return r

def k1_att_prologue(ctx):
    b = Block(ctx, 'att_pro')
    for f in range(4): kread(b, f)
    nk, nv = {0: (7, 8), 1: (11, 10), 2: (9, 8), 3: (9, 8)}[KVREG]
    if LEAD == 8: nk, nv = 9, 8
    b.e(f's_add_u32 s57, s52, {slot(nk)}')
    b.e(f's_add_u32 s58, s52, {slot(nv)}')
    b.e(f's_mov_b32 s59, {chunk_of(nk)[1]*CH}')
    b.e(f's_mov_b32 s60, {chunk_of(nv)[1]*CH}')
    b.e(f's_add_u32 s61, s52, {LDS_TOT - 2*CH}')
    b.e(f'v_mov_b32 v{TMP+11}, {hex(f2u(THR))}')
    if FUSED and WARM:
        b.e('s_lshr_b32 s55, s41, 3'); b.e('s_mul_i32 s55, s55, 1179648')
        b.e('s_and_b32 s56, s41, 3'); b.e('s_mul_i32 s62, s56, 288'); b.e('s_add_u32 s55, s55, s62')
        b.e('s_and_b32 s62, s41, 1'); b.e('s_lshl_b32 s62, s62, 5'); b.e('s_sub_u32 s55, s55, s62')
        b.e('s_lshl_b32 s56, s56, 1'); b.e('s_and_b32 s62, s41, 4'); b.e('s_add_u32 s56, s56, s62')
        b.e('s_and_b32 s62, s40, 3'); b.e('s_add_u32 s56, s56, s62'); b.e('s_and_b32 s56, s56, 7')
        b.e('s_mul_i32 s56, s56, 147456'); b.e('s_add_u32 s55, s55, s56')
        b.e('s_mul_i32 s56, s42, 18432'); b.e('s_add_u32 s55, s55, s56')
        b.e('s_add_u32 s28, s12, s55'); b.e('s_addc_u32 s29, s13, 0')
        b.e('s_sub_u32 s30, 4718592, s55'); b.e('s_mov_b32 s31, 0x20000')
    zero = [E(f'v_mov_b32 v{ACC+i}, 0') for i in range(48)]
    run(b, interleave(qk_backbone(SA, '0', nextV='K', first=True, qwait=True), zero))
    b.wait_vm(('kv', 2))
    b.e('s_barrier')
    if WARM >= 2:
        b.e(f'v_lshrrev_b32 v{TMP+7}, 6, v{VL16}'); b.e(f'v_mul_u32_u24 v{TMP+7}, 1152, v{TMP+7}')
        b.e(f'v_and_b32 v{TMP}, 48, v{VL16}'); b.e(f'v_lshlrev_b32 v{TMP}, 3, v{TMP}'); b.e(f'v_min_u32 v{TMP}, 316, v{TMP}')
        b.e(f'v_add_u32 v{TMP+7}, v{TMP+7}, v{TMP}')
        b.e(f'buffer_load_dword v{TMP}, v{TMP+7}, s[28:31], 0 offen', ('warm0',))
    if KVREG >= 2:
        kvpair_static(b, 6)
        kvpair_static(b, 7)
    elif KVREG:
        kvpair_static(b, 8)
        kvpair_static(b, 9)
        run(b, kv_to_lds(7)[:1] + kv_to_lds(7)[1:] + kv_to_lds(6))
    else:
        kvpair_static(b, 6)
        if LEAD == 8: kvpair_static(b, 7)
    if TOUCH:
        b.e(f'v_lshlrev_b32 v{TMP+7}, {12 if TOUCH == 1 else 17}, v{VL16}')
        b.e('s_mov_b32 s100, 0x20000')
        for base, size, off in ((12, 4718592, 0), (18, 0x1000000, 0), (18, 0x1000000, 0x400000), (18, 0x1000000, 0x800000), (18, 0x3000000, 0x2000000), (18, 0x3000000, 0x2400000), (18, 0x3000000, 0x2800000), (18, 0x3000000, 0x2c00000), (14, 1769472, 0)):
            b.e(f's_mov_b32 s28, s{base}'); b.e(f's_mov_b32 s29, s{base+1}'); b.e(f's_mov_b32 s30, {size}'); b.e('s_mov_b32 s31, 0x20000')
            b.e(f's_mov_b32 s56, {off}')
            b.e(f'buffer_load_dword v{TMP}, v{TMP+7}, s[28:31], s56 offen', ('touch',))
        b.e('s_waitcnt vmcnt(0)')
    run(b, rowmax3(SA))
    for jt in range(3):
        for i in range(4): b.e(f'v_sub_f32 v{NEGM+4*jt+i}, 0, v{MX[jt]}')
    sub = [E(f'v_sub_f32 v{r}, v{r}, v{MX[jt]}') for kt in range(2) for jt in range(3) for r in sregs(SA, jt)[4*kt:4*kt+4]]
    run(b, interleave(qk_backbone(SB, 'negm', nextV=True), sub + sm_fillers(SA)))
    b.e('s_mov_b32 s44, 0')
    if PRIO:
        b.e('s_cmp_ge_u32 s42, 4'); b.e('s_cbranch_scc0 NOPRIO'); b.e('s_setprio 1'); b.e('NOPRIO:')
    stamp(b, 3)
    return b

def winter(backbone, fillers, start, end):
    if not int(OPT.get('cw', 0)): return interleave(backbone, fillers, start, end)
    class Probe:
        def e(self, t, tag=None): self.t = t
    w = []
    for f in fillers:
        p = Probe(); p.t = ''
        try: f(p)
        except Exception: pass
        w.append(2 if p.t.startswith('v_exp') else 1)
    tot = sum(w); n = len(backbone); span = end - start
    out = []; k = 0; acc_ = 0
    for i in range(n):
        out.append(backbone[i])
        if start <= i < end:
            tgt = tot * (i - start + 1) / span
            while k < len(fillers) and acc_ + w[k] / 2 <= tgt:
                out.append(fillers[k]); acc_ += w[k]; k += 1
    return out + fillers[k:]

def pv_phase(ctx, name, P, S, nextK=True, head=None, dma=None, vmw=4, bar=True, extra=(), split=None):
    a = Block(ctx, name)
    if head: head(a)
    if bar:
        a.e(f's_waitcnt vmcnt({(int(OPT.get("vmb", 2)) if NOBARQK else vmw) + 2 * (LEAD - 6)})')
        a.e('s_barrier')
    fl = ladd_fillers() + (sm_fillers(S)[:split or SM_SPLIT] if S else []) + list(extra)
    run(a, winter(pv_backbone(P, nextK, dma, adv=bar), fl, int(OPT.get('pvs', 2)), 24))
    return a

def qk_phase(ctx, name, D, S, dma):
    b = Block(ctx, name)
    if not NOBARQK:
        b.e('s_waitcnt vmcnt(4)')
        b.e('s_barrier')
    run(b, winter(qk_backbone(D, 'negm', dma=dma), sm_fillers(S)[SM_SPLIT:] + chk_fillers(), 0, 23))
    b.e(f's_cbranch_vccnz {name}_RARE')
    r = rare_path(ctx, name, S, D, 4)
    j = Block(ctx, name + 'j'); j.e(f'{name}_JOIN:')
    return b, r, j

def pol_store(b, text, tag):
    b.e(text + ' sc1', tag)

EXB = 4 * CH
MLB = 24576
XA = SA + 20
def vread_as(b, t, k):
    tau = t // 2
    a = VVO if t % 2 else VVE
    for u in range(2):
        b.e(f'ds_read_b64_tr_b16 {q2(VR+4*(k%4)+2*u)}, v{a} offset:{u*4096 + (tau//2)*1024 + (tau%2)*512}', ('v', k))
def order_of(r): return [4, 5, 6, 7, 0, 1, 2, 3] if r == A else list(range(8))

def last_pv(ctx):
    b = Block(ctx, 'L3')
    b.e('L2_JOIN:')
    setup = tail_setup()
    red = ladd_fillers() + xreduce3([LS, LS + 1, LS + 2], MT, 'v_add_f32')
    for r in (A, B):
        with role(b, r):
            od = order_of(r)
            bb = []
            for k, t in enumerate(od):
                for jt in range(3):
                    def slot_(b, k=k, t=t, jt=jt):
                        if jt == 0 and k % 2 == 0: b.wait_lgkm(('v', k + 1))
                        d = q4(acc(t, jt))
                        b.e(f'{MF} {d}, {q4(VR+4*(k%4))}, {q4(st(SB,0,jt))}, {d}')
                        if jt == 2 and k < 4: vread_as(b, od[k + 4], k + 4)
                    bb.append(slot_)
            snd = [E(f'ds_write_b128 v{XA}, {q4(acc(t, jt))} offset:{(3*i+jt)*1024}', ('x',)) for i, t in enumerate(od[:4]) for jt in range(3)]
            run(b, interleave(bb[:12], red + setup[:10], start=1))
            mixed = []
            for k in range(max(len(snd), len(setup) - 10)):
                if 10 + k < len(setup): mixed.append(setup[10 + k])
                if k < len(snd): mixed.append(snd[k])
            run(b, interleave(bb[12:], mixed, start=0))
    return b

def k1_epilogue(ctx):
    b = Block(ctx, 'epi')
    stamp(b, 4)
    if STAMP and OPT.get('rt4'): b.e('s_memrealtime s[84:85]')
    b.e('s_xor_b32 s46, s42, 4')
    b.e(f'v_lshrrev_b32 v{VVO}, 1, v{VL16}')
    b.e('s_mul_i32 s43, s42, 1536')
    b.e('s_mul_i32 s45, s46, 1536')
    b.e(f's_add_u32 s43, s43, {MLB}')
    b.e(f's_add_u32 s45, s45, {MLB}')
    b.e(f'v_add_u32 v{VKV}, s43, v{VVO}')
    b.e(f'v_add_u32 v{VVO}, s45, v{VVO}')
    for jt in range(3):
        b.e(f'v_mov_b32 v{NEGM+4*jt+1}, v{LS+jt}')
    for jt in range(3):
        b.e(f'ds_write_b64 v{VKV}, {q2(NEGM+4*jt)} offset:{jt*512}', ('x',))
    b.e('s_and_b32 s43, s42, 3')
    b.e('s_mul_i32 s43, s43, 393216')
    b.e('s_lshl_b32 s45, s41, 12')
    b.e('s_add_u32 s43, s43, s45')
    b.e('s_lshl_b32 s45, s54, 11')
    b.e('s_add_u32 s43, s43, s45')
    b.e('s_add_u32 s45, s43, 131072')
    b.e('s_add_u32 s46, s43, 262144')
    so = ['s43', 's45', 's46']
    b.e('s_waitcnt lgkmcnt(0)')
    b.e('s_barrier')
    RX = QF
    ML = SA
    for jt in range(3):
        b.e(f'ds_read_b64 {q2(ML+2*jt)}, v{VVO} offset:{jt*512}', ('ml',))
    for i in range(12):
        b.e(f'ds_read_b128 {q4(RX+4*i)}, v{XA+1} offset:{i*1024}', ('rx', i))
    b.wait_lgkm(('ml',))
    C = SA + 8
    T = [TMP, TMP + 4, TMP + 8]
    def each(f):
        for jt in range(3): b.e(f(jt, NEGM + 4 * jt, NEGM + 4 * jt + 1, ML + 2 * jt, ML + 2 * jt + 1, T[jt]))
    each(lambda jt, no, lo, np_, lp, t: f'v_min_f32 v{t}, v{no}, v{np_}')
    each(lambda jt, no, lo, np_, lp, t: f'v_sub_f32 v{t+1}, v{t}, v{no}')
    each(lambda jt, no, lo, np_, lp, t: f'v_sub_f32 v{t+2}, v{t}, v{np_}')
    each(lambda jt, no, lo, np_, lp, t: f'v_exp_f32 v{t+1}, v{t+1}')
    each(lambda jt, no, lo, np_, lp, t: f'v_exp_f32 v{t+2}, v{t+2}')
    each(lambda jt, no, lo, np_, lp, t: f'v_mul_f32 v{t+3}, v{t+1}, v{lo}')
    each(lambda jt, no, lo, np_, lp, t: f'v_fmac_f32 v{t+3}, v{t+2}, v{lp}')
    each(lambda jt, no, lo, np_, lp, t: f'v_rcp_f32 v{t+3}, v{t+3}')
    b.e('s_nop 0')
    for x, src in ((0, 1), (1, 1), (2, 2), (3, 2)):
        each(lambda jt, no, lo, np_, lp, t: f'v_mul_f32 v{C+4*jt+x}, v{t+src}, v{t+3}')
    OUT = SB
    snap = ctx.snap()
    for r in (A, B):
        with role(b, r):
            keep = range(0, 4) if r == A else range(4, 8)
            for sp in range(2):
                for jt in range(3):
                    o = OUT + 4 * (3 * sp + jt)
                    for h in range(2):
                        i = 2 * sp + h
                        a = acc(keep[i], jt); x = RX + 4 * (3 * i + jt)
                        b.wait_lgkm(('rx', 3 * i + jt))
                        b.e(f'v_pk_mul_f32 {q2(a)}, {q2(a)}, {q2(C+4*jt)}')
                        b.e(f'v_pk_mul_f32 {q2(a+2)}, {q2(a+2)}, {q2(C+4*jt)}')
                        b.e(f'v_pk_fma_f32 {q2(a)}, {q2(x)}, {q2(C+4*jt+2)}, {q2(a)}')
                        b.e(f'v_pk_fma_f32 {q2(a+2)}, {q2(x+2)}, {q2(C+4*jt+2)}, {q2(a+2)}')
                        b.e(f'v_cvt_pk_bf16_f32 v{o+2*h}, v{a}, v{a+1}')
                        b.e(f'v_cvt_pk_bf16_f32 v{o+2*h+1}, v{a+2}, v{a+3}')
                    pol_store(b, f'buffer_store_dwordx4 {q4(o)}, v{VL16}, {srd(S_O)}, {so[jt]} offen offset:{sp*1024}', ('o',))
    if FUSED:
        b.e('s_bfe_u32 s43, s42, 0x10001')
        b.e('s_cmp_eq_u32 s43, s49')
        b.e('s_cbranch_scc0 OWN_SKIP')
        b.e('s_and_b32 s43, s42, 1'); b.e('s_mul_i32 s43, s43, 6144')
        b.e(f's_mul_i32 s45, s54, {OS_}'); b.e('s_add_u32 s43, s43, s45')
        b.e(f'v_add_u32 v{VK}, s43, v{VL16}')
        for sp in range(2):
            for jt in range(3):
                b.e(f'ds_write_b128 v{VK}, {q4(OUT + 4 * (3 * sp + jt))} offset:{(2*jt+sp)*1024}', ('oo',))
        b.e('OWN_SKIP:')
    if not FUSED:
        if STAMP:
            b.e('s_waitcnt vmcnt(0)')
            stamp(b, 5)
            dump_stamps(b)
        b.e('K1_END:')
        b.e('s_endpgm')
    return b

def dump_stamps(b):
    b.e('s_memrealtime s[88:89]')
    b.e('s_waitcnt lgkmcnt(0)')
    if STAMP == 2:
        b.e(f's_cmp_eq_u32 s2, {int(OPT.get("dbgwg", 0))}'); b.e('s_cbranch_scc0 DBG_SKIP')
        b.e('s_cmp_eq_u32 s42, 2'); b.e('s_cbranch_scc0 DBG_SKIP')
        b.e('s_mov_b32 s56, s16'); b.e('s_mov_b32 s57, s17'); b.e('s_mov_b32 s58, 256'); b.e('s_mov_b32 s59, 0x20000')
        b.e('v_mov_b32 v1, 0')
        for i in range(1, 11):
            b.e(f's_sub_u32 s43, s{64+2*i}, s64'); b.e('v_mov_b32 v2, s43')
            b.e(f'buffer_store_dword v2, v1, s[56:59], 0 offen offset:{4*i}')
            b.e('s_waitcnt vmcnt(0)')
        b.e('s_sub_u32 s43, s88, s86'); b.e('v_mov_b32 v2, s43')
        b.e('buffer_store_dword v2, v1, s[56:59], 0 offen offset:44')
        b.e('s_waitcnt vmcnt(0)')
        b.e('DBG_SKIP:')
        return
    b.e('s_lshl_b32 s43, s2, 3'); b.e('s_add_u32 s43, s43, s42'); b.e('s_lshl_b32 s43, s43, 7')
    b.e('s_add_u32 s43, s43, 0x1000000')
    b.e('s_add_u32 s56, s18, s43'); b.e('s_addc_u32 s57, s19, 0'); b.e('s_mov_b32 s58, 128'); b.e('s_mov_b32 s59, 0x20000')
    b.e('v_mov_b32 v1, 0')
    for i in range(13):
        b.e(f'v_mov_b32 v2, s{64+2*i}'); b.e(f'v_mov_b32 v3, s{65+2*i}')
        b.e(f'buffer_store_dwordx2 v[2:3], v1, s[56:59], 0 offen offset:{8*i}')
        b.e('s_waitcnt vmcnt(0)')

def poll(b, name, load, notyet):
    b.e('s_mov_b32 s91, 0')
    b.e(f'{name}:')
    b.e(load)
    b.e('s_add_u32 s91, s91, 1')
    b.e('s_waitcnt vmcnt(0)')
    b.e(notyet)
    b.e('s_cmp_lt_u32 s91, 0x40000')
    b.e(f's_cbranch_vccz {name}_GO')
    b.e(f's_sleep {SLEEP}')
    b.e(f's_cbranch_scc1 {name}')
    b.e(f'{name}_GO:')

BIG, SML, LW, LO = (2, 3), (0, 1, 4, 5), (6,), (7,)
S_WO, S_OI, S_P, S_PI, S_OUT = 20, 24, 28, 32, 36
VAP = 192; VB = 197; VT = 198; VE = 202; GS = 208; XF = 248
WS_ = 20480; NW_ = 6; OS_ = 12288; NO_ = 3; WOB = NO_ * OS_

def tail_setup():
    P = []
    def piece(*lines): P.append(lambda b: [b.e(l) for l in lines])
    piece('s_lshr_b32 s47, s41, 3', 's_and_b32 s48, s41, 7')
    piece('s_lshr_b32 s49, s48, 2', 's_and_b32 s50, s48, 3')
    piece('s_and_b32 s51, s50, 1', 's_mul_i32 s55, s47, 1179648')
    piece('s_mul_i32 s61, s50, 288', 's_add_u32 s55, s55, s61')
    piece('s_lshl_b32 s61, s51, 5', 's_sub_u32 s55, s55, s61')
    piece('s_mul_i32 s61, s40, 1572864', 's_mul_i32 s100, s49, 786432')
    piece('s_add_u32 s61, s61, s100', 's_lshl_b32 s100, s47, 15')
    piece('s_add_u32 s61, s61, s100', f's_sub_u32 s{S_WO+2}, 4718592, s55')
    piece(f's_add_u32 s{S_WO}, s12, s55', f's_addc_u32 s{S_WO+1}, s13, 0')
    piece(f's_add_u32 s{S_OI}, s18, s61', f's_addc_u32 s{S_OI+1}, s19, 0')
    piece(f's_mov_b32 s{S_WO+3}, 0x20000', f's_mov_b32 s{S_OI+2}, {5*131072 + 32768}', f's_mov_b32 s{S_OI+3}, 0x20000')
    piece('s_lshl_b32 s52, s40, 3', 's_add_u32 s52, s52, s48')
    piece(f's_mul_i32 s52, s52, {16*INB}', f's_add_u32 s52, s52, {POFF}')
    piece(f's_mul_i32 s61, s47, {INB}', 's_add_u32 s61, s61, s52')
    piece(f's_add_u32 s{S_P}, s18, s61', f's_addc_u32 s{S_P+1}, s19, 0')
    piece(f's_mov_b32 s{S_P+2}, {13*INB}', f's_mov_b32 s{S_P+3}, 0x20000')
    piece(f's_mul_i32 s61, s47, {4*INB}', 's_add_u32 s61, s61, s52')
    piece(f's_add_u32 s{S_PI}, s18, s61', f's_addc_u32 s{S_PI+1}, s19, 0')
    piece(f's_mov_b32 s{S_PI+2}, {4*INB}', f's_mov_b32 s{S_PI+3}, 0x20000')
    piece('s_mul_i32 s52, s40, 192', 's_mul_i32 s61, s49, 96')
    piece('s_add_u32 s52, s52, s61', 's_lshl_b32 s61, s47, 2')
    piece('s_add_u32 s52, s52, s61', 's_mul_i32 s52, s52, 1152')
    piece('s_mul_i32 s61, s50, 288', 's_add_u32 s6, s52, s61')
    piece('s_lshr_b32 s100, s50, 1', 's_and_b32 s99, s90, 0xfffffc00')
    return P

def head_of(b, U):
    G = U // 2
    b.e(f's_add_u32 s55, s48, {G >> 1}'); b.e('s_and_b32 s55, s55, 3')
    b.e(f's_xor_b32 s61, s48, {(G & 1) << 2}'); b.e('s_and_b32 s61, s61, 4'); b.e('s_or_b32 s55, s55, s61')

def oproj(ctx):
    FB = 64
    b = Block(ctx, 'op_pre')
    stamp(b, 2, True)
    b.e(f'v_lshrrev_b32 v{VT+3}, 4, v{VL16}')
    T0 = 216
    v3, v4, v5, v6, v7 = (f'v{T0+i}' for i in range(5))
    VL = 224
    b.e(f'v_and_b32 {v3}, 3, v{VT+3}')
    with role(b, BIG + SML):
        b.e('s_and_b32 s43, s42, 1')
        b.e('s_cmp_lt_u32 s42, 2'); b.e('s_cselect_b32 s45, 5, 0')
        b.e('s_cmp_ge_u32 s42, 4'); b.e('s_cselect_b32 s45, 7, s45')
        b.e(f'v_lshrrev_b32 {v4}, 4, v{VT+3}'); b.e(f'v_bfe_u32 {v5}, v{VT+3}, 2, 4')
        b.e(f'v_and_b32 {v7}, 7, {v5}'); b.e(f'v_lshlrev_b32 {v7}, 6, {v7}'); b.e(f'v_lshlrev_b32 {v5}, 6, {v5}')
        b.e(f'v_and_b32 {v6}, 1, {v4}'); b.e(f'v_lshlrev_b32 {v6}, 5, {v6}'); b.e(f'v_lshl_add_u32 {v6}, {v3}, 3, {v6}')
        b.e(f'v_add_u32 {v5}, {v5}, {v6}'); b.e(f'v_add_u32 {v7}, {v7}, {v6}')
        b.e(f'v_lshrrev_b32 {v6}, 1, {v4}'); b.e(f'v_lshl_add_u32 {v7}, {v6}, 12, {v7}')
        b.e('s_add_u32 s101, s45, s51')
        for n in range(5):
            b.e(f's_add_u32 s52, s101, {n}')
            b.e('s_and_b32 s91, s52, 1'); b.e('s_lshl_b32 s91, s91, 5')
            b.e('s_lshr_b32 s52, s52, 1'); b.e('s_sub_u32 s52, s52, s100')
            b.e('s_and_b32 s54, s52, 1'); b.e('s_lshl_b32 s54, s54, 9')
            b.e('s_lshr_b32 s55, s52, 1'); b.e('s_lshl_b32 s55, s55, 13'); b.e('s_add_u32 s54, s54, s55')
            b.e('s_cmp_lt_u32 s52, 4'); b.e('s_cselect_b32 s54, s54, 16384'); b.e('s_cselect_b64 vcc, -1, 0')
            b.e(f's_add_u32 s54, s54, {WOB}')
            b.e(f'v_cndmask_b32 v{VAP+n}, {v5}, {v7}, vcc')
            b.e(f'v_xor_b32 v{VAP+n}, s91, v{VAP+n}'); b.e(f'v_add_u32 v{VAP+n}, s54, v{VAP+n}')
        b.e('s_mul_i32 s52, s43, 6144')
        b.e(f'v_add_u32 v{VB}, s52, v{VL16}')
        b.e(f'v_bfe_u32 {v6}, v{VT+3}, 2, 2'); b.e(f'v_mul_u32_u24 {v6}, {4*INB}, {v6}')
        b.e(f'v_lshl_add_u32 {v6}, {v4}, 6, {v6}'); b.e(f'v_lshl_add_u32 v{VT+2}, {v3}, 4, {v6}')
        b.e('s_mul_i32 s52, s43, 27'); b.e('s_add_u32 s52, s52, s45'); b.e('s_lshl_b32 s5, s52, 8')
        b.e('s_mul_i32 s52, s43, 9'); b.e('s_add_u32 s52, s52, s45'); b.e('s_lshl_b32 s4, s52, 9')
    VH = VL + 8
    with role(b, LW + LO):
        for V, full in ((VL, True), (VH, False)):
            if full:
                b.e(f'v_bfe_u32 {v4}, v{VT+3}, 2, 3'); b.e(f'v_lshrrev_b32 {v6}, 5, v{VT+3}')
                b.e(f'v_mul_u32_u24 {v5}, 1152, {v4}'); b.e(f'v_lshl_add_u32 {v5}, {v6}, 6, {v5}')
                b.e('s_lshl_b32 s52, s100, 6')
            else:
                b.e(f'v_lshrrev_b32 {v4}, 2, v{VT+3}'); b.e(f'v_mul_u32_u24 {v5}, 1152, {v4}')
                b.e('s_lshl_b32 s52, s100, 8'); b.e('s_sub_u32 s52, 256, s52')
            b.e(f'v_bfe_u32 {v4}, {v4}, 2, 1'); b.e(f'v_lshlrev_b32 {v4}, 1, {v4}'); b.e(f'v_xor_b32 {v4}, {v4}, {v3}')
            b.e(f'v_lshl_add_u32 {v5}, {v4}, 4, {v5}')
            b.e(f'v_add_u32 v{V}, s52, {v5}')
            for m in range(1, 4): b.e(f'v_add_u32 v{V+m}, {m*(18432-1024)}, v{V}')
    b.e(f'v_add_u32 v{VL+4}, {131072-2048}, v{VL16}')
    b.e(f'v_and_b32 v{VL+5}, 0x70, v{VL16}'); b.e(f'v_lshlrev_b32 v{VL+5}, 3, v{VL+5}')
    b.e('s_lshl_b32 s91, s42, 6')
    b.e(f'v_add_u32 v{VT}, s91, v{VT+3}')
    b.e(f'v_lshlrev_b32 v{VT}, 20, v{VT}')
    b.e(f'v_mov_b32 v{VT+1}, s97')
    b.e('s_waitcnt lgkmcnt(0)')
    b.wait_vm(('o',))
    b.e('s_barrier')
    FL = int(OPT.get('fl', 0))
    if FL == 0: b.e(f'buffer_store_dword v{VT+1}, v{VT}, {srd(S_F)}, s90 offen sc1', ('f1',))
    stamp(b, 5)
    b.e('s_cmp_eq_u32 s42, 6'); b.e('s_cbranch_scc1 OP_LW')
    b.e('s_cmp_eq_u32 s42, 7'); b.e('s_cbranch_scc1 OP_LO')
    b.e('s_bitcmp1_b32 12, s42'); b.e('s_cbranch_scc1 OP_BIG')

    def wo_off(x, U):
        head_of(x, U)
        x.e('s_mul_i32 s55, s55, 147456')
        if U % 2: x.e('s_add_u32 s55, s55, 73728')
    def wo_groups(x, groups):
        cur = None
        for U, ty in groups:
            if U != cur: wo_off(x, U); cur = U
            if len(ctx.c[ctx.active[0]].vm) > 59: x.e('s_waitcnt vmcnt(47)')
            x.e(f's_mov_b32 m0, {WOB + (U % NW_) * WS_ + ty * 4096}')
            x.e(f's_add_u32 s56, s55, {(ty % 2) * 9216 + (ty // 2) * 128 if ty < 4 else 0}')
            for m in range(4):
                x.e(f'buffer_load_dwordx4 v{(VL if ty < 4 else VH)+m}, {srd(S_WO)}, s56 offen offset:{m*1024} lds', ('w', U))
    def o_unit(x, U):
        head_of(x, U)
        if U % 2 == 0:
            role.n += 1; l = f'HP{role.n}'
            x.e('s_bitcmp1_b32 s3, s55')
            x.e(f's_cbranch_scc0 {l}_GO')
            for t in ['s_mov_b32 s91, 0', f'{l}:', f'buffer_load_dword v{VL+6}, v{VL+5}, {srd(S_F)}, s99 offen sc1', 's_add_u32 s91, s91, 1',
                      's_waitcnt vmcnt(0)', f'v_cmp_ne_u32 vcc, s97, v{VL+6}', 's_nop 0', 's_mov_b32 s3, vcc_lo', 's_bitcmp1_b32 s3, s55',
                      f's_cbranch_scc0 {l}_GO', f's_sleep {SLEEP}', 's_cmp_lt_u32 s91, 0x40000', f's_cbranch_scc1 {l}']:
                i = I(t); i.roles = (); x.append(i)
            x.e(f'{l}_GO:')
        x.e('s_lshl_b32 s55, s55, 12')
        if U % 2: x.e('s_add_u32 s55, s55, 2048')
        for g in range(3):
            x.e(f's_mov_b32 m0, {(U % NO_) * OS_ + g * 4096}')
            x.e(f's_add_u32 s56, s55, {g * 262144}')
            for m in range(4):
                x.e(f'buffer_load_dwordx4 v{VL16 if m < 2 else VL+4}, {srd(S_OI)}, s56 offen offset:{m*1024} lds', ('o2', U))
    def vwait(x, *tags):
        n = [ctx.count_after('vm', t) for t in tags]
        n = [k for k in n if k is not None]
        if n: x.e(f's_waitcnt vmcnt({min(min(n), 47)})')
    snap = ctx.snap()
    rest = [(U, ty) for U in range(6, 16) for ty in range(5)]
    PLAN = [int(x) for x in OPT.get('plan', '5,4,4,4,5,4,4,4,4,4,4,4').split(',')]
    assert sum(PLAN) == 50
    sched = []
    for k, n in enumerate(PLAN):
        g, rest = rest[:n], rest[n:]
        assert all(U - 7 <= k and U - 3 >= k for U, _ in g), (k, g)
        n6 = min(n, 4 if (k % 2 or k == 0) else 3)
        sched.append((g[:n6], g[n6:]))
    def loader(name, waves, me):
        lo = Block(ctx, name); ctx.active = list(waves)
        lo.e(f'{name}:')
        if me: lo.e('s_mov_b32 s3, 0xff')
        first = [(0, 0), (0, 1), (0, 2), (1, 0), (1, 1)] if me == 0 else [(0, 3), (0, 4), (1, 2), (1, 3), (1, 4)]
        wo_groups(lo, first)
        lo.e('s_waitcnt vmcnt(0)'); lo.e('s_barrier')
        if me == 0:
            wo_groups(lo, [(U, ty) for U in range(2, 6) for ty in range(4)])
        else:
            wo_groups(lo, [(2, 4), (3, 4)])
            stamp(lo, 3, True)
            o_unit(lo, 2)
            wo_groups(lo, [(4, 4), (5, 4)])
        vwait(lo, ('o2', 2), ('w', 2)); lo.e('s_barrier')
        if me: o_unit(lo, 3); o_unit(lo, 4)
        wo_groups(lo, sched[0][me])
        for U in range(2, 16):
            if U < 15: vwait(lo, ('o2', U + 1), ('w', U + 1))
            lo.e('s_barrier')
            if me and U + NO_ < 16: o_unit(lo, U + NO_)
            if U - 1 < len(sched): wo_groups(lo, sched[U - 1][me])
        lo.e('s_barrier')
        lo.e('s_branch OP_DONE')
        return lo
    lw = loader('OP_LW', LW, 0)
    lo = loader('OP_LO', LO, 1)

    OWN = 0
    def GEND(NT): return int(OPT.get('gend', 28)) if NT == 5 else int(OPT.get('gens', 10))
    def compute(name, waves, NT):
        ctx.restore(snap); ctx.active = list(waves)
        c = Block(ctx, name); lp = Block(ctx, name + 'l'); e = Block(ctx, name + 'e')
        c.e(f'{name}:')
        SZ = 4 * (NT + 3)
        def fA(U, k, n): return FB + 2 * SZ * (U % 2) + SZ * k + 4 * n
        def fB(U, k, j): return FB + 2 * SZ * (U % 2) + SZ * k + 4 * NT + 4 * j
        def rd(U):
            r = []
            for k in range(2):
                r += [E(f'ds_read_b128 {q4(fB(U,k,j))}, v{VB} offset:{(2*j+k)*1024}', ('f', U)) for j in range(3)]
                for n in range(NT):
                    r += [E(f'ds_read_b64_tr_b16 {q2(fA(U,k,n)+2*u)}, v{VAP+n} offset:{k*2048 + u*1024}', ('f', U)) for u in range(2)]
            return r
        def adv(b):
            b.e(f's_cmp_ge_u32 s46, {(NW_-1)*WS_}'); b.e(f's_cselect_b32 s52, s54, s53'); b.e('s_add_u32 s46, s46, s52')
            for n in range(NT): b.e(f'v_add_u32 v{VAP+n}, s52, v{VAP+n}')
            b.e(f's_cmp_ge_u32 s45, {(NO_-1)*OS_}'); b.e(f's_cselect_b32 s52, s101, s100'); b.e('s_add_u32 s45, s45, s52')
            b.e(f'v_add_u32 v{VB}, s52, v{VB}')
        def mmu(U, first=False):
            return [E(f'{MF} {q4(12*n+4*j)}, {q4(fA(U,k,n))}, {q4(fB(U,k,j))}, {"0" if first and k == 0 else q4(12*n+4*j)}')
                    for k in range(2) for n in range(NT) for j in range(3)]
        c.e('s_mov_b32 s46, 0'); c.e(f's_mov_b32 s53, {WS_}'); c.e(f's_mov_b32 s54, {(-(NW_-1)*WS_) & 0xffffffff}')
        c.e('s_mov_b32 s45, 0'); c.e(f's_mov_b32 s100, {OS_}'); c.e(f's_mov_b32 s101, {(-(NO_-1)*OS_) & 0xffffffff}')
        c.e('s_mov_b32 s44, 0')
        if OWARM:
            c.e(f'v_lshrrev_b32 v{GS}, 5, v{VT+3}'); c.e(f'v_lshlrev_b32 v{GS}, 17, v{GS}')
            c.e(f'v_and_b32 v{GS+1}, 31, v{VT+3}'); c.e(f'v_lshl_add_u32 v{GS}, v{GS+1}, 7, v{GS}')
            c.e('s_lshl_b32 s55, s42, 18'); c.e('s_lshl_b32 s61, s41, 12'); c.e('s_add_u32 s55, s55, s61')
            if OWARM == 2: c.e(f'buffer_load_dword v{XF+3}, v{GS}, {srd(S_O)}, s55 offen', ('ow',))
        if FL == 1 and NT == 2:
            c.e('s_nop 15'); c.e('s_nop 15'); c.e('s_nop 15'); c.e('s_nop 15'); c.e('s_nop 15'); c.e('s_nop 15')
            c.e(f'buffer_store_dword v{VT+1}, v{VT}, {srd(S_F)}, s90 offen sc1', ('f1',))
        c.e('s_barrier')
        stamp(c, 6)
        if FL == 2 and NT == 2: c.e(f'buffer_store_dword v{VT+1}, v{VT}, {srd(S_F)}, s90 offen sc1', ('f1',))
        if OWARM == 1: c.e(f'buffer_load_dword v{XF+3}, v{GS}, {srd(S_O)}, s55 offen', ('ow',))
        c.e(f's_add_u32 s{S_OUT}, s14, s6'); c.e(f's_addc_u32 s{S_OUT+1}, s15, 0')
        c.e(f's_sub_u32 s{S_OUT+2}, 1769472, s6'); c.e(f's_mov_b32 s{S_OUT+3}, 0x20000')
        run(c, rd(0)); adv(c)
        c.e('s_waitcnt lgkmcnt(0)')
        run(c, interleave(mmu(0, True), rd(1) + [adv], end=GEND(NT)))
        c.e('s_waitcnt lgkmcnt(0)')
        run(c, mmu(1))
        c.e('s_barrier')
        stamp(c, 1, True)
        run(c, rd(0)); adv(c)
        def unit(x, U, extra=(), last=False):
            x.e('s_waitcnt lgkmcnt(0)')
            x.e('s_barrier')
            run(x, interleave(mmu(U), ([] if last else rd(U + 1) + [adv]) + list(extra), end=GEND(NT)))
        lp.e(f'{name}_LOOP:')
        unit(lp, 0); unit(lp, 1)
        lp.e('s_add_u32 s44, s44, 1'); lp.e('s_cmp_lt_u32 s44, 6'); lp.e(f's_cbranch_scc1 {name}_LOOP')
        fin = []
        def P(*lines): fin.extend(E(l) for l in lines)
        X = GS
        P('s_mov_b32 s7, 288', 's_lshl_b32 s6, s42, 6', f'v_add_u32 v{X}, s6, v{VT+3}')
        P(f'v_cmp_gt_u32 s[8:9], s7, v{X}', f'v_subrev_u32 v{X+1}, 32, v{X}', f'v_mov_b32 v{X+7}, 0x40000000')
        P(f'v_cndmask_b32 v{X}, v{X+1}, v{X}, s[8:9]', f'v_lshrrev_b32 v{X+1}, 4, v{X}')
        P(f'v_and_b32 v{X+2}, 15, v{X}', f'v_lshlrev_b32 v{X+2}, 4, v{X+2}', f'v_lshl_add_u32 v{XF}, v{X+1}, 9, v{X+2}')
        P(f'v_mul_u32_u24 v{X+4}, 57, v{X+1}', f'v_lshrrev_b32 v{X+4}, 9, v{X+4}')
        P(f'v_mul_u32_u24 v{X+5}, 18, v{X+4}', f'v_add_u32 v{X+5}, v{X+5}, v{X+1}')
        P(f'v_lshl_add_u32 v{XF+1}, v{X+5}, 8, v{X+2}')
        P(f'v_mul_u32_u24 v{X+6}, 9, v{X+4}', f'v_sub_u32 v{X+1}, v{X+1}, v{X+6}')
        P(f'v_mul_u32_u24 v{X+4}, 48, v{X+4}', f'v_and_b32 v{X+6}, 3, v{X}', f'v_add_u32 v{X+4}, v{X+4}, v{X+6}')
        P(f'v_mul_u32_u24 v{X+4}, 1152, v{X+4}', f'v_lshl_add_u32 v{X+4}, v{X+1}, 5, v{X+4}')
        P(f'v_bfe_u32 v{X+6}, v{X}, 2, 2', f'v_lshl_add_u32 v{X+4}, v{X+6}, 3, v{X+4}')
        P(f'v_cndmask_b32 v{XF+2}, v{X+7}, v{X+4}, s[8:9]')
        for i in range(3): P(f's_add_u32 s{56+i}, s47, {i+1}', f's_and_b32 s{56+i}, s{56+i}, 3', f's_mul_i32 s{56+i}, s{56+i}, {INB}')
        P('s_mov_b32 s10, 18432', 's_mov_b32 s11, 36864', 's_mov_b32 s59, 0xffff0000')
        fin2 = []
        fin2.append(lambda b: [b.e(l) for l in (f'v_bfe_u32 v{VE+2}, v{VT+3}, 2, 2', f'v_cmp_eq_u32 vcc, s47, v{VE+2}', f'v_mov_b32 v{VE+2}, 0x40000000',
                    f'v_and_b32 v{VE}, 0xff, v{VT+2}', f'v_cndmask_b32 v{VT+2}, v{VT+2}, v{VE+2}, vcc', f'v_lshlrev_b32 v{VE+1}, 2, v{VT+3}',
                    f'v_add_u32 v{VE+1}, {OWN+16384}, v{VE+1}', f'v_add_u32 v{VE}, s5, v{VE}',
                    f'v_and_b32 v{VE+1}, 0xfffffff0, v{VE+1}', f'v_cndmask_b32 v{VE}, v{VE+1}, v{VE}, vcc')])
        fin2 += [E(f'v_mov_b32 v{GS+4*k+3}, s98') for k in range(2 * NT)]
        unit(e, 14, fin)
        e.e('s_waitcnt lgkmcnt(0)')
        e.e('s_barrier')
        m = mmu(15)
        def send(n):
            r = [E(f'v_cvt_pk_bf16_f32 v{GS + 8*n + 4*(x//3) + x%3}, v{12*n+2*x}, v{12*n+2*x+1}') for x in range(6)]
            r += [E(f'buffer_store_dwordx4 {q4(GS+8*n+4*hf)}, v{VT+2}, {srd(S_P)}, s4 offen offset:{n*512 + hf*256} sc1', ('p',)) for hf in range(2)]
            r += [E(f'ds_write_b128 v{VE}, {q4(12*n+4*j)} offset:{j*2304 + n*256}', ('own',)) for j in range(3)]
            return r
        for n in range(NT):
            grp = m[3 * n:3 * n + 3] + m[3 * NT + 3 * n:3 * NT + 3 * n + 3]
            run(e, interleave(grp, fin2 if n == 0 else (send(n - 2) if n >= 2 else [])))
        stamp(e, 7)
        if NT == 2: e.e('s_nop 1')
        run(e, send(NT - 2)); run(e, send(NT - 1))
        if name != 'OP_BIG': e.e('s_branch OP_FIN')
        return c, lp, e
    sm = compute('OP_SML', SML, 2)
    bg = compute('OP_BIG', BIG, 5)
    ctx.active = list(BIG + SML)
    e = Block(ctx, 'op_end')
    e.e('OP_FIN:')
    e.e('s_waitcnt lgkmcnt(0)')
    e.e('s_barrier')
    stamp(e, 8)
    e.e('s_cmp_ge_u32 s42, 5')
    e.e('s_cbranch_scc1 OP_DONE')
    R0 = 168; OW = 64; X = 128
    for j in range(3): e.e(f'ds_read_b128 {q4(OW+4*j)}, v{XF+1} offset:{j*2304}', ('ow',))
    loads = '\n'.join(f'buffer_load_dwordx4 {q4(R0+8*src+4*hf)}, v{XF}, {srd(S_PI)}, s{56+src} offen offset:{hf*256} sc1' for src in range(3) for hf in range(2))
    chk = [f'v_xor_b32 v{X+6}, s98, v{R0+3}']
    for k in range(1, 6):
        chk += [f'v_xor_b32 v{X+7}, s98, v{R0+4*k+3}', f'v_or_b32 v{X+6}, v{X+6}, v{X+7}']
    chk.append(f'v_cmp_ne_u32 vcc, 0, v{X+6}')
    poll(e, 'OP_P2', loads, '\n'.join(chk))
    stamp(e, 9)
    e.e(f'buffer_store_dword v{VT+1}, v{VT}, {srd(S_F)}, s96 offen sc1', ('ep',))
    e.e('s_waitcnt lgkmcnt(0)')
    so = ['0', 's10', 's11']
    for j in range(3):
        for p in range(2):
            x = 2 * j + p
            for src in range(3):
                r = R0 + 8 * src + 4 * (x // 3) + x % 3
                e.e(f'v_lshlrev_b32 v{X+6}, 16, v{r}'); e.e(f'v_and_b32 v{X+7}, s59, v{r}')
                e.e(f'v_add_f32 v{OW+2*x}, v{OW+2*x}, v{X+6}'); e.e(f'v_add_f32 v{OW+2*x+1}, v{OW+2*x+1}, v{X+7}')
            e.e(f'v_cvt_pk_bf16_f32 v{OW+16+x}, v{OW+2*x}, v{OW+2*x+1}')
        e.e(f'buffer_store_dwordx2 {q2(OW+16+2*j)}, v{XF+2}, {srd(S_OUT)}, {so[j]} offen {OPT.get("outpol", "")}')
    ctx.active = ALLW
    e.e('OP_DONE:')
    if STAMP:
        if not OPT.get('rt4'): stamp(e, 10)
        dump_stamps(e)
    e.e('K1_END:')
    e.e('s_endpgm')
    traces = {}
    for w in SML: traces[w] = [b, sm[0], sm[1], sm[1], sm[2], e]
    for w in BIG: traces[w] = [b, bg[0], bg[1], bg[1], bg[2], e]
    traces[6] = [b, lw]; traces[7] = [b, lo]
    TXN = OPT.get('tx', '')
    if TXN:
        def after_c(blk):
            n = 0; out = []
            for i in blk:
                if i.kind == 'barrier': n += 1
                drop = n >= 2 and getattr(i, 'sub', '') == 'dma' and (TXN == 'none' or (TXN == 'noo' and 's[24:27]' in i.text) or (TXN == 'nowo' and 's[20:23]' in i.text))
                if not drop: out.append(i)
            blk[:] = out
        after_c(lw); after_c(lo); after_c(sm[0])
        if TXN in ('none', 'nowo'):
            for blk in sm[1:]: blk[:] = [i for i in blk if getattr(i, 'sub', '') != 'dma']
    return [b] + list(sm) + list(bg) + [e, lw, lo], traces

def kernel1():
    ctx = MCtx(8)
    pro = k1_prologue(ctx)
    qp = k1_qproj(ctx)
    ap = k1_att_prologue(ctx)
    p1 = pv_phase(ctx, 'P1', SA, SB, head=lambda a: a.e('K1_LOOP:'), dma=guarded(dma_v, 0) if LEAD == 6 else dma_v)
    SK2 = int(OPT.get('sk2', 2))
    p2 = qk_phase(ctx, 'P2', SA, SB, guarded(dma_k, 0) if KVREG else dma_k)
    p3 = pv_phase(ctx, 'P3', SB, SA, dma=guarded(dma_v, SK2) if KVREG == 1 else dma_v)
    p4 = qk_phase(ctx, 'P4', SB, SA, guarded(dma_k, SK2) if KVREG == 1 else dma_k)
    p4[2].e('s_add_u32 s44, s44, 1')
    p4[2].e('s_cmp_lt_u32 s44, 7')
    p4[2].e('s_cbranch_scc1 K1_LOOP')
    def warm(b):
        b.e(f'v_lshrrev_b32 v{KR}, 6, v{VL16}'); b.e(f'v_mul_u32_u24 v{KR}, 1152, v{KR}')
        b.e(f'v_and_b32 v{KR+1}, 48, v{VL16}'); b.e(f'v_lshlrev_b32 v{KR+1}, 3, v{KR+1}'); b.e(f'v_min_u32 v{KR+1}, 316, v{KR+1}')
        b.e(f'v_add_u32 v{KR}, v{KR}, v{KR+1}')
        b.e(f'buffer_load_dword v{SA+23}, v{KR}, s[28:31], 0 offen', ('warm',))
        if TLB:
            b.e('s_mov_b32 s32, s18'); b.e('s_mov_b32 s33, s19'); b.e(f's_mov_b32 s34, {FOFF}'); b.e('s_mov_b32 s35, 0x20000')
            b.e('s_mul_i32 s55, s40, 1572864'); b.e('s_lshl_b32 s56, s41, 12'); b.e('s_add_u32 s55, s55, s56')
            b.e('s_and_b32 s56, s41, 7'); b.e('s_lshl_b32 s62, s40, 3'); b.e('s_add_u32 s56, s56, s62')
            b.e(f's_mul_i32 s56, s56, {16*INB}'); b.e(f's_add_u32 s56, s56, {POFF - 12 * 4 * INB}')
            b.e(f'v_lshrrev_b32 v{KR+2}, 4, v{VL16}')
            b.e(f'v_lshlrev_b32 v{KR}, 17, v{KR+2}'); b.e(f'v_add_u32 v{KR}, s55, v{KR}')
            b.e(f'v_mul_u32_u24 v{KR+1}, {4*INB}, v{KR+2}'); b.e(f'v_add_u32 v{KR+1}, s56, v{KR+1}')
            b.e(f'v_cmp_gt_u32 vcc, 12, v{KR+2}'); b.e('s_nop 1'); b.e(f'v_cndmask_b32 v{KR}, v{KR+1}, v{KR}, vcc')
            b.e(f'v_cmp_gt_u32 vcc, 16, v{KR+2}'); b.e(f'v_mov_b32 v{KR+1}, 0x40000000'); b.e('s_nop 0'); b.e(f'v_cndmask_b32 v{KR}, v{KR+1}, v{KR}, vcc')
            b.e(f'buffer_load_dword v{SA+22}, v{KR}, s[32:35], 0 offen sc1', ('warm',))
            b.e('s_mov_b32 s32, s14'); b.e('s_mov_b32 s33, s15'); b.e('s_mov_b32 s34, 1769472')
            b.e('s_mul_i32 s55, s40, 221184'); b.e(f'v_lshlrev_b32 v{KR}, 22, v{KR+2}')
            b.e(f'buffer_load_dword v{SA+22}, v{KR}, s[32:35], s55 offen', ('warm',))
    l1 = pv_phase(ctx, 'L1', SA, SB, nextK=False, dma=warm if WARM in (1, 2) else None, split=LSPLIT)
    l2 = Block(ctx, 'L2')
    l2.e(f's_waitcnt vmcnt({(1 if WARM in (1, 2) else 0) + 2 * TLB})')
    l2.e('s_barrier')
    if OPT.get('l2s'): stamp(l2, 2)
    for r in (A, B):
        with role(l2, r):
            for k in range(4): vread_as(l2, order_of(r)[k], k)
    l2.e('s_mul_i32 s43, s42, 12288'); l2.e('s_xor_b32 s46, s42, 4'); l2.e('s_mul_i32 s46, s46, 12288')
    l2.e(f's_add_u32 s43, s43, {EXB}'); l2.e(f's_add_u32 s46, s46, {EXB}')
    l2.e(f'v_add_u32 v{XA}, s43, v{VL16}'); l2.e(f'v_add_u32 v{XA+1}, s46, v{VL16}')
    run(l2, sm_fillers(SB)[LSPLIT:] + chk_fillers())
    l2.e('s_cbranch_vccnz L2_RARE')
    l2r = rare_path(ctx, 'L2', SB, None, 2)
    l3 = last_pv(ctx)
    ep = k1_epilogue(ctx)
    errs = []
    body = [p1, p2[0], p2[2], p3, p4[0], p4[2]]
    bodyr = [p1, p2[0], p2[1], p2[2], p3, p4[0], p4[1], p4[2]]
    last = [l1, l2, l3, ep]
    lastr = [l1, l2, l2r, l3, ep]
    tail, ttr = oproj(ctx)
    for r in ALLW:
        errs += check_trace([pro, qp, ap] + body + body + last + ttr[r], f'main{r}', r)
        errs += check_trace([pro, qp, ap] + bodyr + bodyr + body + lastr, f'rare{r}', r)
    if NOCOMP:
        for blk in body:
            keep = [i for i in blk if i.kind not in ('mfma', 'valu', 'trans') and not (NOCOMP > 1 and i.kind == 'ds') and 'vccnz' not in i.text]
            blk[:] = keep
        errs = []
    DROP = OPT.get('drop', '')
    if DROP:
        D = DROP.split(',')
        def dropit(i):
            t = i.text
            if 'vccnz' in t: return True
            if 'exp' in D and t.startswith('v_exp'): return True
            if 'add' in D and t.startswith('v_add_f32'): return True
            if 'cvt' in D and t.startswith('v_cvt'): return True
            if 'ds' in D and i.kind == 'ds': return True
            if 'wait' in D and i.kind == 'wait': return True
            if 'bar' in D and i.kind == 'barrier': return True
            if 'adv' in D and (t.startswith('v_add_u32') or t.startswith('s_cmp_ge') or t.startswith('s_cselect') or t.startswith('s_add_u32 s45') or t.startswith('s_add_u32 s46')): return True
            if 'mfma' in D and i.kind == 'mfma': return True
            return False
        for blk in body: blk[:] = [i for i in blk if not dropit(i)]
        errs = []
    order = [pro, qp, ap] + body + last + tail + [p2[1], p4[1], l2r]
    return order, errs

def kernel2():
    ctx = MCtx(8)
    b = Block(ctx, 'k2')
    b.e('s_cmp_ge_u32 s2, 256')
    b.e('s_cbranch_scc1 K2_END')
    b.e('s_load_dwordx8 s[12:19], s[0:1], 32')
    if STAMP:
        for i in range(6): b.e(f's_memtime s[{64+2*i}:{65+2*i}]')
        b.e('s_memrealtime s[86:87]')
    b.e('v_lshrrev_b32 v1, 6, v0')
    b.e('v_and_b32 v0, 63, v0')
    b.e('v_readfirstlane_b32 s42, v1')
    b.e('s_and_b32 s43, s2, 7'); b.e('s_lshr_b32 s44, s2, 3')
    b.e('s_and_b32 s40, s43, 1'); b.e('s_lshl_b32 s40, s40, 2'); b.e('s_and_b32 s45, s44, 3'); b.e('s_add_u32 s40, s40, s45')
    b.e('s_lshr_b32 s41, s43, 1'); b.e('s_lshl_b32 s41, s41, 3'); b.e('s_lshr_b32 s46, s44, 2'); b.e('s_add_u32 s41, s41, s46')
    b.e(f'v_lshlrev_b32 v{VL16}, 4, v0')
    b.e('s_waitcnt lgkmcnt(0)')
    flag_srd(b)
    epoch_load(b, 222)
    b.e('s_waitcnt vmcnt(0)')
    epoch_tags(b, 222)
    run(b, tail_setup())
    t = oproj(ctx)
    errs = []
    for r in ALLW: errs += check_trace([b, t[0], t[1], t[1], t[2], t[2], t[3]], f'k2_{r}', r)
    return [b] + list(t), errs

HEADER = open('standalone__mha_block_cached__near_ridge.s.ref').read().split('; Override')[0]

DOC = '''; One workgroup per (batch, head), 8 waves, one launch:
;  3. the 8 heads of a group trade o through d_ws; every workgroup multiplies a 96 x 144 output tile over
;     these 8 heads; the 4 head groups trade the partial sums (tagged granules) and each finishes a quarter.
; Hand-off words carry a launch tag derived from an epoch word in d_ws that the launch advances at its end.
'''

def kd(name, vgpr, sgpr=96):
    return f'''.amdhsa_kernel {name}
  .amdhsa_next_free_vgpr {vgpr}
  .amdhsa_next_free_sgpr {sgpr}
  .amdhsa_accum_offset {(vgpr+3)//4*4}
  .amdhsa_group_segment_fixed_size 0
  .amdhsa_kernarg_size 64
  .amdhsa_user_sgpr_count 2
  .amdhsa_user_sgpr_kernarg_segment_ptr 1
  .amdhsa_system_sgpr_workgroup_id_x 1
.end_amdhsa_kernel
'''

def main():
    k1, e1 = kernel1()
    k2, e2 = kernel2() if not FUSED else ([], [])
    for e in list(dict.fromkeys(x.split('] ', 1)[1] for x in e1 + e2))[:12]: print('CHECK', e, file=sys.stderr)
    out = HEADER
    if FUSED:
        N = 'standalone__mha_block_cached__near_ridge_kernel'
        out += f'; @launch grid=(256,1,1) block=(512,1,1) lds={LDS_TOT}\n'
        ks = [(N, k1)]
    else:
        out += f'; @launch kernel=mha_attn_kernel grid=(256,1,1) block=(512,1,1) lds={LDS_TOT}\n'
        out += f'; @launch kernel=mha_oproj_kernel grid=(256,1,1) block=(512,1,1) lds={LDS_TOT}\n'
        ks = [('mha_attn_kernel', k1), ('mha_oproj_kernel', k2)]
    out += DOC + '.amdgcn_target "amdgcn-amd-amdhsa--gfx950"\n.text\n'
    for name, blocks in ks:
        out += f'.globl {name}\n.p2align 8\n.type {name},@function\n{name}:\n'
        out += '\n'.join(b.text() for b in blocks) + '\n'
    out += '.section .rodata,"a"\n'
    for name, _ in ks: out += '.p2align 6\n' + kd(name, 256, 102)
    open(sys.argv[1], 'w').write(out)
    if e1 or e2: sys.exit(1)
main()
```

```python
import sys, struct, math
from asmlib import *

OPT = dict(a.split('=') for a in sys.argv[2:] if '=' in a)
STAMP = int(OPT.get('stamp', 0))
KVPOL = OPT.get('kvpol', 'nt')
XPOL = OPT.get('xpol', '')
WPOL = OPT.get('wpol', '')
OSTPOL = OPT.get('ostpol', 'sc1' if OPT.get('fused', '1') == '1' else '')
OLDPOL = OPT.get('oldpol', '')
WOPOL = OPT.get('wopol', '')
THR = float(OPT.get('thr', 2048.0))
NOBARQK = int(OPT.get('nobarqk', 1))
SKIPT = int(OPT.get('skipt', 0))
STAG = int(OPT.get('stag', 0))
ROT = int(OPT.get('rot', 1))
ROT2 = int(OPT.get('rot2', 1))
SM_SPLIT = int(OPT.get('split', 24))
CHK_AT = int(OPT.get('chk', 8))
PRIO = int(OPT.get('prio', 0))
K2D = int(OPT.get('k2d', 4))
NODMA = int(OPT.get('nodma', 0))
NOCOMP = int(OPT.get('nocomp', 0))
NOKVQ = int(OPT.get('nokvq', 0))
FUSED = int(OPT.get('fused', 1))
OLD2 = OPT.get('old2', 'sc1')
SLEEP = int(OPT.get('sleep', 1))
F1POL = OPT.get('f1pol', 'sc1')
WOPRE = int(OPT.get('wopre', 5))
TOUCH = int(OPT.get('touch', 0))
WOEARLY = int(OPT.get('woearly', 0))
WARM = int(OPT.get('warm', 1))
FAST = int(OPT.get('fast', 0))
PAIRW = int(OPT.get('pairw', 1))
KVREG = int(OPT.get('kvreg', 0))
KV1 = int(OPT.get('kv1', 1))
NC = int(OPT.get('nc', 1))
EARLY = int(OPT.get('early', 0))
ORD = int(OPT.get('ord', 1))
LSPLIT = int(OPT.get('lsplit', 57))
LEAD = int(OPT.get('lead', 6))
OWARM = int(OPT.get('owarm', 0))
KROT = int(OPT.get('krot', 0))
BOTH = int(OPT.get('both', 0))
SMOOTH = int(OPT.get('smooth', 1))
POS = [int(x) for x in OPT.get('pos', '').split(',') if x]
TLB = int(OPT.get('tlb', 1))
NOX = int(OPT.get('nox', 0))
NOWQ = int(OPT.get('nowq', 0))
MAP = OPT.get('map', '4x8')
KVSCHED = [int(x) for x in OPT.get('kvs', '0,2,3,5,6,8,9,11,12,14').split(',') if x]

def f2u(f): return struct.unpack('<I', struct.pack('<f', f))[0]
SCALE = math.log2(math.e) / math.sqrt(128.0)
MF = 'v_mfma_f32_16x16x32_bf16'
def q4(n): return f'v[{n}:{n+3}]'
def q2(n): return f'v[{n}:{n+1}]'

ACC = 0; QF = 96; SA = 144; SB = 168; KR = 192; VR = 208; NEGM = 224
TMP = 236; VK = 248; VVE = 249; VVO = 250; LS = 251; VL16 = 254; VKV = 255
RING = 10; CH = 16384; LDS_TOT = RING * CH
QB = 114688
SLOT = 40960
S_K, S_V, S_X, S_WQ, S_O = 20, 24, 28, 32, 36
FS = 96
VXD = 208; VWD = 211; VXR = 213; VAE = 215; VAO = 217; VQE = 219; VQO = 220; VQR = 221; VKW = 244
def srd(n): return f's[{n}:{n+3}]'
def acc(t, jt): return ACC + 12 * t + 4 * jt
def qf(s, jt): return QF + 12 * s + 4 * jt
def st(S, kt, jt): return S + 12 * kt + 4 * jt
ALLW = list(range(8))
A, B = (0, 1, 2, 3), (4, 5, 6, 7)

TST = int(OPT.get('tst', 0))
def stamp(b, idx, fine=False, it=False):
    if TST == 2:
        if it or idx in (0, 4): b.e(f's_memtime s[{64+2*idx}:{65+2*idx}]')
        return
    if it: return
    if TST and idx in (1, 2, 3) and not fine: return
    if fine and not TST: return
    if STAMP: b.e(f's_memtime s[{64+2*idx}:{65+2*idx}]')

class role:
    n = 0
    def __init__(self, b, waves): self.b, self.w = b, list(waves)
    def __enter__(self):
        role.n += 1; self.l = f'RL{role.n}'
        self.b.e(f's_bitcmp1_b32 {sum(1 << w for w in self.w)}, s42')
        self.b.e(f's_cbranch_scc0 {self.l}')
        self.b.ctx.active = self.w
    def __exit__(self, *a):
        self.b.ctx.active = ALLW
        self.b.e(f'{self.l}:')

def E(text, tag=None): return lambda b: b.e(text, tag)
def run(b, lst):
    for f in lst: f(b)

def chunk_of(n):
    if n == 0: return ('K', 0)
    if n % 2 == 1: return ('K', (n + 1) // 2)
    return ('V', (n - 2) // 2)

def k1_prologue(ctx):
    b = Block(ctx, 'k1_pro')
    b.e('s_cmp_ge_u32 s2, 256')
    b.e('s_cbranch_scc1 K1_END')
    b.e('s_load_dwordx8 s[4:11], s[0:1], 0')
    b.e('s_load_dwordx8 s[12:19], s[0:1], 32')
    if STAMP:
        b.e('s_memtime s[64:65]')
        b.e('s_memrealtime s[86:87]')
    b.e('v_lshrrev_b32 v1, 6, v0')
    b.e('v_and_b32 v0, 63, v0')
    b.e('v_readfirstlane_b32 s42, v1')
    b.e('s_and_b32 s43, s2, 7')
    b.e('s_lshr_b32 s44, s2, 3')
    nb = int(MAP.split('x')[0]); lb = nb.bit_length() - 1
    nh = 32 // nb; xb = 8 // nb
    b.e(f's_and_b32 s40, s43, {xb - 1}')
    b.e(f's_lshl_b32 s40, s40, {lb}')
    b.e(f's_and_b32 s45, s44, {nb - 1}')
    b.e('s_add_u32 s40, s40, s45')
    b.e(f's_lshr_b32 s41, s43, {xb.bit_length() - 1}')
    b.e(f's_lshl_b32 s41, s41, {nh.bit_length() - 1}')
    b.e(f's_lshr_b32 s46, s44, {lb}')
    b.e('s_add_u32 s41, s41, s46')
    m = max(nb, nh)
    b.e(f's_mul_i32 s45, s45, {32 // nb}')
    b.e(f's_mul_i32 s46, s46, {32 // nh}')
    b.e('s_add_u32 s45, s45, s46')
    b.e('s_and_b32 s45, s45, 31')
    b.e(f's_mul_i32 s45, s45, {9 - NC}')
    b.e('s_lshr_b32 s45, s45, 5')
    b.e(f's_add_u32 s45, s45, {NC}')
    b.e('s_lshl_b32 s100, s45, 7')
    b.e('s_lshl_b32 s101, s45, 19')
    b.e('s_mov_b32 s57, 0' if NC else 's_mov_b32 s57, s100')
    b.e('s_mov_b32 s58, 0' if NC else 's_mov_b32 s58, s101')
    b.e('s_lshl_b32 s45, s40, 5')
    b.e('s_add_u32 s45, s45, s41')
    b.e('s_lshl_b32 s45, s45, 18')
    b.e('s_mul_i32 s46, s40, 221184')
    b.e('s_lshl_b32 s47, s41, 8')
    b.e('s_mul_i32 s48, s40, 1572864')
    b.e('s_and_b32 s53, s42, 3')
    b.e('s_lshr_b32 s54, s42, 2')
    b.e('v_bfe_u32 v4, v0, 2, 3')
    b.e('v_lshrrev_b32 v5, 5, v0')
    b.e('v_and_b32 v3, 3, v0')
    b.e('v_lshrrev_b32 v7, 2, v4')
    b.e('v_lshlrev_b32 v8, 1, v7')
    b.e('v_xor_b32 v6, v3, v8')
    b.e('v_lshlrev_b32 v6, 4, v6')
    b.e('v_lshl_add_u32 v6, v5, 6, v6')
    b.e('s_lshr_b32 s43, s53, 1')
    b.e('s_and_b32 s44, s42, 1')
    b.e('v_and_b32 v9, 3, v4')
    b.e('v_lshl_add_u32 v9, v7, 3, v9')
    b.e('s_lshl_b32 s55, s43, 4')
    b.e('s_lshl_b32 s62, s54, 2')
    b.e('s_add_u32 s55, s55, s62')
    b.e('v_add_u32 v9, s55, v9')
    b.e('v_lshl_add_u32 v9, v9, 13, v6')
    b.e('s_lshl_b32 s55, s44, 7')
    b.e(f'v_add_u32 v{VWD}, s55, v9')
    b.e(f'v_add_u32 v{VWD+1}, {32*8192-1024}, v{VWD}')
    b.e('s_lshl_b32 s60, s42, 11')
    b.e('s_mul_i32 s63, s42, 3')
    for i in range(3):
        b.e(f's_add_u32 s62, s63, {i}')
        b.e('s_and_b32 s56, s62, 1')
        b.e('s_lshl_b32 s56, s56, 3')
        b.e('s_add_u32 s56, s56, 12')
        b.e('s_lshr_b32 s62, s62, 1')
        b.e('s_lshl_b32 s62, s62, 4')
        b.e('v_add_u32 v9, s56, v4')
        b.e('v_and_b32 v9, 15, v9')
        b.e('v_add_u32 v9, s62, v9')
        b.e('v_mul_u32_u24 v9, 1152, v9')
        b.e('v_add_u32 v9, v9, v6')
        if i: b.e(f'v_subrev_u32 v{VXD+i}, {i*1024}, v9')
        else: b.e(f'v_mov_b32 v{VXD}, v9')
    b.e('s_lshl_b32 s59, s63, 10')
    b.e('s_add_u32 s59, s59, 16384')
    b.e('s_waitcnt lgkmcnt(0)')
    b.e(f's_add_u32 s{S_X}, s4, s46');  b.e(f's_addc_u32 s{S_X+1}, s5, 0')
    b.e(f's_mov_b32 s{S_X+2}, 221184'); b.e(f's_mov_b32 s{S_X+3}, 0x20000')
    b.e(f's_add_u32 s{S_WQ}, s10, s47'); b.e(f's_addc_u32 s{S_WQ+1}, s11, 0')
    b.e(f's_sub_u32 s{S_WQ+2}, 4718592, s47'); b.e(f's_mov_b32 s{S_WQ+3}, 0x20000')
    b.e(f's_add_u32 s{S_K}, s6, s45');  b.e(f's_addc_u32 s{S_K+1}, s7, 0')
    b.e(f's_mov_b32 s{S_K+2}, 262144'); b.e(f's_mov_b32 s{S_K+3}, 0x20000')
    b.e(f's_add_u32 s{S_V}, s8, s45');  b.e(f's_addc_u32 s{S_V+1}, s9, 0')
    b.e(f's_mov_b32 s{S_V+2}, 262144'); b.e(f's_mov_b32 s{S_V+3}, 0x20000')
    b.e(f's_add_u32 s{S_O}, s18, s48'); b.e(f's_addc_u32 s{S_O+1}, s19, 0')
    b.e(f's_mov_b32 s{S_O+2}, 1572864'); b.e(f's_mov_b32 s{S_O+3}, 0x20000')
    return b

RC = 1
def slot(n): return ((n + RC) % RING) * CH

def qslot(D): return ((D + 3) % 4) * SLOT

def qnext(b, D):
    if D + 1 == NC:
        b.e('s_mov_b32 s57, s100'); b.e('s_mov_b32 s58, s101')
    else:
        b.e('s_cmp_eq_u32 s61, 1152')
        b.e(f's_cselect_b32 s57, {NC*128}, s61')
        b.e(f's_cselect_b32 s58, {NC*524288}, s58')

def qdma_parts(D):
    P = []
    P.append(lambda b: (b.e(f's_add_u32 m0, s60, {qslot(D)}'), b.e('s_add_u32 s61, s57, 128'),
                        b.e(f'buffer_load_dwordx4 v{VWD}, {srd(S_WQ)}, s58 offen {WPOL} lds', ('q', D))))
    P.append(lambda b: (b.e(f'buffer_load_dwordx4 v{VWD+1}, {srd(S_WQ)}, s58 offen offset:1024 {WPOL} lds', ('q', D)),
                        b.e(f's_add_u32 m0, s59, {qslot(D)}'), b.e('s_add_u32 s58, s58, 524288')))
    for i in range(2): P.append(E(f'buffer_load_dwordx4 v{VXD+i}, {srd(S_X)}, s57 offen offset:{i*1024} {XPOL} lds', ('q', D)))
    P.append(lambda b: (b.e(f'buffer_load_dwordx4 v{VXD+2}, {srd(S_X)}, s57 offen offset:2048 {XPOL} lds', ('q', D)),
                        qnext(b, D)))
    return P

def qdma(b, D):
    b.e(f's_add_u32 m0, s60, {qslot(D)}')
    b.e('s_add_u32 s61, s57, 128')
    for h in range(0 if NOWQ else 2):
        b.e(f'buffer_load_dwordx4 v{VWD+h}, {srd(S_WQ)}, s58 offen offset:{h*1024} {WPOL} lds', ('q', D))
    b.e(f's_add_u32 m0, s59, {qslot(D)}')
    b.e('s_add_u32 s58, s58, 524288')
    for i in range(0 if NOX else 3):
        b.e(f'buffer_load_dwordx4 v{VXD+i}, {srd(S_X)}, s57 offen offset:{i*1024} {XPOL} lds', ('q', D))
    qnext(b, D)

def kvpair_static(b, n):
    c = chunk_of(n)
    S = S_K if c[0] == 'K' else S_V
    b.e(f's_add_u32 m0, s52, {slot(n)}')
    if KROT: b.e(f's_add_u32 s56, s7, {c[1] * CH}'); b.e('s_and_b32 s56, s56, 0x3ffff')
    else: b.e(f's_mov_b32 s56, {c[1] * CH}')
    b.e(f'buffer_load_dwordx4 v{VKV}, {srd(S)}, s56 offen {KVPOL} lds', ('kv', n))
    b.e(f'buffer_load_dwordx4 v{VKV}, {srd(S)}, s56 offen offset:2048 {KVPOL} lds', ('kv', n))

POFF = 0x2000000; FOFF = 0x3000000; INB = 9216
S_F = 92
def flag_srd(b):
    b.e(f's_add_u32 s{S_F}, s18, {FOFF}'); b.e(f's_addc_u32 s{S_F+1}, s19, 0')
    b.e(f's_mov_b32 s{S_F+2}, {32768+1024}'); b.e(f's_mov_b32 s{S_F+3}, 0x20000')
    b.e('s_lshl_b32 s90, s40, 5'); b.e('s_add_u32 s90, s90, s41'); b.e('s_lshl_b32 s90, s90, 7')
    b.e('s_lshl_b32 s96, s40, 7'); b.e('s_add_u32 s96, s96, 32768')

def epoch_load(b, v):
    b.e(f'v_mov_b32 v{v}, 0')
    b.e(f'buffer_load_dword v{v+1}, v{v}, {srd(S_F)}, s96 offen sc1', ('ep',))

def epoch_tags(b, v):
    b.e(f'v_readfirstlane_b32 s97, v{v+1}')
    b.e('s_nop 0')
    b.e('s_mul_i32 s97, s97, 0x9e3779b1')
    b.e('s_add_u32 s97, s97, 0x7f4a7c15')
    b.e('s_xor_b32 s98, s97, 0x80000000')

def one_lane(b, v):
    b.e(f's_lshl_b32 s91, s42, 6')
    b.e(f'v_add_u32 v{v}, s91, v0')
    b.e(f'v_lshlrev_b32 v{v}, 20, v{v}')

def kvreg_of(n): return 48 + 8 * n if n < 6 else 224 + 8 * (n - 6)
def kv_to_regs(b, n):
    c = chunk_of(n)
    S = S_K if c[0] == 'K' else S_V
    r = kvreg_of(n)
    b.e(f's_mov_b32 s56, {c[1] * CH}')
    b.e(f'buffer_load_dwordx4 {q4(r)}, v{VKV}, {srd(S)}, s56 offen {KVPOL}', ('kv', n))
    b.e(f'buffer_load_dwordx4 {q4(r+4)}, v{VKV}, {srd(S)}, s56 offen offset:2048 {KVPOL}', ('kv', n))
def kv_to_lds(n):
    r = kvreg_of(n)
    o = slot(n) % 65536
    v = VKW + slot(n) // 65536
    return [lambda b: (b.wait_vm(('kv', n)), b.e(f'ds_write_b128 v{v}, {q4(r)} offset:{o}', ('kw',))),
            E(f'ds_write_b128 v{v}, {q4(r+4)} offset:{o+2048}', ('kw',))]

def k1_qproj(ctx):
    b = Block(ctx, 'qproj')
    flag_srd(b)
    qdma(b, 0)
    b.e('v_lshl_add_u32 v9, v4, 8, v6')
    b.e('s_lshl_b32 s46, s43, 12')
    b.e('s_lshl_b32 s47, s54, 13')
    b.e('s_add_u32 s46, s46, s47')
    b.e('s_add_u32 s45, s55, s46')
    b.e(f'v_add_u32 v{VKV}, s45, v9')
    b.e('s_lshl_b32 s47, s44, 10')
    b.e('s_add_u32 s52, s46, s47')
    if KROT == 1: b.e('s_lshr_b32 s7, s2, 3')
    elif KROT == 2: b.e('s_mul_i32 s7, s2, 5')
    elif KROT == 3: b.e('s_lshr_b32 s7, s2, 4'); b.e('s_add_u32 s7, s7, s2')
    elif KROT == 4: b.e('s_mov_b32 s7, s41')
    elif KROT == 5: b.e('s_lshl_b32 s7, s40, 2'); b.e('s_add_u32 s7, s7, s41')
    elif KROT == 6: b.e('s_lshl_b32 s7, s40, 1'); b.e('s_xor_b32 s7, s7, s41'); b.e('s_mul_i32 s7, s7, 7')
    elif KROT == 7: b.e('s_lshr_b32 s7, s2, 4'); b.e('s_mul_i32 s7, s7, 3'); b.e('s_mul_i32 s6, s2, 5'); b.e('s_add_u32 s7, s7, s6')
    elif KROT == 8: b.e('s_and_b32 s7, s2, 7'); b.e('s_lshl_b32 s7, s7, 1')
    elif KROT == 9: b.e('s_mul_i32 s7, s40, 2'); b.e('s_lshr_b32 s6, s41, 4'); b.e('s_add_u32 s7, s7, s6')
    if KROT: b.e('s_and_b32 s7, s7, 15'); b.e('s_lshl_b32 s7, s7, 14')
    qdma(b, 1)
    if TLB >= 2:
        b.e('s_lshl_b32 s91, s42, 6'); b.e('v_add_u32 v222, s91, v0'); b.e(f'v_lshlrev_b32 v222, {int(OPT.get("tsh", 16))}, v222')
        b.e(f'buffer_load_dword v223, v222, {srd(S_K)}, 0 offen nt', ('warm',))
        b.e(f'buffer_load_dword v223, v222, {srd(S_V)}, 0 offen nt', ('warm',))
    b.e('v_lshrrev_b32 v10, 4, v0')
    b.e('v_and_b32 v6, 15, v0')
    b.e('v_lshrrev_b32 v7, 2, v6')
    b.e('v_and_b32 v8, 1, v10')
    b.e('v_lshl_add_u32 v5, v8, 2, v7')
    b.e('v_lshlrev_b32 v5, 6, v5')
    b.e('v_lshl_add_u32 v5, v8, 5, v5')
    b.e('v_lshl_add_u32 v5, v3, 3, v5')
    b.e('v_lshrrev_b32 v9, 1, v10')
    b.e('v_lshl_add_u32 v5, v9, 12, v5')
    b.e('s_lshl_b32 s45, s54, 11')
    b.e(f'v_add_u32 v{VAE}, s45, v5')
    b.e(f'v_add_u32 v{VAE+1}, {2*SLOT}, v{VAE}')
    b.e(f'v_xor_b32 v{VAO}, 32, v{VAE}')
    b.e(f'v_xor_b32 v{VAO+1}, 32, v{VAE+1}')
    b.e('v_add_u32 v5, 4, v6')
    b.e('v_bfe_u32 v11, v5, 3, 1')
    b.e('v_and_b32 v12, 7, v5')
    b.e('v_lshrrev_b32 v13, 2, v12')
    b.e('v_lshlrev_b32 v13, 1, v13')
    b.e('v_lshlrev_b32 v14, 6, v12')
    b.e('v_xor_b32 v15, v13, v10')
    b.e('v_lshl_add_u32 v15, v15, 4, v14')
    b.e('s_mul_i32 s46, s53, 6144')
    b.e('s_add_u32 s46, s46, 16384')
    b.e('v_lshl_add_u32 v5, v11, 10, v15')
    b.e(f'v_add_u32 v{VXR}, s46, v5')
    b.e(f'v_add_u32 v{VXR+1}, {2*SLOT}, v{VXR}')
    b.e('v_lshl_add_u32 v15, v11, 11, v15')
    b.e('v_lshl_add_u32 v14, v11, 11, v14')
    b.e('s_lshl_b32 s47, s54, 13')
    b.e(f'v_add_u32 v{VK}, s47, v15')
    b.e(f'v_add_u32 v{VK}, {slot(0)}, v{VK}')
    b.e('s_mul_i32 s46, s53, 12288')
    b.e(f's_add_u32 s46, s46, {QB}')
    b.e(f'v_add_u32 v{VQR}, s46, v15')
    b.e('v_xor_b32 v15, v13, v9')
    b.e('v_lshl_add_u32 v15, v15, 4, v14')
    b.e('v_lshl_add_u32 v15, v8, 3, v15')
    b.e('s_lshl_b32 s45, s54, 10')
    b.e('s_add_u32 s46, s46, s45')
    b.e(f'v_add_u32 v{VQE}, s46, v15')
    b.e(f'v_xor_b32 v{VQO}, 32, v{VQE}')
    b.e('v_add_u32 v5, 1, v10')
    b.e('v_bfe_u32 v11, v5, 1, 1')
    b.e('v_and_b32 v12, 1, v5')
    b.e('v_lshl_add_u32 v13, v12, 2, v7')
    b.e('v_lshlrev_b32 v13, 6, v13')
    b.e('v_lshl_add_u32 v13, v12, 5, v13')
    b.e('v_lshl_add_u32 v13, v3, 3, v13')
    b.e('v_lshl_add_u32 v13, v11, 11, v13')
    b.e(f's_add_u32 s47, s47, {slot(2)}')
    b.e(f'v_add_u32 v{VVE}, s47, v13')
    b.e(f'v_xor_b32 v{VVO}, 32, v{VVE}')
    b.e(f'v_lshlrev_b32 v{VL16}, 4, v0')
    b.e(f'v_add_u32 v{VKW}, s52, v{VL16}')
    b.e(f'v_add_u32 v{VKW+1}, 65536, v{VKW}')
    b.e(f'v_add_u32 v{VKW+2}, 131072, v{VKW}')
    b.e(f's_mov_b32 s48, {hex(f2u(SCALE))}')
    b.e(f's_mov_b32 s50, {(2*CH - LDS_TOT) & 0xffffffff}')
    b.e(f's_mov_b32 s51, {2*CH}')
    b.e(f's_mov_b32 s46, {slot(2)}')
    def fA(D, h, tt): return FS + 56 * (D % 2) + 28 * h + 4 * tt
    def fB(D, h, jt): return FS + 56 * (D % 2) + 28 * h + 16 + 4 * jt
    def reads(D):
        sl = ((D + 3) % 4); hi = sl // 2; o = (sl % 2) * SLOT
        r = []
        for h in range(2):
            for jt in range(3):
                r.append(E(f'ds_read_b128 {q4(fB(D,h,jt))}, v{VXR+hi} offset:{o + jt*2048 + h*512}', ('f', D)))
            for tt in range(4):
                for u in range(2):
                    r.append(E(f'ds_read_b64_tr_b16 {q2(fA(D,h,tt)+2*u)}, v{(VAO if tt%2 else VAE)+hi} offset:{o + u*8192 + h*1024 + (tt//2)*512}', ('f', D)))
        return r
    zero = [E(f'v_mov_b32 v{i}, 0') for i in range(48, 96)] + [E(f'v_mov_b32 v{LS+i}, 0') for i in range(3)]
    b.wait_vm(('q', 0))
    b.e('s_barrier')
    stamp(b, 1)
    run(b, reads(0))
    qdma(b, 2)
    issue = {0: [3, 4], 1: [5], 2: [6], 3: [7], 4: [8]}
    kvi = {5: [0], 6: [1, 2], 7: [3], 8: [4]}
    kvr = {}; kvw = {}
    if KVREG == 2:
        kvr = {3: [0], 4: [1], 5: [2]}; kvw = {7: [0, 1, 2]}; kvi = {6: [3], 7: [4], 8: [5]}
    if KVREG == 3:
        kvr = {4: [0], 5: [1]}; kvw = {7: [0, 1]}; kvi = {6: [2, 3], 7: [4], 8: [5]}
    if KVREG == 1:
        kvi = {}
        kvr = {KV1 + i: [i] for i in range(6)} if KV1 + 5 <= 6 else {2: [0], 3: [1], 4: [2], 5: [3], 6: [4, 5]}
        kvr[7] = [6]; kvr[8] = [7]
        kvw = {6: [0, 1, 2, 3], 7: [4, 5]}
    for D in range(9):
        b.e('s_waitcnt lgkmcnt(0)')
        if D + 1 < 9: b.wait_vm(('q', D + 1))
        b.e('s_barrier')
        dm = [(lambda b, x=x: qdma(b, x)) for x in issue.get(D, [])] + [(lambda b, x=x: kvpair_static(b, x)) for x in kvi.get(D, [])]
        if D == 5: dm.insert(0, lambda b: epoch_load(b, 222))
        dm += [(lambda b, x=x: kv_to_regs(b, x)) for x in kvr.get(D, [])]
        wr = sum((kv_to_lds(x) for x in kvw.get(D, [])), [])
        if KVREG >= 2: zs = zero[24 + 5 * D:29 + 5 * D] if D < 6 else {7: zero[:24]}.get(D, [])
        elif KVREG: zs = {7: zero[:32] + zero[48:], 8: zero[32:48]}.get(D, [])
        else: zs = zero[7 * D:7 * D + 7]
        mf = []
        if D < 8:
            for h in range(2):
                for tt in range(4):
                    for jt in range(3):
                        d = q4(acc(tt, jt))
                        mf.append(E(f'{MF} {d}, {q4(fA(D,h,tt))}, {q4(fB(D,h,jt))}, {"0" if D == 0 and h == 0 else d}'))
            rd = reads(D + 1)
            fill = []
            QS = int(OPT.get('qs', 1))
            if QS:
                dm = sum((qdma_parts(x) for x in issue.get(D, [])), []) + dm[len(issue.get(D, [])):]
                step = max(1, len(rd) // max(1, len(dm)))
                lastkv = [dm.pop()] if (KVREG >= 2 and D in (3, 4) and D in kvr) else []
                step = max(1, (len(rd) - 6 * len(lastkv)) // max(1, len(dm)))
                for k, x in enumerate(rd):
                    fill.append(x)
                    if dm and k % step == step - 1: fill.append(dm.pop(0))
                fill += dm + lastkv; dm = []
            for k, x in enumerate(rd if not QS else []):
                fill.append(x)
                if dm and k % 6 == 1: fill.append(dm.pop(0))
            assert not dm
            run(b, interleave(mf, wr + fill + zs, end=int(OPT.get('qe', 21)) + (2 if len(zs) > 8 else 0)))
        else:
            tiles = [(tt, jt) for tt in range(4) for jt in range(3)]
            def conv(tt, jt):
                a = acc(tt, jt)
                return [E(f'v_mul_f32 v{a+i}, s48, v{a+i}') for i in range(4)] + [
                    E(f'v_cvt_pk_bf16_f32 v{a}, v{a}, v{a+1}'), E(f'v_cvt_pk_bf16_f32 v{a+1}, v{a+2}, v{a+3}'),
                    E(f'ds_write_b64 v{VQO if tt%2 else VQE}, {q2(a)} offset:{jt*4096 + (tt//2)*512}', ('qw',))]
            LAG = 3
            run(b, dm)
            run(b, zs)
            for k, (tt, jt) in enumerate(tiles):
                d = q4(acc(tt, jt))
                cv = conv(*tiles[k - LAG]) if k >= LAG else []
                if k == LAG: b.e('s_nop 2')
                b.e(f'{MF} {d}, {q4(fA(D,0,tt))}, {q4(fB(D,0,jt))}, {d}')
                run(b, cv[:3])
                b.e(f'{MF} {d}, {q4(fA(D,1,tt))}, {q4(fB(D,1,jt))}, {d}')
                run(b, cv[3:])
            stamp(b, 2)
            for k in range(12 - LAG, 12):
                if k == 11: b.e('s_nop 0')
                run(b, conv(*tiles[k]))
    b.e('s_waitcnt lgkmcnt(0)')
    b.wait_vm(('kv', 1))
    b.wait_vm(('ep',))
    epoch_tags(b, 222)
    b.e('s_barrier')
    if not KVREG: kvpair_static(b, 5)
    for s in range(4):
        for jt in range(3):
            b.e(f'ds_read_b128 {q4(qf(s,jt))}, v{VQR} offset:{jt*4096 + (s//2)*1024 + (s%2)*512}', ('qr', s))
    return b

def kread(b, f):
    kt, s = f // 4, f % 4
    b.e(f'ds_read_b128 {q4(KR+4*(f%4))}, v{VK} offset:{kt*4096 + (s//2)*1024 + (s%2)*512}', ('k', f))
def vread(b, t):
    tau = t // 2
    a = VVO if t % 2 else VVE
    for u in range(2):
        b.e(f'ds_read_b64_tr_b16 {q2(VR+4*(t%4)+2*u)}, v{a} offset:{u*4096 + (tau//2)*1024 + (tau%2)*512}', ('v', t))
def kadv(b, first=False):
    if first:
        b.e(f'v_add_u32 v{VK}, {CH}, v{VK}')
        b.e(f's_mov_b32 s45, {slot(1)}')
        return
    b.e(f's_cmp_ge_u32 s45, {LDS_TOT - 2*CH}')
    b.e(f's_cselect_b32 s47, s50, s51')
    b.e(f's_add_u32 s45, s45, s47')
    b.e(f'v_add_u32 v{VK}, s47, v{VK}')
def vadv(b):
    b.e(f's_cmp_ge_u32 s46, {LDS_TOT - 2*CH}')
    b.e(f's_cselect_b32 s47, s50, s51')
    b.e(f's_add_u32 s46, s46, s47')
    b.e(f'v_add_u32 v{VVE}, s47, v{VVE}')
    b.e(f'v_add_u32 v{VVO}, s47, v{VVO}')


def dma_k(b, part=None):
    b.e('s_mov_b32 m0, s57')
    b.e(f's_cmp_ge_u32 s57, s61')
    b.e('s_cselect_b32 s62, s50, s51')
    so = 's59'
    if KROT:
        b.e('s_add_u32 s56, s7, s59'); b.e('s_and_b32 s56, s56, 0x3ffff')
        b.e('s_cmp_lt_u32 s59, 0x40000'); b.e('s_cselect_b32 s56, s56, s59'); so = 's56'
    b.e(f'buffer_load_dwordx4 v{VKV}, {srd(S_K)}, {so} offen {KVPOL} lds', ('kd',))
    if SMOOTH: return
    dma2_k(b)
def dma2_k(b):
    so = 's56' if KROT else 's59'
    b.e(f'buffer_load_dwordx4 v{VKV}, {srd(S_K)}, {so} offen offset:2048 {KVPOL} lds', ('kd',))
    b.e('s_add_u32 s57, s57, s62')
    b.e(f's_add_u32 s59, s59, {CH}')
def dma_v(b, part=None):
    b.e('s_mov_b32 m0, s58')
    b.e(f's_cmp_ge_u32 s58, s61')
    b.e('s_cselect_b32 s62, s50, s51')
    so = 's60'
    if KROT:
        b.e('s_add_u32 s56, s7, s60'); b.e('s_and_b32 s56, s56, 0x3ffff')
        b.e('s_cmp_lt_u32 s60, 0x40000'); b.e('s_cselect_b32 s56, s56, s60'); so = 's56'
    b.e(f'buffer_load_dwordx4 v{VKV}, {srd(S_V)}, {so} offen {KVPOL} lds', ('vd',))
    if SMOOTH: return
    dma2_v(b)
def dma2_v(b):
    so = 's56' if KROT else 's60'
    b.e(f'buffer_load_dwordx4 v{VKV}, {srd(S_V)}, {so} offen offset:2048 {KVPOL} lds', ('vd',))
    b.e('s_add_u32 s58, s58, s62')
    b.e(f's_add_u32 s60, s60, {CH}')

PS = TMP + 8

def guarded(fn, T):
    def g(b):
        if T is None: return fn(b)
        role.n += 1; l = f'SK{role.n}'
        b.e(f's_cmp_eq_u32 s44, {T}')
        b.e(f's_cbranch_scc1 {l}')
        fn(b)
        b.e(f'{l}:')
    return g

def qk_backbone(S, cinit, nextV=True, first=False, qwait=False, dma=None):
    bb = []
    for f in range(8):
        kt, s = f // 4, f % 4
        for jt in range(3):
            def slot(b, f=f, kt=kt, s=s, jt=jt):
                if jt == 0:
                    if qwait and f < 4: b.wait_lgkm(('qr', s))
                    if not PAIRW: b.wait_lgkm(('k', f))
                    elif PAIRW == 2 and f == 0: b.wait_lgkm(('k', 3))
                    elif f % 2 == 0: b.wait_lgkm(('k', f + 1)); b.wait_lgkm(('k', f))
                d = q4(st(S, kt, jt))
                c = d if s else (q4(NEGM + 4 * jt) if cinit == 'negm' else '0')
                b.e(f'{MF} {d}, {q4(KR+4*(f%4))}, {q4(qf(s,jt))}, {c}')
                if jt == 2:
                    if f < 4: kread(b, f + 4)
                    if f == 3: kadv(b, first)
                    if f >= 4:
                        if nextV == 'K': kread(b, f - 4)
                        elif nextV: vread(b, f - 4)
                if POS and dma:
                    if jt == 1:
                        for p, fn in zip(POS[2:], (dma_k, dma2_k)):
                            if p == 8 + f: fn(b)
                    return
                if dma and not NODMA and not BOTH and f == int(OPT.get('kat', 0)) and jt == 1: dma(b)
                if SMOOTH and dma and not NODMA and f == int(OPT.get('kat', 0)) + 4 and jt == 1: dma2_k(b)
            bb.append(slot)
    return bb

def pv_backbone(P, nextK=True, dma=None, adv=True):
    first_guard = (P == SA and LEAD == 6)
    bb = []
    for t in range(8):
        for jt in range(3):
            def slot(b, t=t, jt=jt):
                if jt == 0:
                    if not PAIRW: b.wait_lgkm(('v', t))
                    elif PAIRW == 2 and t == 0: b.wait_lgkm(('v', 3))
                    elif t % 2 == 0: b.wait_lgkm(('v', t + 1)); b.wait_lgkm(('v', t))
                d = q4(acc(t, jt))
                b.e(f'{MF} {d}, {q4(VR+4*(t%4))}, {q4(st(P,0,jt))}, {d}')
                if jt == 2:
                    if t < 4: vread(b, t + 4)
                    if t == 3 and adv: vadv(b)
                    if t >= 4 and nextK: kread(b, t - 4)
                if POS and nextK:
                    if jt == 1:
                        for p, fn in zip(POS, (dma, guarded(dma2_v, 0) if first_guard else dma2_v, dma_k, dma2_k)):
                            if p == t: fn(b)
                    return
                if dma and not NODMA and t == (int(OPT.get('vat', 0)) if nextK else 0) and jt == 1: dma(b)
                if SMOOTH and nextK and dma and not NODMA and t == int(OPT.get('vat', 0)) + 4 and jt == 1: (guarded(dma2_v, 0) if first_guard else dma2_v)(b)
                if BOTH and nextK and not NODMA and t == BOTH and jt == 1: dma_k(b)
            bb.append(slot)
    return bb

def sregs(S, jt): return [st(S, 0, jt) + i for i in range(4)] + [st(S, 1, jt) + i for i in range(4)]

def sm_fillers(S):
    fl = []
    for kt in range(2):
        for jt in range(3):
            r = sregs(S, jt)
            o = 4 * kt
            fl.append(E(f'v_exp_f32 v{r[o]}, v{r[o]}'))
            fl.append(E(f'v_exp_f32 v{r[o+1]}, v{r[o+1]}'))
            if kt: fl.append(E(f'v_add_f32 v{PS+jt}, v{PS+jt}, v{r[o]}'))
            fl.append(E(f'v_exp_f32 v{r[o+2]}, v{r[o+2]}'))
            if kt: fl.append(E(f'v_add_f32 v{PS+jt}, v{PS+jt}, v{r[o+1]}'))
            else: fl.append(E(f'v_add_f32 v{PS+jt}, v{r[0]}, v{r[1]}'))
            fl.append(E(f'v_exp_f32 v{r[o+3]}, v{r[o+3]}'))
            fl.append(E(f'v_add_f32 v{PS+jt}, v{PS+jt}, v{r[o+2]}'))
            fl.append(E(f'v_cvt_pk_bf16_f32 v{r[2*kt]}, v{r[o]}, v{r[o+1]}'))
            fl.append(E(f'v_add_f32 v{PS+jt}, v{PS+jt}, v{r[o+3]}'))
            fl.append(E(f'v_cvt_pk_bf16_f32 v{r[2*kt+1]}, v{r[o+2]}, v{r[o+3]}'))
    return fl

def chk_fillers():
    return [E(f'v_max3_f32 v{TMP}, v{PS}, v{PS+1}, v{PS+2}'), E(f'v_cmp_nle_f32 vcc, v{TMP}, v{TMP+11}')]
def ladd_fillers():
    return [E(f'v_add_f32 v{LS+jt}, v{LS+jt}, v{PS+jt}') for jt in range(3)]

def xreduce3(regs, tmps, op):
    fl = []
    for sw in ('v_permlane32_swap_b32', 'v_permlane16_swap_b32'):
        for r, t in zip(regs, tmps): fl.append(E(f'v_mov_b32 v{t}, v{r}'))
        for r, t in zip(regs, tmps): fl.append(E(f'{sw} v{r}, v{t}'))
        for r, t in zip(regs, tmps): fl.append(E(f'{op} v{r}, v{r}, v{t}'))
    return fl

MX = [TMP + 1, TMP + 2, TMP + 3]; MT = [TMP + 4, TMP + 5, TMP + 6]
def rowmax3(S):
    fl = []
    R = [sregs(S, jt) for jt in range(3)]
    for jt in range(3): fl.append(E(f'v_max3_f32 v{MX[jt]}, v{R[jt][0]}, v{R[jt][1]}, v{R[jt][2]}'))
    for jt in range(3): fl.append(E(f'v_max3_f32 v{MX[jt]}, v{MX[jt]}, v{R[jt][3]}, v{R[jt][4]}'))
    for jt in range(3): fl.append(E(f'v_max3_f32 v{MX[jt]}, v{MX[jt]}, v{R[jt][5]}, v{R[jt][6]}'))
    for jt in range(3): fl.append(E(f'v_max_f32 v{MX[jt]}, v{MX[jt]}, v{R[jt][7]}'))
    return fl + xreduce3(MX, MT, 'v_max_f32')

def rare_path(ctx, name, Y, X, back):
    snap = ctx.snap()
    r = Block(ctx, name + 'r')
    r.e(f'{name}_RARE:')
    r.e(f's_cmp_ge_u32 s45, {back*CH}')
    r.e(f's_cselect_b32 s47, 0, {LDS_TOT}')
    r.e(f's_sub_u32 s47, s47, {back*CH}')
    r.e(f'v_add_u32 v{TMP+7}, s47, v{VK}')
    for kt in range(2):
        for s in range(4):
            r.e(f'ds_read_b128 {q4(KR+4*s)}, v{TMP+7} offset:{kt*4096 + (s//2)*1024 + (s%2)*512}', ('rk',))
        r.e('s_waitcnt lgkmcnt(0)')
        for s in range(4):
            for jt in range(3):
                d = q4(st(Y, kt, jt))
                r.e(f'{MF} {d}, {q4(KR+4*s)}, {q4(qf(s,jt))}, {d if s else q4(NEGM+4*jt)}')
    r.e('s_nop 7')
    run(r, rowmax3(Y))
    for jt in range(3): r.e(f'v_max_f32 v{MX[jt]}, 0, v{MX[jt]}')
    for jt in range(3): r.e(f'v_exp_f32 v{MT[jt]}, -v{MX[jt]}')
    for jt in range(3):
        for q in sregs(Y, jt) + (sregs(X, jt) if X else []) + [NEGM + 4 * jt + i for i in range(4)]:
            r.e(f'v_sub_f32 v{q}, v{q}, v{MX[jt]}')
        r.e(f'v_mul_f32 v{LS+jt}, v{LS+jt}, v{MT[jt]}')
        for t in range(8):
            for i in range(4): r.e(f'v_mul_f32 v{acc(t,jt)+i}, v{acc(t,jt)+i}, v{MT[jt]}')
    run(r, sm_fillers(Y))
    r.e('s_nop 1')
    r.e(f's_branch {name}_JOIN')
    ctx.restore(snap)
    return r

def k1_att_prologue(ctx):
    b = Block(ctx, 'att_pro')
    for f in range(4): kread(b, f)
    nk, nv = {0: (7, 8), 1: (11, 10), 2: (9, 8), 3: (9, 8)}[KVREG]
    if LEAD == 8: nk, nv = 9, 8
    b.e(f's_add_u32 s57, s52, {slot(nk)}')
    b.e(f's_add_u32 s58, s52, {slot(nv)}')
    b.e(f's_mov_b32 s59, {chunk_of(nk)[1]*CH}')
    b.e(f's_mov_b32 s60, {chunk_of(nv)[1]*CH}')
    b.e(f's_add_u32 s61, s52, {LDS_TOT - 2*CH}')
    b.e(f'v_mov_b32 v{TMP+11}, {hex(f2u(THR))}')
    if FUSED and WARM:
        b.e('s_lshr_b32 s55, s41, 3'); b.e('s_mul_i32 s55, s55, 1179648')
        b.e('s_and_b32 s56, s41, 3'); b.e('s_mul_i32 s62, s56, 288'); b.e('s_add_u32 s55, s55, s62')
        b.e('s_and_b32 s62, s41, 1'); b.e('s_lshl_b32 s62, s62, 5'); b.e('s_sub_u32 s55, s55, s62')
        b.e('s_lshl_b32 s56, s56, 1'); b.e('s_and_b32 s62, s41, 4'); b.e('s_add_u32 s56, s56, s62')
        b.e('s_and_b32 s62, s40, 3'); b.e('s_add_u32 s56, s56, s62'); b.e('s_and_b32 s56, s56, 7')
        b.e('s_mul_i32 s56, s56, 147456'); b.e('s_add_u32 s55, s55, s56')
        b.e('s_mul_i32 s56, s42, 18432'); b.e('s_add_u32 s55, s55, s56')
        b.e('s_add_u32 s28, s12, s55'); b.e('s_addc_u32 s29, s13, 0')
        b.e('s_sub_u32 s30, 4718592, s55'); b.e('s_mov_b32 s31, 0x20000')
    zero = [E(f'v_mov_b32 v{ACC+i}, 0') for i in range(48)]
    run(b, interleave(qk_backbone(SA, '0', nextV='K', first=True, qwait=True), zero))
    b.wait_vm(('kv', 2))
    b.e('s_barrier')
    if WARM >= 2:
        b.e(f'v_lshrrev_b32 v{TMP+7}, 6, v{VL16}'); b.e(f'v_mul_u32_u24 v{TMP+7}, 1152, v{TMP+7}')
        b.e(f'v_and_b32 v{TMP}, 48, v{VL16}'); b.e(f'v_lshlrev_b32 v{TMP}, 3, v{TMP}'); b.e(f'v_min_u32 v{TMP}, 316, v{TMP}')
        b.e(f'v_add_u32 v{TMP+7}, v{TMP+7}, v{TMP}')
        b.e(f'buffer_load_dword v{TMP}, v{TMP+7}, s[28:31], 0 offen', ('warm0',))
    if KVREG >= 2:
        kvpair_static(b, 6)
        kvpair_static(b, 7)
    elif KVREG:
        kvpair_static(b, 8)
        kvpair_static(b, 9)
        run(b, kv_to_lds(7)[:1] + kv_to_lds(7)[1:] + kv_to_lds(6))
    else:
        kvpair_static(b, 6)
        if LEAD == 8: kvpair_static(b, 7)
    if TOUCH:
        b.e(f'v_lshlrev_b32 v{TMP+7}, {12 if TOUCH == 1 else 17}, v{VL16}')
        b.e('s_mov_b32 s100, 0x20000')
        for base, size, off in ((12, 4718592, 0), (18, 0x1000000, 0), (18, 0x1000000, 0x400000), (18, 0x1000000, 0x800000), (18, 0x3000000, 0x2000000), (18, 0x3000000, 0x2400000), (18, 0x3000000, 0x2800000), (18, 0x3000000, 0x2c00000), (14, 1769472, 0)):
            b.e(f's_mov_b32 s28, s{base}'); b.e(f's_mov_b32 s29, s{base+1}'); b.e(f's_mov_b32 s30, {size}'); b.e('s_mov_b32 s31, 0x20000')
            b.e(f's_mov_b32 s56, {off}')
            b.e(f'buffer_load_dword v{TMP}, v{TMP+7}, s[28:31], s56 offen', ('touch',))
        b.e('s_waitcnt vmcnt(0)')
    run(b, rowmax3(SA))
    for jt in range(3):
        for i in range(4): b.e(f'v_sub_f32 v{NEGM+4*jt+i}, 0, v{MX[jt]}')
    sub = [E(f'v_sub_f32 v{r}, v{r}, v{MX[jt]}') for kt in range(2) for jt in range(3) for r in sregs(SA, jt)[4*kt:4*kt+4]]
    run(b, interleave(qk_backbone(SB, 'negm', nextV=True), sub + sm_fillers(SA)))
    b.e('s_mov_b32 s44, 0')
    if PRIO:
        b.e('s_cmp_ge_u32 s42, 4'); b.e('s_cbranch_scc0 NOPRIO'); b.e('s_setprio 1'); b.e('NOPRIO:')
    stamp(b, 3)
    return b

def winter(backbone, fillers, start, end):
    if not int(OPT.get('cw', 0)): return interleave(backbone, fillers, start, end)
    class Probe:
        def e(self, t, tag=None): self.t = t
    w = []
    for f in fillers:
        p = Probe(); p.t = ''
        try: f(p)
        except Exception: pass
        w.append(2 if p.t.startswith('v_exp') else 1)
    tot = sum(w); n = len(backbone); span = end - start
    out = []; k = 0; acc_ = 0
    for i in range(n):
        out.append(backbone[i])
        if start <= i < end:
            tgt = tot * (i - start + 1) / span
            while k < len(fillers) and acc_ + w[k] / 2 <= tgt:
                out.append(fillers[k]); acc_ += w[k]; k += 1
    return out + fillers[k:]

def pv_phase(ctx, name, P, S, nextK=True, head=None, dma=None, vmw=4, bar=True, extra=(), split=None):
    a = Block(ctx, name)
    if head: head(a)
    if bar:
        a.e(f's_waitcnt vmcnt({(int(OPT.get("vmb", 2)) if NOBARQK else vmw) + 2 * (LEAD - 6)})')
        a.e('s_barrier')
    fl = ladd_fillers() + (sm_fillers(S)[:split or SM_SPLIT] if S else []) + list(extra)
    run(a, winter(pv_backbone(P, nextK, dma, adv=bar), fl, int(OPT.get('pvs', 2)), 24))
    return a

def qk_phase(ctx, name, D, S, dma):
    b = Block(ctx, name)
    if not NOBARQK:
        b.e('s_waitcnt vmcnt(4)')
        b.e('s_barrier')
    run(b, winter(qk_backbone(D, 'negm', dma=dma), sm_fillers(S)[SM_SPLIT:] + chk_fillers(), 0, 23))
    b.e(f's_cbranch_vccnz {name}_RARE')
    r = rare_path(ctx, name, S, D, 4)
    j = Block(ctx, name + 'j'); j.e(f'{name}_JOIN:')
    return b, r, j

def pol_store(b, text, tag):
    b.e(text + ' sc1', tag)

EXB = 4 * CH
MLB = 24576
XA = SA + 20
def vread_as(b, t, k):
    tau = t // 2
    a = VVO if t % 2 else VVE
    for u in range(2):
        b.e(f'ds_read_b64_tr_b16 {q2(VR+4*(k%4)+2*u)}, v{a} offset:{u*4096 + (tau//2)*1024 + (tau%2)*512}', ('v', k))
def order_of(r): return [4, 5, 6, 7, 0, 1, 2, 3] if r == A else list(range(8))

def last_pv(ctx):
    b = Block(ctx, 'L3')
    b.e('L2_JOIN:')
    setup = tail_setup()
    red = ladd_fillers() + xreduce3([LS, LS + 1, LS + 2], MT, 'v_add_f32')
    for r in (A, B):
        with role(b, r):
            od = order_of(r)
            bb = []
            for k, t in enumerate(od):
                for jt in range(3):
                    def slot_(b, k=k, t=t, jt=jt):
                        if jt == 0 and k % 2 == 0: b.wait_lgkm(('v', k + 1))
                        d = q4(acc(t, jt))
                        b.e(f'{MF} {d}, {q4(VR+4*(k%4))}, {q4(st(SB,0,jt))}, {d}')
                        if jt == 2 and k < 4: vread_as(b, od[k + 4], k + 4)
                    bb.append(slot_)
            snd = [E(f'ds_write_b128 v{XA}, {q4(acc(t, jt))} offset:{(3*i+jt)*1024}', ('x',)) for i, t in enumerate(od[:4]) for jt in range(3)]
            run(b, interleave(bb[:12], red + setup[:10], start=1))
            mixed = []
            for k in range(max(len(snd), len(setup) - 10)):
                if 10 + k < len(setup): mixed.append(setup[10 + k])
                if k < len(snd): mixed.append(snd[k])
            run(b, interleave(bb[12:], mixed, start=0))
    return b

def k1_epilogue(ctx):
    b = Block(ctx, 'epi')
    stamp(b, 4)
    if STAMP and OPT.get('rt4'): b.e('s_memrealtime s[84:85]')
    b.e('s_xor_b32 s46, s42, 4')
    b.e(f'v_lshrrev_b32 v{VVO}, 1, v{VL16}')
    b.e('s_mul_i32 s43, s42, 1536')
    b.e('s_mul_i32 s45, s46, 1536')
    b.e(f's_add_u32 s43, s43, {MLB}')
    b.e(f's_add_u32 s45, s45, {MLB}')
    b.e(f'v_add_u32 v{VKV}, s43, v{VVO}')
    b.e(f'v_add_u32 v{VVO}, s45, v{VVO}')
    for jt in range(3):
        b.e(f'v_mov_b32 v{NEGM+4*jt+1}, v{LS+jt}')
    for jt in range(3):
        b.e(f'ds_write_b64 v{VKV}, {q2(NEGM+4*jt)} offset:{jt*512}', ('x',))
    b.e('s_and_b32 s43, s42, 3')
    b.e('s_mul_i32 s43, s43, 393216')
    b.e('s_lshl_b32 s45, s41, 12')
    b.e('s_add_u32 s43, s43, s45')
    b.e('s_lshl_b32 s45, s54, 11')
    b.e('s_add_u32 s43, s43, s45')
    b.e('s_add_u32 s45, s43, 131072')
    b.e('s_add_u32 s46, s43, 262144')
    so = ['s43', 's45', 's46']
    b.e('s_waitcnt lgkmcnt(0)')
    b.e('s_barrier')
    RX = QF
    ML = SA
    for jt in range(3):
        b.e(f'ds_read_b64 {q2(ML+2*jt)}, v{VVO} offset:{jt*512}', ('ml',))
    for i in range(12):
        b.e(f'ds_read_b128 {q4(RX+4*i)}, v{XA+1} offset:{i*1024}', ('rx', i))
    b.wait_lgkm(('ml',))
    C = SA + 8
    T = [TMP, TMP + 4, TMP + 8]
    def each(f):
        for jt in range(3): b.e(f(jt, NEGM + 4 * jt, NEGM + 4 * jt + 1, ML + 2 * jt, ML + 2 * jt + 1, T[jt]))
    each(lambda jt, no, lo, np_, lp, t: f'v_min_f32 v{t}, v{no}, v{np_}')
    each(lambda jt, no, lo, np_, lp, t: f'v_sub_f32 v{t+1}, v{t}, v{no}')
    each(lambda jt, no, lo, np_, lp, t: f'v_sub_f32 v{t+2}, v{t}, v{np_}')
    each(lambda jt, no, lo, np_, lp, t: f'v_exp_f32 v{t+1}, v{t+1}')
    each(lambda jt, no, lo, np_, lp, t: f'v_exp_f32 v{t+2}, v{t+2}')
    each(lambda jt, no, lo, np_, lp, t: f'v_mul_f32 v{t+3}, v{t+1}, v{lo}')
    each(lambda jt, no, lo, np_, lp, t: f'v_fmac_f32 v{t+3}, v{t+2}, v{lp}')
    each(lambda jt, no, lo, np_, lp, t: f'v_rcp_f32 v{t+3}, v{t+3}')
    b.e('s_nop 0')
    for x, src in ((0, 1), (1, 1), (2, 2), (3, 2)):
        each(lambda jt, no, lo, np_, lp, t: f'v_mul_f32 v{C+4*jt+x}, v{t+src}, v{t+3}')
    OUT = SB
    snap = ctx.snap()
    for r in (A, B):
        with role(b, r):
            keep = range(0, 4) if r == A else range(4, 8)
            for sp in range(2):
                for jt in range(3):
                    o = OUT + 4 * (3 * sp + jt)
                    for h in range(2):
                        i = 2 * sp + h
                        a = acc(keep[i], jt); x = RX + 4 * (3 * i + jt)
                        b.wait_lgkm(('rx', 3 * i + jt))
                        b.e(f'v_pk_mul_f32 {q2(a)}, {q2(a)}, {q2(C+4*jt)}')
                        b.e(f'v_pk_mul_f32 {q2(a+2)}, {q2(a+2)}, {q2(C+4*jt)}')
                        b.e(f'v_pk_fma_f32 {q2(a)}, {q2(x)}, {q2(C+4*jt+2)}, {q2(a)}')
                        b.e(f'v_pk_fma_f32 {q2(a+2)}, {q2(x+2)}, {q2(C+4*jt+2)}, {q2(a+2)}')
                        b.e(f'v_cvt_pk_bf16_f32 v{o+2*h}, v{a}, v{a+1}')
                        b.e(f'v_cvt_pk_bf16_f32 v{o+2*h+1}, v{a+2}, v{a+3}')
                    pol_store(b, f'buffer_store_dwordx4 {q4(o)}, v{VL16}, {srd(S_O)}, {so[jt]} offen offset:{sp*1024}', ('o',))
    if FUSED:
        b.e('s_bfe_u32 s43, s42, 0x10001')
        b.e('s_cmp_eq_u32 s43, s49')
        b.e('s_cbranch_scc0 OWN_SKIP')
        b.e('s_and_b32 s43, s42, 1'); b.e('s_mul_i32 s43, s43, 6144')
        b.e(f's_mul_i32 s45, s54, {OS_}'); b.e('s_add_u32 s43, s43, s45')
        b.e(f'v_add_u32 v{VK}, s43, v{VL16}')
        for sp in range(2):
            for jt in range(3):
                b.e(f'ds_write_b128 v{VK}, {q4(OUT + 4 * (3 * sp + jt))} offset:{(2*jt+sp)*1024}', ('oo',))
        b.e('OWN_SKIP:')
    if not FUSED:
        if STAMP:
            b.e('s_waitcnt vmcnt(0)')
            stamp(b, 5)
            dump_stamps(b)
        b.e('K1_END:')
        b.e('s_endpgm')
    return b

def dump_stamps(b):
    b.e('s_memrealtime s[88:89]')
    b.e('s_waitcnt lgkmcnt(0)')
    if STAMP == 2:
        b.e(f's_cmp_eq_u32 s2, {int(OPT.get("dbgwg", 0))}'); b.e('s_cbranch_scc0 DBG_SKIP')
        b.e('s_cmp_eq_u32 s42, 2'); b.e('s_cbranch_scc0 DBG_SKIP')
        b.e('s_mov_b32 s56, s16'); b.e('s_mov_b32 s57, s17'); b.e('s_mov_b32 s58, 256'); b.e('s_mov_b32 s59, 0x20000')
        b.e('v_mov_b32 v1, 0')
        for i in range(1, 11):
            b.e(f's_sub_u32 s43, s{64+2*i}, s64'); b.e('v_mov_b32 v2, s43')
            b.e(f'buffer_store_dword v2, v1, s[56:59], 0 offen offset:{4*i}')
            b.e('s_waitcnt vmcnt(0)')
        b.e('s_sub_u32 s43, s88, s86'); b.e('v_mov_b32 v2, s43')
        b.e('buffer_store_dword v2, v1, s[56:59], 0 offen offset:44')
        b.e('s_waitcnt vmcnt(0)')
        b.e('DBG_SKIP:')
        return
    b.e('s_lshl_b32 s43, s2, 3'); b.e('s_add_u32 s43, s43, s42'); b.e('s_lshl_b32 s43, s43, 7')
    b.e('s_add_u32 s43, s43, 0x1000000')
    b.e('s_add_u32 s56, s18, s43'); b.e('s_addc_u32 s57, s19, 0'); b.e('s_mov_b32 s58, 128'); b.e('s_mov_b32 s59, 0x20000')
    b.e('v_mov_b32 v1, 0')
    for i in range(13):
        b.e(f'v_mov_b32 v2, s{64+2*i}'); b.e(f'v_mov_b32 v3, s{65+2*i}')
        b.e(f'buffer_store_dwordx2 v[2:3], v1, s[56:59], 0 offen offset:{8*i}')
        b.e('s_waitcnt vmcnt(0)')

def poll(b, name, load, notyet):
    b.e('s_mov_b32 s91, 0')
    b.e(f'{name}:')
    b.e(load)
    b.e('s_add_u32 s91, s91, 1')
    b.e('s_waitcnt vmcnt(0)')
    b.e(notyet)
    b.e('s_cmp_lt_u32 s91, 0x40000')
    b.e(f's_cbranch_vccz {name}_GO')
    b.e(f's_sleep {SLEEP}')
    b.e(f's_cbranch_scc1 {name}')
    b.e(f'{name}_GO:')

BIG, SML, LW, LO = (2, 3), (0, 1, 4, 5), (6,), (7,)
S_WO, S_OI, S_P, S_PI, S_OUT = 20, 24, 28, 32, 36
VAP = 192; VB = 197; VT = 198; VE = 202; GS = 208; XF = 248
WS_ = 20480; NW_ = 6; OS_ = 12288; NO_ = 3; WOB = NO_ * OS_

def tail_setup():
    P = []
    def piece(*lines): P.append(lambda b: [b.e(l) for l in lines])
    piece('s_lshr_b32 s47, s41, 3', 's_and_b32 s48, s41, 7')
    piece('s_lshr_b32 s49, s48, 2', 's_and_b32 s50, s48, 3')
    piece('s_and_b32 s51, s50, 1', 's_mul_i32 s55, s47, 1179648')
    piece('s_mul_i32 s61, s50, 288', 's_add_u32 s55, s55, s61')
    piece('s_lshl_b32 s61, s51, 5', 's_sub_u32 s55, s55, s61')
    piece('s_mul_i32 s61, s40, 1572864', 's_mul_i32 s100, s49, 786432')
    piece('s_add_u32 s61, s61, s100', 's_lshl_b32 s100, s47, 15')
    piece('s_add_u32 s61, s61, s100', f's_sub_u32 s{S_WO+2}, 4718592, s55')
    piece(f's_add_u32 s{S_WO}, s12, s55', f's_addc_u32 s{S_WO+1}, s13, 0')
    piece(f's_add_u32 s{S_OI}, s18, s61', f's_addc_u32 s{S_OI+1}, s19, 0')
    piece(f's_mov_b32 s{S_WO+3}, 0x20000', f's_mov_b32 s{S_OI+2}, {5*131072 + 32768}', f's_mov_b32 s{S_OI+3}, 0x20000')
    piece('s_lshl_b32 s52, s40, 3', 's_add_u32 s52, s52, s48')
    piece(f's_mul_i32 s52, s52, {16*INB}', f's_add_u32 s52, s52, {POFF}')
    piece(f's_mul_i32 s61, s47, {INB}', 's_add_u32 s61, s61, s52')
    piece(f's_add_u32 s{S_P}, s18, s61', f's_addc_u32 s{S_P+1}, s19, 0')
    piece(f's_mov_b32 s{S_P+2}, {13*INB}', f's_mov_b32 s{S_P+3}, 0x20000')
    piece(f's_mul_i32 s61, s47, {4*INB}', 's_add_u32 s61, s61, s52')
    piece(f's_add_u32 s{S_PI}, s18, s61', f's_addc_u32 s{S_PI+1}, s19, 0')
    piece(f's_mov_b32 s{S_PI+2}, {4*INB}', f's_mov_b32 s{S_PI+3}, 0x20000')
    piece('s_mul_i32 s52, s40, 192', 's_mul_i32 s61, s49, 96')
    piece('s_add_u32 s52, s52, s61', 's_lshl_b32 s61, s47, 2')
    piece('s_add_u32 s52, s52, s61', 's_mul_i32 s52, s52, 1152')
    piece('s_mul_i32 s61, s50, 288', 's_add_u32 s6, s52, s61')
    piece('s_lshr_b32 s100, s50, 1', 's_and_b32 s99, s90, 0xfffffc00')
    return P

def head_of(b, U):
    G = U // 2
    b.e(f's_add_u32 s55, s48, {G >> 1}'); b.e('s_and_b32 s55, s55, 3')
    b.e(f's_xor_b32 s61, s48, {(G & 1) << 2}'); b.e('s_and_b32 s61, s61, 4'); b.e('s_or_b32 s55, s55, s61')

def oproj(ctx):
    FB = 64
    b = Block(ctx, 'op_pre')
    stamp(b, 2, True)
    b.e(f'v_lshrrev_b32 v{VT+3}, 4, v{VL16}')
    T0 = 216
    v3, v4, v5, v6, v7 = (f'v{T0+i}' for i in range(5))
    VL = 224
    b.e(f'v_and_b32 {v3}, 3, v{VT+3}')
    with role(b, BIG + SML):
        b.e('s_and_b32 s43, s42, 1')
        b.e('s_cmp_lt_u32 s42, 2'); b.e('s_cselect_b32 s45, 5, 0')
        b.e('s_cmp_ge_u32 s42, 4'); b.e('s_cselect_b32 s45, 7, s45')
        b.e(f'v_lshrrev_b32 {v4}, 4, v{VT+3}'); b.e(f'v_bfe_u32 {v5}, v{VT+3}, 2, 4')
        b.e(f'v_and_b32 {v7}, 7, {v5}'); b.e(f'v_lshlrev_b32 {v7}, 6, {v7}'); b.e(f'v_lshlrev_b32 {v5}, 6, {v5}')
        b.e(f'v_and_b32 {v6}, 1, {v4}'); b.e(f'v_lshlrev_b32 {v6}, 5, {v6}'); b.e(f'v_lshl_add_u32 {v6}, {v3}, 3, {v6}')
        b.e(f'v_add_u32 {v5}, {v5}, {v6}'); b.e(f'v_add_u32 {v7}, {v7}, {v6}')
        b.e(f'v_lshrrev_b32 {v6}, 1, {v4}'); b.e(f'v_lshl_add_u32 {v7}, {v6}, 12, {v7}')
        b.e('s_add_u32 s101, s45, s51')
        for n in range(5):
            b.e(f's_add_u32 s52, s101, {n}')
            b.e('s_and_b32 s91, s52, 1'); b.e('s_lshl_b32 s91, s91, 5')
            b.e('s_lshr_b32 s52, s52, 1'); b.e('s_sub_u32 s52, s52, s100')
            b.e('s_and_b32 s54, s52, 1'); b.e('s_lshl_b32 s54, s54, 9')
            b.e('s_lshr_b32 s55, s52, 1'); b.e('s_lshl_b32 s55, s55, 13'); b.e('s_add_u32 s54, s54, s55')
            b.e('s_cmp_lt_u32 s52, 4'); b.e('s_cselect_b32 s54, s54, 16384'); b.e('s_cselect_b64 vcc, -1, 0')
            b.e(f's_add_u32 s54, s54, {WOB}')
            b.e(f'v_cndmask_b32 v{VAP+n}, {v5}, {v7}, vcc')
            b.e(f'v_xor_b32 v{VAP+n}, s91, v{VAP+n}'); b.e(f'v_add_u32 v{VAP+n}, s54, v{VAP+n}')
        b.e('s_mul_i32 s52, s43, 6144')
        b.e(f'v_add_u32 v{VB}, s52, v{VL16}')
        b.e(f'v_bfe_u32 {v6}, v{VT+3}, 2, 2'); b.e(f'v_mul_u32_u24 {v6}, {4*INB}, {v6}')
        b.e(f'v_lshl_add_u32 {v6}, {v4}, 6, {v6}'); b.e(f'v_lshl_add_u32 v{VT+2}, {v3}, 4, {v6}')
        b.e('s_mul_i32 s52, s43, 27'); b.e('s_add_u32 s52, s52, s45'); b.e('s_lshl_b32 s5, s52, 8')
        b.e('s_mul_i32 s52, s43, 9'); b.e('s_add_u32 s52, s52, s45'); b.e('s_lshl_b32 s4, s52, 9')
    VH = VL + 8
    with role(b, LW + LO):
        for V, full in ((VL, True), (VH, False)):
            if full:
                b.e(f'v_bfe_u32 {v4}, v{VT+3}, 2, 3'); b.e(f'v_lshrrev_b32 {v6}, 5, v{VT+3}')
                b.e(f'v_mul_u32_u24 {v5}, 1152, {v4}'); b.e(f'v_lshl_add_u32 {v5}, {v6}, 6, {v5}')
                b.e('s_lshl_b32 s52, s100, 6')
            else:
                b.e(f'v_lshrrev_b32 {v4}, 2, v{VT+3}'); b.e(f'v_mul_u32_u24 {v5}, 1152, {v4}')
                b.e('s_lshl_b32 s52, s100, 8'); b.e('s_sub_u32 s52, 256, s52')
            b.e(f'v_bfe_u32 {v4}, {v4}, 2, 1'); b.e(f'v_lshlrev_b32 {v4}, 1, {v4}'); b.e(f'v_xor_b32 {v4}, {v4}, {v3}')
            b.e(f'v_lshl_add_u32 {v5}, {v4}, 4, {v5}')
            b.e(f'v_add_u32 v{V}, s52, {v5}')
            for m in range(1, 4): b.e(f'v_add_u32 v{V+m}, {m*(18432-1024)}, v{V}')
    b.e(f'v_add_u32 v{VL+4}, {131072-2048}, v{VL16}')
    b.e(f'v_and_b32 v{VL+5}, 0x70, v{VL16}'); b.e(f'v_lshlrev_b32 v{VL+5}, 3, v{VL+5}')
    b.e('s_lshl_b32 s91, s42, 6')
    b.e(f'v_add_u32 v{VT}, s91, v{VT+3}')
    b.e(f'v_lshlrev_b32 v{VT}, 20, v{VT}')
    b.e(f'v_mov_b32 v{VT+1}, s97')
    b.e('s_waitcnt lgkmcnt(0)')
    b.wait_vm(('o',))
    b.e('s_barrier')
    FL = int(OPT.get('fl', 0))
    if FL == 0: b.e(f'buffer_store_dword v{VT+1}, v{VT}, {srd(S_F)}, s90 offen sc1', ('f1',))
    stamp(b, 5)
    b.e('s_cmp_eq_u32 s42, 6'); b.e('s_cbranch_scc1 OP_LW')
    b.e('s_cmp_eq_u32 s42, 7'); b.e('s_cbranch_scc1 OP_LO')
    b.e('s_bitcmp1_b32 12, s42'); b.e('s_cbranch_scc1 OP_BIG')

    def wo_off(x, U):
        head_of(x, U)
        x.e('s_mul_i32 s55, s55, 147456')
        if U % 2: x.e('s_add_u32 s55, s55, 73728')
    def wo_groups(x, groups):
        cur = None
        for U, ty in groups:
            if U != cur: wo_off(x, U); cur = U
            if len(ctx.c[ctx.active[0]].vm) > 59: x.e('s_waitcnt vmcnt(47)')
            x.e(f's_mov_b32 m0, {WOB + (U % NW_) * WS_ + ty * 4096}')
            x.e(f's_add_u32 s56, s55, {(ty % 2) * 9216 + (ty // 2) * 128 if ty < 4 else 0}')
            for m in range(4):
                x.e(f'buffer_load_dwordx4 v{(VL if ty < 4 else VH)+m}, {srd(S_WO)}, s56 offen offset:{m*1024} lds', ('w', U))
    def o_unit(x, U):
        head_of(x, U)
        if U % 2 == 0:
            role.n += 1; l = f'HP{role.n}'
            x.e('s_bitcmp1_b32 s3, s55')
            x.e(f's_cbranch_scc0 {l}_GO')
            for t in ['s_mov_b32 s91, 0', f'{l}:', f'buffer_load_dword v{VL+6}, v{VL+5}, {srd(S_F)}, s99 offen sc1', 's_add_u32 s91, s91, 1',
                      's_waitcnt vmcnt(0)', f'v_cmp_ne_u32 vcc, s97, v{VL+6}', 's_nop 0', 's_mov_b32 s3, vcc_lo', 's_bitcmp1_b32 s3, s55',
                      f's_cbranch_scc0 {l}_GO', f's_sleep {SLEEP}', 's_cmp_lt_u32 s91, 0x40000', f's_cbranch_scc1 {l}']:
                i = I(t); i.roles = (); x.append(i)
            x.e(f'{l}_GO:')
        x.e('s_lshl_b32 s55, s55, 12')
        if U % 2: x.e('s_add_u32 s55, s55, 2048')
        for g in range(3):
            x.e(f's_mov_b32 m0, {(U % NO_) * OS_ + g * 4096}')
            x.e(f's_add_u32 s56, s55, {g * 262144}')
            for m in range(4):
                x.e(f'buffer_load_dwordx4 v{VL16 if m < 2 else VL+4}, {srd(S_OI)}, s56 offen offset:{m*1024} lds', ('o2', U))
    def vwait(x, *tags):
        n = [ctx.count_after('vm', t) for t in tags]
        n = [k for k in n if k is not None]
        if n: x.e(f's_waitcnt vmcnt({min(min(n), 47)})')
    snap = ctx.snap()
    rest = [(U, ty) for U in range(6, 16) for ty in range(5)]
    PLAN = [int(x) for x in OPT.get('plan', '5,4,4,4,5,4,4,4,4,4,4,4').split(',')]
    assert sum(PLAN) == 50
    sched = []
    for k, n in enumerate(PLAN):
        g, rest = rest[:n], rest[n:]
        assert all(U - 7 <= k and U - 3 >= k for U, _ in g), (k, g)
        n6 = min(n, 4 if (k % 2 or k == 0) else 3)
        sched.append((g[:n6], g[n6:]))
    def loader(name, waves, me):
        lo = Block(ctx, name); ctx.active = list(waves)
        lo.e(f'{name}:')
        if me: lo.e('s_mov_b32 s3, 0xff')
        first = [(0, 0), (0, 1), (0, 2), (1, 0), (1, 1)] if me == 0 else [(0, 3), (0, 4), (1, 2), (1, 3), (1, 4)]
        wo_groups(lo, first)
        lo.e('s_waitcnt vmcnt(0)'); lo.e('s_barrier')
        if me == 0:
            wo_groups(lo, [(U, ty) for U in range(2, 6) for ty in range(4)])
        else:
            wo_groups(lo, [(2, 4), (3, 4)])
            stamp(lo, 3, True)
            o_unit(lo, 2)
            wo_groups(lo, [(4, 4), (5, 4)])
        vwait(lo, ('o2', 2), ('w', 2)); lo.e('s_barrier')
        if me: o_unit(lo, 3); o_unit(lo, 4)
        wo_groups(lo, sched[0][me])
        for U in range(2, 16):
            if U < 15: vwait(lo, ('o2', U + 1), ('w', U + 1))
            lo.e('s_barrier')
            if me and U + NO_ < 16: o_unit(lo, U + NO_)
            if U - 1 < len(sched): wo_groups(lo, sched[U - 1][me])
        lo.e('s_barrier')
        lo.e('s_branch OP_DONE')
        return lo
    lw = loader('OP_LW', LW, 0)
    lo = loader('OP_LO', LO, 1)

    OWN = 0
    def GEND(NT): return int(OPT.get('gend', 28)) if NT == 5 else int(OPT.get('gens', 10))
    def compute(name, waves, NT):
        ctx.restore(snap); ctx.active = list(waves)
        c = Block(ctx, name); lp = Block(ctx, name + 'l'); e = Block(ctx, name + 'e')
        c.e(f'{name}:')
        SZ = 4 * (NT + 3)
        def fA(U, k, n): return FB + 2 * SZ * (U % 2) + SZ * k + 4 * n
        def fB(U, k, j): return FB + 2 * SZ * (U % 2) + SZ * k + 4 * NT + 4 * j
        def rd(U):
            r = []
            for k in range(2):
                r += [E(f'ds_read_b128 {q4(fB(U,k,j))}, v{VB} offset:{(2*j+k)*1024}', ('f', U)) for j in range(3)]
                for n in range(NT):
                    r += [E(f'ds_read_b64_tr_b16 {q2(fA(U,k,n)+2*u)}, v{VAP+n} offset:{k*2048 + u*1024}', ('f', U)) for u in range(2)]
            return r
        def adv(b):
            b.e(f's_cmp_ge_u32 s46, {(NW_-1)*WS_}'); b.e(f's_cselect_b32 s52, s54, s53'); b.e('s_add_u32 s46, s46, s52')
            for n in range(NT): b.e(f'v_add_u32 v{VAP+n}, s52, v{VAP+n}')
            b.e(f's_cmp_ge_u32 s45, {(NO_-1)*OS_}'); b.e(f's_cselect_b32 s52, s101, s100'); b.e('s_add_u32 s45, s45, s52')
            b.e(f'v_add_u32 v{VB}, s52, v{VB}')
        def mmu(U, first=False):
            return [E(f'{MF} {q4(12*n+4*j)}, {q4(fA(U,k,n))}, {q4(fB(U,k,j))}, {"0" if first and k == 0 else q4(12*n+4*j)}')
                    for k in range(2) for n in range(NT) for j in range(3)]
        c.e('s_mov_b32 s46, 0'); c.e(f's_mov_b32 s53, {WS_}'); c.e(f's_mov_b32 s54, {(-(NW_-1)*WS_) & 0xffffffff}')
        c.e('s_mov_b32 s45, 0'); c.e(f's_mov_b32 s100, {OS_}'); c.e(f's_mov_b32 s101, {(-(NO_-1)*OS_) & 0xffffffff}')
        c.e('s_mov_b32 s44, 0')
        if OWARM:
            c.e(f'v_lshrrev_b32 v{GS}, 5, v{VT+3}'); c.e(f'v_lshlrev_b32 v{GS}, 17, v{GS}')
            c.e(f'v_and_b32 v{GS+1}, 31, v{VT+3}'); c.e(f'v_lshl_add_u32 v{GS}, v{GS+1}, 7, v{GS}')
            c.e('s_lshl_b32 s55, s42, 18'); c.e('s_lshl_b32 s61, s41, 12'); c.e('s_add_u32 s55, s55, s61')
            if OWARM == 2: c.e(f'buffer_load_dword v{XF+3}, v{GS}, {srd(S_O)}, s55 offen', ('ow',))
        if FL == 1 and NT == 2:
            c.e('s_nop 15'); c.e('s_nop 15'); c.e('s_nop 15'); c.e('s_nop 15'); c.e('s_nop 15'); c.e('s_nop 15')
            c.e(f'buffer_store_dword v{VT+1}, v{VT}, {srd(S_F)}, s90 offen sc1', ('f1',))
        c.e('s_barrier')
        stamp(c, 6)
        if FL == 2 and NT == 2: c.e(f'buffer_store_dword v{VT+1}, v{VT}, {srd(S_F)}, s90 offen sc1', ('f1',))
        if OWARM == 1: c.e(f'buffer_load_dword v{XF+3}, v{GS}, {srd(S_O)}, s55 offen', ('ow',))
        c.e(f's_add_u32 s{S_OUT}, s14, s6'); c.e(f's_addc_u32 s{S_OUT+1}, s15, 0')
        c.e(f's_sub_u32 s{S_OUT+2}, 1769472, s6'); c.e(f's_mov_b32 s{S_OUT+3}, 0x20000')
        run(c, rd(0)); adv(c)
        c.e('s_waitcnt lgkmcnt(0)')
        run(c, interleave(mmu(0, True), rd(1) + [adv], end=GEND(NT)))
        c.e('s_waitcnt lgkmcnt(0)')
        run(c, mmu(1))
        c.e('s_barrier')
        stamp(c, 1, True)
        run(c, rd(0)); adv(c)
        def unit(x, U, extra=(), last=False):
            x.e('s_waitcnt lgkmcnt(0)')
            x.e('s_barrier')
            run(x, interleave(mmu(U), ([] if last else rd(U + 1) + [adv]) + list(extra), end=GEND(NT)))
        lp.e(f'{name}_LOOP:')
        unit(lp, 0); unit(lp, 1)
        lp.e('s_add_u32 s44, s44, 1'); lp.e('s_cmp_lt_u32 s44, 6'); lp.e(f's_cbranch_scc1 {name}_LOOP')
        fin = []
        def P(*lines): fin.extend(E(l) for l in lines)
        X = GS
        P('s_mov_b32 s7, 288', 's_lshl_b32 s6, s42, 6', f'v_add_u32 v{X}, s6, v{VT+3}')
        P(f'v_cmp_gt_u32 s[8:9], s7, v{X}', f'v_subrev_u32 v{X+1}, 32, v{X}', f'v_mov_b32 v{X+7}, 0x40000000')
        P(f'v_cndmask_b32 v{X}, v{X+1}, v{X}, s[8:9]', f'v_lshrrev_b32 v{X+1}, 4, v{X}')
        P(f'v_and_b32 v{X+2}, 15, v{X}', f'v_lshlrev_b32 v{X+2}, 4, v{X+2}', f'v_lshl_add_u32 v{XF}, v{X+1}, 9, v{X+2}')
        P(f'v_mul_u32_u24 v{X+4}, 57, v{X+1}', f'v_lshrrev_b32 v{X+4}, 9, v{X+4}')
        P(f'v_mul_u32_u24 v{X+5}, 18, v{X+4}', f'v_add_u32 v{X+5}, v{X+5}, v{X+1}')
        P(f'v_lshl_add_u32 v{XF+1}, v{X+5}, 8, v{X+2}')
        P(f'v_mul_u32_u24 v{X+6}, 9, v{X+4}', f'v_sub_u32 v{X+1}, v{X+1}, v{X+6}')
        P(f'v_mul_u32_u24 v{X+4}, 48, v{X+4}', f'v_and_b32 v{X+6}, 3, v{X}', f'v_add_u32 v{X+4}, v{X+4}, v{X+6}')
        P(f'v_mul_u32_u24 v{X+4}, 1152, v{X+4}', f'v_lshl_add_u32 v{X+4}, v{X+1}, 5, v{X+4}')
        P(f'v_bfe_u32 v{X+6}, v{X}, 2, 2', f'v_lshl_add_u32 v{X+4}, v{X+6}, 3, v{X+4}')
        P(f'v_cndmask_b32 v{XF+2}, v{X+7}, v{X+4}, s[8:9]')
        for i in range(3): P(f's_add_u32 s{56+i}, s47, {i+1}', f's_and_b32 s{56+i}, s{56+i}, 3', f's_mul_i32 s{56+i}, s{56+i}, {INB}')
        P('s_mov_b32 s10, 18432', 's_mov_b32 s11, 36864', 's_mov_b32 s59, 0xffff0000')
        fin2 = []
        fin2.append(lambda b: [b.e(l) for l in (f'v_bfe_u32 v{VE+2}, v{VT+3}, 2, 2', f'v_cmp_eq_u32 vcc, s47, v{VE+2}', f'v_mov_b32 v{VE+2}, 0x40000000',
                    f'v_and_b32 v{VE}, 0xff, v{VT+2}', f'v_cndmask_b32 v{VT+2}, v{VT+2}, v{VE+2}, vcc', f'v_lshlrev_b32 v{VE+1}, 2, v{VT+3}',
                    f'v_add_u32 v{VE+1}, {OWN+16384}, v{VE+1}', f'v_add_u32 v{VE}, s5, v{VE}',
                    f'v_and_b32 v{VE+1}, 0xfffffff0, v{VE+1}', f'v_cndmask_b32 v{VE}, v{VE+1}, v{VE}, vcc')])
        fin2 += [E(f'v_mov_b32 v{GS+4*k+3}, s98') for k in range(2 * NT)]
        unit(e, 14, fin)
        e.e('s_waitcnt lgkmcnt(0)')
        e.e('s_barrier')
        m = mmu(15)
        def send(n):
            r = [E(f'v_cvt_pk_bf16_f32 v{GS + 8*n + 4*(x//3) + x%3}, v{12*n+2*x}, v{12*n+2*x+1}') for x in range(6)]
            r += [E(f'buffer_store_dwordx4 {q4(GS+8*n+4*hf)}, v{VT+2}, {srd(S_P)}, s4 offen offset:{n*512 + hf*256} sc1', ('p',)) for hf in range(2)]
            r += [E(f'ds_write_b128 v{VE}, {q4(12*n+4*j)} offset:{j*2304 + n*256}', ('own',)) for j in range(3)]
            return r
        for n in range(NT):
            grp = m[3 * n:3 * n + 3] + m[3 * NT + 3 * n:3 * NT + 3 * n + 3]
            run(e, interleave(grp, fin2 if n == 0 else (send(n - 2) if n >= 2 else [])))
        stamp(e, 7)
        if NT == 2: e.e('s_nop 1')
        run(e, send(NT - 2)); run(e, send(NT - 1))
        if name != 'OP_BIG': e.e('s_branch OP_FIN')
        return c, lp, e
    sm = compute('OP_SML', SML, 2)
    bg = compute('OP_BIG', BIG, 5)
    ctx.active = list(BIG + SML)
    e = Block(ctx, 'op_end')
    e.e('OP_FIN:')
    e.e('s_waitcnt lgkmcnt(0)')
    e.e('s_barrier')
    stamp(e, 8)
    e.e('s_cmp_ge_u32 s42, 5')
    e.e('s_cbranch_scc1 OP_DONE')
    R0 = 168; OW = 64; X = 128
    for j in range(3): e.e(f'ds_read_b128 {q4(OW+4*j)}, v{XF+1} offset:{j*2304}', ('ow',))
    loads = '\n'.join(f'buffer_load_dwordx4 {q4(R0+8*src+4*hf)}, v{XF}, {srd(S_PI)}, s{56+src} offen offset:{hf*256} sc1' for src in range(3) for hf in range(2))
    chk = [f'v_xor_b32 v{X+6}, s98, v{R0+3}']
    for k in range(1, 6):
        chk += [f'v_xor_b32 v{X+7}, s98, v{R0+4*k+3}', f'v_or_b32 v{X+6}, v{X+6}, v{X+7}']
    chk.append(f'v_cmp_ne_u32 vcc, 0, v{X+6}')
    poll(e, 'OP_P2', loads, '\n'.join(chk))
    stamp(e, 9)
    e.e(f'buffer_store_dword v{VT+1}, v{VT}, {srd(S_F)}, s96 offen sc1', ('ep',))
    e.e('s_waitcnt lgkmcnt(0)')
    so = ['0', 's10', 's11']
    for j in range(3):
        for p in range(2):
            x = 2 * j + p
            for src in range(3):
                r = R0 + 8 * src + 4 * (x // 3) + x % 3
                e.e(f'v_lshlrev_b32 v{X+6}, 16, v{r}'); e.e(f'v_and_b32 v{X+7}, s59, v{r}')
                e.e(f'v_add_f32 v{OW+2*x}, v{OW+2*x}, v{X+6}'); e.e(f'v_add_f32 v{OW+2*x+1}, v{OW+2*x+1}, v{X+7}')
            e.e(f'v_cvt_pk_bf16_f32 v{OW+16+x}, v{OW+2*x}, v{OW+2*x+1}')
        e.e(f'buffer_store_dwordx2 {q2(OW+16+2*j)}, v{XF+2}, {srd(S_OUT)}, {so[j]} offen {OPT.get("outpol", "")}')
    ctx.active = ALLW
    e.e('OP_DONE:')
    if STAMP:
        if not OPT.get('rt4'): stamp(e, 10)
        dump_stamps(e)
    e.e('K1_END:')
    e.e('s_endpgm')
    traces = {}
    for w in SML: traces[w] = [b, sm[0], sm[1], sm[1], sm[2], e]
    for w in BIG: traces[w] = [b, bg[0], bg[1], bg[1], bg[2], e]
    traces[6] = [b, lw]; traces[7] = [b, lo]
    TXN = OPT.get('tx', '')
    if TXN:
        def after_c(blk):
            n = 0; out = []
            for i in blk:
                if i.kind == 'barrier': n += 1
                drop = n >= 2 and getattr(i, 'sub', '') == 'dma' and (TXN == 'none' or (TXN == 'noo' and 's[24:27]' in i.text) or (TXN == 'nowo' and 's[20:23]' in i.text))
                if not drop: out.append(i)
            blk[:] = out
        after_c(lw); after_c(lo); after_c(sm[0])
        if TXN in ('none', 'nowo'):
            for blk in sm[1:]: blk[:] = [i for i in blk if getattr(i, 'sub', '') != 'dma']
    return [b] + list(sm) + list(bg) + [e, lw, lo], traces

def kernel1():
    ctx = MCtx(8)
    pro = k1_prologue(ctx)
    qp = k1_qproj(ctx)
    ap = k1_att_prologue(ctx)
    p1 = pv_phase(ctx, 'P1', SA, SB, head=lambda a: a.e('K1_LOOP:'), dma=guarded(dma_v, 0) if LEAD == 6 else dma_v)
    SK2 = int(OPT.get('sk2', 2))
    p2 = qk_phase(ctx, 'P2', SA, SB, guarded(dma_k, 0) if KVREG else dma_k)
    p3 = pv_phase(ctx, 'P3', SB, SA, dma=guarded(dma_v, SK2) if KVREG == 1 else dma_v)
    p4 = qk_phase(ctx, 'P4', SB, SA, guarded(dma_k, SK2) if KVREG == 1 else dma_k)
    p4[2].e('s_add_u32 s44, s44, 1')
    p4[2].e('s_cmp_lt_u32 s44, 7')
    p4[2].e('s_cbranch_scc1 K1_LOOP')
    def warm(b):
        b.e(f'v_lshrrev_b32 v{KR}, 6, v{VL16}'); b.e(f'v_mul_u32_u24 v{KR}, 1152, v{KR}')
        b.e(f'v_and_b32 v{KR+1}, 48, v{VL16}'); b.e(f'v_lshlrev_b32 v{KR+1}, 3, v{KR+1}'); b.e(f'v_min_u32 v{KR+1}, 316, v{KR+1}')
        b.e(f'v_add_u32 v{KR}, v{KR}, v{KR+1}')
        b.e(f'buffer_load_dword v{SA+23}, v{KR}, s[28:31], 0 offen', ('warm',))
        if TLB:
            b.e('s_mov_b32 s32, s18'); b.e('s_mov_b32 s33, s19'); b.e(f's_mov_b32 s34, {FOFF}'); b.e('s_mov_b32 s35, 0x20000')
            b.e('s_mul_i32 s55, s40, 1572864'); b.e('s_lshl_b32 s56, s41, 12'); b.e('s_add_u32 s55, s55, s56')
            b.e('s_and_b32 s56, s41, 7'); b.e('s_lshl_b32 s62, s40, 3'); b.e('s_add_u32 s56, s56, s62')
            b.e(f's_mul_i32 s56, s56, {16*INB}'); b.e(f's_add_u32 s56, s56, {POFF - 12 * 4 * INB}')
            b.e(f'v_lshrrev_b32 v{KR+2}, 4, v{VL16}')
            b.e(f'v_lshlrev_b32 v{KR}, 17, v{KR+2}'); b.e(f'v_add_u32 v{KR}, s55, v{KR}')
            b.e(f'v_mul_u32_u24 v{KR+1}, {4*INB}, v{KR+2}'); b.e(f'v_add_u32 v{KR+1}, s56, v{KR+1}')
            b.e(f'v_cmp_gt_u32 vcc, 12, v{KR+2}'); b.e('s_nop 1'); b.e(f'v_cndmask_b32 v{KR}, v{KR+1}, v{KR}, vcc')
            b.e(f'v_cmp_gt_u32 vcc, 16, v{KR+2}'); b.e(f'v_mov_b32 v{KR+1}, 0x40000000'); b.e('s_nop 0'); b.e(f'v_cndmask_b32 v{KR}, v{KR+1}, v{KR}, vcc')
            b.e(f'buffer_load_dword v{SA+22}, v{KR}, s[32:35], 0 offen sc1', ('warm',))
            b.e('s_mov_b32 s32, s14'); b.e('s_mov_b32 s33, s15'); b.e('s_mov_b32 s34, 1769472')
            b.e('s_mul_i32 s55, s40, 221184'); b.e(f'v_lshlrev_b32 v{KR}, 22, v{KR+2}')
            b.e(f'buffer_load_dword v{SA+22}, v{KR}, s[32:35], s55 offen', ('warm',))
    l1 = pv_phase(ctx, 'L1', SA, SB, nextK=False, dma=warm if WARM in (1, 2) else None, split=LSPLIT)
    l2 = Block(ctx, 'L2')
    l2.e(f's_waitcnt vmcnt({(1 if WARM in (1, 2) else 0) + 2 * min(TLB, 1)})')
    l2.e('s_barrier')
    if OPT.get('l2s'): stamp(l2, 2)
    for r in (A, B):
        with role(l2, r):
            for k in range(4): vread_as(l2, order_of(r)[k], k)
    l2.e('s_mul_i32 s43, s42, 12288'); l2.e('s_xor_b32 s46, s42, 4'); l2.e('s_mul_i32 s46, s46, 12288')
    l2.e(f's_add_u32 s43, s43, {EXB}'); l2.e(f's_add_u32 s46, s46, {EXB}')
    l2.e(f'v_add_u32 v{XA}, s43, v{VL16}'); l2.e(f'v_add_u32 v{XA+1}, s46, v{VL16}')
    run(l2, sm_fillers(SB)[LSPLIT:] + chk_fillers())
    l2.e('s_cbranch_vccnz L2_RARE')
    l2r = rare_path(ctx, 'L2', SB, None, 2)
    l3 = last_pv(ctx)
    ep = k1_epilogue(ctx)
    errs = []
    body = [p1, p2[0], p2[2], p3, p4[0], p4[2]]
    bodyr = [p1, p2[0], p2[1], p2[2], p3, p4[0], p4[1], p4[2]]
    last = [l1, l2, l3, ep]
    lastr = [l1, l2, l2r, l3, ep]
    tail, ttr = oproj(ctx)
    for r in ALLW:
        errs += check_trace([pro, qp, ap] + body + body + last + ttr[r], f'main{r}', r)
        errs += check_trace([pro, qp, ap] + bodyr + bodyr + body + lastr, f'rare{r}', r)
    if NOCOMP:
        for blk in body:
            keep = [i for i in blk if i.kind not in ('mfma', 'valu', 'trans') and not (NOCOMP > 1 and i.kind == 'ds') and 'vccnz' not in i.text]
            blk[:] = keep
        errs = []
    DROP = OPT.get('drop', '')
    if DROP:
        D = DROP.split(',')
        def dropit(i):
            t = i.text
            if 'vccnz' in t: return True
            if 'exp' in D and t.startswith('v_exp'): return True
            if 'add' in D and t.startswith('v_add_f32'): return True
            if 'cvt' in D and t.startswith('v_cvt'): return True
            if 'ds' in D and i.kind == 'ds': return True
            if 'wait' in D and i.kind == 'wait': return True
            if 'bar' in D and i.kind == 'barrier': return True
            if 'adv' in D and (t.startswith('v_add_u32') or t.startswith('s_cmp_ge') or t.startswith('s_cselect') or t.startswith('s_add_u32 s45') or t.startswith('s_add_u32 s46')): return True
            if 'mfma' in D and i.kind == 'mfma': return True
            return False
        for blk in body: blk[:] = [i for i in blk if not dropit(i)]
        errs = []
    order = [pro, qp, ap] + body + last + tail + [p2[1], p4[1], l2r]
    return order, errs

def kernel2():
    ctx = MCtx(8)
    b = Block(ctx, 'k2')
    b.e('s_cmp_ge_u32 s2, 256')
    b.e('s_cbranch_scc1 K2_END')
    b.e('s_load_dwordx8 s[12:19], s[0:1], 32')
    if STAMP:
        for i in range(6): b.e(f's_memtime s[{64+2*i}:{65+2*i}]')
        b.e('s_memrealtime s[86:87]')
    b.e('v_lshrrev_b32 v1, 6, v0')
    b.e('v_and_b32 v0, 63, v0')
    b.e('v_readfirstlane_b32 s42, v1')
    b.e('s_and_b32 s43, s2, 7'); b.e('s_lshr_b32 s44, s2, 3')
    b.e('s_and_b32 s40, s43, 1'); b.e('s_lshl_b32 s40, s40, 2'); b.e('s_and_b32 s45, s44, 3'); b.e('s_add_u32 s40, s40, s45')
    b.e('s_lshr_b32 s41, s43, 1'); b.e('s_lshl_b32 s41, s41, 3'); b.e('s_lshr_b32 s46, s44, 2'); b.e('s_add_u32 s41, s41, s46')
    b.e(f'v_lshlrev_b32 v{VL16}, 4, v0')
    b.e('s_waitcnt lgkmcnt(0)')
    flag_srd(b)
    epoch_load(b, 222)
    b.e('s_waitcnt vmcnt(0)')
    epoch_tags(b, 222)
    run(b, tail_setup())
    t = oproj(ctx)
    errs = []
    for r in ALLW: errs += check_trace([b, t[0], t[1], t[1], t[2], t[2], t[3]], f'k2_{r}', r)
    return [b] + list(t), errs

HEADER = open('standalone__mha_block_cached__near_ridge.s.ref').read().split('; Override')[0]

DOC = '''; One workgroup per (batch, head), 8 waves, one launch:
;  3. the 8 heads of a group trade o through d_ws; every workgroup multiplies a 96 x 144 output tile over
;     these 8 heads; the 4 head groups trade the partial sums (tagged granules) and each finishes a quarter.
; Hand-off words carry a launch tag derived from an epoch word in d_ws that the launch advances at its end.
'''

def kd(name, vgpr, sgpr=96):
    return f'''.amdhsa_kernel {name}
  .amdhsa_next_free_vgpr {vgpr}
  .amdhsa_next_free_sgpr {sgpr}
  .amdhsa_accum_offset {(vgpr+3)//4*4}
  .amdhsa_group_segment_fixed_size 0
  .amdhsa_kernarg_size 64
  .amdhsa_user_sgpr_count 2
  .amdhsa_user_sgpr_kernarg_segment_ptr 1
  .amdhsa_system_sgpr_workgroup_id_x 1
.end_amdhsa_kernel
'''

def main():
    k1, e1 = kernel1()
    k2, e2 = kernel2() if not FUSED else ([], [])
    for e in list(dict.fromkeys(x.split('] ', 1)[1] for x in e1 + e2))[:12]: print('CHECK', e, file=sys.stderr)
    out = HEADER
    if FUSED:
        N = 'standalone__mha_block_cached__near_ridge_kernel'
        out += f'; @launch grid=(256,1,1) block=(512,1,1) lds={LDS_TOT}\n'
        ks = [(N, k1)]
    else:
        out += f'; @launch kernel=mha_attn_kernel grid=(256,1,1) block=(512,1,1) lds={LDS_TOT}\n'
        out += f'; @launch kernel=mha_oproj_kernel grid=(256,1,1) block=(512,1,1) lds={LDS_TOT}\n'
        ks = [('mha_attn_kernel', k1), ('mha_oproj_kernel', k2)]
    out += DOC + '.amdgcn_target "amdgcn-amd-amdhsa--gfx950"\n.text\n'
    for name, blocks in ks:
        out += f'.globl {name}\n.p2align 8\n.type {name},@function\n{name}:\n'
        out += '\n'.join(b.text() for b in blocks) + '\n'
    out += '.section .rodata,"a"\n'
    for name, _ in ks: out += '.p2align 6\n' + kd(name, 256, 102)
    open(sys.argv[1], 'w').write(out)
    if e1 or e2: sys.exit(1)
main()
```
